```python
import torch

def _softmax(x, axis=-1):
    return torch.softmax(x, dim=axis)
def _gelu(x):
    return torch.nn.functional.gelu(x, approximate="tanh")
def _silu(x):
    return torch.nn.functional.silu(x)
def _sigmoid(x):
    return torch.sigmoid(x)
def _layernorm(x, axis=-1, eps=1e-5):
    m = x.mean(dim=axis, keepdim=True)
    v = x.var(dim=axis, keepdim=True, unbiased=False)
    return (x - m) / torch.sqrt(v + eps)
def _scatter_add(tgt, idx, src, axis=0):
    return tgt.clone().index_add_(axis, idx, src)
def _segment_sum(src, seg, n):
    out = torch.zeros((n,) + src.shape[1:], dtype=src.dtype)
    return out.index_add_(0, seg, src)
def _pad(x, pw):
    flat = tuple(v for pair in reversed(pw) for v in pair)
    return torch.nn.functional.pad(x, flat)

kernel_name = 'recurrent_scan__spectral_gfnet__dense_activation_gelu__prompt'

def setup_inputs():

    _w = (lambda a: (lambda t: t.to(torch.bfloat16) if t.is_floating_point() else t)(torch.as_tensor(a)))
    def _A_setup():
        B, S, D = 1, 2048, 576
        Df = D // 2 + 1
        return {
            "x": _w((lambda *s: torch.randn(*s, dtype=torch.bfloat16) * 0.05)(B, S, D)),
            "w_r": _w((lambda *s: torch.randn(*s, dtype=torch.bfloat16) * 3.2)(S, Df) * 0.02),
            "w_i": _w((lambda *s: torch.randn(*s, dtype=torch.bfloat16) * 3.2)(S, Df) * 0.02),
        }
    _A_in = _A_setup()

    def _B_setup():
        B, S, D, F = 1, 2048, 576, 4608
        return {
            "x": _w((lambda *s: torch.randn(*s, dtype=torch.bfloat16) * 0.05)(B, S, D)),
            "w1": _w((lambda *s: torch.randn(*s, dtype=torch.bfloat16) * 3.2)(D, F) * (D ** -0.5)),
            "b1": _w((lambda *s: torch.randn(*s, dtype=torch.bfloat16) * 3.2)(F) * 0.01),
            "w2": _w((lambda *s: torch.randn(*s, dtype=torch.bfloat16) * 0.4)(F, D) * (F ** -0.5)),
            "b2": _w((lambda *s: torch.randn(*s, dtype=torch.bfloat16) * 0.4)(D) * 0.01),
        }
    _B_in = _B_setup()

    return {
        "A_x": _A_in["x"],
        "A_w_r": _A_in["w_r"],
        "A_w_i": _A_in["w_i"],
        "B_x": _B_in["x"],
        "B_w1": _B_in["w1"],
        "B_b1": _B_in["b1"],
        "B_w2": _B_in["w2"],
        "B_b2": _B_in["b2"],
    }

def reference(A_x, A_w_r, A_w_i, B_x, B_w1, B_b1, B_w2, B_b2):
    def _A_ref(x, w_r, w_i):
        B, S, D = x.shape
        X = (lambda x, axes=(-2,-1): torch.fft.rfft2(x.float(), dim=axes))(x, axes=(-2, -1))
        W = w_r + 1j * w_i
        X = X * W
        y = (lambda x, s, axes=(-2,-1): torch.fft.irfft2(x, s=s, dim=axes).to(torch.bfloat16))(X, (S, D), axes=(-2, -1))
        return y

    def _B_ref(x, w1, b1, w2, b2):
        h = torch.einsum("bsd,df->bsf", x, w1) + b1
        h = _gelu(h)
        return torch.einsum("bsf,fd->bsd", h, w2) + b2

    x = A_x
    xn = _layernorm(x, axis=-1)
    s = _A_ref(xn, A_w_r, A_w_i)
    g = _silu(_B_ref(xn, B_w1, B_b1, B_w2, B_b2))
    return x + s * g
```

```python
import math, struct
NAME = "recurrent_scan__spectral_gfnet__dense_activation_gelu__prompt"
def f2u(x): return struct.unpack('<I', struct.pack('<f', x))[0]
def bf16(x):
    u = f2u(x)
    return ((u + 0x7fff + ((u >> 16) & 1)) >> 16) & 0xffff
class A:
    def __init__(self):
        self.l = []; self.q = []
    def __call__(self, s):
        for x in s.split('\n'):
            x = x.strip()
            if x: self.l.append(('' if x.endswith(':') else '  ') + x)
    def lds(self, s, tag=None):
        self(s); self.q.append(tag)
    def need(self, *tags):
        idx = -1
        for i, t in enumerate(self.q):
            if t in tags: idx = i
        if idx < 0: return
        n = len(self.q) - 1 - idx
        n = min(n, 15)
        self(f's_waitcnt lgkmcnt({n})')
        self.q = self.q[len(self.q)-n:] if n else []
    def drain(self):
        self('s_waitcnt lgkmcnt(0)'); self.q = []
    def text(self): return '\n'.join(self.l) + '\n'
def kstart(name):
    return f'.globl {name}\n.p2align 8\n.type {name},@function\n{name}:\n'
def kdesc(name, vgpr, accum, sgpr=102):
    return f'''.p2align 6
.amdhsa_kernel {name}
  .amdhsa_next_free_vgpr {vgpr}
  .amdhsa_next_free_sgpr {sgpr}
  .amdhsa_accum_offset {accum}
  .amdhsa_group_segment_fixed_size 0
  .amdhsa_kernarg_size 88
  .amdhsa_user_sgpr_count 2
  .amdhsa_user_sgpr_kernarg_segment_ptr 1
  .amdhsa_system_sgpr_workgroup_id_x 1
  .amdhsa_float_denorm_mode_32 3
.end_amdhsa_kernel
'''
def srd(a, d, b, nbytes, off=0):
    if off:
        a(f's_add_u32 s{d}, s{b}, {off}\ns_addc_u32 s{d+1}, s{b+1}, 0\ns_and_b32 s{d+1}, s{d+1}, 0xffff')
    else:
        a(f's_mov_b32 s{d}, s{b}\ns_and_b32 s{d+1}, s{b+1}, 0xffff')
    a(f's_mov_b32 s{d+2}, {nbytes}\ns_mov_b32 s{d+3}, 0x00020000')
def vr(b, n=4): return f'v[{b}:{b+n-1}]'
def ar(b, n=4): return f'a[{b}:{b+n-1}]'
H_OFF = 0;            H_SZ = 64*288*1024
PART_OFF = H_SZ;      PART_SZ = 64*18*8*2048
V_OFF = PART_OFF + PART_SZ; V_SZ = 32*9*64*128
P_OFF = V_OFF + V_SZ; P_SZ = V_SZ
STAMP_OFF = 64 << 20
def tables():
    s = ''
    for i in range(576):
        v = math.cos(2*math.pi*i/576)
        if abs(v) < 1e-9: v = 0.0
        s += f'.set .Lc{i}, {bf16(v)}\n'
    s += r'''.altmacro
.macro put8 q0,q1,q2,q3,q4,q5,q6,q7
.short .Lc\q0,.Lc\q1,.Lc\q2,.Lc\q3,.Lc\q4,.Lc\q5,.Lc\q6,.Lc\q7
.endm
.p2align 12
.type tabF,@object
tabF:
.set .Lj, 0
.rept 9
 .set .Lks, 0
 .rept 36
  .set .Lph, 0
  .rept 2
   .set .Ll, 0
   .rept 64
    .set .Lk, 32*.Lj + 2*((((.Ll>>4)&1)<<3) | (.Ll&7)) + ((.Ll>>3)&1)
    .set .Lp, (16*.Lks + 8*(.Ll >> 5))*.Lk + .Lph
    .if (.Lk + .Lph) == 0
     .short 0x3f00,0xbf00,0x3f00,0xbf00,0x3f00,0xbf00,0x3f00,0xbf00
    .else
     put8 %((.Lp)%576),%((.Lp+.Lk)%576),%((.Lp+2*.Lk)%576),%((.Lp+3*.Lk)%576),%((.Lp+4*.Lk)%576),%((.Lp+5*.Lk)%576),%((.Lp+6*.Lk)%576),%((.Lp+7*.Lk)%576)
    .endif
    .set .Ll, .Ll+1
   .endr
   .set .Lph, .Lph+144
  .endr
  .set .Lks, .Lks+1
 .endr
 .set .Lj, .Lj+1
.endr
.size tabF, .-tabF
.type tabG,@object
tabG:
.set .Lcc, 0
.rept 9
 .set .Lj, 0
 .rept 9
  .set .Lt, 0
  .rept 2
   .set .Lph, 0
   .rept 2
    .set .Ll, 0
    .rept 64
     .set .Ln, 32*.Lcc + (.Ll&31)
     .set .Lk, 32*.Lj + 16*(.Ll>>5) + .Lt
     .set .Lp, .Ln*.Lk + .Lph
     .set .Lz, .Lp
     .if .Lk == 0
      .set .Lz, .Ln*288 + .Lph
     .endif
     put8 %((.Lz)%576),%((.Lp+2*.Ln)%576),%((.Lp+4*.Ln)%576),%((.Lp+6*.Ln)%576),%((.Lp+8*.Ln)%576),%((.Lp+10*.Ln)%576),%((.Lp+12*.Ln)%576),%((.Lp+14*.Ln)%576)
     .set .Ll, .Ll+1
    .endr
    .set .Lph, .Lph+144
   .endr
   .set .Lt, .Lt+1
  .endr
  .set .Lj, .Lj+1
 .endr
 .set .Lcc, .Lcc+1
.endr
.size tabG, .-tabG
.type tab64,@object
tab64:
.irp ph,0,432,144
 .set .Lcc, 0
 .rept 2
  .set .Lks, 0
  .rept 4
   .set .Ll, 0
   .rept 64
    .set .Ln, 9*(32*.Lcc + (.Ll&31))
    .set .Lp, .Ln*(16*.Lks + 4*(.Ll>>5)) + \ph
    put8 %((.Lp)%576),%((.Lp+.Ln)%576),%((.Lp+2*.Ln)%576),%((.Lp+3*.Ln)%576),%((.Lp+8*.Ln)%576),%((.Lp+9*.Ln)%576),%((.Lp+10*.Ln)%576),%((.Lp+11*.Ln)%576)
    .set .Ll, .Ll+1
   .endr
   .set .Lks, .Lks+1
  .endr
  .set .Lcc, .Lcc+1
 .endr
.endr
.size tab64, .-tab64
.noaltmacro
'''
    return s
```

```python
import math, struct
from common import NAME, f2u, bf16, kstart, kdesc, srd, vr, ar
class E:
    def __init__(self):
        self.l = []; self.st = {'l': {}, 'v': {}}; self.ool = []; self.nlab = 0
    def __call__(self, s):
        for x in s.split('\n'):
            x = x.strip()
            if x: self.l.append(('' if x.endswith(':') else ' ') + x)
    def _iss(self, k, s, tag):
        self(s); d = self.st[k]
        for t in d: d[t] += 1
        if tag is not None: d[tag] = 0
    def lds(self, s, tag=None): self._iss('l', s, tag)
    def vm(self, s, tag=None): self._iss('v', s, tag)
    def _need(self, k, tags):
        d = self.st[k]; c = [d[t] for t in tags if t in d]
        if not c: return
        n = min(min(c), 15 if k == 'l' else 63)
        self(f's_waitcnt {"lgkmcnt" if k == "l" else "vmcnt"}({n})')
        for t in [t for t in d if d[t] >= n]: del d[t]
    def need(self, *tags): self._need('l', tags)
    def vneed(self, *tags): self._need('v', tags)
    def drain(self): self('s_waitcnt lgkmcnt(0)'); self.st['l'] = {}
    def vdrain(self): self('s_waitcnt vmcnt(0)'); self.st['v'] = {}
    def snap(self): return {k: dict(v) for k, v in self.st.items()}
    def restore(self, s): self.st = {k: dict(v) for k, v in s.items()}
    def merge(self, *snaps):
        for k in self.st:
            d = {}
            for s in snaps:
                for t, c in s[k].items(): d[t] = min(d.get(t, c), c)
            self.st[k] = d
    def label(self, p='L'):
        self.nlab += 1; return f'{p}_{self.nlab}'
    def text(self): return '\n'.join(self.l + self.ool) + '\n'
H_OFF = 0;            H_SZ = 64*288*1024
PART_OFF = H_SZ;      PART_SZ = 64*18*8*2048
V_OFF = PART_OFF + PART_SZ; V_SZ = 32*9*64*128
P_OFF = V_OFF + V_SZ; P_SZ = V_SZ
FL_OFF = P_OFF + P_SZ
PFL_OFF = FL_OFF + 131072
VFL_OFF = PFL_OFF + 4096
FL2_OFF = VFL_OFF + 8192
DUM_OFF = FL2_OFF + 16384
WS_SZ = DUM_OFF + V_SZ
STAMP_OFF = 64 << 20
TABF_SZ = 5*73728; TABG_SZ = 3*110592; TAB64_SZ = 24576
def tables():
    s = ''
    for i in range(576):
        v = math.cos(2*math.pi*i/576)
        if abs(v) < 1e-9: v = 0.0
        s += f'.set .Lc{i}, {bf16(v)}\n'
    s += r'''.altmacro
.macro put8 q0,q1,q2,q3,q4,q5,q6,q7
.short .Lc\q0,.Lc\q1,.Lc\q2,.Lc\q3,.Lc\q4,.Lc\q5,.Lc\q6,.Lc\q7
.endm
.p2align 12
.type tabF,@object
tabF:
.set .Lj, 0
.rept 5
 .set .Lks, 0
 .rept 36
  .set .Lph, 0
  .rept 2
   .set .Ll, 0
   .rept 64
    .set .Lk, 32*.Lj + 1 + 16*((.Ll>>2)&1) + 4*((.Ll>>3)&3) + (.Ll&3)
    .set .Lp, (32*(.Lks>>1) + (.Lks&1) + 8*(.Ll >> 5))*.Lk + .Lph
    .if .Lk == 160
     .set .Lz, (0x3f00 + 0x8000*(.Lks&1)) * (1 - .Lph/144)
     .short .Lz,.Lz,.Lz,.Lz,.Lz,.Lz,.Lz,.Lz
    .else
     put8 %((.Lp)%576),%((.Lp+2*.Lk)%576),%((.Lp+4*.Lk)%576),%((.Lp+6*.Lk)%576),%((.Lp+16*.Lk)%576),%((.Lp+18*.Lk)%576),%((.Lp+20*.Lk)%576),%((.Lp+22*.Lk)%576)
    .endif
    .set .Ll, .Ll+1
   .endr
   .set .Lph, .Lph+144
  .endr
  .set .Lks, .Lks+1
 .endr
 .set .Lj, .Lj+1
.endr
.size tabF, .-tabF
.type tabG,@object
tabG:
.set .Ltr, 0
.rept 3
.set .Lj, 0
.rept 9
 .set .Lcc, 0
 .rept 3
  .set .Lt, 0
  .rept 2
   .set .Lph, 0
   .rept 2
    .set .Ll, 0
    .rept 64
     .set .Ln, 32*.Ltr + 96*.Lcc + (.Ll&31)
     .set .Lk, 32*.Lj + 16*(.Ll>>5) + .Lt + 1 - (.Lj/5)
     .set .Lp, .Ln*.Lk + .Lph
     .set .Lz, .Lp+14*.Ln
     .if .Lk == 146
      .set .Lz, .Ln*288 + .Lph
     .endif
     put8 %((.Lp)%576),%((.Lp+2*.Ln)%576),%((.Lp+8*.Ln)%576),%((.Lp+10*.Ln)%576),%((.Lp+4*.Ln)%576),%((.Lp+6*.Ln)%576),%((.Lp+12*.Ln)%576),%((.Lz)%576)
     .set .Ll, .Ll+1
    .endr
    .set .Lph, .Lph+144
   .endr
   .set .Lt, .Lt+1
  .endr
  .set .Lcc, .Lcc+1
 .endr
 .set .Lj, .Lj+1
.endr
.set .Ltr, .Ltr+1
.endr
.size tabG, .-tabG
.type tab64,@object
tab64:
.irp ph,0,432,144
 .set .Lcc, 0
 .rept 2
  .set .Lks, 0
  .rept 4
   .set .Ll, 0
   .rept 64
    .set .Ln, 9*(32*.Lcc + (.Ll&31))
    .set .Lp, .Ln*(16*.Lks + 4*(.Ll>>5)) + \ph
    put8 %((.Lp)%576),%((.Lp+.Ln)%576),%((.Lp+2*.Ln)%576),%((.Lp+3*.Ln)%576),%((.Lp+8*.Ln)%576),%((.Lp+9*.Ln)%576),%((.Lp+10*.Ln)%576),%((.Lp+11*.Ln)%576)
    .set .Ll, .Ll+1
   .endr
   .set .Lks, .Lks+1
  .endr
  .set .Lcc, .Lcc+1
 .endr
.endr
.size tab64, .-tab64
.noaltmacro
'''
    return s
```

```python
import sys
from common2 import *
M = 'v_mfma_f32_32x32x16_bf16'
VL16=0; VT1=1; VLANE=2; VT3=3; VA1=4; VB1=5; VA2=6; VB2=7
XF=8; ACC=[152,184]; TMP=216; HO=224; TA=240; VBI=246; VC0=247; VFL=248; VPO=250; VTB=252; VTT=254
HF=32; TW=176
SX,SW1,SW2,SWS,SWR,SWI,SOUT,SB,SDBG = 4,8,12,16,20,24,28,32,36
sWV,sI,sC,sB,sROLE,sNON = 40,41,42,43,44,45
sO1=46; sO2=55; sW2K=64; sHS=65; sPS=66; sFLG=67; sT=68; sT2=69; sGC1=70; sP=71
sRHO=39
sX0=96
R_ODD,R_DFT,R_SMID,R_UNIT,R_FIN,R_FINW,R_PATCH = 0,1,2,3,4,5,6
PF=2; NB=4
GC0 = -2.0*math.log2(math.e)*math.sqrt(2/math.pi); GC1 = GC0*0.044715
BIAS_LDS = 147456
class Cfg:
    stamps=False; st='1,2,3,4,5,6,7,8,9,10'; xa=3; lg=2; tn=108; pfg=44; ofl=''; h8=88; fg=24; pg=52; cg=8; tb=4; normin=0; rx=4; rota=2; rotb=1; touch='x2,w,tab,code'; spin=100000; slp=8; rr=1; wt=1
def S(b): return f's[{b}:{b+3}]'
def stamp(a, nm):
    if not Cfg.stamps: return
    L = ['0'] + Cfg.st.split(',') + ['11']
    nm = str(nm)
    if nm in L:
        i = L.index(nm) if nm != '11' else 11
        a(f's_memrealtime s[{72+2*i}:{73+2*i}]')
def stamp_flush(a, n):
    if not Cfg.stamps: return
    a.vdrain(); stamp(a, n); n += 1
    a(f'''s_waitcnt lgkmcnt(0)
    s_mov_b32 s{SWS+2}, {STAMP_OFF + (1<<20)}
    v_mov_b32 v1, 0''')
    for i in range(n): a(f'v_writelane_b32 v1, s{72+2*i}, {i}')
    a(f'''s_lshl_b32 s{sT}, s2, 3
    s_add_u32 s{sT}, s{sT}, s{sWV}
    s_lshl_b32 s{sT}, s{sT}, 6
    s_add_u32 s{sT}, s{sT}, {STAMP_OFF}
    v_lshlrev_b32 v3, 2, v{VLANE}
    s_mov_b64 exec, 0xffff
    buffer_store_dword v1, v3, {S(SWS)}, s{sT} offen
    s_mov_b64 exec, -1''')
def brole(a, bit, lab, ifset=True):
    a(f's_bitcmp1_b32 s{sROLE}, {bit}\ns_cbranch_scc{1 if ifset else 0} {lab}')

def V(s, c=1): return (c, lambda a: a(s))
def VM(s, tag=None): return (1, lambda a: a.vm(s, tag))
def LD(s, tag=None): return (1, lambda a: a.lds(s, tag))
def FN(f, c=1): return (c, f)
def SVM(pre, s, tag=None): return (1, lambda a: (a(pre), a.vm(s, tag)))
def emit(a, ops):
    for _, f in ops: f(a)

def mix(x, y):
    o = []; k = 0
    for i, e in enumerate(x):
        o.append(e)
        t = len(y)*(i+1)//len(x)
        while k < t: o.append(y[k]); k += 1
    return o
def gelu_ops(acc, job):
    ops = []; G = 4
    for g in range(0, 32, G):
        t = [TMP + (g//G % 2)*4 + i for i in range(G)]
        x = [acc + g + i for i in range(G)]
        for i in range(G): ops.append(V(f'v_mul_f32 v{t[i]}, v{x[i]}, v{x[i]}'))
        for i in range(G): ops.append(V(f'v_fma_f32 v{t[i]}, v{t[i]}, s{sGC1}, v{VC0}'))
        for i in range(G): ops.append(V(f'v_mul_f32 v{t[i]}, v{t[i]}, v{x[i]}'))
        for i in range(G): ops.append(V(f'v_exp_f32 v{t[i]}, v{t[i]}', 2))
        for i in range(G): ops.append(V(f'v_add_f32 v{t[i]}, 1.0, v{t[i]}'))
        for i in range(G): ops.append(V(f'v_rcp_f32 v{t[i]}, v{t[i]}', 2))
        for i in range(G): ops.append(V(f'v_mul_f32 v{t[i]}, v{t[i]}, v{x[i]}'))
        for i in range(0, G, 2): ops.append(V(f'v_cvt_pk_bf16_f32 v{HO + (g+i)//2}, v{t[i]}, v{t[i+1]}'))
        for i in range(0, G, 2): ops.append(V(f'v_accvgpr_write_b32 a{HF + 16*job + (g+i)//2}, v{HO + (g+i)//2}'))
        if g % 8 == 4:
            q = g // 8
            if q == 0: ops.append(V(f's_add_u32 s{sT2}, s{sHS}, {4096*job}'))
            ops.append(VM(f'buffer_store_dwordx4 {vr(HO+4*q)}, v{VL16}, {S(SWS)}, s{sT2} offen offset:{1024*q} sc1', ('h', job)))
    return ops
def part_ops(acc, lam):
    ops = []
    for q in range(4):
        if q % 2 == 0: ops.append(V(f's_add_u32 s{sT2}, s{sPS}, {16384*(2*lam + q//2)}'))
        for i in range(4): ops.append(V(f'v_cvt_pk_bf16_f32 v{HO+4*q+i}, v{acc+8*q+2*i}, v{acc+8*q+2*i+1}'))
        ops.append(VM(f'buffer_store_dwordx4 {vr(HO+4*q)}, v{VL16}, {S(SWS)}, s{sT2} offen offset:{1024*(q%2)} sc1', ('p', lam)))
    return ops
def clear_ops(sreg, imms, tag, r=HO):
    ops = [V(f'v_mov_b32 v{r+i}, -1') for i in range(4)]
    ops = [(0, f) for _, f in ops]
    for im in imms:
        for k in range(2): ops.append(SVM(f's_add_u32 s3, s{sreg}, {im}', f'buffer_store_dwordx4 {vr(r)}, v{VL16}, {S(SWS)}, s3 offen offset:{1024*k} sc1', tag))
    return ops
def sent_check(a, tag, regs, t, reload_lines):
    lc = a.label('SC'); ls = a.label('SS'); lk = a.label('SK')
    a.vneed(tag)
    a(f'{lc}:')
    rs = []
    for i, r in enumerate(regs):
        if r[0] == 'a': a(f'v_accvgpr_read_b32 v{t+i}, {r}'); rs.append(f'v{t+i}')
        else: rs.append(r)
    a(f'v_max_u32 v{t}, {rs[0]}, {rs[1]}')
    for i in range(2, len(rs), 2): a(f'v_max3_u32 v{t}, v{t}, {rs[i]}, {rs[i+1]}')
    a(f'v_cmp_eq_u32 vcc, -1, v{t}\ns_nop 1\ns_cmp_lg_u64 vcc, 0\ns_cbranch_scc1 {ls}\n{lk}:')
    a.ool += [f'{ls}:', f' s_sub_u32 s{sP}, s{sP}, 1', f' s_cbranch_scc1 {ls}_x', f' s_sleep {Cfg.slp}'] + [' ' + x for x in reload_lines] + [' s_waitcnt vmcnt(0)', f' s_branch {lc}',
              f'{ls}_x:', f' s_mov_b32 s{sP}, 0', f' s_branch {lk}']
def lines_of(ops):
    t = E(); emit(t, ops); return [x.strip() for x in t.l]
def norm_ops(u):
    T = HO; r = XF + 8*u; ops = []
    for i in range(8): ops.append(V(f'v_dot2_f32_bf16 v{T+i}, v{r+i}, v{TMP+4}, v{TMP}'))
    for i in range(8): ops.append(V(f'v_dot2_f32_bf16 v{T+8+i}, v{r+i}, v{TMP+5}, v{TMP}'))
    for i in range(8): ops.append(V(f'v_cvt_pk_bf16_f32 v{r+i}, v{T+2*i}, v{T+2*i+1}'))
    return ops
def setflag(a, stage, *tags, off=None):
    a(f'v_mov_b32 v{VFL+1}, {stage}')
    a.vneed(*tags)
    a('s_mov_b64 exec, 1')
    a.vm(f'buffer_store_dwordx2 {vr(VFL,2)}, off, {S(SWS)}, s{sFLG if off is None else off} sc1')
    a('s_mov_b64 exec, -1')
def poll_ins(p, voff, soff): return f'buffer_load_dwordx2 {vr(p,2)}, v{voff}, {S(SWS)}, {soff} offen sc1' if voff is not None else f'buffer_load_dwordx2 {vr(p,2)}, off, {S(SWS)}, {soff} sc1'
def poll_test(a, p, need):
    a(f'''v_subrev_u32 v{p+1}, {need}, v{p+1}
    v_cmp_ne_u32 vcc, s{sNON}, v{p}
    v_cmp_lt_u32 s[{sX0+4}:{sX0+5}], 60, v{p+1}
    s_nop 1
    s_or_b64 vcc, vcc, s[{sX0+4}:{sX0+5}]''')
def poll_check(a, tag, p, voff, soff, need):
    lc = a.label('PC'); ls = a.label('PS'); lk = a.label('PK')
    a.vneed(tag)
    a(f'{lc}:'); poll_test(a, p, need)
    a(f's_cbranch_scc1 {ls}\n{lk}:')
    a.ool += [f'{ls}:', f' s_sub_u32 s{sP}, s{sP}, 1', f' s_cbranch_scc1 {ls}_x', f' s_sleep {Cfg.slp}', ' ' + poll_ins(p, voff, soff), ' s_waitcnt vmcnt(0)', f' s_branch {lc}',
              f'{ls}_x:', f' s_mov_b32 s{sP}, 0', f' s_branch {lk}']

def slot(q): return (q % 18) * 8192
def rd_ops(kind, q, kk, n):
    fb = (n % NB) * 8; s = slot(q) + kk*2048
    if kind == 'dft':
        b = s // 49152; off = s % 49152
        return [(f'ds_read_b128 {ar(fb)}, v{VPO+b} offset:{off}', ('f', n)), (f'ds_read_b128 {ar(fb+4)}, v{VPO+b} offset:{off+1024}', ('f', n))]
    b = s // 49152; off = s % 49152; L = TA + 2*b; R = L + 1
    return [(f'ds_read_b64_tr_b16 {ar(fb,2)}, v{L} offset:{off}', ('f', n)), (f'ds_read_b64_tr_b16 {ar(fb+2,2)}, v{L} offset:{off+512}', ('f', n)),
            (f'ds_read_b64_tr_b16 {ar(fb+4,2)}, v{R} offset:{off}', ('f', n)), (f'ds_read_b64_tr_b16 {ar(fb+6,2)}, v{R} offset:{off+512}', ('f', n))]
def dma_buf(q, srd_, va, vb, sreg, imm, fl='', srd2=None):
    def f0(a):
        a(f's_add_u32 m0, s{sW2K}, {slot(q)}\ns_add_u32 s{sT}, s{sreg}, {imm}')
        a.vm(f'buffer_load_dwordx4 v{va}, {S(srd_)}, s{sT} offen {fl} lds', ('d', q))
    def f1(a): a.vm(f'buffer_load_dwordx4 v{vb}, {S(srd2 or srd_)}, s{sT} offen offset:1024 {fl} lds', ('d', q))
    return [f0, f1]
def dma_tab(q, imm=None, sreg=None):
    def f0(a):
        a(f's_add_u32 m0, s{sW2K}, {slot(q)}')
        if sreg is None: a(f's_mov_b32 s{sX0}, {imm}')
        else: a(f's_lshl_b32 s{sX0}, s{sreg}, 13\ns_add_u32 s{sX0}, s{sX0}, s{sPS}')
        a(f'v_lshl_add_u64 {vr(VTT,2)}, s[{sX0}:{sX0+1}], 0, {vr(VTB,2)}')
        a.vm(f'global_load_lds_dwordx4 {vr(VTT,2)}, off', ('d', q))
    def f1(a): a.vm(f'global_load_lds_dwordx4 {vr(VTT,2)}, off offset:1024', ('d', q))
    return [f0, f1]
def dma_alt(bit, ifset, ifclr, cond=None):
    def f0(a):
        l1 = a.label('DA'); l2 = a.label('DB')
        if not ifclr:
            brole(a, bit, l1, False); s0 = a.snap()
            for f in ifset: f(a)
            a(f'{l1}:'); a.merge(s0, a.snap()); return
        brole(a, bit, l1)
        s0 = a.snap()
        if ifclr:
            for f in ifclr: f(a)
        s1 = a.snap()
        if ifset:
            a(f's_branch {l2}\n{l1}:'); a.restore(s0)
            for f in ifset: f(a)
            a(f'{l2}:'); a.merge(s1, a.snap())
        else:
            a(f'{l1}:'); a.merge(s0, s1)
    return [f0, lambda a: None]
GORD = [1,2,3,4,0,5,6,7,8]
def w1p(q): return dma_buf(q, SW1, VA1, VB1, sO1 + q % 9, 128*(q//9))
def w2p(q, g, lam): return dma_buf(q, SW2, VA2, VB2, sO2 + g, 128*lam)
sSV, sSW, sFP = 46, 47, 48
def plan(q):
    if q < 45: return w1p(q)
    if q < 63: return w2p(q, GORD[(q-45)//2], (q-45) % 2)
    if q < 72:
        k = q - 63
        if k < 3:   sm = dma_alt(R_SMID, dma_buf(q, SWS, VL16, VL16, sSV, 8192*k, 'sc1'), None)
        elif k < 6: sm = dma_alt(R_SMID, dma_tab(q, TABF_SZ + TABG_SZ + 8192*(k-3)), None)
        else:       sm = None
        return dma_alt(R_ODD, w2p(q, GORD[k], 4), sm)
    if q < 90: return w2p(q, GORD[(q-72) % 9], 2 + (q-72)//9)
    return dma_alt(R_FIN, dma_tab(q, 8192*(q-90)), None)

def bias_reads(a, acc, job):
    for q in range(8): a.lds(f'ds_read_b128 {vr(acc+4*q)}, v{VBI} offset:{256*job + 32*q}', 'bias')

def run(a, q0, npc, kind, mf, fills, nxt='tr', nextbias=None, norm=False, events=None):
    events = events or {}
    N = 4*npc; n0 = 4*q0
    fs = [[ops, s, e, 0, 0, sum(c for c, _ in ops)] for ops, s, e in fills]
    for i in range(N):
        n = n0 + i; q = q0 + i//4; kk = i % 4
        j = i + PF; qn = q0 + j//4
        k2 = kind if j < N else nxt
        r = rd_ops(k2, qn, j % 4, n + PF) if k2 else []
        fb = (n % NB) * 8
        dm = plan(q + 12)
        for h in range(2):
            gap = 2*i + h
            if h == 0 and kk == 0: stamp(a, f'q{q}')
            stamp(a, f'g{q0}_{gap}')
            for f in events.get(('pre', gap), []): f(a)
            if h == 0: a.need(('f', n), *(['bias'] if i == 0 else []))
            acc, op, zero = mf(i//4, kk, h)
            d = vr(acc, 16) if acc >= 0 else ar(-acc, 16); c = '0' if zero else d
            if kind == 'dft': a(f'{M} {d}, {op}, {ar(fb+4*h)}, {c}')
            else:             a(f'{M} {d}, {ar(fb+4*h)}, {op}, {c}')
            if h == 0 and j % 12 == 0 and k2 and (4*q0) % 12 == 0:
                a.vneed(('d', qn), ('d', qn+1), ('d', qn+2), *events.get(('bar', qn), [])); a('s_barrier')
            if h == 0 and j == N and nextbias is not None:
                assert all(f[3] == len(f[0]) for f in fs)
                bias_reads(a, *nextbias)
            m = len(r)//2
            for ins, t in r[h*m:(h+1)*m]: a.lds(ins, t)
            if h == 1 and kk < 2: dm[kk](a)
            if norm and i//2 + 1 < 18:
                emit(a, norm_ops(i//2 + 1)[6*(gap % 4):6*(gap % 4)+6])
            for f in fs:
                if gap >= f[1]:
                    target = f[5] * min(1.0, (gap - f[1] + 1) / (f[2] - f[1]))
                    while f[3] < len(f[0]) and f[4] + f[0][f[3]][0]/2 <= target:
                        f[0][f[3]][1](a); f[4] += f[0][f[3]][0]; f[3] += 1
            for f in events.get(gap, []): f(a)
    assert all(f[3] == len(f[0]) for f in fs)
def only(bit, f):
    def g(a):
        l = a.label('ON'); brole(a, bit, l, False); s0 = a.snap()
        f(a); a(f'{l}:'); a.merge(s0, a.snap())
    return g
def only_ops(bit, ops, n):
    return [FN(only(bit, lambda a, x=ops[i:i+n]: emit(a, x))) for i in range(0, len(ops), n)]
def first_reads(a, kind, q):
    for ks in range(PF):
        for ins, t in rd_ops(kind, q, ks, 4*q + ks): a.lds(ins, t)
def interleave(a, mf, ops, start=0):
    n = len(mf) - start; k = 0
    for i, x in enumerate(mf):
        a(x)
        if i >= start:
            t = len(ops) * (i - start + 1) // n
            while k < t: ops[k][1](a); k += 1

def twiddle_ops(dst, t, sym, sb, scale=None):
    o = [f'v_and_b32 v{t}, 31, v{VLANE}', f'v_lshrrev_b32 v{t+1}, 5, v{VLANE}']
    if sym == 'fwd':
        o += [f'v_lshlrev_b32 v{t+1}, 8, v{t+1}', f'v_add_u32 v{t+1}, s{sb}, v{t+1}', f'v_mul_u32_u24 v{t+1}, v{t+1}, v{t}', f'v_lshlrev_b32 v{t}, 6, v{t}']
        mult = lambda tt, e: 16*tt + (e & 3) + 8*(e >> 2)
    else:
        o += [f'v_lshlrev_b32 v{t}, 6, v{t}', f'v_add_u32 v{t}, s{sb}, v{t}', f'v_lshlrev_b32 v{t+1}, 3, v{t+1}', f'v_mul_u32_u24 v{t+1}, v{t+1}, v{t}']
        mult = lambda tt, e: 16*tt + e
    for tt in range(2):
        for e in range(0, 8, 2):
            for i in range(2): o.append(f'v_mad_u32_u24 v{t+2+i}, v{t}, {mult(tt, e+i)}, v{t+1}')
            for i in range(2): o.append(f'v_and_b32 v{t+2+i}, 0x7ff, v{t+2+i}')
            for i in range(2): o.append(f'v_cvt_f32_u32 v{t+2+i}, v{t+2+i}')
            for i in range(2): o.append(f'v_mul_f32 v{t+2+i}, {f2u(1/2048):#x}, v{t+2+i}')
            for i in range(2): o.append(f'v_cos_f32 v{t+4+i}, v{t+2+i}')
            for i in range(2): o.append(f'v_sin_f32 v{t+2+i}, v{t+2+i}')
            if scale:
                for i in (2,3,0,1): o.append(f'v_mul_f32 v{t+2+i}, {f2u(scale):#x}, v{t+2+i}')
            d = 4*tt + e//2
            o += [f'v_cvt_pk_bf16_f32 v{t+4}, v{t+4}, v{t+5}', f'v_cvt_pk_bf16_f32 v{t+2}, v{t+2}, v{t+3}', f'v_accvgpr_write_b32 a{dst+d}, v{t+4}',
                  f'v_xor_b32 v{t+3}, 0x80008000, v{t+2}', f'v_accvgpr_write_b32 a{dst+8+d}, v{t+2}', f'v_accvgpr_write_b32 a{dst+16+d}, v{t+3}']
    return [V(x) for x in o]

def prologue(a):
    rx = Cfg.rx; cx = 32//rx; nxc = 16//cx
    a(f"""s_cmpk_ge_u32 s2, 256
    s_cbranch_scc1 L_end
    s_load_dwordx16 s[44:59], s[0:1], 0
    s_load_dwordx4 s[60:63], s[0:1], 64
    s_load_dwordx2 s[64:65], s[0:1], 80
    s_memrealtime s[66:67]""")
    stamp(a, 0)
    a(f"""s_getpc_b64 s[100:101]
    L_pcref:
    s_lshr_b32 s97, s2, 3
    s_mul_i32 s97, s97, CODE_LINES*128
    v_lshlrev_b32 v{VPO}, 7, v0
    v_add_u32 v{VPO}, s97, v{VPO}
    v_min_u32 v{VPO}, L_codeend-L_pcref-4, v{VPO}
    v_mov_b32 v{VPO+1}, 0
    v_lshl_add_u64 {vr(VPO,2)}, s[100:101], 0, {vr(VPO,2)}
    v_cmp_gt_u32 vcc, CODE_LINES, v0
    s_and_saveexec_b64 s[98:99], vcc
    s_cbranch_execz L_noct
    global_load_dword a255, {vr(VPO,2)}, off
    L_noct:
    s_mov_b64 exec, -1
    s_and_b32 s96, s2, 7
    s_lshr_b32 s97, s2, 3
    s_and_b32 s{sC}, s96, {nxc-1}
    s_mul_i32 s{sC}, s{sC}, {cx}
    s_and_b32 s98, s97, {cx-1}
    s_add_u32 s{sC}, s{sC}, s98
    s_lshr_b32 s{sI}, s96, {nxc.bit_length()-1}
    s_mul_i32 s{sI}, s{sI}, {rx}
    s_lshr_b32 s98, s97, {cx.bit_length()-1}
    s_add_u32 s{sI}, s{sI}, s98
    v_lshrrev_b32 v1, 6, v0
    v_and_b32 v{VLANE}, 63, v0
    v_mov_b32 v{VTT}, v0
    v_readfirstlane_b32 s{sWV}, v1
    v_lshlrev_b32 v{VL16}, 4, v{VLANE}
    v_lshrrev_b32 v1, 3, v{VLANE}
    v_and_b32 v3, 7, v{VLANE}
    v_lshrrev_b32 v4, 1, v1
    v_xor_b32 v3, v3, v4
    s_mov_b32 s96, 73728
    v_mul_lo_u32 v1, v1, s96
    v_lshl_add_u32 v144, v3, 4, v1
    v_xor_b32 v145, 64, v144
    v_add_u32 v145, {8*73728-1024}, v145
    v_add_u32 v146, {16*73728}, v144
    v_add_u32 v147, {16*73728}, v145
    s_lshl_b32 s{sB}, s{sI}, 2
    s_add_u32 s{sB}, s{sB}, s{sWV}
    s_mul_i32 s96, s{sI}, {Cfg.rota}
    s_mul_i32 s97, s{sC}, {Cfg.rotb}
    s_add_u32 s96, s96, s97
    s_mul_i32 s97, s96, 7282
    s_lshr_b32 s97, s97, 16
    s_mul_i32 s97, s97, 9
    s_sub_u32 s96, s96, s97         ; rot
    s_mul_i32 s3, s{sB}, 1152
    s_lshl_b32 s99, s{sWV}, 11
    s_getpc_b64 s[100:101]
    s_add_u32 s100, s100, tabF@rel32@lo+4
    s_addc_u32 s101, s101, tabF@rel32@hi+12
    s_mov_b32 s{SX+2}, {2048*1152}
    s_mov_b32 s{SX+3}, 0x20000
    s_lshl_b32 s{sT}, s96, 7
    s_add_u32 s{sT}, s{sT}, s3
    s_mov_b32 m0, s99
    s_waitcnt lgkmcnt(0)
    s_mov_b32 s{SX}, s44
    s_and_b32 s{SX+1}, s45, 0xffff""")
    stamp(a, 'ka')
    for o in range(4):
        if o == 2: a('s_add_u32 m0, s99, 8192\ns_nop 0')
        a.vm(f'buffer_load_dwordx4 v{144+o}, {S(SX)}, s{sT} offen offset:{1024*(o%2)} lds', ('x', 0))
    srd(a, SDBG, 62, 256); srd(a, SWS, 64, WS_SZ)
    srd(a, SWR, 46, 2048*578); srd(a, SWI, 48, 2048*578); srd(a, SW1, 52, 576*9216); srd(a, SB, 54, 9216)
    srd(a, SW2, 56, 4608*1152); srd(a, SOUT, 60, 2048*1152)
    a(f's_mov_b64 s[0:1], s[58:59]\ns_mov_b32 s{sW2K}, s99')
    XV = 144
    def xline(L):
        a(f's_lshl_b32 s{sT}, s{sO2+L}, 7\ns_add_u32 s{sT}, s{sT}, s3')
        for o in range(4):
            if o % 2 == 0: a(f's_add_u32 m0, s{sW2K}, {16384*L + 8192*(o//2)}\ns_nop 0')
            a.vm(f'buffer_load_dwordx4 v{XV+o}, {S(SX)}, s{sT} offen offset:{1024*(o%2)} lds', ('x', L))
    for L in range(9):
        a(f's_mov_b32 s{sO2+L}, s96')
        if 0 < L < Cfg.xa: xline(L)
        if L < 8: a('s_add_u32 s96, s96, 1\ns_cmp_eq_u32 s96, 9\ns_cselect_b32 s96, 0, s96')
    stamp(a, 'xi')
    a(f'''s_or_b32 s66, s66, 1
    s_add_u32 s97, s2, s{sWV}
    s_cmp_lg_u32 s97, 0
    s_cbranch_scc1 L_nonon
    v_mov_b32 v1, s66
    s_mov_b64 exec, 1
    buffer_store_dword v1, off, {S(SDBG)}, 0 sc1
    s_mov_b64 exec, -1
    L_nonon:
    s_lshr_b32 s96, s{sC}, 1            ; p
    s_mul_i32 s{sNON}, s{sI}, {Cfg.rr}
    s_add_u32 s{sNON}, s{sNON}, s96
    s_and_b32 s{sNON}, s{sNON}, 7       ; rho
    s_and_b32 s{sROLE}, s{sC}, 1
    s_cmp_lt_u32 s{sNON}, 5
    s_cselect_b32 s97, s{sROLE}, 0
    s_lshl_b32 s97, s97, {R_DFT}
    s_xor_b32 s98, s{sROLE}, 1
    s_cmp_lt_u32 s{sNON}, 6
    s_cselect_b32 s98, s98, 0
    s_cmp_lt_u32 s{sWV}, 3
    s_cselect_b32 s99, {(1<<R_SMID)|(1<<R_UNIT)}, {1<<R_SMID}
    s_mul_i32 s98, s98, s99
    s_cselect_b32 s99, {(1<<R_FIN)|(1<<R_FINW)}, {1<<R_FIN}
    s_or_b32 s97, s97, s98
    s_and_b32 s98, s{sC}, 3
    s_cmp_lt_u32 s98, 3
    s_cselect_b32 s99, s99, 0
    s_or_b32 s97, s97, s99
    s_lshl_b32 s98, s{sROLE}, 8
    s_or_b32 s{sROLE}, s{sROLE}, s97
    s_lshl_b32 s97, s{sNON}, 8
    s_or_b32 s{sROLE}, s{sROLE}, s97
    s_mul_i32 s97, s96, 576
    s_add_u32 s97, s97, s98                ; f_base
    v_add_u32 v1, s97, v{VTT}
    v_lshlrev_b32 v1, 1, v1''')
    a.vm(f'buffer_load_ushort v{HO+12}, v1, {S(SB)}, 0 offen', 'b1')
    a.vm(f'buffer_load_ushort v{HO+13}, v1, {S(SB)}, 0 offen offset:512', 'b1')
    a(f'''v_lshlrev_b32 v{HO+14}, 2, v{VTT}
    v_add_u32 v{HO+14}, {BIAS_LDS}, v{HO+14}
    s_mul_i32 s{sHS}, s{sB}, 288
    s_lshr_b32 s98, s97, 4
    s_add_u32 s{sHS}, s{sHS}, s98
    s_lshl_b32 s{sHS}, s{sHS}, 10
    s_lshl_b32 s97, s97, 1''')
    for g in range(9): a(f's_mul_i32 s{sO1+g}, s{sO2+g}, {64*9216}\ns_add_u32 s{sO1+g}, s{sO1+g}, s97')
    a(f's_mul_i32 s{sPS}, s{sNON}, 73728')
    a(f'''v_add_u32 v{VTB}, s{sW2K}, v{VL16}
    v_mov_b32 v{VTB+1}, 0
    v_lshl_add_u64 {vr(VTB,2)}, s[100:101], 0, {vr(VTB,2)}
    s_mov_b32 s{sX0+1}, 0
    s_lshl_b32 s{sFLG}, s{sB}, 4
    s_add_u32 s{sFLG}, s{sFLG}, s{sC}
    s_lshl_b32 s{sFLG}, s{sFLG}, 7
    s_add_u32 s{sFLG}, s{sFLG}, {FL_OFF}
    s_mov_b32 s{sP}, {Cfg.spin}
    s_mov_b32 s{sGC1}, {f2u(GC1):#x}
    v_mov_b32 v{VC0}, {f2u(GC0):#x}
    v_bfe_u32 v1, v{VLANE}, 3, 2            ; r
    v_lshrrev_b32 v3, 5, v{VLANE}           ; rho
    v_and_b32 v{VB1}, 2, v1
    v_lshlrev_b32 v{VB1}, 1, v{VB1}
    v_and_b32 v{VB2}, 7, v{VLANE}
    v_xor_b32 v{VB2}, v{VB2}, v{VB1}
    v_lshlrev_b32 v{VB2}, 4, v{VB2}
    v_lshl_add_u32 v1, v3, 3, v1            ; 8rho+r
    s_lshr_b32 s98, s{sWV}, 1
    s_lshl_b32 s98, s98, 5
    s_and_b32 s99, s{sWV}, 1
    s_add_u32 s98, s98, s99
    v_lshlrev_b32 v3, 1, v1
    v_add_u32 v3, s98, v3
    v_mul_u32_u24 v3, 9216, v3
    v_add_u32 v{VA1}, v3, v{VB2}
    v_add_u32 v{VB1}, {8*9216-1024}, v{VA1}
    s_lshl_b32 s98, s{sWV}, 4
    v_add_u32 v1, s98, v1
    v_mul_u32_u24 v1, 1152, v1
    v_add_u32 v{VA2}, v1, v{VB2}
    v_add_u32 v{VB2}, {4*1152-1024}, v{VA2}''')
    a(f'''v_lshrrev_b32 v1, 5, v{VLANE}
    v_lshlrev_b32 v{VBI}, 4, v1
    v_add_u32 v{VBI}, {BIAS_LDS}, v{VBI}
    v_bfe_u32 v3, v{VLANE}, 2, 2
    v_lshl_add_u32 v1, v1, 3, v3
    v_lshlrev_b32 v1, 7, v1
    v_and_b32 v3, 2, v3
    v_lshl_add_u32 v1, v3, 5, v1
    v_bfe_u32 v3, v{VLANE}, 4, 1
    v_lshl_add_u32 v1, v3, 5, v1
    v_and_b32 v3, 3, v{VLANE}
    v_lshl_add_u32 v{TA}, v3, 3, v1
    v_xor_b32 v{TA+1}, 64, v{TA}
    v_add_u32 v{TA+2}, 49152, v{TA}
    v_add_u32 v{TA+3}, 49152, v{TA+1}
    v_add_u32 v{TA+4}, 98304, v{TA}
    v_add_u32 v{TA+5}, 98304, v{TA+1}''')
    if Cfg.wt:
        a(f'''s_lshl_b32 s98, s{sWV}, 4
        s_lshl_b32 s99, s{sO2}, 6
        s_add_u32 s98, s98, s99
        v_add_u32 v1, s98, v{VLANE}
        v_subrev_u32 v3, 16, v{VLANE}
        v_lshlrev_b32 v3, 6, v3
        v_cmp_gt_u32 vcc, 16, v{VLANE}
        s_mul_i32 s99, s{sO2}, {64*9216}
        s_sub_u32 s99, s{sO1}, s99
        v_cndmask_b32 v1, v3, v1, vcc
        v_mul_u32_u24 v3, 9216, v1
        s_bitcmp1_b32 s{sROLE}, {R_ODD}
        s_cselect_b32 s98, 128, 0
        s_add_u32 s99, s99, s98
        s_bfm_b64 exec, 25, 0''')
        a.vm(f'buffer_load_dword a255, v3, {S(SW1)}, s99 offen')
        a('s_mov_b64 exec, -1')
    brole(a, R_DFT, 'L_notw', False)
    s0 = a.snap()
    if Cfg.wt:
        a(f'''v_lshlrev_b32 v{VPO}, 7, v1
        v_add_u32 v{VPO}, s{sPS}, v{VPO}
        v_mov_b32 v{VPO+1}, 0
        v_lshl_add_u64 {vr(VPO,2)}, s[100:101], 0, {vr(VPO,2)}
        s_bfm_b64 exec, 16, 0''')
        a.vm(f'global_load_dword a255, {vr(VPO,2)}, off')
        a('s_mov_b64 exec, -1')
    emit(a, twiddle_ops(TW, TMP, 'fwd', sB))
    a('L_notw:'); a.merge(s0, a.snap())
    XA = HO
    a(f'''v_and_b32 v1, 15, v{VLANE}
    v_lshlrev_b32 v1, 7, v1
    v_bfe_u32 v3, v{VLANE}, 4, 1
    v_lshl_add_u32 v1, v3, 13, v1
    v_add_u32 v1, s{sW2K}, v1
    v_lshrrev_b32 v3, 5, v{VLANE}
    v_bfe_u32 v{XA}, v{VLANE}, 1, 3
    v_xor_b32 v3, v3, v{XA}
    v_lshl_add_u32 v{XA}, v3, 4, v1
    v_xor_b32 v{XA+1}, 32, v{XA}
    v_xor_b32 v{XA+2}, 64, v{XA}
    v_xor_b32 v{XA+3}, 96, v{XA}
    s_mov_b32 s{sT2}, 0x3f803f80''')
    for i in range(8): a(f'v_mov_b32 v{TMP+i}, 0')
    def stats(L):
        for q in range(4):
            a.need(('x', 4*L+q))
            for i in range(4):
                r = XF + 16*L + 4*q + i
                a(f'v_dot2c_f32_bf16 v{TMP+i}, s{sT2}, v{r}\nv_dot2c_f32_bf16 v{TMP+4+i}, v{r}, v{r}')
    def first_piece(q):
        if q < 9: return dma_alt(R_ODD, dma_alt(R_DFT, dma_tab(q, sreg=sO2+q), None), w1p(q))
        return w1p(q)
    for L in range(10):
        if L < 9:
            stamp(a, f'xa{L}')
            a.vneed(('x', L))
            stamp(a, f'xb{L}')
            if L in (4, 8):
                for q in range(4): a(f'v_add_u32 v{XA+q}, 0x10000, v{XA+q}')
            for q in range(4): a.lds(f'ds_read_b128 {vr(XF+16*L+4*q)}, v{XA+q} offset:{16384*(L%4)}', ('x', 4*L+q))
        if L == 9:
            stamp(a, 1)
            a.vneed('b1')
            a(f'v_lshlrev_b32 v{HO+12}, 16, v{HO+12}\nv_lshlrev_b32 v{HO+13}, 16, v{HO+13}')
            a.lds(f'ds_write_b32 v{HO+14}, v{HO+12}', 'bw'); a.lds(f'ds_write_b32 v{HO+14}, v{HO+13} offset:1024', 'bw')
        if L + Cfg.xa < 9: xline(L + Cfg.xa)
        elif L:
            k = L + Cfg.xa - 9
            for q in (2*k, 2*k+1):
                for f in first_piece(q): f(a)
            npc0 = 2*k + 2
        if L: stats(L-1)
    rest = [FN(f) for q in range(npc0, 12) for f in first_piece(q)]
    rest += [VM(f'buffer_load_dword v{VFL}, off, {S(SDBG)}, 0 sc1', 'non')]
    T = TMP
    a(f'''s_nop 2
    v_add_f32 v{T}, v{T}, v{T+1}
    v_add_f32 v{T+2}, v{T+2}, v{T+3}
    v_add_f32 v{T+4}, v{T+4}, v{T+5}
    v_add_f32 v{T+6}, v{T+6}, v{T+7}
    v_add_f32 v{T}, v{T}, v{T+2}
    v_add_f32 v{T+4}, v{T+4}, v{T+6}
    v_mov_b32 v{T+1}, v{T}
    v_mov_b32 v{T+5}, v{T+4}
    s_nop 1
    v_permlane32_swap_b32 v{T}, v{T+1}
    v_permlane32_swap_b32 v{T+4}, v{T+5}
    s_nop 0
    v_add_f32 v{T}, v{T}, v{T+1}
    v_add_f32 v{T+4}, v{T+4}, v{T+5}
    v_mul_f32 v{T}, {f2u(1/576):#x}, v{T}
    v_mul_f32 v{T+4}, {f2u(1/576):#x}, v{T+4}
    v_fma_f32 v{T+4}, -v{T}, v{T}, v{T+4}
    v_max_f32 v{T+4}, 0, v{T+4}
    v_cvt_pk_bf16_f32 v{T}, v{T}, v{T+4}
    v_and_b32 v{T+4}, 0xffff0000, v{T}
    v_lshlrev_b32 v{T}, 16, v{T}
    v_add_f32 v{T+4}, {f2u(1e-5):#x}, v{T+4}
    v_cvt_pk_bf16_f32 v{T+4}, v{T+4}, v{T+4}
    v_and_b32 v{T+4}, 0xffff0000, v{T+4}
    v_sqrt_f32 v{T+4}, v{T+4}
    s_nop 0
    v_cvt_pk_bf16_f32 v{T+4}, v{T+4}, v{T+4}
    v_and_b32 v{T+4}, 0xffff0000, v{T+4}
    v_rcp_f32 v{T+4}, v{T+4}
    s_nop 0
    v_cvt_pk_bf16_f32 v{T+4}, v{T+4}, v{T+4}
    v_and_b32 v{T+5}, 0xffff0000, v{T+4}
    v_lshrrev_b32 v{T+4}, 16, v{T+4}
    v_mul_f32 v{T}, v{T}, v{T+5}
    v_sub_f32 v{T}, 0, v{T}''')
    smid_ids(a)
    a(f'''s_add_u32 s98, s96, s{sWV}
    s_cmp_eq_u32 s98, 4
    s_cselect_b32 s35, {1<<R_PATCH}, 0
    s_bitcmp1_b32 s{sROLE}, {R_UNIT}
    s_cselect_b32 s35, s35, 0
    s_or_b32 s{sROLE}, s{sROLE}, s35
    s_cmp_lt_u32 s98, 5
    s_cselect_b32 s35, 2, 0
    s_lshl_b32 s98, s98, 6
    s_add_u32 s35, s35, s98
    s_mul_i32 s99, s99, 578
    s_add_u32 s35, s35, s99
    v_lshrrev_b32 v3, 2, v{VLANE}
    v_mul_u32_u24 v3, 18496, v3
    v_and_b32 v1, 3, v{VLANE}
    v_lshl_add_u32 v3, v1, 4, v3''')
    rest += [wload(k) for k in range(8)] + [FN(only(R_PATCH, wpatch))]
    if Cfg.tn < 216:
        per = -(-(216 - Cfg.tn)*192//1024)
        def tall(a):
            a(f'''s_lshl_b32 s98, s2, 2
            s_add_u32 s98, s98, s{sWV}
            s_mul_i32 s98, s98, {per*128}
            s_add_u32 s98, s98, {Cfg.tn*192*128}
            v_lshlrev_b32 v1, 7, v{VLANE}
            s_bfm_b64 exec, {per}, 0''')
            a.vm(f'buffer_load_dword a255, v1, {S(SW2)}, s98 offen')
            a('s_mov_b64 exec, -1')
        rest.append(FN(tall))
    a.need('bw')
    if Cfg.normin:
        emit(a, rest); emit(a, norm_ops(0))
    else:
        a('.p2align 3')
        rest = [FN(lambda a, f=f: (f(a), a('.p2align 3'))) for _, f in rest]
        emit(a, mix([o for u in range(18) for o in norm_ops(u)], rest))
    a(f'''s_lshr_b32 s96, s{sC}, 1
    s_and_b32 s98, s{sC}, 1
    s_mul_i32 s{sO2}, s96, {576*1152}
    s_lshl_b32 s99, s98, 9
    s_add_u32 s{sO2}, s{sO2}, s99
    s_mul_i32 s99, s98, {256*1152}''')
    for g in range(1, 9):
        a(f's_add_u32 s{sO2+g}, s{sO2}, {64*1152*g}\ns_{"add" if g < 5 else "sub"}_u32 s{sO2+g}, s{sO2+g}, s99')
    a(f'''s_mul_i32 s{sPS}, s{sB}, 18
    s_lshl_b32 s98, s98, 3
    s_add_u32 s{sPS}, s{sPS}, s98
    s_lshl_b32 s{sPS}, s{sPS}, 3
    s_add_u32 s{sPS}, s{sPS}, s96
    s_lshl_b32 s{sPS}, s{sPS}, 11
    s_add_u32 s{sPS}, s{sPS}, {PART_OFF}
    s_and_b32 s98, s{sC}, 1
    s_mul_i32 s32, s{sB}, 288
    s_mul_i32 s99, s96, 36
    s_add_u32 s32, s32, s99
    s_lshl_b32 s32, s32, 10
    s_lshl_b32 s99, s98, 14
    s_sub_u32 s33, s32, s99
    s_xor_b32 s34, s{sFLG}, 128''')
def smid_ids(a):
    a(f'''s_bfe_u32 s96, s{sROLE}, 0x30008
    s_cmp_ge_u32 s96, 3
    s_cselect_b32 s98, 1, 0
    s_lshl_b32 s99, s{sI}, 1
    s_add_u32 s99, s99, s98
    s_mul_i32 s98, s98, 3
    s_sub_u32 s96, s96, s98
    s_mul_i32 s96, s96, 3''')
WA = 216
def wload(k):
    def f(a):
        a(f's_add_u32 s3, s35, {16*18496*(k//2)}')
        a.vm(f'buffer_load_dwordx4 {ar(WA+4*k)}, v3, {S(SWI if k % 2 else SWR)}, s3 offen', 'wl')
    return FN(only(R_UNIT, f))
def wpatch(a):
    a(f'v_mul_u32_u24 v1, 18496, v{VLANE}')
    a.vm(f'buffer_load_ushort a253, v1, {S(SWR)}, s35 offen offset:{576-258}', 'wl')
    a.vm(f'buffer_load_ushort a254, v1, {S(SWI)}, s35 offen offset:{576-258}', 'wl')

def touch_ops():
    o = [V(f"""s_bfe_u32 s98, s{sROLE}, 0x30008
    s_sub_u32 s98, s98, 5
    s_lshl_b32 s98, s98, 6
    s_add_u32 s98, s98, s{sB}
    s_mul_i32 s99, s98, {Cfg.tn*128}
    v_lshlrev_b32 v1, 7, v{VLANE}""")]
    for k in range(Cfg.tn//54):
        def f(a, k=k):
            a('s_bfm_b64 exec, 54, 0')
            a.vm(f'buffer_load_dword a255, v1, {S(SW2)}, s99 offen')
            a(f's_mov_b64 exec, -1\ns_add_u32 s99, s99, {54*128}')
        o.append(FN(f))
    def g(a):
        a(f"""s_mul_i32 s99, s98, {15*128}
        s_add_u32 s99, s99, {TABF_SZ}
        v_add_u32 v{VTT}, s99, v1
        v_min_u32 v{VTT}, {TABF_SZ+TABG_SZ+TAB64_SZ-4}, v{VTT}
        v_mov_b32 v{VTT+1}, 0
        v_lshl_add_u64 {vr(VTT,2)}, s[100:101], 0, {vr(VTT,2)}
        s_bfm_b64 exec, 15, 0""")
        a.vm(f'global_load_dword a255, {vr(VTT,2)}, off')
        a('s_mov_b64 exec, -1')
    return o + [FN(g)]

def getnonce(a):
    lc = a.label('NC'); ls = a.label('NS'); lk = a.label('NK')
    a.vneed('non')
    a(f'{lc}:\nv_readfirstlane_b32 s{sNON}, v{VFL}\ns_nop 3\ns_cmp_eq_u32 s{sNON}, 0\ns_cbranch_scc1 {ls}\n{lk}:')
    a.ool += [f'{ls}:', f' s_sub_u32 s{sP}, s{sP}, 1', f' s_cbranch_scc1 {ls}_x', f' s_sleep {Cfg.slp}', f' buffer_load_dword v{VFL}, off, {S(SDBG)}, 0 sc1', ' s_waitcnt vmcnt(0)', f' s_branch {lc}',
              f'{ls}_x:', f' s_mov_b32 s{sP}, 0', f' s_branch {lk}']

def xpose_setup(a, vw, vrd, vg, base_imm, rowstride, flip=None):
    a(f"""v_and_b32 v{vw}, 15, v{VLANE}
    v_lshlrev_b32 v{vw}, 7, v{vw}
    v_bfe_u32 v{vrd}, v{VLANE}, 4, 1
    v_lshl_add_u32 v{vw}, v{vrd}, 13, v{vw}
    v_lshrrev_b32 v{vrd}, 5, v{VLANE}
    v_lshlrev_b32 v{vrd}, 2, v{vrd}
    v_and_b32 v{vg}, 7, v{VLANE}
    v_xor_b32 v{vrd}, v{vrd}, v{vg}
    v_lshl_add_u32 v{vw}, v{vrd}, 4, v{vw}
    s_add_u32 s98, s{sW2K}, {base_imm}
    v_add_u32 v{vw}, s98, v{vw}
    v_lshrrev_b32 v{vrd}, 3, v{VLANE}
    v_mul_u32_u24 v{VTT}, {rowstride}, v{vrd}
    v_lshl_add_u32 v{vg}, v{vg}, 4, v{VTT}
    v_lshlrev_b32 v{vrd}, 4, v{vrd}
    v_xor_b32 v{vrd}, v{vrd}, v{VL16}
    v_add_u32 v{vrd}, s98, v{vrd}""")
def xpose_w(src, q, vw, flip=0):
    x = (16*q) ^ flip
    if x == 0: return [LD(f'ds_write_b128 v{vw}, {vr(src)}', 'xw')]
    return [V(f'v_xor_b32 v{VTT}, {x}, v{vw}'), LD(f'ds_write_b128 v{VTT}, {vr(src)}', 'xw')]
def xpose_rs(dst, vrd, vg, sreg, rowstride, tag, u=0):
    o = [LD(f'ds_read_b128 {vr(dst+4*q)}, v{vrd} offset:{8192*(q//2) + 1024*(q%2)}', ('xr', u, q)) for q in range(4)]
    for q in range(4):
        o.append(FN(lambda a, q=q: a.need(('xr', u, q))))
        o.append(VM(f'buffer_store_dwordx4 {vr(dst+4*q)}, v{vg}, {S(SWS)}, s{sreg} offen sc1', tag))
        o.append(V(f's_add_u32 s{sreg}, s{sreg}, {8*rowstride}'))
    return o
OA = 200
XP_LDS = BIAS_LDS + 2048
def dft_fill():
    Ea = ACC[0]; T = TMP; U = Ea + 16; RS = 9*64*128
    su = f"""v_and_b32 v1, 31, v{VLANE}
    v_lshlrev_b32 v1, 6, v1
    v_lshrrev_b32 v3, 5, v{VLANE}
    v_lshlrev_b32 v3, 1, v3
    v_bfe_u32 v{VPO}, v{VLANE}, 1, 2
    v_xor_b32 v3, v3, v{VPO}
    v_lshl_add_u32 v1, v3, 4, v1
    s_add_u32 s98, s{sW2K}, {XP_LDS}
    v_add_u32 v1, s98, v1
    v_bfe_u32 v3, v{VLANE}, 3, 2
    v_lshlrev_b32 v3, 4, v3
    v_xor_b32 v3, v3, v{VL16}
    v_add_u32 v3, s98, v3
    v_lshrrev_b32 v{VPO}, 2, v{VLANE}
    v_mul_u32_u24 v{VPO}, {RS}, v{VPO}
    v_and_b32 v{VTT}, 3, v{VLANE}
    v_lshl_add_u32 v{VPO}, v{VTT}, 4, v{VPO}
    s_bfe_u32 s96, s{sROLE}, 0x30008
    s_lshl_b32 s98, s96, 6
    s_add_u32 s98, s98, s{sB}
    s_lshl_b32 s35, s98, 3
    s_add_u32 s35, s35, {VFL_OFF}
    s_lshl_b32 s98, s98, 7
    s_add_u32 s98, s98, {V_OFF}
    s_sub_u32 s99, 8, s96
    s_lshl_b32 s99, s99, 6
    s_add_u32 s99, s99, s{sB}
    s_lshl_b32 s99, s99, 7
    s_add_u32 s99, s99, {V_OFF}
"""
    o = [V(x) for x in su.split('\n') if x.strip()] + [V(f's_cmp_eq_u32 s96, 4\ns_cselect_b32 s96, {DUM_OFF - V_OFF}, 0\ns_add_u32 s99, s99, s96')]
    su = o; o = [V(f'v_add_u32 v{VPO+1}, {16*RS}, v{VPO}')]
    for i in range(16):
        e = Ea + 2*i
        o += [V(f'v_accvgpr_read_b32 v{T+4}, a{OA+2*i}'), V(f'v_accvgpr_read_b32 v{T+5}, a{OA+2*i+1}'), V(f'v_add_f32 v{T}, v{e}, v{T+4}'), V(f'v_add_f32 v{T+1}, v{e+1}, v{T+5}')]
        if i < 8: o += [V(f'v_sub_f32 v{T+2}, v{e}, v{T+4}'), V(f'v_sub_f32 v{T+3}, v{e+1}, v{T+5}')]
        else:     o += [V(f'v_sub_f32 v{T+2}, v{T+4}, v{e}'), V(f'v_sub_f32 v{T+3}, v{T+5}, v{e+1}')]
        o += [V(f'v_cvt_pk_bf16_f32 v{HO+i}, v{T}, v{T+1}'), V(f'v_cvt_pk_bf16_f32 v{Ea+i}, v{T+2}, v{T+3}')]
    segs = [o]
    u = vr(U, 16)
    for m, X in enumerate((HO, Ea)):
        for p in range(2):
            A1, A2 = (X, X+8) if p == 0 else (X+8, X)
            B2 = TW+8 if p == 0 else TW+16
            mf = [V(f's_nop 1\n{M} {u}, {vr(A1)}, {ar(TW)}, 0'), V(f'{M} {u}, {vr(A1+4)}, {ar(TW+4)}, {u}'), V(f'{M} {u}, {vr(A2)}, {ar(B2)}, {u}'), V(f'{M} {u}, {vr(A2+4)}, {ar(B2+4)}, {u}')]
            pk = []
            for q in range(2):
                for i in range(4):
                    k = 4*q + i
                    pk.append(V(f'v_cvt_pk_bf16_f32 v{T+k}, v{U+2*k}, v{U+2*k+1}' if m == 0 else f'v_cvt_pk_bf16_f32 v{T+k}, v{U+15-2*k}, v{U+14-2*k}'))
                x = 16*q ^ 32*m
                if x: pk += [V(f'v_xor_b32 v{VTT}, {x}, v1'), LD(f'ds_write_b128 v{VTT}, {vr(T+4*q)}')]
                else: pk += [LD(f'ds_write_b128 v1, {vr(T+4*q)}')]
            d = OA + 8*(2*m+p)
            pk += [LD(f'ds_read_b128 {ar(d+4*i)}, v3 offset:{1024*i}', ('xr', m, p)) for i in range(2)]
            st = [FN(lambda a, m=m, p=p: a.need(('xr', m, p)))] + [VM(f'buffer_store_dwordx4 {ar(d+4*i)}, v{VPO+i}, {S(SWS)}, s{98+m} offen offset:{64*p} sc1', 'V') for i in range(2)]
            segs += [mf, pk, st]
    f = [(segs[0], 3, 33)]
    for k in range(4):
        g = 33 + 8*k
        f += [(segs[1+3*k], g, g+2), (segs[2+3*k], g+5, g+8), (segs[3+3*k], g+9, g+17)]
    return su, f

JA = [8, 40]; JC = [72, 104]
def hload(g):
    return [SVM(f's_add_u32 s3, s{33 if g else 32}, {4096*g}', f'buffer_load_dwordx4 {ar(HF+16*g+4*k)}, v{VL16}, {S(SWS)}, s3 offen offset:{1024*k} sc1', ('ph', g)) for k in range(4)]

SZ=72; SVF=136; SWP=168; SY0=232; SPA=8
def TF(i): return ar(176+4*i) if i < 20 else vr(200+4*(i-20))
def smid_pre():
    su = f"""v_lshrrev_b32 v3, 5, v{VLANE}
    v_bfe_u32 v1, v{VLANE}, 2, 2
    v_lshl_add_u32 v3, v3, 2, v1
    v_lshlrev_b32 v{VA1}, 7, v3
    v_lshlrev_b32 v{VB1}, 6, v3
    v_bfe_u32 v1, v{VLANE}, 4, 1
    v_lshlrev_b32 v1, 5, v1
    v_and_b32 v3, 3, v{VLANE}
    v_lshl_add_u32 v1, v3, 3, v1
    s_lshl_b32 s98, s{sWV}, 13
    s_add_u32 s99, s98, {slot(63)}
    v_add3_u32 v{VA1}, v{VA1}, v1, s99
    s_add_u32 s99, s98, {slot(69)}
    v_add3_u32 v{VB1}, v{VB1}, v1, s99
    v_add_u32 v1, s99, v{VL16}
    v_add_u32 v3, {slot(66)}, v{VL16}"""
    w = [V(su), FN(lambda a: a.vneed('wl'))] + [LD(f'ds_write_b128 v1, {ar(WA+4*k)} offset:{1024*k}') for k in range(8)]
    def patch(a):
        a(f"""v_lshrrev_b32 v{VTT}, 4, v{VLANE}
        v_lshlrev_b32 v{VTT}, 11, v{VTT}
        v_and_b32 v{VTT+1}, 15, v{VLANE}
        v_lshl_add_u32 v{VTT}, v{VTT+1}, 6, v{VTT}
        v_add_u32 v{VTT}, {slot(69) + 8192}, v{VTT}""")
        a.lds(f'ds_write_b16 v{VTT}, a253 offset:62'); a.lds(f'ds_write_b16 v{VTT}, a254 offset:1086')
    w.append(FN(only(R_PATCH, patch)))
    for p in range(2):
        for mt in range(2):
            for q in range(4):
                w.append(LD(f'ds_read_b64_tr_b16 {vr(SWP+16*p+8*mt+2*q,2)}, v{VB1} offset:{4096*mt+2048*(q//2)+512*(q%2)+1024*p}', 'sm'))
    r = []
    for ks in range(4):
        for p in range(2):
            for rho in range(2): r.append(LD(f'ds_read_b64_tr_b16 {vr(SVF+16*p+4*ks+2*rho,2)}, v{VA1} offset:{2048*ks+1024*rho+64*p}', 'sm'))
        for i in (ks, 8+ks, 16+ks): r.append(LD(f'ds_read_b128 {TF(i)}, v3 offset:{1024*i}', 'sm'))
    late = [LD(f'ds_read_b128 {TF(i)}, v3 offset:{1024*i}', 'sm2') for ks in range(4) for i in (4+ks, 12+ks, 20+ks)]
    return w, r, late
def smid_parts():
    Z=SZ; VF=SVF; WP=SWP; Y=SVF; PA=SPA; T=TMP
    C=lambda t,k: TF(4*t+k); Sn=lambda t,k: TF(8+4*t+k); N=lambda t,k: TF(16+4*t+k)
    def fwd(mt):
        zr=vr(Z+16*mt,16); zi=vr(Z+32+16*mt,16); o=[]
        for ks in range(4):
            o += [f'{M} {zr}, {C(mt,ks)}, {vr(VF+4*ks)}, {"0" if ks==0 else zr}', f'{M} {zi}, {C(mt,ks)}, {vr(VF+16+4*ks)}, {"0" if ks==0 else zi}',
                  f'{M} {zr}, {Sn(mt,ks)}, {vr(VF+16+4*ks)}, {zr}', f'{M} {zi}, {N(mt,ks)}, {vr(VF+4*ks)}, {zi}']
        return o
    def ybase(mt, p): return (SY0 - 8*p) if mt == 0 else (Y + 8*p)
    def cmul(mt):
        o = []
        for d in range(8):
            wr = WP + 8*mt + d; wi = WP + 16 + 8*mt + d; zr = Z + 16*mt + 2*d; zi = zr + 32
            o += [f'v_lshlrev_b32 v{T}, 16, v{wr}', f'v_and_b32 v{T+1}, 0xffff0000, v{wr}', f'v_lshlrev_b32 v{T+2}, 16, v{wi}', f'v_and_b32 v{T+3}, 0xffff0000, v{wi}']
            for i in range(2): o += [f'v_mul_f32 v{T+4+i}, v{zi+i}, v{T+2+i}', f'v_mul_f32 v{T+6+i}, v{zi+i}, v{T+i}']
            for i in range(2): o += [f'v_fma_f32 v{T+4+i}, v{zr+i}, v{T+i}, -v{T+4+i}', f'v_fma_f32 v{T+6+i}, v{zr+i}, v{T+2+i}, v{T+6+i}']
            o += [f'v_cvt_pk_bf16_f32 v{ybase(mt,0)+d}, v{T+4}, v{T+5}', f'v_cvt_pk_bf16_f32 v{ybase(mt,1)+d}, v{T+6}, v{T+7}']
        return [V(x) for x in o]
    def inv(mt):
        o = []
        for nt in range(2):
            pr=vr(PA+32*nt,16); pi=vr(PA+32*nt+16,16)
            for t in range(2):
                ks = 2*mt + t; yr = vr(ybase(mt,0)+4*t); yi = vr(ybase(mt,1)+4*t)
                o += [f'{M} {pr}, {yr}, {C(nt,ks)}, {"0" if ks==0 else pr}', f'{M} {pi}, {yi}, {C(nt,ks)}, {"0" if ks==0 else pi}',
                      f'{M} {pr}, {yi}, {N(nt,ks)}, {pr}', f'{M} {pi}, {yr}, {Sn(nt,ks)}, {pi}']
        return o
    return fwd, cmul, inv
def part_inplace(acc, lam):
    c = []; st = []
    for q in range(4):
        c += [V(f'v_cvt_pk_bf16_f32 v{acc+8*q+i}, v{acc+8*q+2*i}, v{acc+8*q+2*i+1}') for i in range(4)]
        st.append(SVM(f's_add_u32 s3, s{sPS}, {16384*(2*lam + q//2)}', f'buffer_store_dwordx4 {vr(acc+8*q)}, v{VL16}, {S(SWS)}, s3 offen offset:{1024*(q%2)} sc1', ('p', lam)))
    return c, st

def kernel():
    a = E()
    prologue(a)
    g1 = lambda acc: (lambda p, kk, h: (acc + 16*h, vr(XF + 16*p + 4*kk), False))
    END = 72 - 2*PF - 2
    stamp(a, 2)
    brole(a, R_ODD, 'L_odd')
    s_pro = a.snap()
    a.vneed(('d',0),('d',1),('d',2)); a('s_barrier')
    bias_reads(a, ACC[0], 0); first_reads(a, 'tr', 0)
    run(a, 0, 9, 'tr', g1(ACC[0]), [(clear_ops(sHS, [16384, 18432], 'clr'), 30, 60)], nextbias=(ACC[1], 1))
    stamp(a, 3)
    run(a, 9, 9, 'tr', g1(ACC[1]), [(gelu_ops(ACC[0], 0), 3, END)], nextbias=(ACC[0], 2), events={2: [getnonce]})
    a('s_branch L_s3'); s_even = a.snap()
    a('L_odd:'); a.restore(s_pro)
    brole(a, R_DFT, 'L_dft')
    emit(a, touch_ops())
    for q in range(12, 21):
        for f in plan(q): f(a)
    a.vneed(('d',9),('d',10),('d',11)); a('s_barrier')
    first_reads(a, 'tr', 9)
    stamp(a, 3)
    bias_reads(a, ACC[1], 1)
    run(a, 9, 9, 'tr', g1(ACC[1]), [(clear_ops(sHS, [16384, 18432], 'clr'), 30, 60)], nextbias=(ACC[0], 2), events={2: [getnonce]})
    a('s_branch L_s3'); s_nodft = a.snap()
    a('L_dft:'); a.restore(s_pro)
    a(f'v_mov_b32 v{VPO}, v{VL16}\nv_add_u32 v{VPO+1}, 49152, v{VL16}')
    a.vneed(('d',0),('d',1),('d',2)); a('s_barrier')
    first_reads(a, 'dft', 0)
    run(a, 0, 9, 'dft', lambda p, kk, h: ((ACC[0] + 16*h) if kk % 2 == 0 else -(OA + 16*h), vr(XF + 16*p + 4*kk), p == 0 and kk < 2),
        [(clear_ops(sHS, [16384, 18432], 'clr'), 30, 60), (dft_fill()[0], 48, 66)], nextbias=(ACC[1], 1))
    stamp(a, 3)
    df = dft_fill()[1]
    run(a, 9, 9, 'tr', g1(ACC[1]), df[:-1], nextbias=(ACC[0], 2), events={2: [getnonce], 68: [lambda a: emit(a, df[-1][0][:2])], 71: [lambda a: emit(a, df[-1][0][2:])]})
    a('L_s3:'); a.merge(s_even, s_nodft, a.snap())
    stamp(a, 4)
    pi = lambda a: a.vm(poll_ins(VPO, None, 's34'), 'po')
    pc = lambda need: (lambda a: poll_check(a, 'po', VPO, None, 's34', need))
    h0 = only_ops(R_ODD, hload(0), 1)
    FG, PG, CG = Cfg.fg, Cfg.pg, Cfg.cg
    run(a, 18, 9, 'tr', g1(ACC[0]), [(gelu_ops(ACC[1], 1), 3, END)], nextbias=(ACC[1], 3),
        events={FG: [lambda a: setflag(a, 1, 'clr', ('h',0))], FG+8: [only(R_DFT, lambda a: setflag(a, 1, 'V', off=35))], PG: [only(R_ODD, pi)]})
    run(a, 27, 9, 'tr', g1(ACC[1]), [(gelu_ops(ACC[0], 2), 3, END), (h0, CG+2, 64)], nextbias=(ACC[0], 4),
        events={CG: [only(R_ODD, pc(1))], FG: [lambda a: setflag(a, 2, ('h',1))], PG: [pi]})
    stamp(a, 5)
    def setup5(a):
        smid_ids(a)
        a(f"""s_mul_i32 s{sSV}, s99, 9
        s_add_u32 s{sSV}, s{sSV}, s96
        s_lshl_b32 s{sSV}, s{sSV}, 13
        s_add_u32 s{sSV}, s{sSV}, s{sW2K}
        s_add_u32 s{sSV}, s{sSV}, {V_OFF}
        s_add_u32 s98, s96, s{sWV}
        s_lshl_b32 s98, s98, 5
        s_add_u32 s98, s98, s99
        s_lshl_b32 s54, s98, 3
        s_add_u32 s54, s54, {PFL_OFF}
        s_lshl_b32 s47, s98, 7
        s_add_u32 s47, s47, {P_OFF}
        s_add_u32 s48, s47, {32*9*32*128}
        v_and_b32 v3, 15, v{VLANE}
        s_lshl_b32 s98, s{sWV}, 4
        v_add_u32 v3, s98, v3
        v_lshrrev_b32 v{VTT}, 4, v{VLANE}
        v_min_u32 v{VTT}, 2, v{VTT}
        v_add_u32 v{VTT}, s96, v{VTT}
        v_sub_u32 v{VTT+1}, 8, v{VTT}
        v_min_u32 v{VTT}, v{VTT}, v{VTT+1}
        v_lshl_add_u32 v3, v{VTT}, 6, v3
        v_lshlrev_b32 v3, 3, v3
        v_add_u32 v3, {VFL_OFF}, v3""")
        a.vm(poll_ins(VA1, 3, '0'), 'vp')
    run(a, 36, 9, 'tr', g1(ACC[0]), [(gelu_ops(ACC[1], 3), 3, END), (hload(5), CG+2, 64)],
        events={CG: [pc(2)], FG: [lambda a: setflag(a, 3, ('h',2))], PG: [pi], 68: [only(R_SMID, setup5)]})
    stamp(a, 6)
    jj = lambda p, kk, h: (JA[p % 2] + 16*h, ar(HF + 16*GORD[p//2] + 4*kk), p < 2 and kk == 0)
    sw, sr, slate = smid_pre()
    ev = {CG: [pc(3)], 22: [lambda a: setflag(a, 4, ('h',3))], 40: [pi], 46: [only(R_SMID, lambda a: poll_check(a, 'vp', VA1, 3, '0', 1))], 64: [pc(4)],
          ('pre',64): [lambda a: a.vneed(('ph',0))], ('pre',80): [lambda a: a.vneed(('ph',5))], ('pre',96): [lambda a: a.vneed(('ph',6))],
          ('pre',112): [lambda a: a.vneed(('ph',7))], ('bar',60): [('d', q) for q in range(63, 69)],
          126: [lambda a: (stamp(a, 7), sent_check(a, ('ph',8), [f'a{HF+128+4*k+3}' for k in range(4)], TMP, lines_of(hload(8))))]}
    run(a, 45, 18, 'tr', jj, [(gelu_ops(ACC[0], 4), 3, 46), (hload(6), CG+2, 56), (hload(7), 65, 86), (hload(8), Cfg.h8, Cfg.h8+16),
        (clear_ops(sPS, [16384*6, 16384*7], 'clp'), 108, 142), (only_ops(R_UNIT, sw, 3), 94, 118), (only_ops(R_UNIT, sr, 3), 118, 143)], nxt=None, events=ev)
    stamp(a, 8)
    g2 = lambda acc: (lambda p, kk, h: (acc + 16*h, ar(HF + 16*GORD[p] + 4*kk), p == 0 and kk == 0))
    tabg = f"""s_and_b32 s98, s{sC}, 3
    s_mul_i32 s96, s98, 110592
    s_add_u32 s96, s96, {TABF_SZ}
    v_lshl_add_u64 {vr(VTB,2)}, s[96:97], 0, {vr(VTB,2)}"""
    brole(a, R_ODD, 'L_s8o'); s0 = a.snap()
    c0, st0 = part_inplace(JA[0], 0); c1, st1 = part_inplace(JA[1], 1)
    dmas = [FN(f) for q in range(75, 84) for f in plan(q)]
    brole(a, R_UNIT, 'L_unit'); s1 = a.snap()
    a('s_barrier'); a(tabg); a('s_nop 2')
    emit(a, c0 + c1 + mix(dmas, st0 + st1))
    setflag(a, 5, 'clp', ('p',0), ('p',1))
    a.vneed(('d',72),('d',73),('d',74)); a('s_barrier')
    first_reads(a, 'tr', 72)
    a('s_branch L_s8e'); s_nou = a.snap()
    a('L_unit:'); a.restore(s1)
    fwd, cmul, inv = smid_parts()
    a.need('sm'); a('s_barrier')
    stamp(a, 'm0')
    interleave(a, fwd(0), slate + mix(c0 + c1, st0) + dmas[:2])
    a.need('sm2')
    stamp(a, 'm1')
    interleave(a, fwd(1)[:3], dmas[2:8])
    interleave(a, fwd(1)[3:], mix(cmul(0), st1))
    a('s_nop 1')
    stamp(a, 'm2')
    interleave(a, inv(0)[:3], dmas[8:14])
    interleave(a, inv(0)[3:], mix(cmul(1), dmas[14:]))
    stamp(a, 'm3')
    t = E(); xpose_setup(t, 1, 3, VPO, slot(69), 9*32*128); t(tabg)
    def pout(nt):
        o = []
        for p in range(2):
            for par in range(2):
                for i in range(4): o.append(V(f'v_cvt_pk_bf16_f32 v{SWP+16*nt+8*p+4*par+i}, v{SPA+32*nt+16*p+4*i+par}, v{SPA+32*nt+16*p+4*i+2+par}'))
                o += xpose_w(SWP+16*nt+8*p+4*par, 2*p+par, 1)
        x = xpose_rs(SWP+16*nt, 3, VPO, 47+nt, 9*32*128, 'P', nt)
        return o + x[:4], x[4:]
    a('s_nop 1')
    interleave(a, inv(1)[:11], [V(x) for x in t.l] + [FN(lambda a: setflag(a, 5, 'clp', ('p',0), ('p',1)))])
    a.vneed(('d',72),('d',73),('d',74)); a('s_barrier')
    interleave(a, inv(1)[11:], pout(0)[0])
    first_reads(a, 'tr', 72)
    stamp(a, 'm5')
    a('L_s8e:'); a.merge(s_nou, a.snap())
    stamp(a, 9)
    run(a, 72, 9, 'tr', g2(JC[1]), [(only_ops(R_UNIT, pout(1)[0], 5), 1, 10), (only_ops(R_UNIT, pout(0)[1] + pout(1)[1], 3), 2, 26), (loads_if(0, 1), 48, 70)],
        events={27: [fsetup], 28: [epoll_i(0, 1|16)], 46: [epoll_c(0, 1|16)], Cfg.pfg: [only(R_UNIT, lambda a: setflag(a, 1, 'P', off=54))]})
    a('s_branch L_s10'); s_e9 = a.snap()
    a('L_s8o:'); a.restore(s0)
    a('s_barrier')
    first_reads(a, 'tr', 63)
    a(tabg)
    run(a, 63, 9, 'tr', g2(JC[0]), [(part_ops(JA[0], 0) + part_ops(JA[1], 1), 3, 52)], events={70: [lambda a: setflag(a, 5, 'clp', ('p',0), ('p',1))]})
    stamp(a, 9)
    run(a, 72, 9, 'tr', g2(JC[1]), [(part_ops(JC[0], 4), 3, 26), (loads_if(0, 1), 48, 70)],
        events={27: [fsetup], 28: [epoll_i(0, 1|16)], 46: [epoll_c(0, 1|16), lambda a: setflag(a, 6, ('p',4))]})
    a('L_s10:'); a.merge(s_e9, a.snap())
    def ppoll_i(a):
        a(f"""s_mul_i32 s98, s{sWV}, 768
        s_add_u32 s98, s98, {PFL_OFF}
        v_lshlrev_b32 v1, 3, v{VLANE}
        v_add_u32 v1, s98, v1
        v_add_u32 v3, 256, v1""")
        a.vm(poll_ins(200, 1, '0'), 'pp1'); a.vm(poll_ins(202, 3, '0'), 'pp2')
    run(a, 81, 9, 'tr', g2(JC[0]), [(part_ops(JC[1], 2), 3, 20), (twiddle_ops(TW, TMP, 'inv', 52, 2.0/(2048*576)) + sel_ops(), 4, 70), (loads_if(1, 2), 26, 56), (loads_if(0, 64), 26, 56), (only_ops(R_FINW, xb_ops(), 2), 40, 64)], nxt=None,
        events={1: [epoll_i(1, 2|32), epoll_i(0, 64, 204)], 24: [epoll_c(1, 2|32), epoll_c(0, 64, 204)], 40: [lambda a: setflag(a, 7, ('p',2))],
                58: [only(R_FINW, ppoll_i)], 62: [epoll_i(0, 4, 204), epoll_i(1, 8)]})
    stamp(a, 10)
    final(a)
    a('L_fin:')
    stamp_flush(a, 11)
    a('L_end:\ns_endpgm')
    return a.text()

PTH = [136, 8]
VFA = 4; VO = 5
SEL = 200; AB2 = 208; AX = 224
sCLS = 53
sND, sFO, sPB, sXO, sSG = 46, 48, 50, 32, 36
def fsetup(a):
    LAML = [0,0,1,1,2,2,3,3,0]; LAMH = [0,1,1,2,2,3,3,4,4]; NEED = [5,5,7,5,6]; RANK = [0,0,2,3,1]
    swap = 0; nd = [0, 0]; cl = []
    for c in range(9):
        sw = RANK[LAMH[c]] < RANK[LAML[c]]
        la, lb = (LAMH[c], LAML[c]) if sw else (LAML[c], LAMH[c])
        swap |= sw << c; nd[0] |= NEED[la] << 3*c; nd[1] |= NEED[lb] << 3*c
        cl.append(({0:0, 1:6, 2:2, 3:4}[RANK[la]], {0:1, 1:1, 2:3, 3:5}[RANK[lb]]))
    ca = sum(x[0] << 3*i for i, x in enumerate(cl)); cb = sum(x[1] << 3*i for i, x in enumerate(cl))
    a(f"""s_lshl_b32 s52, s{sI}, 2
    s_lshr_b32 s98, s{sC}, 2
    s_add_u32 s52, s52, s98             ; b'
    s_and_b32 s3, s{sC}, 3
    s_mul_i32 s98, s{sWV}, 3
    s_add_u32 s3, s3, s98
    s_min_u32 s3, s3, 8                 ; tile c
    s_mul_i32 s99, s3, 3
    s_lshr_b32 s{sND}, {nd[0]:#x}, s99
    s_and_b32 s{sND}, s{sND}, 7
    s_lshr_b32 s{sND+1}, {nd[1]:#x}, s99
    s_and_b32 s{sND+1}, s{sND+1}, 7
    s_lshr_b32 s98, {ca:#x}, s99
    s_and_b32 s98, s98, 7
    s_lshl_b32 s{sCLS}, 1, s98
    s_lshr_b32 s98, {cb:#x}, s99
    s_and_b32 s98, s98, 7
    s_bitset1_b32 s{sCLS}, s98
    s_bitcmp1_b32 s{sROLE}, {R_FINW}
    s_cselect_b32 s{sCLS}, s{sCLS}, 0
    s_lshl_b32 s99, s52, 11
    s_add_u32 s99, s99, {FL_OFF + 128}
    s_cmp_eq_u32 s3, 8
    s_cselect_b32 s98, 0, 128
    s_sub_u32 s98, s99, s98
    s_mul_i32 s{sPB}, s52, 18
    s_add_u32 s{sPB}, s{sPB}, s3
    s_lshl_b32 s{sPB}, s{sPB}, 14
    s_add_u32 s{sPB}, s{sPB}, {PART_OFF}
    s_lshl_b32 s{sXO}, s3, 6
    s_bitcmp1_b32 {swap:#x}, s3
    s_cselect_b32 s{sFO}, s99, s98
    s_cselect_b32 s{sFO+1}, s98, s99
    s_cselect_b32 s{sSG}, -1.0, 1.0
    s_cselect_b32 s{sSG+1}, 1.0, -1.0
    s_cselect_b32 s98, {9*16384}, 0
    s_cselect_b32 s99, 576, 0
    s_add_u32 s{sPB+1}, s{sPB}, {9*16384}
    s_sub_u32 s{sPB+1}, s{sPB+1}, s98
    s_add_u32 s{sPB}, s{sPB}, s98
    s_add_u32 s{sXO+1}, s{sXO}, 576
    s_sub_u32 s{sXO+1}, s{sXO+1}, s99
    s_add_u32 s{sXO}, s{sXO}, s99
    s_add_u32 s{sXO+2}, s{sXO}, {16*73728}
    s_add_u32 s{sXO+3}, s{sXO+1}, {16*73728}
    v_and_b32 v{VFA}, 7, v{VLANE}
    v_lshlrev_b32 v{VFA}, 8, v{VFA}
    v_lshrrev_b32 v{VO}, 2, v{VLANE}
    s_mov_b32 s98, 73728
    v_mul_lo_u32 v{VO}, v{VO}, s98
    v_and_b32 v{VTT}, 3, v{VLANE}
    v_lshl_add_u32 v{VO}, v{VTT}, 4, v{VO}
    s_mul_i32 s98, s52, 1152
    v_add_u32 v{VO}, s98, v{VO}""")
    srd(a, SW1, 0, 1152)
def cls_block(a, mask, body, inv=False):
    l = a.label('CB'); a(f's_and_b32 s98, s{sCLS}, {mask}\ns_cbranch_scc{1 if inv else 0} {l}'); s0 = a.snap()
    body(a); a(f'{l}:'); a.merge(s0, a.snap())
def epoll_i(hf, m, r=VPO): return lambda a: cls_block(a, m, lambda a: a.vm(poll_ins(r, VFA, f's{sFO+hf}'), ('ep', r)))
def epoll_c(hf, m, r=VPO): return lambda a: cls_block(a, m, lambda a: poll_check(a, ('ep', r), r, VFA, f's{sFO+hf}', f's{sND+hf}'))
def pl_ops(hf, i0, i1):
    o = []
    for i in range(i0, i1):
        if i % 4 == 0 or i == i0: o.append(V(f's_add_u32 s3, s{sPB+hf}, {4096*(i//4)}'))
        o.append(VM(f'buffer_load_dwordx4 {vr(PTH[hf]+4*i)}, v{VL16}, {S(SWS)}, s3 offen offset:{1024*(i%4)} sc1', ('pt', hf)))
    return o
def loads_if(hf, m): return [FN(lambda a, k=k: cls_block(a, m, lambda a: emit(a, pl_ops(hf, 2*k, 2*k+2)))) for k in range(8)]
def xb_ops():
    o = [V(f'v_lshrrev_b32 v6, 5, v{VLANE}'), V('v_lshlrev_b32 v6, 3, v6')]
    for hf in range(2):
        for q in range(4): o.append(VM(f'buffer_load_dwordx2 {ar(AB2+8*hf+2*q,2)}, v6, {S(SW1)}, s{sXO+hf} offen offset:{16*q}', 'b2'))
    for hf in range(2):
        for i in range(2): o.append(VM(f'buffer_load_dwordx4 {ar(AX+8*hf+4*i)}, v{VO}, {S(SX)}, s{sXO+hf+2*i} offen', 'x2'))
    return o
def sel_ops():
    t = TMP
    o = [f'v_and_b32 v{t}, 31, v{VLANE}', f'v_lshrrev_b32 v{t+1}, 5, v{VLANE}', f'v_lshlrev_b32 v{t+1}, 2, v{t+1}', f'v_sub_u32 v{t}, v{t}, v{t+1}',
         f'v_and_b32 v{t+1}, 1, v{t}', f'v_lshlrev_b32 v{t+1}, 4, v{t+1}', f'v_mov_b32 v{t+2}, 0x3f80', f'v_lshlrev_b32 v{t+1}, v{t+1}, v{t+2}', f'v_and_b32 v{t}, -2, v{t}']
    for i in range(8):
        o += [f'v_cmp_eq_u32 vcc, {16*(i//4) + 8*((i//2)%2) + 2*(i%2)}, v{t}\ns_nop 1\nv_cndmask_b32 v{t+2}, 0, v{t+1}, vcc', f'v_accvgpr_write_b32 a{SEL+i}, v{t+2}']
    return [V(x) for x in o]

def final(a):
    Ea=72; Oa=88; YS=[104,72,104]; GA=[208, 104]; PK=224; T=240; VY=7; VG=3; VP=1; APF=32; AY=16; PB=110592
    cv, st = part_inplace(JC[0], 3)
    brole(a, R_FIN, 'L_isfin'); s0 = a.snap()
    a('s_nop 8'); emit(a, mix(cv, st)); a('s_branch L_fin')
    a('L_isfin:'); a.restore(s0)
    a('s_barrier')
    l = a.label('FW'); brole(a, R_FINW, l); s0 = a.snap()
    a('s_nop 6'); emit(a, mix(cv, st))
    for k in range(3):
        a(f's_mov_b32 m0, {98304 + 4096*k}\ns_mov_b32 s96, {98304 - 6144 + 4096*k}\nv_lshl_add_u64 {vr(VTT,2)}, s[96:97], 0, {vr(VTB,2)}')
        for i in range(4): a.vm(f'global_load_lds_dwordx4 {vr(VTT,2)}, off offset:{1024*i}')
    a.vdrain(); a('s_barrier\ns_branch L_fin')
    a(f'{l}:'); a.restore(s0)
    stamp(a, 'f0')
    a(f"""s_mul_i32 s99, s{sWV}, 12288
    s_mul_i32 s54, s52, 36864
    s_add_u32 s54, s54, s99
    s_add_u32 s54, s54, {P_OFF}
    s_add_u32 s99, s99, {PB}
    s_nop 1""")
    emit(a, mix(cv, st))
    poll_check(a, 'pp1', 200, 1, '0', 1); poll_check(a, 'pp2', 202, 3, '0', 1)
    stamp(a, 'f1')
    for k in range(3):
        a(f's_add_u32 m0, s99, {4096*k}\ns_add_u32 s3, s54, {4096*k}')
        for i in range(4): a.vm(f'buffer_load_dwordx4 v{VL16}, {S(SWS)}, s3 offen offset:{1024*i} sc1 lds', ('P', k))
    cls_block(a, 4, lambda a: (poll_check(a, ('ep', 204), 204, VFA, f's{sFO}', f's{sND}'), emit(a, pl_ops(0, 0, 16))))
    cls_block(a, 8, lambda a: (poll_check(a, ('ep', VPO), VPO, VFA, f's{sFO+1}', f's{sND+1}'), emit(a, pl_ops(1, 0, 16))))
    stamp(a, 'f2')
    a(f"""v_lshrrev_b32 v3, 5, v{VLANE}
    v_bfe_u32 v1, v{VLANE}, 2, 2
    v_lshl_add_u32 v3, v3, 3, v1
    v_lshlrev_b32 v3, 7, v3
    v_bfe_u32 v1, v{VLANE}, 1, 1
    v_lshl_add_u32 v3, v1, 6, v3
    v_bfe_u32 v1, v{VLANE}, 4, 1
    v_lshl_add_u32 v3, v1, 4, v3
    v_and_b32 v1, 1, v{VLANE}
    v_lshl_add_u32 v3, v1, 3, v3
    v_add_u32 v{VP}, s99, v3
    v_add_u32 v{VY}, s99, v{VL16}
    s_mov_b32 s54, {f2u(-math.log2(math.e)):#x}""")
    def summ(hf):
        y = vr(GA[hf], 16)
        o = [f'{M} {y}, {ar(SEL)}, {ar(AB2+8*hf)}, 0', f'{M} {y}, {ar(SEL+4)}, {ar(AB2+8*hf+4)}, {y}']
        return o + [f'{M} {y}, {ar(SEL+4*(i%2))}, {vr(PTH[hf]+4*i)}, {y}' for i in range(16)]
    def silu(hf):
        o = []
        for g in range(0, 16, 4):
            y = [GA[hf]+g+i for i in range(4)]; t = [T+i for i in range(4)]
            o += [f'v_mul_f32 v{t[i]}, s54, v{y[i]}' for i in range(4)]
            o += [f'v_exp_f32 v{t[i]}, v{t[i]}' for i in range(4)]
            o += [f'v_add_f32 v{t[i]}, 1.0, v{t[i]}' for i in range(4)]
            o += [f'v_rcp_f32 v{t[i]}, v{t[i]}' for i in range(4)]
            o += [f'v_mul_f32 v{y[i]}, v{t[i]}, v{y[i]}' for i in range(4)]
        return [V(x) for x in o]
    snap_pt = dict(a.st['v'])
    a.vneed('b2', 'x2')
    def procA(a):
        for x in summ(0): a(x)
        a('s_nop 11'); emit(a, silu(0))
    def earlyA(a):
        procA(a)
    cls_block(a, 1|64, earlyA)
    stamp(a, 'f3')
    C=lambda t: ar(TW+4*t); Sn=lambda t: ar(TW+8+4*t); N=lambda t: ar(TW+16+4*t)
    def prd(jj):
        return [FN(lambda a: a.vneed(('P', jj)))] + [LD(f'ds_read_b64_tr_b16 {ar(APF+16*jj+8*p+4*t+2*rho,2)}, v{VP} offset:{4096*jj+2048*t+512*rho+32*p}', ('pf', jj))
                for t in range(2) for p in range(2) for rho in range(2)]
    def pk(jj):
        o = []
        for q in range(4):
            o += [V(f'v_cvt_pk_bf16_f32 v{PK+4*q+i}, v{YS[jj]+8*q+2*i}, v{YS[jj]+8*q+2*i+1}') for i in range(4)]
            o.append(LD(f'ds_write_b128 v{VY}, {vr(PK+4*q)} offset:{4096*jj+2048*(q%2)+1024*(q//2)}', 'yw'))
        return o
    emit(a, prd(0) + prd(1))
    for jj in range(3):
        a.need(('pf', jj))
        yr=vr(YS[jj],16); yi=vr(YS[jj]+16,16); P=APF+16*jj; mf=[]
        for t in range(2):
            mf += [f'{M} {yr}, {ar(P+4*t)}, {C(t)}, {"0" if t==0 else yr}', f'{M} {yi}, {ar(P+8+4*t)}, {C(t)}, {"0" if t==0 else yi}',
                   f'{M} {yr}, {ar(P+8+4*t)}, {N(t)}, {yr}', f'{M} {yi}, {ar(P+4*t)}, {Sn(t)}, {yi}']
        if jj == 0: interleave(a, mf, prd(2))
        else:
            for x in mf[:2]: a(x)
            a('s_nop 6')
            interleave(a, mf[2:], pk(jj-1))
    stamp(a, 'f4')
    a(f"""s_lshl_b32 s98, s{sWV}, 12
    v_add_u32 v{VG}, s98, v{VL16}
    v_add_u32 v{VP}, 61440, v{VG}
    s_nop 4""")
    emit(a, pk(2))
    a(f'v_add_u32 v{VY}, {PB}, v{VL16}')
    a.vneed(*[('d', q) for q in range(90, 102)]); a.need('yw'); a('s_barrier')
    stamp(a, 'f5')
    def rdyg(i):
        j = i//4; go = 12288*j + 1024*(i % 4)
        a.lds(f'ds_read_b128 {ar(AY+4*(i%4))}, v{VY} offset:{1024*i}', ('yg', i))
        if j < 5: a.lds(f'ds_read_b128 {ar(4*(i%4))}, v{VG} offset:{go}', ('yg', i))
        else:     a.lds(f'ds_read_b128 {ar(4*(i%4))}, v{VP} offset:{go-61440}', ('yg', i))
    for i in range(3): rdyg(i)
    for i in range(36):
        if i + 3 < 36: rdyg(i+3)
        a.need(('yg', i))
        j = i//4; t = (i//2) % 2
        d = vr(Ea if (t == 1) == (j < 5) else Oa, 16)
        a(f'{M} {d}, {ar(4*(i%4))}, {ar(AY+4*(i%4))}, {"0" if i in (0,2) else d}')
        if Cfg.lg <= i < Cfg.lg + 8:
            k = i - Cfg.lg
            cls_block(a, 16 << (k//4), lambda a: emit(a, pl_ops(k//4, 4*(k%4), 4*(k%4)+4)))
    stamp(a, 'f6')
    def ready(a, hf):
        a.vneed(('pt', hf))
        cls_block(a, 16 << hf, lambda a: sent_check(a, ('pt', hf), [f'v{PTH[hf]+4*i+3}' for i in range(16)], T, lines_of(pl_ops(hf, 0, 16))))
    VW = 7; VR = 3
    a(f"""s_mul_i32 s98, s{sWV}, 5120
    s_add_u32 s98, s98, {BIAS_LDS}
    v_and_b32 v{VW}, 31, v{VLANE}
    v_mul_u32_u24 v{VW}, 80, v{VW}
    v_add3_u32 v{VW}, v{VW}, v6, s98
    v_lshrrev_b32 v{VR}, 2, v{VLANE}
    v_mul_u32_u24 v{VR}, 80, v{VR}
    v_and_b32 v1, 3, v{VLANE}
    v_lshlrev_b32 v1, 4, v1
    v_add3_u32 v{VR}, v{VR}, v1, s98""")
    cls_block(a, 1|64, lambda a: (ready(a, 0), procA(a)), inv=True)
    stamp(a, 'f7')
    def comb(hf):
        o = []
        for g in range(0, 16, 4):
            t = [T+4+i for i in range(4)]
            o += [V(f'v_fma_f32 v{t[i]}, v{Oa+g+i}, s{sSG+hf}, v{Ea+g+i}') for i in range(4)]
            o += [V(f'v_mul_f32 v{t[i]}, v{t[i]}, v{GA[hf]+g+i}') for i in range(4)]
            o += [V(f'v_cvt_pk_bf16_f32 v{PK+8*hf+g//2+i}, v{t[2*i]}, v{t[2*i+1]}') for i in range(2)]
            o.append(LD(f'ds_write_b64 v{VW}, {vr(PK+8*hf+g//2,2)} offset:{2560*hf+4*g}'))
        for i in range(2): o.append(LD(f'ds_read_b128 {vr(PK+8*hf+4*i)}, v{VR} offset:{2560*hf+1280*i}', ('tr', hf)))
        return o
    def xun(hf):
        o = []
        for d in range(8):
            o += [V(f'v_accvgpr_read_b32 v{121+2*d}, a{AX+8*hf+d}'), V(f'v_lshlrev_b32 v{120+2*d}, 16, v{121+2*d}'), V(f'v_and_b32 v{121+2*d}, 0xffff0000, v{121+2*d}')]
        return o
    def outp(hf):
        o = [FN(lambda a: a.need(('tr', hf)))]
        for d in range(8):
            r = PK+8*hf+d
            o += [V(f'v_lshlrev_b32 v{T}, 16, v{r}'), V(f'v_and_b32 v{T+1}, 0xffff0000, v{r}'), V(f'v_add_f32 v{T}, v{T}, v{120+2*d}'), V(f'v_add_f32 v{T+1}, v{T+1}, v{121+2*d}'),
                  V(f'v_cvt_pk_bf16_f32 v{r}, v{T}, v{T+1}')]
            if d % 4 == 3: o.append(VM(f'buffer_store_dwordx4 {vr(r-3)}, v{VO}, {S(SOUT)}, s{sXO+hf+2*(d//4)} offen {Cfg.ofl}'))
        return o
    ready(a, 1)
    stamp(a, 'f8')
    interleave(a, summ(1), comb(0) + xun(0) + outp(0))
    stamp(a, 'f9')
    emit(a, xun(1) + silu(1) + comb(1) + outp(1))
    stamp(a, 'f10')

def build(aslist=False):
    k = NAME + '_kernel'
    body = kernel()
    hdr = f'; @launch kernel={k} grid=(256,1,1) block=(256,1,1) lds=163840\n' if aslist else '; @launch grid=(256,1,1) block=(256,1,1) lds=163840\n'
    s = '; generated by gen/v3.py\n' + hdr + '.amdgcn_target "amdgcn-amd-amdhsa--gfx950"\n.text\n.set CODE_LINES, 17\n'
    s += kstart(k) + body + 'L_codeend:\n'
    s += '.section .rodata,"a"\n' + kdesc(k, 512, 256) + tables()
    return s
if __name__ == '__main__':
    out = sys.argv[1] if len(sys.argv) > 1 else f'cdna_kernels/{NAME}.s'
    for x in sys.argv[2:]:
        if '=' in x:
            kx, vx = x.split('='); setattr(Cfg, kx, int(vx) if vx.lstrip('-').isdigit() else vx)
    open(out, 'w').write(build('--list' in sys.argv))
```

```python
import sys
from common2 import *
M = 'v_mfma_f32_32x32x16_bf16'
VL16=0; VT1=1; VLANE=2; VT3=3; VA1=4; VB1=5; VA2=6; VB2=7
XF=8; ACC=[152,184]; TMP=216; HO=224; TA=240; VBI=246; VC0=247; VFL=248; VPO=250; VTB=252; VTT=254
HF=32; TW=176
SX,SW1,SW2,SWS,SWR,SWI,SOUT,SB,SDBG = 4,8,12,16,20,24,28,32,36
sWV,sI,sC,sB,sROLE,sNON = 40,41,42,43,44,45
sO1=46; sO2=55; sW2K=64; sHS=65; sPS=66; sFLG=67; sT=68; sT2=69; sGC1=70; sP=71
sRHO=39
sX0=96
R_ODD,R_DFT,R_SMID,R_UNIT,R_FIN,R_FINW,R_PATCH = 0,1,2,3,4,5,6
PF=3; NB=4
GC0 = -2.0*math.log2(math.e)*math.sqrt(2/math.pi); GC1 = GC0*0.044715
BIAS_LDS = 147456
B2_LDS = 163840 - 2048
class Cfg:
    stamps=False; st='1,2,3,4,5,6,7,8,9,10'; xa=2; lg=0; blk=0; f6=60; p9=30; sch='0-1x'; ta=22; ls=3; rf=1; w3b=1; ecl=1; ge=40; c5=100; f5h=72; noclr=0; t1=45; t2=99; ne=9; c0=20; b2=1; pz1=2; pz2=4; sd=4; tw1=1; warm=1; wmode='execz'; clk=0; xe=1; fp=2; f7=60; gs=55; l9=46; l10=34; mg=0; tn=108; e2=50; l2=0; t9=30; t10=8; pfg=44; ofl=''; h8=44; f4=26; c4=20; f5=14; p8=60; fg=24; pg=52; cg=8; tb=4; normin=0; rx=8; rota=1; rotb=2; touch='x2,w,tab,code'; spin=100000; slp=8; slp2=2; rr=1; wt=1
def S(b): return f's[{b}:{b+3}]'
def stamp(a, nm):
    if not Cfg.stamps: return
    L = ['0'] + Cfg.st.split(',') + ['11']
    nm = str(nm)
    if nm in L:
        i = L.index(nm) if nm != '11' else 11
        a(f'{"s_memtime" if Cfg.clk else "s_memrealtime"} s[{72+2*i}:{73+2*i}]')
def stamp_flush(a, n):
    if not Cfg.stamps: return
    a.vdrain(); stamp(a, n); n += 1
    a(f'''s_waitcnt lgkmcnt(0)
    s_mov_b32 s{SWS+2}, {STAMP_OFF + (1<<20)}
    v_mov_b32 v1, 0''')
    for i in range(n): a(f'v_writelane_b32 v1, s{72+2*i}, {i}')
    a(f'''s_lshl_b32 s{sT}, s2, 3
    s_add_u32 s{sT}, s{sT}, s{sWV}
    s_lshl_b32 s{sT}, s{sT}, 6
    s_add_u32 s{sT}, s{sT}, {STAMP_OFF}
    v_lshlrev_b32 v3, 2, v{VLANE}
    s_mov_b64 exec, 0xffff
    buffer_store_dword v1, v3, {S(SWS)}, s{sT} offen
    s_mov_b64 exec, -1''')
def brole(a, bit, lab, ifset=True):
    a(f's_bitcmp1_b32 s{sROLE}, {bit}\ns_cbranch_scc{1 if ifset else 0} {lab}')

def V(s, c=1): return (c, lambda a: a(s))
def VM(s, tag=None): return (1, lambda a: a.vm(s, tag))
def LD(s, tag=None): return (1, lambda a: a.lds(s, tag))
def FN(f, c=1): return (c, f)
def SVM(pre, s, tag=None): return (1, lambda a: (a(pre), a.vm(s, tag)))
def emit(a, ops):
    for _, f in ops: f(a)

def sops(txt):
    L = [x.split(';')[0].strip() for x in txt.split('\n')]; L = [x for x in L if x]
    o = []; cur = []
    for i, x in enumerate(L):
        cur.append(x)
        nx = L[i+1] if i+1 < len(L) else ''
        if nx.startswith(('s_cselect', 's_addc', 's_subb', 'v_cndmask', 's_nop')) or x.startswith(('s_nop', 'v_cmp')): continue
        o.append(V('\n'.join(cur), len(cur))); cur = []
    return o
def mix(x, y):
    o = []; k = 0
    for i, e in enumerate(x):
        o.append(e)
        t = len(y)*(i+1)//len(x)
        while k < t: o.append(y[k]); k += 1
    return o
def gelu_ops(acc, job, nb=None, sd=0):
    ops = []; G = 4; held = []
    for g in range(0, 32, G):
        t = [TMP + (g//G % 2)*4 + i for i in range(G)]
        x = [acc + g + i for i in range(G)]
        for i in range(G): ops.append(V(f'v_mul_f32 v{t[i]}, v{x[i]}, v{x[i]}'))
        for i in range(G): ops.append(V(f'v_fma_f32 v{t[i]}, v{t[i]}, s{sGC1}, v{VC0}'))
        for i in range(G): ops.append(V(f'v_mul_f32 v{t[i]}, v{t[i]}, v{x[i]}'))
        for i in range(G): ops.append(V(f'v_exp_f32 v{t[i]}, v{t[i]}', 2))
        for i in range(G): ops.append(V(f'v_add_f32 v{t[i]}, 1.0, v{t[i]}'))
        for i in range(G): ops.append(V(f'v_rcp_f32 v{t[i]}, v{t[i]}', 2))
        for i in range(G): ops.append(V(f'v_mul_f32 v{t[i]}, v{t[i]}, v{x[i]}'))
        if nb is not None: ops.append((2, lambda a, g=g: a.lds(f'ds_read_b128 {vr(acc+g)}, v{VBI} offset:{256*nb + 8*g}', 'bias')))
        for i in range(0, G, 2): ops.append(V(f'v_cvt_pk_bf16_f32 v{HO + (g+i)//2}, v{t[i]}, v{t[i+1]}'))
        for i in range(0, G, 2): ops.append(V(f'v_accvgpr_write_b32 a{HF + 16*job + (g+i)//2}, v{HO + (g+i)//2}'))
        if g % 8 == 4:
            q = g // 8
            if q == 0: ops.append(V(f's_add_u32 s{sT2}, s{sHS}, {4096*job}'))
            held.append(VM(f'buffer_store_dwordx4 {vr(HO+4*q)}, v{VL16}, {S(SWS)}, s{sT2} offen offset:{1024*q} sc1', ('h', job)))
        if held and g//4 >= sd: ops.append(held.pop(0))
    return ops
def part_ops(acc, lam):
    ops = []
    for q in range(4):
        if q % 2 == 0: ops.append(V(f's_add_u32 s{sT2}, s{sPS}, {16384*(2*lam + q//2)}' if lam != 9 else f's_add_u32 s{sT2}, s{sL9}, {16384*(q//2)}'))
        for i in range(4): ops.append(V(f'v_cvt_pk_bf16_f32 v{HO+4*q+i}, v{acc+8*q+2*i}, v{acc+8*q+2*i+1}'))
        ops.append(VM(f'buffer_store_dwordx4 {vr(HO+4*q)}, v{VL16}, {S(SWS)}, s{sT2} offen offset:{1024*(q%2)} sc1', ('p', lam)))
    return ops
def clear_ops(sreg, imms, tag, r=HO):
    if Cfg.noclr: return [V('s_nop 0')]
    ops = [V(f'v_mov_b32 v{r+i}, -1' if r > 0 else f'v_accvgpr_write_b32 a{-r+i}, -1') for i in range(4)]
    ops = [(0, f) for _, f in ops]
    for im in imms:
        for k in range(2): ops.append(SVM(f's_add_u32 s3, s{sreg}, {im}', f'buffer_store_dwordx4 {vr(r) if r > 0 else ar(-r)}, v{VL16}, {S(SWS)}, s3 offen offset:{1024*k} sc1', tag))
    return ops
def sent_check(a, tag, regs, t, reload_lines, probe=None, slp=None):
    lc = a.label('SC'); ls = a.label('SS'); lk = a.label('SK')
    a.vneed(tag)
    a(f'{lc}:')
    rs = []
    for i, r in enumerate(regs):
        if r[0] == 'a': a(f'v_accvgpr_read_b32 v{t+i}, {r}'); rs.append(f'v{t+i}')
        else: rs.append(r)
    a(f'v_max_u32 v{t}, {rs[0]}, {rs[1]}')
    for i in range(2, len(rs), 2): a(f'v_max3_u32 v{t}, v{t}, {rs[i]}, {rs[i+1]}')
    a(f'v_cmp_eq_u32 vcc, -1, v{t}\ns_nop 1\ns_cmp_lg_u64 vcc, 0\ns_cbranch_scc1 {ls}\n{lk}:')
    pr = []
    if probe:
        pr = [' ' + x for x in probe[0]] + [f' v_and_b32 v{t+1}, {probe[1]}, v{VLANE}', f' v_lshlrev_b32 v{t+1}, 10, v{t+1}', f' buffer_load_dword v{t}, v{t+1}, {S(SWS)}, s3 offen offset:1020 sc1',
              ' s_waitcnt vmcnt(0)', f' v_cmp_eq_u32 vcc, -1, v{t}', ' s_nop 1', ' s_cmp_lg_u64 vcc, 0', f' s_cbranch_scc1 {ls}']
    a.ool += [f'{ls}:', f' s_sub_u32 s{sP}, s{sP}, 1', f' s_cbranch_scc1 {ls}_x', f' s_sleep {slp or (Cfg.slp2 if probe else Cfg.slp)}'] + pr + [x if x.endswith(':') else ' ' + x for x in reload_lines] + [' s_waitcnt vmcnt(0)', f' s_branch {lc}',
              f'{ls}_x:', f' s_mov_b32 s{sP}, 0', f' s_branch {lk}']
def lines_of(ops):
    t = E(); emit(t, ops); return [x.strip() for x in t.l]
def norm_ops(u):
    T = HO; r = XF + 8*u; ops = []
    for i in range(8): ops.append(V(f'v_dot2_f32_bf16 v{T+i}, v{r+i}, v{TMP+4}, v{TMP}'))
    for i in range(8): ops.append(V(f'v_dot2_f32_bf16 v{T+8+i}, v{r+i}, v{TMP+5}, v{TMP}'))
    for i in range(8): ops.append(V(f'v_cvt_pk_bf16_f32 v{r+i}, v{T+2*i}, v{T+2*i+1}'))
    return ops
def setflag(a, stage, *tags, off=None):
    a(f'v_mov_b32 v{VFL+1}, {stage}')
    a.vneed(*tags)
    a('s_mov_b64 exec, 1')
    a.vm(f'buffer_store_dwordx2 {vr(VFL,2)}, off, {S(SWS)}, s{sFLG if off is None else off} sc1')
    a('s_mov_b64 exec, -1')
def setflag2(a, stage, *tags):
    a(f'v_add_u32 v{VFL+1}, {stage}, v{VFL}')
    a.vneed(*tags)
    a('s_mov_b64 exec, 1')
    a.vm(f'buffer_store_dword v{VFL+1}, off, {S(SWS)}, s{sFLG} sc1')
    a('s_mov_b64 exec, -1')
def poll_ins(p, voff, soff): return f'buffer_load_dwordx2 {vr(p,2)}, v{voff}, {S(SWS)}, {soff} offen sc1' if voff is not None else f'buffer_load_dwordx2 {vr(p,2)}, off, {S(SWS)}, {soff} sc1'
def poll_test(a, p, need):
    a(f'''v_subrev_u32 v{p+1}, {need}, v{p+1}
    v_cmp_ne_u32 vcc, s{sNON}, v{p}
    v_cmp_lt_u32 s[{sX0+4}:{sX0+5}], 60, v{p+1}
    s_nop 1
    s_or_b64 vcc, vcc, s[{sX0+4}:{sX0+5}]''')
SPL = 0
def spoll_i(a): a(f's_buffer_load_dwordx2 s[{SPL}:{SPL+1}], {S(SWS)}, s34 glc')
def spoll_c(need):
    def f(a):
        lc = a.label('QC'); lk = a.label('QK')
        a.drain()
        a(f"""s_sub_u32 s{SPL+1}, s{SPL+1}, {need}
        s_cmp_lt_u32 s{SPL+1}, 60
        s_cselect_b32 s{SPL}, s{SPL}, 0
        s_cmp_lg_u32 s{SPL}, s{sNON}
        s_cbranch_scc1 {lc}
        {lk}:""")
        t = E(); poll_test(t, VPO, need)
        a.ool += [f'{lc}:', ' ' + poll_ins(VPO, None, 's34'), ' s_waitcnt vmcnt(0)'] + t.l + [f' s_cbranch_scc0 {lk}', f' s_sub_u32 s{sP}, s{sP}, 1', f' s_cbranch_scc1 {lc}_x', f' s_sleep {Cfg.slp}', f' s_branch {lc}',
                  f'{lc}_x:', f' s_mov_b32 s{sP}, 0', f' s_branch {lk}']
    return f
def poll_check(a, tag, p, voff, soff, need):
    lc = a.label('PC'); ls = a.label('PS'); lk = a.label('PK')
    a.vneed(tag)
    a(f'{lc}:'); poll_test(a, p, need)
    a(f's_cbranch_scc1 {ls}\n{lk}:')
    a.ool += [f'{ls}:', f' s_sub_u32 s{sP}, s{sP}, 1', f' s_cbranch_scc1 {ls}_x', f' s_sleep {Cfg.slp}', ' ' + poll_ins(p, voff, soff), ' s_waitcnt vmcnt(0)', f' s_branch {lc}',
              f'{ls}_x:', f' s_mov_b32 s{sP}, 0', f' s_branch {lk}']

def slot(q): return (q % 18) * 8192
def rd_ops(kind, q, kk, n):
    fb = (n % NB) * 8; s = slot(q) + kk*2048
    if kind == 'dft':
        b = s // 49152; off = s % 49152
        return [(f'ds_read_b128 {ar(fb)}, v{VPO+b} offset:{off}', ('f', n)), (f'ds_read_b128 {ar(fb+4)}, v{VPO+b} offset:{off+1024}', ('f', n))]
    b = s // 49152; off = s % 49152; L = TA + 2*b; R = L + 1
    return [(f'ds_read_b64_tr_b16 {ar(fb,2)}, v{L} offset:{off}', ('f', n)), (f'ds_read_b64_tr_b16 {ar(fb+2,2)}, v{L} offset:{off+512}', ('f', n)),
            (f'ds_read_b64_tr_b16 {ar(fb+4,2)}, v{R} offset:{off}', ('f', n)), (f'ds_read_b64_tr_b16 {ar(fb+6,2)}, v{R} offset:{off+512}', ('f', n))]
def dma_buf(q, srd_, va, vb, sreg, imm, fl='', srd2=None):
    def f0(a):
        a(f's_add_u32 m0, s{sW2K}, {slot(q)}\ns_add_u32 s{sT}, s{sreg}, {imm}')
        a.vm(f'buffer_load_dwordx4 v{va}, {S(srd_)}, s{sT} offen {fl} lds', ('d', q))
    def f1(a): a.vm(f'buffer_load_dwordx4 v{vb}, {S(srd2 or srd_)}, s{sT} offen offset:1024 {fl} lds', ('d', q))
    return [f0, f1]
def dma_tab(q, imm=None, sreg=None):
    def f0(a):
        a(f's_add_u32 m0, s{sW2K}, {slot(q)}')
        if sreg is None: a(f's_mov_b32 s{sX0}, {imm}')
        else: a(f's_lshl_b32 s{sX0}, s{sreg}, 13\ns_add_u32 s{sX0}, s{sX0}, s{sPS}')
        a(f'v_lshl_add_u64 {vr(VTT,2)}, s[{sX0}:{sX0+1}], 0, {vr(VTB,2)}')
        a.vm(f'global_load_lds_dwordx4 {vr(VTT,2)}, off', ('d', q))
    def f1(a): a.vm(f'global_load_lds_dwordx4 {vr(VTT,2)}, off offset:1024', ('d', q))
    return [f0, f1]
def dma_alt(bit, ifset, ifclr, cond=None):
    def f0(a):
        l1 = a.label('DA'); l2 = a.label('DB')
        if not ifclr:
            brole(a, bit, l1, False); s0 = a.snap()
            for f in ifset: f(a)
            a(f'{l1}:'); a.merge(s0, a.snap()); return
        brole(a, bit, l1)
        s0 = a.snap()
        if ifclr:
            for f in ifclr: f(a)
        s1 = a.snap()
        if ifset:
            a(f's_branch {l2}\n{l1}:'); a.restore(s0)
            for f in ifset: f(a)
            a(f'{l2}:'); a.merge(s1, a.snap())
        else:
            a(f'{l1}:'); a.merge(s0, s1)
    return [f0, lambda a: None]
GORD = [1,2,3,4,0,5,6,7,8]; GE = [1,2,3,0,5,4,6,7,8]
def w1p(q): return dma_buf(q, SW1, VA1, VB1, sO1 + q % 9, 128*(q//9))
def w2p(q, g, lam): return dma_buf(q, SW2, VA2, VB2, sO2 + g, 128*lam)
sSV, sFP, sL9 = 46, 54, 10
def plan(q, role=None):
    if q < 45: return w1p(q)
    if q < 72:
        assert role
        if role == 'O':
            return w2p(q, GORD[(q-45)//2], (q-45) % 2) if q < 63 else w2p(q, GORD[q-63], 4)
        if q < 51: return w2p(q, GE[q-45], 0)
        if q < 54: return dma_tab(q, TABF_SZ + TABG_SZ + 8192*(q-51))
        if q < 57: return dma_buf(q, SWS, VL16, VL16, sSV, 8192*(q-54), 'sc1')
        if q < 60: return []
        if q < 63: return w2p(q, GE[q-54], 0)
        return w2p(q, GORD[q-63], 1)
    if q < 90: return w2p(q, GORD[(q-72) % 9], 2 + (q-72)//9)
    k = q - 90
    if k < 3: return dma_tab(q, 8192*k)
    if k < 9:
        pp = dma_buf(q, SWS, VL16, VL16, sFP, 2048*(k-3), 'sc1')
        if role == 'P': return pp
        def f(a):
            l1 = a.label('DA'); l2 = a.label('DB')
            a(f's_cmp_eq_u32 s{sWV}, 3\ns_cbranch_scc1 {l1}')
            for g in pp: g(a)
            a(f'{l2}:')
            t = E(); t(f'{l1}:')
            for g in dma_tab(q, 24576 - 6144 + 2048*(k-3)): g(t)
            t(f's_branch {l2}'); a.ool += t.l
        return [f]
    return dma_tab(q, 8192*k - 36864)

def bias_ops(acc, job): return [LD(f'ds_read_b128 {vr(acc+4*q)}, v{VBI} offset:{256*job + 32*q}', 'bias') for q in range(8)]
def bias_reads(a, acc, job):
    for q in range(8): a.lds(f'ds_read_b128 {vr(acc+4*q)}, v{VBI} offset:{256*job + 32*q}', 'bias')

def run(a, q0, npc, kind, mf, fills, nxt='tr', nextbias=None, norm=False, events=None, role=None, pause=None):
    events = events or {}
    N = 4*npc; n0 = 4*q0
    dq = []
    fs = [[ops, s, e, 0, 0, sum(c for c, _ in ops)] for ops, s, e in fills]
    for i in range(N):
        n = n0 + i; q = q0 + i//4; kk = i % 4
        j = i + PF; qn = q0 + j//4
        k2 = kind if j < N else nxt
        r = rd_ops(k2, qn, j % 4, n + PF) if k2 else []
        fb = (n % NB) * 8
        if kk == 0:
            for qq in [q + 12] + events.get(('dma', q), []): dq += plan(qq, role)
        paused = pause and pause[0] <= i//4 < pause[0] + pause[1]
        for h in range(2):
            gap = 2*i + h
            if h == 0 and kk == 0: stamp(a, f'q{q}')
            stamp(a, f'g{q0}_{gap}')
            for f in events.get(('pre', gap), []): f(a)
            if h == 0: a.need(('f', n), *(['bias'] if i == 0 else []))
            acc, op, zero = mf(i//4, kk, h)
            d = vr(acc, 16) if acc >= 0 else ar(-acc, 16); c = '0' if zero else d
            if kind == 'dft': a(f'{M} {d}, {op}, {ar(fb+4*h)}, {c}')
            else:             a(f'{M} {d}, {ar(fb+4*h)}, {op}, {c}')
            if h == 0 and j % 12 == 0 and k2 and (4*q0) % 12 == 0:
                a.vneed(('d', qn), ('d', qn+1), ('d', qn+2), *events.get(('bar', qn), [])); a('s_barrier')
            if h == 0 and j == N and nextbias is not None:
                assert all(f[3] == len(f[0]) for f in fs)
                bias_reads(a, *nextbias)
            m = len(r)//2
            for ins, t in r[h*m:(h+1)*m]: a.lds(ins, t)
            if dq and not paused and ((h == 1 and (kk % 2 == 0 or len(dq) > 2)) or (len(dq) > N - i - 1)): dq.pop(0)(a)
            if norm and i//2 + 1 < 18:
                emit(a, norm_ops(i//2 + 1)[6*(gap % 4):6*(gap % 4)+6])
            for f in fs:
                if gap >= f[1]:
                    target = f[5] * min(1.0, (gap - f[1] + 1) / (f[2] - f[1]))
                    while f[3] < len(f[0]) and f[4] + f[0][f[3]][0]/2 <= target:
                        f[0][f[3]][1](a); f[4] += f[0][f[3]][0]; f[3] += 1
            for f in events.get(gap, []): f(a)
    assert all(f[3] == len(f[0]) for f in fs) and not dq
def only(bit, f):
    def g(a):
        l = a.label('ON'); brole(a, bit, l, False); s0 = a.snap()
        f(a); a(f'{l}:'); a.merge(s0, a.snap())
    return g
def masked(test, f):
    def g(a):
        a(test + '\ns_cselect_b64 exec, -1, 0'); s0 = a.snap()
        f(a); a('s_mov_b64 exec, -1'); a.merge(s0, a.snap())
    return g
def rolem(bit, f): return masked(f's_bitcmp1_b32 s{sROLE}, {bit}', f)
def rolem_ops(bit, ops, n): return [FN(rolem(bit, lambda a, x=ops[i:i+n]: emit(a, x))) for i in range(0, len(ops), n)]
def only_ops(bit, ops, n):
    return [FN(only(bit, lambda a, x=ops[i:i+n]: emit(a, x))) for i in range(0, len(ops), n)]
def first_reads(a, kind, q):
    for ks in range(PF):
        for ins, t in rd_ops(kind, q, ks, 4*q + ks): a.lds(ins, t)
def interleave(a, mf, ops, start=0):
    n = len(mf) - start; k = 0
    for i, x in enumerate(mf):
        a(x)
        if i >= start:
            t = len(ops) * (i - start + 1) // n
            while k < t: ops[k][1](a); k += 1

def twiddle_ops(dst, t, sym, sb, scale=None):
    o = [f'v_and_b32 v{t}, 31, v{VLANE}', f'v_lshrrev_b32 v{t+1}, 5, v{VLANE}']
    if sym == 'fwd':
        o += [f'v_lshlrev_b32 v{t+1}, 8, v{t+1}', f'v_add_u32 v{t+1}, s{sb}, v{t+1}', f'v_mul_u32_u24 v{t+1}, v{t+1}, v{t}', f'v_lshlrev_b32 v{t}, 6, v{t}']
        mult = lambda tt, e: 16*tt + (e & 3) + 8*(e >> 2)
    else:
        o += [f'v_lshlrev_b32 v{t}, 6, v{t}', f'v_add_u32 v{t}, s{sb}, v{t}', f'v_lshlrev_b32 v{t+1}, 3, v{t+1}', f'v_mul_u32_u24 v{t+1}, v{t+1}, v{t}']
        mult = lambda tt, e: 16*tt + e
    for tt in range(2):
        for e in range(0, 8, 2):
            for i in range(2): o.append(f'v_mad_u32_u24 v{t+2+i}, v{t}, {mult(tt, e+i)}, v{t+1}')
            for i in range(2): o.append(f'v_and_b32 v{t+2+i}, 0x7ff, v{t+2+i}')
            for i in range(2): o.append(f'v_cvt_f32_u32 v{t+2+i}, v{t+2+i}')
            for i in range(2): o.append(f'v_mul_f32 v{t+2+i}, {f2u(1/2048):#x}, v{t+2+i}')
            for i in range(2): o.append(f'v_cos_f32 v{t+4+i}, v{t+2+i}')
            for i in range(2): o.append(f'v_sin_f32 v{t+2+i}, v{t+2+i}')
            if scale:
                for i in (2,3,0,1): o.append(f'v_mul_f32 v{t+2+i}, {f2u(scale):#x}, v{t+2+i}')
            d = 4*tt + e//2
            o += [f'v_cvt_pk_bf16_f32 v{t+4}, v{t+4}, v{t+5}', f'v_cvt_pk_bf16_f32 v{t+2}, v{t+2}, v{t+3}', f'v_accvgpr_write_b32 a{dst+d}, v{t+4}',
                  f'v_xor_b32 v{t+3}, 0x80008000, v{t+2}', f'v_accvgpr_write_b32 a{dst+8+d}, v{t+2}', f'v_accvgpr_write_b32 a{dst+16+d}, v{t+3}']
    return [V(x) for x in o]

def prologue(a):
    rx = Cfg.rx; cx = 32//rx; nxc = 16//cx
    a(f"""s_cmpk_ge_u32 s2, 256
    s_cbranch_scc1 L_end
    s_load_dwordx16 s[44:59], s[0:1], 0
    s_load_dwordx4 s[60:63], s[0:1], 64
    s_load_dwordx2 s[64:65], s[0:1], 80
    s_memrealtime s[66:67]""")
    stamp(a, 0)
    a(f"""s_getpc_b64 s[100:101]
    L_pcref:
    s_lshr_b32 s97, s2, 3
    s_mul_i32 s97, s97, CODE_LINES*128
    v_lshlrev_b32 v{VPO}, 7, v0
    v_add_u32 v{VPO}, s97, v{VPO}
    v_min_u32 v{VPO}, L_codeend-L_pcref-4, v{VPO}
    v_mov_b32 v{VPO+1}, 0
    v_lshl_add_u64 {vr(VPO,2)}, s[100:101], 0, {vr(VPO,2)}
    v_cmp_gt_u32 vcc, CODE_LINES, v0
    s_and_saveexec_b64 s[98:99], vcc
    s_cbranch_execz L_noct
    global_load_dword a255, {vr(VPO,2)}, off
    L_noct:
    s_mov_b64 exec, -1
    s_and_b32 s96, s2, 7
    s_lshr_b32 s97, s2, 3
    s_and_b32 s{sC}, s96, {nxc-1}
    s_mul_i32 s{sC}, s{sC}, {cx}
    s_and_b32 s98, s97, {cx-1}
    s_add_u32 s{sC}, s{sC}, s98
    s_lshr_b32 s{sI}, s96, {nxc.bit_length()-1}
    s_mul_i32 s{sI}, s{sI}, {rx}
    s_lshr_b32 s98, s97, {cx.bit_length()-1}
    s_add_u32 s{sI}, s{sI}, s98
    v_lshrrev_b32 v1, 6, v0
    v_and_b32 v{VLANE}, 63, v0
    v_mov_b32 v{VTT}, v0
    v_readfirstlane_b32 s{sWV}, v1
    v_lshlrev_b32 v{VL16}, 4, v{VLANE}
    v_lshrrev_b32 v1, 3, v{VLANE}
    v_and_b32 v3, 7, v{VLANE}
    v_lshrrev_b32 v4, 1, v1
    v_xor_b32 v3, v3, v4
    s_mov_b32 s96, 73728
    v_mul_lo_u32 v1, v1, s96
    v_lshl_add_u32 v144, v3, 4, v1
    v_xor_b32 v145, 64, v144
    v_add_u32 v145, {8*73728-1024}, v145
    v_add_u32 v146, {16*73728}, v144
    v_add_u32 v147, {16*73728}, v145
    s_lshl_b32 s{sB}, s{sI}, 2
    s_add_u32 s{sB}, s{sB}, s{sWV}
    s_mul_i32 s96, s{sI}, {Cfg.rota}
    s_mul_i32 s97, s{sC}, {Cfg.rotb}
    s_add_u32 s96, s96, s97
    s_mul_i32 s97, s96, 7282
    s_lshr_b32 s97, s97, 16
    s_mul_i32 s97, s97, 9
    s_sub_u32 s96, s96, s97         ; rot
    s_mul_i32 s3, s{sB}, 1152
    s_lshl_b32 s99, s{sWV}, 11
    s_getpc_b64 s[100:101]
    s_add_u32 s100, s100, tabF@rel32@lo+4
    s_addc_u32 s101, s101, tabF@rel32@hi+12
    s_mov_b32 s{SX+2}, {2048*1152}
    s_mov_b32 s{SX+3}, 0x20000
    s_lshl_b32 s{sT}, s96, 7
    s_add_u32 s{sT}, s{sT}, s3
    s_mov_b32 m0, s99
    s_waitcnt lgkmcnt(0)
    s_mov_b32 s{SX}, s44
    s_and_b32 s{SX+1}, s45, 0xffff""")
    stamp(a, 'ka')
    for o in range(4):
        if o == 2: a('s_add_u32 m0, s99, 8192\ns_nop 0')
        a.vm(f'buffer_load_dwordx4 v{144+o}, {S(SX)}, s{sT} offen offset:{1024*(o%2)} lds', ('x', 0))
    srd(a, SDBG, 62, 256); srd(a, SWS, 64, WS_SZ)
    srd(a, SWR, 46, 2048*578); srd(a, SWI, 48, 2048*578); srd(a, SW1, 52, 576*9216); srd(a, SB, 54, 9216)
    srd(a, SW2, 56, 4608*1152); srd(a, SOUT, 60, 2048*1152)
    a(f's_mov_b64 s[0:1], s[58:59]\ns_mov_b32 s{sW2K}, s99')
    XV = 144
    def xline(L):
        a(f's_lshl_b32 s{sT}, s{sO2+L}, 7\ns_add_u32 s{sT}, s{sT}, s3')
        for o in range(4):
            if o % 2 == 0: a(f's_add_u32 m0, s{sW2K}, {16384*L + 8192*(o//2)}\ns_nop 0')
            a.vm(f'buffer_load_dwordx4 v{XV+o}, {S(SX)}, s{sT} offen offset:{1024*(o%2)} lds', ('x', L))
    for L in range(9):
        a(f's_mov_b32 s{sO2+L}, s96')
        if 0 < L < Cfg.xa: xline(L)
        if L < 8: a('s_add_u32 s96, s96, 1\ns_cmp_eq_u32 s96, 9\ns_cselect_b32 s96, 0, s96')
    stamp(a, 'xi')
    nx = [Cfg.xa, 0]
    def xnext():
        if nx[1] < Cfg.xe: xline(nx[0]); nx[0] += 1; nx[1] += 1
    a(f'''s_or_b32 s66, s66, 1
    s_add_u32 s97, s2, s{sWV}
    s_cmp_lg_u32 s97, 0
    s_cbranch_scc1 L_nonon
    v_mov_b32 v1, s66
    s_mov_b64 exec, 1
    buffer_store_dword v1, off, {S(SDBG)}, 0 sc1
    s_mov_b64 exec, -1
    L_nonon:
    s_lshr_b32 s96, s{sC}, 1            ; p
    s_mul_i32 s{sNON}, s{sI}, {Cfg.rr}
    s_add_u32 s{sNON}, s{sNON}, s96
    s_and_b32 s{sNON}, s{sNON}, 7       ; rho
    s_and_b32 s{sROLE}, s{sC}, 1
    s_cmp_lt_u32 s{sNON}, 5
    s_cselect_b32 s97, s{sROLE}, 0
    s_lshl_b32 s97, s97, {R_DFT}
    s_xor_b32 s98, s{sROLE}, 1
    s_cmp_lt_u32 s{sNON}, 6
    s_cselect_b32 s98, s98, 0
    s_cmp_lt_u32 s{sWV}, 3
    s_cselect_b32 s99, {(1<<R_SMID)|(1<<R_UNIT)}, {1<<R_SMID}
    s_mul_i32 s98, s98, s99
    s_cselect_b32 s99, {(1<<R_FIN)|(1<<R_FINW)}, {1<<R_FIN}
    s_or_b32 s97, s97, s98
    s_and_b32 s98, s{sC}, 3
    s_cmp_lg_u32 s98, 2
    s_cselect_b32 s99, s99, 0
    s_or_b32 s97, s97, s99
    s_lshl_b32 s98, s{sROLE}, 8
    s_or_b32 s{sROLE}, s{sROLE}, s97
    s_lshl_b32 s97, s{sNON}, 8
    s_or_b32 s{sROLE}, s{sROLE}, s97
    s_mul_i32 s97, s96, 576
    s_add_u32 s97, s97, s98                ; f_base
    v_add_u32 v1, s97, v{VTT}
    v_lshlrev_b32 v1, 1, v1''')
    xnext()
    a.vm(f'buffer_load_ushort v{HO+12}, v1, {S(SB)}, 0 offen', 'b1')
    a.vm(f'buffer_load_ushort v{HO+13}, v1, {S(SB)}, 0 offen offset:512', 'b1')
    a(f's_mov_b32 s{SB}, s0\ns_and_b32 s{SB+1}, s1, 0xffff\ns_mov_b32 s{SB+2}, 1152\ns_lshl_b32 s98, s{sWV}, 8\ns_add_u32 m0, s98, {B2_LDS}\nv_lshlrev_b32 v1, 2, v{VTT}')
    a.vm(f'buffer_load_dword v1, {S(SB)}, 0 offen lds', 'b1')
    a.vm(f'buffer_load_dword v1, {S(SB)}, 0 offen offset:1024 lds', 'b1')
    a(f'''v_lshlrev_b32 v{HO+14}, 2, v{VTT}
    v_add_u32 v{HO+14}, {BIAS_LDS}, v{HO+14}
    s_mul_i32 s{sHS}, s{sB}, 288
    s_lshr_b32 s98, s97, 4
    s_add_u32 s{sHS}, s{sHS}, s98
    s_lshl_b32 s{sHS}, s{sHS}, 10
    s_lshl_b32 s97, s97, 1''')
    for g in range(9): a(f's_mul_i32 s{sO1+g}, s{sO2+g}, {64*9216}\ns_add_u32 s{sO1+g}, s{sO1+g}, s97')
    a(f's_mul_i32 s{sPS}, s{sNON}, 73728')
    a(f'''v_add_u32 v{VTB}, s{sW2K}, v{VL16}
    v_mov_b32 v{VTB+1}, 0
    v_lshl_add_u64 {vr(VTB,2)}, s[100:101], 0, {vr(VTB,2)}
    s_mov_b32 s{sX0+1}, 0
    s_lshl_b32 s{sFLG}, s{sB}, 4
    s_add_u32 s{sFLG}, s{sFLG}, s{sC}
    s_lshl_b32 s{sFLG}, s{sFLG}, 7
    s_add_u32 s{sFLG}, s{sFLG}, {FL_OFF}
    s_mov_b32 s{sP}, {Cfg.spin}
    s_mov_b32 s{sGC1}, {f2u(GC1):#x}
    v_mov_b32 v{VC0}, {f2u(GC0):#x}
    v_bfe_u32 v1, v{VLANE}, 3, 2            ; r
    v_lshrrev_b32 v3, 5, v{VLANE}           ; rho
    v_and_b32 v{VB1}, 2, v1
    v_lshlrev_b32 v{VB1}, 1, v{VB1}
    v_and_b32 v{VB2}, 7, v{VLANE}
    v_xor_b32 v{VB2}, v{VB2}, v{VB1}
    v_lshlrev_b32 v{VB2}, 4, v{VB2}
    v_lshl_add_u32 v1, v3, 3, v1            ; 8rho+r
    s_lshr_b32 s98, s{sWV}, 1
    s_lshl_b32 s98, s98, 5
    s_and_b32 s99, s{sWV}, 1
    s_add_u32 s98, s98, s99
    v_lshlrev_b32 v3, 1, v1
    v_add_u32 v3, s98, v3
    v_mul_u32_u24 v3, 9216, v3
    v_add_u32 v{VA1}, v3, v{VB2}
    v_add_u32 v{VB1}, {8*9216-1024}, v{VA1}
    s_lshl_b32 s98, s{sWV}, 4
    v_add_u32 v1, s98, v1
    v_mul_u32_u24 v1, 1152, v1
    v_add_u32 v{VA2}, v1, v{VB2}
    v_add_u32 v{VB2}, {4*1152-1024}, v{VA2}''')
    xnext()
    a(f'''v_lshrrev_b32 v1, 5, v{VLANE}
    v_lshlrev_b32 v{VBI}, 4, v1
    v_add_u32 v{VBI}, {BIAS_LDS}, v{VBI}
    v_bfe_u32 v3, v{VLANE}, 2, 2
    v_lshl_add_u32 v1, v1, 3, v3
    v_lshlrev_b32 v1, 7, v1
    v_and_b32 v3, 2, v3
    v_lshl_add_u32 v1, v3, 5, v1
    v_bfe_u32 v3, v{VLANE}, 4, 1
    v_lshl_add_u32 v1, v3, 5, v1
    v_and_b32 v3, 3, v{VLANE}
    v_lshl_add_u32 v{TA}, v3, 3, v1
    v_xor_b32 v{TA+1}, 64, v{TA}
    v_add_u32 v{TA+2}, 49152, v{TA}
    v_add_u32 v{TA+3}, 49152, v{TA+1}
    v_add_u32 v{TA+4}, 98304, v{TA}
    v_add_u32 v{TA+5}, 98304, v{TA+1}''')
    if Cfg.wt:
        a(f'''s_lshl_b32 s98, s{sWV}, 4
        s_lshl_b32 s99, s{sO2}, 6
        s_add_u32 s98, s98, s99
        v_add_u32 v1, s98, v{VLANE}
        v_subrev_u32 v3, 16, v{VLANE}
        v_lshlrev_b32 v3, 6, v3
        v_cmp_gt_u32 vcc, 16, v{VLANE}
        s_mul_i32 s99, s{sO2}, {64*9216}
        s_sub_u32 s99, s{sO1}, s99
        v_cndmask_b32 v1, v3, v1, vcc
        v_mul_u32_u24 v3, 9216, v1
        s_bitcmp1_b32 s{sROLE}, {R_ODD}
        s_cselect_b32 s98, 128, 0
        s_add_u32 s99, s99, s98
        s_bfm_b64 exec, 25, 0''')
        a.vm(f'buffer_load_dword a255, v3, {S(SW1)}, s99 offen')
        a('s_mov_b64 exec, -1')
    brole(a, R_DFT, 'L_notw', False)
    s0 = a.snap()
    if Cfg.wt:
        a(f'''v_lshlrev_b32 v{VPO}, 7, v1
        v_add_u32 v{VPO}, s{sPS}, v{VPO}
        v_mov_b32 v{VPO+1}, 0
        v_lshl_add_u64 {vr(VPO,2)}, s[100:101], 0, {vr(VPO,2)}
        s_bfm_b64 exec, 16, 0''')
        a.vm(f'global_load_dword a255, {vr(VPO,2)}, off')
        a('s_mov_b64 exec, -1')
    a('L_notw:'); a.merge(s0, a.snap())
    xnext()
    XA = HO
    a(f'''v_and_b32 v1, 15, v{VLANE}
    v_lshlrev_b32 v1, 7, v1
    v_bfe_u32 v3, v{VLANE}, 4, 1
    v_lshl_add_u32 v1, v3, 13, v1
    v_add_u32 v1, s{sW2K}, v1
    v_lshrrev_b32 v3, 5, v{VLANE}
    v_bfe_u32 v{XA}, v{VLANE}, 1, 3
    v_xor_b32 v3, v3, v{XA}
    v_lshl_add_u32 v{XA}, v3, 4, v1
    v_xor_b32 v{XA+1}, 32, v{XA}
    v_xor_b32 v{XA+2}, 64, v{XA}
    v_xor_b32 v{XA+3}, 96, v{XA}
    s_mov_b32 s{sT2}, 0x3f803f80''')
    smid_ids(a)
    a(f'''s_add_u32 s98, s96, s{sWV}
    s_cmp_eq_u32 s98, 4
    s_cselect_b32 s35, {1<<R_PATCH}, 0
    s_bitcmp1_b32 s{sROLE}, {R_UNIT}
    s_cselect_b32 s35, s35, 0
    s_or_b32 s{sROLE}, s{sROLE}, s35
    s_cmp_lt_u32 s98, 5
    s_cselect_b32 s35, 2, 0
    s_lshl_b32 s98, s98, 6
    s_add_u32 s35, s35, s98
    s_mul_i32 s99, s99, 578
    s_add_u32 s35, s35, s99
    v_lshrrev_b32 v3, 2, v{VLANE}
    v_mul_u32_u24 v3, 18496, v3
    v_and_b32 v1, 3, v{VLANE}
    v_lshl_add_u32 v3, v1, 4, v3''')
    for i in range(8): a(f'v_mov_b32 v{TMP+i}, 0')
    def stats(L):
        for q in range(4):
            a.need(('x', 4*L+q))
            for i in range(4):
                r = XF + 16*L + 4*q + i
                a(f'v_dot2c_f32_bf16 v{TMP+i}, s{sT2}, v{r}\nv_dot2c_f32_bf16 v{TMP+4+i}, v{r}, v{r}')
    def first_piece(q):
        if q < 9: return dma_alt(R_ODD, dma_alt(R_DFT, dma_tab(q, sreg=sO2+q), None), w1p(q))
        return w1p(q)
    stamp(a, 'w0')
    if Cfg.warm: a('; WARM 0')
    a('s_branch L_main\n.p2align 12\nL_main:')
    npc0 = 0
    for L in range(10):
        if L < 9:
            stamp(a, f'xa{L}')
            a.vneed(('x', L))
            stamp(a, f'xb{L}')
            if L in (4, 8):
                for q in range(4): a(f'v_add_u32 v{XA+q}, 0x10000, v{XA+q}')
            for q in range(4): a.lds(f'ds_read_b128 {vr(XF+16*L+4*q)}, v{XA+q} offset:{16384*(L%4)}', ('x', 4*L+q))
        if L == 9:
            stamp(a, 1)
            a.vneed('b1')
            a(f'v_lshlrev_b32 v{HO+12}, 16, v{HO+12}\nv_lshlrev_b32 v{HO+13}, 16, v{HO+13}')
            a.lds(f'ds_write_b32 v{HO+14}, v{HO+12}', 'bw'); a.lds(f'ds_write_b32 v{HO+14}, v{HO+13} offset:1024', 'bw')
        if nx[0] < 9: xline(nx[0]); nx[0] += 1
        elif L >= 10 - Cfg.fp:
            for q in (npc0, npc0+1):
                for f in first_piece(q): f(a)
            npc0 += 2
        if L: stats(L-1)
    rest = [FN(f) for q in range(npc0, 12) for f in first_piece(q)]
    rest += [VM(f'buffer_load_dword v{VFL}, off, {S(SDBG)}, 0 sc1', 'non')]
    T = TMP
    a(f'''s_nop 2
    v_add_f32 v{T}, v{T}, v{T+1}
    v_add_f32 v{T+2}, v{T+2}, v{T+3}
    v_add_f32 v{T+4}, v{T+4}, v{T+5}
    v_add_f32 v{T+6}, v{T+6}, v{T+7}
    v_add_f32 v{T}, v{T}, v{T+2}
    v_add_f32 v{T+4}, v{T+4}, v{T+6}
    v_mov_b32 v{T+1}, v{T}
    v_mov_b32 v{T+5}, v{T+4}
    s_nop 1
    v_permlane32_swap_b32 v{T}, v{T+1}
    v_permlane32_swap_b32 v{T+4}, v{T+5}
    s_nop 0
    v_add_f32 v{T}, v{T}, v{T+1}
    v_add_f32 v{T+4}, v{T+4}, v{T+5}
    v_mul_f32 v{T}, {f2u(1/576):#x}, v{T}
    v_mul_f32 v{T+4}, {f2u(1/576):#x}, v{T+4}
    v_fma_f32 v{T+4}, -v{T}, v{T}, v{T+4}
    v_max_f32 v{T+4}, 0, v{T+4}
    v_cvt_pk_bf16_f32 v{T}, v{T}, v{T+4}
    v_and_b32 v{T+4}, 0xffff0000, v{T}
    v_lshlrev_b32 v{T}, 16, v{T}
    v_add_f32 v{T+4}, {f2u(1e-5):#x}, v{T+4}
    v_cvt_pk_bf16_f32 v{T+4}, v{T+4}, v{T+4}
    v_and_b32 v{T+4}, 0xffff0000, v{T+4}
    v_sqrt_f32 v{T+4}, v{T+4}
    s_nop 0
    v_cvt_pk_bf16_f32 v{T+4}, v{T+4}, v{T+4}
    v_and_b32 v{T+4}, 0xffff0000, v{T+4}
    v_rcp_f32 v{T+4}, v{T+4}
    s_nop 0
    v_cvt_pk_bf16_f32 v{T+4}, v{T+4}, v{T+4}
    v_and_b32 v{T+5}, 0xffff0000, v{T+4}
    v_lshrrev_b32 v{T+4}, 16, v{T+4}
    v_mul_f32 v{T}, v{T}, v{T+5}
    v_sub_f32 v{T}, 0, v{T}''')
    if Cfg.tn < 216:
        tall = w2touch(0, Cfg.tn*24, -(-(5184 - Cfg.tn*24)//128))
        rest.append(FN(tall))
    def w1all(a):
        cx = 32//Cfg.rx; npair = cx//2; nsub = npair//2 if npair > 1 else 1
        a(f'''s_lshr_b32 s98, s2, 3
        s_lshl_b32 s98, s98, 2
        s_add_u32 s98, s98, s{sWV}
        s_lshr_b32 s99, s98, 1
        s_mul_i32 s99, s99, {9*9216}
        s_and_b32 s98, s98, 1
        s_mul_i32 s98, s98, 1152
        s_add_u32 s99, s99, s98
        s_and_b32 s98, s{sC}, {16-cx}
        s_mul_i32 s98, s98, 576
        s_add_u32 s99, s99, s98
        v_mul_u32_u24 v1, 43, v{VLANE}
        v_lshrrev_b32 v1, 8, v1
        v_mul_u32_u24 v{VPO}, 6, v1
        v_sub_u32 v{VPO}, v{VLANE}, v{VPO}
        v_add_u32 v{VPO+1}, 1, v{VPO}
        v_lshrrev_b32 v{VPO+1}, 2, v{VPO+1}
        v_add3_u32 v{VPO}, v{VPO}, v{VPO+1}, 2
        v_mul_u32_u24 v1, 9216, v1
        v_lshl_add_u32 v1, v{VPO}, 7, v1
        s_bfm_b64 exec, 54, 0''')
        for r in range(nsub): a.vm(f'buffer_load_dword a255, v1, {S(SW1)}, s99 offen offset:{2304*r}')
        a('s_mov_b64 exec, -1')
    if Cfg.tw1: rest.insert(len(rest) - (1 if Cfg.tn < 216 else 0), FN(w1all))
    def wall(a):
        a(f'''s_lshl_b32 s69, s2, 1
        s_lshr_b32 s3, s{sWV}, 1
        s_add_u32 s69, s69, s3
        s_min_u32 s69, s69, 486
        s_mul_i32 s69, s69, {19*128}
        v_lshlrev_b32 v{VTT}, 7, v{VLANE}
        s_bitcmp1_b32 s{sWV}, 0
        s_cselect_b64 exec, 0x7ffff, 0''')
        a(f'buffer_load_dword a255, v{VTT}, {S(SWR)}, s69 offen')
        a('s_cselect_b64 exec, 0, 0x7ffff')
        a.vm(f'buffer_load_dword a255, v{VTT}, {S(SWI)}, s69 offen')
        a('s_mov_b64 exec, -1')
    rest.insert(len(rest) - (1 if Cfg.tn < 216 else 0), FN(wall))
    a.need('bw')
    if Cfg.normin:
        emit(a, rest); emit(a, norm_ops(0))
    else:
        stamp(a, 'n0')
        a('.p2align 3')
        rest = [FN(lambda a, f=f: (f(a), a('.p2align 3'))) for _, f in rest]
        nt = 1 + (1 if Cfg.tn < 216 else 0) + (1 if Cfg.tw1 else 0)
        tch = rest[-nt:]; rest = rest[:-nt]
        global BATCH2
        BATCH2 = []
        if Cfg.b2: BATCH2 = [wall] + ([tall] if Cfg.tn < 216 else []); tch = tch[:1]
        N = [o for u in range(18) for o in norm_ops(u)]
        k1 = len(N)*Cfg.t1//100; k2 = len(N)*Cfg.t2//100; ne = 2*Cfg.ne
        emit(a, mix(N[:k1], rest[:ne] + tch) + N[k1:k2] + mix(N[k2:], rest[ne:]))
def late_setup():
    a = E()
    a(f'''s_lshr_b32 s96, s{sC}, 1
    s_and_b32 s98, s{sC}, 1
    s_mul_i32 s{sO2}, s96, {576*1152}
    s_lshl_b32 s99, s98, 9
    s_add_u32 s{sO2}, s{sO2}, s99
    s_mul_i32 s99, s98, {256*1152}''')
    for g in range(1, 9):
        a(f's_add_u32 s{sO2+g}, s{sO2}, {64*1152*g}\ns_{"add" if g < 5 else "sub"}_u32 s{sO2+g}, s{sO2+g}, s99')
    a(f'''s_mul_i32 s{sPS}, s{sB}, 18
    s_lshl_b32 s98, s98, 3
    s_add_u32 s{sPS}, s{sPS}, s98
    s_lshl_b32 s{sPS}, s{sPS}, 3
    s_add_u32 s{sPS}, s{sPS}, s96
    s_lshl_b32 s{sPS}, s{sPS}, 11
    s_add_u32 s{sPS}, s{sPS}, {PART_OFF}
    s_and_b32 s98, s{sC}, 1
    s_mul_i32 s32, s{sB}, 288
    s_mul_i32 s99, s96, 36
    s_add_u32 s32, s32, s99
    s_lshl_b32 s32, s32, 10
    s_lshl_b32 s99, s98, 14
    s_sub_u32 s33, s32, s99
    s_xor_b32 s34, s{sFLG}, 128''')
    return sops('\n'.join(a.l))
def w2touch(other, first, per, sub=0):
    def f(a):
        a(f"""s_lshr_b32 s3, s2, 3
        s_lshl_b32 s3, s3, 2
        s_add_u32 s3, s3, s{sWV}
        s_mul_i32 s3, s3, {per*128}
        s_lshr_b32 s96, s{sI}, 3
        s_xor_b32 s96, s96, {other}
        s_mul_i32 s96, s96, {5184*128}
        s_add_u32 s3, s3, s96
        s_lshr_b32 s96, s{sC}, 2
        s_mul_i32 s96, s96, {2*5184*128}
        s_add_u32 s3, s3, s96
        s_add_u32 s3, s3, {first*128}
        v_lshlrev_b32 v{VTT}, 7, v{VLANE}
        s_bfm_b64 exec, {per}, 0""")
        a.vm(f'buffer_load_dword a255, v{VTT}, {S(SW2)}, s3 offen')
        a('s_mov_b64 exec, -1')
    return f
def tabtouch(a):
    a(f"""s_lshr_b32 s96, s2, 3
    s_lshl_b32 s96, s96, 2
    s_add_u32 s96, s96, s{sWV}
    s_min_u32 s96, s96, 125
    s_mul_i32 s96, s96, {22*128}
    s_add_u32 s96, s96, {TABF_SZ}
    s_sub_u32 s96, s96, s{sW2K}
    v_mul_u32_u24 v{VTT}, 112, v{VLANE}
    v_mov_b32 v{VTT+1}, 0
    v_lshl_add_u64 {vr(VTT,2)}, {vr(VTT,2)}, 0, {vr(VTB,2)}
    v_lshl_add_u64 {vr(VTT,2)}, s[96:97], 0, {vr(VTT,2)}
    s_bfm_b64 exec, 22, 0""")
    a.vm(f'global_load_dword a255, {vr(VTT,2)}, off')
    a('s_mov_b64 exec, -1')
def smid_ids(a):
    a(f'''s_bfe_u32 s96, s{sROLE}, 0x30008
    s_cmp_ge_u32 s96, 3
    s_cselect_b32 s98, 1, 0
    s_lshl_b32 s99, s{sI}, 1
    s_add_u32 s99, s99, s98
    s_mul_i32 s98, s98, 3
    s_sub_u32 s96, s96, s98
    s_mul_i32 s96, s96, 3''')
WA = 216
PSR = 20
def wload(k):
    def f(a):
        a(f's_add_u32 s3, s35, {16*18496*(k//2)}')
        a.vm(f'buffer_load_dwordx4 {ar(WA+4*k)}, v3, {S(SWI if k % 2 else SWR)}, s3 offen', 'wl')
    return f
def wpatch(a):
    a(f'v_mul_u32_u24 v1, 18496, v{VLANE}')
    a.vm(f'buffer_load_ushort a253, v1, {S(SWR)}, s35 offen offset:{576-258}', 'wl')
    a.vm(f'buffer_load_ushort a254, v1, {S(SWI)}, s35 offen offset:{576-258}', 'wl')

def touch_ops():
    o = [V(f"""s_bfe_u32 s98, s{sROLE}, 0x30008
    s_sub_u32 s98, s98, 5
    s_lshl_b32 s98, s98, 6
    s_add_u32 s98, s98, s{sB}
    s_bfe_u32 s99, s{sROLE}, 0x30008
    s_sub_u32 s99, s99, 5
    s_bfe_u32 s96, s{sC}, 0x10001
    s_mul_i32 s96, s96, 3
    s_add_u32 s99, s99, s96
    s_lshl_b32 s99, s99, 2
    s_add_u32 s99, s99, s{sWV}
    s_mul_i32 s99, s99, {Cfg.tn*128}
    s_lshr_b32 s96, s{sI}, 3
    s_mul_i32 s96, s96, {5184*128}
    s_add_u32 s99, s99, s96
    s_lshr_b32 s96, s{sC}, 2
    s_mul_i32 s96, s96, {2*5184*128}
    s_add_u32 s99, s99, s96
    v_lshlrev_b32 v1, 7, v{VLANE}""")]
    for k in range(Cfg.tn//54):
        def f(a, k=k):
            a('s_bfm_b64 exec, 54, 0')
            a.vm(f'buffer_load_dword a255, v1, {S(SW2)}, s99 offen')
            a(f's_mov_b64 exec, -1\ns_add_u32 s99, s99, {54*128}')
        o.append(FN(f))
    def g(a):
        a(f"""s_mul_i32 s99, s98, {15*128}
        s_add_u32 s99, s99, {TABF_SZ}
        v_add_u32 v{VTT}, s99, v1
        v_min_u32 v{VTT}, {TABF_SZ+TABG_SZ+TAB64_SZ-4}, v{VTT}
        v_mov_b32 v{VTT+1}, 0
        v_lshl_add_u64 {vr(VTT,2)}, s[100:101], 0, {vr(VTT,2)}
        s_bfm_b64 exec, 15, 0""")
        a.vm(f'global_load_dword a255, {vr(VTT,2)}, off')
        a('s_mov_b64 exec, -1')
    return o + [FN(g)]

def getnonce(a):
    lc = a.label('NC'); ls = a.label('NS'); lk = a.label('NK')
    a.vneed('non')
    a(f'{lc}:\nv_readfirstlane_b32 s{sNON}, v{VFL}\ns_nop 3\ns_cmp_eq_u32 s{sNON}, 0\ns_cbranch_scc1 {ls}\n{lk}:')
    a.ool += [f'{ls}:', f' s_sub_u32 s{sP}, s{sP}, 1', f' s_cbranch_scc1 {ls}_x', f' s_sleep {Cfg.slp}', f' buffer_load_dword v{VFL}, off, {S(SDBG)}, 0 sc1', ' s_waitcnt vmcnt(0)', f' s_branch {lc}',
              f'{ls}_x:', f' s_mov_b32 s{sP}, 0', f' s_branch {lk}']

def xpose_setup(a, vw, vrd, vg, base_imm, rowstride, flip=None):
    a(f"""v_and_b32 v{vw}, 15, v{VLANE}
    v_lshlrev_b32 v{vw}, 7, v{vw}
    v_bfe_u32 v{vrd}, v{VLANE}, 4, 1
    v_lshl_add_u32 v{vw}, v{vrd}, 13, v{vw}
    v_lshrrev_b32 v{vrd}, 5, v{VLANE}
    v_lshlrev_b32 v{vrd}, 2, v{vrd}
    v_and_b32 v{vg}, 7, v{VLANE}
    v_xor_b32 v{vrd}, v{vrd}, v{vg}
    v_lshl_add_u32 v{vw}, v{vrd}, 4, v{vw}
    s_add_u32 s98, s{sW2K}, {base_imm}
    v_add_u32 v{vw}, s98, v{vw}
    v_lshrrev_b32 v{vrd}, 3, v{VLANE}
    v_mul_u32_u24 v{VTT}, {rowstride}, v{vrd}
    v_lshl_add_u32 v{vg}, v{vg}, 4, v{VTT}
    v_lshlrev_b32 v{vrd}, 4, v{vrd}
    v_xor_b32 v{vrd}, v{vrd}, v{VL16}
    v_add_u32 v{vrd}, s98, v{vrd}""")
def xpose_w(src, q, vw, flip=0):
    x = (16*q) ^ flip
    if x == 0: return [LD(f'ds_write_b128 v{vw}, {vr(src)}', 'xw')]
    return [V(f'v_xor_b32 v{VTT}, {x}, v{vw}'), LD(f'ds_write_b128 v{VTT}, {vr(src)}', 'xw')]
def xpose_rs(dst, vrd, vg, sreg, rowstride, tag, u=0):
    o = [LD(f'ds_read_b128 {vr(dst+4*q)}, v{vrd} offset:{8192*(q//2) + 1024*(q%2)}', ('xr', u, q)) for q in range(4)]
    for q in range(4):
        o.append(FN(lambda a, q=q: a.need(('xr', u, q))))
        o.append(VM(f'buffer_store_dwordx4 {vr(dst+4*q)}, v{vg}, {S(SWS)}, s{sreg} offen sc1', tag))
        o.append(V(f's_add_u32 s{sreg}, s{sreg}, {8*rowstride}'))
    return o
OA = 200
XP_LDS = BIAS_LDS + 2048
def dft_fill():
    Ea = ACC[0]; T = TMP; U = Ea + 16; RS = 9*64*128
    su = f"""v_and_b32 v1, 31, v{VLANE}
    v_lshlrev_b32 v1, 6, v1
    v_lshrrev_b32 v3, 5, v{VLANE}
    v_lshlrev_b32 v3, 1, v3
    v_bfe_u32 v{VPO}, v{VLANE}, 1, 2
    v_xor_b32 v3, v3, v{VPO}
    v_lshl_add_u32 v1, v3, 4, v1
    s_add_u32 s98, s{sW2K}, {XP_LDS}
    v_add_u32 v1, s98, v1
    v_bfe_u32 v3, v{VLANE}, 3, 2
    v_lshlrev_b32 v3, 4, v3
    v_xor_b32 v3, v3, v{VL16}
    v_add_u32 v3, s98, v3
    v_lshrrev_b32 v{VPO}, 2, v{VLANE}
    v_mul_u32_u24 v{VPO}, {RS}, v{VPO}
    v_and_b32 v{VTT}, 3, v{VLANE}
    v_lshl_add_u32 v{VPO}, v{VTT}, 4, v{VPO}
    s_bfe_u32 s96, s{sROLE}, 0x30008
    s_lshl_b32 s98, s96, 6
    s_add_u32 s98, s98, s{sB}
    s_lshl_b32 s35, s98, 3
    s_add_u32 s35, s35, {VFL_OFF}
    s_lshl_b32 s98, s98, 7
    s_add_u32 s98, s98, {V_OFF}
    s_sub_u32 s99, 8, s96
    s_lshl_b32 s99, s99, 6
    s_add_u32 s99, s99, s{sB}
    s_lshl_b32 s99, s99, 7
    s_add_u32 s99, s99, {V_OFF}
"""
    o = [V(x) for x in su.split('\n') if x.strip()] + [V(f's_cmp_eq_u32 s96, 4\ns_cselect_b32 s96, {DUM_OFF - V_OFF}, 0\ns_add_u32 s99, s99, s96')]
    su = o; o = [V(f'v_add_u32 v{VPO+1}, {16*RS}, v{VPO}')]
    for i in range(16):
        e = Ea + 2*i
        o += [V(f'v_accvgpr_read_b32 v{T+4}, a{OA+2*i}'), V(f'v_accvgpr_read_b32 v{T+5}, a{OA+2*i+1}'), V(f'v_add_f32 v{T}, v{e}, v{T+4}'), V(f'v_add_f32 v{T+1}, v{e+1}, v{T+5}')]
        if i < 8: o += [V(f'v_sub_f32 v{T+2}, v{e}, v{T+4}'), V(f'v_sub_f32 v{T+3}, v{e+1}, v{T+5}')]
        else:     o += [V(f'v_sub_f32 v{T+2}, v{T+4}, v{e}'), V(f'v_sub_f32 v{T+3}, v{T+5}, v{e+1}')]
        o += [V(f'v_cvt_pk_bf16_f32 v{HO+i}, v{T}, v{T+1}'), V(f'v_cvt_pk_bf16_f32 v{Ea+i}, v{T+2}, v{T+3}')]
    segs = [o]
    u = vr(U, 16)
    for m, X in enumerate((HO, Ea)):
        for p in range(2):
            A1, A2 = (X, X+8) if p == 0 else (X+8, X)
            B2 = TW+8 if p == 0 else TW+16
            mf = [V(f's_nop 1\n{M} {u}, {vr(A1)}, {ar(TW)}, 0'), V(f'{M} {u}, {vr(A1+4)}, {ar(TW+4)}, {u}'), V(f'{M} {u}, {vr(A2)}, {ar(B2)}, {u}'), V(f'{M} {u}, {vr(A2+4)}, {ar(B2+4)}, {u}')]
            pk = []
            for q in range(2):
                for i in range(4):
                    k = 4*q + i
                    pk.append(V(f'v_cvt_pk_bf16_f32 v{T+k}, v{U+2*k}, v{U+2*k+1}' if m == 0 else f'v_cvt_pk_bf16_f32 v{T+k}, v{U+15-2*k}, v{U+14-2*k}'))
                x = 16*q ^ 32*m
                if x: pk += [V(f'v_xor_b32 v{VTT}, {x}, v1'), LD(f'ds_write_b128 v{VTT}, {vr(T+4*q)}')]
                else: pk += [LD(f'ds_write_b128 v1, {vr(T+4*q)}')]
            d = OA + 8*(2*m+p)
            pk += [LD(f'ds_read_b128 {ar(d+4*i)}, v3 offset:{1024*i}', ('xr', m, p)) for i in range(2)]
            st = [FN(lambda a, m=m, p=p: a.need(('xr', m, p)))] + [VM(f'buffer_store_dwordx4 {ar(d+4*i)}, v{VPO+i}, {S(SWS)}, s{98+m} offen offset:{64*p} sc1', 'V') for i in range(2)]
            segs += [mf, pk, st]
    f = [(segs[0], 3, 33)]; st = []
    for k in range(4):
        g = 33 + 8*k
        f += [(segs[1+3*k], g, g+2), (segs[2+3*k], g+5, g+8)]
        x = segs[3+3*k]
        st += [FN(lambda a, x=x: emit(a, x[:2])), x[2]]
    return su, f, st

JA = [8, 40]; JC = [72, 104]
def hload(g):
    return [SVM(f's_add_u32 s3, s{33 if g else 32}, {4096*g}', f'buffer_load_dwordx4 {ar(HF+16*g+4*k)}, v{VL16}, {S(SWS)}, s3 offen offset:{1024*k} sc1', ('ph', g)) for k in range(4)]

SZ=[72,88,136,152]; SVF=8; SWP=40; SY0=192; SPA=[72,88,168,24]
def TF(i): return ar(176+4*i) if i < 20 else vr(200+4*(i-20))
def smid_pre():
    su = f"""v_lshrrev_b32 v3, 5, v{VLANE}
    v_bfe_u32 v1, v{VLANE}, 2, 2
    v_lshl_add_u32 v3, v3, 2, v1
    v_lshlrev_b32 v{VA1}, 7, v3
    v_lshlrev_b32 v{VB1}, 6, v3
    v_bfe_u32 v1, v{VLANE}, 4, 1
    v_lshlrev_b32 v1, 5, v1
    v_and_b32 v3, 3, v{VLANE}
    v_lshl_add_u32 v1, v3, 3, v1
    s_min_u32 s98, s{sWV}, 2
    s_lshl_b32 s98, s98, 13
    s_add_u32 s99, s98, {slot(54)}
    v_add3_u32 v{VA1}, v{VA1}, v1, s99
    s_add_u32 s99, s98, {slot(57)}
    v_add3_u32 v{VB1}, v{VB1}, v1, s99
    v_add_u32 v1, s99, v{VL16}
    v_add_u32 v3, {slot(51)}, v{VL16}"""
    w = [FN(lambda a: a.vneed('wl'))] + [(3, LD(f'ds_write_b128 v1, {ar(WA+4*k)} offset:{1024*k}')[1]) for k in range(8)]
    def patch(a):
        a(f"""v_lshrrev_b32 v{VTT}, 4, v{VLANE}
        v_lshlrev_b32 v{VTT}, 11, v{VTT}
        v_and_b32 v{VTT+1}, 15, v{VLANE}
        v_lshl_add_u32 v{VTT}, v{VTT+1}, 6, v{VTT}
        v_add_u32 v{VTT}, {slot(57) + 8192}, v{VTT}""")
        a.lds(f'ds_write_b16 v{VTT}, a253 offset:62'); a.lds(f'ds_write_b16 v{VTT}, a254 offset:1086')
    w.append(FN(only(R_PATCH, patch)))
    for p in range(2):
        for mt in range(2):
            for q in range(4):
                w.append(LD(f'ds_read_b64_tr_b16 {vr(SWP+16*p+8*mt+2*q,2)}, v{VB1} offset:{4096*mt+2048*(q//2)+512*(q%2)+1024*p}', 'sm'))
    r = []
    for ks in range(4):
        for p in range(2):
            for rho in range(2): r.append(LD(f'ds_read_b64_tr_b16 {vr(SVF+16*p+4*ks+2*rho,2)}, v{VA1} offset:{2048*ks+1024*rho+64*p}', 'sm'))
        for i in (ks, 8+ks, 16+ks): r.append(LD(f'ds_read_b128 {TF(i)}, v3 offset:{1024*i}', 'sm'))
    late = [LD(f'ds_read_b128 {TF(i)}, v3 offset:{1024*i}', 'sm2') for ks in range(4) for i in (4+ks, 12+ks, 20+ks)]
    return sops(su), w, r, late
def smid_parts():
    Z=SZ; VF=SVF; WP=SWP; Y=SVF; PA=SPA; T=TMP
    C=lambda t,k: TF(4*t+k); Sn=lambda t,k: TF(8+4*t+k); N=lambda t,k: TF(16+4*t+k)
    def fwd(mt):
        zr=vr(Z[2*mt],16); zi=vr(Z[2*mt+1],16); o=[]
        for ks in range(4):
            o += [f'{M} {zr}, {C(mt,ks)}, {vr(VF+4*ks)}, {"0" if ks==0 else zr}', f'{M} {zi}, {C(mt,ks)}, {vr(VF+16+4*ks)}, {"0" if ks==0 else zi}',
                  f'{M} {zr}, {Sn(mt,ks)}, {vr(VF+16+4*ks)}, {zr}', f'{M} {zi}, {N(mt,ks)}, {vr(VF+4*ks)}, {zi}']
        return o
    def ybase(mt, p): return (SY0 - 8*p) if mt == 0 else (Y + 8*p)
    def cmul(mt):
        o = []
        for d in range(8):
            wr = WP + 8*mt + d; wi = WP + 16 + 8*mt + d; zr = Z[2*mt] + 2*d; zi = Z[2*mt+1] + 2*d
            o += [f'v_lshlrev_b32 v{T}, 16, v{wr}', f'v_and_b32 v{T+1}, 0xffff0000, v{wr}', f'v_lshlrev_b32 v{T+2}, 16, v{wi}', f'v_and_b32 v{T+3}, 0xffff0000, v{wi}']
            for i in range(2): o += [f'v_mul_f32 v{T+4+i}, v{zi+i}, v{T+2+i}', f'v_mul_f32 v{T+6+i}, v{zi+i}, v{T+i}']
            for i in range(2): o += [f'v_fma_f32 v{T+4+i}, v{zr+i}, v{T+i}, -v{T+4+i}', f'v_fma_f32 v{T+6+i}, v{zr+i}, v{T+2+i}, v{T+6+i}']
            o += [f'v_cvt_pk_bf16_f32 v{ybase(mt,0)+d}, v{T+4}, v{T+5}', f'v_cvt_pk_bf16_f32 v{ybase(mt,1)+d}, v{T+6}, v{T+7}']
        return [V(x) for x in o]
    def inv(mt):
        o = []
        for nt in range(2):
            pr=vr(PA[2*nt],16); pi=vr(PA[2*nt+1],16)
            for t in range(2):
                ks = 2*mt + t; yr = vr(ybase(mt,0)+4*t); yi = vr(ybase(mt,1)+4*t)
                o += [f'{M} {pr}, {yr}, {C(nt,ks)}, {"0" if ks==0 else pr}', f'{M} {pi}, {yi}, {C(nt,ks)}, {"0" if ks==0 else pi}',
                      f'{M} {pr}, {yi}, {N(nt,ks)}, {pr}', f'{M} {pi}, {yr}, {Sn(nt,ks)}, {pi}']
        return o
    return fwd, cmul, inv
def part_inplace(acc, lam):
    c = []; st = []
    for q in range(4):
        c += [V(f'v_cvt_pk_bf16_f32 v{acc+8*q+i}, v{acc+8*q+2*i}, v{acc+8*q+2*i+1}') for i in range(4)]
        st.append(SVM(f's_add_u32 s3, s{sPS}, {16384*(2*lam + q//2)}', f'buffer_store_dwordx4 {vr(acc+8*q)}, v{VL16}, {S(SWS)}, s3 offen offset:{1024*(q%2)} sc1', ('p', lam)))
    return c, st

def kernel():
    a = E()
    prologue(a)
    g1 = lambda acc: (lambda p, kk, h: (acc + 16*h, vr(XF + 16*p + 4*kk), False))
    END = 71
    stamp(a, 2)
    brole(a, R_ODD, 'L_odd')
    s_pro = a.snap()
    a.vneed(('d',0),('d',1),('d',2)); a('s_barrier')
    bias_reads(a, ACC[0], 0); first_reads(a, 'tr', 0)
    run(a, 0, 9, 'tr', g1(ACC[0]), [(late_setup(), 1, 30), (bias_ops(ACC[1], 1), 40, 66)], pause=(0, Cfg.pz1), events={71: BATCH2})
    stamp(a, 3)
    run(a, 9, 9, 'tr', g1(ACC[1]), [(gelu_ops(ACC[0], 0, 2, Cfg.sd), 3, END)], events={2: [getnonce]}, pause=(0, Cfg.pz2))
    a('s_branch L_s3'); s_even = a.snap()
    a('L_odd:'); a.restore(s_pro)
    brole(a, R_DFT, 'L_dft')
    emit(a, late_setup() + [FN(f) for f in BATCH2] + touch_ops())
    for q in range(12, 21):
        for f in plan(q): f(a)
    a.vneed(('d',9),('d',10),('d',11)); a('s_barrier')
    first_reads(a, 'tr', 9)
    stamp(a, 3)
    bias_reads(a, ACC[1], 1)
    run(a, 9, 9, 'tr', g1(ACC[1]), [(bias_ops(ACC[0], 2), 40, 66)], events={2: [getnonce]})
    a('s_branch L_s3'); s_nodft = a.snap()
    a('L_dft:'); a.restore(s_pro)
    a(f'v_mov_b32 v{VPO}, v{VL16}\nv_add_u32 v{VPO+1}, 49152, v{VL16}')
    a.vneed(('d',0),('d',1),('d',2)); a('s_barrier')
    first_reads(a, 'dft', 0)
    run(a, 0, 9, 'dft', lambda p, kk, h: ((ACC[0] + 16*h) if kk % 2 == 0 else -(OA + 16*h), vr(XF + 16*p + 4*kk), p == 0 and kk < 2),
        [(late_setup(), 1, 34), (twiddle_ops(TW, TMP, 'fwd', sB), 2, 60), (dft_fill()[0], 48, 66), (bias_ops(ACC[1], 1), 56, 70)], pause=(0, Cfg.pz1), events={71: BATCH2})
    stamp(a, 3)
    _, df, vst = dft_fill(); vlate = vst[3:]
    run(a, 9, 9, 'tr', g1(ACC[1]), df + [(vst[:3], 42, 70), (bias_ops(ACC[0], 2), 65, 70)], events={2: [getnonce]}, pause=(0, Cfg.pz2))
    a('L_s3:'); a.merge(s_even, s_nodft, a.snap())
    stamp(a, 4)
    pi = spoll_i; pc = spoll_c
    h0 = only_ops(R_ODD, hload(0), 1)
    FG, PG, CG = Cfg.fg, Cfg.pg, Cfg.cg
    l2a = [w2touch(1, 0, 21)] if Cfg.l2 else []; l2b = [w2touch(1, 21*128, 20)] if Cfg.l2 else []; l2c = [tabtouch] if Cfg.l2 else []
    run(a, 18, 9, 'tr', g1(ACC[0]), [(gelu_ops(ACC[1], 1, 3), 3, END), ([FN(only(R_UNIT, wload(k))) for k in range(4)], 6, 64), (only_ops(R_DFT, vlate, 1), 2, 44)],
        events={FG: [lambda a: setflag(a, 1, ('h',0))], PG: [only(R_ODD, pi)], 40: l2a, 66: l2b})
    g2 = lambda acc: (lambda p, kk, h: (acc + 16*h, ar(HF + 16*GORD[p] + 4*kk), p == 0 and kk == 0))
    tabg = f"""s_and_b32 s98, s{sC}, 3
    s_min_u32 s98, s98, 2
    s_mul_i32 s96, s98, 110592
    s_add_u32 s96, s96, {TABF_SZ}
    v_lshl_add_u64 {vr(VTB,2)}, s[96:97], 0, {vr(VTB,2)}"""
    sent8 = lambda a: (stamp(a, 7), sent_check(a, ('ph',8), [f'a{HF+128+4*k+3}' for k in range(4)], TMP, lines_of(hload(8)), ([f's_add_u32 s3, s33, {4096*8}'], 3)))
    sf = lambda st, *tags: (lambda a: (setflag if st < 5 else setflag2)(a, st, *tags))
    sf5 = lambda a: setflag(a, 5, ('h',4))
    clh = clear_ops(sHS, [16384, 18432], 'clr', -248)
    clp = clear_ops(sPS, [16384*6, 16384*7], 'clp')
    brole(a, R_ODD, 'L_s4o'); s0 = a.snap()
    def setup5():
        a = E()
        smid_ids(a)
        a(f"""s_mul_i32 s{sSV}, s99, 9
        s_add_u32 s{sSV}, s{sSV}, s96
        s_lshl_b32 s{sSV}, s{sSV}, 13
        s_add_u32 s{sSV}, s{sSV}, s{sW2K}
        s_add_u32 s{sSV}, s{sSV}, {V_OFF}
        s_add_u32 s98, s96, s{sWV}
        s_lshl_b32 s98, s98, 5
        s_add_u32 s98, s98, s99
        s_lshl_b32 s47, s98, 3
        s_add_u32 s47, s47, {PFL_OFF}
        s_lshl_b32 s48, s98, 7
        s_add_u32 s48, s48, {P_OFF}
        s_add_u32 s49, s48, {32*9*32*128}
        v_and_b32 v1, 15, v{VLANE}
        s_lshl_b32 s98, s{sWV}, 4
        v_add_u32 v1, s98, v1
        v_lshrrev_b32 v{VA1}, 4, v{VLANE}
        v_min_u32 v{VA1}, 2, v{VA1}
        v_add_u32 v{VA1}, s96, v{VA1}
        v_sub_u32 v{VB1}, 8, v{VA1}
        v_min_u32 v{VA1}, v{VA1}, v{VB1}
        v_lshl_add_u32 v1, v{VA1}, 6, v1
        v_lshlrev_b32 v1, 3, v1
        v_add_u32 v1, {VFL_OFF}, v1""")
        return sops('\n'.join(a.l).replace('s96', 's50').replace('s98', 's51').replace('s99', 's52'))
    run(a, 27, 9, 'tr', g1(ACC[1]), [(gelu_ops(ACC[0], 2, 4), 3, END), ([FN(only(R_UNIT, wload(k))) for k in range(4, 8)], 6, 64), (setup5(), 48, 70), (clh, 1, 68)] + ([(clear_ops(sPS, [16384*6], 'clp', -248)[4:], 10, 60)] if Cfg.ecl else []),
        events={4: [only(R_PATCH, wpatch)], FG: [sf(2, ('h',1))], 30: l2c}, role='E')
    stamp(a, 5)
    ssu, sw, sr, slate = smid_pre()
    run(a, 36, 9, 'tr', g1(ACC[0]), [(gelu_ops(ACC[1], 3), 3, END), (hload(5), Cfg.e2+1, 71), (ssu, 52, 70)] + ([(clear_ops(sPS, [16384*7], 'clp', -248)[4:], 4, 44)] if Cfg.ecl else []), role='E',
        events={26: [lambda a: a.vm(poll_ins(VA1, 1, '0'), 'vp')], Cfg.e2-22: [pi], Cfg.e2: [pc(2)], 47: [only(R_SMID, lambda a: poll_check(a, 'vp', VA1, 1, '0', 1))], FG: [sf(3, 'clr', ('h',2))]})
    stamp(a, 6)
    a('s_mov_b32 s11, s47')
    pre = lambda g: [lambda a: a.vneed(('ph', g))]
    ge = lambda o: (lambda p, kk, h: (JC[1] + 16*h, ar(HF + 16*GE[p+o] + 4*kk), p+o == 0 and kk == 0))
    dm6 = [FN(f) for q in range(63, 72) for f in plan(q, 'E')]
    h6 = [FN(pc(3))] + hload(6); h7 = [FN(pc(4))] + hload(7)
    def s6a(unit):
        run(a, 45, 6, 'tr', ge(0), ([(gelu_ops(ACC[0], 4), 3, Cfg.ge), (sw, Cfg.ge-14, Cfg.ge+2), (sr, Cfg.ge-2, 48)] if unit else [(gelu_ops(ACC[0], 4), 3, 44)]), nxt=None, role='E',
            events={Cfg.f4: [sf(4, ('h',3))], 30: [pi], ('pre',32): pre(5), ('bar',48): [('d', q) for q in range(51, 57)]})
    b2 = FN(lambda a: (a.vneed(('d',60),('d',61),('d',62)), a('s_barrier')))
    brole(a, R_UNIT, 'L_unit'); s1 = a.snap()
    s6a(False)
    a('s_barrier')
    cle = [] if Cfg.ecl else clp
    emit(a, mix(dm6[:12], h6) + [FN(pi), V('s_barrier')] + mix(dm6[12:], h7) + cle + [V(tabg), b2])
    first_reads(a, 'tr', 60)
    a('s_branch L_s7e'); s_nou = a.snap()
    a('L_unit:'); a.restore(s1)
    s6a(True)
    fwd, cmul, inv = smid_parts()
    stamp(a, 'm0')
    a.need('sm'); a('s_barrier')
    interleave(a, fwd(0), mix(slate, mix(dm6[:6], h6)))
    stamp(a, 'm1')
    a.need('sm2'); a('s_barrier')
    interleave(a, fwd(1)[:3], dm6[6:10] + [V('s_nop 1')])
    interleave(a, fwd(1)[3:], mix(cmul(0), dm6[10:12] + [FN(pi)] + dm6[12:14]))
    a('s_nop 1')
    stamp(a, 'm2')
    t = E(); xpose_setup(t, 1, 3, VA1, slot(57), 9*32*128); t(tabg)
    interleave(a, inv(0)[:3], [V(x) for x in t.l])
    interleave(a, inv(0)[3:], cmul(1)[:40] + mix(cmul(1)[40:], h7))
    stamp(a, 'm3')
    def pout(nt):
        o = []
        for p in range(2):
            for par in range(2):
                for i in range(4): o.append(V(f'v_cvt_pk_bf16_f32 v{SWP+16*nt+8*p+4*par+i}, v{SPA[2*nt+p]+4*i+par}, v{SPA[2*nt+p]+4*i+2+par}'))
                o += xpose_w(SWP+16*nt+8*p+4*par, 2*p+par, 1)
        x = xpose_rs(SWP+16*nt, 3, VA1, 48+nt, 9*32*128, 'P', nt)
        return o + x[:4], x[4:]
    a('s_nop 1')
    h8 = hload(8)
    interleave(a, inv(1)[:10], mix(h8, dm6[14:]) + cle[:4] + [b2])
    first_reads(a, 'tr', 60)
    interleave(a, inv(1)[10:], pout(0)[0])
    stamp(a, 'm5')
    s_u = a.snap()
    a('s_branch L_s7u')
    a('L_s7e:'); a.restore(s_nou); emit(a, h8)
    a('L_s7u:'); a.merge(s_u, a.snap())
    pst = only_ops(R_UNIT, pout(0)[1] + pout(1)[1], 3)
    run(a, 60, 3, 'tr', ge(6), [(only_ops(R_UNIT, pout(1)[0], 9), 3, 12), (pst[:5], 1, 23)], role='E',
        events={('pre',0): pre(6), ('pre',8): pre(7), 14: [sent8]})
    stamp(a, 8)
    run(a, 63, 9, 'tr', g2(JC[0]), [(pst[5:] + only_ops(R_UNIT, cle[4:], 1), 1, 14 if Cfg.ecl else 34), (part_ops(JC[1], 0), 20 if Cfg.ecl else 36, Cfg.p8), (fsetup(), 40, 66), ([V(f's_add_u32 s{sL9}, s{sPS}, {16384*2}')], 60, 62)],
        events={Cfg.pfg: [only(R_UNIT, lambda a: setflag(a, 1, 'P', off=11))]})
    a('s_branch L_s9'); s_e = a.snap()
    a('L_s4o:'); a.restore(s0)
    run(a, 27, 9, 'tr', g1(ACC[1]), [(gelu_ops(ACC[0], 2, 4), 3, END), (hload(0), CG+2, 64), (clh, 1, 68)],
        events={2: [only(R_DFT, lambda a: setflag(a, 1, 'V', off=35))], CG: [pc(1)], FG: [sf(2, ('h',1))], 30: l2c, PG: [pi]}, role='O')
    stamp(a, 5)
    run(a, 36, 9, 'tr', g1(ACC[0]), [(gelu_ops(ACC[1], 3), 3, END), (hload(5), CG+2, 64)], role='O',
        events={CG: [pc(2)], FG: [sf(3, 'clr', ('h',2))], PG: [pi]})
    stamp(a, 6)
    jj = lambda p, kk, h: (JA[p % 2] + 16*h, ar(HF + 16*GORD[p//2] + 4*kk), p < 2 and kk == 0)
    run(a, 45, 18, 'tr', jj, [(gelu_ops(ACC[0], 4), 3, 47), (hload(6), CG+2, 46), (hload(7), 49+Cfg.c4, 66+Cfg.c4), (hload(8), 48+Cfg.h8, 62+Cfg.h8), (sops(tabg), 50, 56), (clp, 112, 143)], role='O',
        events={CG: [pc(3)], Cfg.f4: [sf(4, ('h',3))], 46: [pi], 48+Cfg.c4: [pc(4)], ('pre',64): pre(0), ('pre',80): pre(5), ('pre',96): pre(6), ('pre',112): pre(7), 126: [sent8]})
    stamp(a, 8)
    run(a, 63, 9, 'tr', g2(JC[0]), [(part_ops(JA[0], 0) + part_ops(JA[1], 1), 3, Cfg.p8), (fsetup(), 34, 60), ([V(f's_add_u32 s{sL9}, s{sPS}, {16384*8}')], 60, 62)])
    a('L_s9:'); a.merge(s_e, a.snap())
    stamp(a, 9)
    g2o = lambda acc, o: (lambda p, kk, h: (acc + 16*h, ar(HF + 16*GORD[p+o] + 4*kk), p+o == 0 and kk == 0))
    def two(mask, f):
        l1 = a.label('TW'); l2 = a.label('TX')
        a(f's_and_b32 s98, s{sCLS}, {mask}\ns_cbranch_scc1 {l1}'); s0 = a.snap()
        f(False); a(f's_branch {l2}\n{l1}:'); s1 = a.snap(); a.restore(s0)
        f(True); a(f'{l2}:'); a.merge(s1, a.snap())
    pl1 = lambda hf: [FN(lambda a, k=k: emit(a, pl_ops(hf, k, k+1))) for k in range(16)]
    def ppoll_i(a):
        a(f"""s_min_u32 s98, s{sWV}, 2
        s_mul_i32 s98, s98, 768
        s_add_u32 s98, s98, {PFL_OFF}
        v_lshlrev_b32 v204, 3, v{VLANE}
        v_add_u32 v204, s98, v204
        v_add_u32 v205, 256, v204""")
        a.vm(poll_ins(200, 204, '0'), 'pp1'); a.vm(poll_ins(202, 205, '0'), 'pp2')
    def ppoll_c(a):
        if Cfg.blk & 4:
            only(R_FINW, lambda a: (poll_check(a, 'pp1', 200, 204, '0', 1), poll_check(a, 'pp2', 202, 205, '0', 1)))(a); a('s_mov_b32 s11, 0'); return
        a.vneed('pp2'); poll_test(a, 200, 1); a('s_cselect_b32 s11, 1, 0'); poll_test(a, 202, 1); a('s_cselect_b32 s11, 1, s11')
    def EV(*pairs):
        d = {}
        for k, v in pairs: d.setdefault(k, []).extend(v if isinstance(v, list) else [v])
        return d
    sched = dict(zip((78, 81, 84, 87), Cfg.sch))
    def tryev(qn, n):
        c = sched.get(qn, '-')
        if c not in '01': return [], []
        hf = int(c); t = E(); etest(t, hf, 20)
        t(f's_cselect_b32 s20, {1 << hf}, 0\ns_and_b32 s20, s20, s{sCLS}\ns_mul_i32 s20, s20, 5\ns_xor_b32 s{sCLS}, s{sCLS}, s20')
        return [(n - Cfg.ta, eld(hf, 20)), (n - 8, lambda a: a.drain())], [(sops('\n'.join(t.l)), n-7, n)]
    bar = lambda a: a('s_barrier')
    p2 = part_ops(JC[1], 2)
    seg = {78: (JC[1], 6, [], [(Cfg.f6-48, sf(6, ('p',9))), (23, ppoll_c)]),
           81: (JC[0], 0, [(p2[:11], 3, 22), (tw_reads(), 4, 20)], []),
           84: (JC[0], 3, [(p2[11:], 0, 12), (fin_addr(), 8, 23)], []),
           87: (JC[0], 6, [([FN(lambda a: a.vneed(('d', 98)))] + prd(0) + prd(1) + prd(2), 12, 24)], [(Cfg.f7-48, sf(7, ('p',2))), (('dma', 88), [102, 103]), (('dma', 89), [104]), (3, bar), (22, bar)])}
    e, f = tryev(78, 48)
    run(a, 72, 6, 'tr', g2o(JC[1], 0), [(part_ops(JC[0], 9), 3, Cfg.p9), (coop_tw(), 10, 40), (xb_ops()[:12], 2, 12), (only_ops(R_FINW, xb_ops()[12:], 1), 6, 44)] + f,
        events=EV((Cfg.f5, sf(5, 'clp', ('p',0), ('p',1))), (45, ppoll_i), *e))
    def slab(q, ld):
        acc, o, fl, ev = seg[q]; e, f = tryev(q+3, 24)
        run(a, q, 3, 'tr', g2o(acc, o), fl + f + ([(ld, 0, 22 if q < 87 else 16)] if ld else []), nxt=None if q == 87 else 'tr', events=EV(*ev, *e))
    for q in (78, 81, 84, 87):
        c = sched[q]
        if c == '-': slab(q, None)
        elif c == 'x': continue
        else:
            L = pl1(int(c))
            if sched.get(q+3) == 'x': two(1 << int(c), lambda ld: (slab(q, L[:9] if ld else None), slab(q+3, L[9:] if ld else None)))
            else: two(1 << int(c), lambda ld: slab(q, L if ld else None))
    for hf in (0, 1):
        if str(hf) not in Cfg.sch: a(f's_and_b32 s98, s{sCLS}, {1 << hf}\ns_mul_i32 s98, s98, 5\ns_xor_b32 s{sCLS}, s{sCLS}, s98')
    stamp(a, 10)
    final(a)
    a('L_fin:')
    stamp_flush(a, 11)
    a('L_end:\ns_endpgm')
    return a.text()

PTH = [136, 8]
VFA = 4; VO = 5
SEL = 200; AB2 = 208; AX = 224
sCLS = 53
sND, sFO, sPB, sXO, sSG = 46, 48, 50, 32, 36
def fsetup():
    a = E()
    LAML = [0,0,4,4,2,2,3,3,0]; LAMH = [0,1,1,2,2,3,3,4,4]; NEED = [5,5,7,5,6]; RANK = [0,0,2,3,1]
    swap = 0; nd = [0, 0]; cl = []
    for c in range(9):
        rl, rh = RANK[LAML[c]], RANK[LAMH[c]]
        sw = (rh < rl) if max(rl, rh) < 2 else (rh > rl)
        la, lb = (LAMH[c], LAML[c]) if sw else (LAML[c], LAMH[c])
        swap |= sw << c; nd[0] |= NEED[la] << 3*c; nd[1] |= NEED[lb] << 3*c
        cl.append(({0:0, 2:2, 3:4}[RANK[la]], {0:1, 1:1, 2:3, 3:5}[RANK[lb]]))
    ca = sum(x[0] << 3*i for i, x in enumerate(cl)); cb = sum(x[1] << 3*i for i, x in enumerate(cl))
    a(f"""s_lshl_b32 s52, s{sI}, 2
    s_lshr_b32 s38, s{sC}, 2
    s_add_u32 s52, s52, s38             ; b'
    s_and_b32 s65, s{sC}, 3
    s_min_u32 s65, s65, 2
    s_mul_i32 s38, s{sWV}, 3
    s_add_u32 s65, s65, s38
    s_min_u32 s65, s65, 8                 ; tile c
    s_mul_i32 s39, s65, 3
    s_lshr_b32 s{sND}, {nd[0]:#x}, s39
    s_and_b32 s{sND}, s{sND}, 7
    s_lshr_b32 s{sND+1}, {nd[1]:#x}, s39
    s_and_b32 s{sND+1}, s{sND+1}, 7
    s_lshr_b32 s38, {ca:#x}, s39
    s_and_b32 s38, s38, 7
    s_lshl_b32 s{sCLS}, 1, s38
    s_lshr_b32 s38, {cb:#x}, s39
    s_and_b32 s38, s38, 7
    s_bitset1_b32 s{sCLS}, s38
    s_bitcmp1_b32 s{sROLE}, {R_FINW}
    s_cselect_b32 s{sCLS}, s{sCLS}, 0
    s_add_u32 s{sND}, s{sND}, s{sNON}
    s_add_u32 s{sND+1}, s{sND+1}, s{sNON}
    s_lshl_b32 s{sFLG}, s{sB}, 1
    s_and_b32 s39, s{sC}, 1
    s_add_u32 s{sFLG}, s{sFLG}, s39
    s_lshl_b32 s{sFLG}, s{sFLG}, 6
    s_and_b32 s39, s{sC}, 14
    s_add_u32 s{sFLG}, s{sFLG}, s39
    s_lshl_b32 s{sFLG}, s{sFLG}, 1
    s_add_u32 s{sFLG}, s{sFLG}, {FL2_OFF}
    s_lshl_b32 s39, s52, 8
    s_add_u32 s39, s39, {FL2_OFF + 128}
    s_cmp_eq_u32 s65, 8
    s_cselect_b32 s38, 0, 128
    s_sub_u32 s38, s39, s38
    s_mul_i32 s{sPB}, s52, 18
    s_add_u32 s{sPB}, s{sPB}, s65
    s_lshl_b32 s{sPB}, s{sPB}, 14
    s_add_u32 s{sPB}, s{sPB}, {PART_OFF}
    s_lshl_b32 s{sXO}, s65, 6
    s_bitcmp1_b32 {swap:#x}, s65
    s_cselect_b32 s{sFO}, s39, s38
    s_cselect_b32 s{sFO+1}, s38, s39
    s_cselect_b32 s{sSG}, -1.0, 1.0
    s_cselect_b32 s{sSG+1}, 1.0, -1.0
    s_cselect_b32 s38, {9*16384}, 0
    s_cselect_b32 s39, 576, 0
    s_add_u32 s{sPB+1}, s{sPB}, {9*16384}
    s_sub_u32 s{sPB+1}, s{sPB+1}, s38
    s_add_u32 s{sPB}, s{sPB}, s38
    s_add_u32 s{sXO+1}, s{sXO}, 576
    s_sub_u32 s{sXO+1}, s{sXO+1}, s39
    s_add_u32 s{sXO}, s{sXO}, s39
    s_add_u32 s{sXO+2}, s{sXO}, {16*73728}
    s_add_u32 s{sXO+3}, s{sXO+1}, {16*73728}
    v_and_b32 v{VFA}, 7, v{VLANE}
    v_lshlrev_b32 v{VFA}, 2, v{VFA}
    v_lshrrev_b32 v{VO}, 2, v{VLANE}
    s_mov_b32 s38, 73728
    v_mul_lo_u32 v{VO}, v{VO}, s38
    v_and_b32 v206, 3, v{VLANE}
    v_lshl_add_u32 v{VO}, v206, 4, v{VO}
    s_mul_i32 s38, s52, 1152
    v_add_u32 v{VO}, s38, v{VO}""")
    a(f's_mul_i32 s{sFP}, s52, 36864\ns_mul_i32 s38, s{sWV}, 12288\ns_add_u32 s{sFP}, s{sFP}, s38\ns_add_u32 s{sFP}, s{sFP}, {P_OFF}')
    return sops('\n'.join(a.l))
def cls_block(a, mask, body, inv=False):
    l = a.label('CB'); a(f's_and_b32 s98, s{sCLS}, {mask}\ns_cbranch_scc{1 if inv else 0} {l}'); s0 = a.snap()
    body(a); a(f'{l}:'); a.merge(s0, a.snap())
SE = [56, 8]
def eld(hf, w): return lambda a: a(f's_buffer_load_dwordx8 s[{w}:{w+7}], {S(SWS)}, s{sFO+hf} glc')
def etest(a, hf, w):
    for i in range(8): a(f's_sub_u32 s{w+i}, s{w+i}, s{sND+hf}')
    for i in (0, 2, 4, 6): a(f's_max_u32 s{w+i}, s{w+i}, s{w+i+1}')
    a(f's_max_u32 s{w}, s{w}, s{w+2}\ns_max_u32 s{w+4}, s{w+4}, s{w+6}\ns_max_u32 s{w}, s{w}, s{w+4}\ns_cmp_gt_u32 s{w}, 8')
def etry_c(hf, w):
    def f(a):
        a.drain()
        if Cfg.blk & (1 << hf):
            cls_block(a, 1 << hf, lambda a: eblock(a, hf, w, Cfg.slp)); return
        etest(a, hf, w)
        a(f"""s_cselect_b32 s98, {1 << hf}, 0
        s_and_b32 s98, s98, s{sCLS}
        s_mul_i32 s98, s98, 5
        s_xor_b32 s{sCLS}, s{sCLS}, s98""")
    return f
def eblock(a, hf, w, slp=None):
    lc = a.label('EC'); lk = a.label('EK')
    etest(a, hf, w)
    a(f's_cbranch_scc1 {lc}\n{lk}:')
    a.ool += [f'{lc}:', f' buffer_load_dword v{VPO}, v{VFA}, {S(SWS)}, s{sFO+hf} offen sc1', ' s_waitcnt vmcnt(0)', f' v_subrev_u32 v{VPO}, s{sND+hf}, v{VPO}', f' v_cmp_lt_u32 vcc, 8, v{VPO}', ' s_nop 1', ' s_cmp_lg_u64 vcc, 0',
              f' s_cbranch_scc0 {lk}', f' s_sub_u32 s{sP}, s{sP}, 1', f' s_cbranch_scc1 {lc}_x', f' s_sleep {slp or Cfg.slp2}', f' s_branch {lc}', f'{lc}_x:', f' s_mov_b32 s{sP}, 0', f' s_branch {lk}']
def pl_ops(hf, i0, i1):
    o = []
    for i in range(i0, i1):
        if i % 4 == 0 or i == i0: o.append(V(f's_add_u32 s3, s{sPB+hf}, {4096*(i//4)}'))
        o.append(VM(f'buffer_load_dwordx4 {vr(PTH[hf]+4*i)}, v{VL16}, {S(SWS)}, s3 offen offset:{1024*(i%4)} sc1', ('pt', hf)))
    return o
def loads_if(hf, m): return [FN(lambda a, k=k: cls_block(a, m, lambda a: emit(a, pl_ops(hf, 2*k, 2*k+2)))) for k in range(8)]
def xb_ops():
    o = [V(f'v_lshrrev_b32 v{VBI}, 5, v{VLANE}'), V(f'v_lshlrev_b32 v{VBI}, 3, v{VBI}')]
    for hf in range(2):
        o.append(V(f'v_add_u32 v1, s{sXO+hf}, v{VBI}\nv_add_u32 v1, {B2_LDS}, v1'))
        for q in range(4): o.append(LD(f'ds_read_b64 {ar(AB2+8*hf+2*q,2)}, v1 offset:{16*q}'))
    for hf in range(2):
        for i in range(2): o.append(VM(f'buffer_load_dwordx4 {ar(AX+8*hf+4*i)}, v{VO}, {S(SX)}, s{sXO+hf+2*i} offen', 'x2'))
    return o
TWL = XP_LDS
def coop_tw():
    t = TMP; sc = 2.0/(2048*576)
    o = f"""v_and_b32 v{t}, 31, v{VLANE}
    v_lshrrev_b32 v{t+1}, 5, v{VLANE}
    v_lshlrev_b32 v207, 2, v{t+1}
    v_sub_u32 v207, v{t}, v207
    v_lshlrev_b32 v{t}, 6, v{t}
    v_add_u32 v{t}, s52, v{t}
    s_lshr_b32 s38, s{sWV}, 1
    s_and_b32 s39, s{sWV}, 1
    s_lshl_b32 s8, s38, 4
    s_lshl_b32 s9, s39, 2
    s_add_u32 s8, s8, s9
    v_lshl_add_u32 v{t+1}, v{t+1}, 3, s8
    v_mul_u32_u24 v{t+1}, v{t+1}, v{t}
    s_add_u32 s8, s8, s9
    v_subrev_u32 v207, s8, v207
    s_lshl_b32 s38, s38, 10
    s_lshl_b32 s39, s39, 3
    s_add_u32 s38, s38, s39
    s_add_u32 s38, s38, {TWL}
    v_add_u32 v206, s38, v{VL16}
"""
    R = [208+i for i in range(8)]
    L = []
    for i in range(4): L.append(f'v_mad_u32_u24 v{R[i]}, v{t}, {i}, v{t+1}')
    for i in range(4): L.append(f'v_and_b32 v{R[i]}, 0x7ff, v{R[i]}')
    for i in range(4): L.append(f'v_cvt_f32_u32 v{R[i]}, v{R[i]}')
    for i in range(4): L.append(f'v_mul_f32 v{R[i]}, {f2u(1/2048):#x}, v{R[i]}')
    for i in range(4): L.append(f'v_cos_f32 v{R[4+i]}, v{R[i]}')
    for i in range(4): L.append(f'v_sin_f32 v{R[i]}, v{R[i]}')
    for i in (4,5,6,7,0,1,2,3): L.append(f'v_mul_f32 v{R[i]}, {f2u(sc):#x}, v{R[i]}')
    L += [f'v_cvt_pk_bf16_f32 v{t}, v{R[4]}, v{R[5]}', f'v_cvt_pk_bf16_f32 v{t+1}, v{R[6]}, v{R[7]}', f'v_cvt_pk_bf16_f32 v{t+2}, v{R[0]}, v{R[1]}', f'v_cvt_pk_bf16_f32 v{t+3}, v{R[2]}, v{R[3]}',
          f'v_xor_b32 v{t+4}, 0x80008000, v{t+2}', f'v_xor_b32 v{t+5}, 0x80008000, v{t+3}',
          f'v_and_b32 v{R[0]}, 1, v207', f'v_lshlrev_b32 v{R[0]}, 4, v{R[0]}', f'v_mov_b32 v{R[1]}, 0x3f80', f'v_lshlrev_b32 v{R[0]}, v{R[0]}, v{R[1]}', 'v_and_b32 v207, -2, v207',
          'v_cmp_eq_u32 vcc, 0, v207', 's_nop 1', f'v_cndmask_b32 v{t+6}, 0, v{R[0]}, vcc', 'v_cmp_eq_u32 vcc, 2, v207', 's_nop 1', f'v_cndmask_b32 v{t+7}, 0, v{R[0]}, vcc']
    ops = sops(o + '\n'.join(L))
    ops += [LD(f'ds_write_b64 v206, {vr(t+2*m,2)} offset:{2048*m}') for m in range(4)]
    return ops
def tw_reads():
    return [V(f'v_add_u32 v206, {TWL}, v{VL16}')] + [LD(f'ds_read_b128 {ar(TW+4*i)}, v206 offset:{1024*i}') for i in range(8)]

PB = 24576
def fin_addr():
    return sops(f"""s_add_u32 s38, s{sW2K}, {PB}
    v_lshrrev_b32 v6, 5, v{VLANE}
    v_bfe_u32 v7, v{VLANE}, 2, 2
    v_lshl_add_u32 v6, v6, 3, v7
    v_lshlrev_b32 v6, 7, v6
    v_bfe_u32 v7, v{VLANE}, 1, 1
    v_lshl_add_u32 v6, v7, 6, v6
    v_bfe_u32 v7, v{VLANE}, 4, 1
    v_lshl_add_u32 v6, v7, 4, v6
    v_and_b32 v7, 1, v{VLANE}
    v_lshl_add_u32 v6, v7, 3, v6
    v_add_u32 v6, s38, v6
    v_add_u32 v7, s38, v{VL16}
    s_lshl_b32 s38, s{sWV}, 12
    v_add_u32 v3, s38, v{VL16}
    v_add_u32 v1, 73728, v3
    s_lshl_b32 s38, s{sWV}, 14
    s_add_u32 s38, s38, {PB + 6144}
    v_add_u32 v247, s38, v{VL16}
    s_mov_b32 s39, {f2u(-math.log2(math.e)):#x}""")
APF = 32
def prd(jj):
    return [LD(f'ds_read_b64_tr_b16 {ar(APF+16*jj+8*p+4*t+2*rho,2)}, v6 offset:{8192*(2*jj+t)+512*rho+32*p}', ('pf', jj))
            for t in range(2) for p in range(2) for rho in range(2)]
def final(a):
    Ea=72; Oa=88; YS=[104,208,72]; GA=[208, 104]; PK2=224; T=240; VY=7; VG=3; VG2=1; AY=16
    cv, st = part_inplace(JC[0], 3)
    brole(a, R_FINW, 'L_finw'); s0 = a.snap()
    a('s_nop 8'); emit(a, mix(cv, st))
    brole(a, R_FIN, 'L_fin', False)
    for k in range(6):
        a(f's_mov_b32 m0, {122880 + 4096*k}\ns_mov_b32 s96, {86016 - 6144 + 4096*k}\nv_lshl_add_u64 {vr(VTT,2)}, s[96:97], 0, {vr(VTB,2)}')
        for i in range(4): a.vm(f'global_load_lds_dwordx4 {vr(VTT,2)}, off offset:{1024*i}')
        if k == Cfg.w3b: a.vneed(('d', 104)); a('s_barrier')
    a.vdrain(); a('s_barrier\ns_branch L_fin')
    a('L_finw:'); a.restore(s0)
    lc = a.label('PR'); lk = a.label('PL')
    a(f's_cmp_lg_u32 s11, 0\ns_cbranch_scc1 {lc}')
    t = E(); t.nlab = 9000
    t(f'{lc}:\ns_nop 7'); emit(t, mix(cv, st))
    t.vm(poll_ins(200, 204, '0'), 'x'); t.vm(poll_ins(202, 205, '0'), 'y')
    poll_check(t, 'x', 200, 204, '0', 1); poll_check(t, 'y', 202, 205, '0', 1)
    t.drain()
    for q in range(93, 99):
        for f in plan(q, 'P'): f(t)
    t.vdrain(); emit(t, prd(0) + prd(1) + prd(2)); t.drain()
    C=lambda t: ar(TW+4*t); Sn=lambda t: ar(TW+8+4*t); N=lambda t: ar(TW+16+4*t)
    def inv(jj):
        yr=vr(YS[jj],16); yi=vr(YS[jj]+16,16); P=APF+16*jj; mf=[]
        for u in range(2):
            mf += [f'{M} {yr}, {ar(P+4*u)}, {C(u)}, {"0" if u==0 else yr}', f'{M} {yi}, {ar(P+8+4*u)}, {C(u)}, {"0" if u==0 else yi}',
                   f'{M} {yr}, {ar(P+8+4*u)}, {N(u)}, {yr}', f'{M} {yi}, {ar(P+4*u)}, {Sn(u)}, {yi}']
        return mf
    for x in inv(0): t(x)
    t(f's_nop 4\ns_branch {lk}'); a.ool += t.l + t.ool
    def pk(jj):
        o = []
        for q in range(4):
            o += [V(f'v_cvt_pk_bf16_f32 v{YS[jj]+8*q+i}, v{YS[jj]+8*q+2*i}, v{YS[jj]+8*q+2*i+1}') for i in range(4)]
            o.append(LD(f'ds_write_b128 v{VY}, {vr(YS[jj]+8*q)} offset:{8192*(2*jj+q%2)+1024*(q//2)}', 'yw'))
        return o
    a.need(('pf', 0))
    mf = inv(0)
    for x in mf[:2]: a(x)
    a('s_nop 2')
    interleave(a, mf[2:], mix(cv, st))
    a.need(('pf', 2))
    a(f'{lk}:')
    stamp(a, 'f1')
    eld(1, 56)(a); eld(0, 20)(a)
    for jj in (1, 2):
        mf = inv(jj)
        for x in mf[:2]: a(x)
        a('s_nop 5')
        interleave(a, mf[2:], pk(jj-1))
    stamp(a, 'f2')
    a('s_nop 7')
    emit(a, pk(2))
    a(f'v_add_u32 v{VY}, {PB}, v{VL16}')
    stamp(a, 'f3')
    a.vneed(('d', 104)); a.drain(); a('s_barrier')
    stamp(a, 'f4')
    def rdyg(i):
        j = i//4; r = i % 4; go = 12288*j + 1024*r
        a.lds(f'ds_read_b128 {ar(AY+4*r)}, v{VY} offset:{8192*(2*(j%3) + r//2) + 2048*(j//3) + 1024*(r%2)}', ('yg', i))
        if j < 2:    a.lds(f'ds_read_b128 {ar(4*r)}, v{VG} offset:{go}', ('yg', i))
        elif j == 2: a.lds(f'ds_read_b128 {ar(4*r)}, v247 offset:{8192*(r//2) + 1024*(r%2)}', ('yg', i))
        else:        a.lds(f'ds_read_b128 {ar(4*r)}, v{VG2} offset:{go-36864}', ('yg', i))
    for i in range(3): rdyg(i)
    for hf in (1, 0):
        etest(a, hf, [20, 56][hf])
        a(f"""s_cselect_b32 s98, {(4|16) << hf}, 0
        s_and_b32 s98, s98, s{sCLS}
        s_cselect_b32 s99, {64 << hf}, 0
        s_xor_b32 s{sCLS}, s{sCLS}, s98
        s_or_b32 s{sCLS}, s{sCLS}, s99""")
    for i in range(36):
        if i + 3 < 36: rdyg(i+3)
        a.need(('yg', i))
        j = i//4; u = (i//2) % 2
        d = vr(Ea if (u == 1) == (j < 5) else Oa, 16)
        a(f'{M} {d}, {ar(4*(i%4))}, {ar(AY+4*(i%4))}, {"0" if i in (0,2) else d}')
        k = i - Cfg.lg
        if k >= 0 and k % Cfg.ls == 0 and k//Cfg.ls < 8:
            k //= Cfg.ls
            cls_block(a, (4|16) << (1 - k//4), lambda a: emit(a, pl_ops(1 - k//4, 4*(k%4), 4*(k%4)+4)))
        if i == 24: a('s_barrier')
        if i == 20: eld(1, 56)(a); eld(0, 20)(a)
    a.drain()
    for hf in (1, 0):
        cls_block(a, 64 << hf, lambda a: (eblock(a, hf, [20, 56][hf]), emit(a, pl_ops(hf, 0, 16))))
    stamp(a, 'f5')
    def summ(hf):
        y = vr(GA[hf], 16)
        o = [f'{M} {y}, {ar(SEL)}, {ar(AB2+8*hf)}, 0', f'{M} {y}, {ar(SEL+4)}, {ar(AB2+8*hf+4)}, {y}']
        return o + [f'{M} {y}, {ar(SEL+4*(i%2))}, {vr(PTH[hf]+4*i)}, {y}' for i in range(16)]
    def refetch(hf):
        o = []
        for k in range(8):
            l = a.label('RF'); r = PTH[hf] + 8*k
            o += [f'v_max_u32 v{T}, v{r+3}, v{r+7}', f'v_cmp_eq_u32 vcc, -1, v{T}', f's_add_u32 s3, s{sPB+hf}, {2048*k}', 's_nop 0', 's_cmp_eq_u64 vcc, 0', f's_cbranch_scc1 {l}',
                  f'buffer_load_dwordx4 {vr(r)}, v{VL16}, {S(SWS)}, s3 offen sc1', f'buffer_load_dwordx4 {vr(r+4)}, v{VL16}, {S(SWS)}, s3 offen offset:1024 sc1', f'{l}:']
        return o
    def ready(hf, both=False):
        cls_block(a, (4|16|64) << hf, lambda a: sent_check(a, ('pt', hf), [f'v{PTH[hf]+4*i+3}' for i in range(16)], T, ['s_waitcnt vmcnt(0)'] + refetch(hf) + (refetch(0) if both else []), slp=Cfg.slp2))
        a.st['v'].pop(('pt', hf), None)
    VW = 7; VR = 3
    setup = sops(f"""s_mul_i32 s38, s{sWV}, 5120
    s_add_u32 s38, s38, {BIAS_LDS}
    v_and_b32 v{VW}, 31, v{VLANE}
    v_mul_u32_u24 v{VW}, 80, v{VW}
    v_add3_u32 v{VW}, v{VW}, v{VBI}, s38
    v_lshrrev_b32 v{VR}, 2, v{VLANE}
    v_mul_u32_u24 v{VR}, 80, v{VR}
    v_and_b32 v1, 3, v{VLANE}
    v_lshlrev_b32 v1, 4, v1
    v_add3_u32 v{VR}, v{VR}, v1, s38""")
    def fin(hf):
        o = []
        for g in range(0, 16, 4):
            y = [GA[hf]+g+i for i in range(4)]; t = [T+i for i in range(4)]; u = [248+i for i in range(4)]
            x = [f'v_mul_f32 v{t[i]}, s39, v{y[i]}' for i in range(4)]
            x += [f'v_exp_f32 v{t[i]}, v{t[i]}' for i in range(4)]
            x += [f'v_fma_f32 v{u[i]}, v{Oa+g+i}, s{sSG+hf}, v{Ea+g+i}' for i in range(4)]
            x += [f'v_add_f32 v{t[i]}, 1.0, v{t[i]}' for i in range(4)]
            x += [f'v_rcp_f32 v{t[i]}, v{t[i]}' for i in range(4)]
            x += [f'v_mul_f32 v{u[i]}, v{u[i]}, v{y[i]}' for i in range(4)]
            x += [f'v_mul_f32 v{t[i]}, v{t[i]}, v{u[i]}' for i in range(4)]
            x += [f'v_cvt_pk_bf16_f32 v{PK2+8*hf+g//2+i}, v{t[2*i]}, v{t[2*i+1]}' for i in range(2)]
            o += [V(z) for z in x] + [LD(f'ds_write_b64 v{VW}, {vr(PK2+8*hf+g//2,2)} offset:{2560*hf+4*g}')]
        for i in range(2): o.append(LD(f'ds_read_b128 {vr(PK2+8*hf+4*i)}, v{VR} offset:{2560*hf+1280*i}', ('tr', hf)))
        return o
    XU = [8, 120]
    def xun(hf):
        o = []; X = XU[hf]
        for d in range(8):
            o += [V(f'v_accvgpr_read_b32 v{X+1+2*d}, a{AX+8*hf+d}'), V(f'v_lshlrev_b32 v{X+2*d}, 16, v{X+1+2*d}'), V(f'v_and_b32 v{X+1+2*d}, 0xffff0000, v{X+1+2*d}')]
        return o
    def outp(hf):
        o = [FN(lambda a: a.need(('tr', hf)))]; X = XU[hf]
        for d in range(8):
            r = PK2+8*hf+d
            o += [V(f'v_lshlrev_b32 v252, 16, v{r}'), V(f'v_and_b32 v253, 0xffff0000, v{r}'), V(f'v_add_f32 v252, v252, v{X+2*d}'), V(f'v_add_f32 v253, v253, v{X+1+2*d}'),
                  V(f'v_cvt_pk_bf16_f32 v{r}, v252, v253')]
            if d % 4 == 3: o.append(VM(f'buffer_store_dwordx4 {vr(r-3)}, v{VO}, {S(SOUT)}, s{sXO+hf+2*(d//4)} offen {Cfg.ofl}'))
        return o
    ready(1, True)
    stamp(a, 'f6')
    interleave(a, summ(1), setup + xun(1))
    stamp(a, 'f7')
    s1 = summ(0)
    l1 = a.label('FA'); l2 = a.label('FB')
    a(f's_and_b32 s98, s{sCLS}, {16|64}\ns_cbranch_scc1 {l1}'); s0 = a.snap()
    ready(0)
    interleave(a, s1[:3], xun(0))
    interleave(a, s1[3:], fin(1))
    stamp(a, 'f8')
    emit(a, outp(1))
    a(f's_branch {l2}\n{l1}:'); s2 = a.snap(); a.restore(s0)
    if Cfg.rf:
        a.vneed(('pt', 0)); a('\n'.join(refetch(0))); a.st['v'][('pt', 0)] = 0
    else: a('s_nop 7')
    emit(a, fin(1) + xun(0))
    stamp(a, 'f8')
    ready(0)
    interleave(a, s1, outp(1))
    a('s_nop 9')
    a(f'{l2}:'); a.merge(s2, a.snap())
    emit(a, fin(0))
    stamp(a, 'f9')
    emit(a, outp(0))

def build(aslist=False):
    k = NAME + '_kernel'
    body = kernel()
    if Cfg.warm:
        import stubs
        body, st, end = stubs.add_stubs(body, '.set CODE_LINES, 17\n', ('L_main', 'L_odd', 'L_dft', 'L_s3', 'L_unit', 'L_s7e', 'L_s4o', 'L_s9', 'L_finw'), Cfg.wmode)
        print('stubs', {k: [hex(x) for x in v] for k, v in st.items()}, 'end', end, file=sys.stderr)
    hdr = f'; @launch kernel={k} grid=(256,1,1) block=(256,1,1) lds=163840\n' if aslist else '; @launch grid=(256,1,1) block=(256,1,1) lds=163840\n'
    s = '; generated by gen/v4.py\n' + hdr + '.amdgcn_target "amdgcn-amd-amdhsa--gfx950"\n.text\n.set CODE_LINES, 22\n'
    s += kstart(k) + body + 'L_codeend:\n'
    s += '.section .rodata,"a"\n' + kdesc(k, 512, 256) + tables()
    return s
if __name__ == '__main__':
    out = sys.argv[1] if len(sys.argv) > 1 else f'cdna_kernels/{NAME}.s'
    for x in sys.argv[2:]:
        if '=' in x:
            kx, vx = x.split('='); setattr(Cfg, kx, int(vx) if vx.lstrip('-').isdigit() else vx)
    open(out, 'w').write(build('--list' in sys.argv))
```

```python
import sys, re
from common2 import *
M = 'v_mfma_f32_32x32x16_bf16'
VL16=0; VT1=1; VLANE=2; VT3=3; VA1=4; VB1=5; VA2=6; VB2=7
XF=8; ACC=[152,184]; TMP=216; HO=224; TA=240; VBI=246; VC0=247; VFL=248; VPO=250; VTB=252; VTT=254
HF=32; TW=176
SX,SW1,SW2,SWS,SWR,SWI,SOUT,SB,SDBG = 4,8,12,16,20,24,28,32,36
sWV,sI,sC,sB,sROLE,sNON = 40,41,42,43,44,45
sO1=46; sO2=55; sW2K=64; sHS=65; sPS=66; sFLG=67; sT=68; sT2=69; sGC1=70; sP=71
sRHO=39
sX0=96
R_ODD,R_DFT,R_SMID,R_UNIT,R_FIN,R_FINW,R_PATCH = 0,1,2,3,4,5,6
PF=3; NB=4
GC0 = -2.0*math.log2(math.e)*math.sqrt(2/math.pi); GC1 = GC0*0.044715
BIAS_LDS = 147456
B2_LDS = 163840 - 2048
class Cfg:
    stamps=False; st='1,2,3,4,5,6,7,8,9,10'; xa=3; lg=1; pm=340; f8=99; w3d=1; f2o=44; e2nd=22; blk=0; f6=60; p9=30; sch='--1x'; ta=22; ls=3; rf=1; w3b=0; ecl=1; ge=40; c5=24; pe=20; e8=6; nt=0; f5h=76; noclr=0; t1=5; t2=99; ne=9; c0=20; b2=1; pz1=0; pz2=4; sd=4; tw1=1; warm=1; wmode='execz'; clk=0; xe=1; fp=3; f7=60; gs=55; l9=46; l10=34; mg=0; tn=108; w2k=99; rots=1; np=6; te=0; pt='w2,b1,b2,wr,wi,dbg'; w3=1; xo=1; f16=0; gs0=1; e2=50; l2=0; t9=30; t10=8; pfg=44; ofl=''; h8=44; f4=26; c4=20; f5=14; p8=60; fg=24; pg=52; cg=8; tb=4; normin=0; rx=8; rota=1; rotb=1; touch='x2,w,tab,code'; spin=100000; slp=8; slp2=2; rr=1; wt=1
def h2(x):
    u = struct.unpack('<H', struct.pack('<e', x))[0]; return u | u << 16
def S(b): return f's[{b}:{b+3}]'
def stamp(a, nm):
    if not Cfg.stamps: return
    L = ['0'] + Cfg.st.split(',') + ['11']
    nm = str(nm)
    if nm in L:
        i = L.index(nm) if nm != '11' else 11
        a(f'{"s_memtime" if Cfg.clk else "s_memrealtime"} s[{72+2*i}:{73+2*i}]')
def stamp_flush(a, n):
    if not Cfg.stamps: return
    a.vdrain(); stamp(a, n); n += 1
    a(f'''s_waitcnt lgkmcnt(0)
    s_mov_b32 s{SWS+2}, {STAMP_OFF + (1<<20)}
    v_mov_b32 v1, 0''')
    for i in range(n): a(f'v_writelane_b32 v1, s{72+2*i}, {i}')
    a(f'''s_lshl_b32 s{sT}, s2, 3
    s_add_u32 s{sT}, s{sT}, s{sWV}
    s_lshl_b32 s{sT}, s{sT}, 6
    s_add_u32 s{sT}, s{sT}, {STAMP_OFF}
    v_lshlrev_b32 v3, 2, v{VLANE}
    s_mov_b64 exec, 0xffff
    buffer_store_dword v1, v3, {S(SWS)}, s{sT} offen
    s_mov_b64 exec, -1''')
def brole(a, bit, lab, ifset=True):
    a(f's_bitcmp1_b32 s{sROLE}, {bit}\ns_cbranch_scc{1 if ifset else 0} {lab}')

def V(s, c=1): return (c, lambda a: a(s))
def VM(s, tag=None): return (1, lambda a: a.vm(s, tag))
def LD(s, tag=None): return (1, lambda a: a.lds(s, tag))
def FN(f, c=1): return (c, f)
def SVM(pre, s, tag=None): return (1, lambda a: (a(pre), a.vm(s, tag)))
def emit(a, ops):
    for _, f in ops: f(a)

def sops(txt):
    L = [x.split(';')[0].strip() for x in txt.split('\n')]; L = [x for x in L if x]
    o = []; cur = []
    for i, x in enumerate(L):
        cur.append(x)
        nx = L[i+1] if i+1 < len(L) else ''
        if nx.startswith(('s_cselect', 's_addc', 's_subb', 'v_cndmask', 's_nop')) or x.startswith(('s_nop', 'v_cmp')): continue
        o.append(V('\n'.join(cur), len(cur))); cur = []
    return o
def mix(x, y):
    o = []; k = 0
    for i, e in enumerate(x):
        o.append(e)
        t = len(y)*(i+1)//len(x)
        while k < t: o.append(y[k]); k += 1
    return o
def gelu_ops(acc, job, nb=None, sd=0):
    ops = []; G = 4; held = []
    for g in range(0, 32, G):
        t = [TMP + (g//G % 2)*4 + i for i in range(G)]
        x = [acc + g + i for i in range(G)]
        if not Cfg.f16:
            for i in range(G): ops.append(V(f'v_mul_f32 v{t[i]}, v{x[i]}, v{x[i]}'))
            for i in range(G): ops.append(V(f'v_fma_f32 v{t[i]}, v{t[i]}, s{sGC1}, v{VC0}'))
            for i in range(G): ops.append(V(f'v_mul_f32 v{t[i]}, v{t[i]}, v{x[i]}'))
            for i in range(G): ops.append(V(f'v_exp_f32 v{t[i]}, v{t[i]}', 2))
            for i in range(G): ops.append(V(f'v_add_f32 v{t[i]}, 1.0, v{t[i]}'))
            for i in range(G): ops.append(V(f'v_rcp_f32 v{t[i]}, v{t[i]}', 2))
            for i in range(G): ops.append(V(f'v_mul_f32 v{t[i]}, v{t[i]}, v{x[i]}'))
        else:
            HI = 'dst_sel:WORD_1 dst_unused:UNUSED_PRESERVE src0_sel:WORD_1'
            t = [TMP + i for i in range(4)]; u = [TMP + 4, TMP + 5]; w = [TMP + 6, TMP + 7]
            for i in range(2): ops.append(V(f'v_cvt_pk_f16_f32 v{u[i]}, v{x[2*i]}, v{x[2*i+1]}'))
            for i in range(2): ops.append(V(f'v_pk_mul_f16 v{w[i]}, v{u[i]}, v{u[i]}'))
            for i in range(2): ops.append(V(f'v_pk_fma_f16 v{w[i]}, v{w[i]}, s{sGC1}, v{VC0}'))
            for i in range(2): ops.append(V(f'v_pk_mul_f16 v{u[i]}, v{w[i]}, v{u[i]}'))
            for i in range(2): ops.append(V(f'v_exp_f16 v{w[i]}, v{u[i]}', 2))
            for i in range(2): ops.append(V(f'v_exp_f16_sdwa v{w[i]}, v{u[i]} {HI}', 2))
            for i in range(2): ops.append(V(f'v_pk_add_f16 v{u[i]}, v{w[i]}, 1.0 op_sel_hi:[1,0]'))
            for i in range(2): ops.append(V(f'v_rcp_f16 v{t[2*i]}, v{u[i]}', 2))
            for i in range(2): ops.append(V(f'v_rcp_f16_sdwa v{t[2*i+1]}, v{u[i]} dst_sel:WORD_0 dst_unused:UNUSED_PAD src0_sel:WORD_1', 2))
            for i in (0, 2, 1, 3): ops.append(V(f'v_fma_mix_f32 v{t[i]}, v{x[i]}, v{t[i]}, 0 op_sel_hi:[0,1,0]'))
        if nb is not None: ops.append((2, lambda a, g=g: a.lds(f'ds_read_b128 {vr(acc+g)}, v{VBI} offset:{256*nb + 8*g}', 'bias')))
        for i in range(0, G, 2): ops.append(V(f'v_cvt_pk_bf16_f32 v{HO + (g+i)//2}, v{t[i]}, v{t[i+1]}'))
        for i in range(0, G, 2): ops.append(V(f'v_accvgpr_write_b32 a{HF + 16*job + (g+i)//2}, v{HO + (g+i)//2}'))
        if g % 8 == 4:
            q = g // 8
            if q == 0: ops.append(V(f's_add_u32 s{sT2}, s{sHS}, {4096*job}'))
            held.append(VM(f'buffer_store_dwordx4 {vr(HO+4*q)}, v{VL16}, {S(SWS)}, s{sT2} offen offset:{1024*q} sc1', ('h', job)))
        if held and g//4 >= sd: ops.append(held.pop(0))
    return ops
def part_ops(acc, lam):
    ops = []
    for q in range(4):
        if q % 2 == 0: ops.append(V(f's_add_u32 s{sT2}, s{sPS}, {16384*(2*lam + q//2)}' if lam != 9 else f's_add_u32 s{sT2}, s{sL9}, {16384*(q//2)}'))
        for i in range(4): ops.append(V(f'v_cvt_pk_bf16_f32 v{HO+4*q+i}, v{acc+8*q+2*i}, v{acc+8*q+2*i+1}'))
        ops.append(VM(f'buffer_store_dwordx4 {vr(HO+4*q)}, v{VL16}, {S(SWS)}, s{sT2} offen offset:{1024*(q%2)} sc1', ('p', lam)))
    return ops
def clear_ops(sreg, imms, tag, r=HO):
    if Cfg.noclr: return [V('s_nop 0')]
    ops = [V(f'v_mov_b32 v{r+i}, -1' if r > 0 else f'v_accvgpr_write_b32 a{-r+i}, -1') for i in range(4)]
    ops = [(0, f) for _, f in ops]
    for im in imms:
        for k in range(2): ops.append(SVM(f's_add_u32 s3, s{sreg}, {im}', f'buffer_store_dwordx4 {vr(r) if r > 0 else ar(-r)}, v{VL16}, {S(SWS)}, s3 offen offset:{1024*k} sc1', tag))
    return ops
def sent_check(a, tag, regs, t, reload_lines, probe=None, slp=None):
    lc = a.label('SC'); ls = a.label('SS'); lk = a.label('SK')
    a.vneed(tag)
    a(f'{lc}:')
    rs = []
    for i, r in enumerate(regs):
        if r[0] == 'a': a(f'v_accvgpr_read_b32 v{t+i}, {r}'); rs.append(f'v{t+i}')
        else: rs.append(r)
    a(f'v_max_u32 v{t}, {rs[0]}, {rs[1]}')
    for i in range(2, len(rs), 2): a(f'v_max3_u32 v{t}, v{t}, {rs[i]}, {rs[i+1]}')
    a(f'v_cmp_eq_u32 vcc, -1, v{t}\ns_nop 1\ns_cmp_lg_u64 vcc, 0\ns_cbranch_scc1 {ls}\n{lk}:')
    pr = []
    if probe:
        pr = [' ' + x for x in probe[0]] + [f' v_and_b32 v{t+1}, {probe[1]}, v{VLANE}', f' v_lshlrev_b32 v{t+1}, 10, v{t+1}', f' buffer_load_dword v{t}, v{t+1}, {S(SWS)}, s3 offen offset:1020 sc1',
              ' s_waitcnt vmcnt(0)', f' v_cmp_eq_u32 vcc, -1, v{t}', ' s_nop 1', ' s_cmp_lg_u64 vcc, 0', f' s_cbranch_scc1 {ls}']
    a.ool += [f'{ls}:', f' s_sub_u32 s{sP}, s{sP}, 1', f' s_cbranch_scc1 {ls}_x', f' s_sleep {slp or (Cfg.slp2 if probe else Cfg.slp)}'] + pr + [x if x.endswith(':') else ' ' + x for x in reload_lines] + [' s_waitcnt vmcnt(0)', f' s_branch {lc}',
              f'{ls}_x:', f' s_mov_b32 s{sP}, 0', f' s_branch {lk}']
def lines_of(ops):
    t = E(); emit(t, ops); return [x.strip() for x in t.l]
def norm_ops(u):
    T = HO; r = XF + 8*u; ops = []
    for i in range(8): ops.append(V(f'v_dot2_f32_bf16 v{T+i}, v{r+i}, v{TMP+4}, v{TMP}'))
    for i in range(8): ops.append(V(f'v_dot2_f32_bf16 v{T+8+i}, v{r+i}, v{TMP+5}, v{TMP}'))
    for i in range(8): ops.append(V(f'v_cvt_pk_bf16_f32 v{r+i}, v{T+2*i}, v{T+2*i+1}'))
    return ops
def setflag(a, stage, *tags, off=None):
    a(f'v_mov_b32 v{VFL+1}, {stage}')
    a.vneed(*tags)
    a('s_mov_b64 exec, 1')
    a.vm(f'buffer_store_dwordx2 {vr(VFL,2)}, off, {S(SWS)}, s{sFLG if off is None else off} sc1')
    a('s_mov_b64 exec, -1')
def setflag2(a, stage, *tags):
    a(f'v_add_u32 v{VFL+1}, {stage-1}, v{VFL}')
    a.vneed(*tags)
    a('s_mov_b64 exec, 1')
    a.vm(f'buffer_store_dword v{VFL+1}, off, {S(SWS)}, s{sFLG} sc1')
    a('s_mov_b64 exec, -1')
def poll_ins(p, voff, soff): return f'buffer_load_dwordx2 {vr(p,2)}, v{voff}, {S(SWS)}, {soff} offen sc1' if voff is not None else f'buffer_load_dwordx2 {vr(p,2)}, off, {S(SWS)}, {soff} sc1'
def poll_test(a, p, need):
    a(f'''v_subrev_u32 v{p+1}, {need}, v{p+1}
    v_cmp_ne_u32 vcc, s{sNON}, v{p}
    v_cmp_lt_u32 s[{sX0+4}:{sX0+5}], 60, v{p+1}
    s_nop 1
    s_or_b64 vcc, vcc, s[{sX0+4}:{sX0+5}]''')
SPL = 0
def spoll_i(a): a(f's_buffer_load_dwordx2 s[{SPL}:{SPL+1}], {S(SWS)}, s34 glc')
def spoll_c(need):
    def f(a):
        lc = a.label('QC'); lk = a.label('QK')
        a.drain()
        a(f"""s_sub_u32 s{SPL+1}, s{SPL+1}, {need}
        s_cmp_lt_u32 s{SPL+1}, 60
        s_cselect_b32 s{SPL}, s{SPL}, 0
        s_cmp_lg_u32 s{SPL}, s{sNON}
        s_cbranch_scc1 {lc}
        {lk}:""")
        t = E(); poll_test(t, VPO, need)
        a.ool += [f'{lc}:', ' ' + poll_ins(VPO, None, 's34'), ' s_waitcnt vmcnt(0)'] + t.l + [f' s_cbranch_scc0 {lk}', f' s_sub_u32 s{sP}, s{sP}, 1', f' s_cbranch_scc1 {lc}_x', f' s_sleep {Cfg.slp}', f' s_branch {lc}',
                  f'{lc}_x:', f' s_mov_b32 s{sP}, 0', f' s_branch {lk}']
    return f
def poll_check(a, tag, p, voff, soff, need):
    lc = a.label('PC'); ls = a.label('PS'); lk = a.label('PK')
    a.vneed(tag)
    a(f'{lc}:'); poll_test(a, p, need)
    a(f's_cbranch_scc1 {ls}\n{lk}:')
    a.ool += [f'{ls}:', f' s_sub_u32 s{sP}, s{sP}, 1', f' s_cbranch_scc1 {ls}_x', f' s_sleep {Cfg.slp}', ' ' + poll_ins(p, voff, soff), ' s_waitcnt vmcnt(0)', f' s_branch {lc}',
              f'{ls}_x:', f' s_mov_b32 s{sP}, 0', f' s_branch {lk}']

def slot(q): return (q % 18) * 8192
def rd_ops(kind, q, kk, n):
    fb = (n % NB) * 8; s = slot(q) + kk*2048
    if kind == 'dft':
        b = s // 49152; off = s % 49152
        return [(f'ds_read_b128 {ar(fb)}, v{VPO+b} offset:{off}', ('f', n)), (f'ds_read_b128 {ar(fb+4)}, v{VPO+b} offset:{off+1024}', ('f', n))]
    b = s // 49152; off = s % 49152; L = TA + 2*b; R = L + 1
    return [(f'ds_read_b64_tr_b16 {ar(fb,2)}, v{L} offset:{off}', ('f', n)), (f'ds_read_b64_tr_b16 {ar(fb+2,2)}, v{L} offset:{off+512}', ('f', n)),
            (f'ds_read_b64_tr_b16 {ar(fb+4,2)}, v{R} offset:{off}', ('f', n)), (f'ds_read_b64_tr_b16 {ar(fb+6,2)}, v{R} offset:{off+512}', ('f', n))]
def dma_buf(q, srd_, va, vb, sreg, imm, fl='', srd2=None):
    def f0(a):
        a(f's_add_u32 m0, s{sW2K}, {slot(q)}\ns_add_u32 s{sT}, s{sreg}, {imm}')
        a.vm(f'buffer_load_dwordx4 v{va}, {S(srd_)}, s{sT} offen {fl} lds', ('d', q))
    def f1(a): a.vm(f'buffer_load_dwordx4 v{vb}, {S(srd2 or srd_)}, s{sT} offen offset:1024 {fl} lds', ('d', q))
    return [f0, f1]
def dma_tab(q, imm=None, sreg=None):
    def f0(a):
        a(f's_add_u32 m0, s{sW2K}, {slot(q)}')
        if sreg is None: a(f's_mov_b32 s{sX0}, {imm}')
        else: a(f's_lshl_b32 s{sX0}, s{sreg}, 13\ns_add_u32 s{sX0}, s{sX0}, s{sPS}')
        a(f'v_lshl_add_u64 {vr(VTT,2)}, s[{sX0}:{sX0+1}], 0, {vr(VTB,2)}')
        a.vm(f'global_load_lds_dwordx4 {vr(VTT,2)}, off', ('d', q))
    def f1(a): a.vm(f'global_load_lds_dwordx4 {vr(VTT,2)}, off offset:1024', ('d', q))
    return [f0, f1]
def dma_alt(bit, ifset, ifclr, cond=None):
    def f0(a):
        l1 = a.label('DA'); l2 = a.label('DB')
        if not ifclr:
            brole(a, bit, l1, False); s0 = a.snap()
            for f in ifset: f(a)
            a(f'{l1}:'); a.merge(s0, a.snap()); return
        brole(a, bit, l1)
        s0 = a.snap()
        if ifclr:
            for f in ifclr: f(a)
        s1 = a.snap()
        if ifset:
            a(f's_branch {l2}\n{l1}:'); a.restore(s0)
            for f in ifset: f(a)
            a(f'{l2}:'); a.merge(s1, a.snap())
        else:
            a(f'{l1}:'); a.merge(s0, s1)
    return [f0, lambda a: None]
GORD = [1,2,3,4,0,5,6,7,8]; GE = [1,2,3,0,5,4,6,7,8]
class _EO:
    def __getitem__(self, i):
        L = [(6,0),(1,1),(7,0),(2,1),(3,1),(4,1),(0,1),(5,1),(6,1),(7,1),(8,1)]; L.insert(Cfg.e8, (8,0)); return L[i]
EORD = _EO()
def NT(b): return 'nt' if Cfg.nt & b else ''
def w1p(q): return dma_buf(q, SW1, VA1, VB1, sO1 + q % 9, 128*(q//9), NT(4))
def w2p(q, g, lam): return dma_buf(q, SW2, VA2, VB2, sO2 + g, 128*lam)
sSV, sFP, sL9 = 46, 54, 10
def plan(q, role=None):
    if q < 27 and role == 'N': return []
    if q < 9 and role == 'D': return dma_tab(q, sreg=sO2+q)
    if q < 45: return w1p(q)
    if q < 72:
        assert role
        if role == 'O':
            return w2p(q, GORD[(q-45)//2], 4 + 2*((q-45) % 2)) if q < 63 else w2p(q, GORD[q-63], 5)
        if q < 51: return w2p(q, GE[q-45], 0)
        if q < 54: return dma_tab(q, TABF_SZ + TABG_SZ + 8192*(q-51))
        if q < 57: return dma_buf(q, SWS, VL16, VL16, sSV, 8192*(q-54), 'sc1 ' + NT(1))
        if q < 60: return []
        return w2p(q, *EORD[q-60])
    if q < 90: return w2p(q, GORD[(q-72) % 9], 2 + (q-72)//9)
    k = q - 90
    if k < 3: return dma_tab(q, 8192*k)
    if k < 9:
        pp = dma_buf(q, SWS, VL16, VL16, sFP, 2048*(k-3), 'sc1')
        if role == 'P': return pp
        def f(a):
            l1 = a.label('DA'); l2 = a.label('DB')
            a(f's_cmp_lg_u32 s11, 0\ns_cbranch_scc1 {l1}')
            for g in pp: g(a)
            a(f'{l2}:')
            t = E(); t(f'{l1}:')
            for g in dma_tab(q, 24576 - 6144 + 2048*(k-3)): g(t)
            t(f's_branch {l2}'); a.ool += t.l
        return [f]
    return dma_tab(q, 8192*k - 36864)

def bias_ops(acc, job): return [LD(f'ds_read_b128 {vr(acc+4*q)}, v{VBI} offset:{256*job + 32*q}', 'bias') for q in range(8)]
def bias_reads(a, acc, job):
    for q in range(8): a.lds(f'ds_read_b128 {vr(acc+4*q)}, v{VBI} offset:{256*job + 32*q}', 'bias')

def run(a, q0, npc, kind, mf, fills, nxt='tr', nextbias=None, norm=False, events=None, role=None, pause=None):
    events = events or {}
    N = 4*npc; n0 = 4*q0
    dq = []
    fs = [[ops, s, e, 0, 0, sum(c for c, _ in ops)] for ops, s, e in fills]
    for i in range(N):
        n = n0 + i; q = q0 + i//4; kk = i % 4
        j = i + PF; qn = q0 + j//4
        k2 = kind if j < N else nxt
        r = rd_ops(k2, qn, j % 4, n + PF) if k2 else []
        fb = (n % NB) * 8
        if kk == 0:
            for qq in events.get(('dma0', q), []) + [q + 12] + events.get(('dma', q), []): dq += plan(qq, role)
        paused = pause and pause[0] <= i//4 < pause[0] + pause[1]
        for h in range(2):
            gap = 2*i + h
            if h == 0 and kk == 0: stamp(a, f'q{q}')
            stamp(a, f'g{q0}_{gap}')
            for f in events.get(('pre', gap), []): f(a)
            if h == 0: a.need(('f', n), *(['bias'] if i == 0 else []), *([('f', n+1)] if Cfg.w2k and i % 2 == 0 and q < Cfg.w2k else []))
            acc, op, zero = mf(i//4, kk, h)
            d = vr(acc, 16) if acc >= 0 else ar(-acc, 16); c = '0' if zero else d
            if kind == 'dft': a(f'{M} {d}, {op}, {ar(fb+4*h)}, {c}')
            else:             a(f'{M} {d}, {ar(fb+4*h)}, {op}, {c}')
            if h == 0 and j % 12 == 0 and k2 and (4*q0) % 12 == 0:
                a.vneed(('d', qn), ('d', qn+1), ('d', qn+2), *events.get(('bar', qn), [])); a('s_barrier')
            if h == 0 and j == N and nextbias is not None:
                assert all(f[3] == len(f[0]) for f in fs)
                bias_reads(a, *nextbias)
            m = len(r)//2
            for ins, t in r[h*m:(h+1)*m]: a.lds(ins, t)
            if dq and not paused and ((h == 1 and (kk % 2 == 0 or len(dq) > 2)) or (len(dq) > N - i - 1)): dq.pop(0)(a)
            if norm and i//2 + 1 < 18:
                emit(a, norm_ops(i//2 + 1)[6*(gap % 4):6*(gap % 4)+6])
            for f in fs:
                if gap >= f[1]:
                    target = f[5] * min(1.0, (gap - f[1] + 1) / (f[2] - f[1]))
                    while f[3] < len(f[0]) and f[4] + f[0][f[3]][0]/2 <= target:
                        f[0][f[3]][1](a); f[4] += f[0][f[3]][0]; f[3] += 1
            for f in events.get(gap, []): f(a)
    assert all(f[3] == len(f[0]) for f in fs) and not dq
def only(bit, f):
    def g(a):
        l = a.label('ON'); brole(a, bit, l, False); s0 = a.snap()
        f(a); a(f'{l}:'); a.merge(s0, a.snap())
    return g
def masked(test, f):
    def g(a):
        a(test + '\ns_cselect_b64 exec, -1, 0'); s0 = a.snap()
        f(a); a('s_mov_b64 exec, -1'); a.merge(s0, a.snap())
    return g
def rolem(bit, f): return masked(f's_bitcmp1_b32 s{sROLE}, {bit}', f)
def rolem_ops(bit, ops, n): return [FN(rolem(bit, lambda a, x=ops[i:i+n]: emit(a, x))) for i in range(0, len(ops), n)]
def only_ops(bit, ops, n):
    return [FN(only(bit, lambda a, x=ops[i:i+n]: emit(a, x))) for i in range(0, len(ops), n)]
def first_reads(a, kind, q):
    for ks in range(PF):
        for ins, t in rd_ops(kind, q, ks, 4*q + ks): a.lds(ins, t)
def interleave(a, mf, ops, start=0):
    n = len(mf) - start; k = 0
    for i, x in enumerate(mf):
        a(x)
        if i >= start:
            t = len(ops) * (i - start + 1) // n
            while k < t: ops[k][1](a); k += 1

def twiddle_ops(dst, t, sym, sb, scale=None):
    o = [f'v_and_b32 v{t}, 31, v{VLANE}', f'v_lshrrev_b32 v{t+1}, 5, v{VLANE}']
    if sym == 'fwd':
        o += [f'v_lshlrev_b32 v{t+1}, 8, v{t+1}', f'v_add_u32 v{t+1}, s{sb}, v{t+1}', f'v_mul_u32_u24 v{t+1}, v{t+1}, v{t}', f'v_lshlrev_b32 v{t}, 6, v{t}']
        mult = lambda tt, e: 16*tt + (e & 3) + 8*(e >> 2)
    else:
        o += [f'v_lshlrev_b32 v{t}, 6, v{t}', f'v_add_u32 v{t}, s{sb}, v{t}', f'v_lshlrev_b32 v{t+1}, 3, v{t+1}', f'v_mul_u32_u24 v{t+1}, v{t+1}, v{t}']
        mult = lambda tt, e: 16*tt + e
    for tt in range(2):
        for e in range(0, 8, 2):
            for i in range(2): o.append(f'v_mad_u32_u24 v{t+2+i}, v{t}, {mult(tt, e+i)}, v{t+1}')
            for i in range(2): o.append(f'v_and_b32 v{t+2+i}, 0x7ff, v{t+2+i}')
            for i in range(2): o.append(f'v_cvt_f32_u32 v{t+2+i}, v{t+2+i}')
            for i in range(2): o.append(f'v_mul_f32 v{t+2+i}, {f2u(1/2048):#x}, v{t+2+i}')
            for i in range(2): o.append(f'v_cos_f32 v{t+4+i}, v{t+2+i}')
            for i in range(2): o.append(f'v_sin_f32 v{t+2+i}, v{t+2+i}')
            if scale:
                for i in (2,3,0,1): o.append(f'v_mul_f32 v{t+2+i}, {f2u(scale):#x}, v{t+2+i}')
            d = 4*tt + e//2
            o += [f'v_cvt_pk_bf16_f32 v{t+4}, v{t+4}, v{t+5}', f'v_cvt_pk_bf16_f32 v{t+2}, v{t+2}, v{t+3}', f'v_accvgpr_write_b32 a{dst+d}, v{t+4}',
                  f'v_xor_b32 v{t+3}, 0x80008000, v{t+2}', f'v_accvgpr_write_b32 a{dst+8+d}, v{t+2}', f'v_accvgpr_write_b32 a{dst+16+d}, v{t+3}']
    return [V(x) for x in o]

def prologue(a):
    rx = Cfg.rx; cx = 32//rx; nxc = 16//cx
    a(f"""s_cmpk_ge_u32 s2, 256
    s_cbranch_scc1 L_end
    s_load_dwordx16 s[44:59], s[0:1], 0
    s_load_dwordx4 s[60:63], s[0:1], 64
    s_load_dwordx2 s[64:65], s[0:1], 80
    s_memrealtime s[66:67]""")
    stamp(a, 0)
    a(f"""s_getpc_b64 s[100:101]
    L_pcref:
    s_lshr_b32 s97, s2, 3
    s_mul_i32 s97, s97, CODE_LINES*128
    v_lshlrev_b32 v{VPO}, 7, v0
    v_add_u32 v{VPO}, s97, v{VPO}
    v_min_u32 v{VPO}, L_codeend-L_pcref-4, v{VPO}
    v_mov_b32 v{VPO+1}, 0
    v_lshl_add_u64 {vr(VPO,2)}, s[100:101], 0, {vr(VPO,2)}
    v_cmp_gt_u32 vcc, CODE_LINES, v0
    s_and_saveexec_b64 s[98:99], vcc
    s_cbranch_execz L_noct
    global_load_dword a255, {vr(VPO,2)}, off
    L_noct:
    s_mov_b64 exec, -1
    s_and_b32 s96, s2, 7
    s_lshr_b32 s97, s2, 3
    s_and_b32 s{sC}, s96, {nxc-1}
    s_mul_i32 s{sC}, s{sC}, {cx}
    s_and_b32 s98, s97, {cx-1}
    s_add_u32 s{sC}, s{sC}, s98
    s_lshr_b32 s{sI}, s96, {nxc.bit_length()-1}
    s_mul_i32 s{sI}, s{sI}, {rx}
    s_lshr_b32 s98, s97, {cx.bit_length()-1}
    s_add_u32 s{sI}, s{sI}, s98
    v_lshrrev_b32 v1, 6, v0
    v_and_b32 v{VLANE}, 63, v0
    v_mov_b32 v{VTT}, v0
    v_readfirstlane_b32 s{sWV}, v1
    v_lshlrev_b32 v{VL16}, 4, v{VLANE}
    v_lshrrev_b32 v1, 3, v{VLANE}
    v_and_b32 v3, 7, v{VLANE}
    v_lshrrev_b32 v4, 1, v1
    v_xor_b32 v3, v3, v4
    s_mov_b32 s96, 73728
    v_mul_lo_u32 v1, v1, s96
    v_lshl_add_u32 v144, v3, 4, v1
    v_xor_b32 v145, 64, v144
    v_add_u32 v145, {8*73728-1024}, v145
    v_add_u32 v146, {16*73728}, v144
    v_add_u32 v147, {16*73728}, v145
    s_lshl_b32 s{sB}, s{sI}, 2
    s_add_u32 s{sB}, s{sB}, s{sWV}
    s_mul_i32 s96, s{sI}, {Cfg.rota}
    s_lshr_b32 s97, s{sC}, {Cfg.rots}
    s_mul_i32 s97, s97, {Cfg.rotb}
    s_add_u32 s96, s96, s97
    s_mul_i32 s97, s96, 7282
    s_lshr_b32 s97, s97, 16
    s_mul_i32 s97, s97, 9
    s_sub_u32 s96, s96, s97         ; rot
    s_mul_i32 s3, s{sB}, 1152
    s_lshl_b32 s99, s{sWV}, 11
    s_getpc_b64 s[100:101]
    s_add_u32 s100, s100, tabF@rel32@lo+4
    s_addc_u32 s101, s101, tabF@rel32@hi+12
    s_mov_b32 s{SX+2}, {2048*1152}
    s_mov_b32 s{SX+3}, 0x20000
    s_lshl_b32 s{sT}, s96, 7
    s_add_u32 s{sT}, s{sT}, s3
    s_mov_b32 m0, s99
    s_waitcnt lgkmcnt(0)
    s_mov_b32 s{SX}, s44
    s_and_b32 s{SX+1}, s45, 0xffff""")
    stamp(a, 'ka')
    if Cfg.wt:
        a(f'''s_lshr_b32 s97, s{sC}, 1
        s_add_u32 s98, s97, s{sI}
        s_and_b32 s98, s98, 7
        s_bitcmp1_b32 s{sC}, 0
        s_cselect_b32 s98, s98, 0
        s_cmp_lt_u32 s98, 5
        s_cbranch_scc1 L_nowt
        s_sub_u32 s98, s98, 5
        s_lshl_b32 s70, s98, 6
        s_add_u32 s70, s70, s{sB}
        s_lshl_b32 s98, s98, 2
        s_add_u32 s98, s98, s{sWV}
        s_mul_i32 s98, s98, {48*9216}
        s_mul_i32 s97, s97, 1152
        s_add_u32 s98, s98, s97
        v_mul_u32_u24 v3, 9216, v{VLANE}
        v_add_u32 v3, s98, v3
        s_mul_i32 s70, s70, {15*128}
        v_lshlrev_b32 v{VPO}, 7, v{VLANE}
        v_add_u32 v{VPO}, s70, v{VPO}
        v_mov_b32 v{VPO+1}, 0
        v_lshl_add_u64 {vr(VPO,2)}, s[100:101], 0, {vr(VPO,2)}
        v_lshlrev_b32 v1, 21, v{VLANE}
        s_bfm_b64 exec, 48, 0
        global_load_dword a255, v3, s[52:53]
        s_bfm_b64 exec, 15, 0
        global_load_dword a255, {vr(VPO,2)}, off
        s_mov_b64 exec, 7
        global_load_dword a255, v1, s[56:57]
        s_mov_b64 exec, 1''')
        for r in (54, 58, 46, 48, 62): a(f'global_load_dword a255, v1, s[{r}:{r+1}] offset:128')
        a(f'''s_mov_b64 exec, -1
        s_lshr_b32 s97, s{sC}, 1
        s_add_u32 s98, s97, s{sI}
        s_and_b32 s98, s98, 7
        s_sub_u32 s98, s98, 5
        s_and_b32 s97, s97, 1
        s_mul_i32 s97, s97, 3
        s_add_u32 s98, s98, s97
        s_lshl_b32 s98, s98, 2
        s_add_u32 s98, s98, s{sWV}
        s_mul_i32 s98, s98, {Cfg.tn*128}
        s_lshr_b32 s97, s{sI}, 3
        s_mul_i32 s97, s97, {5184*128}
        s_add_u32 s98, s98, s97
        s_lshr_b32 s97, s{sC}, 2
        s_mul_i32 s97, s97, {2*5184*128}
        s_add_u32 s98, s98, s97
        v_lshlrev_b32 v3, 7, v{VLANE}
        v_add_u32 v3, s98, v3
        s_bfm_b64 exec, 54, 0''')
        for k in range(Cfg.te): a(f'global_load_dword a255, v3, s[56:57]\nv_add_u32 v3, {54*128}, v3')
        a('s_mov_b64 exec, -1\nL_nowt:')
    for o in range(4):
        if o == 2: a('s_add_u32 m0, s99, 8192\ns_nop 0')
        a.vm(f'buffer_load_dwordx4 v{144+o}, {S(SX)}, s{sT} offen offset:{1024*(o%2)} lds', ('x', 0))
    a(f's_add_u32 s97, s96, 1\ns_cmp_eq_u32 s97, 9\ns_cselect_b32 s97, 0, s97\ns_lshl_b32 s{sT}, s97, 7\ns_add_u32 s{sT}, s{sT}, s3')
    for o in range(4):
        if o % 2 == 0: a(f's_add_u32 m0, s99, {16384 + 8192*(o//2)}\ns_nop 0')
        a.vm(f'buffer_load_dwordx4 v{144+o}, {S(SX)}, s{sT} offen offset:{1024*(o%2)} lds', ('x', 1))
    srd(a, SDBG, 62, 256); srd(a, SWS, 64, WS_SZ)
    srd(a, SWR, 46, 2048*578); srd(a, SWI, 48, 2048*578); srd(a, SW1, 52, 576*9216); srd(a, SB, 54, 9216)
    srd(a, SW2, 56, 4608*1152); srd(a, SOUT, 60, 2048*1152)
    a(f's_mov_b64 s[0:1], s[58:59]\ns_mov_b32 s{sW2K}, s99')
    XV = 144
    def xline(L):
        a(f's_lshl_b32 s{sT}, s{sO2+L}, 7\ns_add_u32 s{sT}, s{sT}, s3')
        for o in range(4):
            if o % 2 == 0: a(f's_add_u32 m0, s{sW2K}, {16384*L + 8192*(o//2)}\ns_nop 0')
            a.vm(f'buffer_load_dwordx4 v{XV+o}, {S(SX)}, s{sT} offen offset:{1024*(o%2)} lds', ('x', L))
    for L in range(9):
        a(f's_mov_b32 s{sO2+L}, s96')
        if 1 < L < Cfg.xa: xline(L)
        if L < 8: a('s_add_u32 s96, s96, 1\ns_cmp_eq_u32 s96, 9\ns_cselect_b32 s96, 0, s96')
    stamp(a, 'xi')
    nx = [Cfg.xa, 0]
    def xnext():
        if nx[1] < Cfg.xe: xline(nx[0]); nx[0] += 1; nx[1] += 1
    a(f'''s_or_b32 s66, s66, 1
    s_add_u32 s97, s2, s{sWV}
    s_cmp_lg_u32 s97, 0
    s_cbranch_scc1 L_nonon
    v_mov_b32 v1, s66
    s_mov_b64 exec, 1
    buffer_store_dword v1, off, {S(SDBG)}, 0 sc1
    s_mov_b64 exec, -1
    L_nonon:
    s_lshr_b32 s96, s{sC}, 1            ; p
    s_mul_i32 s{sNON}, s{sI}, {Cfg.rr}
    s_add_u32 s{sNON}, s{sNON}, s96
    s_and_b32 s{sNON}, s{sNON}, 7       ; rho
    s_and_b32 s{sROLE}, s{sC}, 1
    s_cmp_lt_u32 s{sNON}, 5
    s_cselect_b32 s97, s{sROLE}, 0
    s_lshl_b32 s97, s97, {R_DFT}
    s_xor_b32 s98, s{sROLE}, 1
    s_cmp_lt_u32 s{sNON}, 6
    s_cselect_b32 s98, s98, 0
    s_cmp_lt_u32 s{sWV}, 3
    s_cselect_b32 s99, {(1<<R_SMID)|(1<<R_UNIT)}, {1<<R_SMID}
    s_mul_i32 s98, s98, s99
    s_cselect_b32 s99, {(1<<R_FIN)|(1<<R_FINW)}, {1<<R_FIN}
    s_or_b32 s97, s97, s98
    s_and_b32 s98, s{sC}, 3
    s_cmp_lg_u32 s98, 2
    s_cselect_b32 s99, s99, 0
    s_or_b32 s97, s97, s99
    s_lshl_b32 s98, s{sROLE}, 8
    s_or_b32 s{sROLE}, s{sROLE}, s97
    s_lshl_b32 s97, s{sNON}, 8
    s_or_b32 s{sROLE}, s{sROLE}, s97
    s_mul_i32 s97, s96, 576
    s_add_u32 s97, s97, s98                ; f_base
    v_add_u32 v1, s97, v{VTT}
    v_lshlrev_b32 v1, 1, v1''')
    a(f'v_mov_b32 v{HO+15}, v1\nv_lshlrev_b32 v{HO+11}, 2, v{VTT}')
    if not Cfg.xo: xnext()
    def bloads():
        a.vm(f'buffer_load_ushort v{HO+12}, v{HO+15}, {S(SB)}, 0 offen', 'b1')
        a.vm(f'buffer_load_ushort v{HO+13}, v{HO+15}, {S(SB)}, 0 offen offset:512', 'b1')
        a(f's_mov_b32 s{SB}, s0\ns_and_b32 s{SB+1}, s1, 0xffff\ns_mov_b32 s{SB+2}, 1152\ns_lshl_b32 s98, s{sWV}, 8\ns_add_u32 m0, s98, {B2_LDS}\ns_nop 0')
        a.vm(f'buffer_load_dword v{HO+11}, {S(SB)}, 0 offen lds', 'b1')
        a.vm(f'buffer_load_dword v{HO+11}, {S(SB)}, 0 offen offset:1024 lds', 'b1')
        a(f's_mov_b32 s35, s{sNON}')
    a(f'''v_lshlrev_b32 v{HO+14}, 2, v{VTT}
    v_add_u32 v{HO+14}, {BIAS_LDS}, v{HO+14}
    s_mul_i32 s{sHS}, s{sB}, 288
    s_lshr_b32 s98, s97, 4
    s_add_u32 s{sHS}, s{sHS}, s98
    s_lshl_b32 s{sHS}, s{sHS}, 10
    s_lshl_b32 s97, s97, 1''')
    for g in range(9): a(f's_mul_i32 s{sO1+g}, s{sO2+g}, {64*9216}\ns_add_u32 s{sO1+g}, s{sO1+g}, s97')
    a(f's_mul_i32 s{sPS}, s{sNON}, 73728')
    a(f'''v_add_u32 v{VTB}, s{sW2K}, v{VL16}
    v_mov_b32 v{VTB+1}, 0
    v_lshl_add_u64 {vr(VTB,2)}, s[100:101], 0, {vr(VTB,2)}
    s_mov_b32 s{sX0+1}, 0
    s_lshl_b32 s{sFLG}, s{sB}, 4
    s_add_u32 s{sFLG}, s{sFLG}, s{sC}
    s_lshl_b32 s{sFLG}, s{sFLG}, 7
    s_add_u32 s{sFLG}, s{sFLG}, {FL_OFF}
    s_mov_b32 s{sP}, {Cfg.spin}
    s_mov_b32 s{sGC1}, {(h2(GC1) if Cfg.f16 else f2u(GC1)):#x}
    v_mov_b32 v{VC0}, {(h2(GC0) if Cfg.f16 else f2u(GC0)):#x}
    v_bfe_u32 v1, v{VLANE}, 3, 2            ; r
    v_lshrrev_b32 v3, 5, v{VLANE}           ; rho
    v_and_b32 v{VB1}, 2, v1
    v_lshlrev_b32 v{VB1}, 1, v{VB1}
    v_and_b32 v{VB2}, 7, v{VLANE}
    v_xor_b32 v{VB2}, v{VB2}, v{VB1}
    v_lshlrev_b32 v{VB2}, 4, v{VB2}
    v_lshl_add_u32 v1, v3, 3, v1            ; 8rho+r
    s_lshr_b32 s98, s{sWV}, 1
    s_lshl_b32 s98, s98, 5
    s_and_b32 s99, s{sWV}, 1
    s_add_u32 s98, s98, s99
    v_lshlrev_b32 v3, 1, v1
    v_add_u32 v3, s98, v3
    v_mul_u32_u24 v3, 9216, v3
    v_add_u32 v{VA1}, v3, v{VB2}
    v_add_u32 v{VB1}, {8*9216-1024}, v{VA1}
    s_lshl_b32 s98, s{sWV}, 4
    v_add_u32 v1, s98, v1
    v_mul_u32_u24 v1, 1152, v1
    v_add_u32 v{VA2}, v1, v{VB2}
    v_add_u32 v{VB2}, {4*1152-1024}, v{VA2}''')
    if not Cfg.xo: xnext()
    a(f'''v_lshrrev_b32 v1, 5, v{VLANE}
    v_lshlrev_b32 v{VBI}, 4, v1
    v_add_u32 v{VBI}, {BIAS_LDS}, v{VBI}
    v_bfe_u32 v3, v{VLANE}, 2, 2
    v_lshl_add_u32 v1, v1, 3, v3
    v_lshlrev_b32 v1, 7, v1
    v_and_b32 v3, 2, v3
    v_lshl_add_u32 v1, v3, 5, v1
    v_bfe_u32 v3, v{VLANE}, 4, 1
    v_lshl_add_u32 v1, v3, 5, v1
    v_and_b32 v3, 3, v{VLANE}
    v_lshl_add_u32 v{TA}, v3, 3, v1
    v_xor_b32 v{TA+1}, 64, v{TA}
    v_add_u32 v{TA+2}, 49152, v{TA}
    v_add_u32 v{TA+3}, 49152, v{TA+1}
    v_add_u32 v{TA+4}, 98304, v{TA}
    v_add_u32 v{TA+5}, 98304, v{TA+1}''')
    if not Cfg.xo: xnext()
    XA = HO
    a(f'''v_and_b32 v1, 15, v{VLANE}
    v_lshlrev_b32 v1, 7, v1
    v_bfe_u32 v3, v{VLANE}, 4, 1
    v_lshl_add_u32 v1, v3, 13, v1
    v_add_u32 v1, s{sW2K}, v1
    v_lshrrev_b32 v3, 5, v{VLANE}
    v_bfe_u32 v{XA}, v{VLANE}, 1, 3
    v_xor_b32 v3, v3, v{XA}
    v_lshl_add_u32 v{XA}, v3, 4, v1
    v_xor_b32 v{XA+1}, 32, v{XA}
    v_xor_b32 v{XA+2}, 64, v{XA}
    v_xor_b32 v{XA+3}, 96, v{XA}
    s_mov_b32 s{sT2}, 0x3f803f80''')
    smid_ids(a)
    a(f'''s_add_u32 s98, s96, s{sWV}
    s_cmp_eq_u32 s98, 4
    s_cselect_b32 s{sNON}, {1<<R_PATCH}, 0
    s_bitcmp1_b32 s{sROLE}, {R_UNIT}
    s_cselect_b32 s{sNON}, s{sNON}, 0
    s_or_b32 s{sROLE}, s{sROLE}, s{sNON}
    s_cmp_lt_u32 s98, 5
    s_cselect_b32 s{sNON}, 2, 0
    s_lshl_b32 s98, s98, 6
    s_add_u32 s{sNON}, s{sNON}, s98
    s_mul_i32 s99, s99, 578
    s_add_u32 s{sNON}, s{sNON}, s99
    v_lshrrev_b32 v3, 2, v{VLANE}
    v_mul_u32_u24 v3, 18496, v3
    v_and_b32 v1, 3, v{VLANE}
    v_lshl_add_u32 v3, v1, 4, v3''')
    a(f'''s_lshr_b32 s98, s2, 3
    s_lshl_b32 s98, s98, 2
    s_add_u32 s98, s98, s{sWV}
    s_lshr_b32 s99, s98, 1
    s_mul_i32 s99, s99, {9*9216}
    s_and_b32 s98, s98, 1
    s_mul_i32 s98, s98, 1152
    s_add_u32 s99, s99, s98
    s_and_b32 s98, s{sC}, {16-cx}
    s_mul_i32 s98, s98, 576
    s_add_u32 s99, s99, s98
    v_mul_u32_u24 v1, 43, v{VLANE}
    v_lshrrev_b32 v1, 8, v1
    v_mul_u32_u24 v{VPO}, 6, v1
    v_sub_u32 v{VPO}, v{VLANE}, v{VPO}
    v_add_u32 v{VPO+1}, 1, v{VPO}
    v_lshrrev_b32 v{VPO+1}, 2, v{VPO+1}
    v_add3_u32 v{VPO}, v{VPO}, v{VPO+1}, 2
    v_mul_u32_u24 v1, 9216, v1
    v_lshl_add_u32 v1, v{VPO}, 7, v1
    v_add_u32 v{VPO}, s99, v1''')
    for i in range(8): a(f'v_mov_b32 v{TMP+i}, 0')
    def stats(L):
        for q in range(4):
            a.need(('x', 4*L+q))
            for i in range(4):
                r = XF + 16*L + 4*q + i
                a(f'v_dot2c_f32_bf16 v{TMP+i}, s{sT2}, v{r}\nv_dot2c_f32_bf16 v{TMP+4+i}, v{r}, v{r}')
    def first_piece(q):
        if q < 9: return dma_alt(R_ODD, dma_alt(R_DFT, dma_tab(q, sreg=sO2+q), None), w1p(q))
        return w1p(q)
    stamp(a, 'w0')
    if Cfg.warm:
        brole(a, R_ODD, 'L_wo')
        a('; WARM 1\ns_branch L_main\nL_wo:\n; WARM 2')
    a('s_branch L_main\n.p2align 12\nL_main:')
    npc0 = 0
    if Cfg.xo:
        while nx[1] < Cfg.xe: xnext()
    for L in range(10):
        if L < 9:
            stamp(a, f'xa{L}')
            a.vneed(('x', L))
            stamp(a, f'xb{L}')
            if L in (4, 8):
                for q in range(4): a(f'v_add_u32 v{XA+q}, 0x10000, v{XA+q}')
            for q in range(4): a.lds(f'ds_read_b128 {vr(XF+16*L+4*q)}, v{XA+q} offset:{16384*(L%4)}', ('x', 4*L+q))
        if L == 9: stamp(a, 1)
        if nx[0] < 9:
            xline(nx[0]); nx[0] += 1
            if nx[0] == 9: bloads()
        elif L >= 10 - Cfg.fp:
            for q in (npc0, npc0+1):
                for f in first_piece(q): f(a)
            npc0 += 2
        if L: stats(L-1)
    rest = [FN(f) for q in range(npc0, Cfg.np) for f in first_piece(q)]
    rest += [VM(f'buffer_load_dword v{VFL}, off, {S(SDBG)}, 0 sc1', 'non')]
    T = TMP
    a(f'''s_nop 2
    v_add_f32 v{T}, v{T}, v{T+1}
    v_add_f32 v{T+2}, v{T+2}, v{T+3}
    v_add_f32 v{T+4}, v{T+4}, v{T+5}
    v_add_f32 v{T+6}, v{T+6}, v{T+7}
    v_add_f32 v{T}, v{T}, v{T+2}
    v_add_f32 v{T+4}, v{T+4}, v{T+6}
    v_mov_b32 v{T+1}, v{T}
    v_mov_b32 v{T+5}, v{T+4}
    s_nop 1
    v_permlane32_swap_b32 v{T}, v{T+1}
    v_permlane32_swap_b32 v{T+4}, v{T+5}
    s_nop 0
    v_add_f32 v{T}, v{T}, v{T+1}
    v_add_f32 v{T+4}, v{T+4}, v{T+5}
    v_mul_f32 v{T}, {f2u(1/576):#x}, v{T}
    v_mul_f32 v{T+4}, {f2u(1/576):#x}, v{T+4}
    v_fma_f32 v{T+4}, -v{T}, v{T}, v{T+4}
    v_max_f32 v{T+4}, 0, v{T+4}
    v_cvt_pk_bf16_f32 v{T}, v{T}, v{T+4}
    v_and_b32 v{T+4}, 0xffff0000, v{T}
    v_lshlrev_b32 v{T}, 16, v{T}
    v_add_f32 v{T+4}, {f2u(1e-5):#x}, v{T+4}
    v_cvt_pk_bf16_f32 v{T+4}, v{T+4}, v{T+4}
    v_and_b32 v{T+4}, 0xffff0000, v{T+4}
    v_sqrt_f32 v{T+4}, v{T+4}
    s_nop 0
    v_cvt_pk_bf16_f32 v{T+4}, v{T+4}, v{T+4}
    v_and_b32 v{T+4}, 0xffff0000, v{T+4}
    v_rcp_f32 v{T+4}, v{T+4}
    s_nop 0
    v_cvt_pk_bf16_f32 v{T+4}, v{T+4}, v{T+4}
    v_and_b32 v{T+5}, 0xffff0000, v{T+4}
    v_lshrrev_b32 v{T+4}, 16, v{T+4}
    v_mul_f32 v{T}, v{T}, v{T+5}
    v_sub_f32 v{T}, 0, v{T}''')
    if Cfg.tn < 216:
        tall = w2touch(0, Cfg.tn*24, -(-(5184 - Cfg.tn*24)//128))
        rest.append(FN(tall))
    def w1all(a):
        a('s_bfm_b64 exec, 54, 0')
        a.vm(f'buffer_load_dword a255, v{VPO}, {S(SW1)}, 0 offen')
        a('s_mov_b64 exec, -1')
    if Cfg.tw1: rest.insert(len(rest) - (1 if Cfg.tn < 216 else 0), FN(w1all))
    def wall(a):
        a(f'''s_lshl_b32 s69, s2, 1
        s_lshr_b32 s3, s{sWV}, 1
        s_add_u32 s69, s69, s3
        s_min_u32 s69, s69, 486
        s_mul_i32 s69, s69, {19*128}
        v_lshlrev_b32 v{VTT}, 7, v{VLANE}
        s_bitcmp1_b32 s{sWV}, 0
        s_cselect_b64 exec, 0x7ffff, 0''')
        a(f'buffer_load_dword a255, v{VTT}, {S(SWR)}, s69 offen')
        a('s_cselect_b64 exec, 0, 0x7ffff')
        a.vm(f'buffer_load_dword a255, v{VTT}, {S(SWI)}, s69 offen')
        a('s_mov_b64 exec, -1')
    rest.insert(len(rest) - (1 if Cfg.tn < 216 else 0), FN(wall))
    a.vneed('b1')
    a(f'v_lshlrev_b32 v{HO+12}, 16, v{HO+12}\nv_lshlrev_b32 v{HO+13}, 16, v{HO+13}')
    a.lds(f'ds_write_b32 v{HO+14}, v{HO+12}', 'bw'); a.lds(f'ds_write_b32 v{HO+14}, v{HO+13} offset:1024', 'bw')
    if Cfg.normin:
        emit(a, rest); emit(a, norm_ops(0))
    else:
        stamp(a, 'n0')
        a('.p2align 3')
        rest = [FN(lambda a, f=f: (f(a), a('.p2align 3'))) for _, f in rest]
        nt = 1 + (1 if Cfg.tn < 216 else 0) + (1 if Cfg.tw1 else 0)
        tch = rest[-nt:]; rest = rest[:-nt]
        global BATCH2
        BATCH2 = []
        if Cfg.b2: BATCH2 = [wall] + ([tall] if Cfg.tn < 216 else []); tch = tch[:1]
        N = [o for u in range(18) for o in norm_ops(u)]
        k1 = len(N)*Cfg.t1//100; k2 = len(N)*Cfg.t2//100; ne = 2*Cfg.ne
        emit(a, mix(N[:k1], rest[:ne] + tch) + N[k1:k2] + mix(N[k2:], rest[ne:]))
def late_setup():
    a = E()
    a(f'''s_lshr_b32 s96, s{sC}, 1
    s_and_b32 s98, s{sC}, 1
    s_mul_i32 s{sO2}, s96, {576*1152}
    s_lshl_b32 s99, s98, 8
    s_add_u32 s{sO2}, s{sO2}, s99
    s_mul_i32 s99, s98, {256*1152}''')
    for g in range(1, 9):
        a(f's_add_u32 s{sO2+g}, s{sO2}, {64*1152*g}\ns_{"add" if g < 5 else "sub"}_u32 s{sO2+g}, s{sO2+g}, s99')
    a(f'''s_mul_i32 s{sPS}, s{sB}, 18
    s_lshl_b32 s98, s98, 2
    s_add_u32 s{sPS}, s{sPS}, s98
    s_lshl_b32 s{sPS}, s{sPS}, 3
    s_add_u32 s{sPS}, s{sPS}, s96
    s_lshl_b32 s{sPS}, s{sPS}, 11
    s_add_u32 s{sPS}, s{sPS}, {PART_OFF}
    s_and_b32 s98, s{sC}, 1
    s_mul_i32 s32, s{sB}, 288
    s_mul_i32 s99, s96, 36
    s_add_u32 s32, s32, s99
    s_lshl_b32 s32, s32, 10
    s_lshl_b32 s99, s98, 14
    s_sub_u32 s33, s32, s99
    s_xor_b32 s34, s{sFLG}, 128''')
    return sops('\n'.join(a.l))
def w2touch(other, first, per, sub=0):
    def f(a):
        a(f"""s_lshr_b32 s3, s2, 3
        s_lshl_b32 s3, s3, 2
        s_add_u32 s3, s3, s{sWV}
        s_mul_i32 s3, s3, {per*128}
        s_lshr_b32 s96, s{sI}, 3
        s_xor_b32 s96, s96, {other}
        s_mul_i32 s96, s96, {5184*128}
        s_add_u32 s3, s3, s96
        s_lshr_b32 s96, s{sC}, 2
        s_mul_i32 s96, s96, {2*5184*128}
        s_add_u32 s3, s3, s96
        s_add_u32 s3, s3, {first*128}
        v_lshlrev_b32 v{VTT}, 7, v{VLANE}
        s_bfm_b64 exec, {per}, 0""")
        a.vm(f'buffer_load_dword a255, v{VTT}, {S(SW2)}, s3 offen')
        a('s_mov_b64 exec, -1')
    return f
def tabtouch(a):
    a(f"""s_lshr_b32 s96, s2, 3
    s_lshl_b32 s96, s96, 2
    s_add_u32 s96, s96, s{sWV}
    s_min_u32 s96, s96, 125
    s_mul_i32 s96, s96, {22*128}
    s_add_u32 s96, s96, {TABF_SZ}
    s_sub_u32 s96, s96, s{sW2K}
    v_mul_u32_u24 v{VTT}, 112, v{VLANE}
    v_mov_b32 v{VTT+1}, 0
    v_lshl_add_u64 {vr(VTT,2)}, {vr(VTT,2)}, 0, {vr(VTB,2)}
    v_lshl_add_u64 {vr(VTT,2)}, s[96:97], 0, {vr(VTT,2)}
    s_bfm_b64 exec, 22, 0""")
    a.vm(f'global_load_dword a255, {vr(VTT,2)}, off')
    a('s_mov_b64 exec, -1')
def smid_ids(a):
    a(f'''s_bfe_u32 s96, s{sROLE}, 0x30008
    s_cmp_ge_u32 s96, 3
    s_cselect_b32 s98, 1, 0
    s_lshl_b32 s99, s{sI}, 1
    s_add_u32 s99, s99, s98
    s_mul_i32 s98, s98, 3
    s_sub_u32 s96, s96, s98
    s_mul_i32 s96, s96, 3''')
WA = 216
PSR = 20
def wload(k):
    def f(a):
        a(f's_add_u32 s3, s35, {16*18496*(k//2)}')
        a.vm(f'buffer_load_dwordx4 {ar(WA+4*k)}, v3, {S(SWI if k % 2 else SWR)}, s3 offen {NT(8)}', 'wl')
    return f
def wpatch(a):
    a(f'v_mul_u32_u24 v1, 18496, v{VLANE}')
    a.vm(f'buffer_load_ushort a253, v1, {S(SWR)}, s35 offen offset:{576-258}', 'wl')
    a.vm(f'buffer_load_ushort a254, v1, {S(SWI)}, s35 offen offset:{576-258}', 'wl')

def touch_ops():
    o = [V(f"""s_bfe_u32 s98, s{sROLE}, 0x30008
    s_sub_u32 s98, s98, 5
    s_lshl_b32 s98, s98, 6
    s_add_u32 s98, s98, s{sB}
    s_bfe_u32 s99, s{sROLE}, 0x30008
    s_sub_u32 s99, s99, 5
    s_bfe_u32 s96, s{sC}, 0x10001
    s_mul_i32 s96, s96, 3
    s_add_u32 s99, s99, s96
    s_lshl_b32 s99, s99, 2
    s_add_u32 s99, s99, s{sWV}
    s_mul_i32 s99, s99, {Cfg.tn*128}
    s_lshr_b32 s96, s{sI}, 3
    s_mul_i32 s96, s96, {5184*128}
    s_add_u32 s99, s99, s96
    s_lshr_b32 s96, s{sC}, 2
    s_mul_i32 s96, s96, {2*5184*128}
    s_add_u32 s99, s99, s96
    v_lshlrev_b32 v1, 7, v{VLANE}""")]
    for k in range(Cfg.tn//54):
        if k < Cfg.te: o.append(V(f's_add_u32 s99, s99, {54*128}')); continue
        def f(a, k=k):
            a('s_bfm_b64 exec, 54, 0')
            a.vm(f'buffer_load_dword a255, v1, {S(SW2)}, s99 offen')
            a(f's_mov_b64 exec, -1\ns_add_u32 s99, s99, {54*128}')
        o.append(FN(f))
    def g(a):
        a(f"""s_mul_i32 s99, s98, {15*128}
        s_add_u32 s99, s99, {TABF_SZ}
        v_add_u32 v{VTT}, s99, v1
        v_min_u32 v{VTT}, {TABF_SZ+TABG_SZ+TAB64_SZ-4}, v{VTT}
        v_mov_b32 v{VTT+1}, 0
        v_lshl_add_u64 {vr(VTT,2)}, s[100:101], 0, {vr(VTT,2)}
        s_bfm_b64 exec, 15, 0""")
        a.vm(f'global_load_dword a255, {vr(VTT,2)}, off')
        a('s_mov_b64 exec, -1')
    return o + [FN(g)]

def getnonce(a):
    lc = a.label('NC'); ls = a.label('NS'); lk = a.label('NK')
    a.vneed('non')
    a(f'{lc}:\nv_readfirstlane_b32 s{sNON}, v{VFL}\ns_nop 3\ns_cmp_eq_u32 s{sNON}, 0\ns_cbranch_scc1 {ls}\n{lk}:')
    a.ool += [f'{ls}:', f' s_sub_u32 s{sP}, s{sP}, 1', f' s_cbranch_scc1 {ls}_x', f' s_sleep {Cfg.slp}', f' buffer_load_dword v{VFL}, off, {S(SDBG)}, 0 sc1', ' s_waitcnt vmcnt(0)', f' s_branch {lc}',
              f'{ls}_x:', f' s_mov_b32 s{sP}, 0', f' s_branch {lk}']

def xpose_setup(a, vw, vrd, vg, base_imm, rowstride, flip=None):
    a(f"""v_and_b32 v{vw}, 15, v{VLANE}
    v_lshlrev_b32 v{vw}, 7, v{vw}
    v_bfe_u32 v{vrd}, v{VLANE}, 4, 1
    v_lshl_add_u32 v{vw}, v{vrd}, 13, v{vw}
    v_lshrrev_b32 v{vrd}, 5, v{VLANE}
    v_lshlrev_b32 v{vrd}, 2, v{vrd}
    v_and_b32 v{vg}, 7, v{VLANE}
    v_xor_b32 v{vrd}, v{vrd}, v{vg}
    v_lshl_add_u32 v{vw}, v{vrd}, 4, v{vw}
    s_add_u32 s98, s{sW2K}, {base_imm}
    v_add_u32 v{vw}, s98, v{vw}
    v_lshrrev_b32 v{vrd}, 3, v{VLANE}
    v_mul_u32_u24 v{VTT}, {rowstride}, v{vrd}
    v_lshl_add_u32 v{vg}, v{vg}, 4, v{VTT}
    v_lshlrev_b32 v{vrd}, 4, v{vrd}
    v_xor_b32 v{vrd}, v{vrd}, v{VL16}
    v_add_u32 v{vrd}, s98, v{vrd}""")
def xpose_w(src, q, vw, flip=0):
    x = (16*q) ^ flip
    if x == 0: return [LD(f'ds_write_b128 v{vw}, {vr(src)}', 'xw')]
    return [V(f'v_xor_b32 v{VTT}, {x}, v{vw}'), LD(f'ds_write_b128 v{VTT}, {vr(src)}', 'xw')]
def xpose_rs(dst, vrd, vg, sreg, rowstride, tag, u=0):
    o = [LD(f'ds_read_b128 {vr(dst+4*q)}, v{vrd} offset:{8192*(q//2) + 1024*(q%2)}', ('xr', u, q)) for q in range(4)]
    for q in range(4):
        o.append(FN(lambda a, q=q: a.need(('xr', u, q))))
        o.append(VM(f'buffer_store_dwordx4 {vr(dst+4*q)}, v{vg}, {S(SWS)}, s{sreg} offen sc1', tag))
        o.append(V(f's_add_u32 s{sreg}, s{sreg}, {8*rowstride}'))
    return o
OA = 200
XP_LDS = BIAS_LDS + 2048
def dft_fill():
    Ea = ACC[0]; T = TMP; U = Ea + 16; RS = 9*64*128
    su = f"""v_and_b32 v1, 31, v{VLANE}
    v_lshlrev_b32 v1, 6, v1
    v_lshrrev_b32 v3, 5, v{VLANE}
    v_lshlrev_b32 v3, 1, v3
    v_bfe_u32 v{VPO}, v{VLANE}, 1, 2
    v_xor_b32 v3, v3, v{VPO}
    v_lshl_add_u32 v1, v3, 4, v1
    s_add_u32 s98, s{sW2K}, {XP_LDS}
    v_add_u32 v1, s98, v1
    v_bfe_u32 v3, v{VLANE}, 3, 2
    v_lshlrev_b32 v3, 4, v3
    v_xor_b32 v3, v3, v{VL16}
    v_add_u32 v3, s98, v3
    v_lshrrev_b32 v{VPO}, 2, v{VLANE}
    v_mul_u32_u24 v{VPO}, {RS}, v{VPO}
    v_and_b32 v{VTT}, 3, v{VLANE}
    v_lshl_add_u32 v{VPO}, v{VTT}, 4, v{VPO}
    s_bfe_u32 s96, s{sROLE}, 0x30008
    s_lshl_b32 s98, s96, 6
    s_add_u32 s98, s98, s{sB}
    s_lshl_b32 s35, s98, 3
    s_add_u32 s35, s35, {VFL_OFF}
    s_lshl_b32 s98, s98, 7
    s_add_u32 s98, s98, {V_OFF}
    s_sub_u32 s99, 8, s96
    s_lshl_b32 s99, s99, 6
    s_add_u32 s99, s99, s{sB}
    s_lshl_b32 s99, s99, 7
    s_add_u32 s99, s99, {V_OFF}
"""
    o = [V(x) for x in su.split('\n') if x.strip()] + [V(f's_cmp_eq_u32 s96, 4\ns_cselect_b32 s96, {DUM_OFF - V_OFF}, 0\ns_add_u32 s99, s99, s96')]
    su = o; o = [V(f'v_add_u32 v{VPO+1}, {16*RS}, v{VPO}')]
    for i in range(16):
        e = Ea + 2*i
        o += [V(f'v_accvgpr_read_b32 v{T+4}, a{OA+2*i}'), V(f'v_accvgpr_read_b32 v{T+5}, a{OA+2*i+1}'), V(f'v_add_f32 v{T}, v{e}, v{T+4}'), V(f'v_add_f32 v{T+1}, v{e+1}, v{T+5}')]
        if i < 8: o += [V(f'v_sub_f32 v{T+2}, v{e}, v{T+4}'), V(f'v_sub_f32 v{T+3}, v{e+1}, v{T+5}')]
        else:     o += [V(f'v_sub_f32 v{T+2}, v{T+4}, v{e}'), V(f'v_sub_f32 v{T+3}, v{T+5}, v{e+1}')]
        o += [V(f'v_cvt_pk_bf16_f32 v{HO+i}, v{T}, v{T+1}'), V(f'v_cvt_pk_bf16_f32 v{Ea+i}, v{T+2}, v{T+3}')]
    segs = [o]
    u = vr(U, 16)
    for m, X in enumerate((HO, Ea)):
        for p in range(2):
            A1, A2 = (X, X+8) if p == 0 else (X+8, X)
            B2 = TW+8 if p == 0 else TW+16
            mf = [V(f's_nop 1\n{M} {u}, {vr(A1)}, {ar(TW)}, 0'), V(f'{M} {u}, {vr(A1+4)}, {ar(TW+4)}, {u}'), V(f'{M} {u}, {vr(A2)}, {ar(B2)}, {u}'), V(f'{M} {u}, {vr(A2+4)}, {ar(B2+4)}, {u}')]
            pk = []
            for q in range(2):
                for i in range(4):
                    k = 4*q + i
                    pk.append(V(f'v_cvt_pk_bf16_f32 v{T+k}, v{U+2*k}, v{U+2*k+1}' if m == 0 else f'v_cvt_pk_bf16_f32 v{T+k}, v{U+15-2*k}, v{U+14-2*k}'))
                x = 16*q ^ 32*m
                if x: pk += [V(f'v_xor_b32 v{VTT}, {x}, v1'), LD(f'ds_write_b128 v{VTT}, {vr(T+4*q)}')]
                else: pk += [LD(f'ds_write_b128 v1, {vr(T+4*q)}')]
            d = OA + 8*(2*m+p)
            pk += [LD(f'ds_read_b128 {ar(d+4*i)}, v3 offset:{1024*i}', ('xr', m, p)) for i in range(2)]
            st = [FN(lambda a, m=m, p=p: a.need(('xr', m, p)))] + [VM(f'buffer_store_dwordx4 {ar(d+4*i)}, v{VPO+i}, {S(SWS)}, s{98+m} offen offset:{64*p} sc1', 'V') for i in range(2)]
            segs += [mf, pk, st]
    f = [(segs[0], 3, 33)]; st = []
    for k in range(4):
        g = 33 + 8*k
        f += [(segs[1+3*k], g, g+2), (segs[2+3*k], g+5, g+8)]
        x = segs[3+3*k]
        st += [FN(lambda a, x=x: emit(a, x[:2])), x[2]]
    return su, f, st

JA = [8, 40]; JC = [72, 104]
def hload(g):
    return [SVM(f's_add_u32 s3, s{33 if g else 32}, {4096*g}', f'buffer_load_dwordx4 {ar(HF+16*g+4*k)}, v{VL16}, {S(SWS)}, s3 offen offset:{1024*k} sc1 {NT(1)}', ('ph', g)) for k in range(4)]

SZ=[72,88,136,152]; SVF=8; SWP=40; SY0=192; SPA=[72,88,168,24]
def TF(i): return ar(176+4*i) if i < 20 else vr(200+4*(i-20))
def smid_pre():
    su = f"""v_lshrrev_b32 v3, 5, v{VLANE}
    v_bfe_u32 v1, v{VLANE}, 2, 2
    v_lshl_add_u32 v3, v3, 2, v1
    v_lshlrev_b32 v{VA1}, 7, v3
    v_lshlrev_b32 v{VB1}, 6, v3
    v_bfe_u32 v1, v{VLANE}, 4, 1
    v_lshlrev_b32 v1, 5, v1
    v_and_b32 v3, 3, v{VLANE}
    v_lshl_add_u32 v1, v3, 3, v1
    s_min_u32 s98, s{sWV}, 2
    s_lshl_b32 s98, s98, 13
    s_add_u32 s99, s98, {slot(54)}
    v_add3_u32 v{VA1}, v{VA1}, v1, s99
    s_add_u32 s99, s98, {slot(57)}
    v_add3_u32 v{VB1}, v{VB1}, v1, s99
    v_add_u32 v1, s99, v{VL16}
    v_add_u32 v3, {slot(51)}, v{VL16}"""
    w = [FN(lambda a: a.vneed('wl'))] + [(3, LD(f'ds_write_b128 v1, {ar(WA+4*k)} offset:{1024*k}')[1]) for k in range(8)]
    def patch(a):
        a(f"""v_lshrrev_b32 v{VTT}, 4, v{VLANE}
        v_lshlrev_b32 v{VTT}, 11, v{VTT}
        v_and_b32 v{VTT+1}, 15, v{VLANE}
        v_lshl_add_u32 v{VTT}, v{VTT+1}, 6, v{VTT}
        v_add_u32 v{VTT}, {slot(57) + 8192}, v{VTT}""")
        a.lds(f'ds_write_b16 v{VTT}, a253 offset:62'); a.lds(f'ds_write_b16 v{VTT}, a254 offset:1086')
    w.append(FN(only(R_PATCH, patch)))
    for p in range(2):
        for mt in range(2):
            for q in range(4):
                w.append(LD(f'ds_read_b64_tr_b16 {vr(SWP+16*p+8*mt+2*q,2)}, v{VB1} offset:{4096*mt+2048*(q//2)+512*(q%2)+1024*p}', 'sm'))
    r = []
    for ks in range(4):
        for p in range(2):
            for rho in range(2): r.append(LD(f'ds_read_b64_tr_b16 {vr(SVF+16*p+4*ks+2*rho,2)}, v{VA1} offset:{2048*ks+1024*rho+64*p}', 'sm'))
        for i in (ks, 8+ks, 16+ks): r.append(LD(f'ds_read_b128 {TF(i)}, v3 offset:{1024*i}', 'sm'))
    late = [LD(f'ds_read_b128 {TF(i)}, v3 offset:{1024*i}', 'sm2') for ks in range(4) for i in (4+ks, 12+ks, 20+ks)]
    return sops(su), w, r, late
def smid_parts():
    Z=SZ; VF=SVF; WP=SWP; Y=SVF; PA=SPA; T=TMP
    C=lambda t,k: TF(4*t+k); Sn=lambda t,k: TF(8+4*t+k); N=lambda t,k: TF(16+4*t+k)
    def fwd(mt):
        zr=vr(Z[2*mt],16); zi=vr(Z[2*mt+1],16); o=[]
        for ks in range(4):
            o += [f'{M} {zr}, {C(mt,ks)}, {vr(VF+4*ks)}, {"0" if ks==0 else zr}', f'{M} {zi}, {C(mt,ks)}, {vr(VF+16+4*ks)}, {"0" if ks==0 else zi}',
                  f'{M} {zr}, {Sn(mt,ks)}, {vr(VF+16+4*ks)}, {zr}', f'{M} {zi}, {N(mt,ks)}, {vr(VF+4*ks)}, {zi}']
        return o
    def ybase(mt, p): return (SY0 - 8*p) if mt == 0 else (Y + 8*p)
    def cmul(mt):
        o = []
        for d in range(8):
            wr = WP + 8*mt + d; wi = WP + 16 + 8*mt + d; zr = Z[2*mt] + 2*d; zi = Z[2*mt+1] + 2*d
            o += [f'v_lshlrev_b32 v{T}, 16, v{wr}', f'v_and_b32 v{T+1}, 0xffff0000, v{wr}', f'v_lshlrev_b32 v{T+2}, 16, v{wi}', f'v_and_b32 v{T+3}, 0xffff0000, v{wi}']
            for i in range(2): o += [f'v_mul_f32 v{T+4+i}, v{zi+i}, v{T+2+i}', f'v_mul_f32 v{T+6+i}, v{zi+i}, v{T+i}']
            for i in range(2): o += [f'v_fma_f32 v{T+4+i}, v{zr+i}, v{T+i}, -v{T+4+i}', f'v_fma_f32 v{T+6+i}, v{zr+i}, v{T+2+i}, v{T+6+i}']
            o += [f'v_cvt_pk_bf16_f32 v{ybase(mt,0)+d}, v{T+4}, v{T+5}', f'v_cvt_pk_bf16_f32 v{ybase(mt,1)+d}, v{T+6}, v{T+7}']
        return [V(x) for x in o]
    def inv(mt):
        o = []
        for nt in range(2):
            pr=vr(PA[2*nt],16); pi=vr(PA[2*nt+1],16)
            for t in range(2):
                ks = 2*mt + t; yr = vr(ybase(mt,0)+4*t); yi = vr(ybase(mt,1)+4*t)
                o += [f'{M} {pr}, {yr}, {C(nt,ks)}, {"0" if ks==0 else pr}', f'{M} {pi}, {yi}, {C(nt,ks)}, {"0" if ks==0 else pi}',
                      f'{M} {pr}, {yi}, {N(nt,ks)}, {pr}', f'{M} {pi}, {yr}, {Sn(nt,ks)}, {pi}']
        return o
    return fwd, cmul, inv
def part_inplace(acc, lam):
    c = []; st = []
    for q in range(4):
        c += [V(f'v_cvt_pk_bf16_f32 v{acc+8*q+i}, v{acc+8*q+2*i}, v{acc+8*q+2*i+1}') for i in range(4)]
        st.append(SVM(f's_add_u32 s3, s{sPS}, {16384*(2*lam + q//2)}', f'buffer_store_dwordx4 {vr(acc+8*q)}, v{VL16}, {S(SWS)}, s3 offen offset:{1024*(q%2)} sc1', ('p', lam)))
    return c, st

def kernel():
    a = E()
    prologue(a)
    g1 = lambda acc: (lambda p, kk, h: (acc + 16*h, vr(XF + 16*p + 4*kk), False))
    END = 71
    stamp(a, 2)
    a.need('bw')
    a('; ROUND 1')
    brole(a, R_ODD, 'L_odd')
    s_pro = a.snap()
    a.vneed(('d',0),('d',1),('d',2)); a('s_barrier')
    bias_reads(a, ACC[0], 0); first_reads(a, 'tr', 0)
    run(a, 0, 9, 'tr', g1(ACC[0]), [(late_setup(), 30, 60), (bias_ops(ACC[1], 1), 40, 66)], pause=(0, Cfg.pz1), events={71: BATCH2, ('dma0', 0): list(range(Cfg.np, 12))})
    stamp(a, 3)
    run(a, 9, 9, 'tr', g1(ACC[1]), [(gelu_ops(ACC[0], 0, 2, Cfg.sd), Cfg.gs0, END)], events={2: [getnonce]}, pause=(0, Cfg.pz2))
    s_even = a.snap()
    la = a.l; a.l = []
    a('L_odd:'); a.restore(s_pro)
    brole(a, R_DFT, 'L_dft')
    emit(a, late_setup() + [FN(f) for f in BATCH2] + touch_ops())
    for q in range(max(9, Cfg.np), 21):
        for f in plan(q): f(a)
    a.vneed(('d',9),('d',10),('d',11)); a('s_barrier')
    first_reads(a, 'tr', 9)
    stamp(a, 3)
    bias_reads(a, ACC[1], 1)
    run(a, 9, 9, 'tr', g1(ACC[1]), [(bias_ops(ACC[0], 2), 40, 66)], events={2: [getnonce]})
    a('s_branch L_s3'); s_nodft = a.snap()
    a('L_dft:'); a.restore(s_pro)
    a(f'v_mov_b32 v{VPO}, v{VL16}\nv_add_u32 v{VPO+1}, 49152, v{VL16}')
    a.vneed(('d',0),('d',1),('d',2)); a('s_barrier')
    first_reads(a, 'dft', 0)
    run(a, 0, 9, 'dft', lambda p, kk, h: ((ACC[0] + 16*h) if kk % 2 == 0 else -(OA + 16*h), vr(XF + 16*p + 4*kk), p == 0 and kk < 2),
        [(late_setup(), 30, 47), (twiddle_ops(TW, TMP, 'fwd', sB), 2, 60), (dft_fill()[0], 48, 66), (bias_ops(ACC[1], 1), 56, 70)], pause=(0, Cfg.pz1), role='D', events={71: BATCH2, ('dma0', 0): list(range(Cfg.np, 12))})
    stamp(a, 3)
    _, df, vst = dft_fill(); vlate = vst[3:]
    run(a, 9, 9, 'tr', g1(ACC[1]), df + [(vst[:3], 42, 70), (bias_ops(ACC[0], 2), 65, 70)], events={2: [getnonce]}, pause=(0, Cfg.pz2))
    a('L_s3:'); a.merge(s_nodft, a.snap()); s_odd = a.snap()
    lodd = a.l; a.l = la; a.restore(s_even)
    stamp(a, 4)
    pi = spoll_i; pc = spoll_c
    h0 = only_ops(R_ODD, hload(0), 1)
    FG, PG, CG = Cfg.fg, Cfg.pg, Cfg.cg
    l2a = [w2touch(1, 0, 21)] if Cfg.l2 else []; l2b = [w2touch(1, 21*128, 20)] if Cfg.l2 else []; l2c = [tabtouch] if Cfg.l2 else []
    run(a, 18, 9, 'tr', g1(ACC[0]), [(gelu_ops(ACC[1], 1, 3), Cfg.gs0, END), ([FN(only(R_UNIT, wload(k))) for k in range(4)], 6, 64)],
        events={FG: [lambda a: setflag(a, 1, ('h',0))], 40: l2a, 66: l2b})
    g2 = lambda acc: (lambda p, kk, h: (acc + 16*h, ar(HF + 16*GORD[p] + 4*kk), p == 0 and kk == 0))
    tabg = f"""s_and_b32 s98, s{sC}, 3
    s_min_u32 s98, s98, 2
    s_mul_i32 s96, s98, 110592
    s_add_u32 s96, s96, {TABF_SZ}
    v_lshl_add_u64 {vr(VTB,2)}, s[96:97], 0, {vr(VTB,2)}"""
    sent8 = lambda a: (stamp(a, 7), sent_check(a, ('ph',8), [f'a{HF+128+4*k+3}' for k in range(4)], TMP, lines_of(hload(8)), ([f's_add_u32 s3, s33, {4096*8}'], 3)))
    sf = lambda st, *tags: (lambda a: (setflag if st < 5 else setflag2)(a, st, *tags))
    sf5 = lambda a: setflag(a, 5, ('h',4))
    clo = clear_ops(33, [32768, 34816], 'clr', -248)
    clp = clear_ops(sPS, [16384*6, 16384*7], 'clp')
    def setup5():
        a = E()
        smid_ids(a)
        a(f"""s_mul_i32 s{sSV}, s99, 9
        s_add_u32 s{sSV}, s{sSV}, s96
        s_lshl_b32 s{sSV}, s{sSV}, 13
        s_add_u32 s{sSV}, s{sSV}, s{sW2K}
        s_add_u32 s{sSV}, s{sSV}, {V_OFF}
        s_add_u32 s98, s96, s{sWV}
        s_lshl_b32 s98, s98, 5
        s_add_u32 s98, s98, s99
        s_lshl_b32 s47, s98, 3
        s_add_u32 s47, s47, {PFL_OFF}
        s_lshl_b32 s48, s98, 7
        s_add_u32 s48, s48, {P_OFF}
        s_add_u32 s49, s48, {32*9*32*128}
        v_and_b32 v1, 15, v{VLANE}
        s_lshl_b32 s98, s{sWV}, 4
        v_add_u32 v1, s98, v1
        v_lshrrev_b32 v{VA1}, 4, v{VLANE}
        v_min_u32 v{VA1}, 2, v{VA1}
        v_add_u32 v{VA1}, s96, v{VA1}
        v_sub_u32 v{VB1}, 8, v{VA1}
        v_min_u32 v{VA1}, v{VA1}, v{VB1}
        v_lshl_add_u32 v1, v{VA1}, 6, v1
        v_lshlrev_b32 v1, 3, v1
        v_add_u32 v1, {VFL_OFF}, v1""")
        return sops('\n'.join(a.l).replace('s96', 's50').replace('s98', 's51').replace('s99', 's52'))
    run(a, 27, 9, 'tr', g1(ACC[1]), [(gelu_ops(ACC[0], 2, 4), Cfg.gs0, END), ([FN(only(R_UNIT, wload(k))) for k in range(4, 8)], 6, 64), (setup5(), 48, 70)],
        events={4: [only(R_PATCH, wpatch)], FG: [sf(2, ('h',1))], 30: l2c}, role='E')
    stamp(a, 5)
    ssu, sw, sr, slate = smid_pre()
    run(a, 36, 9, 'tr', g1(ACC[0]), [(gelu_ops(ACC[1], 3), Cfg.gs0, END), (hload(5), Cfg.e2+1, 71), (ssu, 52, 70)], role='E',
        events={26: [lambda a: a.vm(poll_ins(VA1, 1, '0'), 'vp')], Cfg.e2-22: [pi], Cfg.e2: [pc(2)], 47: [only(R_SMID, lambda a: poll_check(a, 'vp', VA1, 1, '0', 1))], FG: [sf(3, ('h',2))]})
    stamp(a, 6)
    a('s_mov_b32 s11, s47')
    pre = lambda g: [lambda a: a.vneed(('ph', g))]
    ge = lambda o: (lambda p, kk, h: (JC[1] + 16*h, ar(HF + 16*GE[p+o] + 4*kk), p+o == 0 and kk == 0))
    dm6 = [FN(f) for q in range(63, 72) for f in plan(q, 'E')]
    h6 = [FN(pc(3))] + hload(6); h7 = [FN(pc(4))] + hload(7)
    def s6a(unit):
        run(a, 45, 6, 'tr', ge(0), ([(gelu_ops(ACC[0], 4), 3, Cfg.ge), (sw, Cfg.ge-14, Cfg.ge+2), (sr, Cfg.ge-2, 48)] if unit else [(gelu_ops(ACC[0], 4), 3, 44)]), nxt=None, role='E',
            events={Cfg.f4: [sf(4, ('h',3))], 30: [pi], ('pre',32): pre(5), ('bar',48): [('d', q) for q in range(51, 57)]})
    b2 = FN(lambda a: (a.vneed(('d',60),('d',61),('d',62)), a('s_barrier')))
    brole(a, R_UNIT, 'L_unit'); s1 = a.snap()
    s6a(False)
    a('s_barrier')
    cle = []
    def allw(qs):
        def own(a):
            for q in qs:
                for f in plan(q, 'E'): f(a)
        def f(a):
            if not Cfg.w3d: return own(a)
            own(a)
            def oth(a):
                for q in qs:
                    for w in range(3):
                        a(f's_mov_b32 m0, {slot(q) + 2048*w}\ns_add_u32 s{sT}, s{sO2+EORD[q-60][0]}, {128*EORD[q-60][1]}')
                        a.vm(f'buffer_load_dwordx4 v{8+2*w}, {S(SW2)}, s{sT} offen lds'); a.vm(f'buffer_load_dwordx4 v{9+2*w}, {S(SW2)}, s{sT} offen offset:1024 lds')
            only(R_SMID, oth)(a)
        return FN(f)
    for w in range(3): a(f'v_subrev_u32 v{8+2*w}, {(3-w)*16*1152}, v{VA2}\nv_subrev_u32 v{9+2*w}, {(3-w)*16*1152}, v{VB2}')
    emit(a, [allw([63, 64])] + h6 + [V('s_barrier'), allw([65, 66, 67, 68]), allw([69, 70, 71]), FN(pi), V(tabg), FN(lambda a: a.vdrain()), b2])
    if Cfg.w3d: dm6 = [V('s_nop 0')]*18
    first_reads(a, 'tr', 60)
    a('s_branch L_s7e'); s_nou = a.snap()
    a('L_unit:'); a.restore(s1)
    s6a(True)
    fwd, cmul, inv = smid_parts()
    stamp(a, 'm0')
    a.need('sm'); a('s_barrier')
    dmx = lambda i, j: [] if Cfg.w3d else dm6[i:j]
    interleave(a, fwd(0), mix(slate, dmx(0, 6) + h6))
    stamp(a, 'm1')
    a.need('sm2'); a('s_barrier')
    t = E(); xpose_setup(t, 1, 3, VA1, slot(57), 9*32*128); t(tabg)
    interleave(a, fwd(1)[:3], dmx(6, 10) + [V(x) for x in t.l[:11]])
    interleave(a, fwd(1)[3:], mix(cmul(0), dmx(10, 14)))
    a('s_nop 1')
    stamp(a, 'm2')
    interleave(a, inv(0)[:3], [V(x) for x in t.l[11:]])
    interleave(a, inv(0)[3:], cmul(1)[:30] + [FN(pi)] + cmul(1)[30:])
    stamp(a, 'm3')
    def pout(nt):
        o = []
        for p in range(2):
            for par in range(2):
                for i in range(4): o.append(V(f'v_cvt_pk_bf16_f32 v{SWP+16*nt+8*p+4*par+i}, v{SPA[2*nt+p]+4*i+par}, v{SPA[2*nt+p]+4*i+2+par}'))
                o += xpose_w(SWP+16*nt+8*p+4*par, 2*p+par, 1)
        x = xpose_rs(SWP+16*nt, 3, VA1, 48+nt, 9*32*128, 'P', nt)
        return o + x[:4], x[4:]
    a('s_nop 1')
    h8 = hload(8)
    interleave(a, inv(1)[:10], h7 + dmx(14, 18) + [b2])
    first_reads(a, 'tr', 60)
    interleave(a, inv(1)[10:], pout(0)[0])
    stamp(a, 'm5')
    s_u = a.snap()
    a('s_branch L_s7u')
    a('L_s7e:'); a.restore(s_nou); emit(a, h7)
    a('L_s7u:'); a.merge(s_u, a.snap())
    pst = only_ops(R_UNIT, pout(0)[1] + pout(1)[1], 3)
    eo = lambda p, kk, h: (JC[1-EORD[p][1]] + 16*h, ar(HF + 16*EORD[p][0] + 4*kk), p == 1 and kk == 0)
    run(a, 60, 12, 'tr', eo, [(only_ops(R_UNIT, pout(1)[0], 9), 2, 8), (pst[:4], 0, max(9, Cfg.pe//2)), (pst[4:], max(9, Cfg.pe//2), Cfg.pe), (h8, Cfg.c5+1, Cfg.c5+9), (part_ops(JC[1], 0), 8*Cfg.e8+11, 8*Cfg.e8+36), (fsetup(), 51, 88),
        ([V(f's_add_u32 s{sL9}, s{sPS}, {16384*2}')], 88, 90)], role='E',
        events={('pre',0): pre(6), ('pre',16): pre(7), Cfg.c5-18: [pi], Cfg.c5: [pc(5)], ('pre',8*Cfg.e8): pre(8), ('pre',17): [lambda a: stamp(a, 7)], ('pre',24): [lambda a: stamp(a, 8)],
                Cfg.pe+30: [only(R_UNIT, lambda a: setflag(a, 1, 'P', off=11))]})
    a('s_branch L_s9'); s_e = a.snap()
    a('; ROUND 2')
    a.l += lodd; a.restore(s_odd)
    stamp(a, 4)
    run(a, 18, 9, 'tr', g1(ACC[0]), [(gelu_ops(ACC[1], 1, 3), Cfg.gs0, END), (only_ops(R_DFT, vlate, 1), 2, 40), (clo[:6], 44, 68)],
        events={PG: [pi], 40: l2a, 66: l2b})
    run(a, 27, 9, 'tr', g1(ACC[1]), [(gelu_ops(ACC[0], 2, 4), Cfg.gs0, END), (hload(0), CG+2, 64), (clo[6:], 1, 14)],
        events={2: [only(R_DFT, lambda a: setflag(a, 1, 'V', off=35))], CG: [pc(1)], Cfg.f2o: [sf(2, 'clr', ('h',1))], 30: l2c, PG: [pi]}, role='O')
    stamp(a, 5)
    run(a, 36, 9, 'tr', g1(ACC[0]), [(gelu_ops(ACC[1], 3), Cfg.gs0, END), (hload(5), CG+2, 64)], role='O',
        events={CG: [pc(2)], FG: [sf(3, ('h',2))], PG: [pi]})
    stamp(a, 6)
    jj = lambda p, kk, h: (JA[p % 2] + 16*h, ar(HF + 16*GORD[p//2] + 4*kk), p < 2 and kk == 0)
    run(a, 45, 18, 'tr', jj, [(gelu_ops(ACC[0], 4), 3, 47), (hload(6), CG+2, 46), (hload(7), 49+Cfg.c4, 66+Cfg.c4), (hload(8), 48+Cfg.h8, 62+Cfg.h8), (sops(tabg), 50, 56)], role='O',
        events={CG: [pc(3)], Cfg.f4: [sf(4, ('h',3))], 46: [pi], 48+Cfg.c4: [pc(4)], ('pre',64): pre(0), ('pre',80): pre(5), ('pre',96): pre(6), ('pre',112): pre(7), Cfg.f5h: [sf5], 126: [sent8]})
    stamp(a, 8)
    run(a, 63, 9, 'tr', g2(JC[0]), [(part_ops(JA[0], 4) + part_ops(JA[1], 6), 3, Cfg.p8), (fsetup(), 34, 60), ([V(f's_add_u32 s{sL9}, s{sPS}, {16384*10}')], 60, 62)])
    a('; ROUND 3\nL_s9:'); a.merge(s_e, a.snap())
    if Cfg.warm and Cfg.w3: a('; WARM 3')
    stamp(a, 9)
    g2o = lambda acc, o: (lambda p, kk, h: (acc + 16*h, ar(HF + 16*GORD[p+o] + 4*kk), p+o == 0 and kk == 0))
    def two(mask, f):
        l1 = a.label('TW'); l2 = a.label('TX')
        a(f's_and_b32 s98, s{sCLS}, {mask}\ns_cbranch_scc1 {l1}'); s0 = a.snap()
        f(False); a(f's_branch {l2}\n{l1}:'); s1 = a.snap(); a.restore(s0)
        f(True); a(f'{l2}:'); a.merge(s1, a.snap())
    pl1 = lambda hf: [FN(lambda a, k=k: emit(a, pl_ops(hf, k, k+1))) for k in range(16)]
    def ppoll_i(a):
        a(f"""s_min_u32 s98, s{sWV}, 2
        s_mul_i32 s98, s98, 768
        s_add_u32 s98, s98, {PFL_OFF}
        v_lshlrev_b32 v204, 3, v{VLANE}
        v_add_u32 v204, s98, v204
        v_add_u32 v205, 256, v204""")
        a.vm(poll_ins(200, 204, '0'), 'pp1'); a.vm(poll_ins(202, 205, '0'), 'pp2')
    def ppoll_c(a):
        if Cfg.blk & 4:
            only(R_FINW, lambda a: (poll_check(a, 'pp1', 200, 204, '0', 1), poll_check(a, 'pp2', 202, 205, '0', 1)))(a); a('s_mov_b32 s11, 0'); return
        a.vneed('pp2'); poll_test(a, 200, 1); a('s_cselect_b32 s11, 1, 0'); poll_test(a, 202, 1); a(f's_cselect_b32 s11, 1, s11\ns_bitcmp1_b32 s{sROLE}, {R_FINW}\ns_cselect_b32 s11, s11, 1')
    def EV(*pairs):
        d = {}
        for k, v in pairs: d.setdefault(k, []).extend(v if isinstance(v, list) else [v])
        return d
    sched = dict(zip((78, 81, 84, 87), Cfg.sch))
    def tryev(qn, n):
        c = sched.get(qn, '-')
        if c not in '01': return [], []
        hf = int(c); t = E(); etest(t, hf, 20)
        t(f's_cselect_b32 s20, {1 << hf}, 0\ns_and_b32 s20, s20, s{sCLS}\ns_mul_i32 s20, s20, 5\ns_xor_b32 s{sCLS}, s{sCLS}, s20')
        return [(n - Cfg.ta, eld(hf, 20)), (n - 8, lambda a: a.drain())], [(sops('\n'.join(t.l)), n-7, n)]
    bar = lambda a: a('s_barrier')
    p2 = part_ops(JC[1], 2)
    seg = {78: (JC[1], 6, [], [(Cfg.f6-48, sf(6, ('p',9))), (23, ppoll_c)]),
           81: (JC[0], 0, [(p2[:11], 3, 22), (tw_reads(), 4, 20)], []),
           84: (JC[0], 3, [(p2[11:], 0, 12), (fin_addr(), 8, 23)], []),
           87: (JC[0], 6, [([FN(lambda a: a.vneed(('d', 98)))] + prd(0) + prd(1) + prd(2), 12, 24)], [(Cfg.f7-48, sf(7, ('p',2))), (('dma', 88), [102, 103]), (('dma', 89), [104]), (3, bar), (22, bar)])}
    e, f = tryev(78, 48)
    run(a, 72, 6, 'tr', g2o(JC[1], 0), [(part_ops(JC[0], 9), 3, Cfg.p9), (coop_tw(), 10, 40), (xb_ops()[:12], 2, 12), (only_ops(R_FINW, xb_ops()[12:], 1), 6, 44)] + f,
        events=EV((Cfg.f5, sf(5, ('p',0), ('p',4), ('p',6))), (45, ppoll_i), *e))
    def slab(q, ld):
        acc, o, fl, ev = seg[q]; e, f = tryev(q+3, 24)
        run(a, q, 3, 'tr', g2o(acc, o), fl + f + ([(ld, 0, 22 if q < 87 else 16)] if ld else []), nxt=None if q == 87 else 'tr', events=EV(*ev, *e))
    for q in (78, 81, 84, 87):
        c = sched[q]
        if c == '-': slab(q, None)
        elif c == 'x': continue
        else:
            L = pl1(int(c))
            if sched.get(q+3) == 'x': two(1 << int(c), lambda ld: (slab(q, L[:9] if ld else None), slab(q+3, L[9:] if ld else None)))
            else: two(1 << int(c), lambda ld: slab(q, L if ld else None))
    for hf in (0, 1):
        if str(hf) not in Cfg.sch: a(f's_and_b32 s98, s{sCLS}, {1 << hf}\ns_mul_i32 s98, s98, 5\ns_xor_b32 s{sCLS}, s{sCLS}, s98')
    stamp(a, 10)
    final(a)
    a('L_fin:')
    stamp_flush(a, 11)
    a('; ROUND -1\nL_end:\ns_endpgm')
    return a.text()

PTH = [136, 8]
VFA = 4; VO = 5
SEL = 200; AB2 = 208; AX = 224
sCLS = 53
sND, sFO, sPB, sXO, sSG = 46, 48, 50, 32, 36
def fsetup():
    a = E()
    LAML = [0,0,4,4,2,2,3,3,2]; LAMH = [2,3,3,0,0,4,4,0,0]; NEED = [4,4,6,7,5]; RANK = [0,0,2,3,1]
    swap = 0; nd = [0, 0]; cl = []
    for c in range(9):
        rl, rh = RANK[LAML[c]], RANK[LAMH[c]]
        sw = (rh < rl) if max(rl, rh) < 2 else (rh > rl)
        la, lb = (LAMH[c], LAML[c]) if sw else (LAML[c], LAMH[c])
        swap |= sw << c; nd[0] |= NEED[la] << 3*c; nd[1] |= NEED[lb] << 3*c
        cl.append(({0:0, 2:2, 3:4}[RANK[la]], {0:1, 1:1, 2:3, 3:5}[RANK[lb]]))
    ca = sum(x[0] << 3*i for i, x in enumerate(cl)); cb = sum(x[1] << 3*i for i, x in enumerate(cl))
    a(f"""s_lshl_b32 s52, s{sI}, 2
    s_lshr_b32 s38, s{sC}, 2
    s_add_u32 s52, s52, s38             ; b'
    s_and_b32 s65, s{sC}, 3
    s_min_u32 s65, s65, 2
    s_mul_i32 s38, s{sWV}, 3
    s_add_u32 s65, s65, s38
    s_min_u32 s65, s65, 8                 ; tile c
    s_mul_i32 s39, s65, 3
    s_lshr_b32 s{sND}, {nd[0]:#x}, s39
    s_and_b32 s{sND}, s{sND}, 7
    s_lshr_b32 s{sND+1}, {nd[1]:#x}, s39
    s_and_b32 s{sND+1}, s{sND+1}, 7
    s_lshr_b32 s38, {ca:#x}, s39
    s_and_b32 s38, s38, 7
    s_lshl_b32 s{sCLS}, 1, s38
    s_lshr_b32 s38, {cb:#x}, s39
    s_and_b32 s38, s38, 7
    s_bitset1_b32 s{sCLS}, s38
    s_bitcmp1_b32 s{sROLE}, {R_FINW}
    s_cselect_b32 s{sCLS}, s{sCLS}, 0
    s_add_u32 s{sND}, s{sND}, s{sNON}
    s_add_u32 s{sND+1}, s{sND+1}, s{sNON}
    s_lshl_b32 s{sFLG}, s{sB}, 1
    s_and_b32 s39, s{sC}, 1
    s_add_u32 s{sFLG}, s{sFLG}, s39
    s_lshl_b32 s{sFLG}, s{sFLG}, 6
    s_and_b32 s39, s{sC}, 14
    s_add_u32 s{sFLG}, s{sFLG}, s39
    s_lshl_b32 s{sFLG}, s{sFLG}, 1
    s_add_u32 s{sFLG}, s{sFLG}, {FL2_OFF}
    s_lshl_b32 s39, s52, 8
    s_add_u32 s39, s39, {FL2_OFF + 128}
    s_cmp_eq_u32 s65, 8
    s_cselect_b32 s38, 0, 128
    s_sub_u32 s38, s39, s38
    s_mul_i32 s{sPB}, s52, 18
    s_add_u32 s{sPB}, s{sPB}, s65
    s_lshl_b32 s{sPB}, s{sPB}, 14
    s_add_u32 s{sPB}, s{sPB}, {PART_OFF}
    s_lshl_b32 s{sXO}, s65, 6
    s_bitcmp1_b32 {swap:#x}, s65
    s_cselect_b32 s{sFO}, s39, s38
    s_cselect_b32 s{sFO+1}, s38, s39
    s_cselect_b32 s{sSG}, -1.0, 1.0
    s_cselect_b32 s{sSG+1}, 1.0, -1.0
    s_cselect_b32 s38, {9*16384}, 0
    s_cselect_b32 s39, 576, 0
    s_add_u32 s{sPB+1}, s{sPB}, {9*16384}
    s_sub_u32 s{sPB+1}, s{sPB+1}, s38
    s_add_u32 s{sPB}, s{sPB}, s38
    s_add_u32 s{sXO+1}, s{sXO}, 576
    s_sub_u32 s{sXO+1}, s{sXO+1}, s39
    s_add_u32 s{sXO}, s{sXO}, s39
    s_add_u32 s{sXO+2}, s{sXO}, {16*73728}
    s_add_u32 s{sXO+3}, s{sXO+1}, {16*73728}
    v_and_b32 v{VFA}, 7, v{VLANE}
    v_lshlrev_b32 v{VFA}, 2, v{VFA}
    v_lshrrev_b32 v{VO}, 2, v{VLANE}
    s_mov_b32 s38, 73728
    v_mul_lo_u32 v{VO}, v{VO}, s38
    v_and_b32 v206, 3, v{VLANE}
    v_lshl_add_u32 v{VO}, v206, 4, v{VO}
    s_mul_i32 s38, s52, 1152
    v_add_u32 v{VO}, s38, v{VO}""")
    a(f's_mul_i32 s{sFP}, s52, 36864\ns_mul_i32 s38, s{sWV}, 12288\ns_add_u32 s{sFP}, s{sFP}, s38\ns_add_u32 s{sFP}, s{sFP}, {P_OFF}')
    return sops('\n'.join(a.l))
def cls_block(a, mask, body, inv=False):
    l = a.label('CB'); a(f's_and_b32 s98, s{sCLS}, {mask}\ns_cbranch_scc{1 if inv else 0} {l}'); s0 = a.snap()
    body(a); a(f'{l}:'); a.merge(s0, a.snap())
SE = [56, 8]
def eld(hf, w): return lambda a: a(f's_buffer_load_dwordx8 s[{w}:{w+7}], {S(SWS)}, s{sFO+hf} glc')
def etest(a, hf, w):
    for i in range(8): a(f's_sub_u32 s{w+i}, s{w+i}, s{sND+hf}')
    for i in (0, 2, 4, 6): a(f's_max_u32 s{w+i}, s{w+i}, s{w+i+1}')
    a(f's_max_u32 s{w}, s{w}, s{w+2}\ns_max_u32 s{w+4}, s{w+4}, s{w+6}\ns_max_u32 s{w}, s{w}, s{w+4}\ns_cmp_gt_u32 s{w}, 8')
def etry_c(hf, w):
    def f(a):
        a.drain()
        if Cfg.blk & (1 << hf):
            cls_block(a, 1 << hf, lambda a: eblock(a, hf, w, Cfg.slp)); return
        etest(a, hf, w)
        a(f"""s_cselect_b32 s98, {1 << hf}, 0
        s_and_b32 s98, s98, s{sCLS}
        s_mul_i32 s98, s98, 5
        s_xor_b32 s{sCLS}, s{sCLS}, s98""")
    return f
def eblock(a, hf, w, slp=None):
    lc = a.label('EC'); lk = a.label('EK')
    etest(a, hf, w)
    a(f's_cbranch_scc1 {lc}\n{lk}:')
    a.ool += [f'{lc}:', f' buffer_load_dword v{VPO}, v{VFA}, {S(SWS)}, s{sFO+hf} offen sc1', ' s_waitcnt vmcnt(0)', f' v_subrev_u32 v{VPO}, s{sND+hf}, v{VPO}', f' v_cmp_lt_u32 vcc, 8, v{VPO}', ' s_nop 1', ' s_cmp_lg_u64 vcc, 0',
              f' s_cbranch_scc0 {lk}', f' s_sub_u32 s{sP}, s{sP}, 1', f' s_cbranch_scc1 {lc}_x', f' s_sleep {slp or Cfg.slp2}', f' s_branch {lc}', f'{lc}_x:', f' s_mov_b32 s{sP}, 0', f' s_branch {lk}']
def pl_ops(hf, i0, i1):
    o = []
    for i in range(i0, i1):
        if i % 4 == 0 or i == i0: o.append(V(f's_add_u32 s3, s{sPB+hf}, {4096*(i//4)}'))
        o.append(VM(f'buffer_load_dwordx4 {vr(PTH[hf]+4*i)}, v{VL16}, {S(SWS)}, s3 offen offset:{1024*(i%4)} sc1 {NT(2)}', ('pt', hf)))
    return o
def loads_if(hf, m): return [FN(lambda a, k=k: cls_block(a, m, lambda a: emit(a, pl_ops(hf, 2*k, 2*k+2)))) for k in range(8)]
def xb_ops():
    o = [V(f'v_lshrrev_b32 v{VBI}, 5, v{VLANE}'), V(f'v_lshlrev_b32 v{VBI}, 3, v{VBI}')]
    for hf in range(2):
        o.append(V(f'v_add_u32 v1, s{sXO+hf}, v{VBI}\nv_add_u32 v1, {B2_LDS}, v1'))
        for q in range(4): o.append(LD(f'ds_read_b64 {ar(AB2+8*hf+2*q,2)}, v1 offset:{16*q}'))
    for hf in range(2):
        for i in range(2): o.append(VM(f'buffer_load_dwordx4 {ar(AX+8*hf+4*i)}, v{VO}, {S(SX)}, s{sXO+hf+2*i} offen', 'x2'))
    return o
TWL = XP_LDS
def coop_tw():
    t = TMP; sc = 2.0/(2048*576)
    o = f"""v_and_b32 v{t}, 31, v{VLANE}
    v_lshrrev_b32 v{t+1}, 5, v{VLANE}
    v_lshlrev_b32 v207, 2, v{t+1}
    v_sub_u32 v207, v{t}, v207
    v_lshlrev_b32 v{t}, 6, v{t}
    v_add_u32 v{t}, s52, v{t}
    s_lshr_b32 s38, s{sWV}, 1
    s_and_b32 s39, s{sWV}, 1
    s_lshl_b32 s8, s38, 4
    s_lshl_b32 s9, s39, 2
    s_add_u32 s8, s8, s9
    v_lshl_add_u32 v{t+1}, v{t+1}, 3, s8
    v_mul_u32_u24 v{t+1}, v{t+1}, v{t}
    s_add_u32 s8, s8, s9
    v_subrev_u32 v207, s8, v207
    s_lshl_b32 s38, s38, 10
    s_lshl_b32 s39, s39, 3
    s_add_u32 s38, s38, s39
    s_add_u32 s38, s38, {TWL}
    v_add_u32 v206, s38, v{VL16}
"""
    R = [208+i for i in range(8)]
    L = []
    for i in range(4): L.append(f'v_mad_u32_u24 v{R[i]}, v{t}, {i}, v{t+1}')
    for i in range(4): L.append(f'v_and_b32 v{R[i]}, 0x7ff, v{R[i]}')
    for i in range(4): L.append(f'v_cvt_f32_u32 v{R[i]}, v{R[i]}')
    for i in range(4): L.append(f'v_mul_f32 v{R[i]}, {f2u(1/2048):#x}, v{R[i]}')
    for i in range(4): L.append(f'v_cos_f32 v{R[4+i]}, v{R[i]}')
    for i in range(4): L.append(f'v_sin_f32 v{R[i]}, v{R[i]}')
    for i in (4,5,6,7,0,1,2,3): L.append(f'v_mul_f32 v{R[i]}, {f2u(sc):#x}, v{R[i]}')
    L += [f'v_cvt_pk_bf16_f32 v{t}, v{R[4]}, v{R[5]}', f'v_cvt_pk_bf16_f32 v{t+1}, v{R[6]}, v{R[7]}', f'v_cvt_pk_bf16_f32 v{t+2}, v{R[0]}, v{R[1]}', f'v_cvt_pk_bf16_f32 v{t+3}, v{R[2]}, v{R[3]}',
          f'v_xor_b32 v{t+4}, 0x80008000, v{t+2}', f'v_xor_b32 v{t+5}, 0x80008000, v{t+3}',
          f'v_and_b32 v{R[0]}, 1, v207', f'v_lshlrev_b32 v{R[0]}, 4, v{R[0]}', f'v_mov_b32 v{R[1]}, 0x3f80', f'v_lshlrev_b32 v{R[0]}, v{R[0]}, v{R[1]}', 'v_and_b32 v207, -2, v207',
          'v_cmp_eq_u32 vcc, 0, v207', 's_nop 1', f'v_cndmask_b32 v{t+6}, 0, v{R[0]}, vcc', 'v_cmp_eq_u32 vcc, 2, v207', 's_nop 1', f'v_cndmask_b32 v{t+7}, 0, v{R[0]}, vcc']
    ops = sops(o + '\n'.join(L))
    ops += [LD(f'ds_write_b64 v206, {vr(t+2*m,2)} offset:{2048*m}') for m in range(4)]
    return ops
def tw_reads():
    return [V(f'v_add_u32 v206, {TWL}, v{VL16}')] + [LD(f'ds_read_b128 {ar(TW+4*i)}, v206 offset:{1024*i}') for i in range(8)]

PB = 24576
def fin_addr():
    return sops(f"""s_add_u32 s38, s{sW2K}, {PB}
    v_lshrrev_b32 v6, 5, v{VLANE}
    v_bfe_u32 v7, v{VLANE}, 2, 2
    v_lshl_add_u32 v6, v6, 3, v7
    v_lshlrev_b32 v6, 7, v6
    v_bfe_u32 v7, v{VLANE}, 1, 1
    v_lshl_add_u32 v6, v7, 6, v6
    v_bfe_u32 v7, v{VLANE}, 4, 1
    v_lshl_add_u32 v6, v7, 4, v6
    v_and_b32 v7, 1, v{VLANE}
    v_lshl_add_u32 v6, v7, 3, v6
    v_add_u32 v6, s38, v6
    v_add_u32 v7, s38, v{VL16}
    s_lshl_b32 s38, s{sWV}, 12
    v_add_u32 v3, s38, v{VL16}
    v_add_u32 v1, 73728, v3
    s_lshl_b32 s38, s{sWV}, 14
    s_add_u32 s38, s38, {PB + 6144}
    v_add_u32 v247, s38, v{VL16}
    s_mov_b32 s39, {f2u(-math.log2(math.e)):#x}""")
APF = 32
def prd(jj):
    return [LD(f'ds_read_b64_tr_b16 {ar(APF+16*jj+8*p+4*t+2*rho,2)}, v6 offset:{8192*(2*jj+t)+512*rho+32*p}', ('pf', jj))
            for t in range(2) for p in range(2) for rho in range(2)]
def final(a):
    Ea=72; Oa=88; YS=[104,208,72]; GA=[208, 104]; PK2=224; T=240; VY=7; VG=3; VG2=1; AY=16
    cv, st = part_inplace(JC[0], 3)
    brole(a, R_FINW, 'L_finw'); s0 = a.snap()
    a('s_nop 8'); emit(a, mix(cv, st))
    brole(a, R_FIN, 'L_w3'); s3_ = a.snap()
    setflag2(a, 8, ('p',3)); a('s_branch L_fin')
    a('L_w3:'); a.restore(s3_)
    for k in range(6):
        a(f's_mov_b32 m0, {122880 + 4096*k}\ns_mov_b32 s96, {86016 - 6144 + 4096*k}\nv_lshl_add_u64 {vr(VTT,2)}, s[96:97], 0, {vr(VTB,2)}')
        for i in range(4): a.vm(f'global_load_lds_dwordx4 {vr(VTT,2)}, off offset:{1024*i}')
        if k == Cfg.w3b: a.vneed(('d', 104)); a('s_barrier')
    setflag2(a, 8, ('p',3))
    a.vdrain(); a('s_barrier\ns_branch L_fin')
    a('L_finw:'); a.restore(s0)
    lc = a.label('PR'); lk = a.label('PL')
    a(f's_cmp_lg_u32 s11, 0\ns_cbranch_scc1 {lc}')
    t = E(); t.nlab = 9000
    t(f'{lc}:\ns_nop 7'); emit(t, mix(cv, st))
    t.vm(poll_ins(200, 204, '0'), 'x'); t.vm(poll_ins(202, 205, '0'), 'y')
    poll_check(t, 'x', 200, 204, '0', 1); poll_check(t, 'y', 202, 205, '0', 1)
    t.drain()
    for q in range(93, 99):
        for f in plan(q, 'P'): f(t)
    t.vdrain(); emit(t, prd(0) + prd(1) + prd(2)); t.drain()
    C=lambda t: ar(TW+4*t); Sn=lambda t: ar(TW+8+4*t); N=lambda t: ar(TW+16+4*t)
    def inv(jj):
        yr=vr(YS[jj],16); yi=vr(YS[jj]+16,16); P=APF+16*jj; mf=[]
        for u in range(2):
            mf += [f'{M} {yr}, {ar(P+4*u)}, {C(u)}, {"0" if u==0 else yr}', f'{M} {yi}, {ar(P+8+4*u)}, {C(u)}, {"0" if u==0 else yi}',
                   f'{M} {yr}, {ar(P+8+4*u)}, {N(u)}, {yr}', f'{M} {yi}, {ar(P+4*u)}, {Sn(u)}, {yi}']
        return mf
    for x in inv(0): t(x)
    t(f's_nop 4\ns_branch {lk}'); a.ool += t.l + t.ool
    def pk(jj):
        o = []
        for q in range(4):
            o += [V(f'v_cvt_pk_bf16_f32 v{YS[jj]+8*q+i}, v{YS[jj]+8*q+2*i}, v{YS[jj]+8*q+2*i+1}') for i in range(4)]
            o.append(LD(f'ds_write_b128 v{VY}, {vr(YS[jj]+8*q)} offset:{8192*(2*jj+q%2)+1024*(q//2)}', 'yw'))
        return o
    a.need(('pf', 0))
    mf = inv(0)
    for x in mf[:2]: a(x)
    a('s_nop 2')
    interleave(a, mf[2:], mix(cv, st))
    a.need(('pf', 2))
    a(f'{lk}:')
    stamp(a, 'f1')
    eld(1, 56)(a); eld(0, 20)(a)
    for jj in (1, 2):
        mf = inv(jj)
        for x in mf[:2]: a(x)
        a('s_nop 5')
        interleave(a, mf[2:], pk(jj-1))
    def summ(hf):
        y = vr(GA[hf], 16)
        o = [f'{M} {y}, {ar(SEL)}, {ar(AB2+8*hf)}, 0', f'{M} {y}, {ar(SEL+4)}, {ar(AB2+8*hf+4)}, {y}']
        return o + [f'{M} {y}, {ar(SEL+4*(i%2))}, {vr(PTH[hf]+4*i)}, {y}' for i in range(16)]
    def ready(hf, both=False):
        if hf == 1:
            l = a.label('RD'); l2 = a.label('RE')
            a(f's_and_b32 s98, s{sCLS}, {8|32|128}\ns_cbranch_scc0 {l2}\ns_and_b32 s98, s{sCLS}, 128\ns_cselect_b32 s99, 0, {4|16}\ns_or_b32 s99, s99, 256\ns_and_b32 s98, s{sCLS}, s99\ns_cbranch_scc1 {l}\ns_waitcnt vmcnt(0)\n{l}:\ns_waitcnt vmcnt(16)\n{l2}:')
        else:
            cls_block(a, 64, lambda a: (a.drain(), eblock(a, 0, 20), emit(a, pl_ops(0, 0, 16))))
            a.vdrain()
        a.st['v'].pop(('pt', hf), None)
    VW = 7; VR = 3
    setup = sops(f"""s_mul_i32 s38, s{sWV}, 5120
    s_add_u32 s38, s38, {BIAS_LDS}
    v_and_b32 v{VW}, 31, v{VLANE}
    v_mul_u32_u24 v{VW}, 80, v{VW}
    v_add3_u32 v{VW}, v{VW}, v{VBI}, s38
    v_lshrrev_b32 v{VR}, 2, v{VLANE}
    v_mul_u32_u24 v{VR}, 80, v{VR}
    v_and_b32 v1, 3, v{VLANE}
    v_lshlrev_b32 v1, 4, v1
    v_add3_u32 v{VR}, v{VR}, v1, s38""")
    def fin(hf):
        o = []
        for g in range(0, 16, 4):
            y = [GA[hf]+g+i for i in range(4)]; t = [T+i for i in range(4)]; u = [248+i for i in range(4)]
            x = [f'v_mul_f32 v{t[i]}, s39, v{y[i]}' for i in range(4)]
            x += [f'v_exp_f32 v{t[i]}, v{t[i]}' for i in range(4)]
            x += [f'v_fma_f32 v{u[i]}, v{Oa+g+i}, s{sSG+hf}, v{Ea+g+i}' for i in range(4)]
            x += [f'v_add_f32 v{t[i]}, 1.0, v{t[i]}' for i in range(4)]
            x += [f'v_rcp_f32 v{t[i]}, v{t[i]}' for i in range(4)]
            x += [f'v_mul_f32 v{u[i]}, v{u[i]}, v{y[i]}' for i in range(4)]
            x += [f'v_mul_f32 v{t[i]}, v{t[i]}, v{u[i]}' for i in range(4)]
            x += [f'v_cvt_pk_bf16_f32 v{PK2+8*hf+g//2+i}, v{t[2*i]}, v{t[2*i+1]}' for i in range(2)]
            o += [V(z) for z in x] + [LD(f'ds_write_b64 v{VW}, {vr(PK2+8*hf+g//2,2)} offset:{2560*hf+4*g}')]
        for i in range(2): o.append(LD(f'ds_read_b128 {vr(PK2+8*hf+4*i)}, v{VR} offset:{2560*hf+1280*i}', ('tr', hf)))
        return o
    XU = [8, 120]
    def xun(hf):
        o = []; X = XU[hf]
        for d in range(8):
            o += [V(f'v_accvgpr_read_b32 v{X+1+2*d}, a{AX+8*hf+d}'), V(f'v_lshlrev_b32 v{X+2*d}, 16, v{X+1+2*d}'), V(f'v_and_b32 v{X+1+2*d}, 0xffff0000, v{X+1+2*d}')]
        return o
    def outp(hf):
        o = [FN(lambda a: a.need(('tr', hf)))]; X = XU[hf]
        for d in range(8):
            r = PK2+8*hf+d
            o += [V(f'v_lshlrev_b32 v252, 16, v{r}'), V(f'v_and_b32 v253, 0xffff0000, v{r}'), V(f'v_add_f32 v252, v252, v{X+2*d}'), V(f'v_add_f32 v253, v253, v{X+1+2*d}'),
                  V(f'v_cvt_pk_bf16_f32 v{r}, v252, v253')]
            if d % 4 == 3: o.append(VM(f'buffer_store_dwordx4 {vr(r-3)}, v{VO}, {S(SOUT)}, s{sXO+hf+2*(d//4)} offen {Cfg.ofl}'))
        return o
    def rdyg(i):
        j = i//4; r = i % 4; go = 12288*j + 1024*r
        a.lds(f'ds_read_b128 {ar(AY+4*r)}, v{VY} offset:{8192*(2*(j%3) + r//2) + 2048*(j//3) + 1024*(r%2)}', ('yg', i))
        if j < 2:    a.lds(f'ds_read_b128 {ar(4*r)}, v{VG} offset:{go}', ('yg', i))
        elif j == 2: a.lds(f'ds_read_b128 {ar(4*r)}, v247 offset:{8192*(r//2) + 1024*(r%2)}', ('yg', i))
        else:        a.lds(f'ds_read_b128 {ar(4*r)}, v{VG2} offset:{go-36864}', ('yg', i))
    stamp(a, 'f2')
    def mainm(i):
        j = i//4; u = (i//2) % 2
        d = vr(Ea if (u == 1) == (j < 5) else Oa, 16)
        a(f'{M} {d}, {ar(4*(i%4))}, {ar(AY+4*(i%4))}, {"0" if i in (0,2) else d}')
    def silu(hf):
        o = []
        for g in range(0, 16, 4):
            y = [GA[hf]+g+i for i in range(4)]; t = [T+i for i in range(4)]
            o += [V(f'v_mul_f32 v{t[i]}, s39, v{y[i]}') for i in range(4)] + [V(f'v_exp_f32 v{t[i]}, v{t[i]}') for i in range(4)] + [V(f'v_add_f32 v{t[i]}, 1.0, v{t[i]}') for i in range(4)]
            o += [V(f'v_rcp_f32 v{t[i]}, v{t[i]}') for i in range(4)] + [V(f'v_mul_f32 v{y[i]}, v{t[i]}, v{y[i]}') for i in range(4)]
        return o
    def comb(hf):
        o = []
        for g in range(0, 16, 4):
            u = [248+i for i in range(4)]
            o += [V(f'v_fma_f32 v{u[i]}, v{Oa+g+i}, s{sSG+hf}, v{Ea+g+i}') for i in range(4)] + [V(f'v_mul_f32 v{u[i]}, v{u[i]}, v{GA[hf]+g+i}') for i in range(4)]
            o += [V(f'v_cvt_pk_bf16_f32 v{PK2+8*hf+g//2+i}, v{u[2*i]}, v{u[2*i+1]}') for i in range(2)] + [LD(f'ds_write_b64 v{VW}, {vr(PK2+8*hf+g//2,2)} offset:{2560*hf+4*g}')]
        for i in range(2): o.append(LD(f'ds_read_b128 {vr(PK2+8*hf+4*i)}, v{VR} offset:{2560*hf+1280*i}', ('tr', hf)))
        return o
    if Cfg.f8 == 99: setflag2(a, 8, ('p',3))
    a(f's_bitcmp1_b32 s{sCLS}, 1\ns_cbranch_scc0 L_slow'); s_sl = a.snap()
    a.vneed(('d', 104))
    s1 = summ(1)
    for x in s1[:2]: a(x)
    a('s_nop 2')
    t = E(); etest(t, 0, 20)
    t(f's_cselect_b32 s98, {4|16}, 0\ns_and_b32 s98, s98, s{sCLS}\ns_cselect_b32 s99, 64, 0\ns_xor_b32 s{sCLS}, s{sCLS}, s98\ns_or_b32 s{sCLS}, s{sCLS}, s99')
    interleave(a, s1[2:9], pk(2) + [V(f'v_add_u32 v{VY}, {PB}, v{VL16}')])
    for x in s1[9:11]: a(x)
    stamp(a, 'f3')
    a.drain(); a('s_barrier')
    interleave(a, s1[11:], [FN(lambda a: rdyg(0)), FN(lambda a: rdyg(1)), FN(lambda a: rdyg(2))] + sops('\n'.join(t.l)) + ([FN(lambda a: setflag2(a, 8, ('p',3)))] if Cfg.f8 == 0 else []))
    stamp(a, 'f4')
    fl = xun(1) + silu(1) + xun(0); k2 = 0
    for i in range(36):
        if i + 3 < 36: rdyg(i+3)
        a.need(('yg', i))
        mainm(i)
        if i % Cfg.ls == 0 and i//Cfg.ls < 4: cls_block(a, 4|16, lambda a: emit(a, pl_ops(0, 4*(i//Cfg.ls), 4*(i//Cfg.ls)+4)))
        while k2 < len(fl)*(i+1)//34 and k2 < len(fl): fl[k2][1](a); k2 += 1
        if i == 24: a('s_barrier')
        if i == Cfg.e2nd: eld(0, 20)(a)
    emit(a, setup)
    stamp(a, 'f5')
    lf = a.label('FF'); s1 = summ(0)
    a(f's_bitcmp1_b32 s{sCLS}, 6\ns_cbranch_scc1 {lf}'); s0 = a.snap()
    a.vdrain()
    stamp(a, 'f6')
    interleave(a, s1, comb(1) + outp(1))
    a('s_nop 7\ns_branch L_last'); sa = a.snap()
    a(f'{lf}:'); a.restore(s0)
    a.drain()
    l = a.label('T0'); etest(a, 0, 20); a(f's_cbranch_scc1 {l}'); s0 = a.snap()
    emit(a, pl_ops(0, 0, 16)); a(f's_bitset0_b32 s{sCLS}, 6\n{l}:'); a.merge(s0, a.snap())
    eld(0, 20)(a)
    emit(a, comb(1) + outp(1))
    cls_block(a, 64, lambda a: (a.drain(), eblock(a, 0, 20), emit(a, pl_ops(0, 0, 16))))
    a.vdrain()
    stamp(a, 'f6')
    for x in s1: a(x)
    a('s_nop 10\ns_branch L_last'); sb = a.snap()
    a('L_slow:'); a.restore(s_sl)
    a('s_nop 7')
    emit(a, pk(2))
    a(f'v_add_u32 v{VY}, {PB}, v{VL16}')
    stamp(a, 'f3')
    a.vneed(('d', 104)); a.drain(); a('s_barrier')
    stamp(a, 'f4')
    for i in range(3): rdyg(i)
    if Cfg.f8 < 0: setflag2(a, 8, ('p',3))
    for hf in (1, 0):
        etest(a, hf, [20, 56][hf])
        a(f"""s_cselect_b32 s98, {(4|16) << hf}, 0
        s_and_b32 s98, s98, s{sCLS}
        s_cselect_b32 s99, {64 << hf}, 0
        s_xor_b32 s{sCLS}, s{sCLS}, s98
        s_or_b32 s{sCLS}, s{sCLS}, s99""")
    for i in range(36):
        if i + 3 < 36: rdyg(i+3)
        a.need(('yg', i))
        j = i//4; u = (i//2) % 2
        d = vr(Ea if (u == 1) == (j < 5) else Oa, 16)
        a(f'{M} {d}, {ar(4*(i%4))}, {ar(AY+4*(i%4))}, {"0" if i in (0,2) else d}')
        if i == Cfg.f8: setflag2(a, 8, ('p',3))
        k = i - Cfg.lg
        if k >= 0 and k % Cfg.ls == 0 and k//Cfg.ls < 8:
            k //= Cfg.ls
            cls_block(a, (4|16) << (1 - k//4), lambda a: emit(a, pl_ops(1 - k//4, 4*(k%4), 4*(k%4)+4)))
        if i == 24: a('s_barrier')
        if i == Cfg.e2nd: eld(1, 56)(a); eld(0, 20)(a)
    a.drain()
    cls_block(a, 128, lambda a: (eblock(a, 1, 56), eld(0, 20)(a), emit(a, pl_ops(1, 0, 16)), a.drain()))
    def try0(a):
        l = a.label('T0'); etest(a, 0, 20); a(f's_cbranch_scc1 {l}'); s0 = a.snap()
        emit(a, pl_ops(0, 0, 16)); a(f's_xor_b32 s{sCLS}, s{sCLS}, {64|256}\n{l}:'); a.merge(s0, a.snap())
        eld(0, 20)(a)
    cls_block(a, 64, try0)
    stamp(a, 'f5')
    ready(1, True)
    stamp(a, 'f6')
    interleave(a, summ(1), setup + xun(1))
    stamp(a, 'f7')
    s1 = summ(0)
    l1 = a.label('FA'); l2 = a.label('FB')
    a(f's_and_b32 s98, s{sCLS}, {Cfg.pm}\ns_cbranch_scc1 {l1}'); s0 = a.snap()
    ready(0)
    interleave(a, s1[:3], xun(0))
    interleave(a, s1[3:], fin(1))
    stamp(a, 'f8')
    emit(a, outp(1))
    a(f's_branch {l2}\n{l1}:'); s2 = a.snap(); a.restore(s0)
    a('s_nop 7')
    emit(a, fin(1) + xun(0))
    stamp(a, 'f8')
    ready(0)
    interleave(a, s1, outp(1))
    a('s_nop 9')
    a(f'{l2}:\nL_last:'); a.merge(s2, sa, sb, a.snap())
    stamp(a, 'f8b')
    emit(a, fin(0))
    stamp(a, 'f9')
    emit(a, outp(0))

def build(aslist=False):
    k = NAME + '_kernel'
    body = kernel()
    if Cfg.warm:
        import stubs
        body, st, end = stubs.add_stubs(body, '.set CODE_LINES, 17\n', ('L_main', 'L_odd', 'L_dft', 'L_s3', 'L_unit', 'L_s7e', 'L_s9', 'L_finw', 'L_last'), Cfg.wmode)
        print('stubs', {k: [hex(x) for x in v] for k, v in st.items()}, 'end', end, file=sys.stderr)
    hdr = f'; @launch kernel={k} grid=(256,1,1) block=(256,1,1) lds=163840\n' if aslist else '; @launch grid=(256,1,1) block=(256,1,1) lds=163840\n'
    s = '; generated by gen/v6.py\n' + hdr + '.amdgcn_target "amdgcn-amd-amdhsa--gfx950"\n.text\n.set CODE_LINES, 25\n'
    s += kstart(k) + body + 'L_codeend:\n'
    s += '.section .rodata,"a"\n' + kdesc(k, 512, 256) + tables()
    return s
if __name__ == '__main__':
    out = sys.argv[1] if len(sys.argv) > 1 else f'cdna_kernels/{NAME}.s'
    for x in sys.argv[2:]:
        if '=' in x:
            kx, vx = x.split('='); setattr(Cfg, kx, int(vx) if re.fullmatch(r'-?\d+', vx) and kx != 'sch' else vx)
    open(out, 'w').write(build('--list' in sys.argv))
```

```python
import math, struct
from common import NAME, f2u, bf16, kstart, kdesc, srd, vr, ar
class E:
    def __init__(self):
        self.l = []; self.st = {'l': {}, 'v': {}}; self.ool = []; self.nlab = 0; self.smem = False
    def __call__(self, s):
        for x in s.split('\n'):
            x = x.strip()
            if x: self.l.append(('' if x.endswith(':') else ' ') + x)
    def _iss(self, k, s, tag):
        self(s); d = self.st[k]
        for t in d: d[t] += 1
        if tag is not None: d[tag] = 0
    def lds(self, s, tag=None): self._iss('l', s, tag)
    def vm(self, s, tag=None): self._iss('v', s, tag)
    def _need(self, k, tags):
        d = self.st[k]; c = [d[t] for t in tags if t in d]
        if not c: return
        n = min(min(c), 15 if k == 'l' else 63)
        self(f's_waitcnt {"lgkmcnt" if k == "l" else "vmcnt"}({n})')
        for t in [t for t in d if d[t] >= n]: del d[t]
    def need(self, *tags): self._need('l', tags)
    def vneed(self, *tags): self._need('v', tags)
    def drain(self): self('s_waitcnt lgkmcnt(0)'); self.st['l'] = {}; self.smem = False
    def vdrain(self): self('s_waitcnt vmcnt(0)'); self.st['v'] = {}
    def snap(self): return {k: dict(v) for k, v in self.st.items()}
    def restore(self, s): self.st = {k: dict(v) for k, v in s.items()}
    def merge(self, *snaps):
        for k in self.st:
            d = {}
            for s in snaps:
                for t, c in s[k].items(): d[t] = min(d.get(t, c), c)
            self.st[k] = d
    def m0fix(self):
        if len(self.l) > 1 and self.l[-2].strip().startswith('ds_read'): self.l[-1], self.l[-2] = self.l[-2], self.l[-1]
        else: self('s_nop 0')
    def label(self, p='L'):
        self.nlab += 1; return f'{p}_{self.nlab}'
    def text(self): return '\n'.join(self.l + self.ool) + '\n'
H_OFF = 0;            H_SZ = 64*288*1024
PART_OFF = H_SZ;      PART_SZ = 64*18*8*2048
V_OFF = PART_OFF + PART_SZ; V_SZ = 32*9*64*128
P_OFF = V_OFF + V_SZ; P_SZ = V_SZ
FL_OFF = P_OFF + P_SZ
PFL_OFF = FL_OFF + 131072
VFL_OFF = PFL_OFF + 4096
FL2_OFF = VFL_OFF + 8192
DUM_OFF = FL2_OFF + 16384*8*4
WS_SZ = DUM_OFF + V_SZ
STAMP_OFF = 64 << 20
TABF_SZ = 5*73728; TABG_SZ = 3*110592; TAB64_SZ = 24576
def tables():
    s = ''
    for i in range(576):
        v = math.cos(2*math.pi*i/576)
        if abs(v) < 1e-9: v = 0.0
        s += f'.set .Lc{i}, {bf16(v)}\n'
    s += r'''.altmacro
.macro put8 q0,q1,q2,q3,q4,q5,q6,q7
.short .Lc\q0,.Lc\q1,.Lc\q2,.Lc\q3,.Lc\q4,.Lc\q5,.Lc\q6,.Lc\q7
.endm
.p2align 12
.type tabF,@object
tabF:
.set .Lj, 0
.rept 5
 .set .Lks, 0
 .rept 36
  .set .Lph, 0
  .rept 2
   .set .Ll, 0
   .rept 64
    .set .Lk, 32*.Lj + 1 + 16*((.Ll>>2)&1) + 4*((.Ll>>3)&3) + (.Ll&3)
    .set .Lp, (32*(.Lks>>1) + (.Lks&1) + 8*(.Ll >> 5))*.Lk + .Lph
    .if .Lk == 160
     .set .Lz, (0x3f00 + 0x8000*(.Lks&1)) * (1 - .Lph/144)
     .short .Lz,.Lz,.Lz,.Lz,.Lz,.Lz,.Lz,.Lz
    .else
     put8 %((.Lp)%576),%((.Lp+2*.Lk)%576),%((.Lp+4*.Lk)%576),%((.Lp+6*.Lk)%576),%((.Lp+16*.Lk)%576),%((.Lp+18*.Lk)%576),%((.Lp+20*.Lk)%576),%((.Lp+22*.Lk)%576)
    .endif
    .set .Ll, .Ll+1
   .endr
   .set .Lph, .Lph+144
  .endr
  .set .Lks, .Lks+1
 .endr
 .set .Lj, .Lj+1
.endr
.size tabF, .-tabF
.type tabG,@object
tabG:
.set .Ltr, 0
.rept 3
.set .Lj, 0
.rept 9
 .set .Lcc, 0
 .rept 3
  .set .Lt, 0
  .rept 2
   .set .Lph, 0
   .rept 2
    .set .Ll, 0
    .rept 64
     .set .Ln, 32*.Ltr + 96*.Lcc + (.Ll&31)
     .set .Lk, 32*.Lj + 16*(.Ll>>5) + .Lt + 1 - (.Lj/5)
     .set .Lp, .Ln*.Lk + .Lph
     .set .Lz, .Lp+14*.Ln
     .if .Lk == 146
      .set .Lz, .Ln*288 + .Lph
     .endif
     put8 %((.Lp)%576),%((.Lp+2*.Ln)%576),%((.Lp+8*.Ln)%576),%((.Lp+10*.Ln)%576),%((.Lp+4*.Ln)%576),%((.Lp+6*.Ln)%576),%((.Lp+12*.Ln)%576),%((.Lz)%576)
     .set .Ll, .Ll+1
    .endr
    .set .Lph, .Lph+144
   .endr
   .set .Lt, .Lt+1
  .endr
  .set .Lcc, .Lcc+1
 .endr
 .set .Lj, .Lj+1
.endr
.set .Ltr, .Ltr+1
.endr
.size tabG, .-tabG
.type tab64,@object
tab64:
.irp ph,0,432,144
 .set .Lcc, 0
 .rept 2
  .set .Lks, 0
  .rept 4
   .set .Ll, 0
   .rept 64
    .set .Ln, 9*(32*.Lcc + (.Ll&31))
    .set .Lp, .Ln*(16*.Lks + 4*(.Ll>>5)) + \ph
    put8 %((.Lp)%576),%((.Lp+.Ln)%576),%((.Lp+2*.Ln)%576),%((.Lp+3*.Ln)%576),%((.Lp+8*.Ln)%576),%((.Lp+9*.Ln)%576),%((.Lp+10*.Ln)%576),%((.Lp+11*.Ln)%576)
    .set .Ll, .Ll+1
   .endr
   .set .Lks, .Lks+1
  .endr
  .set .Lcc, .Lcc+1
 .endr
.endr
.size tab64, .-tab64
.noaltmacro
'''
    return s
```

```python
import sys, re
from common2 import *
M = 'v_mfma_f32_32x32x16_bf16'
VL16=0; VT1=1; VLANE=2; VT3=3; VA1=4; VB1=5; VA2=6; VB2=7
XF=8; ACC=[152,184]; TMP=216; HO=224; TA=240; VBI=246; VC0=247; VFL=248; VPO=250; VTB=252; VTT=254
HF=32; TW=176
SX,SW1,SW2,SWS,SWR,SWI,SOUT,SB,SDBG = 4,8,12,16,20,24,28,32,36
sWV,sI,sC,sB,sROLE,sNON = 40,41,42,43,44,45
sO1=46; sO2=55; sW2K=64; sHS=65; sPS=66; sFLG=67; sT=68; sT2=69; sGC1=70; sP=71
sRHO=39
sX0=96
R_ODD,R_DFT,R_SMID,R_UNIT,R_FIN,R_FINW,R_PATCH = 0,1,2,3,4,5,6
PF=3; NB=4
GC0 = -2.0*math.log2(math.e)*math.sqrt(2/math.pi); GC1 = GC0*0.044715
BIAS_LDS = 147456
B2_LDS = 163840 - 2048
class Cfg:
    stamps=False; st='1,2,3,4,5,6,7,8,9,10'; xa=3; lg=1; pm=340; f8=99; w3d=1; f2o=44; e2nd=22; blk=0; f6=60; p9=30; sch='1x-1'; ta=22; tws=1; nso=1; ct=1; xl=6; pts='20'; mw=1; cp=0; fs=1; fw=1; pd=18; ls=3; rf=1; w3b=0; ecl=1; ge=40; c5=24; pe=23; e8=6; nt=0; f5h=76; noclr=0; t1=5; t2=99; ne=9; c0=20; b2=1; pz1=0; pz2=4; sd=4; tw1=1; warm=1; wmode='execz'; clk=0; xe=1; fp=3; f7=60; gs=55; l9=46; l10=34; mg=0; tn=108; w2k=99; rots=1; np=6; te=0; pt='w2,b1,b2,wr,wi,dbg'; w3=1; xo=1; f16=1; gs0=1; e2=50; l2=0; t9=30; t10=8; pfg=44; ofl=''; h8=44; f4=26; c4=20; f5=14; p8=60; fg=24; pg=52; cg=8; tb=4; normin=0; rx=8; rota=1; rotb=1; touch='x2,w,tab,code'; spin=100000; slp=8; slp2=2; rr=1; wt=1
def h2(x):
    u = struct.unpack('<H', struct.pack('<e', x))[0]; return u | u << 16
def S(b): return f's[{b}:{b+3}]'
def stamp(a, nm):
    if not Cfg.stamps: return
    L = ['0'] + Cfg.st.split(',') + ['11']
    nm = str(nm)
    if nm in L:
        i = L.index(nm) if nm != '11' else 11
        a(f'{"s_memtime" if Cfg.clk else "s_memrealtime"} s[{72+2*i}:{73+2*i}]')
def stamp_flush(a, n):
    if not Cfg.stamps: return
    a.vdrain(); stamp(a, n); n += 1
    a(f'''s_waitcnt lgkmcnt(0)
    s_mov_b32 s{SWS+2}, {STAMP_OFF + (1<<20)}
    v_mov_b32 v1, 0''')
    for i in range(n): a(f'v_writelane_b32 v1, s{72+2*i}, {i}')
    a(f'v_writelane_b32 v1, s53, 12\nv_writelane_b32 v1, s11, 13\nv_writelane_b32 v1, s{sP}, 14')
    a(f'''s_lshl_b32 s{sT}, s2, 3
    s_add_u32 s{sT}, s{sT}, s{sWV}
    s_lshl_b32 s{sT}, s{sT}, 6
    s_add_u32 s{sT}, s{sT}, {STAMP_OFF}
    v_lshlrev_b32 v3, 2, v{VLANE}
    s_mov_b64 exec, 0xffff
    buffer_store_dword v1, v3, {S(SWS)}, s{sT} offen
    s_mov_b64 exec, -1''')
def brole(a, bit, lab, ifset=True):
    a(f's_bitcmp1_b32 s{sROLE}, {bit}\ns_cbranch_scc{1 if ifset else 0} {lab}')

def V(s, c=1): return (c, lambda a: a(s))
def VM(s, tag=None): return (1, lambda a: a.vm(s, tag))
def LD(s, tag=None): return (1, lambda a: a.lds(s, tag))
def FN(f, c=1): return (c, f)
def SVM(pre, s, tag=None): return (1, lambda a: (a(pre), a.vm(s, tag)))
def emit(a, ops):
    for _, f in ops: f(a)

def sops(txt):
    L = [x.split(';')[0].strip() for x in txt.split('\n')]; L = [x for x in L if x]
    o = []; cur = []
    for i, x in enumerate(L):
        cur.append(x)
        nx = L[i+1] if i+1 < len(L) else ''
        if nx.startswith(('s_cselect', 's_addc', 's_subb', 'v_cndmask', 's_nop')) or x.startswith(('s_nop', 'v_cmp')): continue
        o.append(V('\n'.join(cur), len(cur))); cur = []
    return o
def mix(x, y):
    o = []; k = 0
    for i, e in enumerate(x):
        o.append(e)
        t = len(y)*(i+1)//len(x)
        while k < t: o.append(y[k]); k += 1
    return o
def gelu_ops(acc, job, nb=None, sd=0):
    ops = []; G = 4; held = []
    for g in range(0, 32, G):
        t = [TMP + (g//G % 2)*4 + i for i in range(G)]
        x = [acc + g + i for i in range(G)]
        if not Cfg.f16:
            for i in range(G): ops.append(V(f'v_mul_f32 v{t[i]}, v{x[i]}, v{x[i]}'))
            for i in range(G): ops.append(V(f'v_fma_f32 v{t[i]}, v{t[i]}, s{sGC1}, v{VC0}'))
            for i in range(G): ops.append(V(f'v_mul_f32 v{t[i]}, v{t[i]}, v{x[i]}'))
            for i in range(G): ops.append(V(f'v_exp_f32 v{t[i]}, v{t[i]}', 2))
            for i in range(G): ops.append(V(f'v_add_f32 v{t[i]}, 1.0, v{t[i]}'))
            for i in range(G): ops.append(V(f'v_rcp_f32 v{t[i]}, v{t[i]}', 2))
            for i in range(G): ops.append(V(f'v_mul_f32 v{t[i]}, v{t[i]}, v{x[i]}'))
        else:
            HI = 'dst_sel:WORD_1 dst_unused:UNUSED_PRESERVE src0_sel:WORD_1'
            t = [TMP + i for i in range(4)]; u = [TMP + 4, TMP + 5]; w = [TMP + 6, TMP + 7]
            for i in range(2): ops.append(V(f'v_cvt_pk_f16_f32 v{u[i]}, v{x[2*i]}, v{x[2*i+1]}'))
            for i in range(2): ops.append(V(f'v_pk_mul_f16 v{w[i]}, v{u[i]}, v{u[i]}'))
            for i in range(2): ops.append(V(f'v_pk_fma_f16 v{w[i]}, v{w[i]}, s{sGC1}, v{VC0}'))
            for i in range(2): ops.append(V(f'v_pk_mul_f16 v{u[i]}, v{w[i]}, v{u[i]}'))
            for i in range(2): ops.append(V(f'v_exp_f16 v{w[i]}, v{u[i]}', 2))
            for i in range(2): ops.append(V(f'v_exp_f16_sdwa v{w[i]}, v{u[i]} {HI}', 2))
            for i in range(2): ops.append(V(f'v_pk_add_f16 v{u[i]}, v{w[i]}, 1.0 op_sel_hi:[1,0]'))
            for i in range(2): ops.append(V(f'v_rcp_f16 v{t[2*i]}, v{u[i]}', 2))
            for i in range(2): ops.append(V(f'v_rcp_f16_sdwa v{t[2*i+1]}, v{u[i]} dst_sel:WORD_0 dst_unused:UNUSED_PAD src0_sel:WORD_1', 2))
            for i in (0, 2, 1, 3): ops.append(V(f'v_fma_mix_f32 v{t[i]}, v{x[i]}, v{t[i]}, 0 op_sel_hi:[0,1,0]'))
        if nb is not None: ops.append((2, lambda a, g=g: a.lds(f'ds_read_b128 {vr(acc+g)}, v{VBI} offset:{256*nb + 8*g}', 'bias')))
        for i in range(0, G, 2): ops.append(V(f'v_cvt_pk_bf16_f32 v{HO + (g+i)//2}, v{t[i]}, v{t[i+1]}'))
        for i in range(0, G, 2): ops.append(V(f'v_accvgpr_write_b32 a{HF + 16*job + (g+i)//2}, v{HO + (g+i)//2}'))
        if g % 8 == 4:
            q = g // 8
            if q == 0: ops.append(V(f's_add_u32 s{sT2}, s{sHS}, {4096*job}'))
            held.append(VM(f'buffer_store_dwordx4 {vr(HO+4*q)}, v{VL16}, {S(SWS)}, s{sT2} offen offset:{1024*q} sc1', ('h', job)))
        if held and g//4 >= sd: ops.append(held.pop(0))
    return ops
def part_ops(acc, lam):
    ops = []
    for q in range(4):
        if q % 2 == 0: ops.append(V(f's_add_u32 s{sT2}, s{sPS}, {16384*(2*lam + q//2)}' if lam != 9 else f's_add_u32 s{sT2}, s{sL9}, {16384*(q//2)}'))
        for i in range(4): ops.append(V(f'v_cvt_pk_bf16_f32 v{HO+4*q+i}, v{acc+8*q+2*i}, v{acc+8*q+2*i+1}'))
        ops.append(VM(f'buffer_store_dwordx4 {vr(HO+4*q)}, v{VL16}, {S(SWS)}, s{sT2} offen offset:{1024*(q%2)} sc1', ('p', lam)))
    return ops
def clear_ops(sreg, imms, tag, r=HO):
    if Cfg.noclr: return [V('s_nop 0')]
    ops = [V(f'v_mov_b32 v{r+i}, -1' if r > 0 else f'v_accvgpr_write_b32 a{-r+i}, -1') for i in range(4)]
    ops = [(0, f) for _, f in ops]
    for im in imms:
        for k in range(2): ops.append(SVM(f's_add_u32 s3, s{sreg}, {im}', f'buffer_store_dwordx4 {vr(r) if r > 0 else ar(-r)}, v{VL16}, {S(SWS)}, s3 offen offset:{1024*k} sc1', tag))
    return ops
def sent_check(a, tag, regs, t, reload_lines, probe=None, slp=None):
    lc = a.label('SC'); ls = a.label('SS'); lk = a.label('SK')
    a.vneed(tag)
    a(f'{lc}:')
    rs = []
    for i, r in enumerate(regs):
        if r[0] == 'a': a(f'v_accvgpr_read_b32 v{t+i}, {r}'); rs.append(f'v{t+i}')
        else: rs.append(r)
    a(f'v_max_u32 v{t}, {rs[0]}, {rs[1]}')
    for i in range(2, len(rs), 2): a(f'v_max3_u32 v{t}, v{t}, {rs[i]}, {rs[i+1]}')
    a(f'v_cmp_eq_u32 vcc, -1, v{t}\ns_nop 1\ns_cmp_lg_u64 vcc, 0\ns_cbranch_scc1 {ls}\n{lk}:')
    pr = []
    if probe:
        pr = [' ' + x for x in probe[0]] + [f' v_and_b32 v{t+1}, {probe[1]}, v{VLANE}', f' v_lshlrev_b32 v{t+1}, 10, v{t+1}', f' buffer_load_dword v{t}, v{t+1}, {S(SWS)}, s3 offen offset:1020 sc1',
              ' s_waitcnt vmcnt(0)', f' v_cmp_eq_u32 vcc, -1, v{t}', ' s_nop 1', ' s_cmp_lg_u64 vcc, 0', f' s_cbranch_scc1 {ls}']
    a.ool += [f'{ls}:', f' s_sub_u32 s{sP}, s{sP}, 1', f' s_cbranch_scc1 {ls}_x', f' s_sleep {slp or (Cfg.slp2 if probe else Cfg.slp)}'] + pr + [x if x.endswith(':') else ' ' + x for x in reload_lines] + [' s_waitcnt vmcnt(0)', f' s_branch {lc}',
              f'{ls}_x:', f' s_mov_b32 s{sP}, 0', f' s_branch {lk}']
def lines_of(ops):
    t = E(); emit(t, ops); return [x.strip() for x in t.l]
def norm_ops(u):
    T = HO; r = XF + 8*u; ops = []
    for i in range(8): ops.append(V(f'v_dot2_f32_bf16 v{T+i}, v{r+i}, v{TMP+4}, v{TMP}'))
    for i in range(8): ops.append(V(f'v_dot2_f32_bf16 v{T+8+i}, v{r+i}, v{TMP+5}, v{TMP}'))
    for i in range(8): ops.append(V(f'v_cvt_pk_bf16_f32 v{r+i}, v{T+2*i}, v{T+2*i+1}'))
    return ops
def setflag(a, stage, *tags, off=None):
    a(f'v_mov_b32 v{VFL+1}, {stage}')
    a.vneed(*tags)
    a('s_mov_b64 exec, 1')
    a.vm(f'buffer_store_dwordx2 {vr(VFL,2)}, off, {S(SWS)}, s{sFLG if off is None else off} sc1')
    a('s_mov_b64 exec, -1')
def setflag2(a, stage, *tags):
    a(f'v_add_u32 v{VFL+1}, {stage-1}, v{VFL}')
    a(f's_add_u32 s3, s{sFLG}, {(stage-5)*16384*Cfg.fw if Cfg.fs else 0}')
    a.vneed(*tags)
    a('s_mov_b64 exec, 1')
    a.vm(f'buffer_store_dword v{VFL+1}, off, {S(SWS)}, s3 sc1')
    a('s_mov_b64 exec, -1')
def poll_ins(p, voff, soff): return f'buffer_load_dwordx2 {vr(p,2)}, v{voff}, {S(SWS)}, {soff} offen sc1' if voff is not None else f'buffer_load_dwordx2 {vr(p,2)}, off, {S(SWS)}, {soff} sc1'
def poll_test(a, p, need):
    a(f'''v_subrev_u32 v{p+1}, {need}, v{p+1}
    v_cmp_ne_u32 vcc, s{sNON}, v{p}
    v_cmp_lt_u32 s[{sX0+4}:{sX0+5}], 60, v{p+1}
    s_nop 1
    s_or_b64 vcc, vcc, s[{sX0+4}:{sX0+5}]''')
SPL = 0
def spoll_i(a): a(f's_buffer_load_dwordx2 s[{SPL}:{SPL+1}], {S(SWS)}, s34 glc'); a.smem = True
def spoll_c(need):
    def f(a):
        lc = a.label('QC'); lk = a.label('QK')
        a.drain()
        a(f"""s_sub_u32 s{SPL+1}, s{SPL+1}, {need}
        s_cmp_lt_u32 s{SPL+1}, 60
        s_cselect_b32 s{SPL}, s{SPL}, 0
        s_cmp_lg_u32 s{SPL}, s{sNON}
        s_cbranch_scc1 {lc}
        {lk}:""")
        t = E(); poll_test(t, VPO, need)
        a.ool += [f'{lc}:', ' ' + poll_ins(VPO, None, 's34'), ' s_waitcnt vmcnt(0)'] + t.l + [f' s_cbranch_scc0 {lk}', f' s_sub_u32 s{sP}, s{sP}, 1', f' s_cbranch_scc1 {lc}_x', f' s_sleep {Cfg.slp}', f' s_branch {lc}',
                  f'{lc}_x:', f' s_mov_b32 s{sP}, 0', f' s_branch {lk}']
    return f
def poll_check(a, tag, p, voff, soff, need):
    lc = a.label('PC'); ls = a.label('PS'); lk = a.label('PK')
    a.vneed(tag)
    a(f'{lc}:'); poll_test(a, p, need)
    a(f's_cbranch_scc1 {ls}\n{lk}:')
    a.ool += [f'{ls}:', f' s_sub_u32 s{sP}, s{sP}, 1', f' s_cbranch_scc1 {ls}_x', f' s_sleep {Cfg.slp}', ' ' + poll_ins(p, voff, soff), ' s_waitcnt vmcnt(0)', f' s_branch {lc}',
              f'{ls}_x:', f' s_mov_b32 s{sP}, 0', f' s_branch {lk}']

def slot(q): return (q % 18) * 8192
def rd_ops(kind, q, kk, n):
    fb = (n % NB) * 8; s = slot(q) + kk*2048
    if kind == 'dft':
        b = s // 49152; off = s % 49152
        return [(f'ds_read_b128 {ar(fb)}, v{VPO+b} offset:{off}', ('f', n)), (f'ds_read_b128 {ar(fb+4)}, v{VPO+b} offset:{off+1024}', ('f', n))]
    b = s // 49152; off = s % 49152; L = TA + 2*b; R = L + 1
    return [(f'ds_read_b64_tr_b16 {ar(fb,2)}, v{L} offset:{off}', ('f', n)), (f'ds_read_b64_tr_b16 {ar(fb+2,2)}, v{L} offset:{off+512}', ('f', n)),
            (f'ds_read_b64_tr_b16 {ar(fb+4,2)}, v{R} offset:{off}', ('f', n)), (f'ds_read_b64_tr_b16 {ar(fb+6,2)}, v{R} offset:{off+512}', ('f', n))]
def dma_buf(q, srd_, va, vb, sreg, imm, fl='', srd2=None):
    if Cfg.nso and imm <= 1024 and slot(q) >= imm:
        def f0(a):
            a(f's_add_u32 m0, s{sW2K}, {slot(q) - imm}')
            a.m0fix()
            a.vm(f'buffer_load_dwordx4 v{va}, {S(srd_)}, s{sreg} offen offset:{imm} {fl} lds', ('d', q))
        def f1(a): a.vm(f'buffer_load_dwordx4 v{vb}, {S(srd2 or srd_)}, s{sreg} offen offset:{1024+imm} {fl} lds', ('d', q))
        return [f0, f1]
    def f0(a):
        a(f's_add_u32 m0, s{sW2K}, {slot(q)}\ns_add_u32 s{sT}, s{sreg}, {imm}')
        a.vm(f'buffer_load_dwordx4 v{va}, {S(srd_)}, s{sT} offen {fl} lds', ('d', q))
    def f1(a): a.vm(f'buffer_load_dwordx4 v{vb}, {S(srd2 or srd_)}, s{sT} offen offset:1024 {fl} lds', ('d', q))
    return [f0, f1]
def dma_tab(q, imm=None, sreg=None):
    def f0(a):
        a(f's_add_u32 m0, s{sW2K}, {slot(q)}')
        if sreg is None: a(f's_mov_b32 s{sX0}, {imm}')
        else: a(f's_lshl_b32 s{sX0}, s{sreg}, 13\ns_add_u32 s{sX0}, s{sX0}, s{sPS}')
        a(f'v_lshl_add_u64 {vr(VTT,2)}, s[{sX0}:{sX0+1}], 0, {vr(VTB,2)}')
        a.vm(f'global_load_lds_dwordx4 {vr(VTT,2)}, off', ('d', q))
    def f1(a): a.vm(f'global_load_lds_dwordx4 {vr(VTT,2)}, off offset:1024', ('d', q))
    return [f0, f1]
def dma_alt(bit, ifset, ifclr, cond=None):
    def f0(a):
        l1 = a.label('DA'); l2 = a.label('DB')
        if not ifclr:
            brole(a, bit, l1, False); s0 = a.snap()
            for f in ifset: f(a)
            a(f'{l1}:'); a.merge(s0, a.snap()); return
        brole(a, bit, l1)
        s0 = a.snap()
        if ifclr:
            for f in ifclr: f(a)
        s1 = a.snap()
        if ifset:
            a(f's_branch {l2}\n{l1}:'); a.restore(s0)
            for f in ifset: f(a)
            a(f'{l2}:'); a.merge(s1, a.snap())
        else:
            a(f'{l1}:'); a.merge(s0, s1)
    return [f0, lambda a: None]
GORD = [1,2,3,4,0,5,6,7,8]; GE = [1,2,3,0,5,4,6,7,8]
class _EO:
    def __getitem__(self, i):
        L = [(6,0),(1,1),(7,0),(2,1),(3,1),(4,1),(0,1),(5,1),(6,1),(7,1),(8,1)]; L.insert(Cfg.e8, (8,0)); return L[i]
EORD = _EO()
def NT(b): return 'nt' if Cfg.nt & b else ''
def w1p(q): return dma_buf(q, SW1, VA1, VB1, sO1 + q % 9, 128*(q//9), NT(4))
def w2p(q, g, lam): return dma_buf(q, SW2, VA2, VB2, sO2 + g, 128*lam)
sSV, sFP, sL9 = 46, 54, 10
HOT = []
def plan(q, role=None):
    if q < 27 and role == 'N': return []
    if q < 9 and role == 'D': return dma_tab(q, sreg=sO2+q)
    if q < 45: return w1p(q)
    if q < 72:
        assert role
        if role == 'O':
            return w2p(q, GORD[(q-45)//2], 4 + 2*((q-45) % 2)) if q < 63 else w2p(q, GORD[q-63], 5)
        if q < 51: return w2p(q, GE[q-45], 0)
        if q < 54: return dma_tab(q, TABF_SZ + TABG_SZ + 8192*(q-51))
        if q < 57: return dma_buf(q, SWS, VL16, VL16, sSV, 8192*(q-54), 'sc1 ' + NT(1))
        if q < 60: return []
        return w2p(q, *EORD[q-60])
    if q < 90: return w2p(q, GORD[(q-72) % 9], 2 + (q-72)//9)
    k = q - 90
    if k < 3: return dma_tab(q, 8192*k)
    if k < 9:
        pp = dma_buf(q, SWS, VL16, VL16, sFP, 2048*(k-3), 'sc1')
        if role == 'P': return pp
        def f(a):
            l1 = a.label('DA'); l2 = a.label('DB')
            a(f's_cmp_lg_u32 s11, 0\ns_cbranch_scc1 {l1}')
            for g in pp: g(a)
            a(f'{l2}:')
            t = E(); t(f'{l1}:')
            for g in dma_tab(q, 24576 - 6144 + 2048*(k-3)): g(t)
            t(f's_branch {l2}'); HOT.extend(t.l)
        return [f]
    return dma_tab(q, 8192*k - 36864)

def bias_ops(acc, job): return [LD(f'ds_read_b128 {vr(acc+4*q)}, v{VBI} offset:{256*job + 32*q}', 'bias') for q in range(8)]
def bias_reads(a, acc, job):
    for q in range(8): a.lds(f'ds_read_b128 {vr(acc+4*q)}, v{VBI} offset:{256*job + 32*q}', 'bias')

def run(a, q0, npc, kind, mf, fills, nxt='tr', nextbias=None, norm=False, events=None, role=None, pause=None):
    events = events or {}
    N = 4*npc; n0 = 4*q0
    dq = []
    fs = [[ops, s, e, 0, 0, sum(c for c, _ in ops)] for ops, s, e in fills]
    for i in range(N):
        n = n0 + i; q = q0 + i//4; kk = i % 4
        j = i + PF; qn = q0 + j//4
        k2 = kind if j < N else nxt
        r = rd_ops(k2, qn, j % 4, n + PF) if k2 else []
        fb = (n % NB) * 8
        if kk == 0:
            for qq in events.get(('dma0', q), []) + [q + 12] + events.get(('dma', q), []): dq += plan(qq, role)
        paused = pause and pause[0] <= i//4 < pause[0] + pause[1]
        for h in range(2):
            gap = 2*i + h
            if h == 0 and kk == 0: stamp(a, f'q{q}')
            stamp(a, f'g{q0}_{gap}')
            for f in events.get(('pre', gap), []): f(a)
            if h == 0: a.need(('f', n), *(['bias'] if i == 0 else []), *([('f', n+1)] if Cfg.w2k and i % 2 == 0 and q < Cfg.w2k and not a.smem else []))
            acc, op, zero = mf(i//4, kk, h)
            d = vr(acc, 16) if acc >= 0 else ar(-acc, 16); c = '0' if zero else d
            if kind == 'dft': a(f'{M} {d}, {op}, {ar(fb+4*h)}, {c}')
            else:             a(f'{M} {d}, {ar(fb+4*h)}, {op}, {c}')
            if h == 0 and j % 12 == 0 and k2 and (4*q0) % 12 == 0:
                a.vneed(('d', qn), ('d', qn+1), ('d', qn+2), *events.get(('bar', qn), [])); a('s_barrier')
            if h == 0 and j == N and nextbias is not None:
                assert all(f[3] == len(f[0]) for f in fs)
                bias_reads(a, *nextbias)
            m = len(r)//2
            for ins, t in r[h*m:(h+1)*m]: a.lds(ins, t)
            if dq and not paused and ((h == 1 and (kk % 2 == 0 or len(dq) > 2)) or (len(dq) > N - i - 1)): dq.pop(0)(a)
            if norm and i//2 + 1 < 18:
                emit(a, norm_ops(i//2 + 1)[6*(gap % 4):6*(gap % 4)+6])
            for f in fs:
                if gap >= f[1]:
                    target = f[5] * min(1.0, (gap - f[1] + 1) / (f[2] - f[1]))
                    while f[3] < len(f[0]) and f[4] + f[0][f[3]][0]/2 <= target:
                        f[0][f[3]][1](a); f[4] += f[0][f[3]][0]; f[3] += 1
            for f in events.get(gap, []): f(a)
    assert all(f[3] == len(f[0]) for f in fs) and not dq
def only(bit, f):
    def g(a):
        l = a.label('ON'); brole(a, bit, l, False); s0 = a.snap()
        f(a); a(f'{l}:'); a.merge(s0, a.snap())
    return g
def masked(test, f):
    def g(a):
        a(test + '\ns_cselect_b64 exec, -1, 0'); s0 = a.snap()
        f(a); a('s_mov_b64 exec, -1'); a.merge(s0, a.snap())
    return g
def rolem(bit, f): return masked(f's_bitcmp1_b32 s{sROLE}, {bit}', f)
def rolem_ops(bit, ops, n): return [FN(rolem(bit, lambda a, x=ops[i:i+n]: emit(a, x))) for i in range(0, len(ops), n)]
def only_ops(bit, ops, n):
    return [FN(only(bit, lambda a, x=ops[i:i+n]: emit(a, x))) for i in range(0, len(ops), n)]
def first_reads(a, kind, q):
    for ks in range(PF):
        for ins, t in rd_ops(kind, q, ks, 4*q + ks): a.lds(ins, t)
def interleave(a, mf, ops, start=0):
    n = len(mf) - start; k = 0
    for i, x in enumerate(mf):
        a(x)
        if i >= start:
            t = len(ops) * (i - start + 1) // n
            while k < t: ops[k][1](a); k += 1

def twiddle_ops(dst, t, sym, sb, scale=None):
    o = [f'v_and_b32 v{t}, 31, v{VLANE}', f'v_lshrrev_b32 v{t+1}, 5, v{VLANE}']
    if sym == 'fwd':
        o += [f'v_lshlrev_b32 v{t+1}, 8, v{t+1}', f'v_add_u32 v{t+1}, s{sb}, v{t+1}', f'v_mul_u32_u24 v{t+1}, v{t+1}, v{t}', f'v_lshlrev_b32 v{t}, 6, v{t}']
        mult = lambda tt, e: 16*tt + (e & 3) + 8*(e >> 2)
    else:
        o += [f'v_lshlrev_b32 v{t}, 6, v{t}', f'v_add_u32 v{t}, s{sb}, v{t}', f'v_lshlrev_b32 v{t+1}, 3, v{t+1}', f'v_mul_u32_u24 v{t+1}, v{t+1}, v{t}']
        mult = lambda tt, e: 16*tt + e
    for tt in range(2):
        for e in range(0, 8, 2):
            for i in range(2): o.append(f'v_mad_u32_u24 v{t+2+i}, v{t}, {mult(tt, e+i)}, v{t+1}')
            for i in range(2): o.append(f'v_and_b32 v{t+2+i}, 0x7ff, v{t+2+i}')
            for i in range(2): o.append(f'v_cvt_f32_u32 v{t+2+i}, v{t+2+i}')
            for i in range(2): o.append(f'v_mul_f32 v{t+2+i}, {f2u(1/2048):#x}, v{t+2+i}')
            for i in range(2): o.append(f'v_cos_f32 v{t+4+i}, v{t+2+i}')
            for i in range(2): o.append(f'v_sin_f32 v{t+2+i}, v{t+2+i}')
            if scale:
                for i in (2,3,0,1): o.append(f'v_mul_f32 v{t+2+i}, {f2u(scale):#x}, v{t+2+i}')
            d = 4*tt + e//2
            o += [f'v_cvt_pk_bf16_f32 v{t+4}, v{t+4}, v{t+5}', f'v_cvt_pk_bf16_f32 v{t+2}, v{t+2}, v{t+3}', f'v_accvgpr_write_b32 a{dst+d}, v{t+4}',
                  f'v_xor_b32 v{t+3}, 0x80008000, v{t+2}', f'v_accvgpr_write_b32 a{dst+8+d}, v{t+2}', f'v_accvgpr_write_b32 a{dst+16+d}, v{t+3}']
    return [V(x) for x in o]

def prologue(a):
    rx = Cfg.rx; cx = 32//rx; nxc = 16//cx
    a(f"""s_cmpk_ge_u32 s2, 256
    s_cbranch_scc1 L_end
    s_load_dwordx16 s[44:59], s[0:1], 0
    s_load_dwordx4 s[60:63], s[0:1], 64
    s_load_dwordx2 s[64:65], s[0:1], 80
    s_memrealtime s[66:67]""")
    stamp(a, 0)
    a(f"""s_getpc_b64 s[100:101]
    L_pcref:
    s_lshr_b32 s97, s2, 3
    s_mul_i32 s97, s97, CODE_LINES*128
    v_lshlrev_b32 v{VPO}, 7, v0
    v_add_u32 v{VPO}, s97, v{VPO}
    v_min_u32 v{VPO}, L_codeend-L_pcref-4, v{VPO}
    v_mov_b32 v{VPO+1}, 0
    v_lshl_add_u64 {vr(VPO,2)}, s[100:101], 0, {vr(VPO,2)}
    v_cmp_gt_u32 vcc, CODE_LINES, v0
    s_and_saveexec_b64 s[98:99], vcc
    s_cbranch_execz L_noct
    global_load_dword a255, {vr(VPO,2)}, off
    L_noct:
    s_mov_b64 exec, -1
    s_and_b32 s96, s2, 7
    s_lshr_b32 s97, s2, 3
    s_and_b32 s{sC}, s96, {nxc-1}
    s_mul_i32 s{sC}, s{sC}, {cx}
    s_and_b32 s98, s97, {cx-1}
    s_add_u32 s{sC}, s{sC}, s98
    s_lshr_b32 s{sI}, s96, {nxc.bit_length()-1}
    s_mul_i32 s{sI}, s{sI}, {rx}
    s_lshr_b32 s98, s97, {cx.bit_length()-1}
    s_add_u32 s{sI}, s{sI}, s98
    v_lshrrev_b32 v1, 6, v0
    v_and_b32 v{VLANE}, 63, v0
    v_mov_b32 v{VTT}, v0
    v_readfirstlane_b32 s{sWV}, v1
    v_lshlrev_b32 v{VL16}, 4, v{VLANE}
    v_lshrrev_b32 v1, 3, v{VLANE}
    v_and_b32 v3, 7, v{VLANE}
    v_lshrrev_b32 v4, 1, v1
    v_xor_b32 v3, v3, v4
    s_mov_b32 s96, 73728
    v_mul_lo_u32 v1, v1, s96
    v_lshl_add_u32 v144, v3, 4, v1
    v_xor_b32 v145, 64, v144
    v_add_u32 v145, {8*73728-1024}, v145
    v_add_u32 v146, {16*73728}, v144
    v_add_u32 v147, {16*73728}, v145
    s_lshl_b32 s{sB}, s{sI}, 2
    s_add_u32 s{sB}, s{sB}, s{sWV}
    s_mul_i32 s96, s{sI}, {Cfg.rota}
    s_lshr_b32 s97, s{sC}, {Cfg.rots}
    s_mul_i32 s97, s97, {Cfg.rotb}
    s_add_u32 s96, s96, s97
    s_mul_i32 s97, s96, 7282
    s_lshr_b32 s97, s97, 16
    s_mul_i32 s97, s97, 9
    s_sub_u32 s96, s96, s97         ; rot
    s_mul_i32 s3, s{sB}, 1152
    s_lshl_b32 s99, s{sWV}, 11
    s_getpc_b64 s[100:101]
    s_add_u32 s100, s100, tabF@rel32@lo+4
    s_addc_u32 s101, s101, tabF@rel32@hi+12
    s_mov_b32 s{SX+2}, {2048*1152}
    s_mov_b32 s{SX+3}, 0x20000
    s_lshl_b32 s{sT}, s96, 7
    s_add_u32 s{sT}, s{sT}, s3
    s_mov_b32 m0, s99
    s_waitcnt lgkmcnt(0)
    s_mov_b32 s{SX}, s44
    s_and_b32 s{SX+1}, s45, 0xffff""")
    stamp(a, 'ka')
    if Cfg.wt:
        a(f'''s_lshr_b32 s97, s{sC}, 1
        s_add_u32 s98, s97, s{sI}
        s_and_b32 s98, s98, 7
        s_bitcmp1_b32 s{sC}, 0
        s_cselect_b32 s98, s98, 0
        s_cmp_lt_u32 s98, 5
        s_cbranch_scc1 L_nowt
        s_sub_u32 s98, s98, 5
        s_lshl_b32 s70, s98, 6
        s_add_u32 s70, s70, s{sB}
        s_lshl_b32 s98, s98, 2
        s_add_u32 s98, s98, s{sWV}
        s_mul_i32 s98, s98, {48*9216}
        s_mul_i32 s97, s97, 1152
        s_add_u32 s98, s98, s97
        v_mul_u32_u24 v3, 9216, v{VLANE}
        v_add_u32 v3, s98, v3
        s_mul_i32 s70, s70, {15*128}
        v_lshlrev_b32 v{VPO}, 7, v{VLANE}
        v_add_u32 v{VPO}, s70, v{VPO}
        v_mov_b32 v{VPO+1}, 0
        v_lshl_add_u64 {vr(VPO,2)}, s[100:101], 0, {vr(VPO,2)}
        v_lshlrev_b32 v1, 21, v{VLANE}
        s_bfm_b64 exec, 48, 0
        global_load_dword a255, v3, s[52:53]
        s_bfm_b64 exec, 15, 0
        global_load_dword a255, {vr(VPO,2)}, off
        s_mov_b64 exec, 7
        global_load_dword a255, v1, s[56:57]
        s_mov_b64 exec, 1''')
        for r in (54, 58, 46, 48, 62): a(f'global_load_dword a255, v1, s[{r}:{r+1}] offset:128')
        a(f'''s_mov_b64 exec, -1
        s_lshr_b32 s97, s{sC}, 1
        s_add_u32 s98, s97, s{sI}
        s_and_b32 s98, s98, 7
        s_sub_u32 s98, s98, 5
        s_and_b32 s97, s97, 1
        s_mul_i32 s97, s97, 3
        s_add_u32 s98, s98, s97
        s_lshl_b32 s98, s98, 2
        s_add_u32 s98, s98, s{sWV}
        s_mul_i32 s98, s98, {Cfg.tn*128}
        s_lshr_b32 s97, s{sI}, 3
        s_mul_i32 s97, s97, {5184*128}
        s_add_u32 s98, s98, s97
        s_lshr_b32 s97, s{sC}, 2
        s_mul_i32 s97, s97, {2*5184*128}
        s_add_u32 s98, s98, s97
        v_lshlrev_b32 v3, 7, v{VLANE}
        v_add_u32 v3, s98, v3
        s_bfm_b64 exec, 54, 0''')
        for k in range(Cfg.te): a(f'global_load_dword a255, v3, s[56:57]\nv_add_u32 v3, {54*128}, v3')
        a('s_mov_b64 exec, -1\nL_nowt:')
    for o in range(4):
        if o == 2: a('s_add_u32 m0, s99, 8192\ns_nop 0')
        a.vm(f'buffer_load_dwordx4 v{144+o}, {S(SX)}, s{sT} offen offset:{1024*(o%2)} lds', ('x', 0))
    a(f's_add_u32 s97, s96, 1\ns_cmp_eq_u32 s97, 9\ns_cselect_b32 s97, 0, s97\ns_lshl_b32 s{sT}, s97, 7\ns_add_u32 s{sT}, s{sT}, s3')
    for o in range(4):
        if o % 2 == 0: a(f's_add_u32 m0, s99, {16384 + 8192*(o//2)}\ns_nop 0')
        a.vm(f'buffer_load_dwordx4 v{144+o}, {S(SX)}, s{sT} offen offset:{1024*(o%2)} lds', ('x', 1))
    srd(a, SDBG, 62, 256); srd(a, SWS, 64, WS_SZ)
    srd(a, SWR, 46, 2048*578); srd(a, SWI, 48, 2048*578); srd(a, SW1, 52, 576*9216); srd(a, SB, 54, 9216)
    srd(a, SW2, 56, 4608*1152); srd(a, SOUT, 60, 2048*1152)
    a(f's_mov_b64 s[0:1], s[58:59]\ns_mov_b32 s{sW2K}, s99')
    XV = 144
    def xline(L):
        a(f's_lshl_b32 s{sT}, s{sO2+L}, 7\ns_add_u32 s{sT}, s{sT}, s3')
        for o in range(4):
            if o % 2 == 0: a(f's_add_u32 m0, s{sW2K}, {16384*L + 8192*(o//2)}\ns_nop 0')
            a.vm(f'buffer_load_dwordx4 v{XV+o}, {S(SX)}, s{sT} offen offset:{1024*(o%2)} lds', ('x', L))
    for L in range(9):
        a(f's_mov_b32 s{sO2+L}, s96')
        if 1 < L < Cfg.xa: xline(L)
        if L < 8: a('s_add_u32 s96, s96, 1\ns_cmp_eq_u32 s96, 9\ns_cselect_b32 s96, 0, s96')
    stamp(a, 'xi')
    nx = [Cfg.xa, 0]
    def xnext():
        if nx[1] < Cfg.xe: xline(nx[0]); nx[0] += 1; nx[1] += 1
    a(f'''s_or_b32 s66, s66, 1
    s_add_u32 s97, s2, s{sWV}
    s_cmp_lg_u32 s97, 0
    s_cbranch_scc1 L_nonon
    v_mov_b32 v1, s66
    s_mov_b64 exec, 1
    buffer_store_dword v1, off, {S(SDBG)}, 0 sc1
    s_mov_b64 exec, -1
    L_nonon:
    s_lshr_b32 s96, s{sC}, 1            ; p
    s_mul_i32 s{sNON}, s{sI}, {Cfg.rr}
    s_add_u32 s{sNON}, s{sNON}, s96
    s_and_b32 s{sNON}, s{sNON}, 7       ; rho
    s_and_b32 s{sROLE}, s{sC}, 1
    s_cmp_lt_u32 s{sNON}, 5
    s_cselect_b32 s97, s{sROLE}, 0
    s_lshl_b32 s97, s97, {R_DFT}
    s_xor_b32 s98, s{sROLE}, 1
    s_cmp_lt_u32 s{sNON}, 6
    s_cselect_b32 s98, s98, 0
    s_cmp_lt_u32 s{sWV}, 3
    s_cselect_b32 s99, {(1<<R_SMID)|(1<<R_UNIT)}, {1<<R_SMID}
    s_mul_i32 s98, s98, s99
    s_cselect_b32 s99, {(1<<R_FIN)|(1<<R_FINW)}, {1<<R_FIN}
    s_or_b32 s97, s97, s98
    s_and_b32 s98, s{sC}, 3
    s_cmp_lg_u32 s98, 2
    s_cselect_b32 s99, s99, 0
    s_or_b32 s97, s97, s99
    s_lshl_b32 s98, s{sROLE}, 8
    s_or_b32 s{sROLE}, s{sROLE}, s97
    s_lshl_b32 s97, s{sNON}, 8
    s_or_b32 s{sROLE}, s{sROLE}, s97
    s_mul_i32 s97, s96, 576
    s_add_u32 s97, s97, s98                ; f_base
    v_add_u32 v1, s97, v{VTT}
    v_lshlrev_b32 v1, 1, v1''')
    a(f'v_mov_b32 v{HO+15}, v1\nv_lshlrev_b32 v{HO+11}, 2, v{VTT}')
    if not Cfg.xo: xnext()
    def bloads():
        a.vm(f'buffer_load_ushort v{HO+12}, v{HO+15}, {S(SB)}, 0 offen', 'b1')
        a.vm(f'buffer_load_ushort v{HO+13}, v{HO+15}, {S(SB)}, 0 offen offset:512', 'b1')
        a(f's_mov_b32 s{SB}, s0\ns_and_b32 s{SB+1}, s1, 0xffff\ns_mov_b32 s{SB+2}, 1152\ns_lshl_b32 s98, s{sWV}, 8\ns_add_u32 m0, s98, {B2_LDS}\ns_nop 0')
        a.vm(f'buffer_load_dword v{HO+11}, {S(SB)}, 0 offen lds', 'b1')
        a.vm(f'buffer_load_dword v{HO+11}, {S(SB)}, 0 offen offset:1024 lds', 'b1')
        a(f's_mov_b32 s35, s{sNON}')
    a(f'''v_lshlrev_b32 v{HO+14}, 2, v{VTT}
    v_add_u32 v{HO+14}, {BIAS_LDS}, v{HO+14}
    s_mul_i32 s{sHS}, s{sB}, 288
    s_lshr_b32 s98, s97, 4
    s_add_u32 s{sHS}, s{sHS}, s98
    s_lshl_b32 s{sHS}, s{sHS}, 10
    s_lshl_b32 s97, s97, 1''')
    for g in range(9): a(f's_mul_i32 s{sO1+g}, s{sO2+g}, {64*9216}\ns_add_u32 s{sO1+g}, s{sO1+g}, s97')
    a(f's_mul_i32 s{sPS}, s{sNON}, 73728')
    a(f'''v_add_u32 v{VTB}, s{sW2K}, v{VL16}
    v_mov_b32 v{VTB+1}, 0
    v_lshl_add_u64 {vr(VTB,2)}, s[100:101], 0, {vr(VTB,2)}
    s_mov_b32 s{sX0+1}, 0
    s_lshl_b32 s{sFLG}, s{sB}, 4
    s_add_u32 s{sFLG}, s{sFLG}, s{sC}
    s_lshl_b32 s{sFLG}, s{sFLG}, 7
    s_add_u32 s{sFLG}, s{sFLG}, {FL_OFF}
    s_mov_b32 s{sP}, {Cfg.spin}
    s_mov_b32 s{sGC1}, {(h2(GC1) if Cfg.f16 else f2u(GC1)):#x}
    v_mov_b32 v{VC0}, {(h2(GC0) if Cfg.f16 else f2u(GC0)):#x}
    v_bfe_u32 v1, v{VLANE}, 3, 2            ; r
    v_lshrrev_b32 v3, 5, v{VLANE}           ; rho
    v_and_b32 v{VB1}, 2, v1
    v_lshlrev_b32 v{VB1}, 1, v{VB1}
    v_and_b32 v{VB2}, 7, v{VLANE}
    v_xor_b32 v{VB2}, v{VB2}, v{VB1}
    v_lshlrev_b32 v{VB2}, 4, v{VB2}
    v_lshl_add_u32 v1, v3, 3, v1            ; 8rho+r
    s_lshr_b32 s98, s{sWV}, 1
    s_lshl_b32 s98, s98, 5
    s_and_b32 s99, s{sWV}, 1
    s_add_u32 s98, s98, s99
    v_lshlrev_b32 v3, 1, v1
    v_add_u32 v3, s98, v3
    v_mul_u32_u24 v3, 9216, v3
    v_add_u32 v{VA1}, v3, v{VB2}
    v_add_u32 v{VB1}, {8*9216-1024}, v{VA1}
    s_lshl_b32 s98, s{sWV}, 4
    v_add_u32 v1, s98, v1
    v_mul_u32_u24 v1, 1152, v1
    v_add_u32 v{VA2}, v1, v{VB2}
    v_add_u32 v{VB2}, {4*1152-1024}, v{VA2}''')
    if not Cfg.xo: xnext()
    a(f'''v_lshrrev_b32 v1, 5, v{VLANE}
    v_lshlrev_b32 v{VBI}, 4, v1
    v_add_u32 v{VBI}, {BIAS_LDS}, v{VBI}
    v_bfe_u32 v3, v{VLANE}, 2, 2
    v_lshl_add_u32 v1, v1, 3, v3
    v_lshlrev_b32 v1, 7, v1
    v_and_b32 v3, 2, v3
    v_lshl_add_u32 v1, v3, 5, v1
    v_bfe_u32 v3, v{VLANE}, 4, 1
    v_lshl_add_u32 v1, v3, 5, v1
    v_and_b32 v3, 3, v{VLANE}
    v_lshl_add_u32 v{TA}, v3, 3, v1
    v_xor_b32 v{TA+1}, 64, v{TA}
    v_add_u32 v{TA+2}, 49152, v{TA}
    v_add_u32 v{TA+3}, 49152, v{TA+1}
    v_add_u32 v{TA+4}, 98304, v{TA}
    v_add_u32 v{TA+5}, 98304, v{TA+1}''')
    if not Cfg.xo: xnext()
    XA = HO
    a(f'''v_and_b32 v1, 15, v{VLANE}
    v_lshlrev_b32 v1, 7, v1
    v_bfe_u32 v3, v{VLANE}, 4, 1
    v_lshl_add_u32 v1, v3, 13, v1
    v_add_u32 v1, s{sW2K}, v1
    v_lshrrev_b32 v3, 5, v{VLANE}
    v_bfe_u32 v{XA}, v{VLANE}, 1, 3
    v_xor_b32 v3, v3, v{XA}
    v_lshl_add_u32 v{XA}, v3, 4, v1
    v_xor_b32 v{XA+1}, 32, v{XA}
    v_xor_b32 v{XA+2}, 64, v{XA}
    v_xor_b32 v{XA+3}, 96, v{XA}
    s_mov_b32 s{sT2}, 0x3f803f80''')
    smid_ids(a)
    a(f'''s_add_u32 s98, s96, s{sWV}
    s_cmp_eq_u32 s98, 4
    s_cselect_b32 s{sNON}, {1<<R_PATCH}, 0
    s_bitcmp1_b32 s{sROLE}, {R_UNIT}
    s_cselect_b32 s{sNON}, s{sNON}, 0
    s_or_b32 s{sROLE}, s{sROLE}, s{sNON}
    s_cmp_lt_u32 s98, 5
    s_cselect_b32 s{sNON}, 2, 0
    s_lshl_b32 s98, s98, 6
    s_add_u32 s{sNON}, s{sNON}, s98
    s_mul_i32 s99, s99, 578
    s_add_u32 s{sNON}, s{sNON}, s99
    v_lshrrev_b32 v3, 2, v{VLANE}
    v_mul_u32_u24 v3, 18496, v3
    v_and_b32 v1, 3, v{VLANE}
    v_lshl_add_u32 v3, v1, 4, v3''')
    a(f'''s_lshr_b32 s98, s2, 3
    s_lshl_b32 s98, s98, 2
    s_add_u32 s98, s98, s{sWV}
    s_lshr_b32 s99, s98, 1
    s_mul_i32 s99, s99, {9*9216}
    s_and_b32 s98, s98, 1
    s_mul_i32 s98, s98, 1152
    s_add_u32 s99, s99, s98
    s_and_b32 s98, s{sC}, {16-cx}
    s_mul_i32 s98, s98, 576
    s_add_u32 s99, s99, s98
    v_mul_u32_u24 v1, 43, v{VLANE}
    v_lshrrev_b32 v1, 8, v1
    v_mul_u32_u24 v{VPO}, 6, v1
    v_sub_u32 v{VPO}, v{VLANE}, v{VPO}
    v_add_u32 v{VPO+1}, 1, v{VPO}
    v_lshrrev_b32 v{VPO+1}, 2, v{VPO+1}
    v_add3_u32 v{VPO}, v{VPO}, v{VPO+1}, 2
    v_mul_u32_u24 v1, 9216, v1
    v_lshl_add_u32 v1, v{VPO}, 7, v1
    v_add_u32 v{VPO}, s99, v1''')
    xearly_addr(a)
    for i in range(8): a(f'v_mov_b32 v{TMP+i}, 0')
    def stats(L):
        for q in range(4):
            a.need(('x', 4*L+q))
            for i in range(4):
                r = XF + 16*L + 4*q + i
                a(f'v_dot2c_f32_bf16 v{TMP+i}, s{sT2}, v{r}\nv_dot2c_f32_bf16 v{TMP+4+i}, v{r}, v{r}')
    def first_piece(q):
        if q < 9: return dma_alt(R_ODD, dma_alt(R_DFT, dma_tab(q, sreg=sO2+q), None), w1p(q))
        return w1p(q)
    stamp(a, 'w0')
    if Cfg.warm:
        brole(a, R_ODD, 'L_wo')
        a('; WARM 1\ns_branch L_main\nL_wo:\n; WARM 2')
    a('s_branch L_main\n.p2align 12\nL_main:')
    npc0 = 0
    if Cfg.xo:
        while nx[1] < Cfg.xe: xnext()
    for L in range(10):
        if L < 9:
            stamp(a, f'xa{L}')
            a.vneed(('x', L))
            stamp(a, f'xb{L}')
            if L in (4, 8):
                for q in range(4): a(f'v_add_u32 v{XA+q}, 0x10000, v{XA+q}')
            for q in range(4): a.lds(f'ds_read_b128 {vr(XF+16*L+4*q)}, v{XA+q} offset:{16384*(L%4)}', ('x', 4*L+q))
        if L == 9: stamp(a, 1)
        if nx[0] < 9:
            xline(nx[0]); nx[0] += 1
            if nx[0] == 9: bloads()
        elif L >= 10 - Cfg.fp:
            for q in (npc0, npc0+1):
                for f in first_piece(q): f(a)
            npc0 += 2
        if L == Cfg.xl: only(R_FINW, xearly)(a)
        if L: stats(L-1)
    rest = [FN(f) for q in range(npc0, Cfg.np) for f in first_piece(q)]
    rest += [VM(f'buffer_load_dword v{VFL}, off, {S(SDBG)}, 0 sc1', 'non')]
    T = TMP
    a(f'''s_nop 2
    v_add_f32 v{T}, v{T}, v{T+1}
    v_add_f32 v{T+2}, v{T+2}, v{T+3}
    v_add_f32 v{T+4}, v{T+4}, v{T+5}
    v_add_f32 v{T+6}, v{T+6}, v{T+7}
    v_add_f32 v{T}, v{T}, v{T+2}
    v_add_f32 v{T+4}, v{T+4}, v{T+6}
    v_mov_b32 v{T+1}, v{T}
    v_mov_b32 v{T+5}, v{T+4}
    s_nop 1
    v_permlane32_swap_b32 v{T}, v{T+1}
    v_permlane32_swap_b32 v{T+4}, v{T+5}
    s_nop 0
    v_add_f32 v{T}, v{T}, v{T+1}
    v_add_f32 v{T+4}, v{T+4}, v{T+5}
    v_mul_f32 v{T}, {f2u(1/576):#x}, v{T}
    v_mul_f32 v{T+4}, {f2u(1/576):#x}, v{T+4}
    v_fma_f32 v{T+4}, -v{T}, v{T}, v{T+4}
    v_max_f32 v{T+4}, 0, v{T+4}
    v_cvt_pk_bf16_f32 v{T}, v{T}, v{T+4}
    v_and_b32 v{T+4}, 0xffff0000, v{T}
    v_lshlrev_b32 v{T}, 16, v{T}
    v_add_f32 v{T+4}, {f2u(1e-5):#x}, v{T+4}
    v_cvt_pk_bf16_f32 v{T+4}, v{T+4}, v{T+4}
    v_and_b32 v{T+4}, 0xffff0000, v{T+4}
    v_sqrt_f32 v{T+4}, v{T+4}
    s_nop 0
    v_cvt_pk_bf16_f32 v{T+4}, v{T+4}, v{T+4}
    v_and_b32 v{T+4}, 0xffff0000, v{T+4}
    v_rcp_f32 v{T+4}, v{T+4}
    s_nop 0
    v_cvt_pk_bf16_f32 v{T+4}, v{T+4}, v{T+4}
    v_and_b32 v{T+5}, 0xffff0000, v{T+4}
    v_lshrrev_b32 v{T+4}, 16, v{T+4}
    v_mul_f32 v{T}, v{T}, v{T+5}
    v_sub_f32 v{T}, 0, v{T}''')
    if Cfg.tn < 216:
        tall = w2touch(0, Cfg.tn*24, -(-(5184 - Cfg.tn*24)//128))
        rest.append(FN(tall))
    def w1all(a):
        a('s_bfm_b64 exec, 54, 0')
        a.vm(f'buffer_load_dword a255, v{VPO}, {S(SW1)}, 0 offen')
        a('s_mov_b64 exec, -1')
    if Cfg.tw1: rest.insert(len(rest) - (1 if Cfg.tn < 216 else 0), FN(w1all))
    def wall(a):
        a(f'''s_lshl_b32 s69, s2, 1
        s_lshr_b32 s3, s{sWV}, 1
        s_add_u32 s69, s69, s3
        s_min_u32 s69, s69, 486
        s_mul_i32 s69, s69, {19*128}
        v_lshlrev_b32 v{VTT}, 7, v{VLANE}
        s_bitcmp1_b32 s{sWV}, 0
        s_cselect_b64 exec, 0x7ffff, 0''')
        a(f'buffer_load_dword a255, v{VTT}, {S(SWR)}, s69 offen')
        a('s_cselect_b64 exec, 0, 0x7ffff')
        a.vm(f'buffer_load_dword a255, v{VTT}, {S(SWI)}, s69 offen')
        a('s_mov_b64 exec, -1')
    rest.insert(len(rest) - (1 if Cfg.tn < 216 else 0), FN(wall))
    a.vneed('b1')
    a(f'v_lshlrev_b32 v{HO+12}, 16, v{HO+12}\nv_lshlrev_b32 v{HO+13}, 16, v{HO+13}')
    a.lds(f'ds_write_b32 v{HO+14}, v{HO+12}', 'bw'); a.lds(f'ds_write_b32 v{HO+14}, v{HO+13} offset:1024', 'bw')
    if Cfg.normin:
        emit(a, rest); emit(a, norm_ops(0))
    else:
        stamp(a, 'n0')
        a('.p2align 3')
        rest = [FN(lambda a, f=f: (f(a), a('.p2align 3'))) for _, f in rest]
        nt = 1 + (1 if Cfg.tn < 216 else 0) + (1 if Cfg.tw1 else 0)
        tch = rest[-nt:]; rest = rest[:-nt]
        global BATCH2
        BATCH2 = []
        if Cfg.b2: BATCH2 = [wall] + ([tall] if Cfg.tn < 216 else []); tch = tch[:1]
        global B2PRE, B2FIRE
        t = E(); tall(t); k = [x.strip().startswith('s_bfm') for x in t.l].index(True)
        fix = lambda L: '\n'.join(L).replace('s3,', 's0,').replace('s3 ', 's0 ').replace('s96', 's1')
        B2PRE = sops(fix(t.l[:k])); f1 = fix(t.l[k:])
        t = E(); wall(t); k = [x.strip().startswith('s_bitcmp') for x in t.l].index(True)
        B2PRE += sops('\n'.join(t.l[:k])); f2 = '\n'.join(t.l[k:])
        B2FIRE = [lambda a: (a(f2), a.vm('s_nop 0'), a(f1), a.vm('s_nop 0'))]
        N = [o for u in range(18) for o in norm_ops(u)]
        k1 = len(N)*Cfg.t1//100; k2 = len(N)*Cfg.t2//100; ne = 2*Cfg.ne
        emit(a, mix(N[:k1], rest[:ne] + tch) + N[k1:k2] + mix(N[k2:], rest[ne:]))
def late_setup():
    a = E()
    a(f'''s_lshr_b32 s96, s{sC}, 1
    s_and_b32 s98, s{sC}, 1
    s_mul_i32 s{sO2}, s96, {576*1152}
    s_lshl_b32 s99, s98, 8
    s_add_u32 s{sO2}, s{sO2}, s99
    s_mul_i32 s99, s98, {256*1152}''')
    for g in range(1, 9):
        a(f's_add_u32 s{sO2+g}, s{sO2}, {64*1152*g}\ns_{"add" if g < 5 else "sub"}_u32 s{sO2+g}, s{sO2+g}, s99')
    a(f'''s_mul_i32 s{sPS}, s{sB}, 18
    s_lshl_b32 s98, s98, 2
    s_add_u32 s{sPS}, s{sPS}, s98
    s_lshl_b32 s{sPS}, s{sPS}, 3
    s_add_u32 s{sPS}, s{sPS}, s96
    s_lshl_b32 s{sPS}, s{sPS}, 11
    s_add_u32 s{sPS}, s{sPS}, {PART_OFF}
    s_and_b32 s98, s{sC}, 1
    s_mul_i32 s32, s{sB}, 288
    s_mul_i32 s99, s96, 36
    s_add_u32 s32, s32, s99
    s_lshl_b32 s32, s32, 10
    s_lshl_b32 s99, s98, 14
    s_sub_u32 s33, s32, s99
    s_xor_b32 s34, s{sFLG}, 128''')
    return sops('\n'.join(a.l))
def w2touch(other, first, per, sub=0):
    def f(a):
        a(f"""s_lshr_b32 s3, s2, 3
        s_lshl_b32 s3, s3, 2
        s_add_u32 s3, s3, s{sWV}
        s_mul_i32 s3, s3, {per*128}
        s_lshr_b32 s96, s{sI}, 3
        s_xor_b32 s96, s96, {other}
        s_mul_i32 s96, s96, {5184*128}
        s_add_u32 s3, s3, s96
        s_lshr_b32 s96, s{sC}, 2
        s_mul_i32 s96, s96, {2*5184*128}
        s_add_u32 s3, s3, s96
        s_add_u32 s3, s3, {first*128}
        v_lshlrev_b32 v{VTT}, 7, v{VLANE}
        s_bfm_b64 exec, {per}, 0""")
        a.vm(f'buffer_load_dword a255, v{VTT}, {S(SW2)}, s3 offen')
        a('s_mov_b64 exec, -1')
    return f
def tabtouch(a):
    a(f"""s_lshr_b32 s96, s2, 3
    s_lshl_b32 s96, s96, 2
    s_add_u32 s96, s96, s{sWV}
    s_min_u32 s96, s96, 125
    s_mul_i32 s96, s96, {22*128}
    s_add_u32 s96, s96, {TABF_SZ}
    s_sub_u32 s96, s96, s{sW2K}
    v_mul_u32_u24 v{VTT}, 112, v{VLANE}
    v_mov_b32 v{VTT+1}, 0
    v_lshl_add_u64 {vr(VTT,2)}, {vr(VTT,2)}, 0, {vr(VTB,2)}
    v_lshl_add_u64 {vr(VTT,2)}, s[96:97], 0, {vr(VTT,2)}
    s_bfm_b64 exec, 22, 0""")
    a.vm(f'global_load_dword a255, {vr(VTT,2)}, off')
    a('s_mov_b64 exec, -1')
def codetouch(a):
    if not Cfg.ct: return
    l = a.label('CT')
    a(f"""s_getpc_b64 s[100:101]
    {l}:
    s_lshr_b32 s3, s2, 3
    s_lshl_b32 s3, s3, 2
    s_add_u32 s3, s3, s{sWV}
    s_lshl_b32 s3, s3, 8
    v_lshlrev_b32 v{VTT}, 7, v{VLANE}
    v_add_u32 v{VTT}, s3, v{VTT}
    v_min_u32 v{VTT}, L_codeend-L_s9-4, v{VTT}
    v_add_u32 v{VTT}, L_s9-{l}, v{VTT}
    v_mov_b32 v{VTT+1}, 0
    v_lshl_add_u64 {vr(VTT,2)}, s[100:101], 0, {vr(VTT,2)}
    s_mov_b64 exec, 3""")
    a.vm(f'global_load_dword a252, {vr(VTT,2)}, off')
    a('s_mov_b64 exec, -1')
def smid_ids(a):
    a(f'''s_bfe_u32 s96, s{sROLE}, 0x30008
    s_cmp_ge_u32 s96, 3
    s_cselect_b32 s98, 1, 0
    s_lshl_b32 s99, s{sI}, 1
    s_add_u32 s99, s99, s98
    s_mul_i32 s98, s98, 3
    s_sub_u32 s96, s96, s98
    s_mul_i32 s96, s96, 3''')
WA = 216
PSR = 20
def wload(k):
    def f(a):
        a(f's_add_u32 s3, s35, {16*18496*(k//2)}')
        a.vm(f'buffer_load_dwordx4 {ar(WA+4*k)}, v3, {S(SWI if k % 2 else SWR)}, s3 offen {NT(8)}', 'wl')
    return f
def wpatch(a):
    a(f'v_mul_u32_u24 v1, 18496, v{VLANE}')
    a.vm(f'buffer_load_ushort a253, v1, {S(SWR)}, s35 offen offset:{576-258}', 'wl')
    a.vm(f'buffer_load_ushort a254, v1, {S(SWI)}, s35 offen offset:{576-258}', 'wl')

def touch_ops():
    o = [V(f"""s_bfe_u32 s98, s{sROLE}, 0x30008
    s_sub_u32 s98, s98, 5
    s_lshl_b32 s98, s98, 6
    s_add_u32 s98, s98, s{sB}
    s_bfe_u32 s99, s{sROLE}, 0x30008
    s_sub_u32 s99, s99, 5
    s_bfe_u32 s96, s{sC}, 0x10001
    s_mul_i32 s96, s96, 3
    s_add_u32 s99, s99, s96
    s_lshl_b32 s99, s99, 2
    s_add_u32 s99, s99, s{sWV}
    s_mul_i32 s99, s99, {Cfg.tn*128}
    s_lshr_b32 s96, s{sI}, 3
    s_mul_i32 s96, s96, {5184*128}
    s_add_u32 s99, s99, s96
    s_lshr_b32 s96, s{sC}, 2
    s_mul_i32 s96, s96, {2*5184*128}
    s_add_u32 s99, s99, s96
    v_lshlrev_b32 v1, 7, v{VLANE}""")]
    for k in range(Cfg.tn//54):
        if k < Cfg.te: o.append(V(f's_add_u32 s99, s99, {54*128}')); continue
        def f(a, k=k):
            a('s_bfm_b64 exec, 54, 0')
            a.vm(f'buffer_load_dword a255, v1, {S(SW2)}, s99 offen')
            a(f's_mov_b64 exec, -1\ns_add_u32 s99, s99, {54*128}')
        o.append(FN(f))
    def g(a):
        a(f"""s_mul_i32 s99, s98, {15*128}
        s_add_u32 s99, s99, {TABF_SZ}
        v_add_u32 v{VTT}, s99, v1
        v_min_u32 v{VTT}, {TABF_SZ+TABG_SZ+TAB64_SZ-4}, v{VTT}
        v_mov_b32 v{VTT+1}, 0
        v_lshl_add_u64 {vr(VTT,2)}, s[100:101], 0, {vr(VTT,2)}
        s_bfm_b64 exec, 15, 0""")
        a.vm(f'global_load_dword a255, {vr(VTT,2)}, off')
        a('s_mov_b64 exec, -1')
    return o + [FN(g)]

def getnonce(a):
    lc = a.label('NC'); ls = a.label('NS'); lk = a.label('NK')
    a.vneed('non')
    a(f'{lc}:\nv_readfirstlane_b32 s{sNON}, v{VFL}\ns_nop 3\ns_cmp_eq_u32 s{sNON}, 0\ns_cbranch_scc1 {ls}\n{lk}:')
    a.ool += [f'{ls}:', f' s_sub_u32 s{sP}, s{sP}, 1', f' s_cbranch_scc1 {ls}_x', f' s_sleep {Cfg.slp}', f' buffer_load_dword v{VFL}, off, {S(SDBG)}, 0 sc1', ' s_waitcnt vmcnt(0)', f' s_branch {lc}',
              f'{ls}_x:', f' s_mov_b32 s{sP}, 0', f' s_branch {lk}']

def xpose_setup(a, vw, vrd, vg, base_imm, rowstride, flip=None):
    a(f"""v_and_b32 v{vw}, 15, v{VLANE}
    v_lshlrev_b32 v{vw}, 7, v{vw}
    v_bfe_u32 v{vrd}, v{VLANE}, 4, 1
    v_lshl_add_u32 v{vw}, v{vrd}, 13, v{vw}
    v_lshrrev_b32 v{vrd}, 5, v{VLANE}
    v_lshlrev_b32 v{vrd}, 2, v{vrd}
    v_and_b32 v{vg}, 7, v{VLANE}
    v_xor_b32 v{vrd}, v{vrd}, v{vg}
    v_lshl_add_u32 v{vw}, v{vrd}, 4, v{vw}
    s_add_u32 s98, s{sW2K}, {base_imm}
    v_add_u32 v{vw}, s98, v{vw}
    v_lshrrev_b32 v{vrd}, 3, v{VLANE}
    v_mul_u32_u24 v{VTT}, {rowstride}, v{vrd}
    v_lshl_add_u32 v{vg}, v{vg}, 4, v{VTT}
    v_lshlrev_b32 v{vrd}, 4, v{vrd}
    v_xor_b32 v{vrd}, v{vrd}, v{VL16}
    v_add_u32 v{vrd}, s98, v{vrd}""")
def xpose_w(src, q, vw, flip=0):
    x = (16*q) ^ flip
    if x == 0: return [LD(f'ds_write_b128 v{vw}, {vr(src)}', 'xw')]
    return [V(f'v_xor_b32 v{VTT}, {x}, v{vw}'), LD(f'ds_write_b128 v{VTT}, {vr(src)}', 'xw')]
def xpose_rs(dst, vrd, vg, sreg, rowstride, tag, u=0):
    o = [LD(f'ds_read_b128 {vr(dst+4*q)}, v{vrd} offset:{8192*(q//2) + 1024*(q%2)}', ('xr', u, q)) for q in range(4)]
    for q in range(4):
        o.append(FN(lambda a, q=q: a.need(('xr', u, q))))
        o.append(VM(f'buffer_store_dwordx4 {vr(dst+4*q)}, v{vg}, {S(SWS)}, s{sreg} offen sc1', tag))
        o.append(V(f's_add_u32 s{sreg}, s{sreg}, {8*rowstride}'))
    return o
OA = 200
XP_LDS = BIAS_LDS + 2048
def dft_fill():
    Ea = ACC[0]; T = TMP; U = Ea + 16; RS = 9*64*128
    su = f"""v_and_b32 v1, 31, v{VLANE}
    v_lshlrev_b32 v1, 6, v1
    v_lshrrev_b32 v3, 5, v{VLANE}
    v_lshlrev_b32 v3, 1, v3
    v_bfe_u32 v{VPO}, v{VLANE}, 1, 2
    v_xor_b32 v3, v3, v{VPO}
    v_lshl_add_u32 v1, v3, 4, v1
    s_add_u32 s98, s{sW2K}, {XP_LDS}
    v_add_u32 v1, s98, v1
    v_bfe_u32 v3, v{VLANE}, 3, 2
    v_lshlrev_b32 v3, 4, v3
    v_xor_b32 v3, v3, v{VL16}
    v_add_u32 v3, s98, v3
    v_lshrrev_b32 v{VPO}, 2, v{VLANE}
    v_mul_u32_u24 v{VPO}, {RS}, v{VPO}
    v_and_b32 v{VTT}, 3, v{VLANE}
    v_lshl_add_u32 v{VPO}, v{VTT}, 4, v{VPO}
    s_bfe_u32 s96, s{sROLE}, 0x30008
    s_lshl_b32 s98, s96, 6
    s_add_u32 s98, s98, s{sB}
    s_lshl_b32 s35, s98, 3
    s_add_u32 s35, s35, {VFL_OFF}
    s_lshl_b32 s98, s98, 7
    s_add_u32 s98, s98, {V_OFF}
    s_sub_u32 s99, 8, s96
    s_lshl_b32 s99, s99, 6
    s_add_u32 s99, s99, s{sB}
    s_lshl_b32 s99, s99, 7
    s_add_u32 s99, s99, {V_OFF}
"""
    o = [V(x) for x in su.split('\n') if x.strip()] + [V(f's_cmp_eq_u32 s96, 4\ns_cselect_b32 s96, {DUM_OFF - V_OFF}, 0\ns_add_u32 s99, s99, s96')]
    su = o; o = [V(f'v_add_u32 v{VPO+1}, {16*RS}, v{VPO}')]
    for i in range(16):
        e = Ea + 2*i
        o += [V(f'v_accvgpr_read_b32 v{T+4}, a{OA+2*i}'), V(f'v_accvgpr_read_b32 v{T+5}, a{OA+2*i+1}'), V(f'v_add_f32 v{T}, v{e}, v{T+4}'), V(f'v_add_f32 v{T+1}, v{e+1}, v{T+5}')]
        if i < 8: o += [V(f'v_sub_f32 v{T+2}, v{e}, v{T+4}'), V(f'v_sub_f32 v{T+3}, v{e+1}, v{T+5}')]
        else:     o += [V(f'v_sub_f32 v{T+2}, v{T+4}, v{e}'), V(f'v_sub_f32 v{T+3}, v{T+5}, v{e+1}')]
        o += [V(f'v_cvt_pk_bf16_f32 v{HO+i}, v{T}, v{T+1}'), V(f'v_cvt_pk_bf16_f32 v{Ea+i}, v{T+2}, v{T+3}')]
    segs = [o]
    u = vr(U, 16)
    for m, X in enumerate((HO, Ea)):
        for p in range(2):
            A1, A2 = (X, X+8) if p == 0 else (X+8, X)
            B2 = TW+8 if p == 0 else TW+16
            mf = [V(f's_nop 1\n{M} {u}, {vr(A1)}, {ar(TW)}, 0'), V(f'{M} {u}, {vr(A1+4)}, {ar(TW+4)}, {u}'), V(f'{M} {u}, {vr(A2)}, {ar(B2)}, {u}'), V(f'{M} {u}, {vr(A2+4)}, {ar(B2+4)}, {u}')]
            pk = []
            for q in range(2):
                for i in range(4):
                    k = 4*q + i
                    pk.append(V(f'v_cvt_pk_bf16_f32 v{T+k}, v{U+2*k}, v{U+2*k+1}' if m == 0 else f'v_cvt_pk_bf16_f32 v{T+k}, v{U+15-2*k}, v{U+14-2*k}'))
                x = 16*q ^ 32*m
                if x: pk += [V(f'v_xor_b32 v{VTT}, {x}, v1'), LD(f'ds_write_b128 v{VTT}, {vr(T+4*q)}')]
                else: pk += [LD(f'ds_write_b128 v1, {vr(T+4*q)}')]
            d = OA + 8*(2*m+p)
            pk += [LD(f'ds_read_b128 {ar(d+4*i)}, v3 offset:{1024*i}', ('xr', m, p)) for i in range(2)]
            st = [FN(lambda a, m=m, p=p: a.need(('xr', m, p)))] + [VM(f'buffer_store_dwordx4 {ar(d+4*i)}, v{VPO+i}, {S(SWS)}, s{98+m} offen offset:{64*p} sc1', 'V') for i in range(2)]
            segs += [mf, pk, st]
    f = [(segs[0], 3, 33)]; st = []
    for k in range(4):
        g = 33 + 8*k
        f += [(segs[1+3*k], g, g+2), (segs[2+3*k], g+5, g+8)]
        x = segs[3+3*k]
        st += [FN(lambda a, x=x: emit(a, x[:2])), x[2]]
    return su, f, st

JA = [8, 40]; JC = [72, 104]
def hload(g):
    return [SVM(f's_add_u32 s3, s{33 if g else 32}, {4096*g}', f'buffer_load_dwordx4 {ar(HF+16*g+4*k)}, v{VL16}, {S(SWS)}, s3 offen offset:{1024*k} sc1 {NT(1)}', ('ph', g)) for k in range(4)]

SZ=[72,88,136,152]; SVF=8; SWP=40; SY0=192; SPA=[72,88,168,24]
def TF(i): return ar(176+4*i) if i < 20 else vr(200+4*(i-20))
def smid_pre():
    su = f"""v_lshrrev_b32 v3, 5, v{VLANE}
    v_bfe_u32 v1, v{VLANE}, 2, 2
    v_lshl_add_u32 v3, v3, 2, v1
    v_lshlrev_b32 v{VA1}, 7, v3
    v_lshlrev_b32 v{VB1}, 6, v3
    v_bfe_u32 v1, v{VLANE}, 4, 1
    v_lshlrev_b32 v1, 5, v1
    v_and_b32 v3, 3, v{VLANE}
    v_lshl_add_u32 v1, v3, 3, v1
    s_min_u32 s98, s{sWV}, 2
    s_lshl_b32 s98, s98, 13
    s_add_u32 s99, s98, {slot(54)}
    v_add3_u32 v{VA1}, v{VA1}, v1, s99
    s_add_u32 s99, s98, {slot(57)}
    v_add3_u32 v{VB1}, v{VB1}, v1, s99
    v_add_u32 v1, s99, v{VL16}
    v_add_u32 v3, {slot(51)}, v{VL16}"""
    w = [FN(lambda a: a.vneed('wl'))] + [(3, LD(f'ds_write_b128 v1, {ar(WA+4*k)} offset:{1024*k}')[1]) for k in range(8)]
    def patch(a):
        a(f"""v_lshrrev_b32 v{VTT}, 4, v{VLANE}
        v_lshlrev_b32 v{VTT}, 11, v{VTT}
        v_and_b32 v{VTT+1}, 15, v{VLANE}
        v_lshl_add_u32 v{VTT}, v{VTT+1}, 6, v{VTT}
        v_add_u32 v{VTT}, {slot(57) + 8192}, v{VTT}""")
        a.lds(f'ds_write_b16 v{VTT}, a253 offset:62'); a.lds(f'ds_write_b16 v{VTT}, a254 offset:1086')
    w.append(FN(only(R_PATCH, patch)))
    for p in range(2):
        for mt in range(2):
            for q in range(4):
                w.append(LD(f'ds_read_b64_tr_b16 {vr(SWP+16*p+8*mt+2*q,2)}, v{VB1} offset:{4096*mt+2048*(q//2)+512*(q%2)+1024*p}', 'sm'))
    r = []
    for ks in range(4):
        for p in range(2):
            for rho in range(2): r.append(LD(f'ds_read_b64_tr_b16 {vr(SVF+16*p+4*ks+2*rho,2)}, v{VA1} offset:{2048*ks+1024*rho+64*p}', 'sm'))
        for i in (ks, 8+ks, 16+ks): r.append(LD(f'ds_read_b128 {TF(i)}, v3 offset:{1024*i}', 'sm'))
    late = [LD(f'ds_read_b128 {TF(i)}, v3 offset:{1024*i}', 'sm2') for ks in range(4) for i in (4+ks, 12+ks, 20+ks)]
    return sops(su), w, r, late
def smid_parts():
    Z=SZ; VF=SVF; WP=SWP; Y=SVF; PA=SPA; T=TMP
    C=lambda t,k: TF(4*t+k); Sn=lambda t,k: TF(8+4*t+k); N=lambda t,k: TF(16+4*t+k)
    def fwd(mt):
        zr=vr(Z[2*mt],16); zi=vr(Z[2*mt+1],16); o=[]
        for ks in range(4):
            o += [f'{M} {zr}, {C(mt,ks)}, {vr(VF+4*ks)}, {"0" if ks==0 else zr}', f'{M} {zi}, {C(mt,ks)}, {vr(VF+16+4*ks)}, {"0" if ks==0 else zi}',
                  f'{M} {zr}, {Sn(mt,ks)}, {vr(VF+16+4*ks)}, {zr}', f'{M} {zi}, {N(mt,ks)}, {vr(VF+4*ks)}, {zi}']
        return o
    def ybase(mt, p): return (SY0 - 8*p) if mt == 0 else (Y + 8*p)
    def cmul(mt):
        o = []
        for d in range(8):
            wr = WP + 8*mt + d; wi = WP + 16 + 8*mt + d; zr = Z[2*mt] + 2*d; zi = Z[2*mt+1] + 2*d
            o += [f'v_lshlrev_b32 v{T}, 16, v{wr}', f'v_and_b32 v{T+1}, 0xffff0000, v{wr}', f'v_lshlrev_b32 v{T+2}, 16, v{wi}', f'v_and_b32 v{T+3}, 0xffff0000, v{wi}']
            for i in range(2): o += [f'v_mul_f32 v{T+4+i}, v{zi+i}, v{T+2+i}', f'v_mul_f32 v{T+6+i}, v{zi+i}, v{T+i}']
            for i in range(2): o += [f'v_fma_f32 v{T+4+i}, v{zr+i}, v{T+i}, -v{T+4+i}', f'v_fma_f32 v{T+6+i}, v{zr+i}, v{T+2+i}, v{T+6+i}']
            o += [f'v_cvt_pk_bf16_f32 v{ybase(mt,0)+d}, v{T+4}, v{T+5}', f'v_cvt_pk_bf16_f32 v{ybase(mt,1)+d}, v{T+6}, v{T+7}']
        return [V(x) for x in o]
    def inv(mt):
        o = []
        for nt in range(2):
            pr=vr(PA[2*nt],16); pi=vr(PA[2*nt+1],16)
            for t in range(2):
                ks = 2*mt + t; yr = vr(ybase(mt,0)+4*t); yi = vr(ybase(mt,1)+4*t)
                o += [f'{M} {pr}, {yr}, {C(nt,ks)}, {"0" if ks==0 else pr}', f'{M} {pi}, {yi}, {C(nt,ks)}, {"0" if ks==0 else pi}',
                      f'{M} {pr}, {yi}, {N(nt,ks)}, {pr}', f'{M} {pi}, {yr}, {Sn(nt,ks)}, {pi}']
        return o
    return fwd, cmul, inv
def part_inplace(acc, lam):
    c = []; st = []
    for q in range(4):
        c += [V(f'v_cvt_pk_bf16_f32 v{acc+8*q+i}, v{acc+8*q+2*i}, v{acc+8*q+2*i+1}') for i in range(4)]
        st.append(SVM(f's_add_u32 s3, s{sPS}, {16384*(2*lam + q//2)}', f'buffer_store_dwordx4 {vr(acc+8*q)}, v{VL16}, {S(SWS)}, s3 offen offset:{1024*(q%2)} sc1', ('p', lam)))
    return c, st

def kernel():
    a = E()
    prologue(a)
    g1 = lambda acc: (lambda p, kk, h: (acc + 16*h, vr(XF + 16*p + 4*kk), False))
    END = 71
    stamp(a, 2)
    a.need('bw')
    a('; ROUND 1')
    brole(a, R_ODD, 'L_odd')
    s_pro = a.snap()
    a.vneed(('d',0),('d',1),('d',2)); a('s_barrier')
    bias_reads(a, ACC[0], 0); first_reads(a, 'tr', 0)
    run(a, 0, 9, 'tr', g1(ACC[0]), [(late_setup(), 26, 54), (bias_ops(ACC[1], 1), 40, 66), (B2PRE, 56, 70)], pause=(0, Cfg.pz1), events={71: B2FIRE, ('dma0', 0): list(range(Cfg.np, 12))})
    stamp(a, 3)
    run(a, 9, 9, 'tr', g1(ACC[1]), [(gelu_ops(ACC[0], 0, 2, Cfg.sd), Cfg.gs0, END)], events={2: [getnonce]}, pause=(0, Cfg.pz2))
    s_even = a.snap()
    la = a.l; a.l = []
    a('L_odd:'); a.restore(s_pro)
    brole(a, R_DFT, 'L_dft')
    emit(a, late_setup() + [FN(f) for f in BATCH2] + touch_ops())
    for q in range(max(9, Cfg.np), 21):
        for f in plan(q): f(a)
    a.vneed(('d',9),('d',10),('d',11)); a('s_barrier')
    first_reads(a, 'tr', 9)
    stamp(a, 3)
    bias_reads(a, ACC[1], 1)
    run(a, 9, 9, 'tr', g1(ACC[1]), [(bias_ops(ACC[0], 2), 40, 66), (xback(HO, HO+1), 8, 30)], events={2: [getnonce]})
    a('s_branch L_s3'); s_nodft = a.snap()
    a('L_dft:'); a.restore(s_pro)
    a(f'v_mov_b32 v{VPO}, v{VL16}\nv_add_u32 v{VPO+1}, 49152, v{VL16}')
    a.vneed(('d',0),('d',1),('d',2)); a('s_barrier')
    first_reads(a, 'dft', 0)
    run(a, 0, 9, 'dft', lambda p, kk, h: ((ACC[0] + 16*h) if kk % 2 == 0 else -(OA + 16*h), vr(XF + 16*p + 4*kk), p == 0 and kk < 2),
        [(xback(HO, HO+1), 8, 30), (late_setup(), 30, 47), (twiddle_ops(TW, TMP, 'fwd', sB), 2, 60), (dft_fill()[0], 48, 66), (bias_ops(ACC[1], 1), 56, 70), (B2PRE, 66, 71)], pause=(0, Cfg.pz1), role='D', events={71: B2FIRE, ('dma0', 0): list(range(Cfg.np, 12))})
    stamp(a, 3)
    _, df, vst = dft_fill(); vlate = vst[3:]
    run(a, 9, 9, 'tr', g1(ACC[1]), df + [(vst[:3], 42, 70), (bias_ops(ACC[0], 2), 65, 70)], events={2: [getnonce]}, pause=(0, Cfg.pz2))
    a('L_s3:'); a.merge(s_nodft, a.snap()); s_odd = a.snap()
    lodd = a.l; a.l = la; a.restore(s_even)
    stamp(a, 4)
    pi = spoll_i; pc = spoll_c
    h0 = only_ops(R_ODD, hload(0), 1)
    FG, PG, CG = Cfg.fg, Cfg.pg, Cfg.cg
    l2a = [w2touch(1, 0, 21)] if Cfg.l2 else []; l2b = [w2touch(1, 21*128, 20)] if Cfg.l2 else []; l2c = [tabtouch] if Cfg.l2 else []
    run(a, 18, 9, 'tr', g1(ACC[0]), [(gelu_ops(ACC[1], 1, 3), Cfg.gs0, END), ([FN(only(R_UNIT, wload(k))) for k in range(4)], 6, 64)],
        events={FG: [lambda a: setflag(a, 1, ('h',0))], 40: l2a, 66: l2b})
    g2 = lambda acc: (lambda p, kk, h: (acc + 16*h, ar(HF + 16*GORD[p] + 4*kk), p == 0 and kk == 0))
    tabg = f"""s_and_b32 s98, s{sC}, 3
    s_min_u32 s98, s98, 2
    s_mul_i32 s96, s98, 110592
    s_add_u32 s96, s96, {TABF_SZ}
    v_lshl_add_u64 {vr(VTB,2)}, s[96:97], 0, {vr(VTB,2)}"""
    sent8 = lambda a: (stamp(a, 7), sent_check(a, ('ph',8), [f'a{HF+128+4*k+3}' for k in range(4)], TMP, lines_of(hload(8)), ([f's_add_u32 s3, s33, {4096*8}'], 3)))
    sf = lambda st, *tags: (lambda a: (setflag if st < 5 else setflag2)(a, st, *tags))
    sf5 = lambda a: setflag(a, 5, ('h',4))
    clo = clear_ops(33, [32768, 34816], 'clr', -248)
    clp = clear_ops(sPS, [16384*6, 16384*7], 'clp')
    def setup5():
        a = E()
        smid_ids(a)
        a(f"""s_mul_i32 s{sSV}, s99, 9
        s_add_u32 s{sSV}, s{sSV}, s96
        s_lshl_b32 s{sSV}, s{sSV}, 13
        s_add_u32 s{sSV}, s{sSV}, s{sW2K}
        s_add_u32 s{sSV}, s{sSV}, {V_OFF}
        s_add_u32 s98, s96, s{sWV}
        s_lshl_b32 s98, s98, 5
        s_add_u32 s98, s98, s99
        s_lshl_b32 s47, s98, 3
        s_add_u32 s47, s47, {PFL_OFF}
        s_lshl_b32 s48, s98, 7
        s_add_u32 s48, s48, {P_OFF}
        s_add_u32 s49, s48, {32*9*32*128}
        v_and_b32 v1, 15, v{VLANE}
        s_lshl_b32 s98, s{sWV}, 4
        v_add_u32 v1, s98, v1
        v_lshrrev_b32 v{VA1}, 4, v{VLANE}
        v_min_u32 v{VA1}, 2, v{VA1}
        v_add_u32 v{VA1}, s96, v{VA1}
        v_sub_u32 v{VB1}, 8, v{VA1}
        v_min_u32 v{VA1}, v{VA1}, v{VB1}
        v_lshl_add_u32 v1, v{VA1}, 6, v1
        v_lshlrev_b32 v1, 3, v1
        v_add_u32 v1, {VFL_OFF}, v1""")
        return sops('\n'.join(a.l).replace('s96', 's50').replace('s98', 's51').replace('s99', 's52'))
    run(a, 27, 9, 'tr', g1(ACC[1]), [(gelu_ops(ACC[0], 2, 4), Cfg.gs0, END), ([FN(only(R_UNIT, wload(k))) for k in range(4, 8)], 6, 64), (setup5(), 48, 70)],
        events={4: [only(R_PATCH, wpatch)], FG: [sf(2, ('h',1))], 30: l2c}, role='E')
    stamp(a, 5)
    ssu, sw, sr, slate = smid_pre()
    run(a, 36, 9, 'tr', g1(ACC[0]), [(gelu_ops(ACC[1], 3), Cfg.gs0, END), (hload(5), Cfg.e2+1, 71), (ssu, 52, 70)], role='E',
        events={26: [lambda a: a.vm(poll_ins(VA1, 1, '0'), 'vp')], Cfg.e2-22: [pi], Cfg.e2: [pc(2)], 47: [only(R_SMID, lambda a: poll_check(a, 'vp', VA1, 1, '0', 1))], FG: [sf(3, ('h',2))]})
    stamp(a, 6)
    a('s_mov_b32 s11, s47')
    pre = lambda g: [lambda a: a.vneed(('ph', g))]
    ge = lambda o: (lambda p, kk, h: (JC[1] + 16*h, ar(HF + 16*GE[p+o] + 4*kk), p+o == 0 and kk == 0))
    dm6 = [FN(f) for q in range(63, 72) for f in plan(q, 'E')]
    h6 = [FN(pc(3))] + hload(6); h7 = [FN(pc(4))] + hload(7)
    def s6a(unit):
        run(a, 45, 6, 'tr', ge(0), ([(gelu_ops(ACC[0], 4), 3, Cfg.ge), (sw, Cfg.ge-14, Cfg.ge+2), (sr, Cfg.ge-2, 48)] if unit else [(gelu_ops(ACC[0], 4), 3, 44)]), nxt=None, role='E',
            events={Cfg.f4: [sf(4, ('h',3))], 30: [pi], ('pre',32): pre(5), ('bar',48): [('d', q) for q in range(51, 57)]})
    b2 = FN(lambda a: (a.vneed(('d',60),('d',61),('d',62)), a('s_barrier')))
    brole(a, R_UNIT, 'L_unit'); s1 = a.snap()
    s6a(False)
    a('s_barrier')
    cle = []
    def allw(qs):
        def own(a):
            for q in qs:
                for f in plan(q, 'E'): f(a)
        def f(a):
            if not Cfg.w3d: return own(a)
            own(a)
            def oth(a):
                for q in qs:
                    for w in range(3):
                        a(f's_mov_b32 m0, {slot(q) + 2048*w}\ns_add_u32 s{sT}, s{sO2+EORD[q-60][0]}, {128*EORD[q-60][1]}')
                        a.vm(f'buffer_load_dwordx4 v{8+2*w}, {S(SW2)}, s{sT} offen lds'); a.vm(f'buffer_load_dwordx4 v{9+2*w}, {S(SW2)}, s{sT} offen offset:1024 lds')
            only(R_SMID, oth)(a)
        return FN(f)
    for w in range(3): a(f'v_subrev_u32 v{8+2*w}, {(3-w)*16*1152}, v{VA2}\nv_subrev_u32 v{9+2*w}, {(3-w)*16*1152}, v{VB2}')
    emit(a, [allw([63, 64])] + h6 + [V('s_barrier'), allw([65, 66, 67, 68]), allw([69, 70, 71]), FN(pi), V(tabg), FN(lambda a: a.vdrain()), b2])
    if Cfg.w3d: dm6 = [V('s_nop 0')]*18
    first_reads(a, 'tr', 60)
    a('s_branch L_s7e'); s_nou = a.snap()
    a('L_unit:'); a.restore(s1)
    s6a(True)
    fwd, cmul, inv = smid_parts()
    stamp(a, 'm0')
    a.need('sm'); a('s_barrier')
    dmx = lambda i, j: [] if Cfg.w3d else dm6[i:j]
    interleave(a, fwd(0), mix(slate, dmx(0, 6) + h6))
    stamp(a, 'm1')
    a.need('sm2'); a('s_barrier')
    t = E(); xpose_setup(t, 1, 3, VA1, slot(57), 9*32*128); t(tabg)
    interleave(a, fwd(1)[:3], dmx(6, 10) + [V(x) for x in t.l[:11]])
    interleave(a, fwd(1)[3:], mix(cmul(0), dmx(10, 14)))
    a('s_nop 1')
    stamp(a, 'm2')
    interleave(a, inv(0)[:3], [V(x) for x in t.l[11:]])
    interleave(a, inv(0)[3:], cmul(1)[:30] + [FN(pi)] + cmul(1)[30:])
    stamp(a, 'm3')
    def pout(nt):
        o = []
        for p in range(2):
            for par in range(2):
                for i in range(4): o.append(V(f'v_cvt_pk_bf16_f32 v{SWP+16*nt+8*p+4*par+i}, v{SPA[2*nt+p]+4*i+par}, v{SPA[2*nt+p]+4*i+2+par}'))
                o += xpose_w(SWP+16*nt+8*p+4*par, 2*p+par, 1)
        x = xpose_rs(SWP+16*nt, 3, VA1, 48+nt, 9*32*128, 'P', nt)
        return o + x[:4], x[4:]
    a('s_nop 1')
    h8 = hload(8)
    interleave(a, inv(1)[:10], h7 + dmx(14, 18) + [b2])
    first_reads(a, 'tr', 60)
    interleave(a, inv(1)[10:], pout(0)[0])
    stamp(a, 'm5')
    eo = lambda o: (lambda p, kk, h: (JC[1-EORD[p+o][1]] + 16*h, ar(HF + 16*EORD[p+o][0] + 4*kk), p+o == 1 and kk == 0))
    grp = lambda x, n: [FN(lambda a, y=x[i:i+n]: emit(a, y)) for i in range(0, len(x), n)]
    pst = grp(pout(0)[1] + pout(1)[1], 3)
    assert Cfg.pe <= 24 and Cfg.c5 >= 24
    def s7(unit):
        run(a, 60, 3, 'tr', eo(0), [(pout(1)[0], 2, 10), (pst[:4], 0, max(11, Cfg.pe//2)), (pst[4:], max(11, Cfg.pe//2), Cfg.pe)] if unit else [], role='E',
            events={('pre',0): pre(6), ('pre',16): pre(7), Cfg.c5-Cfg.pd: [pi], ('pre',17): [lambda a: stamp(a, 7)]})
    s7(True)
    s_u = a.snap()
    a('s_branch L_s7u')
    a('L_s7e:'); a.restore(s_nou); emit(a, h7)
    s7(False)
    a('L_s7u:'); a.merge(s_u, a.snap())
    stamp(a, 8)
    run(a, 63, 9, 'tr', eo(3), [(h8, Cfg.c5-23, Cfg.c5-15), (part_ops(JC[1], 0), 8*Cfg.e8-13, 8*Cfg.e8+12), (fsetup(), 36, 68), (xback(VB1, 1), 1, 14), (fsetup()[:3] + coop_tw(), 10, 36),
        ([V(f's_add_u32 s{sL9}, s{sPS}, {16384*2}')], 68, 70)], role='E',
        events={9: [codetouch], Cfg.c5-24: [pc(5)], ('pre',8*Cfg.e8-24): pre(8), Cfg.pe+6: [only(R_UNIT, lambda a: setflag(a, 1, 'P', off=11))]})
    a('s_branch L_s9'); s_e = a.snap()
    a('; ROUND 2')
    a.l += lodd; a.restore(s_odd)
    stamp(a, 4)
    run(a, 18, 9, 'tr', g1(ACC[0]), [(gelu_ops(ACC[1], 1, 3), Cfg.gs0, END), (only_ops(R_DFT, vlate, 1), 2, 40), (clo[:6], 44, 68)],
        events={PG: [pi], 40: l2a, 66: l2b})
    run(a, 27, 9, 'tr', g1(ACC[1]), [(gelu_ops(ACC[0], 2, 4), Cfg.gs0, END), (hload(0), CG+2, 64), (clo[6:], 1, 14)],
        events={2: [only(R_DFT, lambda a: setflag(a, 1, 'V', off=35))], CG: [pc(1)], Cfg.f2o: [sf(2, 'clr', ('h',1))], 30: l2c, PG: [pi]}, role='O')
    stamp(a, 5)
    run(a, 36, 9, 'tr', g1(ACC[0]), [(gelu_ops(ACC[1], 3), Cfg.gs0, END), (hload(5), CG+2, 64)], role='O',
        events={CG: [pc(2)], FG: [sf(3, ('h',2))], PG: [pi]})
    stamp(a, 6)
    jj = lambda p, kk, h: (JA[p % 2] + 16*h, ar(HF + 16*GORD[p//2] + 4*kk), p < 2 and kk == 0)
    run(a, 45, 18, 'tr', jj, [(gelu_ops(ACC[0], 4), 3, 47), (hload(6), CG+2, 46), (hload(7), 49+Cfg.c4, 66+Cfg.c4), (hload(8), 48+Cfg.h8, 62+Cfg.h8), (sops(tabg), 140, 143), (fsetup()[:3] + coop_tw(), 50, 96), (fsetup(), 97, 140)], role='O',
        events={CG: [pc(3)], Cfg.f4: [sf(4, ('h',3))], 46: [pi], 48+Cfg.c4: [pc(4)], ('pre',64): pre(0), ('pre',80): pre(5), ('pre',96): pre(6), ('pre',112): pre(7), Cfg.f5h: [sf5], 126: [sent8], 132: [codetouch]})
    stamp(a, 8)
    run(a, 63, 9, 'tr', g2(JC[0]), [(part_ops(JA[0], 4) + part_ops(JA[1], 6), 3, Cfg.p8), ([V(f's_add_u32 s{sL9}, s{sPS}, {16384*10}')], 60, 62)])
    a(f'; ROUND {0 if Cfg.w3 == 2 else 3}\nL_s9:'); a.merge(s_e, a.snap())
    if Cfg.warm and Cfg.w3 == 1: a('; WARM 3')
    stamp(a, 9)
    g2o = lambda acc, o: (lambda p, kk, h: (acc + 16*h, ar(HF + 16*GORD[p+o] + 4*kk), p+o == 0 and kk == 0))
    def two(mask, f):
        l1 = a.label('TW'); l2 = a.label('TX')
        a(f's_and_b32 s98, s{sCLS}, {mask}\ns_cbranch_scc1 {l1}'); s0 = a.snap()
        f(False); a(f's_branch {l2}\n{l1}:'); s1 = a.snap(); a.restore(s0)
        f(True); a(f'{l2}:'); a.merge(s1, a.snap())
    pl1 = lambda hf: [FN(lambda a, k=k: emit(a, pl_ops(hf, k, k+1))) for k in range(16)]
    def ppoll_i(a):
        a(f"""s_min_u32 s98, s{sWV}, 2
        s_mul_i32 s98, s98, 768
        s_add_u32 s98, s98, {PFL_OFF}
        v_lshlrev_b32 v204, 3, v{VLANE}
        v_add_u32 v204, s98, v204
        v_add_u32 v205, 256, v204""")
        a.vm(poll_ins(200, 204, '0'), 'pp1'); a.vm(poll_ins(202, 205, '0'), 'pp2')
    def ppoll_c(a):
        if Cfg.blk & 4:
            only(R_FINW, lambda a: (poll_check(a, 'pp1', 200, 204, '0', 1), poll_check(a, 'pp2', 202, 205, '0', 1)))(a); a('s_mov_b32 s11, 0'); return
        a.vneed('pp2'); poll_test(a, 200, 1); a('s_cselect_b32 s11, 1, 0'); poll_test(a, 202, 1); a(f's_cselect_b32 s11, 1, s11\ns_bitcmp1_b32 s{sROLE}, {R_FINW}\ns_cselect_b32 s11, s11, 1')
    def EV(*pairs):
        d = {}
        for k, v in pairs: d.setdefault(k, []).extend(v if isinstance(v, list) else [v])
        return d
    sched = dict(zip((78, 81, 84, 87), Cfg.sch))
    def tryev(qn, n):
        c = sched.get(qn, '-')
        if c not in '01': return [], []
        hf = int(c); t = E(); etest(t, hf, 20)
        t(f's_cselect_b32 s20, 0, {1 << hf}\ns_and_b32 s20, s20, s{sCLS}\ns_mul_i32 s20, s20, {1 + 512 + 2048}\ns_bitset0_b32 s{sCLS}, {9+hf}\ns_xor_b32 s{sCLS}, s{sCLS}, s20')
        return ([(n - Cfg.ta, eld(hf, 20))] if Cfg.ta <= n else []) + [(n - 8, lambda a: a.drain())], [(sops('\n'.join(t.l)), n-7, n)]
    bar = lambda a: a('s_barrier')
    p2 = part_ops(JC[1], 2)
    seg = {78: (JC[1], 6, [], [(Cfg.f6-48, sf(6, ('p',9))), (23, ppoll_c)]),
           81: (JC[0], 0, [(p2[:11], 3, 22), (tw_reads(), 4, 20)], []),
           84: (JC[0], 3, [(p2[11:], 0, 12), (fin_addr(), 8, 23)], []),
           87: (JC[0], 6, [([FN(lambda a: a.vneed(('d', 98)))] + prd(0) + prd(1) + prd(2), 12, 24)], [(Cfg.f7-48, sf(7, ('p',2))), (('dma', 88), [102, 103]), (('dma', 89), [104]), (3, bar), (22, bar)])}
    e, f = tryev(78, 48)
    if Cfg.ta > 24 and sched[81] in '01': e = e + [(72 - Cfg.ta, eld(int(sched[81]), 20))]
    run(a, 72, 6, 'tr', g2o(JC[1], 0), [(part_ops(JC[0], 9), 3, Cfg.p9), (xb_ops()[:12], 30, 44)] + f,
        events=EV((Cfg.f5, sf(5, ('p',0), ('p',4), ('p',6))), (45, ppoll_i), *e))
    def slab(q, ld):
        acc, o, fl, ev = seg[q]; e, f = tryev(q+3, 24)
        if Cfg.ta > 24 and sched.get(q+6, '-') in '01': e = e + [(48 - Cfg.ta, eld(int(sched[q+6]), 20))]
        run(a, q, 3, 'tr', g2o(acc, o), fl + f + ([(ld, 0, 22 if q < 87 else 16)] if ld else []), nxt=None if q == 87 else 'tr', events=EV(*ev, *e))
    for q in (78, 81, 84, 87):
        c = sched[q]
        if c == '-': slab(q, None)
        elif c == 'x': continue
        else:
            L = pl1(int(c))
            if sched.get(q+3) == 'x': two(512 << int(c), lambda ld: (slab(q, L[:9] if ld else None), slab(q+3, L[9:] if ld else None)))
            else: two(512 << int(c), lambda ld: slab(q, L if ld else None))
    stamp(a, 10)
    final(a)
    a('L_fin:')
    stamp_flush(a, 11)
    a('L_end:\ns_endpgm\nL_hot:\ns_endpgm')
    a.l += HOT
    a('; ROUND -1')
    return a.text()

PTH = [136, 8]
VFA = 4; VO = 5
SEL = 200; AB2 = 208; AX = 232
sCLS = 53
sND, sFO, sPB, sXO, sSG = 46, 48, 50, 4, 36
def classes():
    LAML = [0,0,4,4,2,2,3,3,2]; LAMH = [2,3,3,0,0,4,4,0,0]; NEED = [4,4,6,7,5]; RANK = [0,0,2,3,1]
    swap = 0; nd = [0, 0]; cl = []
    for c in range(9):
        rl, rh = RANK[LAML[c]], RANK[LAMH[c]]
        sw = (rh < rl) if max(rl, rh) < 2 else (rh > rl)
        la, lb = (LAMH[c], LAML[c]) if sw else (LAML[c], LAMH[c])
        swap |= sw << c; nd[0] |= NEED[la] << 3*c; nd[1] |= NEED[lb] << 3*c
        cl.append(({0:0, 2:2, 3:4}[RANK[la]], {0:1, 1:1, 2:3, 3:5}[RANK[lb]]))
    ca = sum(x[0] << 3*i for i, x in enumerate(cl)); cb = sum(x[1] << 3*i for i, x in enumerate(cl))
    return swap, nd, ca, cb
def xearly_addr(a):
    swap = classes()[0]; X = ACC[0]
    a(f'''s_lshl_b32 s96, s{sI}, 2
    s_lshr_b32 s98, s{sC}, 2
    s_add_u32 s96, s96, s98
    s_mul_i32 s96, s96, 1152
    s_and_b32 s98, s{sC}, 3
    s_min_u32 s98, s98, 2
    s_mul_i32 s99, s{sWV}, 3
    s_add_u32 s98, s98, s99
    s_min_u32 s98, s98, 8
    s_lshl_b32 s99, s98, 6
    s_add_u32 s96, s96, s99
    v_lshrrev_b32 v{X}, 2, v{VLANE}
    v_mul_u32_u24 v{X}, 4608, v{X}
    v_lshrrev_b32 v{X+1}, 4, v{VLANE}
    v_xor_b32 v{X+1}, v{X+1}, v{VLANE}
    v_and_b32 v{X+1}, 3, v{X+1}
    v_add_lshl_u32 v{X}, v{X}, v{X+1}, 4
    s_bitcmp1_b32 {swap:#x}, s98
    s_cselect_b32 s98, 576, 0
    s_cselect_b32 s99, 0, 576
    s_add_u32 s98, s98, s96
    s_add_u32 s99, s99, s96
    v_add_u32 v{X+2}, s99, v{X}
    v_add_u32 v{X}, s98, v{X}
    v_add_u32 v{X+1}, {16*73728}, v{X}
    v_add_u32 v{X+3}, {16*73728}, v{X+2}''')
def xearly(a):
    a(f's_lshl_b32 s98, s{sWV}, 12')
    for k in range(4):
        a(f's_add_u32 m0, s98, {BIAS_LDS + 2048 + 1024*k}\ns_nop 0')
        a.vm(f'buffer_load_dwordx4 v{ACC[0]+k}, {S(SX)}, 0 offen lds', 'x2')
def xback(v, t):
    o = sops(f"""s_min_u32 s3, s{sWV}, 2
    s_lshl_b32 s3, s3, 12
    s_add_u32 s3, s3, {BIAS_LDS+2048}
    v_and_b32 v{v}, 31, v{VLANE}""".replace('\n', '\n'))
    o = [V(f's_min_u32 s3, s{sWV}, 2\ns_lshl_b32 s3, s3, 12\ns_add_u32 s3, s3, {BIAS_LDS+2048}\nv_and_b32 v{v}, 31, v{VLANE}\nv_lshl_add_u32 v{v}, v{v}, 6, s3', 5),
         V(f'v_bfe_u32 v{t}, v{VLANE}, 2, 2'), V(f'v_lshl_add_u32 v{v}, v{t}, 4, v{v}'), V(f'v_lshrrev_b32 v{t}, 5, v{VLANE}'), V(f'v_lshl_add_u32 v{v}, v{t}, 3, v{v}'), FN(lambda a: a.vneed('x2'), 0)]
    for q in range(4):
        if q: o.append(V(f'v_xor_b32 v{t}, {16*q}, v{v}'))
        o += [LD(f'ds_read_b64 {ar(AX+8*hf+2*q,2)}, v{t if q else v} offset:{2048*hf}') for hf in range(2)]
    return o
def fsetup():
    a = E(); swap, nd, ca, cb = classes()
    a(f"""s_lshl_b32 s52, s{sI}, 2
    s_lshr_b32 s38, s{sC}, 2
    s_add_u32 s52, s52, s38             ; b'
    s_and_b32 s65, s{sC}, 3
    s_min_u32 s65, s65, 2
    s_mul_i32 s38, s{sWV}, 3
    s_add_u32 s65, s65, s38
    s_min_u32 s65, s65, 8                 ; tile c
    s_mul_i32 s39, s65, 3
    s_lshr_b32 s{sND}, {nd[0]:#x}, s39
    s_and_b32 s{sND}, s{sND}, 7
    s_lshr_b32 s{sND+1}, {nd[1]:#x}, s39
    s_and_b32 s{sND+1}, s{sND+1}, 7
    s_lshr_b32 s38, {ca:#x}, s39
    s_and_b32 s38, s38, 7
    s_lshl_b32 s{sCLS}, 1, s38
    s_lshr_b32 s38, {cb:#x}, s39
    s_and_b32 s38, s38, 7
    s_bitset1_b32 s{sCLS}, s38
    s_bitcmp1_b32 s{sROLE}, {R_FINW}
    s_cselect_b32 s{sCLS}, s{sCLS}, 0
    s_lshl_b32 s{sFLG}, s{sB}, 1
    s_and_b32 s39, s{sC}, 1
    s_add_u32 s{sFLG}, s{sFLG}, s39
    s_mul_i32 s{sFLG}, s{sFLG}, {128*Cfg.fw}
    s_lshr_b32 s39, s{sC}, 1
    s_mul_i32 s39, s39, {4 if Cfg.fw == 1 else 128}
    s_add_u32 s{sFLG}, s{sFLG}, s39
    s_add_u32 s{sFLG}, s{sFLG}, {FL2_OFF}
    s_mul_i32 s39, s52, {256*Cfg.fw}
    s_add_u32 s39, s39, {FL2_OFF + 128*Cfg.fw}
    s_cmp_eq_u32 s65, 8
    s_cselect_b32 s38, 0, {128*Cfg.fw}
    s_sub_u32 s38, s39, s38
    s_mul_i32 s{sPB}, s52, 18
    s_add_u32 s{sPB}, s{sPB}, s65
    s_lshl_b32 s{sPB}, s{sPB}, 14
    s_add_u32 s{sPB}, s{sPB}, {PART_OFF}
    s_lshl_b32 s{sXO}, s65, 6
    s_bitcmp1_b32 {swap:#x}, s65
    s_cselect_b32 s{sFO}, s39, s38
    s_cselect_b32 s{sFO+1}, s38, s39
    s_cselect_b32 s{sSG}, -1.0, 1.0
    s_cselect_b32 s{sSG+1}, 1.0, -1.0
    s_cselect_b32 s38, {9*16384}, 0
    s_cselect_b32 s39, 576, 0
    s_add_u32 s{sPB+1}, s{sPB}, {9*16384}
    s_sub_u32 s{sPB+1}, s{sPB+1}, s38
    s_add_u32 s{sPB}, s{sPB}, s38
    s_add_u32 s{sXO+1}, s{sXO}, 576
    s_sub_u32 s{sXO+1}, s{sXO+1}, s39
    s_add_u32 s{sXO}, s{sXO}, s39
    s_add_u32 s{sXO+2}, s{sXO}, {16*73728}
    s_add_u32 s{sXO+3}, s{sXO+1}, {16*73728}
    s_sub_u32 s38, s{sND}, 4
    s_mul_i32 s38, s38, {16384*Cfg.fw if Cfg.fs else 0}
    s_add_u32 s{sFO}, s{sFO}, s38
    s_sub_u32 s38, s{sND+1}, 4
    s_mul_i32 s38, s38, {16384*Cfg.fw if Cfg.fs else 0}
    s_add_u32 s{sFO+1}, s{sFO+1}, s38
    s_add_u32 s{sND}, s{sND}, s{sNON}
    s_add_u32 s{sND+1}, s{sND+1}, s{sNON}
    v_and_b32 v{VFA}, 7, v{VLANE}
    v_lshlrev_b32 v{VFA}, {2 if Cfg.fw == 1 else 7}, v{VFA}
    v_lshrrev_b32 v{VO}, 2, v{VLANE}
    s_mov_b32 s38, 73728
    v_mul_lo_u32 v{VO}, v{VO}, s38
    v_and_b32 v206, 3, v{VLANE}
    v_lshl_add_u32 v{VO}, v206, 4, v{VO}
    s_mul_i32 s38, s52, 1152
    v_add_u32 v{VO}, s38, v{VO}""")
    a(f's_mul_i32 s{sFP}, s52, 36864\ns_mul_i32 s38, s{sWV}, 12288\ns_add_u32 s{sFP}, s{sFP}, s38\ns_add_u32 s{sFP}, s{sFP}, {P_OFF}')
    return sops('\n'.join(a.l))
def cls_block(a, mask, body, inv=False):
    l = a.label('CB'); a(f's_and_b32 s98, s{sCLS}, {mask}\ns_cbranch_scc{1 if inv else 0} {l}'); s0 = a.snap()
    body(a); a(f'{l}:'); a.merge(s0, a.snap())
SE = [56, 8]
def eld(hf, w):
    def f(a):
        if Cfg.fw == 1: a(f's_buffer_load_dwordx8 s[{w}:{w+7}], {S(SWS)}, s{sFO+hf} glc')
        else:
            for i in range(8): a(f's_buffer_load_dword s{w+i}, {S(SWS)}, s{sFO+hf} offset:{128*i} glc')
        a.smem = True
    return f
def etest(a, hf, w):
    for i in range(8): a(f's_sub_u32 s{w+i}, s{w+i}, s{sND+hf}')
    for i in (0, 2, 4, 6): a(f's_max_u32 s{w+i}, s{w+i}, s{w+i+1}')
    a(f's_max_u32 s{w}, s{w}, s{w+2}\ns_max_u32 s{w+4}, s{w+4}, s{w+6}\ns_max_u32 s{w}, s{w}, s{w+4}\ns_cmp_gt_u32 s{w}, 8')
def etry_c(hf, w):
    def f(a):
        a.drain()
        if Cfg.blk & (1 << hf):
            cls_block(a, 1 << hf, lambda a: eblock(a, hf, w, Cfg.slp)); return
        etest(a, hf, w)
        a(f"""s_cselect_b32 s98, {1 << hf}, 0
        s_and_b32 s98, s98, s{sCLS}
        s_mul_i32 s98, s98, 5
        s_xor_b32 s{sCLS}, s{sCLS}, s98""")
    return f
def eblock(a, hf, w, slp=None):
    lc = a.label('EC'); lk = a.label('EK')
    etest(a, hf, w)
    a(f's_cbranch_scc1 {lc}\n{lk}:')
    a.ool += [f'{lc}:', f' buffer_load_dword v{VPO}, v{VFA}, {S(SWS)}, s{sFO+hf} offen sc1', ' s_waitcnt vmcnt(0)', f' v_subrev_u32 v{VPO}, s{sND+hf}, v{VPO}', f' v_cmp_lt_u32 vcc, 8, v{VPO}', ' s_nop 1', ' s_cmp_lg_u64 vcc, 0',
              f' s_cbranch_scc0 {lk}', f' s_sub_u32 s{sP}, s{sP}, 1', f' s_cbranch_scc1 {lc}_x', f' s_sleep {slp or Cfg.slp2}', f' s_branch {lc}', f'{lc}_x:', f' s_mov_b32 s{sP}, 0', f' s_branch {lk}']
def pl_ops(hf, i0, i1):
    o = []
    for i in range(i0, i1):
        if i % 4 == 0 or i == i0: o.append(V(f's_add_u32 s3, s{sPB+hf}, {4096*(i//4)}'))
        o.append(VM(f'buffer_load_dwordx4 {vr(PTH[hf]+4*i)}, v{VL16}, {S(SWS)}, s3 offen offset:{1024*(i%4)} sc1 {NT(2)}', ('pt', hf)))
    return o
def loads_if(hf, m): return [FN(lambda a, k=k: cls_block(a, m, lambda a: emit(a, pl_ops(hf, 2*k, 2*k+2)))) for k in range(8)]
def xb_ops():
    o = [V(f'v_lshrrev_b32 v{VBI}, 5, v{VLANE}'), V(f'v_lshlrev_b32 v{VBI}, 3, v{VBI}')]
    for hf in range(2):
        o.append(V(f'v_add_u32 v1, s{sXO+hf}, v{VBI}\nv_add_u32 v1, {B2_LDS}, v1'))
        for q in range(4): o.append(LD(f'ds_read_b64 {ar(AB2+8*hf+2*q,2)}, v1 offset:{16*q}'))
    for hf in range(2):
        for i in range(2): o.append(VM(f'buffer_load_dwordx4 {ar(AX+8*hf+4*i)}, v{VO}, {S(SX)}, s{sXO+hf+2*i} offen', 'x2'))
    return o
TWL = XP_LDS
def coop_tw():
    t = TMP; sc = 2.0/(2048*576)
    o = f"""v_and_b32 v{t}, 31, v{VLANE}
    v_lshrrev_b32 v{t+1}, 5, v{VLANE}
    v_lshlrev_b32 v207, 2, v{t+1}
    v_sub_u32 v207, v{t}, v207
    v_lshlrev_b32 v{t}, 6, v{t}
    v_add_u32 v{t}, s52, v{t}
    s_lshr_b32 s38, s{sWV}, 1
    s_and_b32 s39, s{sWV}, 1
    s_lshl_b32 s8, s38, 4
    s_lshl_b32 s9, s39, 2
    s_add_u32 s8, s8, s9
    v_lshl_add_u32 v{t+1}, v{t+1}, 3, s8
    v_mul_u32_u24 v{t+1}, v{t+1}, v{t}
    s_add_u32 s8, s8, s9
    v_subrev_u32 v207, s8, v207
    s_lshl_b32 s38, s38, 10
    s_lshl_b32 s39, s39, 3
    s_add_u32 s38, s38, s39
    s_add_u32 s38, s38, {TWL}
    v_add_u32 v206, s38, v{VL16}
"""
    R = [208+i for i in range(8)]
    L = []
    for i in range(4): L.append(f'v_mad_u32_u24 v{R[i]}, v{t}, {i}, v{t+1}')
    for i in range(4): L.append(f'v_and_b32 v{R[i]}, 0x7ff, v{R[i]}')
    for i in range(4): L.append(f'v_cvt_f32_u32 v{R[i]}, v{R[i]}')
    for i in range(4): L.append(f'v_mul_f32 v{R[i]}, {f2u(1/2048):#x}, v{R[i]}')
    for i in range(4): L.append(f'v_cos_f32 v{R[4+i]}, v{R[i]}')
    for i in range(4): L.append(f'v_sin_f32 v{R[i]}, v{R[i]}')
    for i in (4,5,6,7,0,1,2,3): L.append(f'v_mul_f32 v{R[i]}, {f2u(sc):#x}, v{R[i]}')
    L += [f'v_cvt_pk_bf16_f32 v{t}, v{R[4]}, v{R[5]}', f'v_cvt_pk_bf16_f32 v{t+1}, v{R[6]}, v{R[7]}', f'v_cvt_pk_bf16_f32 v{t+2}, v{R[0]}, v{R[1]}', f'v_cvt_pk_bf16_f32 v{t+3}, v{R[2]}, v{R[3]}',
          f'v_xor_b32 v{t+4}, 0x80008000, v{t+2}', f'v_xor_b32 v{t+5}, 0x80008000, v{t+3}',
          f'v_and_b32 v{R[0]}, 1, v207', f'v_lshlrev_b32 v{R[0]}, 4, v{R[0]}', f'v_mov_b32 v{R[1]}, 0x3f80', f'v_lshlrev_b32 v{R[0]}, v{R[0]}, v{R[1]}', 'v_and_b32 v207, -2, v207',
          'v_cmp_eq_u32 vcc, 0, v207', 's_nop 1', f'v_cndmask_b32 v{t+6}, 0, v{R[0]}, vcc', 'v_cmp_eq_u32 vcc, 2, v207', 's_nop 1', f'v_cndmask_b32 v{t+7}, 0, v{R[0]}, vcc']
    ops = sops(o + '\n'.join(L))
    ops += [(8, LD(f'ds_write_b64 v206, {vr(t+2*m,2)} offset:{2048*m}')[1]) for m in range(4)]
    return ops
def tw_reads():
    return [V(f'v_add_u32 v206, {TWL}, v{VL16}')] + [LD(f'ds_read_b128 {ar(TW+4*i)}, v206 offset:{1024*i}') for i in range(8)]

PB = 24576
def fin_addr():
    return sops(f"""s_add_u32 s38, s{sW2K}, {PB}
    v_lshrrev_b32 v6, 5, v{VLANE}
    v_bfe_u32 v7, v{VLANE}, 2, 2
    v_lshl_add_u32 v6, v6, 3, v7
    v_lshlrev_b32 v6, 7, v6
    v_bfe_u32 v7, v{VLANE}, 1, 1
    v_lshl_add_u32 v6, v7, 6, v6
    v_bfe_u32 v7, v{VLANE}, 4, 1
    v_lshl_add_u32 v6, v7, 4, v6
    v_and_b32 v7, 1, v{VLANE}
    v_lshl_add_u32 v6, v7, 3, v6
    v_add_u32 v6, s38, v6
    v_add_u32 v7, s38, v{VL16}
    s_lshl_b32 s38, s{sWV}, 12
    v_add_u32 v3, s38, v{VL16}
    v_add_u32 v1, 73728, v3
    s_lshl_b32 s38, s{sWV}, 14
    s_add_u32 s38, s38, {PB + 6144}
    v_add_u32 v247, s38, v{VL16}
    s_mov_b32 s39, {f2u(-math.log2(math.e)):#x}""")
APF = 32
def prd(jj):
    return [LD(f'ds_read_b64_tr_b16 {ar(APF+16*jj+8*p+4*t+2*rho,2)}, v6 offset:{8192*(2*jj+t)+512*rho+32*p}', ('pf', jj))
            for t in range(2) for p in range(2) for rho in range(2)]
def final(a):
    Ea=72; Oa=88; YS=[104,208,72]; GA=[208, 104]; PK2=224; T=240; VY=7; VG=3; VG2=1; AY=16
    cv, st = part_inplace(JC[0], 3)
    brole(a, R_FINW, 'L_finw'); s0 = a.snap()
    a('s_nop 8'); emit(a, mix(cv, st))
    brole(a, R_FIN, 'L_w3'); s3_ = a.snap()
    setflag2(a, 8, ('p',3)); a('s_branch L_fin')
    a('L_w3:'); a.restore(s3_)
    for k in range(6):
        a(f's_mov_b32 m0, {122880 + 4096*k}\ns_mov_b32 s96, {86016 - 6144 + 4096*k}\nv_lshl_add_u64 {vr(VTT,2)}, s[96:97], 0, {vr(VTB,2)}')
        for i in range(4): a.vm(f'global_load_lds_dwordx4 {vr(VTT,2)}, off offset:{1024*i}')
        if k == Cfg.w3b: a.vneed(('d', 104)); a('s_barrier')
    setflag2(a, 8, ('p',3))
    a.vdrain(); a('s_barrier\ns_branch L_fin')
    a('L_finw:'); a.restore(s0)
    lc = a.label('PR'); lk = a.label('PL')
    a(f's_cmp_lg_u32 s11, 0\ns_cbranch_scc1 {lc}')
    t = E(); t.nlab = 9000
    t(f'{lc}:\ns_nop 7'); emit(t, mix(cv, st))
    t.vm(poll_ins(200, 204, '0'), 'x'); t.vm(poll_ins(202, 205, '0'), 'y')
    poll_check(t, 'x', 200, 204, '0', 1); poll_check(t, 'y', 202, 205, '0', 1)
    t.drain()
    for q in range(93, 99):
        for f in plan(q, 'P'): f(t)
    t.vdrain(); emit(t, prd(0) + prd(1) + prd(2)); t.drain()
    C=lambda t: ar(TW+4*t); Sn=lambda t: ar(TW+8+4*t); N=lambda t: ar(TW+16+4*t)
    def inv(jj):
        yr=vr(YS[jj],16); yi=vr(YS[jj]+16,16); P=APF+16*jj; mf=[]
        for u in range(2):
            mf += [f'{M} {yr}, {ar(P+4*u)}, {C(u)}, {"0" if u==0 else yr}', f'{M} {yi}, {ar(P+8+4*u)}, {C(u)}, {"0" if u==0 else yi}',
                   f'{M} {yr}, {ar(P+8+4*u)}, {N(u)}, {yr}', f'{M} {yi}, {ar(P+4*u)}, {Sn(u)}, {yi}']
        return mf
    for x in inv(0): t(x)
    t(f's_nop 4\ns_branch {lk}'); a.ool += t.l + t.ool
    def pk(jj):
        o = []
        for q in range(4):
            o += [V(f'v_cvt_pk_bf16_f32 v{YS[jj]+8*q+i}, v{YS[jj]+8*q+2*i}, v{YS[jj]+8*q+2*i+1}') for i in range(4)]
            o.append(LD(f'ds_write_b128 v{VY}, {vr(YS[jj]+8*q)} offset:{8192*(2*jj+q%2)+1024*(q//2)}', 'yw'))
        return o
    a.need(('pf', 0))
    mf = inv(0)
    for x in mf[:2]: a(x)
    a('s_nop 2')
    interleave(a, mf[2:], mix(cv, st))
    a.need(('pf', 2))
    a(f'{lk}:')
    stamp(a, 'f1')
    eld(1, 56)(a); eld(0, 20)(a)
    for jj in (1, 2):
        mf = inv(jj)
        for x in mf[:2]: a(x)
        a('s_nop 5')
        interleave(a, mf[2:], pk(jj-1))
    def summ(hf):
        y = vr(GA[hf], 16)
        o = [f'{M} {y}, {ar(SEL)}, {ar(AB2+8*hf)}, 0', f'{M} {y}, {ar(SEL+4)}, {ar(AB2+8*hf+4)}, {y}']
        return o + [f'{M} {y}, {ar(SEL+4*(i%2))}, {vr(PTH[hf]+4*i)}, {y}' for i in range(16)]
    VW = 204; VR = 205
    setup = sops(f"""s_mul_i32 s38, s{sWV}, 5120
    s_add_u32 s38, s38, {BIAS_LDS}
    v_and_b32 v{VW}, 31, v{VLANE}
    v_mul_u32_u24 v{VW}, 80, v{VW}
    v_add3_u32 v{VW}, v{VW}, v{VBI}, s38
    v_lshrrev_b32 v{VR}, 2, v{VLANE}
    v_mul_u32_u24 v{VR}, 80, v{VR}
    v_and_b32 v206, 3, v{VLANE}
    v_lshlrev_b32 v206, 4, v206
    v_add3_u32 v{VR}, v{VR}, v206, s38""")
    XU = [8, 120]; U0 = 24; GB = 40
    def xun(hf):
        d = vr(XU[hf], 16)
        return [f'{M} {d}, {ar(SEL)}, {ar(AX+8*hf)}, 0', f'{M} {d}, {ar(SEL+4)}, {ar(AX+8*hf+4)}, {d}']
    def sum0(t):
        y = vr(GA[0] if t == 0 else GB, 16)
        return [f'{M} {y}, {ar(SEL+4*t)}, {ar(AB2+4*t)}, 0'] + [f'{M} {y}, {ar(SEL+4*t)}, {vr(PTH[0]+8*i+4*t)}, {y}' for i in range(8)]
    def u0(): return [V(f'v_fma_f32 v{U0+i}, v{Oa+i}, s{sSG}, v{Ea+i}') for i in range(16)]
    def wr(hf, g): return LD(f'ds_write_b64 v{VW}, {vr(PK2+8*hf+g//2,2)} offset:{2560*hf+4*g}')
    def outp(hf):
        o = [LD(f'ds_read_b128 {vr(PK2+8*hf+4*i)}, v{VR} offset:{2560*hf+1280*i}', ('tr', hf, i)) for i in range(2)]
        st = [FN(lambda a, i=i: (a.need(('tr', hf, i)), a.vm(f'buffer_store_dwordx4 {vr(PK2+8*hf+4*i)}, v{VO}, {S(SOUT)}, s{sXO+hf+2*i} offen {Cfg.ofl}'))) for i in range(2)]
        return o, st
    def fin0(t):
        o = []
        for g in (8*t, 8*t+4):
            y = [(GA[0] if t == 0 else GB)+g+i for i in range(4)]; r = [T+i for i in range(4)]
            x = [f'v_mul_f32 v{r[i]}, s39, v{y[i]}' for i in range(4)] + [f'v_exp_f32 v{r[i]}, v{r[i]}' for i in range(4)]
            x += [f'v_add_f32 v{r[i]}, 1.0, v{r[i]}' for i in range(4)] + [f'v_rcp_f32 v{r[i]}, v{r[i]}' for i in range(4)]
            x += [f'v_mul_f32 v{y[i]}, v{U0+g+i}, v{y[i]}' for i in range(4)] + [f'v_fma_f32 v{r[i]}, v{r[i]}, v{y[i]}, v{XU[0]+g+i}' for i in range(4)]
            x += [f'v_cvt_pk_bf16_f32 v{PK2+g//2+i}, v{r[2*i]}, v{r[2*i+1]}' for i in range(2)]
            o += [V(z) for z in x] + [wr(0, g)]
        return o
    def rdyg(i):
        j = i//4; r = i % 4; go = 12288*j + 1024*r
        a.lds(f'ds_read_b128 {ar(AY+4*r)}, v{VY} offset:{8192*(2*(j%3) + r//2) + 2048*(j//3) + 1024*(r%2)}', ('yg', i))
        if j < 2:    a.lds(f'ds_read_b128 {ar(4*r)}, v{VG} offset:{go}', ('yg', i))
        elif j == 2: a.lds(f'ds_read_b128 {ar(4*r)}, v247 offset:{8192*(r//2) + 1024*(r%2)}', ('yg', i))
        else:        a.lds(f'ds_read_b128 {ar(4*r)}, v{VG2} offset:{go-36864}', ('yg', i))
    stamp(a, 'f2')
    def mainm(i):
        j = i//4; u = (i//2) % 2
        d = vr(Ea if (u == 1) == (j < 5) else Oa, 16)
        a(f'{M} {d}, {ar(4*(i%4))}, {ar(AY+4*(i%4))}, {"0" if i in (0,2) else d}')
    def silu(hf):
        o = []
        for g in range(0, 16, 4):
            y = [GA[hf]+g+i for i in range(4)]; t = [T+i for i in range(4)]
            o += [V(f'v_mul_f32 v{t[i]}, s39, v{y[i]}') for i in range(4)] + [V(f'v_exp_f32 v{t[i]}, v{t[i]}') for i in range(4)] + [V(f'v_add_f32 v{t[i]}, 1.0, v{t[i]}') for i in range(4)]
            o += [V(f'v_rcp_f32 v{t[i]}, v{t[i]}') for i in range(4)] + [V(f'v_mul_f32 v{y[i]}, v{t[i]}, v{y[i]}') for i in range(4)]
        return o
    def comb(hf):
        o = []
        for g in range(0, 16, 4):
            u = [248+i for i in range(4)]
            o += [V(f'v_fma_f32 v{u[i]}, v{Oa+g+i}, s{sSG+hf}, v{Ea+g+i}') for i in range(4)] + [V(f'v_fma_f32 v{u[i]}, v{u[i]}, v{GA[hf]+g+i}, v{XU[hf]+g+i}') for i in range(4)]
            o += [V(f'v_cvt_pk_bf16_f32 v{PK2+8*hf+g//2+i}, v{u[2*i]}, v{u[2*i+1]}') for i in range(2)] + [wr(hf, g)]
        return o + outp(hf)[0]
    if Cfg.f8 == 99: setflag2(a, 8, ('p',3))
    a(f's_and_b32 s98, s{sCLS}, {1|4|16}\ns_cselect_b32 s98, 64, 0\ns_or_b32 s{sCLS}, s{sCLS}, s98')
    def point(a):
        def b(a):
            l = a.label('T0'); a.drain(); etest(a, 0, 20); eld(0, 20)(a); a(f's_cbranch_scc1 {l}'); s0 = a.snap()
            emit(a, pl_ops(0, 0, 16)); a(f's_xor_b32 s{sCLS}, s{sCLS}, {64|256}\n{l}:'); a.merge(s0, a.snap())
        cls_block(a, 64, b)
    def must0(a):
        def b(a):
            l = a.label('MS'); l2 = a.label('MT')
            a(f's_mov_b32 s99, 6\n{l}:'); a.drain(); etest(a, 0, 20); a(f's_cbranch_scc0 {l2}'); eld(0, 20)(a)
            a(f's_sub_u32 s99, s99, 1\ns_cbranch_scc0 {l}'); a.drain(); eblock(a, 0, 20); a(f'{l2}:')
            emit(a, pl_ops(0, 0, 16))
        cls_block(a, 64, b)
        a.vdrain()
    pts = [int(x) for x in str(Cfg.pts).split('_')]
    a(f's_bitcmp1_b32 s{sCLS}, 12\ns_cbranch_scc0 L_slow'); s_sl = a.snap()
    a.vneed(('d', 104))
    s1 = summ(1) + xun(1) + xun(0)
    for x in s1[:2]: a(x)
    a('s_nop 2')
    interleave(a, s1[2:9], pk(2) + [V(f'v_add_u32 v{VY}, {PB}, v{VL16}')])
    interleave(a, s1[9:12], setup)
    stamp(a, 'f3')
    a.drain(); a('s_barrier')
    t = E(); etest(t, 0, 20)
    t(f's_cselect_b32 s98, 0, 64\ns_and_b32 s98, s98, s{sCLS}\ns_mul_i32 s98, s98, {1 + 4 + 128}\ns_xor_b32 s{sCLS}, s{sCLS}, s98')
    interleave(a, s1[12:], [FN(lambda a: rdyg(0)), FN(lambda a: rdyg(1)), FN(lambda a: rdyg(2))] + sops('\n'.join(t.l)) + [FN(eld(0, 20))])
    stamp(a, 'f4')
    def mainloop(fl, start, hook):
        k2 = 0
        for i in range(36):
            if i + 3 < 36: rdyg(i+3)
            a.need(('yg', i), *([('yg', i+1)] if i % 2 == 0 and Cfg.mw else []))
            mainm(i)
            hook(i)
            while i >= start and k2 < len(fl)*(i-start+1)//(35-start) and k2 < len(fl): fl[k2][1](a); k2 += 1
            if i == 24: a('s_barrier')
    def hookf(i):
        if i % Cfg.ls == 0 and i//Cfg.ls < 4: cls_block(a, 1 << 13, lambda a: emit(a, pl_ops(0, 4*(i//Cfg.ls), 4*(i//Cfg.ls)+4)))
        if i in pts: point(a)
    mainloop(silu(1), 1, hookf)
    stamp(a, 'f5')
    lf = a.label('FF')
    a(f's_bitcmp1_b32 s{sCLS}, 6\ns_cbranch_scc1 {lf}'); s0 = a.snap()
    a.vdrain()
    stamp(a, 'f6')
    sA = sum0(0); sB = sum0(1)
    for x in sA[:2]: a(x)
    a('s_nop 5')
    interleave(a, sA[2:], comb(1))
    interleave(a, sB[:3], u0() + outp(1)[1])
    a('s_branch L_last'); sa = a.snap()
    a(f'{lf}:'); a.restore(s0)
    point(a)
    a('s_nop 7')
    emit(a, comb(1) + u0() + outp(1)[1])
    a('L_w0:')
    must0(a)
    stamp(a, 'f6')
    for x in sA + sB[:2]: a(x)
    a('s_nop 7'); a(sB[2])
    a('L_last:'); a.merge(sa, a.snap())
    interleave(a, sB[3:], fin0(0))
    stamp(a, 'f8b')
    a('s_nop 3')
    emit(a, fin0(1))
    stamp(a, 'f9')
    emit(a, outp(0)[0] + outp(0)[1])
    a('s_branch L_fin')
    a('L_slow:'); a.restore(s_sl)
    emit(a, setup + pk(2))
    a(f'v_add_u32 v{VY}, {PB}, v{VL16}')
    stamp(a, 'f3')
    a.vneed(('d', 104)); a.drain(); a('s_barrier')
    stamp(a, 'f4')
    for i in range(3): rdyg(i)
    etest(a, 1, 56); a(f's_cselect_b32 s98, 128, 0\ns_or_b32 s{sCLS}, s{sCLS}, s98')
    def hook(i):
        if i % 2 == 0 and i < 8: cls_block(a, 128, lambda a: emit(a, pl_ops(1, 2*i, 2*i+4)), inv=True)
        if i in pts: cls_block(a, 128, point, inv=True)
        if i == 22: eld(1, 56)(a)
    mainloop([], 0, hook)
    a.drain()
    cls_block(a, 128, lambda a: (eblock(a, 1, 56), eld(0, 20)(a), emit(a, pl_ops(1, 0, 16))))
    stamp(a, 'f5')
    point(a)
    l = a.label('RD')
    a(f's_bitcmp1_b32 s{sCLS}, 8\ns_cbranch_scc1 {l}\ns_waitcnt vmcnt(0)\n{l}:\ns_waitcnt vmcnt(16)')
    for x in summ(1) + xun(1) + xun(0): a(x)
    point(a)
    a('s_nop 5')
    emit(a, silu(1)); point(a); emit(a, comb(1) + u0() + outp(1)[1])
    assert not a.st['l']
    a('s_branch L_w0')

def build(aslist=False):
    k = NAME + '_kernel'
    body = kernel()
    if Cfg.warm:
        import stubs
        body, st, end = stubs.add_stubs(body, '.set CODE_LINES, 17\n', ('L_main', 'L_odd', 'L_dft', 'L_s3', 'L_unit', 'L_s7e', 'L_finw', 'L_hot') + (('L_s9',) if Cfg.w3 == 2 else ()) + (('TW_*',) if Cfg.tws else ()), Cfg.wmode)
        print('stubs', {k: [hex(x) for x in v] for k, v in st.items()}, 'end', end, file=sys.stderr)
    hdr = f'; @launch kernel={k} grid=(256,1,1) block=(256,1,1) lds=163840\n' if aslist else '; @launch grid=(256,1,1) block=(256,1,1) lds=163840\n'
    s = '; generated by gen/v6.py\n' + hdr + '.amdgcn_target "amdgcn-amd-amdhsa--gfx950"\n.text\n.set CODE_LINES, 26\n'
    s += kstart(k) + body + 'L_codeend:\n'
    s += '.section .rodata,"a"\n' + kdesc(k, 512, 256) + tables()
    return s
if __name__ == '__main__':
    out = sys.argv[1] if len(sys.argv) > 1 else f'cdna_kernels/{NAME}.s'
    for x in sys.argv[2:]:
        if '=' in x:
            kx, vx = x.split('='); setattr(Cfg, kx, int(vx) if re.fullmatch(r'-?\d+', vx) and kx != 'sch' else vx)
    open(out, 'w').write(build('--list' in sys.argv))
```

```python
import sys, re
from common2 import *
M = 'v_mfma_f32_32x32x16_bf16'
VL16=0; VT1=1; VLANE=2; VT3=3; VA1=4; VB1=5; VA2=6; VB2=7
XF=8; ACC=[152,184]; TMP=216; HO=224; TA=240; VBI=246; VC0=247; VFL=248; VPO=250; VTB=252; VTT=254
HF=32; TW=176
SX,SW1,SW2,SWS,SWR,SWI,SOUT,SB,SDBG = 4,8,12,16,20,24,28,32,36
sWV,sI,sC,sB,sROLE,sNON = 40,41,42,43,44,45
sO1=46; sO2=55; sW2K=64; sHS=65; sPS=66; sFLG=67; sT=68; sT2=69; sGC1=70; sP=71
sRHO=39
sX0=96
R_ODD,R_DFT,R_SMID,R_UNIT,R_FIN,R_FINW,R_PATCH = 0,1,2,3,4,5,6
PF=3; NB=4
GC0 = -2.0*math.log2(math.e)*math.sqrt(2/math.pi); GC1 = GC0*0.044715
BIAS_LDS = 147456
B2_LDS = 163840 - 2048
class Cfg:
    stamps=False; st='1,2,3,4,5,6,7,8,9,10'; xa=3; lg=1; pm=340; f8=99; w3d=1; f2o=44; e2nd=22; blk=0; f6=60; p9=30; sch='---1'; ta=22; tws=1; j1=1; tw3=0; nl=2; wsl=0; bf=1; fp0=7; be=1; ce=0; f9=0; nso=1; ct=1; xl=6; pts='20'; mw=1; cp=0; fs=1; fw=1; pd=18; ls=3; rf=1; w3b=0; ecl=1; ge=40; c5=24; pe=23; e8=6; nt=0; f5h=76; noclr=0; t1=5; t2=99; ne=9; c0=20; b2=1; pz1=0; pz2=4; sd=4; tw1=1; warm=1; wmode='execz'; clk=0; xe=1; fp=3; f7=60; gs=55; l9=46; l10=34; mg=0; tn=108; w2k=99; rots=1; np=6; te=0; pt='w2,b1,b2,wr,wi,dbg'; w3=1; xo=1; f16=1; gs0=1; e2=50; l2=0; t9=30; t10=8; pfg=44; ofl=''; h8=44; f4=26; c4=20; f5=14; p8=60; fg=24; pg=52; cg=8; tb=4; normin=0; rx=8; rota=1; rotb=1; touch='x2,w,tab,code'; spin=100000; slp=8; slp2=2; rr=1; wt=1
def h2(x):
    u = struct.unpack('<H', struct.pack('<e', x))[0]; return u | u << 16
def S(b): return f's[{b}:{b+3}]'
def stamp(a, nm):
    if not Cfg.stamps: return
    L = ['0'] + Cfg.st.split(',') + ['11']
    nm = str(nm)
    if nm in L:
        i = L.index(nm) if nm != '11' else 11
        a(f'{"s_memtime" if Cfg.clk else "s_memrealtime"} s[{72+2*i}:{73+2*i}]')
def stamp_flush(a, n):
    if not Cfg.stamps: return
    a.vdrain(); stamp(a, n); n += 1
    a(f'''s_waitcnt lgkmcnt(0)
    s_mov_b32 s{SWS+2}, {STAMP_OFF + (1<<20)}
    v_mov_b32 v1, 0''')
    for i in range(n): a(f'v_writelane_b32 v1, s{72+2*i}, {i}')
    a(f'v_writelane_b32 v1, s53, 12\nv_writelane_b32 v1, s11, 13\nv_writelane_b32 v1, s{sP}, 14')
    a(f'''s_lshl_b32 s{sT}, s2, 3
    s_add_u32 s{sT}, s{sT}, s{sWV}
    s_lshl_b32 s{sT}, s{sT}, 6
    s_add_u32 s{sT}, s{sT}, {STAMP_OFF}
    v_lshlrev_b32 v3, 2, v{VLANE}
    s_mov_b64 exec, 0xffff
    buffer_store_dword v1, v3, {S(SWS)}, s{sT} offen
    s_mov_b64 exec, -1''')
def brole(a, bit, lab, ifset=True):
    a(f's_bitcmp1_b32 s{sROLE}, {bit}\ns_cbranch_scc{1 if ifset else 0} {lab}')

def V(s, c=1): return (c, lambda a: a(s))
def VM(s, tag=None): return (1, lambda a: a.vm(s, tag))
def LD(s, tag=None): return (1, lambda a: a.lds(s, tag))
def FN(f, c=1): return (c, f)
def SVM(pre, s, tag=None): return (1, lambda a: (a(pre), a.vm(s, tag)))
def emit(a, ops):
    for _, f in ops: f(a)

def sops(txt):
    L = [x.split(';')[0].strip() for x in txt.split('\n')]; L = [x for x in L if x]
    o = []; cur = []
    for i, x in enumerate(L):
        cur.append(x)
        nx = L[i+1] if i+1 < len(L) else ''
        if nx.startswith(('s_cselect', 's_addc', 's_subb', 'v_cndmask', 's_nop')) or x.startswith(('s_nop', 'v_cmp')): continue
        o.append(V('\n'.join(cur), len(cur))); cur = []
    return o
def mix(x, y):
    o = []; k = 0
    for i, e in enumerate(x):
        o.append(e)
        t = len(y)*(i+1)//len(x)
        while k < t: o.append(y[k]); k += 1
    return o
def gelu_ops(acc, job, nb=None, sd=0):
    ops = []; G = 4; held = []
    for g in range(0, 32, G):
        t = [TMP + (g//G % 2)*4 + i for i in range(G)]
        x = [acc + g + i for i in range(G)]
        if not Cfg.f16:
            for i in range(G): ops.append(V(f'v_mul_f32 v{t[i]}, v{x[i]}, v{x[i]}'))
            for i in range(G): ops.append(V(f'v_fma_f32 v{t[i]}, v{t[i]}, s{sGC1}, v{VC0}'))
            for i in range(G): ops.append(V(f'v_mul_f32 v{t[i]}, v{t[i]}, v{x[i]}'))
            for i in range(G): ops.append(V(f'v_exp_f32 v{t[i]}, v{t[i]}', 2))
            for i in range(G): ops.append(V(f'v_add_f32 v{t[i]}, 1.0, v{t[i]}'))
            for i in range(G): ops.append(V(f'v_rcp_f32 v{t[i]}, v{t[i]}', 2))
            for i in range(G): ops.append(V(f'v_mul_f32 v{t[i]}, v{t[i]}, v{x[i]}'))
        else:
            HI = 'dst_sel:WORD_1 dst_unused:UNUSED_PRESERVE src0_sel:WORD_1'
            t = [TMP + i for i in range(4)]; u = [TMP + 4, TMP + 5]; w = [TMP + 6, TMP + 7]
            for i in range(2): ops.append(V(f'v_cvt_pk_f16_f32 v{u[i]}, v{x[2*i]}, v{x[2*i+1]}'))
            for i in range(2): ops.append(V(f'v_pk_mul_f16 v{w[i]}, v{u[i]}, v{u[i]}'))
            for i in range(2): ops.append(V(f'v_pk_fma_f16 v{w[i]}, v{w[i]}, s{sGC1}, v{VC0}'))
            for i in range(2): ops.append(V(f'v_pk_mul_f16 v{u[i]}, v{w[i]}, v{u[i]}'))
            for i in range(2): ops.append(V(f'v_exp_f16 v{w[i]}, v{u[i]}', 2))
            for i in range(2): ops.append(V(f'v_exp_f16_sdwa v{w[i]}, v{u[i]} {HI}', 2))
            for i in range(2): ops.append(V(f'v_pk_add_f16 v{u[i]}, v{w[i]}, 1.0 op_sel_hi:[1,0]'))
            for i in range(2): ops.append(V(f'v_rcp_f16 v{t[2*i]}, v{u[i]}', 2))
            for i in range(2): ops.append(V(f'v_rcp_f16_sdwa v{t[2*i+1]}, v{u[i]} dst_sel:WORD_0 dst_unused:UNUSED_PAD src0_sel:WORD_1', 2))
            for i in (0, 2, 1, 3): ops.append(V(f'v_fma_mix_f32 v{t[i]}, v{x[i]}, v{t[i]}, 0 op_sel_hi:[0,1,0]'))
        if nb is not None: ops.append((2, lambda a, g=g: a.lds(f'ds_read_b128 {vr(acc+g)}, v{VBI} offset:{256*nb + 8*g}', 'bias')))
        for i in range(0, G, 2): ops.append(V(f'v_cvt_pk_bf16_f32 v{HO + (g+i)//2}, v{t[i]}, v{t[i+1]}'))
        for i in range(0, G, 2): ops.append(V(f'v_accvgpr_write_b32 a{HF + 16*job + (g+i)//2}, v{HO + (g+i)//2}'))
        if g % 8 == 4:
            q = g // 8
            if q == 0: ops.append(V(f's_add_u32 s{sT2}, s{sHS}, {4096*job}'))
            held.append(VM(f'buffer_store_dwordx4 {vr(HO+4*q)}, v{VL16}, {S(SWS)}, s{sT2} offen offset:{1024*q} sc1', ('h', job)))
        if held and g//4 >= sd: ops.append(held.pop(0))
    return ops
def part_ops(acc, lam):
    ops = []
    for q in range(4):
        if q % 2 == 0: ops.append(V(f's_add_u32 s{sT2}, s{sPS}, {16384*(2*lam + q//2)}' if lam != 9 else f's_add_u32 s{sT2}, s{sL9}, {16384*(q//2)}'))
        for i in range(4): ops.append(V(f'v_cvt_pk_bf16_f32 v{HO+4*q+i}, v{acc+8*q+2*i}, v{acc+8*q+2*i+1}'))
        ops.append(VM(f'buffer_store_dwordx4 {vr(HO+4*q)}, v{VL16}, {S(SWS)}, s{sT2} offen offset:{1024*(q%2)} sc1', ('p', lam)))
    return ops
def clear_ops(sreg, imms, tag, r=HO):
    if Cfg.noclr: return [V('s_nop 0')]
    ops = [V(f'v_mov_b32 v{r+i}, -1' if r > 0 else f'v_accvgpr_write_b32 a{-r+i}, -1') for i in range(4)]
    ops = [(0, f) for _, f in ops]
    for im in imms:
        for k in range(2): ops.append(SVM(f's_add_u32 s3, s{sreg}, {im}', f'buffer_store_dwordx4 {vr(r) if r > 0 else ar(-r)}, v{VL16}, {S(SWS)}, s3 offen offset:{1024*k} sc1', tag))
    return ops
def sent_check(a, tag, regs, t, reload_lines, probe=None, slp=None):
    lc = a.label('SC'); ls = a.label('SS'); lk = a.label('SK')
    a.vneed(tag)
    a(f'{lc}:')
    rs = []
    for i, r in enumerate(regs):
        if r[0] == 'a': a(f'v_accvgpr_read_b32 v{t+i}, {r}'); rs.append(f'v{t+i}')
        else: rs.append(r)
    a(f'v_max_u32 v{t}, {rs[0]}, {rs[1]}')
    for i in range(2, len(rs), 2): a(f'v_max3_u32 v{t}, v{t}, {rs[i]}, {rs[i+1]}')
    a(f'v_cmp_eq_u32 vcc, -1, v{t}\ns_nop 1\ns_cmp_lg_u64 vcc, 0\ns_cbranch_scc1 {ls}\n{lk}:')
    pr = []
    if probe:
        pr = [' ' + x for x in probe[0]] + [f' v_and_b32 v{t+1}, {probe[1]}, v{VLANE}', f' v_lshlrev_b32 v{t+1}, 10, v{t+1}', f' buffer_load_dword v{t}, v{t+1}, {S(SWS)}, s3 offen offset:1020 sc1',
              ' s_waitcnt vmcnt(0)', f' v_cmp_eq_u32 vcc, -1, v{t}', ' s_nop 1', ' s_cmp_lg_u64 vcc, 0', f' s_cbranch_scc1 {ls}']
    a.ool += [f'{ls}:', f' s_sub_u32 s{sP}, s{sP}, 1', f' s_cbranch_scc1 {ls}_x', f' s_sleep {slp or (Cfg.slp2 if probe else Cfg.slp)}'] + pr + [x if x.endswith(':') else ' ' + x for x in reload_lines] + [' s_waitcnt vmcnt(0)', f' s_branch {lc}',
              f'{ls}_x:', f' s_mov_b32 s{sP}, 0', f' s_branch {lk}']
def lines_of(ops):
    t = E(); emit(t, ops); return [x.strip() for x in t.l]
def norm_ops(u):
    T = HO; r = XF + 8*u; ops = []
    for i in range(8): ops.append(V(f'v_dot2_f32_bf16 v{T+i}, v{r+i}, v{TMP+4}, v{TMP}'))
    for i in range(8): ops.append(V(f'v_dot2_f32_bf16 v{T+8+i}, v{r+i}, v{TMP+5}, v{TMP}'))
    for i in range(8): ops.append(V(f'v_cvt_pk_bf16_f32 v{r+i}, v{T+2*i}, v{T+2*i+1}'))
    return ops
def setflag(a, stage, *tags, off=None):
    a(f'v_mov_b32 v{VFL+1}, {stage}')
    a.vneed(*tags)
    a('s_mov_b64 exec, 1')
    a.vm(f'buffer_store_dwordx2 {vr(VFL,2)}, off, {S(SWS)}, s{sFLG if off is None else off} sc1')
    a('s_mov_b64 exec, -1')
def setflag2(a, stage, *tags):
    a(f'v_add_u32 v{VFL+1}, {stage-1}, v{VFL}')
    a(f's_add_u32 s3, s{sFLG}, {(stage-5)*16384*Cfg.fw if Cfg.fs else 0}')
    a.vneed(*tags)
    a('s_mov_b64 exec, 1')
    a.vm(f'buffer_store_dword v{VFL+1}, off, {S(SWS)}, s3 sc1')
    a('s_mov_b64 exec, -1')
def poll_ins(p, voff, soff): return f'buffer_load_dwordx2 {vr(p,2)}, v{voff}, {S(SWS)}, {soff} offen sc1' if voff is not None else f'buffer_load_dwordx2 {vr(p,2)}, off, {S(SWS)}, {soff} sc1'
def poll_test(a, p, need):
    a(f'''v_subrev_u32 v{p+1}, {need}, v{p+1}
    v_cmp_ne_u32 vcc, s{sNON}, v{p}
    v_cmp_lt_u32 s[{sX0+4}:{sX0+5}], 60, v{p+1}
    s_nop 1
    s_or_b64 vcc, vcc, s[{sX0+4}:{sX0+5}]''')
SPL = 0
def spoll_i(a): a(f's_buffer_load_dwordx2 s[{SPL}:{SPL+1}], {S(SWS)}, s34 glc'); a.smem = True
def spoll_c(need):
    def f(a):
        lc = a.label('QC'); lk = a.label('QK')
        a.drain()
        a(f"""s_sub_u32 s{SPL+1}, s{SPL+1}, {need}
        s_cmp_lt_u32 s{SPL+1}, 60
        s_cselect_b32 s{SPL}, s{SPL}, 0
        s_cmp_lg_u32 s{SPL}, s{sNON}
        s_cbranch_scc1 {lc}
        {lk}:""")
        t = E(); poll_test(t, VPO, need)
        a.ool += [f'{lc}:', ' ' + poll_ins(VPO, None, 's34'), ' s_waitcnt vmcnt(0)'] + t.l + [f' s_cbranch_scc0 {lk}', f' s_sub_u32 s{sP}, s{sP}, 1', f' s_cbranch_scc1 {lc}_x', f' s_sleep {Cfg.slp}', f' s_branch {lc}',
                  f'{lc}_x:', f' s_mov_b32 s{sP}, 0', f' s_branch {lk}']
    return f
def poll_check(a, tag, p, voff, soff, need):
    lc = a.label('PC'); ls = a.label('PS'); lk = a.label('PK')
    a.vneed(tag)
    a(f'{lc}:'); poll_test(a, p, need)
    a(f's_cbranch_scc1 {ls}\n{lk}:')
    a.ool += [f'{ls}:', f' s_sub_u32 s{sP}, s{sP}, 1', f' s_cbranch_scc1 {ls}_x', f' s_sleep {Cfg.slp}', ' ' + poll_ins(p, voff, soff), ' s_waitcnt vmcnt(0)', f' s_branch {lc}',
              f'{ls}_x:', f' s_mov_b32 s{sP}, 0', f' s_branch {lk}']

def slot(q): return (q % 18) * 8192
def rd_ops(kind, q, kk, n):
    fb = (n % NB) * 8; s = slot(q) + kk*2048
    if kind == 'dft':
        b = s // 49152; off = s % 49152
        return [(f'ds_read_b128 {ar(fb)}, v{VPO+b} offset:{off}', ('f', n)), (f'ds_read_b128 {ar(fb+4)}, v{VPO+b} offset:{off+1024}', ('f', n))]
    b = s // 49152; off = s % 49152; L = TA + 2*b; R = L + 1
    return [(f'ds_read_b64_tr_b16 {ar(fb,2)}, v{L} offset:{off}', ('f', n)), (f'ds_read_b64_tr_b16 {ar(fb+2,2)}, v{L} offset:{off+512}', ('f', n)),
            (f'ds_read_b64_tr_b16 {ar(fb+4,2)}, v{R} offset:{off}', ('f', n)), (f'ds_read_b64_tr_b16 {ar(fb+6,2)}, v{R} offset:{off+512}', ('f', n))]
def dma_buf(q, srd_, va, vb, sreg, imm, fl='', srd2=None):
    if Cfg.nso and imm <= 1024 and slot(q) >= imm:
        def f0(a):
            a(f's_add_u32 m0, s{sW2K}, {slot(q) - imm}')
            a.m0fix()
            a.vm(f'buffer_load_dwordx4 v{va}, {S(srd_)}, s{sreg} offen offset:{imm} {fl} lds', ('d', q))
        def f1(a): a.vm(f'buffer_load_dwordx4 v{vb}, {S(srd2 or srd_)}, s{sreg} offen offset:{1024+imm} {fl} lds', ('d', q))
        return [f0, f1]
    def f0(a):
        a(f's_add_u32 m0, s{sW2K}, {slot(q)}\ns_add_u32 s{sT}, s{sreg}, {imm}')
        a.vm(f'buffer_load_dwordx4 v{va}, {S(srd_)}, s{sT} offen {fl} lds', ('d', q))
    def f1(a): a.vm(f'buffer_load_dwordx4 v{vb}, {S(srd2 or srd_)}, s{sT} offen offset:1024 {fl} lds', ('d', q))
    return [f0, f1]
def dma_tab(q, imm=None, sreg=None):
    def f0(a):
        a(f's_add_u32 m0, s{sW2K}, {slot(q)}')
        if sreg is None: a(f's_mov_b32 s{sX0}, {imm}')
        else: a(f's_lshl_b32 s{sX0}, s{sreg}, 13\ns_add_u32 s{sX0}, s{sX0}, s{sPS}')
        a(f'v_lshl_add_u64 {vr(VTT,2)}, s[{sX0}:{sX0+1}], 0, {vr(VTB,2)}')
        a.vm(f'global_load_lds_dwordx4 {vr(VTT,2)}, off', ('d', q))
    def f1(a): a.vm(f'global_load_lds_dwordx4 {vr(VTT,2)}, off offset:1024', ('d', q))
    return [f0, f1]
def dma_alt(bit, ifset, ifclr, cond=None):
    def f0(a):
        l1 = a.label('DA'); l2 = a.label('DB')
        if not ifclr:
            brole(a, bit, l1, False); s0 = a.snap()
            for f in ifset: f(a)
            a(f'{l1}:'); a.merge(s0, a.snap()); return
        brole(a, bit, l1)
        s0 = a.snap()
        if ifclr:
            for f in ifclr: f(a)
        s1 = a.snap()
        if ifset:
            a(f's_branch {l2}\n{l1}:'); a.restore(s0)
            for f in ifset: f(a)
            a(f'{l2}:'); a.merge(s1, a.snap())
        else:
            a(f'{l1}:'); a.merge(s0, s1)
    return [f0, lambda a: None]
GORD = [1,2,3,4,0,5,6,7,8]; GE = [1,2,3,0,5,4,6,7,8]
class _EO:
    def __getitem__(self, i):
        L = [(6,0),(1,1),(7,0),(2,1),(3,1),(4,1),(0,1),(5,1),(6,1),(7,1),(8,1)]; L.insert(Cfg.e8, (8,0)); return L[i]
EORD = _EO()
def NT(b): return 'nt' if Cfg.nt & b else ''
def w1p(q): return dma_buf(q, SW1, VA1, VB1, sO1 + q % 9, 128*(q//9), NT(4))
def w2p(q, g, lam): return dma_buf(q, SW2, VA2, VB2, sO2 + g, 128*lam)
sSV, sFP, sL9 = 46, 54, 10
HOT = []
def plan(q, role=None):
    if q < 27 and role == 'N': return []
    if q < 9 and role == 'D': return dma_tab(q, sreg=sO2+q)
    if q < 45: return w1p(q)
    if q < 72:
        assert role
        if role == 'O':
            return w2p(q, GORD[(q-45)//2], 4 + 2*((q-45) % 2)) if q < 63 else w2p(q, GORD[q-63], 5)
        if q < 51: return w2p(q, GE[q-45], 0)
        if q < 54: return dma_tab(q, TABF_SZ + TABG_SZ + 8192*(q-51))
        if q < 57: return dma_buf(q, SWS, VL16, VL16, sSV, 8192*(q-54), 'sc1 ' + NT(1))
        if q < 60: return []
        return w2p(q, *EORD[q-60])
    if q < 90: return w2p(q, GORD[(q-72) % 9], 2 + (q-72)//9)
    k = q - 90
    if k < 3: return dma_tab(q, 8192*k)
    if k < 9:
        pp = dma_buf(q, SWS, VL16, VL16, sFP, 2048*(k-3), 'sc1')
        if role == 'P': return pp
        def f(a):
            l1 = a.label('DA'); l2 = a.label('DB')
            a(f's_cmp_lg_u32 s11, 0\ns_cbranch_scc1 {l1}')
            for g in pp: g(a)
            a(f'{l2}:')
            t = E(); t(f'{l1}:')
            for g in dma_tab(q, 24576 - 6144 + 2048*(k-3)): g(t)
            t(f's_branch {l2}'); HOT.extend(t.l)
        return [f]
    return dma_tab(q, 8192*k - 36864)

def bias_ops(acc, job): return [LD(f'ds_read_b128 {vr(acc+4*q)}, v{VBI} offset:{256*job + 32*q}', 'bias') for q in range(8)]
def bias_reads(a, acc, job):
    for q in range(8): a.lds(f'ds_read_b128 {vr(acc+4*q)}, v{VBI} offset:{256*job + 32*q}', 'bias')

def run(a, q0, npc, kind, mf, fills, nxt='tr', nextbias=None, norm=False, events=None, role=None, pause=None):
    events = events or {}
    N = 4*npc; n0 = 4*q0
    dq = []
    fs = [[ops, s, e, 0, 0, sum(c for c, _ in ops)] for ops, s, e in fills]
    for i in range(N):
        n = n0 + i; q = q0 + i//4; kk = i % 4
        j = i + PF; qn = q0 + j//4
        k2 = kind if j < N else nxt
        r = rd_ops(k2, qn, j % 4, n + PF) if k2 else []
        fb = (n % NB) * 8
        if kk == 0:
            for qq in events.get(('dma0', q), []) + [q + 12] + events.get(('dma', q), []): dq += plan(qq, role)
        paused = pause and pause[0] <= i//4 < pause[0] + pause[1]
        for h in range(2):
            gap = 2*i + h
            if h == 0 and kk == 0: stamp(a, f'q{q}')
            stamp(a, f'g{q0}_{gap}')
            for f in events.get(('pre', gap), []): f(a)
            if h == 0: a.need(('f', n), *(['bias'] if i == 0 else []), *([('f', n+1)] if Cfg.w2k and i % 2 == 0 and q < Cfg.w2k and not a.smem else []))
            acc, op, zero = mf(i//4, kk, h)
            d = vr(acc, 16) if acc >= 0 else ar(-acc, 16); c = '0' if zero else d
            if kind == 'dft': a(f'{M} {d}, {op}, {ar(fb+4*h)}, {c}')
            else:             a(f'{M} {d}, {ar(fb+4*h)}, {op}, {c}')
            if h == 0 and j % 12 == 0 and k2 and (4*q0) % 12 == 0:
                a.vneed(('d', qn), ('d', qn+1), ('d', qn+2), *events.get(('bar', qn), [])); a('s_barrier')
            if h == 0 and j == N and nextbias is not None:
                assert all(f[3] == len(f[0]) for f in fs)
                bias_reads(a, *nextbias)
            m = len(r)//2
            for ins, t in r[h*m:(h+1)*m]: a.lds(ins, t)
            if dq and not paused and ((h == 1 and (kk % 2 == 0 or len(dq) > 2)) or (len(dq) > N - i - 1)): dq.pop(0)(a)
            if norm and i//2 + 1 < 18:
                emit(a, norm_ops(i//2 + 1)[6*(gap % 4):6*(gap % 4)+6])
            for f in fs:
                if gap >= f[1]:
                    target = f[5] * min(1.0, (gap - f[1] + 1) / (f[2] - f[1]))
                    while f[3] < len(f[0]) and f[4] + f[0][f[3]][0]/2 <= target:
                        f[0][f[3]][1](a); f[4] += f[0][f[3]][0]; f[3] += 1
            for f in events.get(gap, []): f(a)
    assert all(f[3] == len(f[0]) for f in fs) and not dq
def only(bit, f):
    def g(a):
        l = a.label('ON'); brole(a, bit, l, False); s0 = a.snap()
        f(a); a(f'{l}:'); a.merge(s0, a.snap())
    return g
def masked(test, f):
    def g(a):
        a(test + '\ns_cselect_b64 exec, -1, 0'); s0 = a.snap()
        f(a); a('s_mov_b64 exec, -1'); a.merge(s0, a.snap())
    return g
def rolem(bit, f): return masked(f's_bitcmp1_b32 s{sROLE}, {bit}', f)
def rolem_ops(bit, ops, n): return [FN(rolem(bit, lambda a, x=ops[i:i+n]: emit(a, x))) for i in range(0, len(ops), n)]
def only_ops(bit, ops, n):
    return [FN(only(bit, lambda a, x=ops[i:i+n]: emit(a, x))) for i in range(0, len(ops), n)]
def first_reads(a, kind, q):
    for ks in range(PF):
        for ins, t in rd_ops(kind, q, ks, 4*q + ks): a.lds(ins, t)
def interleave(a, mf, ops, start=0):
    n = len(mf) - start; k = 0
    for i, x in enumerate(mf):
        a(x)
        if i >= start:
            t = len(ops) * (i - start + 1) // n
            while k < t: ops[k][1](a); k += 1

def twiddle_ops(dst, t, sym, sb, scale=None):
    o = [f'v_and_b32 v{t}, 31, v{VLANE}', f'v_lshrrev_b32 v{t+1}, 5, v{VLANE}']
    if sym == 'fwd':
        o += [f'v_lshlrev_b32 v{t+1}, 8, v{t+1}', f'v_add_u32 v{t+1}, s{sb}, v{t+1}', f'v_mul_u32_u24 v{t+1}, v{t+1}, v{t}', f'v_lshlrev_b32 v{t}, 6, v{t}']
        mult = lambda tt, e: 16*tt + (e & 3) + 8*(e >> 2)
    else:
        o += [f'v_lshlrev_b32 v{t}, 6, v{t}', f'v_add_u32 v{t}, s{sb}, v{t}', f'v_lshlrev_b32 v{t+1}, 3, v{t+1}', f'v_mul_u32_u24 v{t+1}, v{t+1}, v{t}']
        mult = lambda tt, e: 16*tt + e
    for tt in range(2):
        for e in range(0, 8, 2):
            for i in range(2): o.append(f'v_mad_u32_u24 v{t+2+i}, v{t}, {mult(tt, e+i)}, v{t+1}')
            for i in range(2): o.append(f'v_and_b32 v{t+2+i}, 0x7ff, v{t+2+i}')
            for i in range(2): o.append(f'v_cvt_f32_u32 v{t+2+i}, v{t+2+i}')
            for i in range(2): o.append(f'v_mul_f32 v{t+2+i}, {f2u(1/2048):#x}, v{t+2+i}')
            for i in range(2): o.append(f'v_cos_f32 v{t+4+i}, v{t+2+i}')
            for i in range(2): o.append(f'v_sin_f32 v{t+2+i}, v{t+2+i}')
            if scale:
                for i in (2,3,0,1): o.append(f'v_mul_f32 v{t+2+i}, {f2u(scale):#x}, v{t+2+i}')
            d = 4*tt + e//2
            o += [f'v_cvt_pk_bf16_f32 v{t+4}, v{t+4}, v{t+5}', f'v_cvt_pk_bf16_f32 v{t+2}, v{t+2}, v{t+3}', f'v_accvgpr_write_b32 a{dst+d}, v{t+4}',
                  f'v_xor_b32 v{t+3}, 0x80008000, v{t+2}', f'v_accvgpr_write_b32 a{dst+8+d}, v{t+2}', f'v_accvgpr_write_b32 a{dst+16+d}, v{t+3}']
    return [V(x) for x in o]

def prologue(a):
    rx = Cfg.rx; cx = 32//rx; nxc = 16//cx
    a(f"""s_cmpk_ge_u32 s2, 256
    s_cbranch_scc1 L_end
    s_load_dwordx16 s[44:59], s[0:1], 0
    s_load_dwordx4 s[60:63], s[0:1], 64
    s_load_dwordx2 s[64:65], s[0:1], 80
    s_memrealtime s[66:67]""")
    stamp(a, 0)
    a(f"""s_getpc_b64 s[100:101]
    L_pcref:
    s_lshr_b32 s97, s2, 3
    s_mul_i32 s97, s97, CODE_LINES*128
    v_lshlrev_b32 v{VPO}, 7, v0
    v_add_u32 v{VPO}, s97, v{VPO}
    v_min_u32 v{VPO}, L_codeend-L_pcref-4, v{VPO}
    v_mov_b32 v{VPO+1}, 0
    v_lshl_add_u64 {vr(VPO,2)}, s[100:101], 0, {vr(VPO,2)}
    v_cmp_gt_u32 vcc, CODE_LINES, v0
    s_and_saveexec_b64 s[98:99], vcc
    s_cbranch_execz L_noct
    global_load_dword a255, {vr(VPO,2)}, off
    L_noct:
    s_mov_b64 exec, -1
    s_and_b32 s96, s2, 7
    s_lshr_b32 s97, s2, 3
    s_and_b32 s{sC}, s96, {nxc-1}
    s_mul_i32 s{sC}, s{sC}, {cx}
    s_and_b32 s98, s97, {cx-1}
    s_add_u32 s{sC}, s{sC}, s98
    s_lshr_b32 s{sI}, s96, {nxc.bit_length()-1}
    s_mul_i32 s{sI}, s{sI}, {rx}
    s_lshr_b32 s98, s97, {cx.bit_length()-1}
    s_add_u32 s{sI}, s{sI}, s98
    v_lshrrev_b32 v1, 6, v0
    v_and_b32 v{VLANE}, 63, v0
    v_mov_b32 v{VTT}, v0
    v_readfirstlane_b32 s{sWV}, v1
    v_lshlrev_b32 v{VL16}, 4, v{VLANE}
    v_lshrrev_b32 v1, 3, v{VLANE}
    v_and_b32 v3, 7, v{VLANE}
    v_lshrrev_b32 v4, 1, v1
    v_xor_b32 v3, v3, v4
    s_mov_b32 s96, 73728
    v_mul_lo_u32 v1, v1, s96
    v_lshl_add_u32 v144, v3, 4, v1
    v_xor_b32 v145, 64, v144
    v_add_u32 v145, {8*73728-1024}, v145
    v_add_u32 v146, {16*73728}, v144
    v_add_u32 v147, {16*73728}, v145
    s_lshl_b32 s{sB}, s{sI}, 2
    s_add_u32 s{sB}, s{sB}, s{sWV}
    s_mul_i32 s96, s{sI}, {Cfg.rota}
    s_lshr_b32 s97, s{sC}, {Cfg.rots}
    s_mul_i32 s97, s97, {Cfg.rotb}
    s_add_u32 s96, s96, s97
    s_mul_i32 s97, s96, 7282
    s_lshr_b32 s97, s97, 16
    s_mul_i32 s97, s97, 9
    s_sub_u32 s96, s96, s97         ; rot
    s_mul_i32 s3, s{sB}, 1152
    s_lshl_b32 s99, s{sWV}, 11
    s_getpc_b64 s[100:101]
    s_add_u32 s100, s100, tabF@rel32@lo+4
    s_addc_u32 s101, s101, tabF@rel32@hi+12
    s_mov_b32 s{SX+2}, {2048*1152}
    s_mov_b32 s{SX+3}, 0x20000
    s_lshl_b32 s{sT}, s96, 7
    s_add_u32 s{sT}, s{sT}, s3
    s_mov_b32 m0, s99
    s_waitcnt lgkmcnt(0)
    s_mov_b32 s{SX}, s44
    s_and_b32 s{SX+1}, s45, 0xffff""")
    stamp(a, 'ka')
    if Cfg.wt:
        a(f'''s_lshr_b32 s97, s{sC}, 1
        s_add_u32 s98, s97, s{sI}
        s_and_b32 s98, s98, 7
        s_bitcmp1_b32 s{sC}, 0
        s_cselect_b32 s98, s98, 0
        s_cmp_lt_u32 s98, 5
        s_cbranch_scc1 L_nowt
        s_sub_u32 s98, s98, 5
        s_lshl_b32 s70, s98, 6
        s_add_u32 s70, s70, s{sB}
        s_lshl_b32 s98, s98, 2
        s_add_u32 s98, s98, s{sWV}
        s_mul_i32 s98, s98, {48*9216}
        s_mul_i32 s97, s97, 1152
        s_add_u32 s98, s98, s97
        v_mul_u32_u24 v3, 9216, v{VLANE}
        v_add_u32 v3, s98, v3
        s_mul_i32 s70, s70, {15*128}
        v_lshlrev_b32 v{VPO}, 7, v{VLANE}
        v_add_u32 v{VPO}, s70, v{VPO}
        v_mov_b32 v{VPO+1}, 0
        v_lshl_add_u64 {vr(VPO,2)}, s[100:101], 0, {vr(VPO,2)}
        v_lshlrev_b32 v1, 21, v{VLANE}
        s_bfm_b64 exec, 48, 0
        global_load_dword a255, v3, s[52:53]
        s_bfm_b64 exec, 15, 0
        global_load_dword a255, {vr(VPO,2)}, off
        s_mov_b64 exec, 7
        global_load_dword a255, v1, s[56:57]
        s_mov_b64 exec, 1''')
        for r in (54, 58, 46, 48, 62): a(f'global_load_dword a255, v1, s[{r}:{r+1}] offset:128')
        a(f'''s_mov_b64 exec, -1
        s_lshr_b32 s97, s{sC}, 1
        s_add_u32 s98, s97, s{sI}
        s_and_b32 s98, s98, 7
        s_sub_u32 s98, s98, 5
        s_and_b32 s97, s97, 1
        s_mul_i32 s97, s97, 3
        s_add_u32 s98, s98, s97
        s_lshl_b32 s98, s98, 2
        s_add_u32 s98, s98, s{sWV}
        s_mul_i32 s98, s98, {Cfg.tn*128}
        s_lshr_b32 s97, s{sI}, 3
        s_mul_i32 s97, s97, {5184*128}
        s_add_u32 s98, s98, s97
        s_lshr_b32 s97, s{sC}, 2
        s_mul_i32 s97, s97, {2*5184*128}
        s_add_u32 s98, s98, s97
        v_lshlrev_b32 v3, 7, v{VLANE}
        v_add_u32 v3, s98, v3
        s_bfm_b64 exec, 54, 0''')
        for k in range(Cfg.te): a(f'global_load_dword a255, v3, s[56:57]\nv_add_u32 v3, {54*128}, v3')
        a('s_mov_b64 exec, -1\nL_nowt:')
    for o in range(4):
        if o == 2: a('s_add_u32 m0, s99, 8192\ns_nop 0')
        a.vm(f'buffer_load_dwordx4 v{144+o}, {S(SX)}, s{sT} offen offset:{1024*(o%2)} lds', ('x', 0))
    a(f's_add_u32 s97, s96, 1\ns_cmp_eq_u32 s97, 9\ns_cselect_b32 s97, 0, s97\ns_lshl_b32 s{sT}, s97, 7\ns_add_u32 s{sT}, s{sT}, s3')
    for o in range(4):
        if o % 2 == 0: a(f's_add_u32 m0, s99, {16384 + 8192*(o//2)}\ns_nop 0')
        a.vm(f'buffer_load_dwordx4 v{144+o}, {S(SX)}, s{sT} offen offset:{1024*(o%2)} lds', ('x', 1))
    srd(a, SDBG, 62, 256); srd(a, SWS, 64, WS_SZ)
    srd(a, SWR, 46, 2048*578); srd(a, SWI, 48, 2048*578); srd(a, SW1, 52, 576*9216); srd(a, SB, 54, 9216)
    srd(a, SW2, 56, 4608*1152); srd(a, SOUT, 60, 2048*1152)
    a(f's_mov_b64 s[0:1], s[58:59]\ns_mov_b32 s{sW2K}, s99')
    XV = 144
    def xline(L):
        a(f's_lshl_b32 s{sT}, s{sO2+L}, 7\ns_add_u32 s{sT}, s{sT}, s3')
        for o in range(4):
            if o % 2 == 0: a(f's_add_u32 m0, s{sW2K}, {16384*L + 8192*(o//2)}\ns_nop 0')
            a.vm(f'buffer_load_dwordx4 v{XV+o}, {S(SX)}, s{sT} offen offset:{1024*(o%2)} lds', ('x', L))
    for L in range(9):
        a(f's_mov_b32 s{sO2+L}, s96')
        if 1 < L < Cfg.xa: xline(L)
        if L < 8: a('s_add_u32 s96, s96, 1\ns_cmp_eq_u32 s96, 9\ns_cselect_b32 s96, 0, s96')
    stamp(a, 'xi')
    nx = [Cfg.xa, 0]
    def xnext():
        if nx[1] < Cfg.xe: xline(nx[0]); nx[0] += 1; nx[1] += 1
    a(f'''s_or_b32 s66, s66, 1
    s_add_u32 s97, s2, s{sWV}
    s_cmp_lg_u32 s97, 0
    s_cbranch_scc1 L_nonon
    v_mov_b32 v1, s66
    s_mov_b64 exec, 1
    buffer_store_dword v1, off, {S(SDBG)}, 0 sc1
    s_mov_b64 exec, -1
    L_nonon:
    s_lshr_b32 s96, s{sC}, 1            ; p
    s_mul_i32 s{sNON}, s{sI}, {Cfg.rr}
    s_add_u32 s{sNON}, s{sNON}, s96
    s_and_b32 s{sNON}, s{sNON}, 7       ; rho
    s_and_b32 s{sROLE}, s{sC}, 1
    s_cmp_lt_u32 s{sNON}, 5
    s_cselect_b32 s97, s{sROLE}, 0
    s_lshl_b32 s97, s97, {R_DFT}
    s_xor_b32 s98, s{sROLE}, 1
    s_cmp_lt_u32 s{sNON}, 6
    s_cselect_b32 s98, s98, 0
    s_cmp_lt_u32 s{sWV}, 3
    s_cselect_b32 s99, {(1<<R_SMID)|(1<<R_UNIT)}, {1<<R_SMID}
    s_mul_i32 s98, s98, s99
    s_cselect_b32 s99, {(1<<R_FIN)|(1<<R_FINW)}, {1<<R_FIN}
    s_or_b32 s97, s97, s98
    s_and_b32 s98, s{sC}, 3
    s_cmp_lg_u32 s98, 2
    s_cselect_b32 s99, s99, 0
    s_or_b32 s97, s97, s99
    s_lshl_b32 s98, s{sROLE}, 8
    s_or_b32 s{sROLE}, s{sROLE}, s97
    s_lshl_b32 s97, s{sNON}, 8
    s_or_b32 s{sROLE}, s{sROLE}, s97
    s_mul_i32 s97, s96, 576
    s_add_u32 s97, s97, s98                ; f_base
    v_add_u32 v1, s97, v{VTT}
    v_lshlrev_b32 v1, 1, v1''')
    a(f'v_mov_b32 v{HO+15}, v1\nv_lshlrev_b32 v{HO+11}, 2, v{VTT}')
    if not Cfg.xo: xnext()
    def bloads():
        a.vm(f'buffer_load_ushort v{ACC[1]+12}, v{HO+15}, {S(SB)}, 0 offen', 'b1')
        a.vm(f'buffer_load_ushort v{ACC[1]+13}, v{HO+15}, {S(SB)}, 0 offen offset:512', 'b1')
        a(f's_mov_b32 s{SB}, s0\ns_and_b32 s{SB+1}, s1, 0xffff\ns_mov_b32 s{SB+2}, 1152\ns_lshl_b32 s98, s{sWV}, 8\ns_add_u32 m0, s98, {B2_LDS}\ns_nop 0')
        a.vm(f'buffer_load_dword v{HO+11}, {S(SB)}, 0 offen lds', 'b1')
        a.vm(f'buffer_load_dword v{HO+11}, {S(SB)}, 0 offen offset:1024 lds', 'b1')
        a(f's_mov_b32 s35, s{sNON}')
    a(f'''v_lshlrev_b32 v{ACC[1]+14}, 2, v{VTT}
    v_add_u32 v{ACC[1]+14}, {BIAS_LDS}, v{ACC[1]+14}
    s_mul_i32 s{sHS}, s{sB}, 288
    s_lshr_b32 s98, s97, 4
    s_add_u32 s{sHS}, s{sHS}, s98
    s_lshl_b32 s{sHS}, s{sHS}, 10
    s_lshl_b32 s97, s97, 1''')
    for g in range(9): a(f's_mul_i32 s{sO1+g}, s{sO2+g}, {64*9216}\ns_add_u32 s{sO1+g}, s{sO1+g}, s97')
    a(f's_mul_i32 s{sPS}, s{sNON}, 73728')
    a(f'''v_add_u32 v{VTB}, s{sW2K}, v{VL16}
    v_mov_b32 v{VTB+1}, 0
    v_lshl_add_u64 {vr(VTB,2)}, s[100:101], 0, {vr(VTB,2)}
    s_mov_b32 s{sX0+1}, 0
    s_lshl_b32 s{sFLG}, s{sB}, 4
    s_add_u32 s{sFLG}, s{sFLG}, s{sC}
    s_lshl_b32 s{sFLG}, s{sFLG}, 7
    s_add_u32 s{sFLG}, s{sFLG}, {FL_OFF}
    s_mov_b32 s{sP}, {Cfg.spin}
    s_mov_b32 s{sGC1}, {(h2(GC1) if Cfg.f16 else f2u(GC1)):#x}
    v_mov_b32 v{VC0}, {(h2(GC0) if Cfg.f16 else f2u(GC0)):#x}
    v_bfe_u32 v1, v{VLANE}, 3, 2            ; r
    v_lshrrev_b32 v3, 5, v{VLANE}           ; rho
    v_and_b32 v{VB1}, 2, v1
    v_lshlrev_b32 v{VB1}, 1, v{VB1}
    v_and_b32 v{VB2}, 7, v{VLANE}
    v_xor_b32 v{VB2}, v{VB2}, v{VB1}
    v_lshlrev_b32 v{VB2}, 4, v{VB2}
    v_lshl_add_u32 v1, v3, 3, v1            ; 8rho+r
    s_lshr_b32 s98, s{sWV}, 1
    s_lshl_b32 s98, s98, 5
    s_and_b32 s99, s{sWV}, 1
    s_add_u32 s98, s98, s99
    v_lshlrev_b32 v3, 1, v1
    v_add_u32 v3, s98, v3
    v_mul_u32_u24 v3, 9216, v3
    v_add_u32 v{VA1}, v3, v{VB2}
    v_add_u32 v{VB1}, {8*9216-1024}, v{VA1}
    s_lshl_b32 s98, s{sWV}, 4
    v_add_u32 v1, s98, v1
    v_mul_u32_u24 v1, 1152, v1
    v_add_u32 v{VA2}, v1, v{VB2}
    v_add_u32 v{VB2}, {4*1152-1024}, v{VA2}''')
    if not Cfg.xo: xnext()
    a(f'''v_lshrrev_b32 v1, 5, v{VLANE}
    v_lshlrev_b32 v{VBI}, 4, v1
    v_add_u32 v{VBI}, {BIAS_LDS}, v{VBI}
    v_bfe_u32 v3, v{VLANE}, 2, 2
    v_lshl_add_u32 v1, v1, 3, v3
    v_lshlrev_b32 v1, 7, v1
    v_and_b32 v3, 2, v3
    v_lshl_add_u32 v1, v3, 5, v1
    v_bfe_u32 v3, v{VLANE}, 4, 1
    v_lshl_add_u32 v1, v3, 5, v1
    v_and_b32 v3, 3, v{VLANE}
    v_lshl_add_u32 v{TA}, v3, 3, v1
    v_xor_b32 v{TA+1}, 64, v{TA}
    v_add_u32 v{TA+2}, 49152, v{TA}
    v_add_u32 v{TA+3}, 49152, v{TA+1}
    v_add_u32 v{TA+4}, 98304, v{TA}
    v_add_u32 v{TA+5}, 98304, v{TA+1}''')
    if not Cfg.xo: xnext()
    XA = HO
    a(f'''v_and_b32 v1, 15, v{VLANE}
    v_lshlrev_b32 v1, 7, v1
    v_bfe_u32 v3, v{VLANE}, 4, 1
    v_lshl_add_u32 v1, v3, 13, v1
    v_add_u32 v1, s{sW2K}, v1
    v_lshrrev_b32 v3, 5, v{VLANE}
    v_bfe_u32 v{XA}, v{VLANE}, 1, 3
    v_xor_b32 v3, v3, v{XA}
    v_lshl_add_u32 v{XA}, v3, 4, v1
    v_xor_b32 v{XA+1}, 32, v{XA}
    v_xor_b32 v{XA+2}, 64, v{XA}
    v_xor_b32 v{XA+3}, 96, v{XA}
    s_mov_b32 s{sT2}, 0x3f803f80''')
    smid_ids(a)
    a(f'''s_add_u32 s98, s96, s{sWV}
    s_cmp_eq_u32 s98, 4
    s_cselect_b32 s{sNON}, {1<<R_PATCH}, 0
    s_bitcmp1_b32 s{sROLE}, {R_UNIT}
    s_cselect_b32 s{sNON}, s{sNON}, 0
    s_or_b32 s{sROLE}, s{sROLE}, s{sNON}
    s_cmp_lt_u32 s98, 5
    s_cselect_b32 s{sNON}, 2, 0
    s_lshl_b32 s98, s98, 6
    s_add_u32 s{sNON}, s{sNON}, s98
    s_mul_i32 s99, s99, 578
    s_add_u32 s{sNON}, s{sNON}, s99
    v_lshrrev_b32 v3, 2, v{VLANE}
    v_mul_u32_u24 v3, 18496, v3
    v_and_b32 v1, 3, v{VLANE}
    v_lshl_add_u32 v3, v1, 4, v3''')
    a(f'''s_lshr_b32 s98, s2, 3
    s_lshl_b32 s98, s98, 2
    s_add_u32 s98, s98, s{sWV}
    s_lshr_b32 s99, s98, 1
    s_mul_i32 s99, s99, {9*9216}
    s_and_b32 s98, s98, 1
    s_mul_i32 s98, s98, 1152
    s_add_u32 s99, s99, s98
    s_and_b32 s98, s{sC}, {16-cx}
    s_mul_i32 s98, s98, 576
    s_add_u32 s99, s99, s98
    v_mul_u32_u24 v1, 43, v{VLANE}
    v_lshrrev_b32 v1, 8, v1
    v_mul_u32_u24 v{VPO}, 6, v1
    v_sub_u32 v{VPO}, v{VLANE}, v{VPO}
    v_add_u32 v{VPO+1}, 1, v{VPO}
    v_lshrrev_b32 v{VPO+1}, 2, v{VPO+1}
    v_add3_u32 v{VPO}, v{VPO}, v{VPO+1}, 2
    v_mul_u32_u24 v1, 9216, v1
    v_lshl_add_u32 v1, v{VPO}, 7, v1
    v_add_u32 v{VPO}, s99, v1''')
    xearly_addr(a)
    for i in range(8): a(f'v_mov_b32 v{TMP+i}, 0')
    def stats(L):
        for q in range(4):
            a.need(('x', 4*L+q))
            for i in range(4):
                r = XF + 16*L + 4*q + i
                a(f'v_dot2c_f32_bf16 v{TMP+i}, s{sT2}, v{r}\nv_dot2c_f32_bf16 v{TMP+4+i}, v{r}, v{r}')
    def first_piece(q):
        if q < 9: return dma_alt(R_ODD, dma_alt(R_DFT, dma_tab(q, sreg=sO2+q), None), w1p(q))
        return w1p(q)
    stamp(a, 'w0')
    if Cfg.warm:
        brole(a, R_ODD, 'L_wo')
        a('; WARM 1\ns_branch L_main\nL_wo:\n; WARM 2')
    a('s_branch L_main\n.p2align 12\nL_main:')
    npc0 = 0
    if Cfg.xo:
        while nx[1] < Cfg.xe: xnext()
    for L in range(10):
        if L < 9:
            stamp(a, f'xa{L}')
            a.vneed(('x', L))
            stamp(a, f'xb{L}')
            if L in (4, 8):
                for q in range(4): a(f'v_add_u32 v{XA+q}, 0x10000, v{XA+q}')
            for q in range(4): a.lds(f'ds_read_b128 {vr(XF+16*L+4*q)}, v{XA+q} offset:{16384*(L%4)}', ('x', 4*L+q))
        if L == 9: stamp(a, 1)
        if nx[0] < 9:
            xline(nx[0]); nx[0] += 1
            if nx[0] == 9: bloads()
        elif L >= Cfg.fp0 and npc0 < 2*Cfg.fp:
            qs = (npc0, npc0+1)
            dma_alt(R_ODD, dma_alt(R_DFT, [f for q in qs for f in dma_tab(q, sreg=sO2+q)], None), [f for q in qs for f in w1p(q)])[0](a)
            npc0 += 2
        if L == Cfg.xl: only(R_FINW, xearly)(a)
        if L: stats(L-1)
    rest = [FN(f) for q in range(npc0, Cfg.np) for f in first_piece(q)]
    rest += [VM(f'buffer_load_dword v{VFL}, off, {S(SDBG)}, 0 sc1', 'non')]
    T = TMP
    a(f'''s_nop 2
    v_add_f32 v{T}, v{T}, v{T+1}
    v_add_f32 v{T+2}, v{T+2}, v{T+3}
    v_add_f32 v{T+4}, v{T+4}, v{T+5}
    v_add_f32 v{T+6}, v{T+6}, v{T+7}
    v_add_f32 v{T}, v{T}, v{T+2}
    v_add_f32 v{T+4}, v{T+4}, v{T+6}
    v_mov_b32 v{T+1}, v{T}
    v_mov_b32 v{T+5}, v{T+4}
    s_nop 1
    v_permlane32_swap_b32 v{T}, v{T+1}
    v_permlane32_swap_b32 v{T+4}, v{T+5}
    s_nop 0
    v_add_f32 v{T}, v{T}, v{T+1}
    v_add_f32 v{T+4}, v{T+4}, v{T+5}
    v_mul_f32 v{T}, {f2u(1/576):#x}, v{T}
    v_mul_f32 v{T+4}, {f2u(1/576):#x}, v{T+4}
    v_fma_f32 v{T+4}, -v{T}, v{T}, v{T+4}
    v_max_f32 v{T+4}, 0, v{T+4}
    v_cvt_pk_bf16_f32 v{T}, v{T}, v{T+4}
    v_and_b32 v{T+4}, 0xffff0000, v{T}
    v_lshlrev_b32 v{T}, 16, v{T}
    v_add_f32 v{T+4}, {f2u(1e-5):#x}, v{T+4}
    v_cvt_pk_bf16_f32 v{T+4}, v{T+4}, v{T+4}
    v_and_b32 v{T+4}, 0xffff0000, v{T+4}
    v_sqrt_f32 v{T+4}, v{T+4}
    s_nop 0
    v_cvt_pk_bf16_f32 v{T+4}, v{T+4}, v{T+4}
    v_and_b32 v{T+4}, 0xffff0000, v{T+4}
    v_rcp_f32 v{T+4}, v{T+4}
    s_nop 0
    v_cvt_pk_bf16_f32 v{T+4}, v{T+4}, v{T+4}
    v_and_b32 v{T+5}, 0xffff0000, v{T+4}
    v_lshrrev_b32 v{T+4}, 16, v{T+4}
    v_mul_f32 v{T}, v{T}, v{T+5}
    v_sub_f32 v{T}, 0, v{T}''')
    if Cfg.tn < 216:
        tall = w2touch(0, Cfg.tn*24, -(-(5184 - Cfg.tn*24)//(64 if Cfg.be else 128)), Cfg.be)
        rest.append(FN(tall))
    def w1all(a):
        if Cfg.j1:
            a(f'v_subrev_u32 v{VPO+1}, 128, v{VPO}\ns_mov_b32 exec_lo, 0x49249249\ns_mov_b32 exec_hi, 0x92492')
            a.vm(f'buffer_load_dword a255, v{VPO+1}, {S(SW1)}, 0 offen')
        a('s_bfm_b64 exec, 54, 0')
        a.vm(f'buffer_load_dword a255, v{VPO}, {S(SW1)}, 0 offen')
        a('s_mov_b64 exec, -1')
    if Cfg.tw1: rest.insert(len(rest) - (1 if Cfg.tn < 216 else 0), FN(w1all))
    def wall(a):
        if Cfg.be:
            a(f'''s_lshr_b32 s69, s2, 4
            s_lshl_b32 s69, s69, 3
            s_and_b32 s3, s2, 7
            s_add_u32 s69, s69, s3
            s_lshl_b32 s69, s69, 2
            s_add_u32 s69, s69, s{sWV}
            s_min_u32 s69, s69, 486
            s_mul_i32 s69, s69, {19*128}
            v_lshlrev_b32 v{VTT}, 7, v{VLANE}
            s_bitcmp1_b32 s{sWV}, 0
            s_mov_b64 exec, 0x7ffff''')
            a(f'buffer_load_dword a255, v{VTT}, {S(SWR)}, s69 offen')
        else:
            a(f'''s_lshl_b32 s69, s2, 1
            s_lshr_b32 s3, s{sWV}, 1
            s_add_u32 s69, s69, s3
            s_min_u32 s69, s69, 486
            s_mul_i32 s69, s69, {19*128}
            v_lshlrev_b32 v{VTT}, 7, v{VLANE}
            s_bitcmp1_b32 s{sWV}, 0
            s_cselect_b64 exec, 0x7ffff, 0''')
            a(f'buffer_load_dword a255, v{VTT}, {S(SWR)}, s69 offen')
            a('s_cselect_b64 exec, 0, 0x7ffff')
        a.vm(f'buffer_load_dword a255, v{VTT}, {S(SWI)}, s69 offen')
        a('s_mov_b64 exec, -1')
    rest.insert(len(rest) - (1 if Cfg.tn < 216 else 0), FN(wall))
    if Cfg.normin:
        emit(a, rest); emit(a, norm_ops(0))
    else:
        stamp(a, 'n0')
        a('.p2align 3')
        rest = [FN(lambda a, f=f: (f(a), a('.p2align 3'))) for _, f in rest]
        nt = 1 + (1 if Cfg.tn < 216 else 0) + (1 if Cfg.tw1 else 0)
        tch = rest[-nt:]; rest = rest[:-nt]
        global BATCH2
        BATCH2 = []
        if Cfg.b2: BATCH2 = [wall] + ([tall] if Cfg.tn < 216 else []); tch = tch[:1]
        global B2PRE, B2FIRE
        t = E(); tall(t); k = [x.strip().startswith('s_bfm') for x in t.l].index(True)
        fix = lambda L: '\n'.join(L).replace('s3,', 's0,').replace('s3 ', 's0 ').replace('s96', 's1')
        B2PRE = sops(fix(t.l[:k])); f1 = fix(t.l[k:])
        t = E(); wall(t); k = [x.strip().startswith('s_bitcmp') for x in t.l].index(True)
        B2PRE += sops('\n'.join(t.l[:k])); f2 = '\n'.join(t.l[k:])
        B2FIRE = [lambda a: (a(f2), a.vm('s_nop 0'), a(f1), a.vm('s_nop 0'))]
        N = [o for u in range(18) for o in norm_ops(u)]
        k1 = len(N)*Cfg.t1//100; k2 = len(N)*Cfg.t2//100; ne = 2*Cfg.ne
        global NLAST
        NLAST = [V('.p2align 3')] + N[len(N)-24*Cfg.nl:]; N = N[:len(N)-24*Cfg.nl]
        emit(a, mix(N[:k1], rest[:ne] + tch) + N[k1:-24])
        stamp(a, 'nb')
        a.vneed('b1')
        a(f'v_lshlrev_b32 v{ACC[1]+12}, 16, v{ACC[1]+12}\nv_lshlrev_b32 v{ACC[1]+13}, 16, v{ACC[1]+13}')
        a.lds(f'ds_write_b32 v{ACC[1]+14}, v{ACC[1]+12}', 'bw'); a.lds(f'ds_write_b32 v{ACC[1]+14}, v{ACC[1]+13} offset:1024', 'bw')
        a('.p2align 3'); emit(a, N[-24:])
def late_setup():
    a = E()
    a(f'''s_lshr_b32 s96, s{sC}, 1
    s_and_b32 s98, s{sC}, 1
    s_mul_i32 s{sO2}, s96, {576*1152}
    s_lshl_b32 s99, s98, 8
    s_add_u32 s{sO2}, s{sO2}, s99
    s_mul_i32 s99, s98, {256*1152}''')
    for g in range(1, 9):
        a(f's_add_u32 s{sO2+g}, s{sO2}, {64*1152*g}\ns_{"add" if g < 5 else "sub"}_u32 s{sO2+g}, s{sO2+g}, s99')
    a(f'''s_mul_i32 s{sPS}, s{sB}, 18
    s_lshl_b32 s98, s98, 2
    s_add_u32 s{sPS}, s{sPS}, s98
    s_lshl_b32 s{sPS}, s{sPS}, 3
    s_add_u32 s{sPS}, s{sPS}, s96
    s_lshl_b32 s{sPS}, s{sPS}, 11
    s_add_u32 s{sPS}, s{sPS}, {PART_OFF}
    s_and_b32 s98, s{sC}, 1
    s_mul_i32 s32, s{sB}, 288
    s_mul_i32 s99, s96, 36
    s_add_u32 s32, s32, s99
    s_lshl_b32 s32, s32, 10
    s_lshl_b32 s99, s98, 14
    s_sub_u32 s33, s32, s99
    s_xor_b32 s34, s{sFLG}, 128''')
    return sops('\n'.join(a.l))
def w2touch(other, first, per, sub=0):
    def f(a):
        a(f"""s_lshr_b32 s3, s2, {3+sub}
        s_lshl_b32 s3, s3, 2
        s_add_u32 s3, s3, s{sWV}
        s_mul_i32 s3, s3, {per*128}
        s_lshr_b32 s96, s{sI}, 3
        s_xor_b32 s96, s96, {other}
        s_mul_i32 s96, s96, {5184*128}
        s_add_u32 s3, s3, s96
        s_lshr_b32 s96, s{sC}, 2
        s_mul_i32 s96, s96, {2*5184*128}
        s_add_u32 s3, s3, s96
        s_add_u32 s3, s3, {first*128}
        v_lshlrev_b32 v{VTT}, 7, v{VLANE}
        s_bfm_b64 exec, {per}, 0""")
        a.vm(f'buffer_load_dword a255, v{VTT}, {S(SW2)}, s3 offen')
        a('s_mov_b64 exec, -1')
    return f
def tabtouch(a):
    a(f"""s_lshr_b32 s96, s2, 3
    s_lshl_b32 s96, s96, 2
    s_add_u32 s96, s96, s{sWV}
    s_min_u32 s96, s96, 125
    s_mul_i32 s96, s96, {22*128}
    s_add_u32 s96, s96, {TABF_SZ}
    s_sub_u32 s96, s96, s{sW2K}
    v_mul_u32_u24 v{VTT}, 112, v{VLANE}
    v_mov_b32 v{VTT+1}, 0
    v_lshl_add_u64 {vr(VTT,2)}, {vr(VTT,2)}, 0, {vr(VTB,2)}
    v_lshl_add_u64 {vr(VTT,2)}, s[96:97], 0, {vr(VTT,2)}
    s_bfm_b64 exec, 22, 0""")
    a.vm(f'global_load_dword a255, {vr(VTT,2)}, off')
    a('s_mov_b64 exec, -1')
def codetouch(a):
    if not Cfg.ct: return
    l = a.label('CT')
    a(f"""s_getpc_b64 s[100:101]
    {l}:
    s_lshr_b32 s3, s2, 3
    s_lshl_b32 s3, s3, 2
    s_add_u32 s3, s3, s{sWV}
    s_lshl_b32 s3, s3, 8
    v_lshlrev_b32 v{VTT}, 7, v{VLANE}
    v_add_u32 v{VTT}, s3, v{VTT}
    v_min_u32 v{VTT}, L_codeend-L_s9-4, v{VTT}
    v_add_u32 v{VTT}, L_s9-{l}, v{VTT}
    v_mov_b32 v{VTT+1}, 0
    v_lshl_add_u64 {vr(VTT,2)}, s[100:101], 0, {vr(VTT,2)}
    s_mov_b64 exec, 3""")
    a.vm(f'global_load_dword a252, {vr(VTT,2)}, off')
    a('s_mov_b64 exec, -1')
def smid_ids(a):
    a(f'''s_bfe_u32 s96, s{sROLE}, 0x30008
    s_cmp_ge_u32 s96, 3
    s_cselect_b32 s98, 1, 0
    s_lshl_b32 s99, s{sI}, 1
    s_add_u32 s99, s99, s98
    s_mul_i32 s98, s98, 3
    s_sub_u32 s96, s96, s98
    s_mul_i32 s96, s96, 3''')
WA = 216
PSR = 20
def wload(k):
    def f(a):
        a(f's_add_u32 s3, s35, {16*18496*(k//2)}')
        a.vm(f'buffer_load_dwordx4 {ar(WA+4*k)}, v3, {S(SWI if k % 2 else SWR)}, s3 offen {NT(8)}', 'wl')
    return f
def wpatch(a):
    a(f'v_mul_u32_u24 v1, 18496, v{VLANE}')
    a.vm(f'buffer_load_ushort a253, v1, {S(SWR)}, s35 offen offset:{576-258}', 'wl')
    a.vm(f'buffer_load_ushort a254, v1, {S(SWI)}, s35 offen offset:{576-258}', 'wl')

def touch_ops():
    o = [V(f"""s_bfe_u32 s98, s{sROLE}, 0x30008
    s_sub_u32 s98, s98, 5
    s_lshl_b32 s98, s98, 6
    s_add_u32 s98, s98, s{sB}
    s_bfe_u32 s99, s{sROLE}, 0x30008
    s_sub_u32 s99, s99, 5
    s_bfe_u32 s96, s{sC}, 0x10001
    s_mul_i32 s96, s96, 3
    s_add_u32 s99, s99, s96
    s_lshl_b32 s99, s99, 2
    s_add_u32 s99, s99, s{sWV}
    s_mul_i32 s99, s99, {Cfg.tn*128}
    s_lshr_b32 s96, s{sI}, 3
    s_mul_i32 s96, s96, {5184*128}
    s_add_u32 s99, s99, s96
    s_lshr_b32 s96, s{sC}, 2
    s_mul_i32 s96, s96, {2*5184*128}
    s_add_u32 s99, s99, s96
    v_lshlrev_b32 v1, 7, v{VLANE}""")]
    for k in range(Cfg.tn//54):
        if k < Cfg.te: o.append(V(f's_add_u32 s99, s99, {54*128}')); continue
        def f(a, k=k):
            a('s_bfm_b64 exec, 54, 0')
            a.vm(f'buffer_load_dword a255, v1, {S(SW2)}, s99 offen')
            a(f's_mov_b64 exec, -1\ns_add_u32 s99, s99, {54*128}')
        o.append(FN(f))
    def g(a):
        a(f"""s_mul_i32 s99, s98, {15*128}
        s_add_u32 s99, s99, {TABF_SZ}
        v_add_u32 v{VTT}, s99, v1
        v_min_u32 v{VTT}, {TABF_SZ+TABG_SZ+TAB64_SZ-4}, v{VTT}
        v_mov_b32 v{VTT+1}, 0
        v_lshl_add_u64 {vr(VTT,2)}, s[100:101], 0, {vr(VTT,2)}
        s_bfm_b64 exec, 15, 0""")
        a.vm(f'global_load_dword a255, {vr(VTT,2)}, off')
        a('s_mov_b64 exec, -1')
    return o + [FN(g)]

def getnonce(a):
    lc = a.label('NC'); ls = a.label('NS'); lk = a.label('NK')
    a.vneed('non')
    a(f'{lc}:\nv_readfirstlane_b32 s{sNON}, v{VFL}\ns_nop 3\ns_cmp_eq_u32 s{sNON}, 0\ns_cbranch_scc1 {ls}\n{lk}:')
    a.ool += [f'{ls}:', f' s_sub_u32 s{sP}, s{sP}, 1', f' s_cbranch_scc1 {ls}_x', f' s_sleep {Cfg.slp}', f' buffer_load_dword v{VFL}, off, {S(SDBG)}, 0 sc1', ' s_waitcnt vmcnt(0)', f' s_branch {lc}',
              f'{ls}_x:', f' s_mov_b32 s{sP}, 0', f' s_branch {lk}']

def xpose_setup(a, vw, vrd, vg, base_imm, rowstride, flip=None):
    a(f"""v_and_b32 v{vw}, 15, v{VLANE}
    v_lshlrev_b32 v{vw}, 7, v{vw}
    v_bfe_u32 v{vrd}, v{VLANE}, 4, 1
    v_lshl_add_u32 v{vw}, v{vrd}, 13, v{vw}
    v_lshrrev_b32 v{vrd}, 5, v{VLANE}
    v_lshlrev_b32 v{vrd}, 2, v{vrd}
    v_and_b32 v{vg}, 7, v{VLANE}
    v_xor_b32 v{vrd}, v{vrd}, v{vg}
    v_lshl_add_u32 v{vw}, v{vrd}, 4, v{vw}
    s_add_u32 s98, s{sW2K}, {base_imm}
    v_add_u32 v{vw}, s98, v{vw}
    v_lshrrev_b32 v{vrd}, 3, v{VLANE}
    v_mul_u32_u24 v{VTT}, {rowstride}, v{vrd}
    v_lshl_add_u32 v{vg}, v{vg}, 4, v{VTT}
    v_lshlrev_b32 v{vrd}, 4, v{vrd}
    v_xor_b32 v{vrd}, v{vrd}, v{VL16}
    v_add_u32 v{vrd}, s98, v{vrd}""")
def xpose_w(src, q, vw, flip=0):
    x = (16*q) ^ flip
    if x == 0: return [LD(f'ds_write_b128 v{vw}, {vr(src)}', 'xw')]
    return [V(f'v_xor_b32 v{VTT}, {x}, v{vw}'), LD(f'ds_write_b128 v{VTT}, {vr(src)}', 'xw')]
def xpose_rs(dst, vrd, vg, sreg, rowstride, tag, u=0):
    o = [LD(f'ds_read_b128 {vr(dst+4*q)}, v{vrd} offset:{8192*(q//2) + 1024*(q%2)}', ('xr', u, q)) for q in range(4)]
    for q in range(4):
        o.append(FN(lambda a, q=q: a.need(('xr', u, q))))
        o.append(VM(f'buffer_store_dwordx4 {vr(dst+4*q)}, v{vg}, {S(SWS)}, s{sreg} offen sc1', tag))
        o.append(V(f's_add_u32 s{sreg}, s{sreg}, {8*rowstride}'))
    return o
OA = 200
XP_LDS = BIAS_LDS + 2048
def dft_fill():
    Ea = ACC[0]; T = TMP; U = Ea + 16; RS = 9*64*128
    su = f"""v_and_b32 v1, 31, v{VLANE}
    v_lshlrev_b32 v1, 6, v1
    v_lshrrev_b32 v3, 5, v{VLANE}
    v_lshlrev_b32 v3, 1, v3
    v_bfe_u32 v{VPO}, v{VLANE}, 1, 2
    v_xor_b32 v3, v3, v{VPO}
    v_lshl_add_u32 v1, v3, 4, v1
    s_add_u32 s98, s{sW2K}, {XP_LDS}
    v_add_u32 v1, s98, v1
    v_bfe_u32 v3, v{VLANE}, 3, 2
    v_lshlrev_b32 v3, 4, v3
    v_xor_b32 v3, v3, v{VL16}
    v_add_u32 v3, s98, v3
    v_lshrrev_b32 v{VPO}, 2, v{VLANE}
    v_mul_u32_u24 v{VPO}, {RS}, v{VPO}
    v_and_b32 v{VTT}, 3, v{VLANE}
    v_lshl_add_u32 v{VPO}, v{VTT}, 4, v{VPO}
    s_bfe_u32 s96, s{sROLE}, 0x30008
    s_lshl_b32 s98, s96, 6
    s_add_u32 s98, s98, s{sB}
    s_lshl_b32 s35, s98, 3
    s_add_u32 s35, s35, {VFL_OFF}
    s_lshl_b32 s98, s98, 7
    s_add_u32 s98, s98, {V_OFF}
    s_sub_u32 s99, 8, s96
    s_lshl_b32 s99, s99, 6
    s_add_u32 s99, s99, s{sB}
    s_lshl_b32 s99, s99, 7
    s_add_u32 s99, s99, {V_OFF}
"""
    o = [V(x) for x in su.split('\n') if x.strip()] + [V(f's_cmp_eq_u32 s96, 4\ns_cselect_b32 s96, {DUM_OFF - V_OFF}, 0\ns_add_u32 s99, s99, s96')]
    su = o; o = [V(f'v_add_u32 v{VPO+1}, {16*RS}, v{VPO}')]
    for i in range(16):
        e = Ea + 2*i
        o += [V(f'v_accvgpr_read_b32 v{T+4}, a{OA+2*i}'), V(f'v_accvgpr_read_b32 v{T+5}, a{OA+2*i+1}'), V(f'v_add_f32 v{T}, v{e}, v{T+4}'), V(f'v_add_f32 v{T+1}, v{e+1}, v{T+5}')]
        if i < 8: o += [V(f'v_sub_f32 v{T+2}, v{e}, v{T+4}'), V(f'v_sub_f32 v{T+3}, v{e+1}, v{T+5}')]
        else:     o += [V(f'v_sub_f32 v{T+2}, v{T+4}, v{e}'), V(f'v_sub_f32 v{T+3}, v{T+5}, v{e+1}')]
        o += [V(f'v_cvt_pk_bf16_f32 v{HO+i}, v{T}, v{T+1}'), V(f'v_cvt_pk_bf16_f32 v{Ea+i}, v{T+2}, v{T+3}')]
    segs = [o]
    u = vr(U, 16)
    for m, X in enumerate((HO, Ea)):
        for p in range(2):
            A1, A2 = (X, X+8) if p == 0 else (X+8, X)
            B2 = TW+8 if p == 0 else TW+16
            mf = [V(f's_nop 1\n{M} {u}, {vr(A1)}, {ar(TW)}, 0'), V(f'{M} {u}, {vr(A1+4)}, {ar(TW+4)}, {u}'), V(f'{M} {u}, {vr(A2)}, {ar(B2)}, {u}'), V(f'{M} {u}, {vr(A2+4)}, {ar(B2+4)}, {u}')]
            pk = []
            for q in range(2):
                for i in range(4):
                    k = 4*q + i
                    pk.append(V(f'v_cvt_pk_bf16_f32 v{T+k}, v{U+2*k}, v{U+2*k+1}' if m == 0 else f'v_cvt_pk_bf16_f32 v{T+k}, v{U+15-2*k}, v{U+14-2*k}'))
                x = 16*q ^ 32*m
                if x: pk += [V(f'v_xor_b32 v{VTT}, {x}, v1'), LD(f'ds_write_b128 v{VTT}, {vr(T+4*q)}')]
                else: pk += [LD(f'ds_write_b128 v1, {vr(T+4*q)}')]
            d = OA + 8*(2*m+p)
            pk += [LD(f'ds_read_b128 {ar(d+4*i)}, v3 offset:{1024*i}', ('xr', m, p)) for i in range(2)]
            st = [FN(lambda a, m=m, p=p: a.need(('xr', m, p)))] + [VM(f'buffer_store_dwordx4 {ar(d+4*i)}, v{VPO+i}, {S(SWS)}, s{98+m} offen offset:{64*p} sc1', 'V') for i in range(2)]
            segs += [mf, pk, st]
    f = [(segs[0], 3, 33)]; st = []
    for k in range(4):
        g = 33 + 8*k
        f += [(segs[1+3*k], g, g+2), (segs[2+3*k], g+5, g+8)]
        x = segs[3+3*k]
        st += [FN(lambda a, x=x: emit(a, x[:2])), x[2]]
    return su, f, st

JA = [8, 40]; JC = [72, 104]
def hload(g):
    return [SVM(f's_add_u32 s3, s{33 if g else 32}, {4096*g}', f'buffer_load_dwordx4 {ar(HF+16*g+4*k)}, v{VL16}, {S(SWS)}, s3 offen offset:{1024*k} sc1 {NT(1)}', ('ph', g)) for k in range(4)]

SZ=[72,88,136,152]; SVF=8; SWP=40; SY0=192; SPA=[72,88,168,24]
def TF(i): return ar(176+4*i) if i < 20 else vr(200+4*(i-20))
def smid_pre():
    su = f"""v_lshrrev_b32 v3, 5, v{VLANE}
    v_bfe_u32 v1, v{VLANE}, 2, 2
    v_lshl_add_u32 v3, v3, 2, v1
    v_lshlrev_b32 v{VA1}, 7, v3
    v_lshlrev_b32 v{VB1}, 6, v3
    v_bfe_u32 v1, v{VLANE}, 4, 1
    v_lshlrev_b32 v1, 5, v1
    v_and_b32 v3, 3, v{VLANE}
    v_lshl_add_u32 v1, v3, 3, v1
    s_min_u32 s98, s{sWV}, 2
    s_lshl_b32 s98, s98, 13
    s_add_u32 s99, s98, {slot(54)}
    v_add3_u32 v{VA1}, v{VA1}, v1, s99
    s_add_u32 s99, s98, {slot(57)}
    v_add3_u32 v{VB1}, v{VB1}, v1, s99
    v_add_u32 v1, s99, v{VL16}
    v_add_u32 v3, {slot(51)}, v{VL16}"""
    w = [FN(lambda a: a.vneed('wl'))] + [(3, LD(f'ds_write_b128 v1, {ar(WA+4*k)} offset:{1024*k}')[1]) for k in range(8)]
    def patch(a):
        a(f"""v_lshrrev_b32 v{VTT}, 4, v{VLANE}
        v_lshlrev_b32 v{VTT}, 11, v{VTT}
        v_and_b32 v{VTT+1}, 15, v{VLANE}
        v_lshl_add_u32 v{VTT}, v{VTT+1}, 6, v{VTT}
        v_add_u32 v{VTT}, {slot(57) + 8192}, v{VTT}""")
        a.lds(f'ds_write_b16 v{VTT}, a253 offset:62'); a.lds(f'ds_write_b16 v{VTT}, a254 offset:1086')
    w.append(FN(only(R_PATCH, patch)))
    for p in range(2):
        for mt in range(2):
            for q in range(4):
                w.append(LD(f'ds_read_b64_tr_b16 {vr(SWP+16*p+8*mt+2*q,2)}, v{VB1} offset:{4096*mt+2048*(q//2)+512*(q%2)+1024*p}', 'sm'))
    r = []
    for ks in range(4):
        for p in range(2):
            for rho in range(2): r.append(LD(f'ds_read_b64_tr_b16 {vr(SVF+16*p+4*ks+2*rho,2)}, v{VA1} offset:{2048*ks+1024*rho+64*p}', 'sm'))
        for i in (ks, 8+ks, 16+ks): r.append(LD(f'ds_read_b128 {TF(i)}, v3 offset:{1024*i}', 'sm'))
    late = [LD(f'ds_read_b128 {TF(i)}, v3 offset:{1024*i}', 'sm2') for ks in range(4) for i in (4+ks, 12+ks, 20+ks)]
    return sops(su), w, r, late
def smid_parts():
    Z=SZ; VF=SVF; WP=SWP; Y=SVF; PA=SPA; T=TMP
    C=lambda t,k: TF(4*t+k); Sn=lambda t,k: TF(8+4*t+k); N=lambda t,k: TF(16+4*t+k)
    def fwd(mt):
        zr=vr(Z[2*mt],16); zi=vr(Z[2*mt+1],16); o=[]
        for ks in range(4):
            o += [f'{M} {zr}, {C(mt,ks)}, {vr(VF+4*ks)}, {"0" if ks==0 else zr}', f'{M} {zi}, {C(mt,ks)}, {vr(VF+16+4*ks)}, {"0" if ks==0 else zi}',
                  f'{M} {zr}, {Sn(mt,ks)}, {vr(VF+16+4*ks)}, {zr}', f'{M} {zi}, {N(mt,ks)}, {vr(VF+4*ks)}, {zi}']
        return o
    def ybase(mt, p): return (SY0 - 8*p) if mt == 0 else (Y + 8*p)
    def cmul(mt):
        o = []
        for d in range(8):
            wr = WP + 8*mt + d; wi = WP + 16 + 8*mt + d; zr = Z[2*mt] + 2*d; zi = Z[2*mt+1] + 2*d
            o += [f'v_lshlrev_b32 v{T}, 16, v{wr}', f'v_and_b32 v{T+1}, 0xffff0000, v{wr}', f'v_lshlrev_b32 v{T+2}, 16, v{wi}', f'v_and_b32 v{T+3}, 0xffff0000, v{wi}']
            for i in range(2): o += [f'v_mul_f32 v{T+4+i}, v{zi+i}, v{T+2+i}', f'v_mul_f32 v{T+6+i}, v{zi+i}, v{T+i}']
            for i in range(2): o += [f'v_fma_f32 v{T+4+i}, v{zr+i}, v{T+i}, -v{T+4+i}', f'v_fma_f32 v{T+6+i}, v{zr+i}, v{T+2+i}, v{T+6+i}']
            o += [f'v_cvt_pk_bf16_f32 v{ybase(mt,0)+d}, v{T+4}, v{T+5}', f'v_cvt_pk_bf16_f32 v{ybase(mt,1)+d}, v{T+6}, v{T+7}']
        return [V(x) for x in o]
    def inv(mt):
        o = []
        for nt in range(2):
            pr=vr(PA[2*nt],16); pi=vr(PA[2*nt+1],16)
            for t in range(2):
                ks = 2*mt + t; yr = vr(ybase(mt,0)+4*t); yi = vr(ybase(mt,1)+4*t)
                o += [f'{M} {pr}, {yr}, {C(nt,ks)}, {"0" if ks==0 else pr}', f'{M} {pi}, {yi}, {C(nt,ks)}, {"0" if ks==0 else pi}',
                      f'{M} {pr}, {yi}, {N(nt,ks)}, {pr}', f'{M} {pi}, {yr}, {Sn(nt,ks)}, {pi}']
        return o
    return fwd, cmul, inv
def part_inplace(acc, lam):
    c = []; st = []
    for q in range(4):
        c += [V(f'v_cvt_pk_bf16_f32 v{acc+8*q+i}, v{acc+8*q+2*i}, v{acc+8*q+2*i+1}') for i in range(4)]
        st.append(SVM(f's_add_u32 s3, s{sPS}, {16384*(2*lam + q//2)}', f'buffer_store_dwordx4 {vr(acc+8*q)}, v{VL16}, {S(SWS)}, s3 offen offset:{1024*(q%2)} sc1', ('p', lam)))
    return c, st

def kernel():
    a = E()
    prologue(a)
    g1 = lambda acc: (lambda p, kk, h: (acc + 16*h, vr(XF + 16*p + 4*kk), False))
    END = 71
    stamp(a, 2)
    a.need('bw')
    a('; ROUND 1')
    brole(a, R_ODD, 'L_odd')
    s_pro = a.snap()
    a.vneed(('d',0),('d',1),('d',2)); a('s_barrier')
    bias_reads(a, ACC[0], 0); first_reads(a, 'tr', 0); emit(a, NLAST)
    run(a, 0, 9, 'tr', g1(ACC[0]), [(late_setup(), 26, 54), (bias_ops(ACC[1], 1), 40, 66), (B2PRE, 56, 70)], pause=(0, Cfg.pz1), events={71: B2FIRE, ('dma0', 0): list(range(Cfg.np, 12))})
    stamp(a, 3)
    run(a, 9, 9, 'tr', g1(ACC[1]), [(gelu_ops(ACC[0], 0, 2, Cfg.sd), Cfg.gs0, END)], events={2: [getnonce]}, pause=(0, Cfg.pz2))
    s_even = a.snap()
    la = a.l; a.l = []
    a('L_odd:'); a.restore(s_pro)
    brole(a, R_DFT, 'L_dft')
    emit(a, NLAST + late_setup() + ([] if Cfg.be else [FN(f) for f in BATCH2]) + touch_ops())
    for q in range(max(9, Cfg.np), 21):
        for f in plan(q): f(a)
    a.vneed(('d',9),('d',10),('d',11)); a('s_barrier')
    first_reads(a, 'tr', 9)
    stamp(a, 3)
    bias_reads(a, ACC[1], 1)
    run(a, 9, 9, 'tr', g1(ACC[1]), [(bias_ops(ACC[0], 2), 40, 66), (xback(HO, HO+1), 8, 30)], events={2: [getnonce]})
    a('s_branch L_s3'); s_nodft = a.snap()
    a('L_dft:'); a.restore(s_pro)
    a(f'v_mov_b32 v{VPO}, v{VL16}\nv_add_u32 v{VPO+1}, 49152, v{VL16}')
    a.vneed(('d',0),('d',1),('d',2)); a('s_barrier')
    first_reads(a, 'dft', 0); emit(a, NLAST)
    run(a, 0, 9, 'dft', lambda p, kk, h: ((ACC[0] + 16*h) if kk % 2 == 0 else -(OA + 16*h), vr(XF + 16*p + 4*kk), p == 0 and kk < 2),
        [(xback(HO, HO+1), 8, 30), (late_setup(), 30, 47), (twiddle_ops(TW, TMP, 'fwd', sB), 2, 60), (dft_fill()[0], 48, 66), (bias_ops(ACC[1], 1), 56, 70)] + ([] if Cfg.be else [(B2PRE, 66, 71)]), pause=(0, Cfg.pz1), role='D', events={71: [] if Cfg.be else B2FIRE, ('dma0', 0): list(range(Cfg.np, 12))})
    stamp(a, 3)
    _, df, vst = dft_fill(); vlate = vst[3:]
    run(a, 9, 9, 'tr', g1(ACC[1]), df + [(vst[:3], 42, 70), (bias_ops(ACC[0], 2), 65, 70)], events={2: [getnonce]}, pause=(0, 0 if Cfg.be else Cfg.pz2))
    a('L_s3:'); a.merge(s_nodft, a.snap()); s_odd = a.snap()
    lodd = a.l; a.l = la; a.restore(s_even)
    stamp(a, 4)
    pi = spoll_i; pc = spoll_c
    h0 = only_ops(R_ODD, hload(0), 1)
    FG, PG, CG = Cfg.fg, Cfg.pg, Cfg.cg
    l2a = [w2touch(1, 0, 21)] if Cfg.l2 else []; l2b = [w2touch(1, 21*128, 20)] if Cfg.l2 else []; l2c = [tabtouch] if Cfg.l2 else []
    run(a, 18, 9, 'tr', g1(ACC[0]), [(gelu_ops(ACC[1], 1, 3), Cfg.gs0, END), ([FN(only(R_UNIT, wload(k))) for k in range(4)], 6, 64)] + ([(clear_ops(sHS, [16384, 18432], 'clr', -248), 2, 68)] if Cfg.ce else []),
        events={FG: [lambda a: setflag(a, 1, ('h',0))], 40: l2a, 66: l2b})
    g2 = lambda acc: (lambda p, kk, h: (acc + 16*h, ar(HF + 16*GORD[p] + 4*kk), p == 0 and kk == 0))
    tabg = f"""s_and_b32 s98, s{sC}, 3
    s_min_u32 s98, s98, 2
    s_mul_i32 s96, s98, 110592
    s_add_u32 s96, s96, {TABF_SZ}
    v_lshl_add_u64 {vr(VTB,2)}, s[96:97], 0, {vr(VTB,2)}"""
    sent8 = lambda a: (stamp(a, 7), sent_check(a, ('ph',8), [f'a{HF+128+4*k+3}' for k in range(4)], TMP, lines_of(hload(8)), ([f's_add_u32 s3, s33, {4096*8}'], 3)))
    sf = lambda st, *tags: (lambda a: (setflag if st < 5 else setflag2)(a, st, *tags))
    sf5 = lambda a: setflag(a, 5, ('h',4))
    clo = clear_ops(33, [32768, 34816], 'clr', -248)
    clp = clear_ops(sPS, [16384*6, 16384*7], 'clp')
    def setup5():
        a = E()
        smid_ids(a)
        a(f"""s_mul_i32 s{sSV}, s99, 9
        s_add_u32 s{sSV}, s{sSV}, s96
        s_lshl_b32 s{sSV}, s{sSV}, 13
        s_add_u32 s{sSV}, s{sSV}, s{sW2K}
        s_add_u32 s{sSV}, s{sSV}, {V_OFF}
        s_add_u32 s98, s96, s{sWV}
        s_lshl_b32 s98, s98, 5
        s_add_u32 s98, s98, s99
        s_lshl_b32 s47, s98, 3
        s_add_u32 s47, s47, {PFL_OFF}
        s_lshl_b32 s48, s98, 7
        s_add_u32 s48, s48, {P_OFF}
        s_add_u32 s49, s48, {32*9*32*128}
        v_and_b32 v1, 15, v{VLANE}
        s_lshl_b32 s98, s{sWV}, 4
        v_add_u32 v1, s98, v1
        v_lshrrev_b32 v{VA1}, 4, v{VLANE}
        v_min_u32 v{VA1}, 2, v{VA1}
        v_add_u32 v{VA1}, s96, v{VA1}
        v_sub_u32 v{VB1}, 8, v{VA1}
        v_min_u32 v{VA1}, v{VA1}, v{VB1}
        v_lshl_add_u32 v1, v{VA1}, 6, v1
        v_lshlrev_b32 v1, 3, v1
        v_add_u32 v1, {VFL_OFF}, v1""")
        return sops('\n'.join(a.l).replace('s96', 's50').replace('s98', 's51').replace('s99', 's52'))
    run(a, 27, 9, 'tr', g1(ACC[1]), [(gelu_ops(ACC[0], 2, 4), Cfg.gs0, END), ([FN(only(R_UNIT, wload(k))) for k in range(4, 8)], 6, 64), (setup5(), 48, 70)],
        events={4: [only(R_PATCH, wpatch)], FG: [sf(2, 'clr', ('h',1))], 30: l2c}, role='E')
    stamp(a, 5)
    ssu, sw, sr, slate = smid_pre()
    run(a, 36, 9, 'tr', g1(ACC[0]), [(gelu_ops(ACC[1], 3), Cfg.gs0, END), (hload(5), Cfg.e2+1, 71), (ssu, 52, 70)], role='E',
        events={26: [lambda a: a.vm(poll_ins(VA1, 1, '0'), 'vp')], Cfg.e2-22: [pi], Cfg.e2: [pc(2)], 47: [only(R_SMID, lambda a: poll_check(a, 'vp', VA1, 1, '0', 1))], FG: [sf(3, ('h',2))]})
    stamp(a, 6)
    a('s_mov_b32 s11, s47')
    pre = lambda g: [lambda a: a.vneed(('ph', g))]
    ge = lambda o: (lambda p, kk, h: (JC[1] + 16*h, ar(HF + 16*GE[p+o] + 4*kk), p+o == 0 and kk == 0))
    dm6 = [FN(f) for q in range(63, 72) for f in plan(q, 'E')]
    h6 = [FN(pc(3))] + hload(6); h7 = [FN(pc(4))] + hload(7)
    def s6a(unit):
        run(a, 45, 6, 'tr', ge(0), ([(gelu_ops(ACC[0], 4), 3, Cfg.ge), (sw, Cfg.ge-14, Cfg.ge+2), (sr, Cfg.ge-2, 48)] if unit else [(gelu_ops(ACC[0], 4), 3, 44)]), nxt=None, role='E',
            events={Cfg.f4: [sf(4, ('h',3))], 30: [pi], ('pre',32): pre(5), ('bar',48): [('d', q) for q in range(51, 57)]})
    b2 = FN(lambda a: (a.vneed(('d',60),('d',61),('d',62)), a('s_barrier')))
    brole(a, R_UNIT, 'L_unit'); s1 = a.snap()
    s6a(False)
    a('s_barrier')
    cle = []
    def allw(qs, tw=[]):
        def f(a):
            for q in qs:
                for g in plan(q, 'E'): g(a)
            if not Cfg.w3d and not tw: return
            d = []
            for q in (qs if Cfg.w3d else []):
                for w in range(3):
                    d.append(SVM(f's_mov_b32 m0, {slot(q) + 2048*w}\ns_add_u32 s{sT}, s{sO2+EORD[q-60][0]}, {128*EORD[q-60][1]}', f'buffer_load_dwordx4 v{8+2*w}, {S(SW2)}, s{sT} offen lds'))
                    d.append(VM(f'buffer_load_dwordx4 v{9+2*w}, {S(SW2)}, s{sT} offen offset:1024 lds'))
            only(R_SMID, lambda a: emit(a, mix(tw, d) if tw else d))(a)
        return FN(f)
    twq = lambda w: coop_tw(w, slot(59)) if Cfg.tw3 else []
    for w in range(3): a(f'v_subrev_u32 v{8+2*w}, {(3-w)*16*1152}, v{VA2}\nv_subrev_u32 v{9+2*w}, {(3-w)*16*1152}, v{VB2}')
    emit(a, fsetup()[:3] + [allw([63, 64])] + h6 + [V('s_barrier'), allw([65, 66, 67, 68], twq('0') + twq('1')), allw([69, 70, 71], twq('2'))] + twq(None) + [FN(lambda a: a.drain()), FN(pi), V(tabg), FN(lambda a: a.vdrain()), b2])
    if Cfg.w3d: dm6 = [V('s_nop 0')]*18
    first_reads(a, 'tr', 60)
    a('s_branch L_s7e'); s_nou = a.snap()
    a('L_unit:'); a.restore(s1)
    s6a(True)
    fwd, cmul, inv = smid_parts()
    stamp(a, 'm0')
    a.need('sm'); a('s_barrier')
    dmx = lambda i, j: [] if Cfg.w3d else dm6[i:j]
    interleave(a, fwd(0), mix(slate, dmx(0, 6) + h6))
    stamp(a, 'm1')
    a.need('sm2'); a('s_barrier')
    t = E(); xpose_setup(t, 1, 3, VA1, slot(57), 9*32*128); t(tabg)
    interleave(a, fwd(1)[:3], dmx(6, 10) + [V(x) for x in t.l[:11]])
    interleave(a, fwd(1)[3:], mix(cmul(0), dmx(10, 14)))
    a('s_nop 1')
    stamp(a, 'm2')
    interleave(a, inv(0)[:3], [V(x) for x in t.l[11:]])
    interleave(a, inv(0)[3:], cmul(1)[:30] + [FN(pi)] + cmul(1)[30:])
    stamp(a, 'm3')
    def pout(nt):
        o = []
        for p in range(2):
            for par in range(2):
                for i in range(4): o.append(V(f'v_cvt_pk_bf16_f32 v{SWP+16*nt+8*p+4*par+i}, v{SPA[2*nt+p]+4*i+par}, v{SPA[2*nt+p]+4*i+2+par}'))
                o += xpose_w(SWP+16*nt+8*p+4*par, 2*p+par, 1)
        x = xpose_rs(SWP+16*nt, 3, VA1, 48+nt, 9*32*128, 'P', nt)
        return o + x[:4], x[4:]
    a('s_nop 1')
    h8 = hload(8)
    interleave(a, inv(1)[:10], h7 + dmx(14, 18) + [b2])
    first_reads(a, 'tr', 60)
    interleave(a, inv(1)[10:], pout(0)[0])
    stamp(a, 'm5')
    eo = lambda o: (lambda p, kk, h: (JC[1-EORD[p+o][1]] + 16*h, ar(HF + 16*EORD[p+o][0] + 4*kk), p+o == 1 and kk == 0))
    grp = lambda x, n: [FN(lambda a, y=x[i:i+n]: emit(a, y)) for i in range(0, len(x), n)]
    pst = grp(pout(0)[1] + pout(1)[1], 3)
    assert Cfg.pe <= 24 and Cfg.c5 >= 24
    def s7(unit):
        run(a, 60, 3, 'tr', eo(0), [(pout(1)[0], 2, 10), (pst[:4], 0, max(11, Cfg.pe//2)), (pst[4:], max(11, Cfg.pe//2), Cfg.pe)]*unit + ([(tw_reads(slot(59)), 8, 16)] if Cfg.tw3 else []), role='E',
            events={('pre',0): pre(6), ('pre',16): pre(7), Cfg.c5-Cfg.pd: [pi], ('pre',17): [lambda a: stamp(a, 7)]})
    s7(True)
    s_u = a.snap()
    a('s_branch L_s7u')
    a('L_s7e:'); a.restore(s_nou); emit(a, h7)
    s7(False)
    a('L_s7u:'); a.merge(s_u, a.snap())
    stamp(a, 8)
    run(a, 63, 9, 'tr', eo(3), [(h8, Cfg.c5-23, Cfg.c5-15), (part_ops(JC[1], 0), 8*Cfg.e8-13, 8*Cfg.e8+12), (fsetup0() + ([] if Cfg.f9 else fsetup()), 14 if Cfg.tw3 else 36, 68), (xback(VB1, 1), 1, 14), ([V('s_nop 0')] if Cfg.tw3 else fsetup()[:3] + coop_tw(), 10, 36),
        ([V(f's_add_u32 s{sL9}, s{sPS}, {16384*2}')], 68, 70)], role='E',
        events={9: [codetouch], Cfg.c5-24: [pc(5)], ('pre',8*Cfg.e8-24): pre(8), Cfg.pe+6: [only(R_UNIT, lambda a: setflag(a, 1, 'P', off=11))]})
    a('s_branch L_s9'); s_e = a.snap()
    a('; ROUND 2')
    a.l += lodd; a.restore(s_odd)
    stamp(a, 4)
    run(a, 18, 9, 'tr', g1(ACC[0]), [(gelu_ops(ACC[1], 1, 3), Cfg.gs0, END), (only_ops(R_DFT, vlate, 1), 2, 40)] + ([] if Cfg.ce else [(clo[:6], 44, 68)]),
        events={PG: [pi], 40: l2a, 66: l2b})
    run(a, 27, 9, 'tr', g1(ACC[1]), [(gelu_ops(ACC[0], 2, 4), Cfg.gs0, END), (hload(0), CG+2, 64)] + ([] if Cfg.ce else [(clo[6:], 1, 14)]),
        events={2: [only(R_DFT, lambda a: setflag(a, 1, 'V', off=35))], CG: [pc(1)], (FG+1 if Cfg.ce else Cfg.f2o): [sf(2, 'clr', ('h',1))], 30: l2c, PG: [pi]}, role='O')
    stamp(a, 5)
    run(a, 36, 9, 'tr', g1(ACC[0]), [(gelu_ops(ACC[1], 3), Cfg.gs0, END), (hload(5), CG+2, 64)], role='O',
        events={CG: [pc(2)], FG: [sf(3, ('h',2))], PG: [pi]})
    stamp(a, 6)
    jj = lambda p, kk, h: (JA[p % 2] + 16*h, ar(HF + 16*GORD[p//2] + 4*kk), p < 2 and kk == 0)
    run(a, 45, 18, 'tr', jj, [(gelu_ops(ACC[0], 4), 3, 47), (hload(6), CG+2, 46), (hload(7), 49+Cfg.c4, 66+Cfg.c4), (hload(8), 48+Cfg.h8, 62+Cfg.h8), (sops(tabg), 140, 143), (fsetup()[:3] + coop_tw(), 50, 96), (fsetup0() + ([] if Cfg.f9 else fsetup()), 97, 140)], role='O',
        events={CG: [pc(3)], Cfg.f4: [sf(4, ('h',3))], 46: [pi], 48+Cfg.c4: [pc(4)], ('pre',64): pre(0), ('pre',80): pre(5), ('pre',96): pre(6), ('pre',112): pre(7), Cfg.f5h: [sf5], 126: [sent8], 132: [codetouch]})
    stamp(a, 8)
    run(a, 63, 9, 'tr', g2(JC[0]), [(part_ops(JA[0], 4) + part_ops(JA[1], 6), 3, Cfg.p8), ([V(f's_add_u32 s{sL9}, s{sPS}, {16384*10}')], 60, 62)] + ([(tw_reads(), 52, 70)] if Cfg.tw3 else []))
    a(f'; ROUND {0 if Cfg.w3 == 2 else 3}\nL_s9:'); a.merge(s_e, a.snap())
    if Cfg.warm and Cfg.w3 == 1: a('; WARM 3')
    stamp(a, 9)
    g2o = lambda acc, o: (lambda p, kk, h: (acc + 16*h, ar(HF + 16*GORD[p+o] + 4*kk), p+o == 0 and kk == 0))
    def two(mask, f):
        l1 = a.label('TW'); l2 = a.label('TX')
        a(f's_and_b32 s98, s{sCLS}, {mask}\ns_cbranch_scc1 {l1}'); s0 = a.snap()
        f(False); a(f's_branch {l2}\n{l1}:'); s1 = a.snap(); a.restore(s0)
        f(True); a(f'{l2}:'); a.merge(s1, a.snap())
    pl1 = lambda hf: [FN(lambda a, k=k: emit(a, pl_ops(hf, k, k+1, 32 if Cfg.bf else SWS))) for k in range(16)]
    if Cfg.bf: two = lambda mask, f: f(True)
    def ppoll_i(a):
        a(f"""s_min_u32 s98, s{sWV}, 2
        s_mul_i32 s98, s98, 768
        s_add_u32 s98, s98, {PFL_OFF}
        v_lshlrev_b32 v204, 3, v{VLANE}
        v_add_u32 v204, s98, v204
        v_add_u32 v205, 256, v204""")
        a.vm(poll_ins(200, 204, '0'), 'pp1'); a.vm(poll_ins(202, 205, '0'), 'pp2')
    def ppoll_c(a):
        if Cfg.blk & 4:
            only(R_FINW, lambda a: (poll_check(a, 'pp1', 200, 204, '0', 1), poll_check(a, 'pp2', 202, 205, '0', 1)))(a); a('s_mov_b32 s11, 0'); return
        a.vneed('pp2'); poll_test(a, 200, 1); a('s_cselect_b32 s11, 1, 0'); poll_test(a, 202, 1); a(f's_cselect_b32 s11, 1, s11\ns_bitcmp1_b32 s{sROLE}, {R_FINW}\ns_cselect_b32 s11, s11, 1')
    def EV(*pairs):
        d = {}
        for k, v in pairs: d.setdefault(k, []).extend(v if isinstance(v, list) else [v])
        return d
    sched = dict(zip((78, 81, 84, 87), Cfg.sch))
    def tryev(qn, n):
        c = sched.get(qn, '-')
        if c not in '01': return [], []
        hf = int(c); t = E(); etest(t, hf, 20)
        t(f's_cselect_b32 s20, 0, {1 << hf}\ns_and_b32 s20, s20, s{sCLS}\ns_mul_i32 s20, s20, {1 + 512 + 2048}\ns_bitset0_b32 s{sCLS}, {9+hf}\ns_xor_b32 s{sCLS}, s{sCLS}, s20')
        if Cfg.bf: t(f's_mov_b64 s[32:33], s[{SWS}:{SWS+1}]\ns_mov_b32 s35, 0x20000\ns_cmp_lg_u32 s20, 0\ns_cselect_b32 s34, s{SWS+2}, 0')
        return ([(n - Cfg.ta, eld(hf, 20))] if Cfg.ta <= n else []) + [(n - 8, lambda a: a.drain())], [(sops('\n'.join(t.l)), n-7, n)]
    bar = lambda a: a('s_barrier')
    p2 = part_ops(JC[1], 2)
    seg = {78: (JC[1], 6, [], [(Cfg.f6-48, sf(6, ('p',9))), (23, ppoll_c)]),
           81: (JC[0], 0, [(p2[:11], 3, 22)] + ([] if Cfg.tw3 else [(tw_reads(), 4, 20)]), []),
           84: (JC[0], 3, [(p2[11:], 0, 12), (fin_addr(), 8, 23)], []),
           87: (JC[0], 6, [([FN(lambda a: a.vneed(('d', 98)))] + prd(0) + prd(1) + prd(2), 12, 24)], [(Cfg.f7-48, sf(7, ('p',2))), (('dma', 88), [102, 103]), (('dma', 89), [104]), (3, bar), (22, bar)])}
    e, f = tryev(78, 48)
    if Cfg.ta > 24 and sched[81] in '01': e = e + [(72 - Cfg.ta, eld(int(sched[81]), 20))]
    run(a, 72, 6, 'tr', g2o(JC[1], 0), [(part_ops(JC[0], 9), 3, Cfg.p9), (xb_ops()[:12], 30, 44)] + f + ([(fsetup(), 0, 25)] if Cfg.f9 else []),
        events=EV((Cfg.f5, sf(5, ('p',0), ('p',4), ('p',6))), (45, ppoll_i), *e))
    def slab(q, ld):
        acc, o, fl, ev = seg[q]; e, f = tryev(q+3, 24)
        if Cfg.ta > 24 and sched.get(q+6, '-') in '01': e = e + [(48 - Cfg.ta, eld(int(sched[q+6]), 20))]
        run(a, q, 3, 'tr', g2o(acc, o), fl + f + ([(ld, 0, 22 if q < 87 else 16)] if ld else []), nxt=None if q == 87 else 'tr', events=EV(*ev, *e))
    for q in (78, 81, 84, 87):
        c = sched[q]
        if c == '-': slab(q, None)
        elif c == 'x': continue
        else:
            L = pl1(int(c))
            if sched.get(q+3) == 'x': two(512 << int(c), lambda ld: (slab(q, L[:9] if ld else None), slab(q+3, L[9:] if ld else None)))
            else: two(512 << int(c), lambda ld: slab(q, L if ld else None))
    stamp(a, 10)
    final(a)
    a('L_fin:')
    stamp_flush(a, 11)
    a('L_end:\ns_endpgm\nL_hot:\ns_endpgm')
    a.l += HOT
    if not Cfg.wsl: a('; ROUND -1')
    a.l += SLOW
    a('; ROUND -1')
    return a.text()

PTH = [136, 8]
VFA = 4; VO = 5
SEL = 200; AB2 = 208; AX = 232
sCLS = 53
sND, sFO, sPB, sXO, sSG = 46, 48, 50, 4, 36
def classes():
    LAML = [0,0,4,4,2,2,3,3,2]; LAMH = [2,3,3,0,0,4,4,0,0]; NEED = [4,4,6,7,5]; RANK = [0,0,2,3,1]
    swap = 0; nd = [0, 0]; cl = []
    for c in range(9):
        rl, rh = RANK[LAML[c]], RANK[LAMH[c]]
        sw = (rh < rl) if max(rl, rh) < 2 else (rh > rl)
        la, lb = (LAMH[c], LAML[c]) if sw else (LAML[c], LAMH[c])
        swap |= sw << c; nd[0] |= NEED[la] << 3*c; nd[1] |= NEED[lb] << 3*c
        cl.append(({0:0, 2:2, 3:4}[RANK[la]], {0:1, 1:1, 2:3, 3:5}[RANK[lb]]))
    ca = sum(x[0] << 3*i for i, x in enumerate(cl)); cb = sum(x[1] << 3*i for i, x in enumerate(cl))
    return swap, nd, ca, cb
def xearly_addr(a):
    swap = classes()[0]; X = ACC[0]
    a(f'''s_lshl_b32 s96, s{sI}, 2
    s_lshr_b32 s98, s{sC}, 2
    s_add_u32 s96, s96, s98
    s_mul_i32 s96, s96, 1152
    s_and_b32 s98, s{sC}, 3
    s_min_u32 s98, s98, 2
    s_mul_i32 s99, s{sWV}, 3
    s_add_u32 s98, s98, s99
    s_min_u32 s98, s98, 8
    s_lshl_b32 s99, s98, 6
    s_add_u32 s96, s96, s99
    v_lshrrev_b32 v{X}, 2, v{VLANE}
    v_mul_u32_u24 v{X}, 4608, v{X}
    v_lshrrev_b32 v{X+1}, 4, v{VLANE}
    v_xor_b32 v{X+1}, v{X+1}, v{VLANE}
    v_and_b32 v{X+1}, 3, v{X+1}
    v_add_lshl_u32 v{X}, v{X}, v{X+1}, 4
    s_bitcmp1_b32 {swap:#x}, s98
    s_cselect_b32 s98, 576, 0
    s_cselect_b32 s99, 0, 576
    s_add_u32 s98, s98, s96
    s_add_u32 s99, s99, s96
    v_add_u32 v{X+2}, s99, v{X}
    v_add_u32 v{X}, s98, v{X}
    v_add_u32 v{X+1}, {16*73728}, v{X}
    v_add_u32 v{X+3}, {16*73728}, v{X+2}''')
def xearly(a):
    a(f's_lshl_b32 s98, s{sWV}, 12')
    for k in range(4):
        a(f's_add_u32 m0, s98, {BIAS_LDS + 2048 + 1024*k}\ns_nop 0')
        a.vm(f'buffer_load_dwordx4 v{ACC[0]+k}, {S(SX)}, 0 offen lds', 'x2')
def xback(v, t):
    o = sops(f"""s_min_u32 s3, s{sWV}, 2
    s_lshl_b32 s3, s3, 12
    s_add_u32 s3, s3, {BIAS_LDS+2048}
    v_and_b32 v{v}, 31, v{VLANE}""".replace('\n', '\n'))
    o = [V(f's_min_u32 s3, s{sWV}, 2\ns_lshl_b32 s3, s3, 12\ns_add_u32 s3, s3, {BIAS_LDS+2048}\nv_and_b32 v{v}, 31, v{VLANE}\nv_lshl_add_u32 v{v}, v{v}, 6, s3', 5),
         V(f'v_bfe_u32 v{t}, v{VLANE}, 2, 2'), V(f'v_lshl_add_u32 v{v}, v{t}, 4, v{v}'), V(f'v_lshrrev_b32 v{t}, 5, v{VLANE}'), V(f'v_lshl_add_u32 v{v}, v{t}, 3, v{v}'), FN(lambda a: a.vneed('x2'), 0)]
    for q in range(4):
        if q: o.append(V(f'v_xor_b32 v{t}, {16*q}, v{v}'))
        o += [LD(f'ds_read_b64 {ar(AX+8*hf+2*q,2)}, v{t if q else v} offset:{2048*hf}') for hf in range(2)]
    return o
def fsetup0():
    return sops(f"""s_lshl_b32 s{sFLG}, s{sB}, 1
    s_and_b32 s39, s{sC}, 1
    s_add_u32 s{sFLG}, s{sFLG}, s39
    s_mul_i32 s{sFLG}, s{sFLG}, {128*Cfg.fw}
    s_lshr_b32 s39, s{sC}, 1
    s_mul_i32 s39, s39, {4 if Cfg.fw == 1 else 128}
    s_add_u32 s{sFLG}, s{sFLG}, s39
    s_add_u32 s{sFLG}, s{sFLG}, {FL2_OFF}""")
def fsetup():
    a = E(); swap, nd, ca, cb = classes()
    a(f"""s_lshl_b32 s52, s{sI}, 2
    s_lshr_b32 s38, s{sC}, 2
    s_add_u32 s52, s52, s38             ; b'
    s_and_b32 s65, s{sC}, 3
    s_min_u32 s65, s65, 2
    s_mul_i32 s38, s{sWV}, 3
    s_add_u32 s65, s65, s38
    s_min_u32 s65, s65, 8                 ; tile c
    s_mul_i32 s39, s65, 3
    s_lshr_b32 s{sND}, {nd[0]:#x}, s39
    s_and_b32 s{sND}, s{sND}, 7
    s_lshr_b32 s{sND+1}, {nd[1]:#x}, s39
    s_and_b32 s{sND+1}, s{sND+1}, 7
    s_lshr_b32 s38, {ca:#x}, s39
    s_and_b32 s38, s38, 7
    s_lshl_b32 s{sCLS}, 1, s38
    s_lshr_b32 s38, {cb:#x}, s39
    s_and_b32 s38, s38, 7
    s_bitset1_b32 s{sCLS}, s38
    s_bitcmp1_b32 s{sROLE}, {R_FINW}
    s_cselect_b32 s{sCLS}, s{sCLS}, 0
    s_mul_i32 s39, s52, {256*Cfg.fw}
    s_add_u32 s39, s39, {FL2_OFF + 128*Cfg.fw}
    s_cmp_eq_u32 s65, 8
    s_cselect_b32 s38, 0, {128*Cfg.fw}
    s_sub_u32 s38, s39, s38
    s_mul_i32 s{sPB}, s52, 18
    s_add_u32 s{sPB}, s{sPB}, s65
    s_lshl_b32 s{sPB}, s{sPB}, 14
    s_add_u32 s{sPB}, s{sPB}, {PART_OFF}
    s_lshl_b32 s{sXO}, s65, 6
    s_bitcmp1_b32 {swap:#x}, s65
    s_cselect_b32 s{sFO}, s39, s38
    s_cselect_b32 s{sFO+1}, s38, s39
    s_cselect_b32 s{sSG}, -1.0, 1.0
    s_cselect_b32 s{sSG+1}, 1.0, -1.0
    s_cselect_b32 s38, {9*16384}, 0
    s_cselect_b32 s39, 576, 0
    s_add_u32 s{sPB+1}, s{sPB}, {9*16384}
    s_sub_u32 s{sPB+1}, s{sPB+1}, s38
    s_add_u32 s{sPB}, s{sPB}, s38
    s_add_u32 s{sXO+1}, s{sXO}, 576
    s_sub_u32 s{sXO+1}, s{sXO+1}, s39
    s_add_u32 s{sXO}, s{sXO}, s39
    s_add_u32 s{sXO+2}, s{sXO}, {16*73728}
    s_add_u32 s{sXO+3}, s{sXO+1}, {16*73728}
    s_sub_u32 s38, s{sND}, 4
    s_mul_i32 s38, s38, {16384*Cfg.fw if Cfg.fs else 0}
    s_add_u32 s{sFO}, s{sFO}, s38
    s_sub_u32 s38, s{sND+1}, 4
    s_mul_i32 s38, s38, {16384*Cfg.fw if Cfg.fs else 0}
    s_add_u32 s{sFO+1}, s{sFO+1}, s38
    s_add_u32 s{sND}, s{sND}, s{sNON}
    s_add_u32 s{sND+1}, s{sND+1}, s{sNON}
    v_and_b32 v{VFA}, 7, v{VLANE}
    v_lshlrev_b32 v{VFA}, {2 if Cfg.fw == 1 else 7}, v{VFA}
    v_lshrrev_b32 v{VO}, 2, v{VLANE}
    s_mov_b32 s38, 73728
    v_mul_lo_u32 v{VO}, v{VO}, s38
    v_and_b32 v206, 3, v{VLANE}
    v_lshl_add_u32 v{VO}, v206, 4, v{VO}
    s_mul_i32 s38, s52, 1152
    v_add_u32 v{VO}, s38, v{VO}""")
    a(f's_mul_i32 s{sFP}, s52, 36864\ns_mul_i32 s38, s{sWV}, 12288\ns_add_u32 s{sFP}, s{sFP}, s38\ns_add_u32 s{sFP}, s{sFP}, {P_OFF}')
    return sops('\n'.join(a.l))
def cls_block(a, mask, body, inv=False):
    l = a.label('CB'); a(f's_and_b32 s98, s{sCLS}, {mask}\ns_cbranch_scc{1 if inv else 0} {l}'); s0 = a.snap()
    body(a); a(f'{l}:'); a.merge(s0, a.snap())
SE = [56, 8]
def eld(hf, w):
    def f(a):
        if Cfg.fw == 1: a(f's_buffer_load_dwordx8 s[{w}:{w+7}], {S(SWS)}, s{sFO+hf} glc')
        else:
            for i in range(8): a(f's_buffer_load_dword s{w+i}, {S(SWS)}, s{sFO+hf} offset:{128*i} glc')
        a.smem = True
    return f
def etest(a, hf, w):
    for i in range(8): a(f's_sub_u32 s{w+i}, s{w+i}, s{sND+hf}')
    for i in (0, 2, 4, 6): a(f's_max_u32 s{w+i}, s{w+i}, s{w+i+1}')
    a(f's_max_u32 s{w}, s{w}, s{w+2}\ns_max_u32 s{w+4}, s{w+4}, s{w+6}\ns_max_u32 s{w}, s{w}, s{w+4}\ns_cmp_gt_u32 s{w}, 8')
def etry_c(hf, w):
    def f(a):
        a.drain()
        if Cfg.blk & (1 << hf):
            cls_block(a, 1 << hf, lambda a: eblock(a, hf, w, Cfg.slp)); return
        etest(a, hf, w)
        a(f"""s_cselect_b32 s98, {1 << hf}, 0
        s_and_b32 s98, s98, s{sCLS}
        s_mul_i32 s98, s98, 5
        s_xor_b32 s{sCLS}, s{sCLS}, s98""")
    return f
def eblock(a, hf, w, slp=None):
    lc = a.label('EC'); lk = a.label('EK')
    etest(a, hf, w)
    a(f's_cbranch_scc1 {lc}\n{lk}:')
    a.ool += [f'{lc}:', f' buffer_load_dword v{VPO}, v{VFA}, {S(SWS)}, s{sFO+hf} offen sc1', ' s_waitcnt vmcnt(0)', f' v_subrev_u32 v{VPO}, s{sND+hf}, v{VPO}', f' v_cmp_lt_u32 vcc, 8, v{VPO}', ' s_nop 1', ' s_cmp_lg_u64 vcc, 0',
              f' s_cbranch_scc0 {lk}', f' s_sub_u32 s{sP}, s{sP}, 1', f' s_cbranch_scc1 {lc}_x', f' s_sleep {slp or Cfg.slp2}', f' s_branch {lc}', f'{lc}_x:', f' s_mov_b32 s{sP}, 0', f' s_branch {lk}']
def pl_ops(hf, i0, i1, srd_=SWS):
    o = []
    for i in range(i0, i1):
        if i % 4 == 0 or i == i0: o.append(V(f's_add_u32 s3, s{sPB+hf}, {4096*(i//4)}'))
        o.append(VM(f'buffer_load_dwordx4 {vr(PTH[hf]+4*i)}, v{VL16}, {S(srd_)}, s3 offen offset:{1024*(i%4)} sc1 {NT(2)}', ('pt', hf)))
    return o
def loads_if(hf, m): return [FN(lambda a, k=k: cls_block(a, m, lambda a: emit(a, pl_ops(hf, 2*k, 2*k+2)))) for k in range(8)]
def xb_ops():
    o = [V(f'v_lshrrev_b32 v{VBI}, 5, v{VLANE}'), V(f'v_lshlrev_b32 v{VBI}, 3, v{VBI}')]
    for hf in range(2):
        o.append(V(f'v_add_u32 v1, s{sXO+hf}, v{VBI}\nv_add_u32 v1, {B2_LDS}, v1'))
        for q in range(4): o.append(LD(f'ds_read_b64 {ar(AB2+8*hf+2*q,2)}, v1 offset:{16*q}'))
    for hf in range(2):
        for i in range(2): o.append(VM(f'buffer_load_dwordx4 {ar(AX+8*hf+4*i)}, v{VO}, {S(SX)}, s{sXO+hf+2*i} offen', 'x2'))
    return o
TWL = XP_LDS
def coop_tw(wv=None, dst=None):
    t = TMP; sc = 2.0/(2048*576)
    o = f"""v_and_b32 v{t}, 31, v{VLANE}
    v_lshrrev_b32 v{t+1}, 5, v{VLANE}
    v_lshlrev_b32 v207, 2, v{t+1}
    v_sub_u32 v207, v{t}, v207
    v_lshlrev_b32 v{t}, 6, v{t}
    v_add_u32 v{t}, s52, v{t}
    s_lshr_b32 s38, {'s%d' % sWV if wv is None else wv}, 1
    s_and_b32 s39, {'s%d' % sWV if wv is None else wv}, 1
    s_lshl_b32 s8, s38, 4
    s_lshl_b32 s9, s39, 2
    s_add_u32 s8, s8, s9
    v_lshl_add_u32 v{t+1}, v{t+1}, 3, s8
    v_mul_u32_u24 v{t+1}, v{t+1}, v{t}
    s_add_u32 s8, s8, s9
    v_subrev_u32 v207, s8, v207
    s_lshl_b32 s38, s38, 10
    s_lshl_b32 s39, s39, 3
    s_add_u32 s38, s38, s39
    s_add_u32 s38, s38, {TWL if dst is None else dst}
    v_add_u32 v206, s38, v{VL16}
"""
    R = [208+i for i in range(8)]
    L = []
    for i in range(4): L.append(f'v_mad_u32_u24 v{R[i]}, v{t}, {i}, v{t+1}')
    for i in range(4): L.append(f'v_and_b32 v{R[i]}, 0x7ff, v{R[i]}')
    for i in range(4): L.append(f'v_cvt_f32_u32 v{R[i]}, v{R[i]}')
    for i in range(4): L.append(f'v_mul_f32 v{R[i]}, {f2u(1/2048):#x}, v{R[i]}')
    for i in range(4): L.append(f'v_cos_f32 v{R[4+i]}, v{R[i]}')
    for i in range(4): L.append(f'v_sin_f32 v{R[i]}, v{R[i]}')
    for i in (4,5,6,7,0,1,2,3): L.append(f'v_mul_f32 v{R[i]}, {f2u(sc):#x}, v{R[i]}')
    L += [f'v_cvt_pk_bf16_f32 v{t}, v{R[4]}, v{R[5]}', f'v_cvt_pk_bf16_f32 v{t+1}, v{R[6]}, v{R[7]}', f'v_cvt_pk_bf16_f32 v{t+2}, v{R[0]}, v{R[1]}', f'v_cvt_pk_bf16_f32 v{t+3}, v{R[2]}, v{R[3]}',
          f'v_xor_b32 v{t+4}, 0x80008000, v{t+2}', f'v_xor_b32 v{t+5}, 0x80008000, v{t+3}',
          f'v_and_b32 v{R[0]}, 1, v207', f'v_lshlrev_b32 v{R[0]}, 4, v{R[0]}', f'v_mov_b32 v{R[1]}, 0x3f80', f'v_lshlrev_b32 v{R[0]}, v{R[0]}, v{R[1]}', 'v_and_b32 v207, -2, v207',
          'v_cmp_eq_u32 vcc, 0, v207', 's_nop 1', f'v_cndmask_b32 v{t+6}, 0, v{R[0]}, vcc', 'v_cmp_eq_u32 vcc, 2, v207', 's_nop 1', f'v_cndmask_b32 v{t+7}, 0, v{R[0]}, vcc']
    ops = sops(o + '\n'.join(L))
    ops += [(8, LD(f'ds_write_b64 v206, {vr(t+2*m,2)} offset:{2048*m}')[1]) for m in range(4)]
    return ops
def tw_reads(src=None):
    return [V(f'v_add_u32 v206, {TWL if src is None else src}, v{VL16}')] + [LD(f'ds_read_b128 {ar(TW+4*i)}, v206 offset:{1024*i}') for i in range(8)]

PB = 24576
def fin_addr():
    return sops(f"""s_add_u32 s38, s{sW2K}, {PB}
    v_lshrrev_b32 v6, 5, v{VLANE}
    v_bfe_u32 v7, v{VLANE}, 2, 2
    v_lshl_add_u32 v6, v6, 3, v7
    v_lshlrev_b32 v6, 7, v6
    v_bfe_u32 v7, v{VLANE}, 1, 1
    v_lshl_add_u32 v6, v7, 6, v6
    v_bfe_u32 v7, v{VLANE}, 4, 1
    v_lshl_add_u32 v6, v7, 4, v6
    v_and_b32 v7, 1, v{VLANE}
    v_lshl_add_u32 v6, v7, 3, v6
    v_add_u32 v6, s38, v6
    v_add_u32 v7, s38, v{VL16}
    s_lshl_b32 s38, s{sWV}, 12
    v_add_u32 v3, s38, v{VL16}
    v_add_u32 v1, 73728, v3
    s_lshl_b32 s38, s{sWV}, 14
    s_add_u32 s38, s38, {PB + 6144}
    v_add_u32 v247, s38, v{VL16}
    s_mov_b32 s39, {f2u(-math.log2(math.e)):#x}""")
APF = 32
def prd(jj):
    return [LD(f'ds_read_b64_tr_b16 {ar(APF+16*jj+8*p+4*t+2*rho,2)}, v6 offset:{8192*(2*jj+t)+512*rho+32*p}', ('pf', jj))
            for t in range(2) for p in range(2) for rho in range(2)]
def final(a):
    Ea=72; Oa=88; YS=[104,208,72]; GA=[208, 104]; PK2=224; T=240; VY=7; VG=3; VG2=1; AY=16
    cv, st = part_inplace(JC[0], 3)
    brole(a, R_FINW, 'L_nfw', False); s0 = a.snap()
    la = a.l; a.l = []; a('L_nfw:')
    a('s_nop 8'); emit(a, mix(cv, st))
    brole(a, R_FIN, 'L_w3'); s3_ = a.snap()
    setflag2(a, 8, ('p',3)); a('s_branch L_fin')
    a('L_w3:'); a.restore(s3_)
    for k in range(6):
        a(f's_mov_b32 m0, {122880 + 4096*k}\ns_mov_b32 s96, {86016 - 6144 + 4096*k}\nv_lshl_add_u64 {vr(VTT,2)}, s[96:97], 0, {vr(VTB,2)}')
        for i in range(4): a.vm(f'global_load_lds_dwordx4 {vr(VTT,2)}, off offset:{1024*i}')
        if k == Cfg.w3b: a.vneed(('d', 104)); a('s_barrier')
    setflag2(a, 8, ('p',3))
    a.vdrain(); a('s_barrier\ns_branch L_fin')
    HOT.extend(a.l); a.l = la; a.restore(s0)
    lc = a.label('PR'); lk = a.label('PL')
    a(f's_cmp_lg_u32 s11, 0\ns_cbranch_scc1 {lc}')
    t = E(); t.nlab = 9000
    t(f'{lc}:\ns_nop 7'); emit(t, mix(cv, st))
    t.vm(poll_ins(200, 204, '0'), 'x'); t.vm(poll_ins(202, 205, '0'), 'y')
    poll_check(t, 'x', 200, 204, '0', 1); poll_check(t, 'y', 202, 205, '0', 1)
    t.drain()
    for q in range(93, 99):
        for f in plan(q, 'P'): f(t)
    t.vdrain(); emit(t, prd(0) + prd(1) + prd(2)); t.drain()
    C=lambda t: ar(TW+4*t); Sn=lambda t: ar(TW+8+4*t); N=lambda t: ar(TW+16+4*t)
    def inv(jj):
        yr=vr(YS[jj],16); yi=vr(YS[jj]+16,16); P=APF+16*jj; mf=[]
        for u in range(2):
            mf += [f'{M} {yr}, {ar(P+4*u)}, {C(u)}, {"0" if u==0 else yr}', f'{M} {yi}, {ar(P+8+4*u)}, {C(u)}, {"0" if u==0 else yi}',
                   f'{M} {yr}, {ar(P+8+4*u)}, {N(u)}, {yr}', f'{M} {yi}, {ar(P+4*u)}, {Sn(u)}, {yi}']
        return mf
    for x in inv(0): t(x)
    t(f's_nop 4\ns_branch {lk}'); a.ool += t.l + t.ool
    def pk(jj):
        o = []
        for q in range(4):
            o += [V(f'v_cvt_pk_bf16_f32 v{YS[jj]+8*q+i}, v{YS[jj]+8*q+2*i}, v{YS[jj]+8*q+2*i+1}') for i in range(4)]
            o.append(LD(f'ds_write_b128 v{VY}, {vr(YS[jj]+8*q)} offset:{8192*(2*jj+q%2)+1024*(q//2)}', 'yw'))
        return o
    a.need(('pf', 0))
    mf = inv(0)
    for x in mf[:2]: a(x)
    a('s_nop 2')
    interleave(a, mf[2:], mix(cv, st))
    a.need(('pf', 2))
    a(f'{lk}:')
    stamp(a, 'f1')
    eld(1, 56)(a); eld(0, 20)(a)
    for jj in (1, 2):
        mf = inv(jj)
        for x in mf[:2]: a(x)
        a('s_nop 5')
        interleave(a, mf[2:], pk(jj-1))
    def summ(hf):
        y = vr(GA[hf], 16)
        o = [f'{M} {y}, {ar(SEL)}, {ar(AB2+8*hf)}, 0', f'{M} {y}, {ar(SEL+4)}, {ar(AB2+8*hf+4)}, {y}']
        return o + [f'{M} {y}, {ar(SEL+4*(i%2))}, {vr(PTH[hf]+4*i)}, {y}' for i in range(16)]
    VW = 204; VR = 205
    setup = sops(f"""s_mul_i32 s38, s{sWV}, 5120
    s_add_u32 s38, s38, {BIAS_LDS}
    v_and_b32 v{VW}, 31, v{VLANE}
    v_mul_u32_u24 v{VW}, 80, v{VW}
    v_add3_u32 v{VW}, v{VW}, v{VBI}, s38
    v_lshrrev_b32 v{VR}, 2, v{VLANE}
    v_mul_u32_u24 v{VR}, 80, v{VR}
    v_and_b32 v206, 3, v{VLANE}
    v_lshlrev_b32 v206, 4, v206
    v_add3_u32 v{VR}, v{VR}, v206, s38""")
    XU = [8, 120]; U0 = 24; GB = 40
    def xun(hf):
        d = vr(XU[hf], 16)
        return [f'{M} {d}, {ar(SEL)}, {ar(AX+8*hf)}, 0', f'{M} {d}, {ar(SEL+4)}, {ar(AX+8*hf+4)}, {d}']
    def sum0(t):
        y = vr(GA[0] if t == 0 else GB, 16)
        return [f'{M} {y}, {ar(SEL+4*t)}, {ar(AB2+4*t)}, 0'] + [f'{M} {y}, {ar(SEL+4*t)}, {vr(PTH[0]+8*i+4*t)}, {y}' for i in range(8)]
    def u0(): return [V(f'v_fma_f32 v{U0+i}, v{Oa+i}, s{sSG}, v{Ea+i}') for i in range(16)]
    def wr(hf, g): return LD(f'ds_write_b64 v{VW}, {vr(PK2+8*hf+g//2,2)} offset:{2560*hf+4*g}')
    def outp(hf):
        o = [LD(f'ds_read_b128 {vr(PK2+8*hf+4*i)}, v{VR} offset:{2560*hf+1280*i}', ('tr', hf, i)) for i in range(2)]
        st = [FN(lambda a, i=i: (a.need(('tr', hf, i)), a.vm(f'buffer_store_dwordx4 {vr(PK2+8*hf+4*i)}, v{VO}, {S(SOUT)}, s{sXO+hf+2*i} offen {Cfg.ofl}'))) for i in range(2)]
        return o, st
    def fin0(t):
        o = []
        for g in (8*t, 8*t+4):
            y = [(GA[0] if t == 0 else GB)+g+i for i in range(4)]; r = [T+i for i in range(4)]
            x = [f'v_mul_f32 v{r[i]}, s39, v{y[i]}' for i in range(4)] + [f'v_exp_f32 v{r[i]}, v{r[i]}' for i in range(4)]
            x += [f'v_add_f32 v{r[i]}, 1.0, v{r[i]}' for i in range(4)] + [f'v_rcp_f32 v{r[i]}, v{r[i]}' for i in range(4)]
            x += [f'v_mul_f32 v{y[i]}, v{U0+g+i}, v{y[i]}' for i in range(4)] + [f'v_fma_f32 v{r[i]}, v{r[i]}, v{y[i]}, v{XU[0]+g+i}' for i in range(4)]
            x += [f'v_cvt_pk_bf16_f32 v{PK2+g//2+i}, v{r[2*i]}, v{r[2*i+1]}' for i in range(2)]
            o += [V(z) for z in x] + [wr(0, g)]
        return o
    def rdyg(i):
        j = i//4; r = i % 4; go = 12288*j + 1024*r
        a.lds(f'ds_read_b128 {ar(AY+4*r)}, v{VY} offset:{8192*(2*(j%3) + r//2) + 2048*(j//3) + 1024*(r%2)}', ('yg', i))
        if j < 2:    a.lds(f'ds_read_b128 {ar(4*r)}, v{VG} offset:{go}', ('yg', i))
        elif j == 2: a.lds(f'ds_read_b128 {ar(4*r)}, v247 offset:{8192*(r//2) + 1024*(r%2)}', ('yg', i))
        else:        a.lds(f'ds_read_b128 {ar(4*r)}, v{VG2} offset:{go-36864}', ('yg', i))
    stamp(a, 'f2')
    def mainm(i):
        j = i//4; u = (i//2) % 2
        d = vr(Ea if (u == 1) == (j < 5) else Oa, 16)
        a(f'{M} {d}, {ar(4*(i%4))}, {ar(AY+4*(i%4))}, {"0" if i in (0,2) else d}')
    def silu(hf):
        o = []
        for g in range(0, 16, 4):
            y = [GA[hf]+g+i for i in range(4)]; t = [T+i for i in range(4)]
            o += [V(f'v_mul_f32 v{t[i]}, s39, v{y[i]}') for i in range(4)] + [V(f'v_exp_f32 v{t[i]}, v{t[i]}') for i in range(4)] + [V(f'v_add_f32 v{t[i]}, 1.0, v{t[i]}') for i in range(4)]
            o += [V(f'v_rcp_f32 v{t[i]}, v{t[i]}') for i in range(4)] + [V(f'v_mul_f32 v{y[i]}, v{t[i]}, v{y[i]}') for i in range(4)]
        return o
    def comb(hf):
        o = []
        for g in range(0, 16, 4):
            u = [248+i for i in range(4)]
            o += [V(f'v_fma_f32 v{u[i]}, v{Oa+g+i}, s{sSG+hf}, v{Ea+g+i}') for i in range(4)] + [V(f'v_fma_f32 v{u[i]}, v{u[i]}, v{GA[hf]+g+i}, v{XU[hf]+g+i}') for i in range(4)]
            o += [V(f'v_cvt_pk_bf16_f32 v{PK2+8*hf+g//2+i}, v{u[2*i]}, v{u[2*i+1]}') for i in range(2)] + [wr(hf, g)]
        return o + outp(hf)[0]
    if Cfg.f8 == 99: setflag2(a, 8, ('p',3))
    a(f's_and_b32 s98, s{sCLS}, {1|4|16}\ns_cselect_b32 s98, 64, 0\ns_or_b32 s{sCLS}, s{sCLS}, s98')
    def point(a):
        def b(a):
            l = a.label('T0'); a.drain(); etest(a, 0, 20); eld(0, 20)(a); a(f's_cbranch_scc1 {l}'); s0 = a.snap()
            emit(a, pl_ops(0, 0, 16)); a(f's_xor_b32 s{sCLS}, s{sCLS}, {64|256}\n{l}:'); a.merge(s0, a.snap())
        cls_block(a, 64, b)
    def must0(a):
        def b(a):
            l = a.label('MS'); l2 = a.label('MT')
            a(f's_mov_b32 s99, 6\n{l}:'); a.drain(); etest(a, 0, 20); a(f's_cbranch_scc0 {l2}'); eld(0, 20)(a)
            a(f's_sub_u32 s99, s99, 1\ns_cbranch_scc0 {l}'); a.drain(); eblock(a, 0, 20); a(f'{l2}:')
            emit(a, pl_ops(0, 0, 16))
        cls_block(a, 64, b)
        a.vdrain()
    pts = [int(x) for x in str(Cfg.pts).split('_')]
    a(f's_bitcmp1_b32 s{sCLS}, 12\ns_cbranch_scc0 L_slow'); s_sl = a.snap()
    a.vneed(('d', 104))
    s1 = summ(1) + xun(1) + xun(0)
    for x in s1[:2]: a(x)
    a('s_nop 2')
    interleave(a, s1[2:9], pk(2) + [V(f'v_add_u32 v{VY}, {PB}, v{VL16}')])
    interleave(a, s1[9:12], setup)
    stamp(a, 'f3')
    a.drain(); a('s_barrier')
    t = E(); etest(t, 0, 20)
    t(f's_cselect_b32 s98, 0, 64\ns_and_b32 s98, s98, s{sCLS}\ns_mul_i32 s98, s98, {1 + 4 + 128}\ns_xor_b32 s{sCLS}, s{sCLS}, s98')
    interleave(a, s1[12:], [FN(lambda a: rdyg(0)), FN(lambda a: rdyg(1)), FN(lambda a: rdyg(2))] + sops('\n'.join(t.l)) + [FN(eld(0, 20))])
    stamp(a, 'f4')
    def mainloop(fl, start, hook):
        k2 = 0
        for i in range(36):
            if i + 3 < 36: rdyg(i+3)
            a.need(('yg', i), *([('yg', i+1)] if i % 2 == 0 and Cfg.mw else []))
            mainm(i)
            hook(i)
            while i >= start and k2 < len(fl)*(i-start+1)//(35-start) and k2 < len(fl): fl[k2][1](a); k2 += 1
            if i == 24: a('s_barrier')
    def hookf(i):
        if i % Cfg.ls == 0 and i//Cfg.ls < 4: cls_block(a, 1 << 13, lambda a: emit(a, pl_ops(0, 4*(i//Cfg.ls), 4*(i//Cfg.ls)+4)))
        if i in pts: point(a)
    mainloop(silu(1), 1, hookf)
    stamp(a, 'f5')
    lf = a.label('FF')
    a(f's_bitcmp1_b32 s{sCLS}, 6\ns_cbranch_scc1 {lf}'); s0 = a.snap()
    a.vdrain()
    stamp(a, 'f6')
    sA = sum0(0); sB = sum0(1)
    for x in sA[:2]: a(x)
    a('s_nop 5')
    interleave(a, sA[2:], comb(1))
    interleave(a, sB[:3], u0() + outp(1)[1])
    a('s_branch L_last'); sa = a.snap()
    a(f'{lf}:'); a.restore(s0)
    point(a)
    a('s_nop 7')
    emit(a, comb(1) + u0() + outp(1)[1])
    a('L_w0:')
    must0(a)
    stamp(a, 'f6')
    for x in sA + sB[:2]: a(x)
    a('s_nop 7'); a(sB[2])
    a('L_last:'); a.merge(sa, a.snap())
    interleave(a, sB[3:], fin0(0))
    stamp(a, 'f8b')
    a('s_nop 3')
    emit(a, fin0(1))
    stamp(a, 'f9')
    emit(a, outp(0)[0] + outp(0)[1])
    la = a.l; a.l = []
    a('L_slow:'); a.restore(s_sl)
    emit(a, setup + pk(2))
    a(f'v_add_u32 v{VY}, {PB}, v{VL16}')
    stamp(a, 'f3')
    a.vneed(('d', 104)); a.drain(); a('s_barrier')
    stamp(a, 'f4')
    for i in range(3): rdyg(i)
    etest(a, 1, 56); a(f's_cselect_b32 s98, 128, 0\ns_or_b32 s{sCLS}, s{sCLS}, s98')
    def hook(i):
        if i % 2 == 0 and i < 8: cls_block(a, 128, lambda a: emit(a, pl_ops(1, 2*i, 2*i+4)), inv=True)
        if i in pts: cls_block(a, 128, point, inv=True)
        if i == 22: eld(1, 56)(a)
    mainloop([], 0, hook)
    a.drain()
    cls_block(a, 128, lambda a: (eblock(a, 1, 56), eld(0, 20)(a), emit(a, pl_ops(1, 0, 16))))
    stamp(a, 'f5')
    point(a)
    l = a.label('RD')
    a(f's_bitcmp1_b32 s{sCLS}, 8\ns_cbranch_scc1 {l}\ns_waitcnt vmcnt(0)\n{l}:\ns_waitcnt vmcnt(16)')
    for x in summ(1) + xun(1) + xun(0): a(x)
    point(a)
    a('s_nop 5')
    emit(a, silu(1)); point(a); emit(a, comb(1) + u0() + outp(1)[1])
    assert not a.st['l']
    a('s_branch L_w0')
    global SLOW
    SLOW = a.l; a.l = la

def build(aslist=False):
    k = NAME + '_kernel'
    body = kernel()
    if Cfg.warm:
        import stubs
        body, st, end = stubs.add_stubs(body, '.set CODE_LINES, 17\n', ('L_main', 'L_odd', 'L_dft', 'L_s3', 'L_unit', 'L_s7e', 'L_finw', 'L_hot') + (('L_s9',) if Cfg.w3 == 2 else ()) + (('TW_*',) if Cfg.tws else ()), Cfg.wmode)
        print('stubs', {k: [hex(x) for x in v] for k, v in st.items()}, 'end', end, file=sys.stderr)
    hdr = f'; @launch kernel={k} grid=(256,1,1) block=(256,1,1) lds=163840\n' if aslist else '; @launch grid=(256,1,1) block=(256,1,1) lds=163840\n'
    s = '; generated by gen/v6.py\n' + hdr + '.amdgcn_target "amdgcn-amd-amdhsa--gfx950"\n.text\n.set CODE_LINES, 26\n'
    s += kstart(k) + body + 'L_codeend:\n'
    s += '.section .rodata,"a"\n' + kdesc(k, 512, 256) + tables()
    return s
if __name__ == '__main__':
    out = sys.argv[1] if len(sys.argv) > 1 else f'cdna_kernels/{NAME}.s'
    for x in sys.argv[2:]:
        if '=' in x:
            kx, vx = x.split('='); setattr(Cfg, kx, int(vx) if re.fullmatch(r'-?\d+', vx) and kx != 'sch' else vx)
    open(out, 'w').write(build('--list' in sys.argv))
```

```python
import sys, re
from common2 import *
M = 'v_mfma_f32_32x32x16_bf16'
VL16=0; VT1=1; VLANE=2; VT3=3; VA1=4; VB1=5; VA2=6; VB2=7
XF=8; ACC=[152,184]; TMP=216; HO=224; TA=240; VBI=246; VC0=247; VFL=248; VPO=250; VTB=252; VTT=254
HF=32; TW=176
SX,SW1,SW2,SWS,SWR,SWI,SOUT,SB,SDBG = 4,8,12,16,20,24,28,32,36
sWV,sI,sC,sB,sROLE,sNON = 40,41,42,43,44,45
sO1=46; sO2=55; sW2K=64; sHS=65; sPS=66; sFLG=67; sT=68; sT2=69; sGC1=70; sP=71
sRHO=39
sX0=96
R_ODD,R_DFT,R_SMID,R_UNIT,R_FIN,R_FINW,R_PATCH = 0,1,2,3,4,5,6
PF=3; NB=4
GC0 = -2.0*math.log2(math.e)*math.sqrt(2/math.pi); GC1 = GC0*0.044715
BIAS_LDS = 147456
B2_LDS = 163840 - 2048
class Cfg:
    stamps=False; st='1,2,3,4,5,6,7,8,9,10'; xa=3; lg=1; pm=340; f8=99; w3d=1; f2o=44; e2nd=22; blk=6; rfi=10; f6=54; p9=30; sch='1x-1'; ta=22; tws=1; hf=0; j1=1; tw3=0; nl=2; wsl=0; bf=0; fp0=7; be=1; ce=0; f9=0; nso=1; ct=1; xl=6; pts='25'; mw=1; cp=0; fs=1; fw=1; pd=18; ls=3; rf=1; w3b=0; ecl=1; ge=40; c5=24; pe=23; e8=6; nt=0; f5h=76; noclr=0; t1=5; t2=99; ne=9; c0=20; b2=1; pz1=0; pz2=4; sd=4; tw1=1; warm=1; wmode='execz'; clk=0; xe=1; fp=3; f7=60; gs=55; l9=46; l10=34; mg=0; tn=108; w2k=99; rots=1; np=6; te=0; pt='w2,b1,b2,wr,wi,dbg'; w3=1; xo=1; f16=1; gs0=1; e2=50; l2=0; t9=30; t10=8; pfg=44; ofl=''; h8=44; f4=26; c4=20; f5=14; p8=60; fg=24; pg=52; cg=8; tb=4; normin=0; rx=8; rota=1; rotb=1; touch='x2,w,tab,code'; spin=100000; slp=8; slp2=2; rr=1; wt=1
def h2(x):
    u = struct.unpack('<H', struct.pack('<e', x))[0]; return u | u << 16
def S(b): return f's[{b}:{b+3}]'
def stamp(a, nm):
    if not Cfg.stamps: return
    L = ['0'] + Cfg.st.split(',') + ['11']
    nm = str(nm)
    if nm in L:
        i = L.index(nm) if nm != '11' else 11
        a(f'{"s_memtime" if Cfg.clk else "s_memrealtime"} s[{72+2*i}:{73+2*i}]')
def stamp_flush(a, n):
    if not Cfg.stamps: return
    a.vdrain(); stamp(a, n); n += 1
    a(f'''s_waitcnt lgkmcnt(0)
    s_mov_b32 s{SWS+2}, {STAMP_OFF + (1<<20)}
    v_mov_b32 v1, 0''')
    for i in range(n): a(f'v_writelane_b32 v1, s{72+2*i}, {i}')
    a(f'v_writelane_b32 v1, s53, 12\nv_writelane_b32 v1, s11, 13\nv_writelane_b32 v1, s{sP}, 14')
    a(f'''s_lshl_b32 s{sT}, s2, 3
    s_add_u32 s{sT}, s{sT}, s{sWV}
    s_lshl_b32 s{sT}, s{sT}, 6
    s_add_u32 s{sT}, s{sT}, {STAMP_OFF}
    v_lshlrev_b32 v3, 2, v{VLANE}
    s_mov_b64 exec, 0xffff
    buffer_store_dword v1, v3, {S(SWS)}, s{sT} offen
    s_mov_b64 exec, -1''')
def brole(a, bit, lab, ifset=True):
    a(f's_bitcmp1_b32 s{sROLE}, {bit}\ns_cbranch_scc{1 if ifset else 0} {lab}')

def V(s, c=1): return (c, lambda a: a(s))
def VM(s, tag=None): return (1, lambda a: a.vm(s, tag))
def LD(s, tag=None): return (1, lambda a: a.lds(s, tag))
def FN(f, c=1): return (c, f)
def SVM(pre, s, tag=None): return (1, lambda a: (a(pre), a.vm(s, tag)))
def emit(a, ops):
    for _, f in ops: f(a)

def sops(txt):
    L = [x.split(';')[0].strip() for x in txt.split('\n')]; L = [x for x in L if x]
    o = []; cur = []
    for i, x in enumerate(L):
        cur.append(x)
        nx = L[i+1] if i+1 < len(L) else ''
        if nx.startswith(('s_cselect', 's_addc', 's_subb', 'v_cndmask', 's_nop')) or x.startswith(('s_nop', 'v_cmp')): continue
        o.append(V('\n'.join(cur), len(cur))); cur = []
    return o
def mix(x, y):
    o = []; k = 0
    for i, e in enumerate(x):
        o.append(e)
        t = len(y)*(i+1)//len(x)
        while k < t: o.append(y[k]); k += 1
    return o
def gelu_ops(acc, job, nb=None, sd=0):
    ops = []; G = 4; held = []
    for g in range(0, 32, G):
        t = [TMP + (g//G % 2)*4 + i for i in range(G)]
        x = [acc + g + i for i in range(G)]
        if not Cfg.f16:
            for i in range(G): ops.append(V(f'v_mul_f32 v{t[i]}, v{x[i]}, v{x[i]}'))
            for i in range(G): ops.append(V(f'v_fma_f32 v{t[i]}, v{t[i]}, s{sGC1}, v{VC0}'))
            for i in range(G): ops.append(V(f'v_mul_f32 v{t[i]}, v{t[i]}, v{x[i]}'))
            for i in range(G): ops.append(V(f'v_exp_f32 v{t[i]}, v{t[i]}', 2))
            for i in range(G): ops.append(V(f'v_add_f32 v{t[i]}, 1.0, v{t[i]}'))
            for i in range(G): ops.append(V(f'v_rcp_f32 v{t[i]}, v{t[i]}', 2))
            for i in range(G): ops.append(V(f'v_mul_f32 v{t[i]}, v{t[i]}, v{x[i]}'))
        else:
            HI = 'dst_sel:WORD_1 dst_unused:UNUSED_PRESERVE src0_sel:WORD_1'
            t = [TMP + i for i in range(4)]; u = [TMP + 4, TMP + 5]; w = [TMP + 6, TMP + 7]
            for i in range(2): ops.append(V(f'v_cvt_pk_f16_f32 v{u[i]}, v{x[2*i]}, v{x[2*i+1]}'))
            for i in range(2): ops.append(V(f'v_pk_mul_f16 v{w[i]}, v{u[i]}, v{u[i]}'))
            for i in range(2): ops.append(V(f'v_pk_fma_f16 v{w[i]}, v{w[i]}, s{sGC1}, v{VC0}'))
            for i in range(2): ops.append(V(f'v_pk_mul_f16 v{u[i]}, v{w[i]}, v{u[i]}'))
            for i in range(2): ops.append(V(f'v_exp_f16 v{w[i]}, v{u[i]}', 2))
            for i in range(2): ops.append(V(f'v_exp_f16_sdwa v{w[i]}, v{u[i]} {HI}', 2))
            for i in range(2): ops.append(V(f'v_pk_add_f16 v{u[i]}, v{w[i]}, 1.0 op_sel_hi:[1,0]'))
            for i in range(2): ops.append(V(f'v_rcp_f16 v{t[2*i]}, v{u[i]}', 2))
            for i in range(2): ops.append(V(f'v_rcp_f16_sdwa v{t[2*i+1]}, v{u[i]} dst_sel:WORD_0 dst_unused:UNUSED_PAD src0_sel:WORD_1', 2))
            for i in (0, 2, 1, 3): ops.append(V(f'v_fma_mix_f32 v{t[i]}, v{x[i]}, v{t[i]}, 0 op_sel_hi:[0,1,0]'))
        if nb is not None: ops.append((2, lambda a, g=g: a.lds(f'ds_read_b128 {vr(acc+g)}, v{VBI} offset:{256*nb + 8*g}', 'bias')))
        for i in range(0, G, 2): ops.append(V(f'v_cvt_pk_bf16_f32 v{HO + (g+i)//2}, v{t[i]}, v{t[i+1]}'))
        for i in range(0, G, 2): ops.append(V(f'v_accvgpr_write_b32 a{HF + 16*job + (g+i)//2}, v{HO + (g+i)//2}'))
        if g % 8 == 4:
            q = g // 8
            if q == 0: ops.append(V(f's_add_u32 s{sT2}, s{sHS}, {4096*job}'))
            held.append(VM(f'buffer_store_dwordx4 {vr(HO+4*q)}, v{VL16}, {S(SWS)}, s{sT2} offen offset:{1024*q} sc1', ('h', job)))
        if held and g//4 >= sd: ops.append(held.pop(0))
    return ops
def part_ops(acc, lam):
    ops = []
    for q in range(4):
        if q % 2 == 0: ops.append(V(f's_add_u32 s{sT2}, s{sPS}, {16384*(2*lam + q//2)}' if lam != 9 else f's_add_u32 s{sT2}, s{sL9}, {16384*(q//2)}'))
        for i in range(4): ops.append(V(f'v_cvt_pk_bf16_f32 v{HO+4*q+i}, v{acc+8*q+2*i}, v{acc+8*q+2*i+1}'))
        ops.append(VM(f'buffer_store_dwordx4 {vr(HO+4*q)}, v{VL16}, {S(SWS)}, s{sT2} offen offset:{1024*(q%2)} sc1', ('p', lam)))
    return ops
def clear_ops(sreg, imms, tag, r=HO):
    if Cfg.noclr: return [V('s_nop 0')]
    ops = [V(f'v_mov_b32 v{r+i}, -1' if r > 0 else f'v_accvgpr_write_b32 a{-r+i}, -1') for i in range(4)]
    ops = [(0, f) for _, f in ops]
    for im in imms:
        for k in range(2): ops.append(SVM(f's_add_u32 s3, s{sreg}, {im}', f'buffer_store_dwordx4 {vr(r) if r > 0 else ar(-r)}, v{VL16}, {S(SWS)}, s3 offen offset:{1024*k} sc1', tag))
    return ops
def sent_check(a, tag, regs, t, reload_lines, probe=None, slp=None):
    lc = a.label('SC'); ls = a.label('SS'); lk = a.label('SK')
    a.vneed(tag)
    a(f'{lc}:')
    rs = []
    for i, r in enumerate(regs):
        if r[0] == 'a': a(f'v_accvgpr_read_b32 v{t+i}, {r}'); rs.append(f'v{t+i}')
        else: rs.append(r)
    a(f'v_max_u32 v{t}, {rs[0]}, {rs[1]}')
    for i in range(2, len(rs), 2): a(f'v_max3_u32 v{t}, v{t}, {rs[i]}, {rs[i+1]}')
    a(f'v_cmp_eq_u32 vcc, -1, v{t}\ns_nop 1\ns_cmp_lg_u64 vcc, 0\ns_cbranch_scc1 {ls}\n{lk}:')
    pr = []
    if probe:
        pr = [' ' + x for x in probe[0]] + [f' v_and_b32 v{t+1}, {probe[1]}, v{VLANE}', f' v_lshlrev_b32 v{t+1}, 10, v{t+1}', f' buffer_load_dword v{t}, v{t+1}, {S(SWS)}, s3 offen offset:1020 sc1',
              ' s_waitcnt vmcnt(0)', f' v_cmp_eq_u32 vcc, -1, v{t}', ' s_nop 1', ' s_cmp_lg_u64 vcc, 0', f' s_cbranch_scc1 {ls}']
    a.ool += [f'{ls}:', f' s_sub_u32 s{sP}, s{sP}, 1', f' s_cbranch_scc1 {ls}_x', f' s_sleep {slp or (Cfg.slp2 if probe else Cfg.slp)}'] + pr + [x if x.endswith(':') else ' ' + x for x in reload_lines] + [' s_waitcnt vmcnt(0)', f' s_branch {lc}',
              f'{ls}_x:', f' s_mov_b32 s{sP}, 0', f' s_branch {lk}']
def lines_of(ops):
    t = E(); emit(t, ops); return [x.strip() for x in t.l]
def norm_ops(u):
    T = HO; r = XF + 8*u; ops = []
    for i in range(8): ops.append(V(f'v_dot2_f32_bf16 v{T+i}, v{r+i}, v{TMP+4}, v{TMP}'))
    for i in range(8): ops.append(V(f'v_dot2_f32_bf16 v{T+8+i}, v{r+i}, v{TMP+5}, v{TMP}'))
    for i in range(8): ops.append(V(f'v_cvt_pk_bf16_f32 v{r+i}, v{T+2*i}, v{T+2*i+1}'))
    return ops
def setflag(a, stage, *tags, off=None):
    a(f'v_mov_b32 v{VFL+1}, {stage}')
    a.vneed(*tags)
    a('s_mov_b64 exec, 1')
    a.vm(f'buffer_store_dwordx2 {vr(VFL,2)}, off, {S(SWS)}, s{sFLG if off is None else off} sc1')
    a('s_mov_b64 exec, -1')
def setflag2(a, stage, *tags):
    a(f'v_add_u32 v{VFL+1}, {stage-1}, v{VFL}')
    a(f's_add_u32 s3, s{sFLG}, {(stage-5)*16384*Cfg.fw if Cfg.fs else 0}')
    a.vneed(*tags)
    a('s_mov_b64 exec, 1')
    a.vm(f'buffer_store_dword v{VFL+1}, off, {S(SWS)}, s3 sc1')
    a('s_mov_b64 exec, -1')
def poll_ins(p, voff, soff): return f'buffer_load_dwordx2 {vr(p,2)}, v{voff}, {S(SWS)}, {soff} offen sc1' if voff is not None else f'buffer_load_dwordx2 {vr(p,2)}, off, {S(SWS)}, {soff} sc1'
def poll_test(a, p, need):
    a(f'''v_subrev_u32 v{p+1}, {need}, v{p+1}
    v_cmp_ne_u32 vcc, s{sNON}, v{p}
    v_cmp_lt_u32 s[{sX0+4}:{sX0+5}], 60, v{p+1}
    s_nop 1
    s_or_b64 vcc, vcc, s[{sX0+4}:{sX0+5}]''')
SPL = 0
def spoll_i(a): a(f's_buffer_load_dwordx2 s[{SPL}:{SPL+1}], {S(SWS)}, s34 glc'); a.smem = True
def spoll_c(need):
    def f(a):
        lc = a.label('QC'); lk = a.label('QK')
        a.drain()
        a(f"""s_sub_u32 s{SPL+1}, s{SPL+1}, {need}
        s_cmp_lt_u32 s{SPL+1}, 60
        s_cselect_b32 s{SPL}, s{SPL}, 0
        s_cmp_lg_u32 s{SPL}, s{sNON}
        s_cbranch_scc1 {lc}
        {lk}:""")
        t = E(); poll_test(t, VPO, need)
        a.ool += [f'{lc}:', ' ' + poll_ins(VPO, None, 's34'), ' s_waitcnt vmcnt(0)'] + t.l + [f' s_cbranch_scc0 {lk}', f' s_sub_u32 s{sP}, s{sP}, 1', f' s_cbranch_scc1 {lc}_x', f' s_sleep {Cfg.slp}', f' s_branch {lc}',
                  f'{lc}_x:', f' s_mov_b32 s{sP}, 0', f' s_branch {lk}']
    return f
def poll_check(a, tag, p, voff, soff, need):
    lc = a.label('PC'); ls = a.label('PS'); lk = a.label('PK')
    a.vneed(tag)
    a(f'{lc}:'); poll_test(a, p, need)
    a(f's_cbranch_scc1 {ls}\n{lk}:')
    a.ool += [f'{ls}:', f' s_sub_u32 s{sP}, s{sP}, 1', f' s_cbranch_scc1 {ls}_x', f' s_sleep {Cfg.slp}', ' ' + poll_ins(p, voff, soff), ' s_waitcnt vmcnt(0)', f' s_branch {lc}',
              f'{ls}_x:', f' s_mov_b32 s{sP}, 0', f' s_branch {lk}']

def slot(q): return (q % 18) * 8192
def rd_ops(kind, q, kk, n):
    fb = (n % NB) * 8; s = slot(q) + kk*2048
    if kind == 'dft':
        b = s // 49152; off = s % 49152
        return [(f'ds_read_b128 {ar(fb)}, v{VPO+b} offset:{off}', ('f', n)), (f'ds_read_b128 {ar(fb+4)}, v{VPO+b} offset:{off+1024}', ('f', n))]
    b = s // 49152; off = s % 49152; L = TA + 2*b; R = L + 1
    return [(f'ds_read_b64_tr_b16 {ar(fb,2)}, v{L} offset:{off}', ('f', n)), (f'ds_read_b64_tr_b16 {ar(fb+2,2)}, v{L} offset:{off+512}', ('f', n)),
            (f'ds_read_b64_tr_b16 {ar(fb+4,2)}, v{R} offset:{off}', ('f', n)), (f'ds_read_b64_tr_b16 {ar(fb+6,2)}, v{R} offset:{off+512}', ('f', n))]
def dma_buf(q, srd_, va, vb, sreg, imm, fl='', srd2=None):
    if Cfg.nso and imm <= 1024 and slot(q) >= imm:
        def f0(a):
            a(f's_add_u32 m0, s{sW2K}, {slot(q) - imm}')
            a.m0fix()
            a.vm(f'buffer_load_dwordx4 v{va}, {S(srd_)}, s{sreg} offen offset:{imm} {fl} lds', ('d', q))
        def f1(a): a.vm(f'buffer_load_dwordx4 v{vb}, {S(srd2 or srd_)}, s{sreg} offen offset:{1024+imm} {fl} lds', ('d', q))
        return [f0, f1]
    def f0(a):
        a(f's_add_u32 m0, s{sW2K}, {slot(q)}\ns_add_u32 s{sT}, s{sreg}, {imm}')
        a.vm(f'buffer_load_dwordx4 v{va}, {S(srd_)}, s{sT} offen {fl} lds', ('d', q))
    def f1(a): a.vm(f'buffer_load_dwordx4 v{vb}, {S(srd2 or srd_)}, s{sT} offen offset:1024 {fl} lds', ('d', q))
    return [f0, f1]
def dma_tab(q, imm=None, sreg=None):
    def f0(a):
        a(f's_add_u32 m0, s{sW2K}, {slot(q)}')
        if sreg is None: a(f's_mov_b32 s{sX0}, {imm}')
        else: a(f's_lshl_b32 s{sX0}, s{sreg}, 13\ns_add_u32 s{sX0}, s{sX0}, s{sPS}')
        a(f'v_lshl_add_u64 {vr(VTT,2)}, s[{sX0}:{sX0+1}], 0, {vr(VTB,2)}')
        a.vm(f'global_load_lds_dwordx4 {vr(VTT,2)}, off', ('d', q))
    def f1(a): a.vm(f'global_load_lds_dwordx4 {vr(VTT,2)}, off offset:1024', ('d', q))
    return [f0, f1]
def dma_alt(bit, ifset, ifclr, cond=None):
    def f0(a):
        l1 = a.label('DA'); l2 = a.label('DB')
        if not ifclr:
            brole(a, bit, l1, False); s0 = a.snap()
            for f in ifset: f(a)
            a(f'{l1}:'); a.merge(s0, a.snap()); return
        brole(a, bit, l1)
        s0 = a.snap()
        if ifclr:
            for f in ifclr: f(a)
        s1 = a.snap()
        if ifset:
            a(f's_branch {l2}\n{l1}:'); a.restore(s0)
            for f in ifset: f(a)
            a(f'{l2}:'); a.merge(s1, a.snap())
        else:
            a(f'{l1}:'); a.merge(s0, s1)
    return [f0, lambda a: None]
GORD = [1,2,3,4,0,5,6,7,8]; GE = [1,2,3,0,5,4,6,7,8]
class _EO:
    def __getitem__(self, i):
        L = [(6,0),(1,1),(7,0),(2,1),(3,1),(4,1),(0,1),(5,1),(6,1),(7,1),(8,1)]; L.insert(Cfg.e8, (8,0)); return L[i]
EORD = _EO()
def NT(b): return 'nt' if Cfg.nt & b else ''
def w1p(q): return dma_buf(q, SW1, VA1, VB1, sO1 + q % 9, 128*(q//9), NT(4))
def w2p(q, g, lam): return dma_buf(q, SW2, VA2, VB2, sO2 + g, 128*lam)
sSV, sFP, sL9 = 46, 54, 10
HOT = []
def plan(q, role=None):
    if q < 27 and role == 'N': return []
    if q < 9 and role == 'D': return dma_tab(q, sreg=sO2+q)
    if q < 45: return w1p(q)
    if q < 72:
        assert role
        if role == 'O':
            return w2p(q, GORD[(q-45)//2], 4 + 2*((q-45) % 2)) if q < 63 else w2p(q, GORD[q-63], 5)
        if q < 51: return w2p(q, GE[q-45], 0)
        if q < 54: return dma_tab(q, TABF_SZ + TABG_SZ + 8192*(q-51))
        if q < 57: return dma_buf(q, SWS, VL16, VL16, sSV, 8192*(q-54), 'sc1 ' + NT(1))
        if q < 60: return []
        return w2p(q, *EORD[q-60])
    if q < 90: return w2p(q, GORD[(q-72) % 9], 2 + (q-72)//9)
    k = q - 90
    if k < 3: return dma_tab(q, 8192*k)
    if k < 9:
        pp = dma_buf(q, SWS, VL16, VL16, sFP, 2048*(k-3), 'sc1')
        if role == 'P': return pp
        def f(a):
            l1 = a.label('DA'); l2 = a.label('DB')
            a(f's_cmp_lg_u32 s11, 0\ns_cbranch_scc1 {l1}')
            for g in pp: g(a)
            a(f'{l2}:')
            t = E(); t(f'{l1}:')
            for g in dma_tab(q, 24576 - 6144 + 2048*(k-3)): g(t)
            t(f's_branch {l2}'); HOT.extend(t.l)
        return [f]
    return dma_tab(q, 8192*k - 36864)

def bias_ops(acc, job): return [LD(f'ds_read_b128 {vr(acc+4*q)}, v{VBI} offset:{256*job + 32*q}', 'bias') for q in range(8)]
def bias_reads(a, acc, job):
    for q in range(8): a.lds(f'ds_read_b128 {vr(acc+4*q)}, v{VBI} offset:{256*job + 32*q}', 'bias')

def run(a, q0, npc, kind, mf, fills, nxt='tr', nextbias=None, norm=False, events=None, role=None, pause=None):
    events = events or {}
    N = 4*npc; n0 = 4*q0
    dq = []
    fs = [[ops, s, e, 0, 0, sum(c for c, _ in ops)] for ops, s, e in fills]
    for i in range(N):
        n = n0 + i; q = q0 + i//4; kk = i % 4
        j = i + PF; qn = q0 + j//4
        k2 = kind if j < N else nxt
        r = rd_ops(k2, qn, j % 4, n + PF) if k2 else []
        fb = (n % NB) * 8
        if kk == 0:
            for qq in events.get(('dma0', q), []) + [q + 12] + events.get(('dma', q), []): dq += plan(qq, role)
        paused = pause and pause[0] <= i//4 < pause[0] + pause[1]
        for h in range(2):
            gap = 2*i + h
            if h == 0 and kk == 0: stamp(a, f'q{q}')
            stamp(a, f'g{q0}_{gap}')
            for f in events.get(('pre', gap), []): f(a)
            if h == 0: a.need(('f', n), *(['bias'] if i == 0 else []), *([('f', n+1)] if Cfg.w2k and i % 2 == 0 and q < Cfg.w2k and not a.smem else []))
            acc, op, zero = mf(i//4, kk, h)
            d = vr(acc, 16) if acc >= 0 else ar(-acc, 16); c = '0' if zero else d
            if kind == 'dft': a(f'{M} {d}, {op}, {ar(fb+4*h)}, {c}')
            else:             a(f'{M} {d}, {ar(fb+4*h)}, {op}, {c}')
            if h == 0 and j % 12 == 0 and k2 and (4*q0) % 12 == 0:
                a.vneed(('d', qn), ('d', qn+1), ('d', qn+2), *events.get(('bar', qn), [])); a('s_barrier')
            if h == 0 and j == N and nextbias is not None:
                assert all(f[3] == len(f[0]) for f in fs)
                bias_reads(a, *nextbias)
            m = len(r)//2
            for ins, t in r[h*m:(h+1)*m]: a.lds(ins, t)
            if dq and not paused and ((h == 1 and (kk % 2 == 0 or len(dq) > 2)) or (len(dq) > N - i - 1)): dq.pop(0)(a)
            if norm and i//2 + 1 < 18:
                emit(a, norm_ops(i//2 + 1)[6*(gap % 4):6*(gap % 4)+6])
            for f in fs:
                if gap >= f[1]:
                    target = f[5] * min(1.0, (gap - f[1] + 1) / (f[2] - f[1]))
                    while f[3] < len(f[0]) and f[4] + f[0][f[3]][0]/2 <= target:
                        f[0][f[3]][1](a); f[4] += f[0][f[3]][0]; f[3] += 1
            for f in events.get(gap, []): f(a)
    assert all(f[3] == len(f[0]) for f in fs) and not dq
def only(bit, f):
    def g(a):
        l = a.label('ON'); brole(a, bit, l, False); s0 = a.snap()
        f(a); a(f'{l}:'); a.merge(s0, a.snap())
    return g
def masked(test, f):
    def g(a):
        a(test + '\ns_cselect_b64 exec, -1, 0'); s0 = a.snap()
        f(a); a('s_mov_b64 exec, -1'); a.merge(s0, a.snap())
    return g
def rolem(bit, f): return masked(f's_bitcmp1_b32 s{sROLE}, {bit}', f)
def rolem_ops(bit, ops, n): return [FN(rolem(bit, lambda a, x=ops[i:i+n]: emit(a, x))) for i in range(0, len(ops), n)]
def only_ops(bit, ops, n):
    return [FN(only(bit, lambda a, x=ops[i:i+n]: emit(a, x))) for i in range(0, len(ops), n)]
def first_reads(a, kind, q):
    for ks in range(PF):
        for ins, t in rd_ops(kind, q, ks, 4*q + ks): a.lds(ins, t)
def interleave(a, mf, ops, start=0):
    n = len(mf) - start; k = 0
    for i, x in enumerate(mf):
        a(x)
        if i >= start:
            t = len(ops) * (i - start + 1) // n
            while k < t: ops[k][1](a); k += 1

def twiddle_ops(dst, t, sym, sb, scale=None):
    o = [f'v_and_b32 v{t}, 31, v{VLANE}', f'v_lshrrev_b32 v{t+1}, 5, v{VLANE}']
    if sym == 'fwd':
        o += [f'v_lshlrev_b32 v{t+1}, 8, v{t+1}', f'v_add_u32 v{t+1}, s{sb}, v{t+1}', f'v_mul_u32_u24 v{t+1}, v{t+1}, v{t}', f'v_lshlrev_b32 v{t}, 6, v{t}']
        mult = lambda tt, e: 16*tt + (e & 3) + 8*(e >> 2)
    else:
        o += [f'v_lshlrev_b32 v{t}, 6, v{t}', f'v_add_u32 v{t}, s{sb}, v{t}', f'v_lshlrev_b32 v{t+1}, 3, v{t+1}', f'v_mul_u32_u24 v{t+1}, v{t+1}, v{t}']
        mult = lambda tt, e: 16*tt + e
    for tt in range(2):
        for e in range(0, 8, 2):
            for i in range(2): o.append(f'v_mad_u32_u24 v{t+2+i}, v{t}, {mult(tt, e+i)}, v{t+1}')
            for i in range(2): o.append(f'v_and_b32 v{t+2+i}, 0x7ff, v{t+2+i}')
            for i in range(2): o.append(f'v_cvt_f32_u32 v{t+2+i}, v{t+2+i}')
            for i in range(2): o.append(f'v_mul_f32 v{t+2+i}, {f2u(1/2048):#x}, v{t+2+i}')
            for i in range(2): o.append(f'v_cos_f32 v{t+4+i}, v{t+2+i}')
            for i in range(2): o.append(f'v_sin_f32 v{t+2+i}, v{t+2+i}')
            if scale:
                for i in (2,3,0,1): o.append(f'v_mul_f32 v{t+2+i}, {f2u(scale):#x}, v{t+2+i}')
            d = 4*tt + e//2
            o += [f'v_cvt_pk_bf16_f32 v{t+4}, v{t+4}, v{t+5}', f'v_cvt_pk_bf16_f32 v{t+2}, v{t+2}, v{t+3}', f'v_accvgpr_write_b32 a{dst+d}, v{t+4}',
                  f'v_xor_b32 v{t+3}, 0x80008000, v{t+2}', f'v_accvgpr_write_b32 a{dst+8+d}, v{t+2}', f'v_accvgpr_write_b32 a{dst+16+d}, v{t+3}']
    return [V(x) for x in o]

def prologue(a):
    rx = Cfg.rx; cx = 32//rx; nxc = 16//cx
    a(f"""s_cmpk_ge_u32 s2, 256
    s_cbranch_scc1 L_end
    s_load_dwordx16 s[44:59], s[0:1], 0
    s_load_dwordx4 s[60:63], s[0:1], 64
    s_load_dwordx2 s[64:65], s[0:1], 80
    s_memrealtime s[66:67]""")
    stamp(a, 0)
    a(f"""s_getpc_b64 s[100:101]
    L_pcref:
    s_lshr_b32 s97, s2, 3
    s_mul_i32 s97, s97, CODE_LINES*128
    v_lshlrev_b32 v{VPO}, 7, v0
    v_add_u32 v{VPO}, s97, v{VPO}
    v_min_u32 v{VPO}, L_codeend-L_pcref-4, v{VPO}
    v_mov_b32 v{VPO+1}, 0
    v_lshl_add_u64 {vr(VPO,2)}, s[100:101], 0, {vr(VPO,2)}
    v_cmp_gt_u32 vcc, CODE_LINES, v0
    s_and_saveexec_b64 s[98:99], vcc
    s_cbranch_execz L_noct
    global_load_dword a255, {vr(VPO,2)}, off
    L_noct:
    s_mov_b64 exec, -1
    s_and_b32 s96, s2, 7
    s_lshr_b32 s97, s2, 3
    s_and_b32 s{sC}, s96, {nxc-1}
    s_mul_i32 s{sC}, s{sC}, {cx}
    s_and_b32 s98, s97, {cx-1}
    s_add_u32 s{sC}, s{sC}, s98
    s_lshr_b32 s{sI}, s96, {nxc.bit_length()-1}
    s_mul_i32 s{sI}, s{sI}, {rx}
    s_lshr_b32 s98, s97, {cx.bit_length()-1}
    s_add_u32 s{sI}, s{sI}, s98
    v_lshrrev_b32 v1, 6, v0
    v_and_b32 v{VLANE}, 63, v0
    v_mov_b32 v{VTT}, v0
    v_readfirstlane_b32 s{sWV}, v1
    v_lshlrev_b32 v{VL16}, 4, v{VLANE}
    v_lshrrev_b32 v1, 3, v{VLANE}
    v_and_b32 v3, 7, v{VLANE}
    v_lshrrev_b32 v4, 1, v1
    v_xor_b32 v3, v3, v4
    s_mov_b32 s96, 73728
    v_mul_lo_u32 v1, v1, s96
    v_lshl_add_u32 v144, v3, 4, v1
    v_xor_b32 v145, 64, v144
    v_add_u32 v145, {8*73728-1024}, v145
    v_add_u32 v146, {16*73728}, v144
    v_add_u32 v147, {16*73728}, v145
    s_lshl_b32 s{sB}, s{sI}, 2
    s_add_u32 s{sB}, s{sB}, s{sWV}
    s_mul_i32 s96, s{sI}, {Cfg.rota}
    s_lshr_b32 s97, s{sC}, {Cfg.rots}
    s_mul_i32 s97, s97, {Cfg.rotb}
    s_add_u32 s96, s96, s97
    s_mul_i32 s97, s96, 7282
    s_lshr_b32 s97, s97, 16
    s_mul_i32 s97, s97, 9
    s_sub_u32 s96, s96, s97         ; rot
    s_mul_i32 s3, s{sB}, 1152
    s_lshl_b32 s99, s{sWV}, 11
    s_getpc_b64 s[100:101]
    s_add_u32 s100, s100, tabF@rel32@lo+4
    s_addc_u32 s101, s101, tabF@rel32@hi+12
    s_mov_b32 s{SX+2}, {2048*1152}
    s_mov_b32 s{SX+3}, 0x20000
    s_lshl_b32 s{sT}, s96, 7
    s_add_u32 s{sT}, s{sT}, s3
    s_mov_b32 m0, s99
    s_waitcnt lgkmcnt(0)
    s_mov_b32 s{SX}, s44
    s_and_b32 s{SX+1}, s45, 0xffff""")
    stamp(a, 'ka')
    if Cfg.wt:
        a(f'''s_lshr_b32 s97, s{sC}, 1
        s_add_u32 s98, s97, s{sI}
        s_and_b32 s98, s98, 7
        s_bitcmp1_b32 s{sC}, 0
        s_cselect_b32 s98, s98, 0
        s_cmp_lt_u32 s98, 5
        s_cbranch_scc1 L_nowt
        s_sub_u32 s98, s98, 5
        s_lshl_b32 s70, s98, 6
        s_add_u32 s70, s70, s{sB}
        s_lshl_b32 s98, s98, 2
        s_add_u32 s98, s98, s{sWV}
        s_mul_i32 s98, s98, {48*9216}
        s_mul_i32 s97, s97, 1152
        s_add_u32 s98, s98, s97
        v_mul_u32_u24 v3, 9216, v{VLANE}
        v_add_u32 v3, s98, v3
        s_mul_i32 s70, s70, {15*128}
        v_lshlrev_b32 v{VPO}, 7, v{VLANE}
        v_add_u32 v{VPO}, s70, v{VPO}
        v_mov_b32 v{VPO+1}, 0
        v_lshl_add_u64 {vr(VPO,2)}, s[100:101], 0, {vr(VPO,2)}
        v_lshlrev_b32 v1, 21, v{VLANE}
        s_bfm_b64 exec, 48, 0
        global_load_dword a255, v3, s[52:53]
        s_bfm_b64 exec, 15, 0
        global_load_dword a255, {vr(VPO,2)}, off
        s_mov_b64 exec, 7
        global_load_dword a255, v1, s[56:57]
        s_mov_b64 exec, 1''')
        for r in (54, 58, 46, 48, 62): a(f'global_load_dword a255, v1, s[{r}:{r+1}] offset:128')
        a(f'''s_mov_b64 exec, -1
        s_lshr_b32 s97, s{sC}, 1
        s_add_u32 s98, s97, s{sI}
        s_and_b32 s98, s98, 7
        s_sub_u32 s98, s98, 5
        s_and_b32 s97, s97, 1
        s_mul_i32 s97, s97, 3
        s_add_u32 s98, s98, s97
        s_lshl_b32 s98, s98, 2
        s_add_u32 s98, s98, s{sWV}
        s_mul_i32 s98, s98, {Cfg.tn*128}
        s_lshr_b32 s97, s{sI}, 3
        s_mul_i32 s97, s97, {5184*128}
        s_add_u32 s98, s98, s97
        s_lshr_b32 s97, s{sC}, 2
        s_mul_i32 s97, s97, {2*5184*128}
        s_add_u32 s98, s98, s97
        v_lshlrev_b32 v3, 7, v{VLANE}
        v_add_u32 v3, s98, v3
        s_bfm_b64 exec, 54, 0''')
        for k in range(Cfg.te): a(f'global_load_dword a255, v3, s[56:57]\nv_add_u32 v3, {54*128}, v3')
        a('s_mov_b64 exec, -1\nL_nowt:')
    for o in range(4):
        if o == 2: a('s_add_u32 m0, s99, 8192\ns_nop 0')
        a.vm(f'buffer_load_dwordx4 v{144+o}, {S(SX)}, s{sT} offen offset:{1024*(o%2)} lds', ('x', 0))
    a(f's_add_u32 s97, s96, 1\ns_cmp_eq_u32 s97, 9\ns_cselect_b32 s97, 0, s97\ns_lshl_b32 s{sT}, s97, 7\ns_add_u32 s{sT}, s{sT}, s3')
    for o in range(4):
        if o % 2 == 0: a(f's_add_u32 m0, s99, {16384 + 8192*(o//2)}\ns_nop 0')
        a.vm(f'buffer_load_dwordx4 v{144+o}, {S(SX)}, s{sT} offen offset:{1024*(o%2)} lds', ('x', 1))
    srd(a, SDBG, 62, 256); srd(a, SWS, 64, WS_SZ)
    srd(a, SWR, 46, 2048*578); srd(a, SWI, 48, 2048*578); srd(a, SW1, 52, 576*9216); srd(a, SB, 54, 9216)
    srd(a, SW2, 56, 4608*1152); srd(a, SOUT, 60, 2048*1152)
    a(f's_mov_b64 s[0:1], s[58:59]\ns_mov_b32 s{sW2K}, s99')
    XV = 144
    def xline(L):
        a(f's_lshl_b32 s{sT}, s{sO2+L}, 7\ns_add_u32 s{sT}, s{sT}, s3')
        for o in range(4):
            if o % 2 == 0: a(f's_add_u32 m0, s{sW2K}, {16384*L + 8192*(o//2)}\ns_nop 0')
            a.vm(f'buffer_load_dwordx4 v{XV+o}, {S(SX)}, s{sT} offen offset:{1024*(o%2)} lds', ('x', L))
    for L in range(9):
        a(f's_mov_b32 s{sO2+L}, s96')
        if 1 < L < Cfg.xa: xline(L)
        if L < 8: a('s_add_u32 s96, s96, 1\ns_cmp_eq_u32 s96, 9\ns_cselect_b32 s96, 0, s96')
    stamp(a, 'xi')
    nx = [Cfg.xa, 0]
    def xnext():
        if nx[1] < Cfg.xe: xline(nx[0]); nx[0] += 1; nx[1] += 1
    a(f'''s_or_b32 s66, s66, 1
    s_add_u32 s97, s2, s{sWV}
    s_cmp_lg_u32 s97, 0
    s_cbranch_scc1 L_nonon
    v_mov_b32 v1, s66
    s_mov_b64 exec, 1
    buffer_store_dword v1, off, {S(SDBG)}, 0 sc1
    s_mov_b64 exec, -1
    L_nonon:
    s_lshr_b32 s96, s{sC}, 1            ; p
    s_mul_i32 s{sNON}, s{sI}, {Cfg.rr}
    s_add_u32 s{sNON}, s{sNON}, s96
    s_and_b32 s{sNON}, s{sNON}, 7       ; rho
    s_and_b32 s{sROLE}, s{sC}, 1
    s_cmp_lt_u32 s{sNON}, 5
    s_cselect_b32 s97, s{sROLE}, 0
    s_lshl_b32 s97, s97, {R_DFT}
    s_xor_b32 s98, s{sROLE}, 1
    s_cmp_lt_u32 s{sNON}, 6
    s_cselect_b32 s98, s98, 0
    s_cmp_lt_u32 s{sWV}, 3
    s_cselect_b32 s99, {(1<<R_SMID)|(1<<R_UNIT)}, {1<<R_SMID}
    s_mul_i32 s98, s98, s99
    s_cselect_b32 s99, {(1<<R_FIN)|(1<<R_FINW)}, {1<<R_FIN}
    s_or_b32 s97, s97, s98
    s_and_b32 s98, s{sC}, 3
    s_cmp_lg_u32 s98, 2
    s_cselect_b32 s99, s99, 0
    s_or_b32 s97, s97, s99
    s_lshl_b32 s98, s{sROLE}, 8
    s_or_b32 s{sROLE}, s{sROLE}, s97
    s_lshl_b32 s97, s{sNON}, 8
    s_or_b32 s{sROLE}, s{sROLE}, s97
    s_mul_i32 s97, s96, 576
    s_add_u32 s97, s97, s98                ; f_base
    v_add_u32 v1, s97, v{VTT}
    v_lshlrev_b32 v1, 1, v1''')
    a(f'v_mov_b32 v{HO+15}, v1\nv_lshlrev_b32 v{HO+11}, 2, v{VTT}')
    if not Cfg.xo: xnext()
    def bloads():
        a.vm(f'buffer_load_ushort v{ACC[1]+12}, v{HO+15}, {S(SB)}, 0 offen', 'b1')
        a.vm(f'buffer_load_ushort v{ACC[1]+13}, v{HO+15}, {S(SB)}, 0 offen offset:512', 'b1')
        a(f's_mov_b32 s{SB}, s0\ns_and_b32 s{SB+1}, s1, 0xffff\ns_mov_b32 s{SB+2}, 1152\ns_lshl_b32 s98, s{sWV}, 8\ns_add_u32 m0, s98, {B2_LDS}\ns_nop 0')
        a.vm(f'buffer_load_dword v{HO+11}, {S(SB)}, 0 offen lds', 'b1')
        a.vm(f'buffer_load_dword v{HO+11}, {S(SB)}, 0 offen offset:1024 lds', 'b1')
        a(f's_mov_b32 s35, s{sNON}')
    a(f'''v_lshlrev_b32 v{ACC[1]+14}, 2, v{VTT}
    v_add_u32 v{ACC[1]+14}, {BIAS_LDS}, v{ACC[1]+14}
    s_mul_i32 s{sHS}, s{sB}, 288
    s_lshr_b32 s98, s97, 4
    s_add_u32 s{sHS}, s{sHS}, s98
    s_lshl_b32 s{sHS}, s{sHS}, 10
    s_lshl_b32 s97, s97, 1''')
    for g in range(9): a(f's_mul_i32 s{sO1+g}, s{sO2+g}, {64*9216}\ns_add_u32 s{sO1+g}, s{sO1+g}, s97')
    a(f's_mul_i32 s{sPS}, s{sNON}, 73728')
    a(f'''v_add_u32 v{VTB}, s{sW2K}, v{VL16}
    v_mov_b32 v{VTB+1}, 0
    v_lshl_add_u64 {vr(VTB,2)}, s[100:101], 0, {vr(VTB,2)}
    s_mov_b32 s{sX0+1}, 0
    s_lshl_b32 s{sFLG}, s{sB}, 4
    s_add_u32 s{sFLG}, s{sFLG}, s{sC}
    s_lshl_b32 s{sFLG}, s{sFLG}, 7
    s_add_u32 s{sFLG}, s{sFLG}, {FL_OFF}
    s_mov_b32 s{sP}, {Cfg.spin}
    s_mov_b32 s{sGC1}, {(h2(GC1) if Cfg.f16 else f2u(GC1)):#x}
    v_mov_b32 v{VC0}, {(h2(GC0) if Cfg.f16 else f2u(GC0)):#x}
    v_bfe_u32 v1, v{VLANE}, 3, 2            ; r
    v_lshrrev_b32 v3, 5, v{VLANE}           ; rho
    v_and_b32 v{VB1}, 2, v1
    v_lshlrev_b32 v{VB1}, 1, v{VB1}
    v_and_b32 v{VB2}, 7, v{VLANE}
    v_xor_b32 v{VB2}, v{VB2}, v{VB1}
    v_lshlrev_b32 v{VB2}, 4, v{VB2}
    v_lshl_add_u32 v1, v3, 3, v1            ; 8rho+r
    s_lshr_b32 s98, s{sWV}, 1
    s_lshl_b32 s98, s98, 5
    s_and_b32 s99, s{sWV}, 1
    s_add_u32 s98, s98, s99
    v_lshlrev_b32 v3, 1, v1
    v_add_u32 v3, s98, v3
    v_mul_u32_u24 v3, 9216, v3
    v_add_u32 v{VA1}, v3, v{VB2}
    v_add_u32 v{VB1}, {8*9216-1024}, v{VA1}
    s_lshl_b32 s98, s{sWV}, 4
    v_add_u32 v1, s98, v1
    v_mul_u32_u24 v1, 1152, v1
    v_add_u32 v{VA2}, v1, v{VB2}
    v_add_u32 v{VB2}, {4*1152-1024}, v{VA2}''')
    if not Cfg.xo: xnext()
    a(f'''v_lshrrev_b32 v1, 5, v{VLANE}
    v_lshlrev_b32 v{VBI}, 4, v1
    v_add_u32 v{VBI}, {BIAS_LDS}, v{VBI}
    v_bfe_u32 v3, v{VLANE}, 2, 2
    v_lshl_add_u32 v1, v1, 3, v3
    v_lshlrev_b32 v1, 7, v1
    v_and_b32 v3, 2, v3
    v_lshl_add_u32 v1, v3, 5, v1
    v_bfe_u32 v3, v{VLANE}, 4, 1
    v_lshl_add_u32 v1, v3, 5, v1
    v_and_b32 v3, 3, v{VLANE}
    v_lshl_add_u32 v{TA}, v3, 3, v1
    v_xor_b32 v{TA+1}, 64, v{TA}
    v_add_u32 v{TA+2}, 49152, v{TA}
    v_add_u32 v{TA+3}, 49152, v{TA+1}
    v_add_u32 v{TA+4}, 98304, v{TA}
    v_add_u32 v{TA+5}, 98304, v{TA+1}''')
    if not Cfg.xo: xnext()
    XA = HO
    a(f'''v_and_b32 v1, 15, v{VLANE}
    v_lshlrev_b32 v1, 7, v1
    v_bfe_u32 v3, v{VLANE}, 4, 1
    v_lshl_add_u32 v1, v3, 13, v1
    v_add_u32 v1, s{sW2K}, v1
    v_lshrrev_b32 v3, 5, v{VLANE}
    v_bfe_u32 v{XA}, v{VLANE}, 1, 3
    v_xor_b32 v3, v3, v{XA}
    v_lshl_add_u32 v{XA}, v3, 4, v1
    v_xor_b32 v{XA+1}, 32, v{XA}
    v_xor_b32 v{XA+2}, 64, v{XA}
    v_xor_b32 v{XA+3}, 96, v{XA}
    s_mov_b32 s{sT2}, 0x3f803f80''')
    smid_ids(a)
    a(f'''s_add_u32 s98, s96, s{sWV}
    s_cmp_eq_u32 s98, 4
    s_cselect_b32 s{sNON}, {1<<R_PATCH}, 0
    s_bitcmp1_b32 s{sROLE}, {R_UNIT}
    s_cselect_b32 s{sNON}, s{sNON}, 0
    s_or_b32 s{sROLE}, s{sROLE}, s{sNON}
    s_cmp_lt_u32 s98, 5
    s_cselect_b32 s{sNON}, 2, 0
    s_lshl_b32 s98, s98, 6
    s_add_u32 s{sNON}, s{sNON}, s98
    s_mul_i32 s99, s99, 578
    s_add_u32 s{sNON}, s{sNON}, s99
    v_lshrrev_b32 v3, 2, v{VLANE}
    v_mul_u32_u24 v3, 18496, v3
    v_and_b32 v1, 3, v{VLANE}
    v_lshl_add_u32 v3, v1, 4, v3''')
    a(f'''s_lshr_b32 s98, s2, 3
    s_lshl_b32 s98, s98, 2
    s_add_u32 s98, s98, s{sWV}
    s_lshr_b32 s99, s98, 1
    s_mul_i32 s99, s99, {9*9216}
    s_and_b32 s98, s98, 1
    s_mul_i32 s98, s98, 1152
    s_add_u32 s99, s99, s98
    s_and_b32 s98, s{sC}, {16-cx}
    s_mul_i32 s98, s98, 576
    s_add_u32 s99, s99, s98
    v_mul_u32_u24 v1, 43, v{VLANE}
    v_lshrrev_b32 v1, 8, v1
    v_mul_u32_u24 v{VPO}, 6, v1
    v_sub_u32 v{VPO}, v{VLANE}, v{VPO}
    v_add_u32 v{VPO+1}, 1, v{VPO}
    v_lshrrev_b32 v{VPO+1}, 2, v{VPO+1}
    v_add3_u32 v{VPO}, v{VPO}, v{VPO+1}, 2
    v_mul_u32_u24 v1, 9216, v1
    v_lshl_add_u32 v1, v{VPO}, 7, v1
    v_add_u32 v{VPO}, s99, v1''')
    xearly_addr(a)
    for i in range(8): a(f'v_mov_b32 v{TMP+i}, 0')
    def stats(L):
        for q in range(4):
            a.need(('x', 4*L+q))
            for i in range(4):
                r = XF + 16*L + 4*q + i
                a(f'v_dot2c_f32_bf16 v{TMP+i}, s{sT2}, v{r}\nv_dot2c_f32_bf16 v{TMP+4+i}, v{r}, v{r}')
    def first_piece(q):
        if q < 9: return dma_alt(R_ODD, dma_alt(R_DFT, dma_tab(q, sreg=sO2+q), None), w1p(q))
        return w1p(q)
    stamp(a, 'w0')
    if Cfg.warm:
        brole(a, R_ODD, 'L_wo')
        a('; WARM 1\ns_branch L_main\nL_wo:\n; WARM 2')
    a('s_branch L_main\n.p2align 12\nL_main:')
    npc0 = 0
    if Cfg.xo:
        while nx[1] < Cfg.xe: xnext()
    for L in range(10):
        if L < 9:
            stamp(a, f'xa{L}')
            a.vneed(('x', L))
            stamp(a, f'xb{L}')
            if L in (4, 8):
                for q in range(4): a(f'v_add_u32 v{XA+q}, 0x10000, v{XA+q}')
            for q in range(4): a.lds(f'ds_read_b128 {vr(XF+16*L+4*q)}, v{XA+q} offset:{16384*(L%4)}', ('x', 4*L+q))
        if L == 9: stamp(a, 1)
        if nx[0] < 9:
            xline(nx[0]); nx[0] += 1
            if nx[0] == 9: bloads()
        elif L >= Cfg.fp0 and npc0 < 2*Cfg.fp:
            qs = (npc0, npc0+1)
            dma_alt(R_ODD, dma_alt(R_DFT, [f for q in qs for f in dma_tab(q, sreg=sO2+q)], None), [f for q in qs for f in w1p(q)])[0](a)
            npc0 += 2
        if L == Cfg.xl: only(R_FINW, xearly)(a)
        if L: stats(L-1)
    rest = [FN(f) for q in range(npc0, Cfg.np) for f in first_piece(q)]
    rest += [VM(f'buffer_load_dword v{VFL}, off, {S(SDBG)}, 0 sc1', 'non')]
    T = TMP
    a(f'''s_nop 2
    v_add_f32 v{T}, v{T}, v{T+1}
    v_add_f32 v{T+2}, v{T+2}, v{T+3}
    v_add_f32 v{T+4}, v{T+4}, v{T+5}
    v_add_f32 v{T+6}, v{T+6}, v{T+7}
    v_add_f32 v{T}, v{T}, v{T+2}
    v_add_f32 v{T+4}, v{T+4}, v{T+6}
    v_mov_b32 v{T+1}, v{T}
    v_mov_b32 v{T+5}, v{T+4}
    s_nop 1
    v_permlane32_swap_b32 v{T}, v{T+1}
    v_permlane32_swap_b32 v{T+4}, v{T+5}
    s_nop 0
    v_add_f32 v{T}, v{T}, v{T+1}
    v_add_f32 v{T+4}, v{T+4}, v{T+5}
    v_mul_f32 v{T}, {f2u(1/576):#x}, v{T}
    v_mul_f32 v{T+4}, {f2u(1/576):#x}, v{T+4}
    v_fma_f32 v{T+4}, -v{T}, v{T}, v{T+4}
    v_max_f32 v{T+4}, 0, v{T+4}
    v_cvt_pk_bf16_f32 v{T}, v{T}, v{T+4}
    v_and_b32 v{T+4}, 0xffff0000, v{T}
    v_lshlrev_b32 v{T}, 16, v{T}
    v_add_f32 v{T+4}, {f2u(1e-5):#x}, v{T+4}
    v_cvt_pk_bf16_f32 v{T+4}, v{T+4}, v{T+4}
    v_and_b32 v{T+4}, 0xffff0000, v{T+4}
    v_sqrt_f32 v{T+4}, v{T+4}
    s_nop 0
    v_cvt_pk_bf16_f32 v{T+4}, v{T+4}, v{T+4}
    v_and_b32 v{T+4}, 0xffff0000, v{T+4}
    v_rcp_f32 v{T+4}, v{T+4}
    s_nop 0
    v_cvt_pk_bf16_f32 v{T+4}, v{T+4}, v{T+4}
    v_and_b32 v{T+5}, 0xffff0000, v{T+4}
    v_lshrrev_b32 v{T+4}, 16, v{T+4}
    v_mul_f32 v{T}, v{T}, v{T+5}
    v_sub_f32 v{T}, 0, v{T}''')
    if Cfg.tn < 216:
        tall = w2touch(0, Cfg.tn*24, -(-(5184 - Cfg.tn*24)//(64 if Cfg.be else 128)), Cfg.be)
        rest.append(FN(tall))
    def w1all(a):
        if Cfg.j1:
            a(f'v_subrev_u32 v{VPO+1}, 128, v{VPO}\ns_mov_b32 exec_lo, 0x49249249\ns_mov_b32 exec_hi, 0x92492')
            a.vm(f'buffer_load_dword a255, v{VPO+1}, {S(SW1)}, 0 offen')
        a('s_bfm_b64 exec, 54, 0')
        a.vm(f'buffer_load_dword a255, v{VPO}, {S(SW1)}, 0 offen')
        a('s_mov_b64 exec, -1')
    if Cfg.tw1: rest.insert(len(rest) - (1 if Cfg.tn < 216 else 0), FN(w1all))
    def wall(a):
        if Cfg.be:
            a(f'''s_lshr_b32 s69, s2, 4
            s_lshl_b32 s69, s69, 3
            s_and_b32 s3, s2, 7
            s_add_u32 s69, s69, s3
            s_lshl_b32 s69, s69, 2
            s_add_u32 s69, s69, s{sWV}
            s_min_u32 s69, s69, 486
            s_mul_i32 s69, s69, {19*128}
            v_lshlrev_b32 v{VTT}, 7, v{VLANE}
            s_bitcmp1_b32 s{sWV}, 0
            s_mov_b64 exec, 0x7ffff''')
            a(f'buffer_load_dword a255, v{VTT}, {S(SWR)}, s69 offen')
        else:
            a(f'''s_lshl_b32 s69, s2, 1
            s_lshr_b32 s3, s{sWV}, 1
            s_add_u32 s69, s69, s3
            s_min_u32 s69, s69, 486
            s_mul_i32 s69, s69, {19*128}
            v_lshlrev_b32 v{VTT}, 7, v{VLANE}
            s_bitcmp1_b32 s{sWV}, 0
            s_cselect_b64 exec, 0x7ffff, 0''')
            a(f'buffer_load_dword a255, v{VTT}, {S(SWR)}, s69 offen')
            a('s_cselect_b64 exec, 0, 0x7ffff')
        a.vm(f'buffer_load_dword a255, v{VTT}, {S(SWI)}, s69 offen')
        a('s_mov_b64 exec, -1')
    rest.insert(len(rest) - (1 if Cfg.tn < 216 else 0), FN(wall))
    if Cfg.normin:
        emit(a, rest); emit(a, norm_ops(0))
    else:
        stamp(a, 'n0')
        a('.p2align 3')
        rest = [FN(lambda a, f=f: (f(a), a('.p2align 3'))) for _, f in rest]
        nt = 1 + (1 if Cfg.tn < 216 else 0) + (1 if Cfg.tw1 else 0)
        tch = rest[-nt:]; rest = rest[:-nt]
        global BATCH2
        BATCH2 = []
        if Cfg.b2: BATCH2 = [wall] + ([tall] if Cfg.tn < 216 else []); tch = tch[:1]
        global B2PRE, B2FIRE
        t = E(); tall(t); k = [x.strip().startswith('s_bfm') for x in t.l].index(True)
        fix = lambda L: '\n'.join(L).replace('s3,', 's0,').replace('s3 ', 's0 ').replace('s96', 's1')
        B2PRE = sops(fix(t.l[:k])); f1 = fix(t.l[k:])
        t = E(); wall(t); k = [x.strip().startswith('s_bitcmp') for x in t.l].index(True)
        B2PRE += sops('\n'.join(t.l[:k])); f2 = '\n'.join(t.l[k:])
        B2FIRE = [lambda a: (a(f2), a.vm('s_nop 0'), a(f1), a.vm('s_nop 0'))]
        N = [o for u in range(18) for o in norm_ops(u)]
        k1 = len(N)*Cfg.t1//100; k2 = len(N)*Cfg.t2//100; ne = 2*Cfg.ne
        global NLAST
        NLAST = [V('.p2align 3')] + N[len(N)-24*Cfg.nl:]; N = N[:len(N)-24*Cfg.nl]
        emit(a, mix(N[:k1], rest[:ne] + tch) + N[k1:-24])
        stamp(a, 'nb')
        a.vneed('b1')
        a(f'v_lshlrev_b32 v{ACC[1]+12}, 16, v{ACC[1]+12}\nv_lshlrev_b32 v{ACC[1]+13}, 16, v{ACC[1]+13}')
        a.lds(f'ds_write_b32 v{ACC[1]+14}, v{ACC[1]+12}', 'bw'); a.lds(f'ds_write_b32 v{ACC[1]+14}, v{ACC[1]+13} offset:1024', 'bw')
        a('.p2align 3'); emit(a, N[-24:])
def late_setup():
    a = E()
    a(f'''s_lshr_b32 s96, s{sC}, 1
    s_and_b32 s98, s{sC}, 1
    s_mul_i32 s{sO2}, s96, {576*1152}
    s_lshl_b32 s99, s98, 8
    s_add_u32 s{sO2}, s{sO2}, s99
    s_mul_i32 s99, s98, {256*1152}''')
    for g in range(1, 9):
        a(f's_add_u32 s{sO2+g}, s{sO2}, {64*1152*g}\ns_{"add" if g < 5 else "sub"}_u32 s{sO2+g}, s{sO2+g}, s99')
    a(f'''s_mul_i32 s{sPS}, s{sB}, 18
    s_lshl_b32 s98, s98, 2
    s_add_u32 s{sPS}, s{sPS}, s98
    s_lshl_b32 s{sPS}, s{sPS}, 3
    s_add_u32 s{sPS}, s{sPS}, s96
    s_lshl_b32 s{sPS}, s{sPS}, 11
    s_add_u32 s{sPS}, s{sPS}, {PART_OFF}
    s_and_b32 s98, s{sC}, 1
    s_mul_i32 s32, s{sB}, 288
    s_mul_i32 s99, s96, 36
    s_add_u32 s32, s32, s99
    s_lshl_b32 s32, s32, 10
    s_lshl_b32 s99, s98, 14
    s_sub_u32 s33, s32, s99
    s_xor_b32 s34, s{sFLG}, 128''')
    return sops('\n'.join(a.l))
def w2touch(other, first, per, sub=0):
    def f(a):
        a(f"""s_lshr_b32 s3, s2, {3+sub}
        s_lshl_b32 s3, s3, 2
        s_add_u32 s3, s3, s{sWV}
        s_mul_i32 s3, s3, {per*128}
        s_lshr_b32 s96, s{sI}, 3
        s_xor_b32 s96, s96, {other}
        s_mul_i32 s96, s96, {5184*128}
        s_add_u32 s3, s3, s96
        s_lshr_b32 s96, s{sC}, 2
        s_mul_i32 s96, s96, {2*5184*128}
        s_add_u32 s3, s3, s96
        s_add_u32 s3, s3, {first*128}
        v_lshlrev_b32 v{VTT}, 7, v{VLANE}
        s_bfm_b64 exec, {per}, 0""")
        a.vm(f'buffer_load_dword a255, v{VTT}, {S(SW2)}, s3 offen')
        a('s_mov_b64 exec, -1')
    return f
def tabtouch(a):
    a(f"""s_lshr_b32 s96, s2, 3
    s_lshl_b32 s96, s96, 2
    s_add_u32 s96, s96, s{sWV}
    s_min_u32 s96, s96, 125
    s_mul_i32 s96, s96, {22*128}
    s_add_u32 s96, s96, {TABF_SZ}
    s_sub_u32 s96, s96, s{sW2K}
    v_mul_u32_u24 v{VTT}, 112, v{VLANE}
    v_mov_b32 v{VTT+1}, 0
    v_lshl_add_u64 {vr(VTT,2)}, {vr(VTT,2)}, 0, {vr(VTB,2)}
    v_lshl_add_u64 {vr(VTT,2)}, s[96:97], 0, {vr(VTT,2)}
    s_bfm_b64 exec, 22, 0""")
    a.vm(f'global_load_dword a255, {vr(VTT,2)}, off')
    a('s_mov_b64 exec, -1')
def codetouch(a):
    if not Cfg.ct: return
    l = a.label('CT')
    a(f"""s_getpc_b64 s[100:101]
    {l}:
    s_lshr_b32 s3, s2, 3
    s_lshl_b32 s3, s3, 2
    s_add_u32 s3, s3, s{sWV}
    s_lshl_b32 s3, s3, 8
    v_lshlrev_b32 v{VTT}, 7, v{VLANE}
    v_add_u32 v{VTT}, s3, v{VTT}
    v_min_u32 v{VTT}, L_codeend-L_s9-4, v{VTT}
    v_add_u32 v{VTT}, L_s9-{l}, v{VTT}
    v_mov_b32 v{VTT+1}, 0
    v_lshl_add_u64 {vr(VTT,2)}, s[100:101], 0, {vr(VTT,2)}
    s_mov_b64 exec, 3""")
    a.vm(f'global_load_dword a252, {vr(VTT,2)}, off')
    a('s_mov_b64 exec, -1')
def smid_ids(a):
    a(f'''s_bfe_u32 s96, s{sROLE}, 0x30008
    s_cmp_ge_u32 s96, 3
    s_cselect_b32 s98, 1, 0
    s_lshl_b32 s99, s{sI}, 1
    s_add_u32 s99, s99, s98
    s_mul_i32 s98, s98, 3
    s_sub_u32 s96, s96, s98
    s_mul_i32 s96, s96, 3''')
WA = 216
PSR = 20
def wload(k):
    def f(a):
        a(f's_add_u32 s3, s35, {16*18496*(k//2)}')
        a.vm(f'buffer_load_dwordx4 {ar(WA+4*k)}, v3, {S(SWI if k % 2 else SWR)}, s3 offen {NT(8)}', 'wl')
    return f
def wpatch(a):
    a(f'v_mul_u32_u24 v1, 18496, v{VLANE}')
    a.vm(f'buffer_load_ushort a253, v1, {S(SWR)}, s35 offen offset:{576-258}', 'wl')
    a.vm(f'buffer_load_ushort a254, v1, {S(SWI)}, s35 offen offset:{576-258}', 'wl')

def touch_ops():
    o = [V(f"""s_bfe_u32 s98, s{sROLE}, 0x30008
    s_sub_u32 s98, s98, 5
    s_lshl_b32 s98, s98, 6
    s_add_u32 s98, s98, s{sB}
    s_bfe_u32 s99, s{sROLE}, 0x30008
    s_sub_u32 s99, s99, 5
    s_bfe_u32 s96, s{sC}, 0x10001
    s_mul_i32 s96, s96, 3
    s_add_u32 s99, s99, s96
    s_lshl_b32 s99, s99, 2
    s_add_u32 s99, s99, s{sWV}
    s_mul_i32 s99, s99, {Cfg.tn*128}
    s_lshr_b32 s96, s{sI}, 3
    s_mul_i32 s96, s96, {5184*128}
    s_add_u32 s99, s99, s96
    s_lshr_b32 s96, s{sC}, 2
    s_mul_i32 s96, s96, {2*5184*128}
    s_add_u32 s99, s99, s96
    v_lshlrev_b32 v1, 7, v{VLANE}""")]
    for k in range(Cfg.tn//54):
        if k < Cfg.te: o.append(V(f's_add_u32 s99, s99, {54*128}')); continue
        def f(a, k=k):
            a('s_bfm_b64 exec, 54, 0')
            a.vm(f'buffer_load_dword a255, v1, {S(SW2)}, s99 offen')
            a(f's_mov_b64 exec, -1\ns_add_u32 s99, s99, {54*128}')
        o.append(FN(f))
    def g(a):
        a(f"""s_mul_i32 s99, s98, {15*128}
        s_add_u32 s99, s99, {TABF_SZ}
        v_add_u32 v{VTT}, s99, v1
        v_min_u32 v{VTT}, {TABF_SZ+TABG_SZ+TAB64_SZ-4}, v{VTT}
        v_mov_b32 v{VTT+1}, 0
        v_lshl_add_u64 {vr(VTT,2)}, s[100:101], 0, {vr(VTT,2)}
        s_bfm_b64 exec, 15, 0""")
        a.vm(f'global_load_dword a255, {vr(VTT,2)}, off')
        a('s_mov_b64 exec, -1')
    return o + [FN(g)]

def getnonce(a):
    lc = a.label('NC'); ls = a.label('NS'); lk = a.label('NK')
    a.vneed('non')
    a(f'{lc}:\nv_readfirstlane_b32 s{sNON}, v{VFL}\ns_nop 3\ns_cmp_eq_u32 s{sNON}, 0\ns_cbranch_scc1 {ls}\n{lk}:')
    a.ool += [f'{ls}:', f' s_sub_u32 s{sP}, s{sP}, 1', f' s_cbranch_scc1 {ls}_x', f' s_sleep {Cfg.slp}', f' buffer_load_dword v{VFL}, off, {S(SDBG)}, 0 sc1', ' s_waitcnt vmcnt(0)', f' s_branch {lc}',
              f'{ls}_x:', f' s_mov_b32 s{sP}, 0', f' s_branch {lk}']

def xpose_setup(a, vw, vrd, vg, base_imm, rowstride, flip=None):
    a(f"""v_and_b32 v{vw}, 15, v{VLANE}
    v_lshlrev_b32 v{vw}, 7, v{vw}
    v_bfe_u32 v{vrd}, v{VLANE}, 4, 1
    v_lshl_add_u32 v{vw}, v{vrd}, 13, v{vw}
    v_lshrrev_b32 v{vrd}, 5, v{VLANE}
    v_lshlrev_b32 v{vrd}, 2, v{vrd}
    v_and_b32 v{vg}, 7, v{VLANE}
    v_xor_b32 v{vrd}, v{vrd}, v{vg}
    v_lshl_add_u32 v{vw}, v{vrd}, 4, v{vw}
    s_add_u32 s98, s{sW2K}, {base_imm}
    v_add_u32 v{vw}, s98, v{vw}
    v_lshrrev_b32 v{vrd}, 3, v{VLANE}
    v_mul_u32_u24 v{VTT}, {rowstride}, v{vrd}
    v_lshl_add_u32 v{vg}, v{vg}, 4, v{VTT}
    v_lshlrev_b32 v{vrd}, 4, v{vrd}
    v_xor_b32 v{vrd}, v{vrd}, v{VL16}
    v_add_u32 v{vrd}, s98, v{vrd}""")
def xpose_w(src, q, vw, flip=0):
    x = (16*q) ^ flip
    if x == 0: return [LD(f'ds_write_b128 v{vw}, {vr(src)}', 'xw')]
    return [V(f'v_xor_b32 v{VTT}, {x}, v{vw}'), LD(f'ds_write_b128 v{VTT}, {vr(src)}', 'xw')]
def xpose_rs(dst, vrd, vg, sreg, rowstride, tag, u=0):
    o = [LD(f'ds_read_b128 {vr(dst+4*q)}, v{vrd} offset:{8192*(q//2) + 1024*(q%2)}', ('xr', u, q)) for q in range(4)]
    for q in range(4):
        o.append(FN(lambda a, q=q: a.need(('xr', u, q))))
        o.append(VM(f'buffer_store_dwordx4 {vr(dst+4*q)}, v{vg}, {S(SWS)}, s{sreg} offen sc1', tag))
        o.append(V(f's_add_u32 s{sreg}, s{sreg}, {8*rowstride}'))
    return o
OA = 200
XP_LDS = BIAS_LDS + 2048
def dft_fill():
    Ea = ACC[0]; T = TMP; U = Ea + 16; RS = 9*64*128
    su = f"""v_and_b32 v1, 31, v{VLANE}
    v_lshlrev_b32 v1, 6, v1
    v_lshrrev_b32 v3, 5, v{VLANE}
    v_lshlrev_b32 v3, 1, v3
    v_bfe_u32 v{VPO}, v{VLANE}, 1, 2
    v_xor_b32 v3, v3, v{VPO}
    v_lshl_add_u32 v1, v3, 4, v1
    s_add_u32 s98, s{sW2K}, {XP_LDS}
    v_add_u32 v1, s98, v1
    v_bfe_u32 v3, v{VLANE}, 3, 2
    v_lshlrev_b32 v3, 4, v3
    v_xor_b32 v3, v3, v{VL16}
    v_add_u32 v3, s98, v3
    v_lshrrev_b32 v{VPO}, 2, v{VLANE}
    v_mul_u32_u24 v{VPO}, {RS}, v{VPO}
    v_and_b32 v{VTT}, 3, v{VLANE}
    v_lshl_add_u32 v{VPO}, v{VTT}, 4, v{VPO}
    s_bfe_u32 s96, s{sROLE}, 0x30008
    s_lshl_b32 s98, s96, 6
    s_add_u32 s98, s98, s{sB}
    s_lshl_b32 s35, s98, 3
    s_add_u32 s35, s35, {VFL_OFF}
    s_lshl_b32 s98, s98, 7
    s_add_u32 s98, s98, {V_OFF}
    s_sub_u32 s99, 8, s96
    s_lshl_b32 s99, s99, 6
    s_add_u32 s99, s99, s{sB}
    s_lshl_b32 s99, s99, 7
    s_add_u32 s99, s99, {V_OFF}
"""
    o = [V(x) for x in su.split('\n') if x.strip()] + [V(f's_cmp_eq_u32 s96, 4\ns_cselect_b32 s96, {DUM_OFF - V_OFF}, 0\ns_add_u32 s99, s99, s96')]
    su = o; o = [V(f'v_add_u32 v{VPO+1}, {16*RS}, v{VPO}')]
    for i in range(16):
        e = Ea + 2*i
        o += [V(f'v_accvgpr_read_b32 v{T+4}, a{OA+2*i}'), V(f'v_accvgpr_read_b32 v{T+5}, a{OA+2*i+1}'), V(f'v_add_f32 v{T}, v{e}, v{T+4}'), V(f'v_add_f32 v{T+1}, v{e+1}, v{T+5}')]
        if i < 8: o += [V(f'v_sub_f32 v{T+2}, v{e}, v{T+4}'), V(f'v_sub_f32 v{T+3}, v{e+1}, v{T+5}')]
        else:     o += [V(f'v_sub_f32 v{T+2}, v{T+4}, v{e}'), V(f'v_sub_f32 v{T+3}, v{T+5}, v{e+1}')]
        o += [V(f'v_cvt_pk_bf16_f32 v{HO+i}, v{T}, v{T+1}'), V(f'v_cvt_pk_bf16_f32 v{Ea+i}, v{T+2}, v{T+3}')]
    segs = [o]
    u = vr(U, 16)
    for m, X in enumerate((HO, Ea)):
        for p in range(2):
            A1, A2 = (X, X+8) if p == 0 else (X+8, X)
            B2 = TW+8 if p == 0 else TW+16
            mf = [V(f's_nop 1\n{M} {u}, {vr(A1)}, {ar(TW)}, 0'), V(f'{M} {u}, {vr(A1+4)}, {ar(TW+4)}, {u}'), V(f'{M} {u}, {vr(A2)}, {ar(B2)}, {u}'), V(f'{M} {u}, {vr(A2+4)}, {ar(B2+4)}, {u}')]
            pk = []
            for q in range(2):
                for i in range(4):
                    k = 4*q + i
                    pk.append(V(f'v_cvt_pk_bf16_f32 v{T+k}, v{U+2*k}, v{U+2*k+1}' if m == 0 else f'v_cvt_pk_bf16_f32 v{T+k}, v{U+15-2*k}, v{U+14-2*k}'))
                x = 16*q ^ 32*m
                if x: pk += [V(f'v_xor_b32 v{VTT}, {x}, v1'), LD(f'ds_write_b128 v{VTT}, {vr(T+4*q)}')]
                else: pk += [LD(f'ds_write_b128 v1, {vr(T+4*q)}')]
            d = OA + 8*(2*m+p)
            pk += [LD(f'ds_read_b128 {ar(d+4*i)}, v3 offset:{1024*i}', ('xr', m, p)) for i in range(2)]
            st = [FN(lambda a, m=m, p=p: a.need(('xr', m, p)))] + [VM(f'buffer_store_dwordx4 {ar(d+4*i)}, v{VPO+i}, {S(SWS)}, s{98+m} offen offset:{64*p} sc1', 'V') for i in range(2)]
            segs += [mf, pk, st]
    f = [(segs[0], 3, 33)]; st = []
    for k in range(4):
        g = 33 + 8*k
        f += [(segs[1+3*k], g, g+2), (segs[2+3*k], g+5, g+8)]
        x = segs[3+3*k]
        st += [FN(lambda a, x=x: emit(a, x[:2])), x[2]]
    return su, f, st

JA = [8, 40]; JC = [72, 104]
def hload(g):
    return [SVM(f's_add_u32 s3, s{33 if g else 32}, {4096*g}', f'buffer_load_dwordx4 {ar(HF+16*g+4*k)}, v{VL16}, {S(SWS)}, s3 offen offset:{1024*k} sc1 {NT(1)}', ('ph', g)) for k in range(4)]

SZ=[72,88,136,152]; SVF=8; SWP=40; SY0=192; SPA=[72,88,168,24]
def TF(i): return ar(176+4*i) if i < 20 else vr(200+4*(i-20))
def smid_pre():
    su = f"""v_lshrrev_b32 v3, 5, v{VLANE}
    v_bfe_u32 v1, v{VLANE}, 2, 2
    v_lshl_add_u32 v3, v3, 2, v1
    v_lshlrev_b32 v{VA1}, 7, v3
    v_lshlrev_b32 v{VB1}, 6, v3
    v_bfe_u32 v1, v{VLANE}, 4, 1
    v_lshlrev_b32 v1, 5, v1
    v_and_b32 v3, 3, v{VLANE}
    v_lshl_add_u32 v1, v3, 3, v1
    s_min_u32 s98, s{sWV}, 2
    s_lshl_b32 s98, s98, 13
    s_add_u32 s99, s98, {slot(54)}
    v_add3_u32 v{VA1}, v{VA1}, v1, s99
    s_add_u32 s99, s98, {slot(57)}
    v_add3_u32 v{VB1}, v{VB1}, v1, s99
    v_add_u32 v1, s99, v{VL16}
    v_add_u32 v3, {slot(51)}, v{VL16}"""
    w = [FN(lambda a: a.vneed('wl'))] + [(3, LD(f'ds_write_b128 v1, {ar(WA+4*k)} offset:{1024*k}')[1]) for k in range(8)]
    def patch(a):
        a(f"""v_lshrrev_b32 v{VTT}, 4, v{VLANE}
        v_lshlrev_b32 v{VTT}, 11, v{VTT}
        v_and_b32 v{VTT+1}, 15, v{VLANE}
        v_lshl_add_u32 v{VTT}, v{VTT+1}, 6, v{VTT}
        v_add_u32 v{VTT}, {slot(57) + 8192}, v{VTT}""")
        a.lds(f'ds_write_b16 v{VTT}, a253 offset:62'); a.lds(f'ds_write_b16 v{VTT}, a254 offset:1086')
    w.append(FN(only(R_PATCH, patch)))
    for p in range(2):
        for mt in range(2):
            for q in range(4):
                w.append(LD(f'ds_read_b64_tr_b16 {vr(SWP+16*p+8*mt+2*q,2)}, v{VB1} offset:{4096*mt+2048*(q//2)+512*(q%2)+1024*p}', 'sm'))
    r = []
    for ks in range(4):
        for p in range(2):
            for rho in range(2): r.append(LD(f'ds_read_b64_tr_b16 {vr(SVF+16*p+4*ks+2*rho,2)}, v{VA1} offset:{2048*ks+1024*rho+64*p}', 'sm'))
        for i in (ks, 8+ks, 16+ks): r.append(LD(f'ds_read_b128 {TF(i)}, v3 offset:{1024*i}', 'sm'))
    late = [LD(f'ds_read_b128 {TF(i)}, v3 offset:{1024*i}', 'sm2') for ks in range(4) for i in (4+ks, 12+ks, 20+ks)]
    return sops(su), w, r, late
def smid_parts():
    Z=SZ; VF=SVF; WP=SWP; Y=SVF; PA=SPA; T=TMP
    C=lambda t,k: TF(4*t+k); Sn=lambda t,k: TF(8+4*t+k); N=lambda t,k: TF(16+4*t+k)
    def fwd(mt):
        zr=vr(Z[2*mt],16); zi=vr(Z[2*mt+1],16); o=[]
        for ks in range(4):
            o += [f'{M} {zr}, {C(mt,ks)}, {vr(VF+4*ks)}, {"0" if ks==0 else zr}', f'{M} {zi}, {C(mt,ks)}, {vr(VF+16+4*ks)}, {"0" if ks==0 else zi}',
                  f'{M} {zr}, {Sn(mt,ks)}, {vr(VF+16+4*ks)}, {zr}', f'{M} {zi}, {N(mt,ks)}, {vr(VF+4*ks)}, {zi}']
        return o
    def ybase(mt, p): return (SY0 - 8*p) if mt == 0 else (Y + 8*p)
    def cmul(mt):
        o = []
        for d in range(8):
            wr = WP + 8*mt + d; wi = WP + 16 + 8*mt + d; zr = Z[2*mt] + 2*d; zi = Z[2*mt+1] + 2*d
            o += [f'v_lshlrev_b32 v{T}, 16, v{wr}', f'v_and_b32 v{T+1}, 0xffff0000, v{wr}', f'v_lshlrev_b32 v{T+2}, 16, v{wi}', f'v_and_b32 v{T+3}, 0xffff0000, v{wi}']
            for i in range(2): o += [f'v_mul_f32 v{T+4+i}, v{zi+i}, v{T+2+i}', f'v_mul_f32 v{T+6+i}, v{zi+i}, v{T+i}']
            for i in range(2): o += [f'v_fma_f32 v{T+4+i}, v{zr+i}, v{T+i}, -v{T+4+i}', f'v_fma_f32 v{T+6+i}, v{zr+i}, v{T+2+i}, v{T+6+i}']
            o += [f'v_cvt_pk_bf16_f32 v{ybase(mt,0)+d}, v{T+4}, v{T+5}', f'v_cvt_pk_bf16_f32 v{ybase(mt,1)+d}, v{T+6}, v{T+7}']
        return [V(x) for x in o]
    def inv(mt):
        o = []
        for nt in range(2):
            pr=vr(PA[2*nt],16); pi=vr(PA[2*nt+1],16)
            for t in range(2):
                ks = 2*mt + t; yr = vr(ybase(mt,0)+4*t); yi = vr(ybase(mt,1)+4*t)
                o += [f'{M} {pr}, {yr}, {C(nt,ks)}, {"0" if ks==0 else pr}', f'{M} {pi}, {yi}, {C(nt,ks)}, {"0" if ks==0 else pi}',
                      f'{M} {pr}, {yi}, {N(nt,ks)}, {pr}', f'{M} {pi}, {yr}, {Sn(nt,ks)}, {pi}']
        return o
    return fwd, cmul, inv
def part_inplace(acc, lam):
    c = []; st = []
    for q in range(4):
        c += [V(f'v_cvt_pk_bf16_f32 v{acc+8*q+i}, v{acc+8*q+2*i}, v{acc+8*q+2*i+1}') for i in range(4)]
        st.append(SVM(f's_add_u32 s3, s{sPS}, {16384*(2*lam + q//2)}', f'buffer_store_dwordx4 {vr(acc+8*q)}, v{VL16}, {S(SWS)}, s3 offen offset:{1024*(q%2)} sc1', ('p', lam)))
    return c, st

def kernel():
    a = E()
    prologue(a)
    g1 = lambda acc: (lambda p, kk, h: (acc + 16*h, vr(XF + 16*p + 4*kk), False))
    END = 71
    stamp(a, 2)
    a.need('bw')
    a('; ROUND 1')
    brole(a, R_ODD, 'L_odd')
    s_pro = a.snap()
    a.vneed(('d',0),('d',1),('d',2)); a('s_barrier')
    bias_reads(a, ACC[0], 0); first_reads(a, 'tr', 0); emit(a, NLAST)
    run(a, 0, 9, 'tr', g1(ACC[0]), [(late_setup(), 26, 54), (bias_ops(ACC[1], 1), 40, 66), (B2PRE, 56, 70)], pause=(0, Cfg.pz1), events={71: B2FIRE, ('dma0', 0): list(range(Cfg.np, 12))})
    stamp(a, 3)
    run(a, 9, 9, 'tr', g1(ACC[1]), [(gelu_ops(ACC[0], 0, 2, Cfg.sd), Cfg.gs0, END)], events={2: [getnonce]}, pause=(0, Cfg.pz2))
    s_even = a.snap()
    la = a.l; a.l = []
    a('L_odd:'); a.restore(s_pro)
    brole(a, R_DFT, 'L_dft')
    emit(a, NLAST + late_setup() + ([] if Cfg.be else [FN(f) for f in BATCH2]) + touch_ops())
    for q in range(max(9, Cfg.np), 21):
        for f in plan(q): f(a)
    a.vneed(('d',9),('d',10),('d',11)); a('s_barrier')
    first_reads(a, 'tr', 9)
    stamp(a, 3)
    bias_reads(a, ACC[1], 1)
    run(a, 9, 9, 'tr', g1(ACC[1]), [(bias_ops(ACC[0], 2), 40, 66), (xback(HO, HO+1), 8, 30)], events={2: [getnonce]})
    a('s_branch L_s3'); s_nodft = a.snap()
    a('L_dft:'); a.restore(s_pro)
    a(f'v_mov_b32 v{VPO}, v{VL16}\nv_add_u32 v{VPO+1}, 49152, v{VL16}')
    a.vneed(('d',0),('d',1),('d',2)); a('s_barrier')
    first_reads(a, 'dft', 0); emit(a, NLAST)
    run(a, 0, 9, 'dft', lambda p, kk, h: ((ACC[0] + 16*h) if kk % 2 == 0 else -(OA + 16*h), vr(XF + 16*p + 4*kk), p == 0 and kk < 2),
        [(xback(HO, HO+1), 8, 30), (late_setup(), 30, 47), (twiddle_ops(TW, TMP, 'fwd', sB), 2, 60), (dft_fill()[0], 48, 66), (bias_ops(ACC[1], 1), 56, 70)] + ([] if Cfg.be else [(B2PRE, 66, 71)]), pause=(0, Cfg.pz1), role='D', events={71: [] if Cfg.be else B2FIRE, ('dma0', 0): list(range(Cfg.np, 12))})
    stamp(a, 3)
    _, df, vst = dft_fill(); vlate = vst[3:]
    run(a, 9, 9, 'tr', g1(ACC[1]), df + [(vst[:3], 42, 70), (bias_ops(ACC[0], 2), 65, 70)], events={2: [getnonce]}, pause=(0, 0 if Cfg.be else Cfg.pz2))
    a('L_s3:'); a.merge(s_nodft, a.snap()); s_odd = a.snap()
    lodd = a.l; a.l = la; a.restore(s_even)
    stamp(a, 4)
    pi = spoll_i; pc = spoll_c
    h0 = only_ops(R_ODD, hload(0), 1)
    FG, PG, CG = Cfg.fg, Cfg.pg, Cfg.cg
    l2a = [w2touch(1, 0, 21)] if Cfg.l2 else []; l2b = [w2touch(1, 21*128, 20)] if Cfg.l2 else []; l2c = [tabtouch] if Cfg.l2 else []
    run(a, 18, 9, 'tr', g1(ACC[0]), [(gelu_ops(ACC[1], 1, 3), Cfg.gs0, END), ([FN(only(R_UNIT, wload(k))) for k in range(4)], 6, 64)] + ([(clear_ops(sHS, [16384, 18432], 'clr', -248), 2, 68)] if Cfg.ce else []),
        events={FG: [lambda a: setflag(a, 1, ('h',0))], 40: l2a, 66: l2b})
    g2 = lambda acc: (lambda p, kk, h: (acc + 16*h, ar(HF + 16*GORD[p] + 4*kk), p == 0 and kk == 0))
    tabg = f"""s_and_b32 s98, s{sC}, 3
    s_min_u32 s98, s98, 2
    s_mul_i32 s96, s98, 110592
    s_add_u32 s96, s96, {TABF_SZ}
    v_lshl_add_u64 {vr(VTB,2)}, s[96:97], 0, {vr(VTB,2)}"""
    sent8 = lambda a: (stamp(a, 7), sent_check(a, ('ph',8), [f'a{HF+128+4*k+3}' for k in range(4)], TMP, lines_of(hload(8)), ([f's_add_u32 s3, s33, {4096*8}'], 3)))
    sf = lambda st, *tags: (lambda a: (setflag if st < 5 else setflag2)(a, st, *tags))
    sf5 = lambda a: setflag(a, 5, ('h',4))
    clo = clear_ops(33, [32768, 34816], 'clr', -248)
    clp = clear_ops(sPS, [16384*6, 16384*7], 'clp')
    def setup5():
        a = E()
        smid_ids(a)
        a(f"""s_mul_i32 s{sSV}, s99, 9
        s_add_u32 s{sSV}, s{sSV}, s96
        s_lshl_b32 s{sSV}, s{sSV}, 13
        s_add_u32 s{sSV}, s{sSV}, s{sW2K}
        s_add_u32 s{sSV}, s{sSV}, {V_OFF}
        s_add_u32 s98, s96, s{sWV}
        s_lshl_b32 s98, s98, 5
        s_add_u32 s98, s98, s99
        s_lshl_b32 s47, s98, 3
        s_add_u32 s47, s47, {PFL_OFF}
        s_lshl_b32 s48, s98, 7
        s_add_u32 s48, s48, {P_OFF}
        s_add_u32 s49, s48, {32*9*32*128}
        v_and_b32 v1, 15, v{VLANE}
        s_lshl_b32 s98, s{sWV}, 4
        v_add_u32 v1, s98, v1
        v_lshrrev_b32 v{VA1}, 4, v{VLANE}
        v_min_u32 v{VA1}, 2, v{VA1}
        v_add_u32 v{VA1}, s96, v{VA1}
        v_sub_u32 v{VB1}, 8, v{VA1}
        v_min_u32 v{VA1}, v{VA1}, v{VB1}
        v_lshl_add_u32 v1, v{VA1}, 6, v1
        v_lshlrev_b32 v1, 3, v1
        v_add_u32 v1, {VFL_OFF}, v1""")
        return sops('\n'.join(a.l).replace('s96', 's50').replace('s98', 's51').replace('s99', 's52'))
    run(a, 27, 9, 'tr', g1(ACC[1]), [(gelu_ops(ACC[0], 2, 4), Cfg.gs0, END), ([FN(only(R_UNIT, wload(k))) for k in range(4, 8)], 6, 64), (setup5(), 48, 70)],
        events={4: [only(R_PATCH, wpatch)], FG: [sf(2, 'clr', ('h',1))], 30: l2c}, role='E')
    stamp(a, 5)
    ssu, sw, sr, slate = smid_pre()
    run(a, 36, 9, 'tr', g1(ACC[0]), [(gelu_ops(ACC[1], 3), Cfg.gs0, END), (hload(5), Cfg.e2+1, 71), (ssu, 52, 70)], role='E',
        events={26: [lambda a: a.vm(poll_ins(VA1, 1, '0'), 'vp')], Cfg.e2-22: [pi], Cfg.e2: [pc(2)], 47: [only(R_SMID, lambda a: poll_check(a, 'vp', VA1, 1, '0', 1))], FG: [sf(3, ('h',2))]})
    stamp(a, 6)
    a('s_mov_b32 s11, s47')
    pre = lambda g: [lambda a: a.vneed(('ph', g))]
    ge = lambda o: (lambda p, kk, h: (JC[1] + 16*h, ar(HF + 16*GE[p+o] + 4*kk), p+o == 0 and kk == 0))
    dm6 = [FN(f) for q in range(63, 72) for f in plan(q, 'E')]
    h6 = [FN(pc(3))] + hload(6); h7 = [FN(pc(4))] + hload(7)
    def s6a(unit):
        run(a, 45, 6, 'tr', ge(0), ([(gelu_ops(ACC[0], 4), 3, Cfg.ge), (sw, Cfg.ge-14, Cfg.ge+2), (sr, Cfg.ge-2, 48)] if unit else [(gelu_ops(ACC[0], 4), 3, 44)]), nxt=None, role='E',
            events={Cfg.f4: [sf(4, ('h',3))], 30: [pi], ('pre',32): pre(5), ('bar',48): [('d', q) for q in range(51, 57)]})
    b2 = FN(lambda a: (a.vneed(('d',60),('d',61),('d',62)), a('s_barrier')))
    brole(a, R_UNIT, 'L_unit'); s1 = a.snap()
    s6a(False)
    a('s_barrier')
    cle = []
    def allw(qs, tw=[]):
        def f(a):
            for q in qs:
                for g in plan(q, 'E'): g(a)
            if not Cfg.w3d and not tw: return
            d = []
            for q in (qs if Cfg.w3d else []):
                for w in range(3):
                    d.append(SVM(f's_mov_b32 m0, {slot(q) + 2048*w}\ns_add_u32 s{sT}, s{sO2+EORD[q-60][0]}, {128*EORD[q-60][1]}', f'buffer_load_dwordx4 v{8+2*w}, {S(SW2)}, s{sT} offen lds'))
                    d.append(VM(f'buffer_load_dwordx4 v{9+2*w}, {S(SW2)}, s{sT} offen offset:1024 lds'))
            only(R_SMID, lambda a: emit(a, mix(tw, d) if tw else d))(a)
        return FN(f)
    twq = lambda w: coop_tw(w, slot(59)) if Cfg.tw3 else []
    for w in range(3): a(f'v_subrev_u32 v{8+2*w}, {(3-w)*16*1152}, v{VA2}\nv_subrev_u32 v{9+2*w}, {(3-w)*16*1152}, v{VB2}')
    emit(a, fsetup()[:3] + [allw([63, 64])] + h6 + [V('s_barrier'), allw([65, 66, 67, 68], twq('0') + twq('1')), allw([69, 70, 71], twq('2'))] + twq(None) + [FN(lambda a: a.drain()), FN(pi), V(tabg), FN(lambda a: a.vdrain()), b2])
    if Cfg.w3d: dm6 = [V('s_nop 0')]*18
    first_reads(a, 'tr', 60)
    a('s_branch L_s7e'); s_nou = a.snap()
    a('L_unit:'); a.restore(s1)
    s6a(True)
    fwd, cmul, inv = smid_parts()
    stamp(a, 'm0')
    a.need('sm'); a('s_barrier')
    dmx = lambda i, j: [] if Cfg.w3d else dm6[i:j]
    interleave(a, fwd(0), mix(slate, dmx(0, 6) + h6))
    stamp(a, 'm1')
    a.need('sm2'); a('s_barrier')
    t = E(); xpose_setup(t, 1, 3, VA1, slot(57), 9*32*128); t(tabg)
    interleave(a, fwd(1)[:3], dmx(6, 10) + [V(x) for x in t.l[:11]])
    interleave(a, fwd(1)[3:], mix(cmul(0), dmx(10, 14)))
    a('s_nop 1')
    stamp(a, 'm2')
    interleave(a, inv(0)[:3], [V(x) for x in t.l[11:]])
    interleave(a, inv(0)[3:], cmul(1)[:30] + [FN(pi)] + cmul(1)[30:])
    stamp(a, 'm3')
    def pout(nt):
        o = []
        for p in range(2):
            for par in range(2):
                for i in range(4): o.append(V(f'v_cvt_pk_bf16_f32 v{SWP+16*nt+8*p+4*par+i}, v{SPA[2*nt+p]+4*i+par}, v{SPA[2*nt+p]+4*i+2+par}'))
                o += xpose_w(SWP+16*nt+8*p+4*par, 2*p+par, 1)
        x = xpose_rs(SWP+16*nt, 3, VA1, 48+nt, 9*32*128, 'P', nt)
        return o + x[:4], x[4:]
    a('s_nop 1')
    h8 = hload(8)
    interleave(a, inv(1)[:10], h7 + ([FN(pi)] if Cfg.hf and Cfg.c5 < Cfg.pd else []) + dmx(14, 18) + [b2])
    first_reads(a, 'tr', 60)
    interleave(a, inv(1)[10:], pout(0)[0])
    stamp(a, 'm5')
    eo = lambda o: (lambda p, kk, h: (JC[1-EORD[p+o][1]] + 16*h, ar(HF + 16*EORD[p+o][0] + 4*kk), p+o == 1 and kk == 0))
    grp = lambda x, n: [FN(lambda a, y=x[i:i+n]: emit(a, y)) for i in range(0, len(x), n)]
    pst = grp(pout(0)[1] + pout(1)[1], 3)
    def EV(*pairs):
        d = {}
        for k, v in pairs: d.setdefault(k, []).extend(v if isinstance(v, list) else [v])
        return d
    if not Cfg.hf:
        assert Cfg.pe <= 24 and Cfg.c5 >= 24
        def s7(unit):
            run(a, 60, 3, 'tr', eo(0), [(pout(1)[0], 2, 10), (pst[:4], 0, max(11, Cfg.pe//2)), (pst[4:], max(11, Cfg.pe//2), Cfg.pe)]*unit, role='E',
                events={('pre',0): pre(6), ('pre',16): pre(7), Cfg.c5-Cfg.pd: [pi], ('pre',17): [lambda a: stamp(a, 7)]})
    else:
        assert Cfg.pe <= 48 and Cfg.e8 < 6
        def s7(unit):
            run(a, 60, 6, 'tr', eo(0), [(pout(1)[0], 2, 12), (pst, Cfg.c5+9, Cfg.pe)]*unit + [(h8, Cfg.c5+1, Cfg.c5+9), (xback(VB1, 1), 14, 28)], role='E',
                events=EV((('pre',0), pre(6)), (('pre',16), pre(7)), (Cfg.c5, pc(5)), (('pre',8*Cfg.e8), pre(8)), (('pre',17), lambda a: stamp(a, 7)), (('pre',24), lambda a: stamp(a, 8)), (33, codetouch),
                          *([(Cfg.c5-Cfg.pd, pi)] if Cfg.c5 >= Cfg.pd else [])))
    s7(True)
    s_u = a.snap()
    a('s_branch L_s7u')
    a('L_s7e:'); a.restore(s_nou); emit(a, h7 + ([FN(pi)] if Cfg.hf and Cfg.c5 < Cfg.pd else []))
    s7(False)
    a('L_s7u:'); a.merge(s_u, a.snap())
    if not Cfg.hf:
        stamp(a, 8)
        run(a, 63, 9, 'tr', eo(3), [(h8, Cfg.c5-23, Cfg.c5-15), (part_ops(JC[1], 0), 8*Cfg.e8-13, 8*Cfg.e8+12), (fsetup0() + ([] if Cfg.f9 else fsetup()), 36, 68), (xback(VB1, 1), 1, 14), (fsetup()[:3] + coop_tw(), 10, 36),
            ([V(f's_add_u32 s{sL9}, s{sPS}, {16384*2}')], 68, 70)], role='E',
            events={9: [codetouch], Cfg.c5-24: [pc(5)], ('pre',8*Cfg.e8-24): pre(8), Cfg.pe+6: [only(R_UNIT, lambda a: setflag(a, 1, 'P', off=11))]})
    else:
        run(a, 66, 6, 'tr', eo(6), [(part_ops(JC[1], 0), 3, 32), (fsetup()[:3] + coop_tw() + fsetup0() + ([] if Cfg.f9 else fsetup()), 0, 45),
            ([V(f's_add_u32 s{sL9}, s{sPS}, {16384*2}')], 45, 47)], role='E',
            events={Cfg.pe-16: [only(R_UNIT, lambda a: setflag(a, 1, 'P', off=11))]})
    a('s_branch L_s9'); s_e = a.snap()
    a('; ROUND 2')
    a.l += lodd; a.restore(s_odd)
    stamp(a, 4)
    run(a, 18, 9, 'tr', g1(ACC[0]), [(gelu_ops(ACC[1], 1, 3), Cfg.gs0, END), (only_ops(R_DFT, vlate, 1), 2, 40)] + ([] if Cfg.ce else [(clo[:6], 44, 68)]),
        events={PG: [pi], 40: l2a, 66: l2b})
    run(a, 27, 9, 'tr', g1(ACC[1]), [(gelu_ops(ACC[0], 2, 4), Cfg.gs0, END), (hload(0), CG+2, 64)] + ([] if Cfg.ce else [(clo[6:], 1, 14)]),
        events={2: [only(R_DFT, lambda a: setflag(a, 1, 'V', off=35))], CG: [pc(1)], (FG+1 if Cfg.ce else Cfg.f2o): [sf(2, 'clr', ('h',1))], 30: l2c, PG: [pi]}, role='O')
    stamp(a, 5)
    run(a, 36, 9, 'tr', g1(ACC[0]), [(gelu_ops(ACC[1], 3), Cfg.gs0, END), (hload(5), CG+2, 64)], role='O',
        events={CG: [pc(2)], FG: [sf(3, ('h',2))], PG: [pi]})
    stamp(a, 6)
    jj = lambda p, kk, h: (JA[p % 2] + 16*h, ar(HF + 16*GORD[p//2] + 4*kk), p < 2 and kk == 0)
    run(a, 45, 18, 'tr', jj, [(gelu_ops(ACC[0], 4), 3, 47), (hload(6), CG+2, 46), (hload(7), 49+Cfg.c4, 66+Cfg.c4), (hload(8), 48+Cfg.h8, 62+Cfg.h8), (sops(tabg), 140, 143), (fsetup()[:3] + coop_tw(), 50, 96), (fsetup0() + ([] if Cfg.f9 else fsetup()), 97, 140)], role='O',
        events={CG: [pc(3)], Cfg.f4: [sf(4, ('h',3))], 46: [pi], 48+Cfg.c4: [pc(4)], ('pre',64): pre(0), ('pre',80): pre(5), ('pre',96): pre(6), ('pre',112): pre(7), Cfg.f5h: [sf5], 126: [sent8], 132: [codetouch]})
    stamp(a, 8)
    run(a, 63, 9, 'tr', g2(JC[0]), [(part_ops(JA[0], 4) + part_ops(JA[1], 6), 3, Cfg.p8), ([V(f's_add_u32 s{sL9}, s{sPS}, {16384*10}')], 60, 62)] + ([(tw_reads(), 52, 70)] if Cfg.tw3 else []))
    a(f'; ROUND {0 if Cfg.w3 == 2 else 3}\nL_s9:'); a.merge(s_e, a.snap())
    if Cfg.warm and Cfg.w3 == 1: a('; WARM 3')
    stamp(a, 9)
    g2o = lambda acc, o: (lambda p, kk, h: (acc + 16*h, ar(HF + 16*GORD[p+o] + 4*kk), p+o == 0 and kk == 0))
    def two(mask, f):
        l1 = a.label('TW'); l2 = a.label('TX')
        a(f's_and_b32 s98, s{sCLS}, {mask}\ns_cbranch_scc1 {l1}'); s0 = a.snap()
        f(False); a(f's_branch {l2}\n{l1}:'); s1 = a.snap(); a.restore(s0)
        f(True); a(f'{l2}:'); a.merge(s1, a.snap())
    pl1 = lambda hf: [FN(lambda a, k=k: emit(a, pl_ops(hf, k, k+1, 32 if Cfg.bf else SWS))) for k in range(16)]
    if Cfg.bf: two = lambda mask, f: f(True)
    def ppoll_i(a):
        a(f"""s_min_u32 s98, s{sWV}, 2
        s_mul_i32 s98, s98, 768
        s_add_u32 s98, s98, {PFL_OFF}
        v_lshlrev_b32 v204, 3, v{VLANE}
        v_add_u32 v204, s98, v204
        v_add_u32 v205, 256, v204""")
        a.vm(poll_ins(200, 204, '0'), 'pp1'); a.vm(poll_ins(202, 205, '0'), 'pp2')
    def ppoll_c(a):
        if Cfg.blk & 4:
            only(R_FINW, lambda a: (poll_check(a, 'pp1', 200, 204, '0', 1), poll_check(a, 'pp2', 202, 205, '0', 1)))(a); a(f's_bitcmp1_b32 s{sROLE}, {R_FINW}\ns_cselect_b32 s11, 0, 1'); return
        a.vneed('pp2'); poll_test(a, 200, 1); a('s_cselect_b32 s11, 1, 0'); poll_test(a, 202, 1); a(f's_cselect_b32 s11, 1, s11\ns_bitcmp1_b32 s{sROLE}, {R_FINW}\ns_cselect_b32 s11, s11, 1')
    def EV(*pairs):
        d = {}
        for k, v in pairs: d.setdefault(k, []).extend(v if isinstance(v, list) else [v])
        return d
    sched = dict(zip((78, 81, 84, 87), Cfg.sch))
    def tryev(qn, n):
        c = sched.get(qn, '-')
        if c not in '01': return [], []
        hf = int(c); t = E(); etest(t, hf, 20)
        t(f's_cselect_b32 s20, 0, {1 << hf}\ns_and_b32 s20, s20, s{sCLS}\ns_mul_i32 s20, s20, {1 + 512 + 2048}\ns_bitset0_b32 s{sCLS}, {9+hf}\ns_xor_b32 s{sCLS}, s{sCLS}, s20')
        if Cfg.bf: t(f's_mov_b64 s[32:33], s[{SWS}:{SWS+1}]\ns_mov_b32 s35, 0x20000\ns_cmp_lg_u32 s20, 0\ns_cselect_b32 s34, s{SWS+2}, 0')
        ops = sops('\n'.join(t.l))
        if Cfg.blk & (1 << hf) and qn == 87:
            k = [i for i, x in enumerate(t.l) if x.strip().startswith('s_cmp_gt_u32')][0]
            def blk(a):
                lc = a.label('BC'); lk = a.label('BK')
                a(f's_bitcmp1_b32 s{sCLS}, {hf}\ns_cselect_b32 s20, s20, 0\ns_cmp_gt_u32 s20, 8\ns_cbranch_scc1 {lc}\n{lk}:\ns_mov_b32 s20, 0')
                u = E(); u.nlab = 8000 + a.nlab
                u(f'{lc}:\ns_mov_b32 s99, 8\n{lc}_l:'); eld(hf, 20)(u); u.drain(); etest(u, hf, 20)
                u(f's_cbranch_scc0 {lk}\ns_sub_u32 s99, s99, 1\ns_cbranch_scc0 {lc}_l\ns_mov_b32 s20, -1\ns_add_u32 s20, s20, s{sND+hf}'); eblock(u, hf, 20, Cfg.slp); u(f's_branch {lk}')
                HOT.extend(u.l); a.ool += u.ool
            ops = sops('\n'.join(t.l[:k])) + [FN(blk, 4)] + sops('\n'.join(t.l[k:]))
        return ([(n - Cfg.ta, eld(hf, 20))] if Cfg.ta <= n else []) + [(n - 8, lambda a: a.drain())], [(ops, n-7, n)]
    bar = lambda a: a('s_barrier')
    p2 = part_ops(JC[1], 2)
    seg = {78: (JC[1], 6, [], [(Cfg.f6-48, sf(6, ('p',9))), (23, ppoll_c)]),
           81: (JC[0], 0, [(p2[:11], 3, 22)] + ([] if Cfg.tw3 else [(tw_reads(), 4, 20)]), []),
           84: (JC[0], 3, [(p2[11:], 0, 12), (fin_addr(), 8, 23)], []),
           87: (JC[0], 6, [([FN(lambda a: a.vneed(('d', 98)))] + prd(0) + prd(1) + prd(2), 12, 24)], [(Cfg.f7-48, sf(7, ('p',2))), (('dma', 88), [102, 103]), (('dma', 89), [104]), (3, bar), (22, bar)])}
    e, f = tryev(78, 48)
    if Cfg.ta > 24 and sched[81] in '01': e = e + [(72 - Cfg.ta, eld(int(sched[81]), 20))]
    run(a, 72, 6, 'tr', g2o(JC[1], 0), [(part_ops(JC[0], 9), 3, Cfg.p9), (xb_ops()[:12], 30, 44)] + f + ([(fsetup(), 0, 25)] if Cfg.f9 else []),
        events=EV((Cfg.f5, sf(5, ('p',0), ('p',4), ('p',6))), (45, ppoll_i), *e))
    def slab(q, ld):
        acc, o, fl, ev = seg[q]; e, f = tryev(q+3, 24)
        if Cfg.ta > 24 and sched.get(q+6, '-') in '01': e = e + [(48 - Cfg.ta, eld(int(sched[q+6]), 20))]
        run(a, q, 3, 'tr', g2o(acc, o), fl + f + ([(ld, 0, 22 if q < 87 else 16)] if ld else []), nxt=None if q == 87 else 'tr', events=EV(*ev, *e))
    for q in (78, 81, 84, 87):
        c = sched[q]
        if c == '-': slab(q, None)
        elif c == 'x': continue
        else:
            L = pl1(int(c))
            if sched.get(q+3) == 'x': two(512 << int(c), lambda ld: (slab(q, L[:9] if ld else None), slab(q+3, L[9:] if ld else None)))
            else: two(512 << int(c), lambda ld: slab(q, L if ld else None))
    stamp(a, 10)
    final(a)
    a('L_fin:')
    stamp_flush(a, 11)
    a('L_end:\ns_endpgm\nL_hot:\ns_endpgm')
    a.l += HOT
    if not Cfg.wsl: a('; ROUND -1')
    a.l += SLOW
    a('; ROUND -1')
    return a.text()

PTH = [136, 8]
VFA = 4; VO = 5
SEL = 200; AB2 = 208; AX = 232
sCLS = 53
sND, sFO, sPB, sXO, sSG = 46, 48, 50, 4, 36
def classes():
    LAML = [0,0,4,4,2,2,3,3,2]; LAMH = [2,3,3,0,0,4,4,0,0]; NEED = [4,4,6,7,5]; RANK = [0,0,2,3,1]
    swap = 0; nd = [0, 0]; cl = []
    for c in range(9):
        rl, rh = RANK[LAML[c]], RANK[LAMH[c]]
        sw = (rh < rl) if max(rl, rh) < 2 else (rh > rl)
        la, lb = (LAMH[c], LAML[c]) if sw else (LAML[c], LAMH[c])
        swap |= sw << c; nd[0] |= NEED[la] << 3*c; nd[1] |= NEED[lb] << 3*c
        cl.append(({0:0, 2:2, 3:4}[RANK[la]], {0:1, 1:1, 2:3, 3:5}[RANK[lb]]))
    ca = sum(x[0] << 3*i for i, x in enumerate(cl)); cb = sum(x[1] << 3*i for i, x in enumerate(cl))
    return swap, nd, ca, cb
def xearly_addr(a):
    swap = classes()[0]; X = ACC[0]
    a(f'''s_lshl_b32 s96, s{sI}, 2
    s_lshr_b32 s98, s{sC}, 2
    s_add_u32 s96, s96, s98
    s_mul_i32 s96, s96, 1152
    s_and_b32 s98, s{sC}, 3
    s_min_u32 s98, s98, 2
    s_mul_i32 s99, s{sWV}, 3
    s_add_u32 s98, s98, s99
    s_min_u32 s98, s98, 8
    s_lshl_b32 s99, s98, 6
    s_add_u32 s96, s96, s99
    v_lshrrev_b32 v{X}, 2, v{VLANE}
    v_mul_u32_u24 v{X}, 4608, v{X}
    v_lshrrev_b32 v{X+1}, 4, v{VLANE}
    v_xor_b32 v{X+1}, v{X+1}, v{VLANE}
    v_and_b32 v{X+1}, 3, v{X+1}
    v_add_lshl_u32 v{X}, v{X}, v{X+1}, 4
    s_bitcmp1_b32 {swap:#x}, s98
    s_cselect_b32 s98, 576, 0
    s_cselect_b32 s99, 0, 576
    s_add_u32 s98, s98, s96
    s_add_u32 s99, s99, s96
    v_add_u32 v{X+2}, s99, v{X}
    v_add_u32 v{X}, s98, v{X}
    v_add_u32 v{X+1}, {16*73728}, v{X}
    v_add_u32 v{X+3}, {16*73728}, v{X+2}''')
def xearly(a):
    a(f's_lshl_b32 s98, s{sWV}, 12')
    for k in range(4):
        a(f's_add_u32 m0, s98, {BIAS_LDS + 2048 + 1024*k}\ns_nop 0')
        a.vm(f'buffer_load_dwordx4 v{ACC[0]+k}, {S(SX)}, 0 offen lds', 'x2')
def xback(v, t):
    o = sops(f"""s_min_u32 s3, s{sWV}, 2
    s_lshl_b32 s3, s3, 12
    s_add_u32 s3, s3, {BIAS_LDS+2048}
    v_and_b32 v{v}, 31, v{VLANE}""".replace('\n', '\n'))
    o = [V(f's_min_u32 s3, s{sWV}, 2\ns_lshl_b32 s3, s3, 12\ns_add_u32 s3, s3, {BIAS_LDS+2048}\nv_and_b32 v{v}, 31, v{VLANE}\nv_lshl_add_u32 v{v}, v{v}, 6, s3', 5),
         V(f'v_bfe_u32 v{t}, v{VLANE}, 2, 2'), V(f'v_lshl_add_u32 v{v}, v{t}, 4, v{v}'), V(f'v_lshrrev_b32 v{t}, 5, v{VLANE}'), V(f'v_lshl_add_u32 v{v}, v{t}, 3, v{v}'), FN(lambda a: a.vneed('x2'), 0)]
    for q in range(4):
        if q: o.append(V(f'v_xor_b32 v{t}, {16*q}, v{v}'))
        o += [LD(f'ds_read_b64 {ar(AX+8*hf+2*q,2)}, v{t if q else v} offset:{2048*hf}') for hf in range(2)]
    return o
def fsetup0():
    return sops(f"""s_lshl_b32 s{sFLG}, s{sB}, 1
    s_and_b32 s39, s{sC}, 1
    s_add_u32 s{sFLG}, s{sFLG}, s39
    s_mul_i32 s{sFLG}, s{sFLG}, {128*Cfg.fw}
    s_lshr_b32 s39, s{sC}, 1
    s_mul_i32 s39, s39, {4 if Cfg.fw == 1 else 128}
    s_add_u32 s{sFLG}, s{sFLG}, s39
    s_add_u32 s{sFLG}, s{sFLG}, {FL2_OFF}""")
def fsetup():
    a = E(); swap, nd, ca, cb = classes()
    a(f"""s_lshl_b32 s52, s{sI}, 2
    s_lshr_b32 s38, s{sC}, 2
    s_add_u32 s52, s52, s38             ; b'
    s_and_b32 s65, s{sC}, 3
    s_min_u32 s65, s65, 2
    s_mul_i32 s38, s{sWV}, 3
    s_add_u32 s65, s65, s38
    s_min_u32 s65, s65, 8                 ; tile c
    s_mul_i32 s39, s65, 3
    s_lshr_b32 s{sND}, {nd[0]:#x}, s39
    s_and_b32 s{sND}, s{sND}, 7
    s_lshr_b32 s{sND+1}, {nd[1]:#x}, s39
    s_and_b32 s{sND+1}, s{sND+1}, 7
    s_lshr_b32 s38, {ca:#x}, s39
    s_and_b32 s38, s38, 7
    s_lshl_b32 s{sCLS}, 1, s38
    s_lshr_b32 s38, {cb:#x}, s39
    s_and_b32 s38, s38, 7
    s_bitset1_b32 s{sCLS}, s38
    s_bitcmp1_b32 s{sROLE}, {R_FINW}
    s_cselect_b32 s{sCLS}, s{sCLS}, 0
    s_mul_i32 s39, s52, {256*Cfg.fw}
    s_add_u32 s39, s39, {FL2_OFF + 128*Cfg.fw}
    s_cmp_eq_u32 s65, 8
    s_cselect_b32 s38, 0, {128*Cfg.fw}
    s_sub_u32 s38, s39, s38
    s_mul_i32 s{sPB}, s52, 18
    s_add_u32 s{sPB}, s{sPB}, s65
    s_lshl_b32 s{sPB}, s{sPB}, 14
    s_add_u32 s{sPB}, s{sPB}, {PART_OFF}
    s_lshl_b32 s{sXO}, s65, 6
    s_bitcmp1_b32 {swap:#x}, s65
    s_cselect_b32 s{sFO}, s39, s38
    s_cselect_b32 s{sFO+1}, s38, s39
    s_cselect_b32 s{sSG}, -1.0, 1.0
    s_cselect_b32 s{sSG+1}, 1.0, -1.0
    s_cselect_b32 s38, {9*16384}, 0
    s_cselect_b32 s39, 576, 0
    s_add_u32 s{sPB+1}, s{sPB}, {9*16384}
    s_sub_u32 s{sPB+1}, s{sPB+1}, s38
    s_add_u32 s{sPB}, s{sPB}, s38
    s_add_u32 s{sXO+1}, s{sXO}, 576
    s_sub_u32 s{sXO+1}, s{sXO+1}, s39
    s_add_u32 s{sXO}, s{sXO}, s39
    s_add_u32 s{sXO+2}, s{sXO}, {16*73728}
    s_add_u32 s{sXO+3}, s{sXO+1}, {16*73728}
    s_sub_u32 s38, s{sND}, 4
    s_mul_i32 s38, s38, {16384*Cfg.fw if Cfg.fs else 0}
    s_add_u32 s{sFO}, s{sFO}, s38
    s_sub_u32 s38, s{sND+1}, 4
    s_mul_i32 s38, s38, {16384*Cfg.fw if Cfg.fs else 0}
    s_add_u32 s{sFO+1}, s{sFO+1}, s38
    s_add_u32 s{sND}, s{sND}, s{sNON}
    s_add_u32 s{sND+1}, s{sND+1}, s{sNON}
    v_and_b32 v{VFA}, 7, v{VLANE}
    v_lshlrev_b32 v{VFA}, {2 if Cfg.fw == 1 else 7}, v{VFA}
    v_lshrrev_b32 v{VO}, 2, v{VLANE}
    s_mov_b32 s38, 73728
    v_mul_lo_u32 v{VO}, v{VO}, s38
    v_and_b32 v206, 3, v{VLANE}
    v_lshl_add_u32 v{VO}, v206, 4, v{VO}
    s_mul_i32 s38, s52, 1152
    v_add_u32 v{VO}, s38, v{VO}""")
    a(f's_mul_i32 s{sFP}, s52, 36864\ns_mul_i32 s38, s{sWV}, 12288\ns_add_u32 s{sFP}, s{sFP}, s38\ns_add_u32 s{sFP}, s{sFP}, {P_OFF}')
    return sops('\n'.join(a.l))
def cls_block(a, mask, body, inv=False):
    l = a.label('CB'); a(f's_and_b32 s98, s{sCLS}, {mask}\ns_cbranch_scc{1 if inv else 0} {l}'); s0 = a.snap()
    body(a); a(f'{l}:'); a.merge(s0, a.snap())
SE = [56, 8]
def eld(hf, w):
    def f(a):
        if Cfg.fw == 1: a(f's_buffer_load_dwordx8 s[{w}:{w+7}], {S(SWS)}, s{sFO+hf} glc')
        else:
            for i in range(8): a(f's_buffer_load_dword s{w+i}, {S(SWS)}, s{sFO+hf} offset:{128*i} glc')
        a.smem = True
    return f
def etest(a, hf, w):
    for i in range(8): a(f's_sub_u32 s{w+i}, s{w+i}, s{sND+hf}')
    for i in (0, 2, 4, 6): a(f's_max_u32 s{w+i}, s{w+i}, s{w+i+1}')
    a(f's_max_u32 s{w}, s{w}, s{w+2}\ns_max_u32 s{w+4}, s{w+4}, s{w+6}\ns_max_u32 s{w}, s{w}, s{w+4}\ns_cmp_gt_u32 s{w}, 8')
def etry_c(hf, w):
    def f(a):
        a.drain()
        if Cfg.blk & (1 << hf):
            cls_block(a, 1 << hf, lambda a: eblock(a, hf, w, Cfg.slp)); return
        etest(a, hf, w)
        a(f"""s_cselect_b32 s98, {1 << hf}, 0
        s_and_b32 s98, s98, s{sCLS}
        s_mul_i32 s98, s98, 5
        s_xor_b32 s{sCLS}, s{sCLS}, s98""")
    return f
def eblock(a, hf, w, slp=None):
    lc = a.label('EC'); lk = a.label('EK')
    etest(a, hf, w)
    a(f's_cbranch_scc1 {lc}\n{lk}:')
    a.ool += [f'{lc}:', f' buffer_load_dword v{VPO}, v{VFA}, {S(SWS)}, s{sFO+hf} offen sc1', ' s_waitcnt vmcnt(0)', f' v_subrev_u32 v{VPO}, s{sND+hf}, v{VPO}', f' v_cmp_lt_u32 vcc, 8, v{VPO}', ' s_nop 1', ' s_cmp_lg_u64 vcc, 0',
              f' s_cbranch_scc0 {lk}', f' s_sub_u32 s{sP}, s{sP}, 1', f' s_cbranch_scc1 {lc}_x', f' s_sleep {slp or Cfg.slp2}', f' s_branch {lc}', f'{lc}_x:', f' s_mov_b32 s{sP}, 0', f' s_branch {lk}']
def pl_ops(hf, i0, i1, srd_=SWS):
    o = []
    for i in range(i0, i1):
        if i % 4 == 0 or i == i0: o.append(V(f's_add_u32 s3, s{sPB+hf}, {4096*(i//4)}'))
        o.append(VM(f'buffer_load_dwordx4 {vr(PTH[hf]+4*i)}, v{VL16}, {S(srd_)}, s3 offen offset:{1024*(i%4)} sc1 {NT(2)}', ('pt', hf)))
    return o
def loads_if(hf, m): return [FN(lambda a, k=k: cls_block(a, m, lambda a: emit(a, pl_ops(hf, 2*k, 2*k+2)))) for k in range(8)]
def xb_ops():
    o = [V(f'v_lshrrev_b32 v{VBI}, 5, v{VLANE}'), V(f'v_lshlrev_b32 v{VBI}, 3, v{VBI}')]
    for hf in range(2):
        o.append(V(f'v_add_u32 v1, s{sXO+hf}, v{VBI}\nv_add_u32 v1, {B2_LDS}, v1'))
        for q in range(4): o.append(LD(f'ds_read_b64 {ar(AB2+8*hf+2*q,2)}, v1 offset:{16*q}'))
    for hf in range(2):
        for i in range(2): o.append(VM(f'buffer_load_dwordx4 {ar(AX+8*hf+4*i)}, v{VO}, {S(SX)}, s{sXO+hf+2*i} offen', 'x2'))
    return o
TWL = XP_LDS
def coop_tw(wv=None, dst=None):
    t = TMP; sc = 2.0/(2048*576)
    o = f"""v_and_b32 v{t}, 31, v{VLANE}
    v_lshrrev_b32 v{t+1}, 5, v{VLANE}
    v_lshlrev_b32 v207, 2, v{t+1}
    v_sub_u32 v207, v{t}, v207
    v_lshlrev_b32 v{t}, 6, v{t}
    v_add_u32 v{t}, s52, v{t}
    s_lshr_b32 s38, {'s%d' % sWV if wv is None else wv}, 1
    s_and_b32 s39, {'s%d' % sWV if wv is None else wv}, 1
    s_lshl_b32 s8, s38, 4
    s_lshl_b32 s9, s39, 2
    s_add_u32 s8, s8, s9
    v_lshl_add_u32 v{t+1}, v{t+1}, 3, s8
    v_mul_u32_u24 v{t+1}, v{t+1}, v{t}
    s_add_u32 s8, s8, s9
    v_subrev_u32 v207, s8, v207
    s_lshl_b32 s38, s38, 10
    s_lshl_b32 s39, s39, 3
    s_add_u32 s38, s38, s39
    s_add_u32 s38, s38, {TWL if dst is None else dst}
    v_add_u32 v206, s38, v{VL16}
"""
    R = [208+i for i in range(8)]
    L = []
    for i in range(4): L.append(f'v_mad_u32_u24 v{R[i]}, v{t}, {i}, v{t+1}')
    for i in range(4): L.append(f'v_and_b32 v{R[i]}, 0x7ff, v{R[i]}')
    for i in range(4): L.append(f'v_cvt_f32_u32 v{R[i]}, v{R[i]}')
    for i in range(4): L.append(f'v_mul_f32 v{R[i]}, {f2u(1/2048):#x}, v{R[i]}')
    for i in range(4): L.append(f'v_cos_f32 v{R[4+i]}, v{R[i]}')
    for i in range(4): L.append(f'v_sin_f32 v{R[i]}, v{R[i]}')
    for i in (4,5,6,7,0,1,2,3): L.append(f'v_mul_f32 v{R[i]}, {f2u(sc):#x}, v{R[i]}')
    L += [f'v_cvt_pk_bf16_f32 v{t}, v{R[4]}, v{R[5]}', f'v_cvt_pk_bf16_f32 v{t+1}, v{R[6]}, v{R[7]}', f'v_cvt_pk_bf16_f32 v{t+2}, v{R[0]}, v{R[1]}', f'v_cvt_pk_bf16_f32 v{t+3}, v{R[2]}, v{R[3]}',
          f'v_xor_b32 v{t+4}, 0x80008000, v{t+2}', f'v_xor_b32 v{t+5}, 0x80008000, v{t+3}',
          f'v_and_b32 v{R[0]}, 1, v207', f'v_lshlrev_b32 v{R[0]}, 4, v{R[0]}', f'v_mov_b32 v{R[1]}, 0x3f80', f'v_lshlrev_b32 v{R[0]}, v{R[0]}, v{R[1]}', 'v_and_b32 v207, -2, v207',
          'v_cmp_eq_u32 vcc, 0, v207', 's_nop 1', f'v_cndmask_b32 v{t+6}, 0, v{R[0]}, vcc', 'v_cmp_eq_u32 vcc, 2, v207', 's_nop 1', f'v_cndmask_b32 v{t+7}, 0, v{R[0]}, vcc']
    ops = sops(o + '\n'.join(L))
    ops += [(8, LD(f'ds_write_b64 v206, {vr(t+2*m,2)} offset:{2048*m}')[1]) for m in range(4)]
    return ops
def tw_reads(src=None):
    return [V(f'v_add_u32 v206, {TWL if src is None else src}, v{VL16}')] + [LD(f'ds_read_b128 {ar(TW+4*i)}, v206 offset:{1024*i}') for i in range(8)]

PB = 24576
def fin_addr():
    return sops(f"""s_add_u32 s38, s{sW2K}, {PB}
    v_lshrrev_b32 v6, 5, v{VLANE}
    v_bfe_u32 v7, v{VLANE}, 2, 2
    v_lshl_add_u32 v6, v6, 3, v7
    v_lshlrev_b32 v6, 7, v6
    v_bfe_u32 v7, v{VLANE}, 1, 1
    v_lshl_add_u32 v6, v7, 6, v6
    v_bfe_u32 v7, v{VLANE}, 4, 1
    v_lshl_add_u32 v6, v7, 4, v6
    v_and_b32 v7, 1, v{VLANE}
    v_lshl_add_u32 v6, v7, 3, v6
    v_add_u32 v6, s38, v6
    v_add_u32 v7, s38, v{VL16}
    s_lshl_b32 s38, s{sWV}, 12
    v_add_u32 v3, s38, v{VL16}
    v_add_u32 v1, 73728, v3
    s_lshl_b32 s38, s{sWV}, 14
    s_add_u32 s38, s38, {PB + 6144}
    v_add_u32 v247, s38, v{VL16}
    s_mov_b32 s39, {f2u(-math.log2(math.e)):#x}""")
APF = 32
def prd(jj):
    return [LD(f'ds_read_b64_tr_b16 {ar(APF+16*jj+8*p+4*t+2*rho,2)}, v6 offset:{8192*(2*jj+t)+512*rho+32*p}', ('pf', jj))
            for t in range(2) for p in range(2) for rho in range(2)]
def final(a):
    Ea=72; Oa=88; YS=[104,208,72]; GA=[208, 104]; PK2=224; T=240; VY=7; VG=3; VG2=1; AY=16
    cv, st = part_inplace(JC[0], 3)
    brole(a, R_FINW, 'L_nfw', False); s0 = a.snap()
    la = a.l; a.l = []; a('L_nfw:')
    a('s_nop 8'); emit(a, mix(cv, st))
    brole(a, R_FIN, 'L_w3'); s3_ = a.snap()
    setflag2(a, 8, ('p',3)); a('s_branch L_fin')
    a('L_w3:'); a.restore(s3_)
    for k in range(6):
        a(f's_mov_b32 m0, {122880 + 4096*k}\ns_mov_b32 s96, {86016 - 6144 + 4096*k}\nv_lshl_add_u64 {vr(VTT,2)}, s[96:97], 0, {vr(VTB,2)}')
        for i in range(4): a.vm(f'global_load_lds_dwordx4 {vr(VTT,2)}, off offset:{1024*i}')
        if k == Cfg.w3b: a.vneed(('d', 104)); a('s_barrier')
    setflag2(a, 8, ('p',3))
    a.vdrain(); a('s_barrier\ns_branch L_fin')
    HOT.extend(a.l); a.l = la; a.restore(s0)
    lc = a.label('PR'); lk = a.label('PL')
    if not Cfg.blk & 4: a(f's_cmp_lg_u32 s11, 0\ns_cbranch_scc1 {lc}')
    else: a('s_nop 1')
    t = E(); t.nlab = 9000
    t(f'{lc}:\ns_nop 7'); emit(t, mix(cv, st))
    t.vm(poll_ins(200, 204, '0'), 'x'); t.vm(poll_ins(202, 205, '0'), 'y')
    poll_check(t, 'x', 200, 204, '0', 1); poll_check(t, 'y', 202, 205, '0', 1)
    t.drain()
    for q in range(93, 99):
        for f in plan(q, 'P'): f(t)
    t.vdrain(); emit(t, prd(0) + prd(1) + prd(2)); t.drain()
    C=lambda t: ar(TW+4*t); Sn=lambda t: ar(TW+8+4*t); N=lambda t: ar(TW+16+4*t)
    def inv(jj):
        yr=vr(YS[jj],16); yi=vr(YS[jj]+16,16); P=APF+16*jj; mf=[]
        for u in range(2):
            mf += [f'{M} {yr}, {ar(P+4*u)}, {C(u)}, {"0" if u==0 else yr}', f'{M} {yi}, {ar(P+8+4*u)}, {C(u)}, {"0" if u==0 else yi}',
                   f'{M} {yr}, {ar(P+8+4*u)}, {N(u)}, {yr}', f'{M} {yi}, {ar(P+4*u)}, {Sn(u)}, {yi}']
        return mf
    for x in inv(0): t(x)
    t(f's_nop 4\ns_branch {lk}')
    if not Cfg.blk & 4: a.ool += t.l + t.ool
    def pk(jj):
        o = []
        for q in range(4):
            o += [V(f'v_cvt_pk_bf16_f32 v{YS[jj]+8*q+i}, v{YS[jj]+8*q+2*i}, v{YS[jj]+8*q+2*i+1}') for i in range(4)]
            o.append(LD(f'ds_write_b128 v{VY}, {vr(YS[jj]+8*q)} offset:{8192*(2*jj+q%2)+1024*(q//2)}', 'yw'))
        return o
    a.need(('pf', 0))
    mf = inv(0)
    for x in mf[:2]: a(x)
    a('s_nop 2')
    interleave(a, mf[2:], mix(cv, st))
    a.need(('pf', 2))
    a(f'{lk}:')
    stamp(a, 'f1')
    if not (Cfg.blk & 2 and Cfg.sch[3] == '1'): eld(1, 56)(a)
    eld(0, 20)(a)
    for jj in (1, 2):
        mf = inv(jj)
        for x in mf[:2]: a(x)
        a('s_nop 5')
        interleave(a, mf[2:], pk(jj-1))
    def summ(hf):
        y = vr(GA[hf], 16)
        o = [f'{M} {y}, {ar(SEL)}, {ar(AB2+8*hf)}, 0', f'{M} {y}, {ar(SEL+4)}, {ar(AB2+8*hf+4)}, {y}']
        return o + [f'{M} {y}, {ar(SEL+4*(i%2))}, {vr(PTH[hf]+4*i)}, {y}' for i in range(16)]
    VW = 204; VR = 205
    setup = sops(f"""s_mul_i32 s38, s{sWV}, 5120
    s_add_u32 s38, s38, {BIAS_LDS}
    v_and_b32 v{VW}, 31, v{VLANE}
    v_mul_u32_u24 v{VW}, 80, v{VW}
    v_add3_u32 v{VW}, v{VW}, v{VBI}, s38
    v_lshrrev_b32 v{VR}, 2, v{VLANE}
    v_mul_u32_u24 v{VR}, 80, v{VR}
    v_and_b32 v206, 3, v{VLANE}
    v_lshlrev_b32 v206, 4, v206
    v_add3_u32 v{VR}, v{VR}, v206, s38""")
    XU = [8, 120]; U0 = 24; GB = 40
    def xun(hf):
        d = vr(XU[hf], 16)
        return [f'{M} {d}, {ar(SEL)}, {ar(AX+8*hf)}, 0', f'{M} {d}, {ar(SEL+4)}, {ar(AX+8*hf+4)}, {d}']
    def sum0(t):
        y = vr(GA[0] if t == 0 else GB, 16)
        return [f'{M} {y}, {ar(SEL+4*t)}, {ar(AB2+4*t)}, 0'] + [f'{M} {y}, {ar(SEL+4*t)}, {vr(PTH[0]+8*i+4*t)}, {y}' for i in range(8)]
    def u0(): return [V(f'v_fma_f32 v{U0+i}, v{Oa+i}, s{sSG}, v{Ea+i}') for i in range(16)]
    def wr(hf, g): return LD(f'ds_write_b64 v{VW}, {vr(PK2+8*hf+g//2,2)} offset:{2560*hf+4*g}')
    def outp(hf):
        o = [LD(f'ds_read_b128 {vr(PK2+8*hf+4*i)}, v{VR} offset:{2560*hf+1280*i}', ('tr', hf, i)) for i in range(2)]
        st = [FN(lambda a, i=i: (a.need(('tr', hf, i)), a.vm(f'buffer_store_dwordx4 {vr(PK2+8*hf+4*i)}, v{VO}, {S(SOUT)}, s{sXO+hf+2*i} offen {Cfg.ofl}'))) for i in range(2)]
        return o, st
    def fin0(t):
        o = []
        for g in (8*t, 8*t+4):
            y = [(GA[0] if t == 0 else GB)+g+i for i in range(4)]; r = [T+i for i in range(4)]
            x = [f'v_mul_f32 v{r[i]}, s39, v{y[i]}' for i in range(4)] + [f'v_exp_f32 v{r[i]}, v{r[i]}' for i in range(4)]
            x += [f'v_add_f32 v{r[i]}, 1.0, v{r[i]}' for i in range(4)] + [f'v_rcp_f32 v{r[i]}, v{r[i]}' for i in range(4)]
            x += [f'v_mul_f32 v{y[i]}, v{U0+g+i}, v{y[i]}' for i in range(4)] + [f'v_fma_f32 v{r[i]}, v{r[i]}, v{y[i]}, v{XU[0]+g+i}' for i in range(4)]
            x += [f'v_cvt_pk_bf16_f32 v{PK2+g//2+i}, v{r[2*i]}, v{r[2*i+1]}' for i in range(2)]
            o += [V(z) for z in x] + [wr(0, g)]
        return o
    def rdyg(i):
        j = i//4; r = i % 4; go = 12288*j + 1024*r
        a.lds(f'ds_read_b128 {ar(AY+4*r)}, v{VY} offset:{8192*(2*(j%3) + r//2) + 2048*(j//3) + 1024*(r%2)}', ('yg', i))
        if j < 2:    a.lds(f'ds_read_b128 {ar(4*r)}, v{VG} offset:{go}', ('yg', i))
        elif j == 2: a.lds(f'ds_read_b128 {ar(4*r)}, v247 offset:{8192*(r//2) + 1024*(r%2)}', ('yg', i))
        else:        a.lds(f'ds_read_b128 {ar(4*r)}, v{VG2} offset:{go-36864}', ('yg', i))
    stamp(a, 'f2')
    def mainm(i):
        j = i//4; u = (i//2) % 2
        d = vr(Ea if (u == 1) == (j < 5) else Oa, 16)
        a(f'{M} {d}, {ar(4*(i%4))}, {ar(AY+4*(i%4))}, {"0" if i in (0,2) else d}')
    def silu(hf):
        o = []
        for g in range(0, 16, 4):
            y = [GA[hf]+g+i for i in range(4)]; t = [T+i for i in range(4)]
            o += [V(f'v_mul_f32 v{t[i]}, s39, v{y[i]}') for i in range(4)] + [V(f'v_exp_f32 v{t[i]}, v{t[i]}') for i in range(4)] + [V(f'v_add_f32 v{t[i]}, 1.0, v{t[i]}') for i in range(4)]
            o += [V(f'v_rcp_f32 v{t[i]}, v{t[i]}') for i in range(4)] + [V(f'v_mul_f32 v{y[i]}, v{t[i]}, v{y[i]}') for i in range(4)]
        return o
    def comb(hf):
        o = []
        for g in range(0, 16, 4):
            u = [248+i for i in range(4)]
            o += [V(f'v_fma_f32 v{u[i]}, v{Oa+g+i}, s{sSG+hf}, v{Ea+g+i}') for i in range(4)] + [V(f'v_fma_f32 v{u[i]}, v{u[i]}, v{GA[hf]+g+i}, v{XU[hf]+g+i}') for i in range(4)]
            o += [V(f'v_cvt_pk_bf16_f32 v{PK2+8*hf+g//2+i}, v{u[2*i]}, v{u[2*i+1]}') for i in range(2)] + [wr(hf, g)]
        return o + outp(hf)[0]
    if Cfg.f8 == 99: setflag2(a, 8, ('p',3))
    a(f's_and_b32 s98, s{sCLS}, {1|4|16}\ns_cselect_b32 s98, 64, 0\ns_or_b32 s{sCLS}, s{sCLS}, s98')
    def point(a):
        def b(a):
            l = a.label('T0'); a.drain(); etest(a, 0, 20); eld(0, 20)(a); a(f's_cbranch_scc1 {l}'); s0 = a.snap()
            emit(a, pl_ops(0, 0, 16)); a(f's_xor_b32 s{sCLS}, s{sCLS}, {64|256}\n{l}:'); a.merge(s0, a.snap())
        cls_block(a, 64, b)
    def must0(a):
        def b(a):
            l = a.label('MS'); l2 = a.label('MT')
            a(f's_mov_b32 s99, 6\n{l}:'); a.drain(); etest(a, 0, 20); a(f's_cbranch_scc0 {l2}'); eld(0, 20)(a)
            a(f's_sub_u32 s99, s99, 1\ns_cbranch_scc0 {l}'); a.drain(); eblock(a, 0, 20); a(f'{l2}:'); stamp(a, 'g2')
            emit(a, pl_ops(0, 0, 16))
        cls_block(a, 64, b)
        a.vdrain()
    pts = [int(x) for x in str(Cfg.pts).split('_')]
    noslow = Cfg.blk & 2 and Cfg.sch[3] == '1'
    if not noslow: a(f's_bitcmp1_b32 s{sCLS}, 12\ns_cbranch_scc0 L_slow')
    s_sl = a.snap()
    a.vneed(('d', 104))
    s1 = summ(1) + xun(1) + xun(0)
    for x in s1[:2]: a(x)
    a('s_nop 2')
    interleave(a, s1[2:9], pk(2) + [V(f'v_add_u32 v{VY}, {PB}, v{VL16}')])
    interleave(a, s1[9:12], setup)
    stamp(a, 'f3')
    a.drain(); a('s_barrier')
    t = E(); etest(t, 0, 20)
    t(f's_cselect_b32 s98, 0, 64\ns_and_b32 s98, s98, s{sCLS}\ns_mul_i32 s98, s98, {1 + 4 + 128}\ns_xor_b32 s{sCLS}, s{sCLS}, s98')
    interleave(a, s1[12:], [FN(lambda a: rdyg(0)), FN(lambda a: rdyg(1)), FN(lambda a: rdyg(2))] + sops('\n'.join(t.l)) + ([FN(eld(0, 20))] if Cfg.rfi < 0 else []))
    stamp(a, 'f4')
    def mainloop(fl, start, hook):
        k2 = 0
        for i in range(36):
            if i + 3 < 36: rdyg(i+3)
            a.need(('yg', i), *([('yg', i+1)] if i % 2 == 0 and Cfg.mw else []))
            mainm(i)
            hook(i)
            while i >= start and k2 < len(fl)*(i-start+1)//(35-start) and k2 < len(fl): fl[k2][1](a); k2 += 1
            if i == 24: a('s_barrier')
    def hookf(i):
        if i % Cfg.ls == 0 and i//Cfg.ls < 4: cls_block(a, 1 << 13, lambda a: emit(a, pl_ops(0, 4*(i//Cfg.ls), 4*(i//Cfg.ls)+4)))
        if i == Cfg.rfi: eld(0, 20)(a)
        if i in pts: point(a)
    mainloop(silu(1), 1, hookf)
    stamp(a, 'f5')
    lf = a.label('FF')
    a(f's_bitcmp1_b32 s{sCLS}, 6\ns_cbranch_scc1 {lf}'); s0 = a.snap()
    a.vdrain()
    stamp(a, 'f6')
    sA = sum0(0); sB = sum0(1)
    for x in sA[:2]: a(x)
    a('s_nop 5')
    interleave(a, sA[2:], comb(1))
    interleave(a, sB[:3], u0() + outp(1)[1])
    a('s_branch L_last'); sa = a.snap()
    a(f'{lf}:'); a.restore(s0)
    point(a)
    a('s_nop 7')
    emit(a, comb(1) + u0() + outp(1)[1])
    a('L_w0:')
    stamp(a, 'g1')
    must0(a)
    stamp(a, 'f6')
    for x in sA + sB[:2]: a(x)
    a('s_nop 7'); a(sB[2])
    a('L_last:'); a.merge(sa, a.snap())
    interleave(a, sB[3:], fin0(0))
    stamp(a, 'f8b')
    a('s_nop 3')
    emit(a, fin0(1))
    stamp(a, 'f9')
    emit(a, outp(0)[0] + outp(0)[1])
    global SLOW
    SLOW = []
    if noslow: return
    la = a.l; a.l = []
    a('L_slow:'); a.restore(s_sl)
    emit(a, setup + pk(2))
    a(f'v_add_u32 v{VY}, {PB}, v{VL16}')
    stamp(a, 'f3')
    a.vneed(('d', 104)); a.drain(); a('s_barrier')
    stamp(a, 'f4')
    for i in range(3): rdyg(i)
    etest(a, 1, 56); a(f's_cselect_b32 s98, 128, 0\ns_or_b32 s{sCLS}, s{sCLS}, s98')
    def hook(i):
        if i % 2 == 0 and i < 8: cls_block(a, 128, lambda a: emit(a, pl_ops(1, 2*i, 2*i+4)), inv=True)
        if i in pts: cls_block(a, 128, point, inv=True)
        if i == 22: eld(1, 56)(a)
    mainloop([], 0, hook)
    a.drain()
    cls_block(a, 128, lambda a: (eblock(a, 1, 56), eld(0, 20)(a), emit(a, pl_ops(1, 0, 16))))
    stamp(a, 'f5')
    point(a)
    l = a.label('RD')
    a(f's_bitcmp1_b32 s{sCLS}, 8\ns_cbranch_scc1 {l}\ns_waitcnt vmcnt(0)\n{l}:\ns_waitcnt vmcnt(16)')
    stamp(a, 'g0')
    for x in summ(1) + xun(1) + xun(0): a(x)
    point(a)
    a('s_nop 5')
    emit(a, silu(1)); point(a); emit(a, comb(1) + u0() + outp(1)[1])
    assert not a.st['l']
    a('s_branch L_w0')
    SLOW = a.l; a.l = la

def build(aslist=False):
    k = NAME + '_kernel'
    body = kernel()
    if Cfg.warm:
        import stubs
        body, st, end = stubs.add_stubs(body, '.set CODE_LINES, 17\n', ('L_main', 'L_odd', 'L_dft', 'L_s3', 'L_unit', 'L_s7e', 'L_finw', 'L_hot') + (('L_s9',) if Cfg.w3 == 2 else ()) + (('TW_*',) if Cfg.tws else ()), Cfg.wmode)
        print('stubs', {k: [hex(x) for x in v] for k, v in st.items()}, 'end', end, file=sys.stderr)
    hdr = f'; @launch kernel={k} grid=(256,1,1) block=(256,1,1) lds=163840\n' if aslist else '; @launch grid=(256,1,1) block=(256,1,1) lds=163840\n'
    s = '; generated by gen/v6.py\n' + hdr + '.amdgcn_target "amdgcn-amd-amdhsa--gfx950"\n.text\n.set CODE_LINES, 26\n'
    s += kstart(k) + body + 'L_codeend:\n'
    s += '.section .rodata,"a"\n' + kdesc(k, 512, 256) + tables()
    return s
if __name__ == '__main__':
    out = sys.argv[1] if len(sys.argv) > 1 else f'cdna_kernels/{NAME}.s'
    for x in sys.argv[2:]:
        if '=' in x:
            kx, vx = x.split('='); setattr(Cfg, kx, int(vx) if re.fullmatch(r'-?\d+', vx) and kx != 'sch' else vx)
    open(out, 'w').write(build('--list' in sys.argv))
```

```python
import sys, re
from common2 import *
M = 'v_mfma_f32_32x32x16_bf16'
VL16=0; VT1=1; VLANE=2; VT3=3; VA1=4; VB1=5; VA2=6; VB2=7
XF=8; ACC=[152,184]; TMP=216; HO=224; TA=240; VBI=246; VC0=247; VFL=248; VPO=250; VTB=252; VTT=254
HF=32; TW=176
SX,SW1,SW2,SWS,SWR,SWI,SOUT,SB,SDBG = 4,8,12,16,20,24,28,32,36
sWV,sI,sC,sB,sROLE,sNON = 40,41,42,43,44,45
sO1=46; sO2=55; sW2K=64; sHS=65; sPS=66; sFLG=67; sT=68; sT2=69; sGC1=70; sP=71
sRHO=39
sX0=96
R_ODD,R_DFT,R_SMID,R_UNIT,R_FIN,R_FINW,R_PATCH = 0,1,2,3,4,5,6
PF=3; NB=4
GC0 = -2.0*math.log2(math.e)*math.sqrt(2/math.pi); GC1 = GC0*0.044715
BIAS_LDS = 147456
B2_LDS = 163840 - 2048
class Cfg:
    stamps=False; st='1,2,3,4,5,6,7,8,9,10'; xa=3; lg=1; pm=340; f8=99; w3d=1; f2o=44; e2nd=22; blk=6; rfi=10; f6=54; p9=30; sch='1x-1'; ta=22; tws=1; eo=1; hf=0; j1=1; tw3=0; nl=2; wsl=0; bf=0; fp0=7; be=1; ce=0; f9=0; nso=1; ct=1; xl=6; pts='25'; mw=1; cp=0; fs=1; fw=1; pd=18; ls=3; rf=1; w3b=0; ecl=1; ge=40; c5=24; pe=23; e8=6; nt=0; f5h=76; noclr=0; t1=5; t2=99; ne=9; c0=20; b2=1; pz1=0; pz2=4; sd=4; tw1=1; warm=1; wmode='execz'; clk=0; xe=1; fp=3; f7=60; gs=55; l9=46; l10=34; mg=0; tn=108; w2k=99; rots=1; np=6; te=0; pt='w2,b1,b2,wr,wi,dbg'; w3=1; xo=1; f16=1; gs0=1; e2=50; l2=0; t9=30; t10=8; pfg=44; ofl=''; h8=44; f4=26; c4=20; f5=14; p8=60; fg=24; pg=52; cg=8; tb=4; normin=0; rx=8; rota=1; rotb=1; touch='x2,w,tab,code'; spin=100000; slp=8; slp2=2; rr=1; wt=1
def h2(x):
    u = struct.unpack('<H', struct.pack('<e', x))[0]; return u | u << 16
def S(b): return f's[{b}:{b+3}]'
def stamp(a, nm):
    if not Cfg.stamps: return
    L = ['0'] + Cfg.st.split(',') + ['11']
    nm = str(nm)
    if nm in L:
        i = L.index(nm) if nm != '11' else 11
        a(f'{"s_memtime" if Cfg.clk else "s_memrealtime"} s[{72+2*i}:{73+2*i}]')
def stamp_flush(a, n):
    if not Cfg.stamps: return
    a.vdrain(); stamp(a, n); n += 1
    a(f'''s_waitcnt lgkmcnt(0)
    s_mov_b32 s{SWS+2}, {STAMP_OFF + (1<<20)}
    v_mov_b32 v1, 0''')
    for i in range(n): a(f'v_writelane_b32 v1, s{72+2*i}, {i}')
    a(f'v_writelane_b32 v1, s53, 12\nv_writelane_b32 v1, s11, 13\nv_writelane_b32 v1, s{sP}, 14')
    a(f'''s_lshl_b32 s{sT}, s2, 3
    s_add_u32 s{sT}, s{sT}, s{sWV}
    s_lshl_b32 s{sT}, s{sT}, 6
    s_add_u32 s{sT}, s{sT}, {STAMP_OFF}
    v_lshlrev_b32 v3, 2, v{VLANE}
    s_mov_b64 exec, 0xffff
    buffer_store_dword v1, v3, {S(SWS)}, s{sT} offen
    s_mov_b64 exec, -1''')
def brole(a, bit, lab, ifset=True):
    a(f's_bitcmp1_b32 s{sROLE}, {bit}\ns_cbranch_scc{1 if ifset else 0} {lab}')

def V(s, c=1): return (c, lambda a: a(s))
def VM(s, tag=None): return (1, lambda a: a.vm(s, tag))
def LD(s, tag=None): return (1, lambda a: a.lds(s, tag))
def FN(f, c=1): return (c, f)
def SVM(pre, s, tag=None): return (1, lambda a: (a(pre), a.vm(s, tag)))
def emit(a, ops):
    for _, f in ops: f(a)

def sops(txt):
    L = [x.split(';')[0].strip() for x in txt.split('\n')]; L = [x for x in L if x]
    o = []; cur = []
    for i, x in enumerate(L):
        cur.append(x)
        nx = L[i+1] if i+1 < len(L) else ''
        if nx.startswith(('s_cselect', 's_addc', 's_subb', 'v_cndmask', 's_nop')) or x.startswith(('s_nop', 'v_cmp')): continue
        o.append(V('\n'.join(cur), len(cur))); cur = []
    return o
def mix(x, y):
    o = []; k = 0
    for i, e in enumerate(x):
        o.append(e)
        t = len(y)*(i+1)//len(x)
        while k < t: o.append(y[k]); k += 1
    return o
def gelu_ops(acc, job, nb=None, sd=0):
    ops = []; G = 4; held = []
    for g in range(0, 32, G):
        t = [TMP + (g//G % 2)*4 + i for i in range(G)]
        x = [acc + g + i for i in range(G)]
        if not Cfg.f16:
            for i in range(G): ops.append(V(f'v_mul_f32 v{t[i]}, v{x[i]}, v{x[i]}'))
            for i in range(G): ops.append(V(f'v_fma_f32 v{t[i]}, v{t[i]}, s{sGC1}, v{VC0}'))
            for i in range(G): ops.append(V(f'v_mul_f32 v{t[i]}, v{t[i]}, v{x[i]}'))
            for i in range(G): ops.append(V(f'v_exp_f32 v{t[i]}, v{t[i]}', 2))
            for i in range(G): ops.append(V(f'v_add_f32 v{t[i]}, 1.0, v{t[i]}'))
            for i in range(G): ops.append(V(f'v_rcp_f32 v{t[i]}, v{t[i]}', 2))
            for i in range(G): ops.append(V(f'v_mul_f32 v{t[i]}, v{t[i]}, v{x[i]}'))
        else:
            HI = 'dst_sel:WORD_1 dst_unused:UNUSED_PRESERVE src0_sel:WORD_1'
            t = [TMP + i for i in range(4)]; u = [TMP + 4, TMP + 5]; w = [TMP + 6, TMP + 7]
            for i in range(2): ops.append(V(f'v_cvt_pk_f16_f32 v{u[i]}, v{x[2*i]}, v{x[2*i+1]}'))
            for i in range(2): ops.append(V(f'v_pk_mul_f16 v{w[i]}, v{u[i]}, v{u[i]}'))
            for i in range(2): ops.append(V(f'v_pk_fma_f16 v{w[i]}, v{w[i]}, s{sGC1}, v{VC0}'))
            for i in range(2): ops.append(V(f'v_pk_mul_f16 v{u[i]}, v{w[i]}, v{u[i]}'))
            for i in range(2): ops.append(V(f'v_exp_f16 v{w[i]}, v{u[i]}', 2))
            for i in range(2): ops.append(V(f'v_exp_f16_sdwa v{w[i]}, v{u[i]} {HI}', 2))
            for i in range(2): ops.append(V(f'v_pk_add_f16 v{u[i]}, v{w[i]}, 1.0 op_sel_hi:[1,0]'))
            for i in range(2): ops.append(V(f'v_rcp_f16 v{t[2*i]}, v{u[i]}', 2))
            for i in range(2): ops.append(V(f'v_rcp_f16_sdwa v{t[2*i+1]}, v{u[i]} dst_sel:WORD_0 dst_unused:UNUSED_PAD src0_sel:WORD_1', 2))
            for i in (0, 2, 1, 3): ops.append(V(f'v_fma_mix_f32 v{t[i]}, v{x[i]}, v{t[i]}, 0 op_sel_hi:[0,1,0]'))
        if nb is not None: ops.append((2, lambda a, g=g: a.lds(f'ds_read_b128 {vr(acc+g)}, v{VBI} offset:{256*nb + 8*g}', 'bias')))
        for i in range(0, G, 2): ops.append(V(f'v_cvt_pk_bf16_f32 v{HO + (g+i)//2}, v{t[i]}, v{t[i+1]}'))
        for i in range(0, G, 2): ops.append(V(f'v_accvgpr_write_b32 a{HF + 16*job + (g+i)//2}, v{HO + (g+i)//2}'))
        if g % 8 == 4:
            q = g // 8
            if q == 0: ops.append(V(f's_add_u32 s{sT2}, s{sHS}, {4096*job}'))
            held.append(VM(f'buffer_store_dwordx4 {vr(HO+4*q)}, v{VL16}, {S(SWS)}, s{sT2} offen offset:{1024*q} sc1', ('h', job)))
        if held and g//4 >= sd: ops.append(held.pop(0))
    return ops
def part_ops(acc, lam):
    ops = []
    for q in range(4):
        if q % 2 == 0: ops.append(V(f's_add_u32 s{sT2}, s{sPS}, {16384*(2*lam + q//2)}' if lam != 9 else f's_add_u32 s{sT2}, s{sL9}, {16384*(q//2)}'))
        for i in range(4): ops.append(V(f'v_cvt_pk_bf16_f32 v{HO+4*q+i}, v{acc+8*q+2*i}, v{acc+8*q+2*i+1}'))
        ops.append(VM(f'buffer_store_dwordx4 {vr(HO+4*q)}, v{VL16}, {S(SWS)}, s{sT2} offen offset:{1024*(q%2)} sc1', ('p', lam)))
    return ops
def clear_ops(sreg, imms, tag, r=HO):
    if Cfg.noclr: return [V('s_nop 0')]
    ops = [V(f'v_mov_b32 v{r+i}, -1' if r > 0 else f'v_accvgpr_write_b32 a{-r+i}, -1') for i in range(4)]
    ops = [(0, f) for _, f in ops]
    for im in imms:
        for k in range(2): ops.append(SVM(f's_add_u32 s3, s{sreg}, {im}', f'buffer_store_dwordx4 {vr(r) if r > 0 else ar(-r)}, v{VL16}, {S(SWS)}, s3 offen offset:{1024*k} sc1', tag))
    return ops
def sent_check(a, tag, regs, t, reload_lines, probe=None, slp=None):
    lc = a.label('SC'); ls = a.label('SS'); lk = a.label('SK')
    a.vneed(tag)
    a(f'{lc}:')
    rs = []
    for i, r in enumerate(regs):
        if r[0] == 'a': a(f'v_accvgpr_read_b32 v{t+i}, {r}'); rs.append(f'v{t+i}')
        else: rs.append(r)
    a(f'v_max_u32 v{t}, {rs[0]}, {rs[1]}')
    for i in range(2, len(rs), 2): a(f'v_max3_u32 v{t}, v{t}, {rs[i]}, {rs[i+1]}')
    a(f'v_cmp_eq_u32 vcc, -1, v{t}\ns_nop 1\ns_cmp_lg_u64 vcc, 0\ns_cbranch_scc1 {ls}\n{lk}:')
    pr = []
    if probe:
        pr = [' ' + x for x in probe[0]] + [f' v_and_b32 v{t+1}, {probe[1]}, v{VLANE}', f' v_lshlrev_b32 v{t+1}, 10, v{t+1}', f' buffer_load_dword v{t}, v{t+1}, {S(SWS)}, s3 offen offset:1020 sc1',
              ' s_waitcnt vmcnt(0)', f' v_cmp_eq_u32 vcc, -1, v{t}', ' s_nop 1', ' s_cmp_lg_u64 vcc, 0', f' s_cbranch_scc1 {ls}']
    a.ool += [f'{ls}:', f' s_sub_u32 s{sP}, s{sP}, 1', f' s_cbranch_scc1 {ls}_x', f' s_sleep {slp or (Cfg.slp2 if probe else Cfg.slp)}'] + pr + [x if x.endswith(':') else ' ' + x for x in reload_lines] + [' s_waitcnt vmcnt(0)', f' s_branch {lc}',
              f'{ls}_x:', f' s_mov_b32 s{sP}, 0', f' s_branch {lk}']
def lines_of(ops):
    t = E(); emit(t, ops); return [x.strip() for x in t.l]
def norm_ops(u):
    T = HO; r = XF + 8*u; ops = []
    for i in range(8): ops.append(V(f'v_dot2_f32_bf16 v{T+i}, v{r+i}, v{TMP+4}, v{TMP}'))
    for i in range(8): ops.append(V(f'v_dot2_f32_bf16 v{T+8+i}, v{r+i}, v{TMP+5}, v{TMP}'))
    for i in range(8): ops.append(V(f'v_cvt_pk_bf16_f32 v{r+i}, v{T+2*i}, v{T+2*i+1}'))
    return ops
def setflag(a, stage, *tags, off=None):
    a(f'v_mov_b32 v{VFL+1}, {stage}')
    a.vneed(*tags)
    a('s_mov_b64 exec, 1')
    a.vm(f'buffer_store_dwordx2 {vr(VFL,2)}, off, {S(SWS)}, s{sFLG if off is None else off} sc1')
    a('s_mov_b64 exec, -1')
def setflag2(a, stage, *tags):
    a(f'v_add_u32 v{VFL+1}, {stage-1}, v{VFL}')
    a(f's_add_u32 s3, s{sFLG}, {(stage-5)*16384*Cfg.fw if Cfg.fs else 0}')
    a.vneed(*tags)
    a('s_mov_b64 exec, 1')
    a.vm(f'buffer_store_dword v{VFL+1}, off, {S(SWS)}, s3 sc1')
    a('s_mov_b64 exec, -1')
def poll_ins(p, voff, soff): return f'buffer_load_dwordx2 {vr(p,2)}, v{voff}, {S(SWS)}, {soff} offen sc1' if voff is not None else f'buffer_load_dwordx2 {vr(p,2)}, off, {S(SWS)}, {soff} sc1'
def poll_test(a, p, need):
    a(f'''v_subrev_u32 v{p+1}, {need}, v{p+1}
    v_cmp_ne_u32 vcc, s{sNON}, v{p}
    v_cmp_lt_u32 s[{sX0+4}:{sX0+5}], 60, v{p+1}
    s_nop 1
    s_or_b64 vcc, vcc, s[{sX0+4}:{sX0+5}]''')
SPL = 0
def spoll_i(a): a(f's_buffer_load_dwordx2 s[{SPL}:{SPL+1}], {S(SWS)}, s34 glc'); a.smem = True
def spoll_c(need):
    def f(a):
        lc = a.label('QC'); lk = a.label('QK')
        a.drain()
        a(f"""s_sub_u32 s{SPL+1}, s{SPL+1}, {need}
        s_cmp_lt_u32 s{SPL+1}, 60
        s_cselect_b32 s{SPL}, s{SPL}, 0
        s_cmp_lg_u32 s{SPL}, s{sNON}
        s_cbranch_scc1 {lc}
        {lk}:""")
        t = E(); poll_test(t, VPO, need)
        a.ool += [f'{lc}:', ' ' + poll_ins(VPO, None, 's34'), ' s_waitcnt vmcnt(0)'] + t.l + [f' s_cbranch_scc0 {lk}', f' s_sub_u32 s{sP}, s{sP}, 1', f' s_cbranch_scc1 {lc}_x', f' s_sleep {Cfg.slp}', f' s_branch {lc}',
                  f'{lc}_x:', f' s_mov_b32 s{sP}, 0', f' s_branch {lk}']
    return f
def poll_check(a, tag, p, voff, soff, need):
    lc = a.label('PC'); ls = a.label('PS'); lk = a.label('PK')
    a.vneed(tag)
    a(f'{lc}:'); poll_test(a, p, need)
    a(f's_cbranch_scc1 {ls}\n{lk}:')
    a.ool += [f'{ls}:', f' s_sub_u32 s{sP}, s{sP}, 1', f' s_cbranch_scc1 {ls}_x', f' s_sleep {Cfg.slp}', ' ' + poll_ins(p, voff, soff), ' s_waitcnt vmcnt(0)', f' s_branch {lc}',
              f'{ls}_x:', f' s_mov_b32 s{sP}, 0', f' s_branch {lk}']

def slot(q): return (q % 18) * 8192
def rd_ops(kind, q, kk, n):
    fb = (n % NB) * 8; s = slot(q) + kk*2048
    if kind == 'dft':
        b = s // 49152; off = s % 49152
        return [(f'ds_read_b128 {ar(fb)}, v{VPO+b} offset:{off}', ('f', n)), (f'ds_read_b128 {ar(fb+4)}, v{VPO+b} offset:{off+1024}', ('f', n))]
    b = s // 49152; off = s % 49152; L = TA + 2*b; R = L + 1
    return [(f'ds_read_b64_tr_b16 {ar(fb,2)}, v{L} offset:{off}', ('f', n)), (f'ds_read_b64_tr_b16 {ar(fb+2,2)}, v{L} offset:{off+512}', ('f', n)),
            (f'ds_read_b64_tr_b16 {ar(fb+4,2)}, v{R} offset:{off}', ('f', n)), (f'ds_read_b64_tr_b16 {ar(fb+6,2)}, v{R} offset:{off+512}', ('f', n))]
def dma_buf(q, srd_, va, vb, sreg, imm, fl='', srd2=None):
    if Cfg.nso and imm <= 1024 and slot(q) >= imm:
        def f0(a):
            a(f's_add_u32 m0, s{sW2K}, {slot(q) - imm}')
            a.m0fix()
            a.vm(f'buffer_load_dwordx4 v{va}, {S(srd_)}, s{sreg} offen offset:{imm} {fl} lds', ('d', q))
        def f1(a): a.vm(f'buffer_load_dwordx4 v{vb}, {S(srd2 or srd_)}, s{sreg} offen offset:{1024+imm} {fl} lds', ('d', q))
        return [f0, f1]
    def f0(a):
        a(f's_add_u32 m0, s{sW2K}, {slot(q)}\ns_add_u32 s{sT}, s{sreg}, {imm}')
        a.vm(f'buffer_load_dwordx4 v{va}, {S(srd_)}, s{sT} offen {fl} lds', ('d', q))
    def f1(a): a.vm(f'buffer_load_dwordx4 v{vb}, {S(srd2 or srd_)}, s{sT} offen offset:1024 {fl} lds', ('d', q))
    return [f0, f1]
def dma_tab(q, imm=None, sreg=None):
    def f0(a):
        a(f's_add_u32 m0, s{sW2K}, {slot(q)}')
        if sreg is None: a(f's_mov_b32 s{sX0}, {imm}')
        else: a(f's_lshl_b32 s{sX0}, s{sreg}, 13\ns_add_u32 s{sX0}, s{sX0}, s{sPS}')
        a(f'v_lshl_add_u64 {vr(VTT,2)}, s[{sX0}:{sX0+1}], 0, {vr(VTB,2)}')
        a.vm(f'global_load_lds_dwordx4 {vr(VTT,2)}, off', ('d', q))
    def f1(a): a.vm(f'global_load_lds_dwordx4 {vr(VTT,2)}, off offset:1024', ('d', q))
    return [f0, f1]
def dma_alt(bit, ifset, ifclr, cond=None):
    def f0(a):
        l1 = a.label('DA'); l2 = a.label('DB')
        if not ifclr:
            brole(a, bit, l1, False); s0 = a.snap()
            for f in ifset: f(a)
            a(f'{l1}:'); a.merge(s0, a.snap()); return
        brole(a, bit, l1)
        s0 = a.snap()
        if ifclr:
            for f in ifclr: f(a)
        s1 = a.snap()
        if ifset:
            a(f's_branch {l2}\n{l1}:'); a.restore(s0)
            for f in ifset: f(a)
            a(f'{l2}:'); a.merge(s1, a.snap())
        else:
            a(f'{l1}:'); a.merge(s0, s1)
    return [f0, lambda a: None]
GORD = [1,2,3,4,0,5,6,7,8]; GE = [1,2,3,0,5,4,6,7,8]
class _EO:
    def __getitem__(self, i):
        L = [(6,0),(1,1),(7,0),(2,1),(3,1),(4,1),(0,1),(5,1),(6,1),(7,1),(8,1)]; L.insert(Cfg.e8, (8,0)); return L[i]
EORD = _EO()
def NT(b): return 'nt' if Cfg.nt & b else ''
def w1p(q): return dma_buf(q, SW1, VA1, VB1, sO1 + q % 9, 128*(q//9), NT(4))
def w2p(q, g, lam): return dma_buf(q, SW2, VA2, VB2, sO2 + g, 128*lam)
sSV, sFP, sL9 = 46, 54, 10
HOT = []
def plan(q, role=None):
    if q < 27 and role == 'N': return []
    if q < 9 and role == 'D': return dma_tab(q, sreg=sO2+q)
    if q < 45: return w1p(q)
    if q < 72:
        assert role
        if role == 'O':
            return w2p(q, GORD[(q-45)//2], 4 + 2*((q-45) % 2)) if q < 63 else w2p(q, GORD[q-63], 5)
        if q < 51: return w2p(q, GE[q-45], 0)
        if q < 54: return dma_tab(q, TABF_SZ + TABG_SZ + 8192*(q-51))
        if q < 57: return dma_buf(q, SWS, VL16, VL16, sSV, 8192*(q-54), 'sc1 ' + NT(1))
        if q < 60: return []
        return w2p(q, *EORD[q-60])
    if q < 90: return w2p(q, GORD[(q-72) % 9], 2 + (q-72)//9)
    k = q - 90
    if k < 3: return dma_tab(q, 8192*k)
    if k < 9:
        pp = dma_buf(q, SWS, VL16, VL16, sFP, 2048*(k-3), 'sc1')
        if role == 'P': return pp
        def f(a):
            l1 = a.label('DA'); l2 = a.label('DB')
            a(f's_cmp_lg_u32 s11, 0\ns_cbranch_scc1 {l1}')
            for g in pp: g(a)
            a(f'{l2}:')
            t = E(); t(f'{l1}:')
            for g in dma_tab(q, 24576 - 6144 + 2048*(k-3)): g(t)
            t(f's_branch {l2}'); HOT.extend(t.l)
        return [f]
    return dma_tab(q, 8192*k - 36864)

def bias_ops(acc, job): return [LD(f'ds_read_b128 {vr(acc+4*q)}, v{VBI} offset:{256*job + 32*q}', 'bias') for q in range(8)]
def bias_reads(a, acc, job):
    for q in range(8): a.lds(f'ds_read_b128 {vr(acc+4*q)}, v{VBI} offset:{256*job + 32*q}', 'bias')

def run(a, q0, npc, kind, mf, fills, nxt='tr', nextbias=None, norm=False, events=None, role=None, pause=None):
    events = events or {}
    N = 4*npc; n0 = 4*q0
    dq = []
    fs = [[ops, s, e, 0, 0, sum(c for c, _ in ops)] for ops, s, e in fills]
    for i in range(N):
        n = n0 + i; q = q0 + i//4; kk = i % 4
        j = i + PF; qn = q0 + j//4
        k2 = kind if j < N else nxt
        r = rd_ops(k2, qn, j % 4, n + PF) if k2 else []
        fb = (n % NB) * 8
        if kk == 0:
            for qq in events.get(('dma0', q), []) + [q + 12] + events.get(('dma', q), []): dq += plan(qq, role)
        paused = pause and pause[0] <= i//4 < pause[0] + pause[1]
        for h in range(2):
            gap = 2*i + h
            if h == 0 and kk == 0: stamp(a, f'q{q}')
            stamp(a, f'g{q0}_{gap}')
            for f in events.get(('pre', gap), []): f(a)
            if h == 0: a.need(('f', n), *(['bias'] if i == 0 else []), *([('f', n+1)] if Cfg.w2k and i % 2 == 0 and q < Cfg.w2k and not a.smem else []))
            acc, op, zero = mf(i//4, kk, h)
            d = vr(acc, 16) if acc >= 0 else ar(-acc, 16); c = '0' if zero else d
            if kind == 'dft': a(f'{M} {d}, {op}, {ar(fb+4*h)}, {c}')
            else:             a(f'{M} {d}, {ar(fb+4*h)}, {op}, {c}')
            if h == 0 and j % 12 == 0 and k2 and (4*q0) % 12 == 0:
                a.vneed(('d', qn), ('d', qn+1), ('d', qn+2), *events.get(('bar', qn), [])); a('s_barrier')
            if h == 0 and j == N and nextbias is not None:
                assert all(f[3] == len(f[0]) for f in fs)
                bias_reads(a, *nextbias)
            m = len(r)//2
            for ins, t in r[h*m:(h+1)*m]: a.lds(ins, t)
            if dq and not paused and ((h == 1 and (kk % 2 == 0 or len(dq) > 2)) or (len(dq) > N - i - 1)): dq.pop(0)(a)
            if norm and i//2 + 1 < 18:
                emit(a, norm_ops(i//2 + 1)[6*(gap % 4):6*(gap % 4)+6])
            for f in fs:
                if gap >= f[1]:
                    target = f[5] * min(1.0, (gap - f[1] + 1) / (f[2] - f[1]))
                    while f[3] < len(f[0]) and f[4] + f[0][f[3]][0]/2 <= target:
                        f[0][f[3]][1](a); f[4] += f[0][f[3]][0]; f[3] += 1
            for f in events.get(gap, []): f(a)
    assert all(f[3] == len(f[0]) for f in fs) and not dq
def only(bit, f):
    def g(a):
        l = a.label('ON'); brole(a, bit, l, False); s0 = a.snap()
        f(a); a(f'{l}:'); a.merge(s0, a.snap())
    return g
def masked(test, f):
    def g(a):
        a(test + '\ns_cselect_b64 exec, -1, 0'); s0 = a.snap()
        f(a); a('s_mov_b64 exec, -1'); a.merge(s0, a.snap())
    return g
def rolem(bit, f): return masked(f's_bitcmp1_b32 s{sROLE}, {bit}', f)
def rolem_ops(bit, ops, n): return [FN(rolem(bit, lambda a, x=ops[i:i+n]: emit(a, x))) for i in range(0, len(ops), n)]
def only_ops(bit, ops, n):
    return [FN(only(bit, lambda a, x=ops[i:i+n]: emit(a, x))) for i in range(0, len(ops), n)]
def first_reads(a, kind, q):
    for ks in range(PF):
        for ins, t in rd_ops(kind, q, ks, 4*q + ks): a.lds(ins, t)
def interleave(a, mf, ops, start=0):
    n = len(mf) - start; k = 0
    for i, x in enumerate(mf):
        a(x)
        if i >= start:
            t = len(ops) * (i - start + 1) // n
            while k < t: ops[k][1](a); k += 1

def twiddle_ops(dst, t, sym, sb, scale=None):
    o = [f'v_and_b32 v{t}, 31, v{VLANE}', f'v_lshrrev_b32 v{t+1}, 5, v{VLANE}']
    if sym == 'fwd':
        o += [f'v_lshlrev_b32 v{t+1}, 8, v{t+1}', f'v_add_u32 v{t+1}, s{sb}, v{t+1}', f'v_mul_u32_u24 v{t+1}, v{t+1}, v{t}', f'v_lshlrev_b32 v{t}, 6, v{t}']
        mult = lambda tt, e: 16*tt + (e & 3) + 8*(e >> 2)
    else:
        o += [f'v_lshlrev_b32 v{t}, 6, v{t}', f'v_add_u32 v{t}, s{sb}, v{t}', f'v_lshlrev_b32 v{t+1}, 3, v{t+1}', f'v_mul_u32_u24 v{t+1}, v{t+1}, v{t}']
        mult = lambda tt, e: 16*tt + e
    for tt in range(2):
        for e in range(0, 8, 2):
            for i in range(2): o.append(f'v_mad_u32_u24 v{t+2+i}, v{t}, {mult(tt, e+i)}, v{t+1}')
            for i in range(2): o.append(f'v_and_b32 v{t+2+i}, 0x7ff, v{t+2+i}')
            for i in range(2): o.append(f'v_cvt_f32_u32 v{t+2+i}, v{t+2+i}')
            for i in range(2): o.append(f'v_mul_f32 v{t+2+i}, {f2u(1/2048):#x}, v{t+2+i}')
            for i in range(2): o.append(f'v_cos_f32 v{t+4+i}, v{t+2+i}')
            for i in range(2): o.append(f'v_sin_f32 v{t+2+i}, v{t+2+i}')
            if scale:
                for i in (2,3,0,1): o.append(f'v_mul_f32 v{t+2+i}, {f2u(scale):#x}, v{t+2+i}')
            d = 4*tt + e//2
            o += [f'v_cvt_pk_bf16_f32 v{t+4}, v{t+4}, v{t+5}', f'v_cvt_pk_bf16_f32 v{t+2}, v{t+2}, v{t+3}', f'v_accvgpr_write_b32 a{dst+d}, v{t+4}',
                  f'v_xor_b32 v{t+3}, 0x80008000, v{t+2}', f'v_accvgpr_write_b32 a{dst+8+d}, v{t+2}', f'v_accvgpr_write_b32 a{dst+16+d}, v{t+3}']
    return [V(x) for x in o]

def prologue(a):
    rx = Cfg.rx; cx = 32//rx; nxc = 16//cx
    a(f"""s_cmpk_ge_u32 s2, 256
    s_cbranch_scc1 L_end
    s_load_dwordx16 s[44:59], s[0:1], 0
    s_load_dwordx4 s[60:63], s[0:1], 64
    s_load_dwordx2 s[64:65], s[0:1], 80
    s_memrealtime s[66:67]""")
    stamp(a, 0)
    a(f"""s_getpc_b64 s[100:101]
    L_pcref:
    s_lshr_b32 s97, s2, 3
    s_mul_i32 s97, s97, CODE_LINES*128
    v_lshlrev_b32 v{VPO}, 7, v0
    v_add_u32 v{VPO}, s97, v{VPO}
    v_min_u32 v{VPO}, L_codeend-L_pcref-4, v{VPO}
    v_mov_b32 v{VPO+1}, 0
    v_lshl_add_u64 {vr(VPO,2)}, s[100:101], 0, {vr(VPO,2)}
    v_cmp_gt_u32 vcc, CODE_LINES, v0
    s_and_saveexec_b64 s[98:99], vcc
    s_cbranch_execz L_noct
    global_load_dword a255, {vr(VPO,2)}, off
    L_noct:
    s_mov_b64 exec, -1
    s_and_b32 s96, s2, 7
    s_lshr_b32 s97, s2, 3
    s_and_b32 s{sC}, s96, {nxc-1}
    s_mul_i32 s{sC}, s{sC}, {cx}
    s_and_b32 s98, s97, {cx-1}
    s_add_u32 s{sC}, s{sC}, s98
    s_lshr_b32 s{sI}, s96, {nxc.bit_length()-1}
    s_mul_i32 s{sI}, s{sI}, {rx}
    s_lshr_b32 s98, s97, {cx.bit_length()-1}
    s_add_u32 s{sI}, s{sI}, s98
    v_lshrrev_b32 v1, 6, v0
    v_and_b32 v{VLANE}, 63, v0
    v_mov_b32 v{VTT}, v0
    v_readfirstlane_b32 s{sWV}, v1
    v_lshlrev_b32 v{VL16}, 4, v{VLANE}
    v_lshrrev_b32 v1, 3, v{VLANE}
    v_and_b32 v3, 7, v{VLANE}
    v_lshrrev_b32 v4, 1, v1
    v_xor_b32 v3, v3, v4
    s_mov_b32 s96, 73728
    v_mul_lo_u32 v1, v1, s96
    v_lshl_add_u32 v144, v3, 4, v1
    v_xor_b32 v145, 64, v144
    v_add_u32 v145, {8*73728-1024}, v145
    v_add_u32 v146, {16*73728}, v144
    v_add_u32 v147, {16*73728}, v145
    s_lshl_b32 s{sB}, s{sI}, 2
    s_add_u32 s{sB}, s{sB}, s{sWV}
    s_mul_i32 s96, s{sI}, {Cfg.rota}
    s_lshr_b32 s97, s{sC}, {Cfg.rots}
    s_mul_i32 s97, s97, {Cfg.rotb}
    s_add_u32 s96, s96, s97
    s_mul_i32 s97, s96, 7282
    s_lshr_b32 s97, s97, 16
    s_mul_i32 s97, s97, 9
    s_sub_u32 s96, s96, s97         ; rot
    s_mul_i32 s3, s{sB}, 1152
    s_lshl_b32 s99, s{sWV}, 11
    s_getpc_b64 s[100:101]
    s_add_u32 s100, s100, tabF@rel32@lo+4
    s_addc_u32 s101, s101, tabF@rel32@hi+12
    s_mov_b32 s{SX+2}, {2048*1152}
    s_mov_b32 s{SX+3}, 0x20000
    s_lshl_b32 s{sT}, s96, 7
    s_add_u32 s{sT}, s{sT}, s3
    s_mov_b32 m0, s99
    s_waitcnt lgkmcnt(0)
    s_mov_b32 s{SX}, s44
    s_and_b32 s{SX+1}, s45, 0xffff""")
    stamp(a, 'ka')
    if Cfg.wt:
        a(f'''s_lshr_b32 s97, s{sC}, 1
        s_add_u32 s98, s97, s{sI}
        s_and_b32 s98, s98, 7
        s_bitcmp1_b32 s{sC}, 0
        s_cselect_b32 s98, s98, 0
        s_cmp_lt_u32 s98, 5
        s_cbranch_scc1 L_nowt
        s_sub_u32 s98, s98, 5
        s_lshl_b32 s70, s98, 6
        s_add_u32 s70, s70, s{sB}
        s_lshl_b32 s98, s98, 2
        s_add_u32 s98, s98, s{sWV}
        s_mul_i32 s98, s98, {48*9216}
        s_mul_i32 s97, s97, 1152
        s_add_u32 s98, s98, s97
        v_mul_u32_u24 v3, 9216, v{VLANE}
        v_add_u32 v3, s98, v3
        s_mul_i32 s70, s70, {15*128}
        v_lshlrev_b32 v{VPO}, 7, v{VLANE}
        v_add_u32 v{VPO}, s70, v{VPO}
        v_mov_b32 v{VPO+1}, 0
        v_lshl_add_u64 {vr(VPO,2)}, s[100:101], 0, {vr(VPO,2)}
        v_lshlrev_b32 v1, 21, v{VLANE}
        s_bfm_b64 exec, 48, 0
        global_load_dword a255, v3, s[52:53]
        s_bfm_b64 exec, 15, 0
        global_load_dword a255, {vr(VPO,2)}, off
        s_mov_b64 exec, 7
        global_load_dword a255, v1, s[56:57]
        s_mov_b64 exec, 1''')
        for r in (54, 58, 46, 48, 62): a(f'global_load_dword a255, v1, s[{r}:{r+1}] offset:128')
        a(f'''s_mov_b64 exec, -1
        s_lshr_b32 s97, s{sC}, 1
        s_add_u32 s98, s97, s{sI}
        s_and_b32 s98, s98, 7
        s_sub_u32 s98, s98, 5
        s_and_b32 s97, s97, 1
        s_mul_i32 s97, s97, 3
        s_add_u32 s98, s98, s97
        s_lshl_b32 s98, s98, 2
        s_add_u32 s98, s98, s{sWV}
        s_mul_i32 s98, s98, {Cfg.tn*128}
        s_lshr_b32 s97, s{sI}, 3
        s_mul_i32 s97, s97, {5184*128}
        s_add_u32 s98, s98, s97
        s_lshr_b32 s97, s{sC}, 2
        s_mul_i32 s97, s97, {2*5184*128}
        s_add_u32 s98, s98, s97
        v_lshlrev_b32 v3, 7, v{VLANE}
        v_add_u32 v3, s98, v3
        s_bfm_b64 exec, 54, 0''')
        for k in range(Cfg.te): a(f'global_load_dword a255, v3, s[56:57]\nv_add_u32 v3, {54*128}, v3')
        a('s_mov_b64 exec, -1\nL_nowt:')
    for o in range(4):
        if o == 2: a('s_add_u32 m0, s99, 8192\ns_nop 0')
        a.vm(f'buffer_load_dwordx4 v{144+o}, {S(SX)}, s{sT} offen offset:{1024*(o%2)} lds', ('x', 0))
    a(f's_add_u32 s97, s96, 1\ns_cmp_eq_u32 s97, 9\ns_cselect_b32 s97, 0, s97\ns_lshl_b32 s{sT}, s97, 7\ns_add_u32 s{sT}, s{sT}, s3')
    for o in range(4):
        if o % 2 == 0: a(f's_add_u32 m0, s99, {16384 + 8192*(o//2)}\ns_nop 0')
        a.vm(f'buffer_load_dwordx4 v{144+o}, {S(SX)}, s{sT} offen offset:{1024*(o%2)} lds', ('x', 1))
    srd(a, SDBG, 62, 256); srd(a, SWS, 64, WS_SZ)
    srd(a, SWR, 46, 2048*578); srd(a, SWI, 48, 2048*578); srd(a, SW1, 52, 576*9216); srd(a, SB, 54, 9216)
    srd(a, SW2, 56, 4608*1152); srd(a, SOUT, 60, 2048*1152)
    a(f's_mov_b64 s[0:1], s[58:59]\ns_mov_b32 s{sW2K}, s99')
    XV = 144
    def xline(L):
        a(f's_lshl_b32 s{sT}, s{sO2+L}, 7\ns_add_u32 s{sT}, s{sT}, s3')
        for o in range(4):
            if o % 2 == 0: a(f's_add_u32 m0, s{sW2K}, {16384*L + 8192*(o//2)}\ns_nop 0')
            a.vm(f'buffer_load_dwordx4 v{XV+o}, {S(SX)}, s{sT} offen offset:{1024*(o%2)} lds', ('x', L))
    for L in range(9):
        a(f's_mov_b32 s{sO2+L}, s96')
        if 1 < L < Cfg.xa: xline(L)
        if L < 8: a('s_add_u32 s96, s96, 1\ns_cmp_eq_u32 s96, 9\ns_cselect_b32 s96, 0, s96')
    stamp(a, 'xi')
    nx = [Cfg.xa, 0]
    def xnext():
        if nx[1] < Cfg.xe: xline(nx[0]); nx[0] += 1; nx[1] += 1
    a(f'''s_or_b32 s66, s66, 1
    s_add_u32 s97, s2, s{sWV}
    s_cmp_lg_u32 s97, 0
    s_cbranch_scc1 L_nonon
    v_mov_b32 v1, s66
    s_mov_b64 exec, 1
    buffer_store_dword v1, off, {S(SDBG)}, 0 sc1
    s_mov_b64 exec, -1
    L_nonon:
    s_lshr_b32 s96, s{sC}, 1            ; p
    s_mul_i32 s{sNON}, s{sI}, {Cfg.rr}
    s_add_u32 s{sNON}, s{sNON}, s96
    s_and_b32 s{sNON}, s{sNON}, 7       ; rho
    s_and_b32 s{sROLE}, s{sC}, 1
    s_cmp_lt_u32 s{sNON}, 5
    s_cselect_b32 s97, s{sROLE}, 0
    s_lshl_b32 s97, s97, {R_DFT}
    s_xor_b32 s98, s{sROLE}, 1
    s_cmp_lt_u32 s{sNON}, 6
    s_cselect_b32 s98, s98, 0
    s_cmp_lt_u32 s{sWV}, 3
    s_cselect_b32 s99, {(1<<R_SMID)|(1<<R_UNIT)}, {1<<R_SMID}
    s_mul_i32 s98, s98, s99
    s_cselect_b32 s99, {(1<<R_FIN)|(1<<R_FINW)}, {1<<R_FIN}
    s_or_b32 s97, s97, s98
    s_and_b32 s98, s{sC}, 3
    s_cmp_lg_u32 s98, 2
    s_cselect_b32 s99, s99, 0
    s_or_b32 s97, s97, s99
    s_lshl_b32 s98, s{sROLE}, 8
    s_or_b32 s{sROLE}, s{sROLE}, s97
    s_lshl_b32 s97, s{sNON}, 8
    s_or_b32 s{sROLE}, s{sROLE}, s97
    s_mul_i32 s97, s96, 576
    s_add_u32 s97, s97, s98                ; f_base
    v_add_u32 v1, s97, v{VTT}
    v_lshlrev_b32 v1, 1, v1''')
    a(f'v_mov_b32 v{HO+15}, v1\nv_lshlrev_b32 v{HO+11}, 2, v{VTT}')
    if not Cfg.xo: xnext()
    def bloads():
        a.vm(f'buffer_load_ushort v{ACC[1]+12}, v{HO+15}, {S(SB)}, 0 offen', 'b1')
        a.vm(f'buffer_load_ushort v{ACC[1]+13}, v{HO+15}, {S(SB)}, 0 offen offset:512', 'b1')
        a(f's_mov_b32 s{SB}, s0\ns_and_b32 s{SB+1}, s1, 0xffff\ns_mov_b32 s{SB+2}, 1152\ns_lshl_b32 s98, s{sWV}, 8\ns_add_u32 m0, s98, {B2_LDS}\ns_nop 0')
        a.vm(f'buffer_load_dword v{HO+11}, {S(SB)}, 0 offen lds', 'b1')
        a.vm(f'buffer_load_dword v{HO+11}, {S(SB)}, 0 offen offset:1024 lds', 'b1')
        a(f's_mov_b32 s35, s{sNON}')
    a(f'''v_lshlrev_b32 v{ACC[1]+14}, 2, v{VTT}
    v_add_u32 v{ACC[1]+14}, {BIAS_LDS}, v{ACC[1]+14}
    s_mul_i32 s{sHS}, s{sB}, 288
    s_lshr_b32 s98, s97, 4
    s_add_u32 s{sHS}, s{sHS}, s98
    s_lshl_b32 s{sHS}, s{sHS}, 10
    s_lshl_b32 s97, s97, 1''')
    for g in range(9): a(f's_mul_i32 s{sO1+g}, s{sO2+g}, {64*9216}\ns_add_u32 s{sO1+g}, s{sO1+g}, s97')
    a(f's_mul_i32 s{sPS}, s{sNON}, 73728')
    a(f'''v_add_u32 v{VTB}, s{sW2K}, v{VL16}
    v_mov_b32 v{VTB+1}, 0
    v_lshl_add_u64 {vr(VTB,2)}, s[100:101], 0, {vr(VTB,2)}
    s_mov_b32 s{sX0+1}, 0
    s_lshl_b32 s{sFLG}, s{sB}, 4
    s_add_u32 s{sFLG}, s{sFLG}, s{sC}
    s_lshl_b32 s{sFLG}, s{sFLG}, 7
    s_add_u32 s{sFLG}, s{sFLG}, {FL_OFF}
    s_mov_b32 s{sP}, {Cfg.spin}
    s_mov_b32 s{sGC1}, {(h2(GC1) if Cfg.f16 else f2u(GC1)):#x}
    v_mov_b32 v{VC0}, {(h2(GC0) if Cfg.f16 else f2u(GC0)):#x}
    v_bfe_u32 v1, v{VLANE}, 3, 2            ; r
    v_lshrrev_b32 v3, 5, v{VLANE}           ; rho
    v_and_b32 v{VB1}, 2, v1
    v_lshlrev_b32 v{VB1}, 1, v{VB1}
    v_and_b32 v{VB2}, 7, v{VLANE}
    v_xor_b32 v{VB2}, v{VB2}, v{VB1}
    v_lshlrev_b32 v{VB2}, 4, v{VB2}
    v_lshl_add_u32 v1, v3, 3, v1            ; 8rho+r
    s_lshr_b32 s98, s{sWV}, 1
    s_lshl_b32 s98, s98, 5
    s_and_b32 s99, s{sWV}, 1
    s_add_u32 s98, s98, s99
    v_lshlrev_b32 v3, 1, v1
    v_add_u32 v3, s98, v3
    v_mul_u32_u24 v3, 9216, v3
    v_add_u32 v{VA1}, v3, v{VB2}
    v_add_u32 v{VB1}, {8*9216-1024}, v{VA1}
    s_lshl_b32 s98, s{sWV}, 4
    v_add_u32 v1, s98, v1
    v_mul_u32_u24 v1, 1152, v1
    v_add_u32 v{VA2}, v1, v{VB2}
    v_add_u32 v{VB2}, {4*1152-1024}, v{VA2}''')
    if not Cfg.xo: xnext()
    a(f'''v_lshrrev_b32 v1, 5, v{VLANE}
    v_lshlrev_b32 v{VBI}, 4, v1
    v_add_u32 v{VBI}, {BIAS_LDS}, v{VBI}
    v_bfe_u32 v3, v{VLANE}, 2, 2
    v_lshl_add_u32 v1, v1, 3, v3
    v_lshlrev_b32 v1, 7, v1
    v_and_b32 v3, 2, v3
    v_lshl_add_u32 v1, v3, 5, v1
    v_bfe_u32 v3, v{VLANE}, 4, 1
    v_lshl_add_u32 v1, v3, 5, v1
    v_and_b32 v3, 3, v{VLANE}
    v_lshl_add_u32 v{TA}, v3, 3, v1
    v_xor_b32 v{TA+1}, 64, v{TA}
    v_add_u32 v{TA+2}, 49152, v{TA}
    v_add_u32 v{TA+3}, 49152, v{TA+1}
    v_add_u32 v{TA+4}, 98304, v{TA}
    v_add_u32 v{TA+5}, 98304, v{TA+1}''')
    if not Cfg.xo: xnext()
    XA = HO
    a(f'''v_and_b32 v1, 15, v{VLANE}
    v_lshlrev_b32 v1, 7, v1
    v_bfe_u32 v3, v{VLANE}, 4, 1
    v_lshl_add_u32 v1, v3, 13, v1
    v_add_u32 v1, s{sW2K}, v1
    v_lshrrev_b32 v3, 5, v{VLANE}
    v_bfe_u32 v{XA}, v{VLANE}, 1, 3
    v_xor_b32 v3, v3, v{XA}
    v_lshl_add_u32 v{XA}, v3, 4, v1
    v_xor_b32 v{XA+1}, 32, v{XA}
    v_xor_b32 v{XA+2}, 64, v{XA}
    v_xor_b32 v{XA+3}, 96, v{XA}
    s_mov_b32 s{sT2}, 0x3f803f80''')
    smid_ids(a)
    a(f'''s_add_u32 s98, s96, s{sWV}
    s_cmp_eq_u32 s98, 4
    s_cselect_b32 s{sNON}, {1<<R_PATCH}, 0
    s_bitcmp1_b32 s{sROLE}, {R_UNIT}
    s_cselect_b32 s{sNON}, s{sNON}, 0
    s_or_b32 s{sROLE}, s{sROLE}, s{sNON}
    s_cmp_lt_u32 s98, 5
    s_cselect_b32 s{sNON}, 2, 0
    s_lshl_b32 s98, s98, 6
    s_add_u32 s{sNON}, s{sNON}, s98
    s_mul_i32 s99, s99, 578
    s_add_u32 s{sNON}, s{sNON}, s99
    v_lshrrev_b32 v3, 2, v{VLANE}
    v_mul_u32_u24 v3, 18496, v3
    v_and_b32 v1, 3, v{VLANE}
    v_lshl_add_u32 v3, v1, 4, v3''')
    a(f'''s_lshr_b32 s98, s2, 3
    s_lshl_b32 s98, s98, 2
    s_add_u32 s98, s98, s{sWV}
    s_lshr_b32 s99, s98, 1
    s_mul_i32 s99, s99, {9*9216}
    s_and_b32 s98, s98, 1
    s_mul_i32 s98, s98, 1152
    s_add_u32 s99, s99, s98
    s_and_b32 s98, s{sC}, {16-cx}
    s_mul_i32 s98, s98, 576
    s_add_u32 s99, s99, s98
    v_mul_u32_u24 v1, 43, v{VLANE}
    v_lshrrev_b32 v1, 8, v1
    v_mul_u32_u24 v{VPO}, 6, v1
    v_sub_u32 v{VPO}, v{VLANE}, v{VPO}
    v_add_u32 v{VPO+1}, 1, v{VPO}
    v_lshrrev_b32 v{VPO+1}, 2, v{VPO+1}
    v_add3_u32 v{VPO}, v{VPO}, v{VPO+1}, 2
    v_mul_u32_u24 v1, 9216, v1
    v_lshl_add_u32 v1, v{VPO}, 7, v1
    v_add_u32 v{VPO}, s99, v1''')
    xearly_addr(a)
    for i in range(8): a(f'v_mov_b32 v{TMP+i}, 0')
    def stats(L):
        for q in range(4):
            a.need(('x', 4*L+q))
            for i in range(4):
                r = XF + 16*L + 4*q + i
                a(f'v_dot2c_f32_bf16 v{TMP+i}, s{sT2}, v{r}\nv_dot2c_f32_bf16 v{TMP+4+i}, v{r}, v{r}')
    def first_piece(q):
        if q < 9: return dma_alt(R_ODD, dma_alt(R_DFT, dma_tab(q, sreg=sO2+q), None), w1p(q))
        return w1p(q)
    stamp(a, 'w0')
    if Cfg.warm:
        brole(a, R_ODD, 'L_wo')
        a('; WARM 1\ns_branch L_main\nL_wo:\n; WARM 2')
    a('s_branch L_main\n.p2align 12\nL_main:')
    npc0 = 0
    if Cfg.xo:
        while nx[1] < Cfg.xe: xnext()
    for L in range(10):
        if L < 9:
            stamp(a, f'xa{L}')
            a.vneed(('x', L))
            stamp(a, f'xb{L}')
            if L in (4, 8):
                for q in range(4): a(f'v_add_u32 v{XA+q}, 0x10000, v{XA+q}')
            for q in range(4): a.lds(f'ds_read_b128 {vr(XF+16*L+4*q)}, v{XA+q} offset:{16384*(L%4)}', ('x', 4*L+q))
        if L == 9: stamp(a, 1)
        if nx[0] < 9:
            xline(nx[0]); nx[0] += 1
            if nx[0] == 9: bloads()
        elif L >= Cfg.fp0 and npc0 < 2*Cfg.fp:
            qs = (npc0, npc0+1)
            dma_alt(R_ODD, dma_alt(R_DFT, [f for q in qs for f in dma_tab(q, sreg=sO2+q)], None), [f for q in qs for f in w1p(q)])[0](a)
            npc0 += 2
        if L == Cfg.xl: only(R_FINW, xearly)(a)
        if L: stats(L-1)
    rest = [FN(f) for q in range(npc0, Cfg.np) for f in first_piece(q)]
    rest += [VM(f'buffer_load_dword v{VFL}, off, {S(SDBG)}, 0 sc1', 'non')]
    T = TMP
    a(f'''s_nop 2
    v_add_f32 v{T}, v{T}, v{T+1}
    v_add_f32 v{T+2}, v{T+2}, v{T+3}
    v_add_f32 v{T+4}, v{T+4}, v{T+5}
    v_add_f32 v{T+6}, v{T+6}, v{T+7}
    v_add_f32 v{T}, v{T}, v{T+2}
    v_add_f32 v{T+4}, v{T+4}, v{T+6}
    v_mov_b32 v{T+1}, v{T}
    v_mov_b32 v{T+5}, v{T+4}
    s_nop 1
    v_permlane32_swap_b32 v{T}, v{T+1}
    v_permlane32_swap_b32 v{T+4}, v{T+5}
    s_nop 0
    v_add_f32 v{T}, v{T}, v{T+1}
    v_add_f32 v{T+4}, v{T+4}, v{T+5}
    v_mul_f32 v{T}, {f2u(1/576):#x}, v{T}
    v_mul_f32 v{T+4}, {f2u(1/576):#x}, v{T+4}
    v_fma_f32 v{T+4}, -v{T}, v{T}, v{T+4}
    v_max_f32 v{T+4}, 0, v{T+4}
    v_cvt_pk_bf16_f32 v{T}, v{T}, v{T+4}
    v_and_b32 v{T+4}, 0xffff0000, v{T}
    v_lshlrev_b32 v{T}, 16, v{T}
    v_add_f32 v{T+4}, {f2u(1e-5):#x}, v{T+4}
    v_cvt_pk_bf16_f32 v{T+4}, v{T+4}, v{T+4}
    v_and_b32 v{T+4}, 0xffff0000, v{T+4}
    v_sqrt_f32 v{T+4}, v{T+4}
    s_nop 0
    v_cvt_pk_bf16_f32 v{T+4}, v{T+4}, v{T+4}
    v_and_b32 v{T+4}, 0xffff0000, v{T+4}
    v_rcp_f32 v{T+4}, v{T+4}
    s_nop 0
    v_cvt_pk_bf16_f32 v{T+4}, v{T+4}, v{T+4}
    v_and_b32 v{T+5}, 0xffff0000, v{T+4}
    v_lshrrev_b32 v{T+4}, 16, v{T+4}
    v_mul_f32 v{T}, v{T}, v{T+5}
    v_sub_f32 v{T}, 0, v{T}''')
    if Cfg.tn < 216:
        tall = w2touch(0, Cfg.tn*24, -(-(5184 - Cfg.tn*24)//(64 if Cfg.be else 128)), Cfg.be)
        rest.append(FN(tall))
    def w1all(a):
        if Cfg.j1:
            a(f'v_subrev_u32 v{VPO+1}, 128, v{VPO}\ns_mov_b32 exec_lo, 0x49249249\ns_mov_b32 exec_hi, 0x92492')
            a.vm(f'buffer_load_dword a255, v{VPO+1}, {S(SW1)}, 0 offen')
        a('s_bfm_b64 exec, 54, 0')
        a.vm(f'buffer_load_dword a255, v{VPO}, {S(SW1)}, 0 offen')
        a('s_mov_b64 exec, -1')
    if Cfg.tw1: rest.insert(len(rest) - (1 if Cfg.tn < 216 else 0), FN(w1all))
    def wall(a):
        if Cfg.be:
            a(f'''s_lshr_b32 s69, s2, 4
            s_lshl_b32 s69, s69, 3
            s_and_b32 s3, s2, 7
            s_add_u32 s69, s69, s3
            s_lshl_b32 s69, s69, 2
            s_add_u32 s69, s69, s{sWV}
            s_min_u32 s69, s69, 486
            s_mul_i32 s69, s69, {19*128}
            v_lshlrev_b32 v{VTT}, 7, v{VLANE}
            s_bitcmp1_b32 s{sWV}, 0
            s_mov_b64 exec, 0x7ffff''')
            a(f'buffer_load_dword a255, v{VTT}, {S(SWR)}, s69 offen')
        else:
            a(f'''s_lshl_b32 s69, s2, 1
            s_lshr_b32 s3, s{sWV}, 1
            s_add_u32 s69, s69, s3
            s_min_u32 s69, s69, 486
            s_mul_i32 s69, s69, {19*128}
            v_lshlrev_b32 v{VTT}, 7, v{VLANE}
            s_bitcmp1_b32 s{sWV}, 0
            s_cselect_b64 exec, 0x7ffff, 0''')
            a(f'buffer_load_dword a255, v{VTT}, {S(SWR)}, s69 offen')
            a('s_cselect_b64 exec, 0, 0x7ffff')
        a.vm(f'buffer_load_dword a255, v{VTT}, {S(SWI)}, s69 offen')
        a('s_mov_b64 exec, -1')
    rest.insert(len(rest) - (1 if Cfg.tn < 216 else 0), FN(wall))
    if Cfg.normin:
        emit(a, rest); emit(a, norm_ops(0))
    else:
        stamp(a, 'n0')
        a('.p2align 3')
        rest = [FN(lambda a, f=f: (f(a), a('.p2align 3'))) for _, f in rest]
        nt = 1 + (1 if Cfg.tn < 216 else 0) + (1 if Cfg.tw1 else 0)
        tch = rest[-nt:]; rest = rest[:-nt]
        global BATCH2
        BATCH2 = []
        if Cfg.b2: BATCH2 = [wall] + ([tall] if Cfg.tn < 216 else []); tch = tch[:1]
        global B2PRE, B2FIRE
        t = E(); tall(t); k = [x.strip().startswith('s_bfm') for x in t.l].index(True)
        fix = lambda L: '\n'.join(L).replace('s3,', 's0,').replace('s3 ', 's0 ').replace('s96', 's1')
        B2PRE = sops(fix(t.l[:k])); f1 = fix(t.l[k:])
        t = E(); wall(t); k = [x.strip().startswith('s_bitcmp') for x in t.l].index(True)
        B2PRE += sops('\n'.join(t.l[:k])); f2 = '\n'.join(t.l[k:])
        B2FIRE = [lambda a: (a(f2), a.vm('s_nop 0'), a(f1), a.vm('s_nop 0'))]
        N = [o for u in range(18) for o in norm_ops(u)]
        k1 = len(N)*Cfg.t1//100; k2 = len(N)*Cfg.t2//100; ne = 2*Cfg.ne
        global NLAST
        NLAST = [V('.p2align 3')] + N[len(N)-24*Cfg.nl:]; N = N[:len(N)-24*Cfg.nl]
        emit(a, mix(N[:k1], rest[:ne] + tch) + N[k1:-24])
        stamp(a, 'nb')
        a.vneed('b1')
        a(f'v_lshlrev_b32 v{ACC[1]+12}, 16, v{ACC[1]+12}\nv_lshlrev_b32 v{ACC[1]+13}, 16, v{ACC[1]+13}')
        a.lds(f'ds_write_b32 v{ACC[1]+14}, v{ACC[1]+12}', 'bw'); a.lds(f'ds_write_b32 v{ACC[1]+14}, v{ACC[1]+13} offset:1024', 'bw')
        a('.p2align 3'); emit(a, N[-24:])
def late_setup():
    a = E()
    a(f'''s_lshr_b32 s96, s{sC}, 1
    s_and_b32 s98, s{sC}, 1
    s_mul_i32 s{sO2}, s96, {576*1152}
    s_lshl_b32 s99, s98, 8
    s_add_u32 s{sO2}, s{sO2}, s99
    s_mul_i32 s99, s98, {256*1152}''')
    for g in range(1, 9):
        a(f's_add_u32 s{sO2+g}, s{sO2}, {64*1152*g}\ns_{"add" if g < 5 else "sub"}_u32 s{sO2+g}, s{sO2+g}, s99')
    a(f'''s_mul_i32 s{sPS}, s{sB}, 18
    s_lshl_b32 s98, s98, 2
    s_add_u32 s{sPS}, s{sPS}, s98
    s_lshl_b32 s{sPS}, s{sPS}, 3
    s_add_u32 s{sPS}, s{sPS}, s96
    s_lshl_b32 s{sPS}, s{sPS}, 11
    s_add_u32 s{sPS}, s{sPS}, {PART_OFF}
    s_and_b32 s98, s{sC}, 1
    s_mul_i32 s32, s{sB}, 288
    s_mul_i32 s99, s96, 36
    s_add_u32 s32, s32, s99
    s_lshl_b32 s32, s32, 10
    s_lshl_b32 s99, s98, 14
    s_sub_u32 s33, s32, s99
    s_xor_b32 s34, s{sFLG}, 128''')
    return sops('\n'.join(a.l))
def w2touch(other, first, per, sub=0):
    def f(a):
        a(f"""s_lshr_b32 s3, s2, {3+sub}
        s_lshl_b32 s3, s3, 2
        s_add_u32 s3, s3, s{sWV}
        s_mul_i32 s3, s3, {per*128}
        s_lshr_b32 s96, s{sI}, 3
        s_xor_b32 s96, s96, {other}
        s_mul_i32 s96, s96, {5184*128}
        s_add_u32 s3, s3, s96
        s_lshr_b32 s96, s{sC}, 2
        s_mul_i32 s96, s96, {2*5184*128}
        s_add_u32 s3, s3, s96
        s_add_u32 s3, s3, {first*128}
        v_lshlrev_b32 v{VTT}, 7, v{VLANE}
        s_bfm_b64 exec, {per}, 0""")
        a.vm(f'buffer_load_dword a255, v{VTT}, {S(SW2)}, s3 offen')
        a('s_mov_b64 exec, -1')
    return f
def tabtouch(a):
    a(f"""s_lshr_b32 s96, s2, 3
    s_lshl_b32 s96, s96, 2
    s_add_u32 s96, s96, s{sWV}
    s_min_u32 s96, s96, 125
    s_mul_i32 s96, s96, {22*128}
    s_add_u32 s96, s96, {TABF_SZ}
    s_sub_u32 s96, s96, s{sW2K}
    v_mul_u32_u24 v{VTT}, 112, v{VLANE}
    v_mov_b32 v{VTT+1}, 0
    v_lshl_add_u64 {vr(VTT,2)}, {vr(VTT,2)}, 0, {vr(VTB,2)}
    v_lshl_add_u64 {vr(VTT,2)}, s[96:97], 0, {vr(VTT,2)}
    s_bfm_b64 exec, 22, 0""")
    a.vm(f'global_load_dword a255, {vr(VTT,2)}, off')
    a('s_mov_b64 exec, -1')
def codetouch(a):
    if not Cfg.ct: return
    l = a.label('CT')
    a(f"""s_getpc_b64 s[100:101]
    {l}:
    s_lshr_b32 s3, s2, 3
    s_lshl_b32 s3, s3, 2
    s_add_u32 s3, s3, s{sWV}
    s_lshl_b32 s3, s3, 8
    v_lshlrev_b32 v{VTT}, 7, v{VLANE}
    v_add_u32 v{VTT}, s3, v{VTT}
    v_min_u32 v{VTT}, L_tailend-L_s9-4, v{VTT}
    s_sub_u32 s100, s100, {l}-L_main
    s_subb_u32 s101, s101, 0
    v_add_u32 v{VTT}, L_s9-L_main, v{VTT}
    v_mov_b32 v{VTT+1}, 0
    v_lshl_add_u64 {vr(VTT,2)}, s[100:101], 0, {vr(VTT,2)}
    s_mov_b64 exec, 3""")
    a.vm(f'global_load_dword a252, {vr(VTT,2)}, off')
    a('s_mov_b64 exec, -1')
def smid_ids(a):
    a(f'''s_bfe_u32 s96, s{sROLE}, 0x30008
    s_cmp_ge_u32 s96, 3
    s_cselect_b32 s98, 1, 0
    s_lshl_b32 s99, s{sI}, 1
    s_add_u32 s99, s99, s98
    s_mul_i32 s98, s98, 3
    s_sub_u32 s96, s96, s98
    s_mul_i32 s96, s96, 3''')
WA = 216
PSR = 20
def wload(k):
    def f(a):
        a(f's_add_u32 s3, s35, {16*18496*(k//2)}')
        a.vm(f'buffer_load_dwordx4 {ar(WA+4*k)}, v3, {S(SWI if k % 2 else SWR)}, s3 offen {NT(8)}', 'wl')
    return f
def wpatch(a):
    a(f'v_mul_u32_u24 v1, 18496, v{VLANE}')
    a.vm(f'buffer_load_ushort a253, v1, {S(SWR)}, s35 offen offset:{576-258}', 'wl')
    a.vm(f'buffer_load_ushort a254, v1, {S(SWI)}, s35 offen offset:{576-258}', 'wl')

def touch_ops():
    o = [V(f"""s_bfe_u32 s98, s{sROLE}, 0x30008
    s_sub_u32 s98, s98, 5
    s_lshl_b32 s98, s98, 6
    s_add_u32 s98, s98, s{sB}
    s_bfe_u32 s99, s{sROLE}, 0x30008
    s_sub_u32 s99, s99, 5
    s_bfe_u32 s96, s{sC}, 0x10001
    s_mul_i32 s96, s96, 3
    s_add_u32 s99, s99, s96
    s_lshl_b32 s99, s99, 2
    s_add_u32 s99, s99, s{sWV}
    s_mul_i32 s99, s99, {Cfg.tn*128}
    s_lshr_b32 s96, s{sI}, 3
    s_mul_i32 s96, s96, {5184*128}
    s_add_u32 s99, s99, s96
    s_lshr_b32 s96, s{sC}, 2
    s_mul_i32 s96, s96, {2*5184*128}
    s_add_u32 s99, s99, s96
    v_lshlrev_b32 v1, 7, v{VLANE}""")]
    for k in range(Cfg.tn//54):
        if k < Cfg.te: o.append(V(f's_add_u32 s99, s99, {54*128}')); continue
        def f(a, k=k):
            a('s_bfm_b64 exec, 54, 0')
            a.vm(f'buffer_load_dword a255, v1, {S(SW2)}, s99 offen')
            a(f's_mov_b64 exec, -1\ns_add_u32 s99, s99, {54*128}')
        o.append(FN(f))
    def g(a):
        a(f"""s_mul_i32 s99, s98, {15*128}
        s_add_u32 s99, s99, {TABF_SZ}
        v_add_u32 v{VTT}, s99, v1
        v_min_u32 v{VTT}, {TABF_SZ+TABG_SZ+TAB64_SZ-4}, v{VTT}
        v_mov_b32 v{VTT+1}, 0
        v_lshl_add_u64 {vr(VTT,2)}, s[100:101], 0, {vr(VTT,2)}
        s_bfm_b64 exec, 15, 0""")
        a.vm(f'global_load_dword a255, {vr(VTT,2)}, off')
        a('s_mov_b64 exec, -1')
    return o + [FN(g)]

def getnonce(a):
    lc = a.label('NC'); ls = a.label('NS'); lk = a.label('NK')
    a.vneed('non')
    a(f'{lc}:\nv_readfirstlane_b32 s{sNON}, v{VFL}\ns_nop 3\ns_cmp_eq_u32 s{sNON}, 0\ns_cbranch_scc1 {ls}\n{lk}:')
    a.ool += [f'{ls}:', f' s_sub_u32 s{sP}, s{sP}, 1', f' s_cbranch_scc1 {ls}_x', f' s_sleep {Cfg.slp}', f' buffer_load_dword v{VFL}, off, {S(SDBG)}, 0 sc1', ' s_waitcnt vmcnt(0)', f' s_branch {lc}',
              f'{ls}_x:', f' s_mov_b32 s{sP}, 0', f' s_branch {lk}']

def xpose_setup(a, vw, vrd, vg, base_imm, rowstride, flip=None):
    a(f"""v_and_b32 v{vw}, 15, v{VLANE}
    v_lshlrev_b32 v{vw}, 7, v{vw}
    v_bfe_u32 v{vrd}, v{VLANE}, 4, 1
    v_lshl_add_u32 v{vw}, v{vrd}, 13, v{vw}
    v_lshrrev_b32 v{vrd}, 5, v{VLANE}
    v_lshlrev_b32 v{vrd}, 2, v{vrd}
    v_and_b32 v{vg}, 7, v{VLANE}
    v_xor_b32 v{vrd}, v{vrd}, v{vg}
    v_lshl_add_u32 v{vw}, v{vrd}, 4, v{vw}
    s_add_u32 s98, s{sW2K}, {base_imm}
    v_add_u32 v{vw}, s98, v{vw}
    v_lshrrev_b32 v{vrd}, 3, v{VLANE}
    v_mul_u32_u24 v{VTT}, {rowstride}, v{vrd}
    v_lshl_add_u32 v{vg}, v{vg}, 4, v{VTT}
    v_lshlrev_b32 v{vrd}, 4, v{vrd}
    v_xor_b32 v{vrd}, v{vrd}, v{VL16}
    v_add_u32 v{vrd}, s98, v{vrd}""")
def xpose_w(src, q, vw, flip=0):
    x = (16*q) ^ flip
    if x == 0: return [LD(f'ds_write_b128 v{vw}, {vr(src)}', 'xw')]
    return [V(f'v_xor_b32 v{VTT}, {x}, v{vw}'), LD(f'ds_write_b128 v{VTT}, {vr(src)}', 'xw')]
def xpose_rs(dst, vrd, vg, sreg, rowstride, tag, u=0):
    o = [LD(f'ds_read_b128 {vr(dst+4*q)}, v{vrd} offset:{8192*(q//2) + 1024*(q%2)}', ('xr', u, q)) for q in range(4)]
    for q in range(4):
        o.append(FN(lambda a, q=q: a.need(('xr', u, q))))
        o.append(VM(f'buffer_store_dwordx4 {vr(dst+4*q)}, v{vg}, {S(SWS)}, s{sreg} offen sc1', tag))
        o.append(V(f's_add_u32 s{sreg}, s{sreg}, {8*rowstride}'))
    return o
OA = 200
XP_LDS = BIAS_LDS + 2048
def dft_fill():
    Ea = ACC[0]; T = TMP; U = Ea + 16; RS = 9*64*128
    su = f"""v_and_b32 v1, 31, v{VLANE}
    v_lshlrev_b32 v1, 6, v1
    v_lshrrev_b32 v3, 5, v{VLANE}
    v_lshlrev_b32 v3, 1, v3
    v_bfe_u32 v{VPO}, v{VLANE}, 1, 2
    v_xor_b32 v3, v3, v{VPO}
    v_lshl_add_u32 v1, v3, 4, v1
    s_add_u32 s98, s{sW2K}, {XP_LDS}
    v_add_u32 v1, s98, v1
    v_bfe_u32 v3, v{VLANE}, 3, 2
    v_lshlrev_b32 v3, 4, v3
    v_xor_b32 v3, v3, v{VL16}
    v_add_u32 v3, s98, v3
    v_lshrrev_b32 v{VPO}, 2, v{VLANE}
    v_mul_u32_u24 v{VPO}, {RS}, v{VPO}
    v_and_b32 v{VTT}, 3, v{VLANE}
    v_lshl_add_u32 v{VPO}, v{VTT}, 4, v{VPO}
    s_bfe_u32 s96, s{sROLE}, 0x30008
    s_lshl_b32 s98, s96, 6
    s_add_u32 s98, s98, s{sB}
    s_lshl_b32 s35, s98, 3
    s_add_u32 s35, s35, {VFL_OFF}
    s_lshl_b32 s98, s98, 7
    s_add_u32 s98, s98, {V_OFF}
    s_sub_u32 s99, 8, s96
    s_lshl_b32 s99, s99, 6
    s_add_u32 s99, s99, s{sB}
    s_lshl_b32 s99, s99, 7
    s_add_u32 s99, s99, {V_OFF}
"""
    o = [V(x) for x in su.split('\n') if x.strip()] + [V(f's_cmp_eq_u32 s96, 4\ns_cselect_b32 s96, {DUM_OFF - V_OFF}, 0\ns_add_u32 s99, s99, s96')]
    su = o; o = [V(f'v_add_u32 v{VPO+1}, {16*RS}, v{VPO}')]
    for i in range(16):
        e = Ea + 2*i
        o += [V(f'v_accvgpr_read_b32 v{T+4}, a{OA+2*i}'), V(f'v_accvgpr_read_b32 v{T+5}, a{OA+2*i+1}'), V(f'v_add_f32 v{T}, v{e}, v{T+4}'), V(f'v_add_f32 v{T+1}, v{e+1}, v{T+5}')]
        if i < 8: o += [V(f'v_sub_f32 v{T+2}, v{e}, v{T+4}'), V(f'v_sub_f32 v{T+3}, v{e+1}, v{T+5}')]
        else:     o += [V(f'v_sub_f32 v{T+2}, v{T+4}, v{e}'), V(f'v_sub_f32 v{T+3}, v{T+5}, v{e+1}')]
        o += [V(f'v_cvt_pk_bf16_f32 v{HO+i}, v{T}, v{T+1}'), V(f'v_cvt_pk_bf16_f32 v{Ea+i}, v{T+2}, v{T+3}')]
    segs = [o]
    u = vr(U, 16)
    for m, X in enumerate((HO, Ea)):
        for p in range(2):
            A1, A2 = (X, X+8) if p == 0 else (X+8, X)
            B2 = TW+8 if p == 0 else TW+16
            mf = [V(f's_nop 1\n{M} {u}, {vr(A1)}, {ar(TW)}, 0'), V(f'{M} {u}, {vr(A1+4)}, {ar(TW+4)}, {u}'), V(f'{M} {u}, {vr(A2)}, {ar(B2)}, {u}'), V(f'{M} {u}, {vr(A2+4)}, {ar(B2+4)}, {u}')]
            pk = []
            for q in range(2):
                for i in range(4):
                    k = 4*q + i
                    pk.append(V(f'v_cvt_pk_bf16_f32 v{T+k}, v{U+2*k}, v{U+2*k+1}' if m == 0 else f'v_cvt_pk_bf16_f32 v{T+k}, v{U+15-2*k}, v{U+14-2*k}'))
                x = 16*q ^ 32*m
                if x: pk += [V(f'v_xor_b32 v{VTT}, {x}, v1'), LD(f'ds_write_b128 v{VTT}, {vr(T+4*q)}')]
                else: pk += [LD(f'ds_write_b128 v1, {vr(T+4*q)}')]
            d = OA + 8*(2*m+p)
            pk += [LD(f'ds_read_b128 {ar(d+4*i)}, v3 offset:{1024*i}', ('xr', m, p)) for i in range(2)]
            st = [FN(lambda a, m=m, p=p: a.need(('xr', m, p)))] + [VM(f'buffer_store_dwordx4 {ar(d+4*i)}, v{VPO+i}, {S(SWS)}, s{98+m} offen offset:{64*p} sc1', 'V') for i in range(2)]
            segs += [mf, pk, st]
    f = [(segs[0], 3, 33)]; st = []
    for k in range(4):
        g = 33 + 8*k
        f += [(segs[1+3*k], g, g+2), (segs[2+3*k], g+5, g+8)]
        x = segs[3+3*k]
        st += [FN(lambda a, x=x: emit(a, x[:2])), x[2]]
    return su, f, st

JA = [8, 40]; JC = [72, 104]
def hload(g):
    return [SVM(f's_add_u32 s3, s{33 if g else 32}, {4096*g}', f'buffer_load_dwordx4 {ar(HF+16*g+4*k)}, v{VL16}, {S(SWS)}, s3 offen offset:{1024*k} sc1 {NT(1)}', ('ph', g)) for k in range(4)]

SZ=[72,88,136,152]; SVF=8; SWP=40; SY0=192; SPA=[72,88,168,24]
def TF(i): return ar(176+4*i) if i < 20 else vr(200+4*(i-20))
def smid_pre():
    su = f"""v_lshrrev_b32 v3, 5, v{VLANE}
    v_bfe_u32 v1, v{VLANE}, 2, 2
    v_lshl_add_u32 v3, v3, 2, v1
    v_lshlrev_b32 v{VA1}, 7, v3
    v_lshlrev_b32 v{VB1}, 6, v3
    v_bfe_u32 v1, v{VLANE}, 4, 1
    v_lshlrev_b32 v1, 5, v1
    v_and_b32 v3, 3, v{VLANE}
    v_lshl_add_u32 v1, v3, 3, v1
    s_min_u32 s98, s{sWV}, 2
    s_lshl_b32 s98, s98, 13
    s_add_u32 s99, s98, {slot(54)}
    v_add3_u32 v{VA1}, v{VA1}, v1, s99
    s_add_u32 s99, s98, {slot(57)}
    v_add3_u32 v{VB1}, v{VB1}, v1, s99
    v_add_u32 v1, s99, v{VL16}
    v_add_u32 v3, {slot(51)}, v{VL16}"""
    w = [FN(lambda a: a.vneed('wl'))] + [(3, LD(f'ds_write_b128 v1, {ar(WA+4*k)} offset:{1024*k}')[1]) for k in range(8)]
    def patch(a):
        a(f"""v_lshrrev_b32 v{VTT}, 4, v{VLANE}
        v_lshlrev_b32 v{VTT}, 11, v{VTT}
        v_and_b32 v{VTT+1}, 15, v{VLANE}
        v_lshl_add_u32 v{VTT}, v{VTT+1}, 6, v{VTT}
        v_add_u32 v{VTT}, {slot(57) + 8192}, v{VTT}""")
        a.lds(f'ds_write_b16 v{VTT}, a253 offset:62'); a.lds(f'ds_write_b16 v{VTT}, a254 offset:1086')
    w.append(FN(only(R_PATCH, patch)))
    for p in range(2):
        for mt in range(2):
            for q in range(4):
                w.append(LD(f'ds_read_b64_tr_b16 {vr(SWP+16*p+8*mt+2*q,2)}, v{VB1} offset:{4096*mt+2048*(q//2)+512*(q%2)+1024*p}', 'sm'))
    r = []
    for ks in range(4):
        for p in range(2):
            for rho in range(2): r.append(LD(f'ds_read_b64_tr_b16 {vr(SVF+16*p+4*ks+2*rho,2)}, v{VA1} offset:{2048*ks+1024*rho+64*p}', 'sm'))
        for i in (ks, 8+ks, 16+ks): r.append(LD(f'ds_read_b128 {TF(i)}, v3 offset:{1024*i}', 'sm'))
    late = [LD(f'ds_read_b128 {TF(i)}, v3 offset:{1024*i}', 'sm2') for ks in range(4) for i in (4+ks, 12+ks, 20+ks)]
    return sops(su), w, r, late
def smid_parts():
    Z=SZ; VF=SVF; WP=SWP; Y=SVF; PA=SPA; T=TMP
    C=lambda t,k: TF(4*t+k); Sn=lambda t,k: TF(8+4*t+k); N=lambda t,k: TF(16+4*t+k)
    def fwd(mt):
        zr=vr(Z[2*mt],16); zi=vr(Z[2*mt+1],16); o=[]
        for ks in range(4):
            o += [f'{M} {zr}, {C(mt,ks)}, {vr(VF+4*ks)}, {"0" if ks==0 else zr}', f'{M} {zi}, {C(mt,ks)}, {vr(VF+16+4*ks)}, {"0" if ks==0 else zi}',
                  f'{M} {zr}, {Sn(mt,ks)}, {vr(VF+16+4*ks)}, {zr}', f'{M} {zi}, {N(mt,ks)}, {vr(VF+4*ks)}, {zi}']
        return o
    def ybase(mt, p): return (SY0 - 8*p) if mt == 0 else (Y + 8*p)
    def cmul(mt):
        o = []
        for d in range(8):
            wr = WP + 8*mt + d; wi = WP + 16 + 8*mt + d; zr = Z[2*mt] + 2*d; zi = Z[2*mt+1] + 2*d
            o += [f'v_lshlrev_b32 v{T}, 16, v{wr}', f'v_and_b32 v{T+1}, 0xffff0000, v{wr}', f'v_lshlrev_b32 v{T+2}, 16, v{wi}', f'v_and_b32 v{T+3}, 0xffff0000, v{wi}']
            for i in range(2): o += [f'v_mul_f32 v{T+4+i}, v{zi+i}, v{T+2+i}', f'v_mul_f32 v{T+6+i}, v{zi+i}, v{T+i}']
            for i in range(2): o += [f'v_fma_f32 v{T+4+i}, v{zr+i}, v{T+i}, -v{T+4+i}', f'v_fma_f32 v{T+6+i}, v{zr+i}, v{T+2+i}, v{T+6+i}']
            o += [f'v_cvt_pk_bf16_f32 v{ybase(mt,0)+d}, v{T+4}, v{T+5}', f'v_cvt_pk_bf16_f32 v{ybase(mt,1)+d}, v{T+6}, v{T+7}']
        return [V(x) for x in o]
    def inv(mt):
        o = []
        for nt in range(2):
            pr=vr(PA[2*nt],16); pi=vr(PA[2*nt+1],16)
            for t in range(2):
                ks = 2*mt + t; yr = vr(ybase(mt,0)+4*t); yi = vr(ybase(mt,1)+4*t)
                o += [f'{M} {pr}, {yr}, {C(nt,ks)}, {"0" if ks==0 else pr}', f'{M} {pi}, {yi}, {C(nt,ks)}, {"0" if ks==0 else pi}',
                      f'{M} {pr}, {yi}, {N(nt,ks)}, {pr}', f'{M} {pi}, {yr}, {Sn(nt,ks)}, {pi}']
        return o
    return fwd, cmul, inv
def part_inplace(acc, lam):
    c = []; st = []
    for q in range(4):
        c += [V(f'v_cvt_pk_bf16_f32 v{acc+8*q+i}, v{acc+8*q+2*i}, v{acc+8*q+2*i+1}') for i in range(4)]
        st.append(SVM(f's_add_u32 s3, s{sPS}, {16384*(2*lam + q//2)}', f'buffer_store_dwordx4 {vr(acc+8*q)}, v{VL16}, {S(SWS)}, s3 offen offset:{1024*(q%2)} sc1', ('p', lam)))
    return c, st

def kernel():
    a = E()
    prologue(a)
    g1 = lambda acc: (lambda p, kk, h: (acc + 16*h, vr(XF + 16*p + 4*kk), False))
    END = 71
    stamp(a, 2)
    a.need('bw')
    a('; ROUND 1')
    brole(a, R_ODD, 'L_odd')
    s_pro = a.snap()
    a.vneed(('d',0),('d',1),('d',2)); a('s_barrier')
    bias_reads(a, ACC[0], 0); first_reads(a, 'tr', 0); emit(a, NLAST)
    run(a, 0, 9, 'tr', g1(ACC[0]), [(late_setup(), 26, 54), (bias_ops(ACC[1], 1), 40, 66), (B2PRE, 56, 70)], pause=(0, Cfg.pz1), events={71: B2FIRE, ('dma0', 0): list(range(Cfg.np, 12))})
    stamp(a, 3)
    run(a, 9, 9, 'tr', g1(ACC[1]), [(gelu_ops(ACC[0], 0, 2, Cfg.sd), Cfg.gs0, END)], events={2: [getnonce]}, pause=(0, Cfg.pz2))
    s_even = a.snap()
    la = a.l; a.l = []
    a('L_odd:'); a.restore(s_pro)
    brole(a, R_DFT, 'L_dft')
    emit(a, NLAST + late_setup() + ([] if Cfg.be else [FN(f) for f in BATCH2]) + touch_ops())
    for q in range(max(9, Cfg.np), 21):
        for f in plan(q): f(a)
    a.vneed(('d',9),('d',10),('d',11)); a('s_barrier')
    first_reads(a, 'tr', 9)
    stamp(a, 3)
    bias_reads(a, ACC[1], 1)
    run(a, 9, 9, 'tr', g1(ACC[1]), [(bias_ops(ACC[0], 2), 40, 66), (xback(HO, HO+1), 8, 30)], events={2: [getnonce]})
    a('s_branch L_s3'); s_nodft = a.snap()
    a('L_dft:'); a.restore(s_pro)
    a(f'v_mov_b32 v{VPO}, v{VL16}\nv_add_u32 v{VPO+1}, 49152, v{VL16}')
    a.vneed(('d',0),('d',1),('d',2)); a('s_barrier')
    first_reads(a, 'dft', 0); emit(a, NLAST)
    run(a, 0, 9, 'dft', lambda p, kk, h: ((ACC[0] + 16*h) if kk % 2 == 0 else -(OA + 16*h), vr(XF + 16*p + 4*kk), p == 0 and kk < 2),
        [(xback(HO, HO+1), 8, 30), (late_setup(), 30, 47), (twiddle_ops(TW, TMP, 'fwd', sB), 2, 60), (dft_fill()[0], 48, 66), (bias_ops(ACC[1], 1), 56, 70)] + ([] if Cfg.be else [(B2PRE, 66, 71)]), pause=(0, Cfg.pz1), role='D', events={71: [] if Cfg.be else B2FIRE, ('dma0', 0): list(range(Cfg.np, 12))})
    stamp(a, 3)
    _, df, vst = dft_fill(); vlate = vst[3:]
    run(a, 9, 9, 'tr', g1(ACC[1]), df + [(vst[:3], 42, 70), (bias_ops(ACC[0], 2), 65, 70)], events={2: [getnonce]}, pause=(0, 0 if Cfg.be else Cfg.pz2))
    a('L_s3:'); a.merge(s_nodft, a.snap()); s_odd = a.snap()
    lodd = a.l; a.l = la; a.restore(s_even)
    stamp(a, 4)
    pi = spoll_i; pc = spoll_c
    h0 = only_ops(R_ODD, hload(0), 1)
    FG, PG, CG = Cfg.fg, Cfg.pg, Cfg.cg
    l2a = [w2touch(1, 0, 21)] if Cfg.l2 else []; l2b = [w2touch(1, 21*128, 20)] if Cfg.l2 else []; l2c = [tabtouch] if Cfg.l2 else []
    run(a, 18, 9, 'tr', g1(ACC[0]), [(gelu_ops(ACC[1], 1, 3), Cfg.gs0, END), ([FN(only(R_UNIT, wload(k))) for k in range(4)], 6, 64)] + ([(clear_ops(sHS, [16384, 18432], 'clr', -248), 2, 68)] if Cfg.ce else []),
        events={FG: [lambda a: setflag(a, 1, ('h',0))], 40: l2a, 66: l2b})
    g2 = lambda acc: (lambda p, kk, h: (acc + 16*h, ar(HF + 16*GORD[p] + 4*kk), p == 0 and kk == 0))
    tabg = f"""s_and_b32 s98, s{sC}, 3
    s_min_u32 s98, s98, 2
    s_mul_i32 s96, s98, 110592
    s_add_u32 s96, s96, {TABF_SZ}
    v_lshl_add_u64 {vr(VTB,2)}, s[96:97], 0, {vr(VTB,2)}"""
    sent8 = lambda a: (stamp(a, 7), sent_check(a, ('ph',8), [f'a{HF+128+4*k+3}' for k in range(4)], TMP, lines_of(hload(8)), ([f's_add_u32 s3, s33, {4096*8}'], 3)))
    sf = lambda st, *tags: (lambda a: (setflag if st < 5 else setflag2)(a, st, *tags))
    sf5 = lambda a: setflag(a, 5, ('h',4))
    clo = clear_ops(33, [32768, 34816], 'clr', -248)
    clp = clear_ops(sPS, [16384*6, 16384*7], 'clp')
    def setup5():
        a = E()
        smid_ids(a)
        a(f"""s_mul_i32 s{sSV}, s99, 9
        s_add_u32 s{sSV}, s{sSV}, s96
        s_lshl_b32 s{sSV}, s{sSV}, 13
        s_add_u32 s{sSV}, s{sSV}, s{sW2K}
        s_add_u32 s{sSV}, s{sSV}, {V_OFF}
        s_add_u32 s98, s96, s{sWV}
        s_lshl_b32 s98, s98, 5
        s_add_u32 s98, s98, s99
        s_lshl_b32 s47, s98, 3
        s_add_u32 s47, s47, {PFL_OFF}
        s_lshl_b32 s48, s98, 7
        s_add_u32 s48, s48, {P_OFF}
        s_add_u32 s49, s48, {32*9*32*128}
        v_and_b32 v1, 15, v{VLANE}
        s_lshl_b32 s98, s{sWV}, 4
        v_add_u32 v1, s98, v1
        v_lshrrev_b32 v{VA1}, 4, v{VLANE}
        v_min_u32 v{VA1}, 2, v{VA1}
        v_add_u32 v{VA1}, s96, v{VA1}
        v_sub_u32 v{VB1}, 8, v{VA1}
        v_min_u32 v{VA1}, v{VA1}, v{VB1}
        v_lshl_add_u32 v1, v{VA1}, 6, v1
        v_lshlrev_b32 v1, 3, v1
        v_add_u32 v1, {VFL_OFF}, v1""")
        return sops('\n'.join(a.l).replace('s96', 's50').replace('s98', 's51').replace('s99', 's52'))
    run(a, 27, 9, 'tr', g1(ACC[1]), [(gelu_ops(ACC[0], 2, 4), Cfg.gs0, END), ([FN(only(R_UNIT, wload(k))) for k in range(4, 8)], 6, 64), (setup5(), 48, 70)],
        events={4: [only(R_PATCH, wpatch)], FG: [sf(2, 'clr', ('h',1))], 30: l2c}, role='E')
    stamp(a, 5)
    ssu, sw, sr, slate = smid_pre()
    run(a, 36, 9, 'tr', g1(ACC[0]), [(gelu_ops(ACC[1], 3), Cfg.gs0, END), (hload(5), Cfg.e2+1, 71), (ssu, 52, 70)], role='E',
        events={26: [lambda a: a.vm(poll_ins(VA1, 1, '0'), 'vp')], Cfg.e2-22: [pi], Cfg.e2: [pc(2)], 47: [only(R_SMID, lambda a: poll_check(a, 'vp', VA1, 1, '0', 1))], FG: [sf(3, ('h',2))]})
    stamp(a, 6)
    a('s_mov_b32 s11, s47')
    pre = lambda g: [lambda a: a.vneed(('ph', g))]
    ge = lambda o: (lambda p, kk, h: (JC[1] + 16*h, ar(HF + 16*GE[p+o] + 4*kk), p+o == 0 and kk == 0))
    dm6 = [FN(f) for q in range(63, 72) for f in plan(q, 'E')]
    h6 = [FN(pc(3))] + hload(6); h7 = [FN(pc(4))] + hload(7)
    def s6a(unit):
        run(a, 45, 6, 'tr', ge(0), ([(gelu_ops(ACC[0], 4), 3, Cfg.ge), (sw, Cfg.ge-14, Cfg.ge+2), (sr, Cfg.ge-2, 48)] if unit else [(gelu_ops(ACC[0], 4), 3, 44)]), nxt=None, role='E',
            events={Cfg.f4: [sf(4, ('h',3))], 30: [pi], ('pre',32): pre(5), ('bar',48): [('d', q) for q in range(51, 57)]})
    b2 = FN(lambda a: (a.vneed(('d',60),('d',61),('d',62)), a('s_barrier')))
    brole(a, R_UNIT, 'L_unit'); s1 = a.snap()
    s6a(False)
    a('s_barrier')
    cle = []
    def allw(qs, tw=[]):
        def f(a):
            for q in qs:
                for g in plan(q, 'E'): g(a)
            if not Cfg.w3d and not tw: return
            d = []
            for q in (qs if Cfg.w3d else []):
                for w in range(3):
                    d.append(SVM(f's_mov_b32 m0, {slot(q) + 2048*w}\ns_add_u32 s{sT}, s{sO2+EORD[q-60][0]}, {128*EORD[q-60][1]}', f'buffer_load_dwordx4 v{8+2*w}, {S(SW2)}, s{sT} offen lds'))
                    d.append(VM(f'buffer_load_dwordx4 v{9+2*w}, {S(SW2)}, s{sT} offen offset:1024 lds'))
            only(R_SMID, lambda a: emit(a, mix(tw, d) if tw else d))(a)
        return FN(f)
    twq = lambda w: coop_tw(w, slot(59)) if Cfg.tw3 else []
    for w in range(3): a(f'v_subrev_u32 v{8+2*w}, {(3-w)*16*1152}, v{VA2}\nv_subrev_u32 v{9+2*w}, {(3-w)*16*1152}, v{VB2}')
    emit(a, fsetup()[:3] + [allw([63, 64])] + h6 + [V('s_barrier'), allw([65, 66, 67, 68], twq('0') + twq('1')), allw([69, 70, 71], twq('2'))] + twq(None) + [FN(lambda a: a.drain()), FN(pi), V(tabg), FN(lambda a: a.vdrain()), b2])
    if Cfg.w3d: dm6 = [V('s_nop 0')]*18
    first_reads(a, 'tr', 60)
    a(';NONUNIT7'); s_nou = a.snap()
    a('L_unit:'); a.restore(s1)
    s6a(True)
    fwd, cmul, inv = smid_parts()
    stamp(a, 'm0')
    a.need('sm'); a('s_barrier')
    dmx = lambda i, j: [] if Cfg.w3d else dm6[i:j]
    interleave(a, fwd(0), mix(slate, dmx(0, 6) + h6))
    stamp(a, 'm1')
    a.need('sm2'); a('s_barrier')
    t = E(); xpose_setup(t, 1, 3, VA1, slot(57), 9*32*128); t(tabg)
    interleave(a, fwd(1)[:3], dmx(6, 10) + [V(x) for x in t.l[:11]])
    interleave(a, fwd(1)[3:], mix(cmul(0), dmx(10, 14)))
    a('s_nop 1')
    stamp(a, 'm2')
    interleave(a, inv(0)[:3], [V(x) for x in t.l[11:]])
    interleave(a, inv(0)[3:], cmul(1)[:30] + [FN(pi)] + cmul(1)[30:])
    stamp(a, 'm3')
    def pout(nt):
        o = []
        for p in range(2):
            for par in range(2):
                for i in range(4): o.append(V(f'v_cvt_pk_bf16_f32 v{SWP+16*nt+8*p+4*par+i}, v{SPA[2*nt+p]+4*i+par}, v{SPA[2*nt+p]+4*i+2+par}'))
                o += xpose_w(SWP+16*nt+8*p+4*par, 2*p+par, 1)
        x = xpose_rs(SWP+16*nt, 3, VA1, 48+nt, 9*32*128, 'P', nt)
        return o + x[:4], x[4:]
    a('s_nop 1')
    h8 = hload(8)
    interleave(a, inv(1)[:10], h7 + ([FN(pi)] if Cfg.hf and Cfg.c5 < Cfg.pd else []) + dmx(14, 18) + [b2])
    first_reads(a, 'tr', 60)
    interleave(a, inv(1)[10:], pout(0)[0])
    stamp(a, 'm5')
    eo = lambda o: (lambda p, kk, h: (JC[1-EORD[p+o][1]] + 16*h, ar(HF + 16*EORD[p+o][0] + 4*kk), p+o == 1 and kk == 0))
    grp = lambda x, n: [FN(lambda a, y=x[i:i+n]: emit(a, y)) for i in range(0, len(x), n)]
    pst = grp(pout(0)[1] + pout(1)[1], 3)
    def EV(*pairs):
        d = {}
        for k, v in pairs: d.setdefault(k, []).extend(v if isinstance(v, list) else [v])
        return d
    if not Cfg.hf:
        assert Cfg.pe <= 24 and Cfg.c5 >= 24
        def s7(unit):
            run(a, 60, 3, 'tr', eo(0), [(pout(1)[0], 2, 10), (pst[:4], 0, max(11, Cfg.pe//2)), (pst[4:], max(11, Cfg.pe//2), Cfg.pe)]*unit, role='E',
                events={('pre',0): pre(6), ('pre',16): pre(7), Cfg.c5-Cfg.pd: [pi], ('pre',17): [lambda a: stamp(a, 7)]})
    else:
        assert Cfg.pe <= 48 and Cfg.e8 < 6
        def s7(unit):
            run(a, 60, 6, 'tr', eo(0), [(pout(1)[0], 2, 12), (pst, Cfg.c5+9, Cfg.pe)]*unit + [(h8, Cfg.c5+1, Cfg.c5+9), (xback(VB1, 1), 14, 28)], role='E',
                events=EV((('pre',0), pre(6)), (('pre',16), pre(7)), (Cfg.c5, pc(5)), (('pre',8*Cfg.e8), pre(8)), (('pre',17), lambda a: stamp(a, 7)), (('pre',24), lambda a: stamp(a, 8)), (33, codetouch),
                          *([(Cfg.c5-Cfg.pd, pi)] if Cfg.c5 >= Cfg.pd else [])))
    s7(True)
    s_u = a.snap()
    lx = a.l; a.l = []
    a.restore(s_nou); emit(a, h7 + ([FN(pi)] if Cfg.hf and Cfg.c5 < Cfg.pd else []))
    s7(False)
    a('s_branch L_s7u')
    k = [x.strip() for x in lx].index(';NONUNIT7'); a.l = lx[:k] + a.l + lx[k+1:]
    a('L_s7u:'); a.merge(s_u, a.snap())
    if not Cfg.hf:
        stamp(a, 8)
        run(a, 63, 9, 'tr', eo(3), [(h8, Cfg.c5-23, Cfg.c5-15), (part_ops(JC[1], 0), 8*Cfg.e8-13, 8*Cfg.e8+12), (fsetup0() + ([] if Cfg.f9 else fsetup()), 36, 68), (xback(VB1, 1), 1, 14), (fsetup()[:3] + coop_tw(), 10, 36),
            ([V(f's_add_u32 s{sL9}, s{sPS}, {16384*2}')], 68, 70)], role='E',
            events={9: [codetouch], Cfg.c5-24: [pc(5)], ('pre',8*Cfg.e8-24): pre(8), Cfg.pe+6: [only(R_UNIT, lambda a: setflag(a, 1, 'P', off=11))]})
    else:
        run(a, 66, 6, 'tr', eo(6), [(part_ops(JC[1], 0), 3, 32), (fsetup()[:3] + coop_tw() + fsetup0() + ([] if Cfg.f9 else fsetup()), 0, 45),
            ([V(f's_add_u32 s{sL9}, s{sPS}, {16384*2}')], 45, 47)], role='E',
            events={Cfg.pe-16: [only(R_UNIT, lambda a: setflag(a, 1, 'P', off=11))]})
    s_e = a.snap()
    if Cfg.eo: le = a.l; a.l = []
    else: a('s_branch L_s9')
    a('; ROUND 2')
    a.l += lodd; a.restore(s_odd)
    stamp(a, 4)
    run(a, 18, 9, 'tr', g1(ACC[0]), [(gelu_ops(ACC[1], 1, 3), Cfg.gs0, END), (only_ops(R_DFT, vlate, 1), 2, 40)] + ([] if Cfg.ce else [(clo[:6], 44, 68)]),
        events={PG: [pi], 40: l2a, 66: l2b})
    run(a, 27, 9, 'tr', g1(ACC[1]), [(gelu_ops(ACC[0], 2, 4), Cfg.gs0, END), (hload(0), CG+2, 64)] + ([] if Cfg.ce else [(clo[6:], 1, 14)]),
        events={2: [only(R_DFT, lambda a: setflag(a, 1, 'V', off=35))], CG: [pc(1)], (FG+1 if Cfg.ce else Cfg.f2o): [sf(2, 'clr', ('h',1))], 30: l2c, PG: [pi]}, role='O')
    stamp(a, 5)
    run(a, 36, 9, 'tr', g1(ACC[0]), [(gelu_ops(ACC[1], 3), Cfg.gs0, END), (hload(5), CG+2, 64)], role='O',
        events={CG: [pc(2)], FG: [sf(3, ('h',2))], PG: [pi]})
    stamp(a, 6)
    jj = lambda p, kk, h: (JA[p % 2] + 16*h, ar(HF + 16*GORD[p//2] + 4*kk), p < 2 and kk == 0)
    run(a, 45, 18, 'tr', jj, [(gelu_ops(ACC[0], 4), 3, 47), (hload(6), CG+2, 46), (hload(7), 49+Cfg.c4, 66+Cfg.c4), (hload(8), 48+Cfg.h8, 62+Cfg.h8), (sops(tabg), 140, 143), (fsetup()[:3] + coop_tw(), 50, 96), (fsetup0() + ([] if Cfg.f9 else fsetup()), 97, 140)], role='O',
        events={CG: [pc(3)], Cfg.f4: [sf(4, ('h',3))], 46: [pi], 48+Cfg.c4: [pc(4)], ('pre',64): pre(0), ('pre',80): pre(5), ('pre',96): pre(6), ('pre',112): pre(7), Cfg.f5h: [sf5], 126: [sent8], 132: [codetouch]})
    stamp(a, 8)
    run(a, 63, 9, 'tr', g2(JC[0]), [(part_ops(JA[0], 4) + part_ops(JA[1], 6), 3, Cfg.p8), ([V(f's_add_u32 s{sL9}, s{sPS}, {16384*10}')], 60, 62)] + ([(tw_reads(), 52, 70)] if Cfg.tw3 else []))
    LO = []
    if Cfg.eo: a('s_branch L_s9'); LO = a.l; a.l = le
    a(f'; ROUND {0 if Cfg.w3 == 2 else 3}\nL_s9:'); a.merge(s_e, a.snap())
    if Cfg.warm and Cfg.w3 == 1: a('; WARM 3')
    stamp(a, 9)
    g2o = lambda acc, o: (lambda p, kk, h: (acc + 16*h, ar(HF + 16*GORD[p+o] + 4*kk), p+o == 0 and kk == 0))
    def two(mask, f):
        l1 = a.label('TW'); l2 = a.label('TX')
        a(f's_and_b32 s98, s{sCLS}, {mask}\ns_cbranch_scc1 {l1}'); s0 = a.snap()
        f(False); a(f's_branch {l2}\n{l1}:'); s1 = a.snap(); a.restore(s0)
        f(True); a(f'{l2}:'); a.merge(s1, a.snap())
    pl1 = lambda hf: [FN(lambda a, k=k: emit(a, pl_ops(hf, k, k+1, 32 if Cfg.bf else SWS))) for k in range(16)]
    if Cfg.bf: two = lambda mask, f: f(True)
    def ppoll_i(a):
        a(f"""s_min_u32 s98, s{sWV}, 2
        s_mul_i32 s98, s98, 768
        s_add_u32 s98, s98, {PFL_OFF}
        v_lshlrev_b32 v204, 3, v{VLANE}
        v_add_u32 v204, s98, v204
        v_add_u32 v205, 256, v204""")
        a.vm(poll_ins(200, 204, '0'), 'pp1'); a.vm(poll_ins(202, 205, '0'), 'pp2')
    def ppoll_c(a):
        if Cfg.blk & 4:
            only(R_FINW, lambda a: (poll_check(a, 'pp1', 200, 204, '0', 1), poll_check(a, 'pp2', 202, 205, '0', 1)))(a); a(f's_bitcmp1_b32 s{sROLE}, {R_FINW}\ns_cselect_b32 s11, 0, 1'); return
        a.vneed('pp2'); poll_test(a, 200, 1); a('s_cselect_b32 s11, 1, 0'); poll_test(a, 202, 1); a(f's_cselect_b32 s11, 1, s11\ns_bitcmp1_b32 s{sROLE}, {R_FINW}\ns_cselect_b32 s11, s11, 1')
    def EV(*pairs):
        d = {}
        for k, v in pairs: d.setdefault(k, []).extend(v if isinstance(v, list) else [v])
        return d
    sched = dict(zip((78, 81, 84, 87), Cfg.sch))
    def tryev(qn, n):
        c = sched.get(qn, '-')
        if c not in '01': return [], []
        hf = int(c); t = E(); etest(t, hf, 20)
        t(f's_cselect_b32 s20, 0, {1 << hf}\ns_and_b32 s20, s20, s{sCLS}\ns_mul_i32 s20, s20, {1 + 512 + 2048}\ns_bitset0_b32 s{sCLS}, {9+hf}\ns_xor_b32 s{sCLS}, s{sCLS}, s20')
        if Cfg.bf: t(f's_mov_b64 s[32:33], s[{SWS}:{SWS+1}]\ns_mov_b32 s35, 0x20000\ns_cmp_lg_u32 s20, 0\ns_cselect_b32 s34, s{SWS+2}, 0')
        ops = sops('\n'.join(t.l))
        if Cfg.blk & (1 << hf) and qn == 78 + 3*Cfg.sch.rindex(c):
            k = [i for i, x in enumerate(t.l) if x.strip().startswith('s_cmp_gt_u32')][0]
            def blk(a):
                lc = a.label('BC'); lk = a.label('BK')
                a(f's_bitcmp1_b32 s{sCLS}, {hf}\ns_cselect_b32 s20, s20, 0\ns_cmp_gt_u32 s20, 8\ns_cbranch_scc1 {lc}\n{lk}:\ns_mov_b32 s20, 0')
                u = E(); u.nlab = 8000 + a.nlab
                u(f'{lc}:\ns_mov_b32 s99, 8\n{lc}_l:'); eld(hf, 20)(u); u.drain(); etest(u, hf, 20)
                u(f's_cbranch_scc0 {lk}\ns_sub_u32 s99, s99, 1\ns_cbranch_scc0 {lc}_l\ns_mov_b32 s20, -1\ns_add_u32 s20, s20, s{sND+hf}'); eblock(u, hf, 20, Cfg.slp); u(f's_branch {lk}')
                HOT.extend(u.l); a.ool += u.ool
            ops = sops('\n'.join(t.l[:k])) + [FN(blk, 4)] + sops('\n'.join(t.l[k:]))
        return ([(n - Cfg.ta, eld(hf, 20))] if Cfg.ta <= n else []) + [(n - 8, lambda a: a.drain())], [(ops, n-7, n)]
    bar = lambda a: a('s_barrier')
    p2 = part_ops(JC[1], 2)
    seg = {78: (JC[1], 6, [], [(Cfg.f6-48, sf(6, ('p',9))), (23, ppoll_c)]),
           81: (JC[0], 0, [(p2[:11], 3, 22)] + ([] if Cfg.tw3 else [(tw_reads(), 4, 20)]), []),
           84: (JC[0], 3, [(p2[11:], 0, 12), (fin_addr(), 8, 23)], []),
           87: (JC[0], 6, [([FN(lambda a: a.vneed(('d', 98)))] + prd(0) + prd(1) + prd(2), 12, 24)], [(Cfg.f7-48, sf(7, ('p',2))), (('dma', 88), [102, 103]), (('dma', 89), [104]), (3, bar), (22, bar)])}
    e, f = tryev(78, 48)
    if Cfg.ta > 24 and sched[81] in '01': e = e + [(72 - Cfg.ta, eld(int(sched[81]), 20))]
    run(a, 72, 6, 'tr', g2o(JC[1], 0), [(part_ops(JC[0], 9), 3, Cfg.p9), (xb_ops()[:12], 30, 44)] + f + ([(fsetup(), 0, 25)] if Cfg.f9 else []),
        events=EV((Cfg.f5, sf(5, ('p',0), ('p',4), ('p',6))), (45, ppoll_i), *e))
    def slab(q, ld):
        acc, o, fl, ev = seg[q]; e, f = tryev(q+3, 24)
        if Cfg.ta > 24 and sched.get(q+6, '-') in '01': e = e + [(48 - Cfg.ta, eld(int(sched[q+6]), 20))]
        run(a, q, 3, 'tr', g2o(acc, o), fl + f + ([(ld, 0, 22 if q < 87 else 16)] if ld else []), nxt=None if q == 87 else 'tr', events=EV(*ev, *e))
    for q in (78, 81, 84, 87):
        c = sched[q]
        if c == '-': slab(q, None)
        elif c == 'x': continue
        else:
            L = pl1(int(c))
            if sched.get(q+3) == 'x': two(512 << int(c), lambda ld: (slab(q, L[:9] if ld else None), slab(q+3, L[9:] if ld else None)))
            else: two(512 << int(c), lambda ld: slab(q, L if ld else None))
    stamp(a, 10)
    final(a)
    a('L_fin:')
    stamp_flush(a, 11)
    a('L_end:\ns_endpgm\nL_hot:\ns_endpgm')
    a.l += HOT
    if not Cfg.wsl: a('; ROUND -1')
    a.l += SLOW
    a('L_tailend:')
    a.l += LO
    a('; ROUND -1')
    return a.text()

PTH = [136, 8]
VFA = 4; VO = 5
SEL = 200; AB2 = 208; AX = 232
sCLS = 53
sND, sFO, sPB, sXO, sSG = 46, 48, 50, 4, 36
def classes():
    LAML = [0,0,4,4,2,2,3,3,2]; LAMH = [2,3,3,0,0,4,4,0,0]; NEED = [4,4,6,7,5]; RANK = [0,0,2,3,1]
    swap = 0; nd = [0, 0]; cl = []
    for c in range(9):
        rl, rh = RANK[LAML[c]], RANK[LAMH[c]]
        sw = (rh < rl) if max(rl, rh) < 2 else (rh > rl)
        la, lb = (LAMH[c], LAML[c]) if sw else (LAML[c], LAMH[c])
        swap |= sw << c; nd[0] |= NEED[la] << 3*c; nd[1] |= NEED[lb] << 3*c
        cl.append(({0:0, 2:2, 3:4}[RANK[la]], {0:1, 1:1, 2:3, 3:5}[RANK[lb]]))
    ca = sum(x[0] << 3*i for i, x in enumerate(cl)); cb = sum(x[1] << 3*i for i, x in enumerate(cl))
    return swap, nd, ca, cb
def xearly_addr(a):
    swap = classes()[0]; X = ACC[0]
    a(f'''s_lshl_b32 s96, s{sI}, 2
    s_lshr_b32 s98, s{sC}, 2
    s_add_u32 s96, s96, s98
    s_mul_i32 s96, s96, 1152
    s_and_b32 s98, s{sC}, 3
    s_min_u32 s98, s98, 2
    s_mul_i32 s99, s{sWV}, 3
    s_add_u32 s98, s98, s99
    s_min_u32 s98, s98, 8
    s_lshl_b32 s99, s98, 6
    s_add_u32 s96, s96, s99
    v_lshrrev_b32 v{X}, 2, v{VLANE}
    v_mul_u32_u24 v{X}, 4608, v{X}
    v_lshrrev_b32 v{X+1}, 4, v{VLANE}
    v_xor_b32 v{X+1}, v{X+1}, v{VLANE}
    v_and_b32 v{X+1}, 3, v{X+1}
    v_add_lshl_u32 v{X}, v{X}, v{X+1}, 4
    s_bitcmp1_b32 {swap:#x}, s98
    s_cselect_b32 s98, 576, 0
    s_cselect_b32 s99, 0, 576
    s_add_u32 s98, s98, s96
    s_add_u32 s99, s99, s96
    v_add_u32 v{X+2}, s99, v{X}
    v_add_u32 v{X}, s98, v{X}
    v_add_u32 v{X+1}, {16*73728}, v{X}
    v_add_u32 v{X+3}, {16*73728}, v{X+2}''')
def xearly(a):
    a(f's_lshl_b32 s98, s{sWV}, 12')
    for k in range(4):
        a(f's_add_u32 m0, s98, {BIAS_LDS + 2048 + 1024*k}\ns_nop 0')
        a.vm(f'buffer_load_dwordx4 v{ACC[0]+k}, {S(SX)}, 0 offen lds', 'x2')
def xback(v, t):
    o = sops(f"""s_min_u32 s3, s{sWV}, 2
    s_lshl_b32 s3, s3, 12
    s_add_u32 s3, s3, {BIAS_LDS+2048}
    v_and_b32 v{v}, 31, v{VLANE}""".replace('\n', '\n'))
    o = [V(f's_min_u32 s3, s{sWV}, 2\ns_lshl_b32 s3, s3, 12\ns_add_u32 s3, s3, {BIAS_LDS+2048}\nv_and_b32 v{v}, 31, v{VLANE}\nv_lshl_add_u32 v{v}, v{v}, 6, s3', 5),
         V(f'v_bfe_u32 v{t}, v{VLANE}, 2, 2'), V(f'v_lshl_add_u32 v{v}, v{t}, 4, v{v}'), V(f'v_lshrrev_b32 v{t}, 5, v{VLANE}'), V(f'v_lshl_add_u32 v{v}, v{t}, 3, v{v}'), FN(lambda a: a.vneed('x2'), 0)]
    for q in range(4):
        if q: o.append(V(f'v_xor_b32 v{t}, {16*q}, v{v}'))
        o += [LD(f'ds_read_b64 {ar(AX+8*hf+2*q,2)}, v{t if q else v} offset:{2048*hf}') for hf in range(2)]
    return o
def fsetup0():
    return sops(f"""s_lshl_b32 s{sFLG}, s{sB}, 1
    s_and_b32 s39, s{sC}, 1
    s_add_u32 s{sFLG}, s{sFLG}, s39
    s_mul_i32 s{sFLG}, s{sFLG}, {128*Cfg.fw}
    s_lshr_b32 s39, s{sC}, 1
    s_mul_i32 s39, s39, {4 if Cfg.fw == 1 else 128}
    s_add_u32 s{sFLG}, s{sFLG}, s39
    s_add_u32 s{sFLG}, s{sFLG}, {FL2_OFF}""")
def fsetup():
    a = E(); swap, nd, ca, cb = classes()
    a(f"""s_lshl_b32 s52, s{sI}, 2
    s_lshr_b32 s38, s{sC}, 2
    s_add_u32 s52, s52, s38             ; b'
    s_and_b32 s65, s{sC}, 3
    s_min_u32 s65, s65, 2
    s_mul_i32 s38, s{sWV}, 3
    s_add_u32 s65, s65, s38
    s_min_u32 s65, s65, 8                 ; tile c
    s_mul_i32 s39, s65, 3
    s_lshr_b32 s{sND}, {nd[0]:#x}, s39
    s_and_b32 s{sND}, s{sND}, 7
    s_lshr_b32 s{sND+1}, {nd[1]:#x}, s39
    s_and_b32 s{sND+1}, s{sND+1}, 7
    s_lshr_b32 s38, {ca:#x}, s39
    s_and_b32 s38, s38, 7
    s_lshl_b32 s{sCLS}, 1, s38
    s_lshr_b32 s38, {cb:#x}, s39
    s_and_b32 s38, s38, 7
    s_bitset1_b32 s{sCLS}, s38
    s_bitcmp1_b32 s{sROLE}, {R_FINW}
    s_cselect_b32 s{sCLS}, s{sCLS}, 0
    s_mul_i32 s39, s52, {256*Cfg.fw}
    s_add_u32 s39, s39, {FL2_OFF + 128*Cfg.fw}
    s_cmp_eq_u32 s65, 8
    s_cselect_b32 s38, 0, {128*Cfg.fw}
    s_sub_u32 s38, s39, s38
    s_mul_i32 s{sPB}, s52, 18
    s_add_u32 s{sPB}, s{sPB}, s65
    s_lshl_b32 s{sPB}, s{sPB}, 14
    s_add_u32 s{sPB}, s{sPB}, {PART_OFF}
    s_lshl_b32 s{sXO}, s65, 6
    s_bitcmp1_b32 {swap:#x}, s65
    s_cselect_b32 s{sFO}, s39, s38
    s_cselect_b32 s{sFO+1}, s38, s39
    s_cselect_b32 s{sSG}, -1.0, 1.0
    s_cselect_b32 s{sSG+1}, 1.0, -1.0
    s_cselect_b32 s38, {9*16384}, 0
    s_cselect_b32 s39, 576, 0
    s_add_u32 s{sPB+1}, s{sPB}, {9*16384}
    s_sub_u32 s{sPB+1}, s{sPB+1}, s38
    s_add_u32 s{sPB}, s{sPB}, s38
    s_add_u32 s{sXO+1}, s{sXO}, 576
    s_sub_u32 s{sXO+1}, s{sXO+1}, s39
    s_add_u32 s{sXO}, s{sXO}, s39
    s_add_u32 s{sXO+2}, s{sXO}, {16*73728}
    s_add_u32 s{sXO+3}, s{sXO+1}, {16*73728}
    s_sub_u32 s38, s{sND}, 4
    s_mul_i32 s38, s38, {16384*Cfg.fw if Cfg.fs else 0}
    s_add_u32 s{sFO}, s{sFO}, s38
    s_sub_u32 s38, s{sND+1}, 4
    s_mul_i32 s38, s38, {16384*Cfg.fw if Cfg.fs else 0}
    s_add_u32 s{sFO+1}, s{sFO+1}, s38
    s_add_u32 s{sND}, s{sND}, s{sNON}
    s_add_u32 s{sND+1}, s{sND+1}, s{sNON}
    v_and_b32 v{VFA}, 7, v{VLANE}
    v_lshlrev_b32 v{VFA}, {2 if Cfg.fw == 1 else 7}, v{VFA}
    v_lshrrev_b32 v{VO}, 2, v{VLANE}
    s_mov_b32 s38, 73728
    v_mul_lo_u32 v{VO}, v{VO}, s38
    v_and_b32 v206, 3, v{VLANE}
    v_lshl_add_u32 v{VO}, v206, 4, v{VO}
    s_mul_i32 s38, s52, 1152
    v_add_u32 v{VO}, s38, v{VO}""")
    a(f's_mul_i32 s{sFP}, s52, 36864\ns_mul_i32 s38, s{sWV}, 12288\ns_add_u32 s{sFP}, s{sFP}, s38\ns_add_u32 s{sFP}, s{sFP}, {P_OFF}')
    return sops('\n'.join(a.l))
def cls_block(a, mask, body, inv=False):
    l = a.label('CB'); a(f's_and_b32 s98, s{sCLS}, {mask}\ns_cbranch_scc{1 if inv else 0} {l}'); s0 = a.snap()
    body(a); a(f'{l}:'); a.merge(s0, a.snap())
SE = [56, 8]
def eld(hf, w):
    def f(a):
        if Cfg.fw == 1: a(f's_buffer_load_dwordx8 s[{w}:{w+7}], {S(SWS)}, s{sFO+hf} glc')
        else:
            for i in range(8): a(f's_buffer_load_dword s{w+i}, {S(SWS)}, s{sFO+hf} offset:{128*i} glc')
        a.smem = True
    return f
def etest(a, hf, w):
    for i in range(8): a(f's_sub_u32 s{w+i}, s{w+i}, s{sND+hf}')
    for i in (0, 2, 4, 6): a(f's_max_u32 s{w+i}, s{w+i}, s{w+i+1}')
    a(f's_max_u32 s{w}, s{w}, s{w+2}\ns_max_u32 s{w+4}, s{w+4}, s{w+6}\ns_max_u32 s{w}, s{w}, s{w+4}\ns_cmp_gt_u32 s{w}, 8')
def etry_c(hf, w):
    def f(a):
        a.drain()
        if Cfg.blk & (1 << hf):
            cls_block(a, 1 << hf, lambda a: eblock(a, hf, w, Cfg.slp)); return
        etest(a, hf, w)
        a(f"""s_cselect_b32 s98, {1 << hf}, 0
        s_and_b32 s98, s98, s{sCLS}
        s_mul_i32 s98, s98, 5
        s_xor_b32 s{sCLS}, s{sCLS}, s98""")
    return f
def eblock(a, hf, w, slp=None):
    lc = a.label('EC'); lk = a.label('EK')
    etest(a, hf, w)
    a(f's_cbranch_scc1 {lc}\n{lk}:')
    a.ool += [f'{lc}:', f' buffer_load_dword v{VPO}, v{VFA}, {S(SWS)}, s{sFO+hf} offen sc1', ' s_waitcnt vmcnt(0)', f' v_subrev_u32 v{VPO}, s{sND+hf}, v{VPO}', f' v_cmp_lt_u32 vcc, 8, v{VPO}', ' s_nop 1', ' s_cmp_lg_u64 vcc, 0',
              f' s_cbranch_scc0 {lk}', f' s_sub_u32 s{sP}, s{sP}, 1', f' s_cbranch_scc1 {lc}_x', f' s_sleep {slp or Cfg.slp2}', f' s_branch {lc}', f'{lc}_x:', f' s_mov_b32 s{sP}, 0', f' s_branch {lk}']
def pl_ops(hf, i0, i1, srd_=SWS):
    o = []
    for i in range(i0, i1):
        if i % 4 == 0 or i == i0: o.append(V(f's_add_u32 s3, s{sPB+hf}, {4096*(i//4)}'))
        o.append(VM(f'buffer_load_dwordx4 {vr(PTH[hf]+4*i)}, v{VL16}, {S(srd_)}, s3 offen offset:{1024*(i%4)} sc1 {NT(2)}', ('pt', hf)))
    return o
def loads_if(hf, m): return [FN(lambda a, k=k: cls_block(a, m, lambda a: emit(a, pl_ops(hf, 2*k, 2*k+2)))) for k in range(8)]
def xb_ops():
    o = [V(f'v_lshrrev_b32 v{VBI}, 5, v{VLANE}'), V(f'v_lshlrev_b32 v{VBI}, 3, v{VBI}')]
    for hf in range(2):
        o.append(V(f'v_add_u32 v1, s{sXO+hf}, v{VBI}\nv_add_u32 v1, {B2_LDS}, v1'))
        for q in range(4): o.append(LD(f'ds_read_b64 {ar(AB2+8*hf+2*q,2)}, v1 offset:{16*q}'))
    for hf in range(2):
        for i in range(2): o.append(VM(f'buffer_load_dwordx4 {ar(AX+8*hf+4*i)}, v{VO}, {S(SX)}, s{sXO+hf+2*i} offen', 'x2'))
    return o
TWL = XP_LDS
def coop_tw(wv=None, dst=None):
    t = TMP; sc = 2.0/(2048*576)
    o = f"""v_and_b32 v{t}, 31, v{VLANE}
    v_lshrrev_b32 v{t+1}, 5, v{VLANE}
    v_lshlrev_b32 v207, 2, v{t+1}
    v_sub_u32 v207, v{t}, v207
    v_lshlrev_b32 v{t}, 6, v{t}
    v_add_u32 v{t}, s52, v{t}
    s_lshr_b32 s38, {'s%d' % sWV if wv is None else wv}, 1
    s_and_b32 s39, {'s%d' % sWV if wv is None else wv}, 1
    s_lshl_b32 s8, s38, 4
    s_lshl_b32 s9, s39, 2
    s_add_u32 s8, s8, s9
    v_lshl_add_u32 v{t+1}, v{t+1}, 3, s8
    v_mul_u32_u24 v{t+1}, v{t+1}, v{t}
    s_add_u32 s8, s8, s9
    v_subrev_u32 v207, s8, v207
    s_lshl_b32 s38, s38, 10
    s_lshl_b32 s39, s39, 3
    s_add_u32 s38, s38, s39
    s_add_u32 s38, s38, {TWL if dst is None else dst}
    v_add_u32 v206, s38, v{VL16}
"""
    R = [208+i for i in range(8)]
    L = []
    for i in range(4): L.append(f'v_mad_u32_u24 v{R[i]}, v{t}, {i}, v{t+1}')
    for i in range(4): L.append(f'v_and_b32 v{R[i]}, 0x7ff, v{R[i]}')
    for i in range(4): L.append(f'v_cvt_f32_u32 v{R[i]}, v{R[i]}')
    for i in range(4): L.append(f'v_mul_f32 v{R[i]}, {f2u(1/2048):#x}, v{R[i]}')
    for i in range(4): L.append(f'v_cos_f32 v{R[4+i]}, v{R[i]}')
    for i in range(4): L.append(f'v_sin_f32 v{R[i]}, v{R[i]}')
    for i in (4,5,6,7,0,1,2,3): L.append(f'v_mul_f32 v{R[i]}, {f2u(sc):#x}, v{R[i]}')
    L += [f'v_cvt_pk_bf16_f32 v{t}, v{R[4]}, v{R[5]}', f'v_cvt_pk_bf16_f32 v{t+1}, v{R[6]}, v{R[7]}', f'v_cvt_pk_bf16_f32 v{t+2}, v{R[0]}, v{R[1]}', f'v_cvt_pk_bf16_f32 v{t+3}, v{R[2]}, v{R[3]}',
          f'v_xor_b32 v{t+4}, 0x80008000, v{t+2}', f'v_xor_b32 v{t+5}, 0x80008000, v{t+3}',
          f'v_and_b32 v{R[0]}, 1, v207', f'v_lshlrev_b32 v{R[0]}, 4, v{R[0]}', f'v_mov_b32 v{R[1]}, 0x3f80', f'v_lshlrev_b32 v{R[0]}, v{R[0]}, v{R[1]}', 'v_and_b32 v207, -2, v207',
          'v_cmp_eq_u32 vcc, 0, v207', 's_nop 1', f'v_cndmask_b32 v{t+6}, 0, v{R[0]}, vcc', 'v_cmp_eq_u32 vcc, 2, v207', 's_nop 1', f'v_cndmask_b32 v{t+7}, 0, v{R[0]}, vcc']
    ops = sops(o + '\n'.join(L))
    ops += [(8, LD(f'ds_write_b64 v206, {vr(t+2*m,2)} offset:{2048*m}')[1]) for m in range(4)]
    return ops
def tw_reads(src=None):
    return [V(f'v_add_u32 v206, {TWL if src is None else src}, v{VL16}')] + [LD(f'ds_read_b128 {ar(TW+4*i)}, v206 offset:{1024*i}') for i in range(8)]

PB = 24576
def fin_addr():
    return sops(f"""s_add_u32 s38, s{sW2K}, {PB}
    v_lshrrev_b32 v6, 5, v{VLANE}
    v_bfe_u32 v7, v{VLANE}, 2, 2
    v_lshl_add_u32 v6, v6, 3, v7
    v_lshlrev_b32 v6, 7, v6
    v_bfe_u32 v7, v{VLANE}, 1, 1
    v_lshl_add_u32 v6, v7, 6, v6
    v_bfe_u32 v7, v{VLANE}, 4, 1
    v_lshl_add_u32 v6, v7, 4, v6
    v_and_b32 v7, 1, v{VLANE}
    v_lshl_add_u32 v6, v7, 3, v6
    v_add_u32 v6, s38, v6
    v_add_u32 v7, s38, v{VL16}
    s_lshl_b32 s38, s{sWV}, 12
    v_add_u32 v3, s38, v{VL16}
    v_add_u32 v1, 73728, v3
    s_lshl_b32 s38, s{sWV}, 14
    s_add_u32 s38, s38, {PB + 6144}
    v_add_u32 v247, s38, v{VL16}
    s_mov_b32 s39, {f2u(-math.log2(math.e)):#x}""")
APF = 32
def prd(jj):
    return [LD(f'ds_read_b64_tr_b16 {ar(APF+16*jj+8*p+4*t+2*rho,2)}, v6 offset:{8192*(2*jj+t)+512*rho+32*p}', ('pf', jj))
            for t in range(2) for p in range(2) for rho in range(2)]
def final(a):
    Ea=72; Oa=88; YS=[104,208,72]; GA=[208, 104]; PK2=224; T=240; VY=7; VG=3; VG2=1; AY=16
    cv, st = part_inplace(JC[0], 3)
    brole(a, R_FINW, 'L_nfw', False); s0 = a.snap()
    la = a.l; a.l = []; a('L_nfw:')
    a('s_nop 8'); emit(a, mix(cv, st))
    brole(a, R_FIN, 'L_w3'); s3_ = a.snap()
    setflag2(a, 8, ('p',3)); a('s_branch L_fin')
    a('L_w3:'); a.restore(s3_)
    for k in range(6):
        a(f's_mov_b32 m0, {122880 + 4096*k}\ns_mov_b32 s96, {86016 - 6144 + 4096*k}\nv_lshl_add_u64 {vr(VTT,2)}, s[96:97], 0, {vr(VTB,2)}')
        for i in range(4): a.vm(f'global_load_lds_dwordx4 {vr(VTT,2)}, off offset:{1024*i}')
        if k == Cfg.w3b: a.vneed(('d', 104)); a('s_barrier')
    setflag2(a, 8, ('p',3))
    a.vdrain(); a('s_barrier\ns_branch L_fin')
    HOT.extend(a.l); a.l = la; a.restore(s0)
    lc = a.label('PR'); lk = a.label('PL')
    if not Cfg.blk & 4: a(f's_cmp_lg_u32 s11, 0\ns_cbranch_scc1 {lc}')
    else: a('s_nop 1')
    t = E(); t.nlab = 9000
    t(f'{lc}:\ns_nop 7'); emit(t, mix(cv, st))
    t.vm(poll_ins(200, 204, '0'), 'x'); t.vm(poll_ins(202, 205, '0'), 'y')
    poll_check(t, 'x', 200, 204, '0', 1); poll_check(t, 'y', 202, 205, '0', 1)
    t.drain()
    for q in range(93, 99):
        for f in plan(q, 'P'): f(t)
    t.vdrain(); emit(t, prd(0) + prd(1) + prd(2)); t.drain()
    C=lambda t: ar(TW+4*t); Sn=lambda t: ar(TW+8+4*t); N=lambda t: ar(TW+16+4*t)
    def inv(jj):
        yr=vr(YS[jj],16); yi=vr(YS[jj]+16,16); P=APF+16*jj; mf=[]
        for u in range(2):
            mf += [f'{M} {yr}, {ar(P+4*u)}, {C(u)}, {"0" if u==0 else yr}', f'{M} {yi}, {ar(P+8+4*u)}, {C(u)}, {"0" if u==0 else yi}',
                   f'{M} {yr}, {ar(P+8+4*u)}, {N(u)}, {yr}', f'{M} {yi}, {ar(P+4*u)}, {Sn(u)}, {yi}']
        return mf
    for x in inv(0): t(x)
    t(f's_nop 4\ns_branch {lk}')
    if not Cfg.blk & 4: a.ool += t.l + t.ool
    def pk(jj):
        o = []
        for q in range(4):
            o += [V(f'v_cvt_pk_bf16_f32 v{YS[jj]+8*q+i}, v{YS[jj]+8*q+2*i}, v{YS[jj]+8*q+2*i+1}') for i in range(4)]
            o.append(LD(f'ds_write_b128 v{VY}, {vr(YS[jj]+8*q)} offset:{8192*(2*jj+q%2)+1024*(q//2)}', 'yw'))
        return o
    a.need(('pf', 0))
    mf = inv(0)
    for x in mf[:2]: a(x)
    a('s_nop 2')
    interleave(a, mf[2:], mix(cv, st))
    a.need(('pf', 2))
    a(f'{lk}:')
    stamp(a, 'f1')
    if not (Cfg.blk & 2 and '1' in Cfg.sch): eld(1, 56)(a)
    eld(0, 20)(a)
    for jj in (1, 2):
        mf = inv(jj)
        for x in mf[:2]: a(x)
        a('s_nop 5')
        interleave(a, mf[2:], pk(jj-1))
    def summ(hf):
        y = vr(GA[hf], 16)
        o = [f'{M} {y}, {ar(SEL)}, {ar(AB2+8*hf)}, 0', f'{M} {y}, {ar(SEL+4)}, {ar(AB2+8*hf+4)}, {y}']
        return o + [f'{M} {y}, {ar(SEL+4*(i%2))}, {vr(PTH[hf]+4*i)}, {y}' for i in range(16)]
    VW = 204; VR = 205
    setup = sops(f"""s_mul_i32 s38, s{sWV}, 5120
    s_add_u32 s38, s38, {BIAS_LDS}
    v_and_b32 v{VW}, 31, v{VLANE}
    v_mul_u32_u24 v{VW}, 80, v{VW}
    v_add3_u32 v{VW}, v{VW}, v{VBI}, s38
    v_lshrrev_b32 v{VR}, 2, v{VLANE}
    v_mul_u32_u24 v{VR}, 80, v{VR}
    v_and_b32 v206, 3, v{VLANE}
    v_lshlrev_b32 v206, 4, v206
    v_add3_u32 v{VR}, v{VR}, v206, s38""")
    XU = [8, 120]; U0 = 24; GB = 40
    def xun(hf):
        d = vr(XU[hf], 16)
        return [f'{M} {d}, {ar(SEL)}, {ar(AX+8*hf)}, 0', f'{M} {d}, {ar(SEL+4)}, {ar(AX+8*hf+4)}, {d}']
    def sum0(t):
        y = vr(GA[0] if t == 0 else GB, 16)
        return [f'{M} {y}, {ar(SEL+4*t)}, {ar(AB2+4*t)}, 0'] + [f'{M} {y}, {ar(SEL+4*t)}, {vr(PTH[0]+8*i+4*t)}, {y}' for i in range(8)]
    def u0(): return [V(f'v_fma_f32 v{U0+i}, v{Oa+i}, s{sSG}, v{Ea+i}') for i in range(16)]
    def wr(hf, g): return LD(f'ds_write_b64 v{VW}, {vr(PK2+8*hf+g//2,2)} offset:{2560*hf+4*g}')
    def outp(hf):
        o = [LD(f'ds_read_b128 {vr(PK2+8*hf+4*i)}, v{VR} offset:{2560*hf+1280*i}', ('tr', hf, i)) for i in range(2)]
        st = [FN(lambda a, i=i: (a.need(('tr', hf, i)), a.vm(f'buffer_store_dwordx4 {vr(PK2+8*hf+4*i)}, v{VO}, {S(SOUT)}, s{sXO+hf+2*i} offen {Cfg.ofl}'))) for i in range(2)]
        return o, st
    def fin0(t):
        o = []
        for g in (8*t, 8*t+4):
            y = [(GA[0] if t == 0 else GB)+g+i for i in range(4)]; r = [T+i for i in range(4)]
            x = [f'v_mul_f32 v{r[i]}, s39, v{y[i]}' for i in range(4)] + [f'v_exp_f32 v{r[i]}, v{r[i]}' for i in range(4)]
            x += [f'v_add_f32 v{r[i]}, 1.0, v{r[i]}' for i in range(4)] + [f'v_rcp_f32 v{r[i]}, v{r[i]}' for i in range(4)]
            x += [f'v_mul_f32 v{y[i]}, v{U0+g+i}, v{y[i]}' for i in range(4)] + [f'v_fma_f32 v{r[i]}, v{r[i]}, v{y[i]}, v{XU[0]+g+i}' for i in range(4)]
            x += [f'v_cvt_pk_bf16_f32 v{PK2+g//2+i}, v{r[2*i]}, v{r[2*i+1]}' for i in range(2)]
            o += [V(z) for z in x] + [wr(0, g)]
        return o
    def rdyg(i):
        j = i//4; r = i % 4; go = 12288*j + 1024*r
        a.lds(f'ds_read_b128 {ar(AY+4*r)}, v{VY} offset:{8192*(2*(j%3) + r//2) + 2048*(j//3) + 1024*(r%2)}', ('yg', i))
        if j < 2:    a.lds(f'ds_read_b128 {ar(4*r)}, v{VG} offset:{go}', ('yg', i))
        elif j == 2: a.lds(f'ds_read_b128 {ar(4*r)}, v247 offset:{8192*(r//2) + 1024*(r%2)}', ('yg', i))
        else:        a.lds(f'ds_read_b128 {ar(4*r)}, v{VG2} offset:{go-36864}', ('yg', i))
    stamp(a, 'f2')
    def mainm(i):
        j = i//4; u = (i//2) % 2
        d = vr(Ea if (u == 1) == (j < 5) else Oa, 16)
        a(f'{M} {d}, {ar(4*(i%4))}, {ar(AY+4*(i%4))}, {"0" if i in (0,2) else d}')
    def silu(hf):
        o = []
        for g in range(0, 16, 4):
            y = [GA[hf]+g+i for i in range(4)]; t = [T+i for i in range(4)]
            o += [V(f'v_mul_f32 v{t[i]}, s39, v{y[i]}') for i in range(4)] + [V(f'v_exp_f32 v{t[i]}, v{t[i]}') for i in range(4)] + [V(f'v_add_f32 v{t[i]}, 1.0, v{t[i]}') for i in range(4)]
            o += [V(f'v_rcp_f32 v{t[i]}, v{t[i]}') for i in range(4)] + [V(f'v_mul_f32 v{y[i]}, v{t[i]}, v{y[i]}') for i in range(4)]
        return o
    def comb(hf):
        o = []
        for g in range(0, 16, 4):
            u = [248+i for i in range(4)]
            o += [V(f'v_fma_f32 v{u[i]}, v{Oa+g+i}, s{sSG+hf}, v{Ea+g+i}') for i in range(4)] + [V(f'v_fma_f32 v{u[i]}, v{u[i]}, v{GA[hf]+g+i}, v{XU[hf]+g+i}') for i in range(4)]
            o += [V(f'v_cvt_pk_bf16_f32 v{PK2+8*hf+g//2+i}, v{u[2*i]}, v{u[2*i+1]}') for i in range(2)] + [wr(hf, g)]
        return o + outp(hf)[0]
    if Cfg.f8 == 99: setflag2(a, 8, ('p',3))
    a(f's_and_b32 s98, s{sCLS}, {1|4|16}\ns_cselect_b32 s98, 64, 0\ns_or_b32 s{sCLS}, s{sCLS}, s98')
    def point(a):
        def b(a):
            l = a.label('T0'); a.drain(); etest(a, 0, 20); eld(0, 20)(a); a(f's_cbranch_scc1 {l}'); s0 = a.snap()
            emit(a, pl_ops(0, 0, 16)); a(f's_xor_b32 s{sCLS}, s{sCLS}, {64|256}\n{l}:'); a.merge(s0, a.snap())
        cls_block(a, 64, b)
    def must0(a):
        def b(a):
            l = a.label('MS'); l2 = a.label('MT')
            a(f's_mov_b32 s99, 6\n{l}:'); a.drain(); etest(a, 0, 20); a(f's_cbranch_scc0 {l2}'); eld(0, 20)(a)
            a(f's_sub_u32 s99, s99, 1\ns_cbranch_scc0 {l}'); a.drain(); eblock(a, 0, 20); a(f'{l2}:'); stamp(a, 'g2')
            emit(a, pl_ops(0, 0, 16))
        cls_block(a, 64, b)
        a.vdrain()
    pts = [int(x) for x in str(Cfg.pts).split('_')]
    noslow = Cfg.blk & 2 and '1' in Cfg.sch
    if not noslow: a(f's_bitcmp1_b32 s{sCLS}, 12\ns_cbranch_scc0 L_slow')
    s_sl = a.snap()
    a.vneed(('d', 104))
    s1 = summ(1) + xun(1) + xun(0)
    for x in s1[:2]: a(x)
    a('s_nop 2')
    interleave(a, s1[2:9], pk(2) + [V(f'v_add_u32 v{VY}, {PB}, v{VL16}')])
    interleave(a, s1[9:12], setup)
    stamp(a, 'f3')
    a.drain(); a('s_barrier')
    t = E(); etest(t, 0, 20)
    t(f's_cselect_b32 s98, 0, 64\ns_and_b32 s98, s98, s{sCLS}\ns_mul_i32 s98, s98, {1 + 4 + 128}\ns_xor_b32 s{sCLS}, s{sCLS}, s98')
    interleave(a, s1[12:], [FN(lambda a: rdyg(0)), FN(lambda a: rdyg(1)), FN(lambda a: rdyg(2))] + sops('\n'.join(t.l)) + ([FN(eld(0, 20))] if Cfg.rfi < 0 else []))
    stamp(a, 'f4')
    def mainloop(fl, start, hook):
        k2 = 0
        for i in range(36):
            if i + 3 < 36: rdyg(i+3)
            a.need(('yg', i), *([('yg', i+1)] if i % 2 == 0 and Cfg.mw else []))
            mainm(i)
            hook(i)
            while i >= start and k2 < len(fl)*(i-start+1)//(35-start) and k2 < len(fl): fl[k2][1](a); k2 += 1
            if i == 24: a('s_barrier')
    def hookf(i):
        if i % Cfg.ls == 0 and i//Cfg.ls < 4: cls_block(a, 1 << 13, lambda a: emit(a, pl_ops(0, 4*(i//Cfg.ls), 4*(i//Cfg.ls)+4)))
        if i == Cfg.rfi: eld(0, 20)(a)
        if i in pts: point(a)
    mainloop(silu(1), 1, hookf)
    stamp(a, 'f5')
    lf = a.label('FF')
    a(f's_bitcmp1_b32 s{sCLS}, 6\ns_cbranch_scc1 {lf}'); s0 = a.snap()
    a.vdrain()
    stamp(a, 'f6')
    sA = sum0(0); sB = sum0(1)
    for x in sA[:2]: a(x)
    a('s_nop 5')
    interleave(a, sA[2:], comb(1))
    interleave(a, sB[:3], u0() + outp(1)[1])
    a('s_branch L_last'); sa = a.snap()
    a(f'{lf}:'); a.restore(s0)
    point(a)
    a('s_nop 7')
    emit(a, comb(1) + u0() + outp(1)[1])
    a('L_w0:')
    stamp(a, 'g1')
    must0(a)
    stamp(a, 'f6')
    for x in sA + sB[:2]: a(x)
    a('s_nop 7'); a(sB[2])
    a('L_last:'); a.merge(sa, a.snap())
    interleave(a, sB[3:], fin0(0))
    stamp(a, 'f8b')
    a('s_nop 3')
    emit(a, fin0(1))
    stamp(a, 'f9')
    emit(a, outp(0)[0] + outp(0)[1])
    global SLOW
    SLOW = []
    if noslow: return
    la = a.l; a.l = []
    a('L_slow:'); a.restore(s_sl)
    emit(a, setup + pk(2))
    a(f'v_add_u32 v{VY}, {PB}, v{VL16}')
    stamp(a, 'f3')
    a.vneed(('d', 104)); a.drain(); a('s_barrier')
    stamp(a, 'f4')
    for i in range(3): rdyg(i)
    etest(a, 1, 56); a(f's_cselect_b32 s98, 128, 0\ns_or_b32 s{sCLS}, s{sCLS}, s98')
    def hook(i):
        if i % 2 == 0 and i < 8: cls_block(a, 128, lambda a: emit(a, pl_ops(1, 2*i, 2*i+4)), inv=True)
        if i in pts: cls_block(a, 128, point, inv=True)
        if i == 22: eld(1, 56)(a)
    mainloop([], 0, hook)
    a.drain()
    cls_block(a, 128, lambda a: (eblock(a, 1, 56), eld(0, 20)(a), emit(a, pl_ops(1, 0, 16))))
    stamp(a, 'f5')
    point(a)
    l = a.label('RD')
    a(f's_bitcmp1_b32 s{sCLS}, 8\ns_cbranch_scc1 {l}\ns_waitcnt vmcnt(0)\n{l}:\ns_waitcnt vmcnt(16)')
    stamp(a, 'g0')
    for x in summ(1) + xun(1) + xun(0): a(x)
    point(a)
    a('s_nop 5')
    emit(a, silu(1)); point(a); emit(a, comb(1) + u0() + outp(1)[1])
    assert not a.st['l']
    a('s_branch L_w0')
    SLOW = a.l; a.l = la

def build(aslist=False):
    k = NAME + '_kernel'
    body = kernel()
    if Cfg.warm:
        import stubs
        body, st, end = stubs.add_stubs(body, '.set CODE_LINES, 17\n', ('L_main', 'L_odd', 'L_dft', 'L_s3', 'L_unit', 'L_finw', 'L_hot') + (('L_s9',) if Cfg.w3 == 2 else ()) + (('TW_*',) if Cfg.tws else ()), Cfg.wmode)
        print('stubs', {k: [hex(x) for x in v] for k, v in st.items()}, 'end', end, file=sys.stderr)
    hdr = f'; @launch kernel={k} grid=(256,1,1) block=(256,1,1) lds=163840\n' if aslist else '; @launch grid=(256,1,1) block=(256,1,1) lds=163840\n'
    s = '; generated by gen/v6.py\n' + hdr + '.amdgcn_target "amdgcn-amd-amdhsa--gfx950"\n.text\n.set CODE_LINES, 26\n'
    s += kstart(k) + body + 'L_codeend:\n'
    s += '.section .rodata,"a"\n' + kdesc(k, 512, 256) + tables()
    return s
if __name__ == '__main__':
    out = sys.argv[1] if len(sys.argv) > 1 else f'cdna_kernels/{NAME}.s'
    for x in sys.argv[2:]:
        if '=' in x:
            kx, vx = x.split('='); setattr(Cfg, kx, int(vx) if re.fullmatch(r'-?\d+', vx) and kx != 'sch' else vx)
    open(out, 'w').write(build('--list' in sys.argv))
```

```python
import sys, re
from common2 import *
M = 'v_mfma_f32_32x32x16_bf16'
VL16=0; VT1=1; VLANE=2; VT3=3; VA1=4; VB1=5; VA2=6; VB2=7
XF=8; ACC=[152,184]; TMP=216; HO=224; TA=240; VBI=246; VC0=247; VFL=248; VPO=250; VTB=252; VTT=254
HF=32; TW=176
SX,SW1,SW2,SWS,SWR,SWI,SOUT,SB,SDBG = 4,8,12,16,20,24,28,32,36
sWV,sI,sC,sB,sROLE,sNON = 40,41,42,43,44,45
sO1=46; sO2=55; sW2K=64; sHS=65; sPS=66; sFLG=67; sT=68; sT2=69; sGC1=70; sP=71
sRHO=39
sX0=96
R_ODD,R_DFT,R_SMID,R_UNIT,R_FIN,R_FINW,R_PATCH = 0,1,2,3,4,5,6
PF=3; NB=4
GC0 = -2.0*math.log2(math.e)*math.sqrt(2/math.pi); GC1 = GC0*0.044715
BIAS_LDS = 147456
B2_LDS = 163840 - 2048
class Cfg:
    stamps=False; st='1,2,3,4,5,6,7,8,9,10'; xa=3; lg=1; pm=340; f8=99; w3d=1; f2o=44; e2nd=22; blk=6; rfi=10; f6=54; p9=30; sch='-1x1'; ta=22; tws=1; twe=1; pre=2; wl='_13'; hd=0; nonorm=0; eo=1; hf=0; j1=1; tw3=0; nl=2; wsl=0; bf=0; fp0=7; be=1; ce=0; f9=0; nso=1; ct=1; xl=9; pts='25'; mw=1; cp=0; fs=1; fw=1; pd=18; ls=3; rf=1; w3b=0; ecl=1; ge=40; c5=24; pe=23; e8=6; nt=0; f5h=76; noclr=0; t1=5; t2=99; ne=9; c0=20; b2=1; pz1=0; pz2=4; sd=4; tw1=1; warm=1; wmode='execz'; clk=0; xe=1; fp=3; f7=60; gs=55; l9=46; l10=34; mg=0; tn=108; w2k=99; rots=1; np=6; te=0; pt='w2,b1,b2,wr,wi,dbg'; w3=1; xo=1; f16=1; gs0=1; e2=50; l2=0; t9=30; t10=8; pfg=44; ofl='sc1'; h8=44; f4=26; c4=20; f5=14; p8=60; fg=24; pg=52; cg=8; tb=4; normin=0; rx=8; rota=1; rotb=1; touch='x2,w,tab,code'; spin=100000; slp=8; slp2=2; rr=1; wt=1
def h2(x):
    u = struct.unpack('<H', struct.pack('<e', x))[0]; return u | u << 16
def S(b): return f's[{b}:{b+3}]'
def stamp(a, nm):
    if not Cfg.stamps: return
    L = ['0'] + Cfg.st.split(',') + ['11']
    nm = str(nm)
    if nm in L:
        i = L.index(nm) if nm != '11' else 11
        a(f'{"s_memtime" if Cfg.clk else "s_memrealtime"} s[{72+2*i}:{73+2*i}]')
def stamp_flush(a, n):
    if not Cfg.stamps: return
    a.vdrain(); stamp(a, n); n += 1
    a(f'''s_waitcnt lgkmcnt(0)
    s_mov_b32 s{SWS+2}, {STAMP_OFF + (1<<20)}
    v_mov_b32 v1, 0''')
    for i in range(n): a(f'v_writelane_b32 v1, s{72+2*i}, {i}')
    a(f'v_writelane_b32 v1, s53, 12\nv_writelane_b32 v1, s11, 13\nv_writelane_b32 v1, s{sP}, 14')
    a(f'''s_lshl_b32 s{sT}, s2, 3
    s_add_u32 s{sT}, s{sT}, s{sWV}
    s_lshl_b32 s{sT}, s{sT}, 6
    s_add_u32 s{sT}, s{sT}, {STAMP_OFF}
    v_lshlrev_b32 v3, 2, v{VLANE}
    s_mov_b64 exec, 0xffff
    buffer_store_dword v1, v3, {S(SWS)}, s{sT} offen
    s_mov_b64 exec, -1''')
def brole(a, bit, lab, ifset=True):
    a(f's_bitcmp1_b32 s{sROLE}, {bit}\ns_cbranch_scc{1 if ifset else 0} {lab}')

def V(s, c=1): return (c, lambda a: a(s))
def VM(s, tag=None): return (1, lambda a: a.vm(s, tag))
def LD(s, tag=None): return (1, lambda a: a.lds(s, tag))
def FN(f, c=1): return (c, f)
def SVM(pre, s, tag=None): return (1, lambda a: (a(pre), a.vm(s, tag)))
def emit(a, ops):
    for _, f in ops: f(a)

def sops(txt):
    L = [x.split(';')[0].strip() for x in txt.split('\n')]; L = [x for x in L if x]
    o = []; cur = []
    for i, x in enumerate(L):
        cur.append(x)
        nx = L[i+1] if i+1 < len(L) else ''
        if nx.startswith(('s_cselect', 's_addc', 's_subb', 'v_cndmask', 's_nop')) or x.startswith(('s_nop', 'v_cmp')): continue
        o.append(V('\n'.join(cur), len(cur))); cur = []
    return o
def mix(x, y):
    o = []; k = 0
    for i, e in enumerate(x):
        o.append(e)
        t = len(y)*(i+1)//len(x)
        while k < t: o.append(y[k]); k += 1
    return o
def gelu_ops(acc, job, nb=None, sd=0):
    ops = []; G = 4; held = []
    for g in range(0, 32, G):
        t = [TMP + (g//G % 2)*4 + i for i in range(G)]
        x = [acc + g + i for i in range(G)]
        if not Cfg.f16:
            for i in range(G): ops.append(V(f'v_mul_f32 v{t[i]}, v{x[i]}, v{x[i]}'))
            for i in range(G): ops.append(V(f'v_fma_f32 v{t[i]}, v{t[i]}, s{sGC1}, v{VC0}'))
            for i in range(G): ops.append(V(f'v_mul_f32 v{t[i]}, v{t[i]}, v{x[i]}'))
            for i in range(G): ops.append(V(f'v_exp_f32 v{t[i]}, v{t[i]}', 2))
            for i in range(G): ops.append(V(f'v_add_f32 v{t[i]}, 1.0, v{t[i]}'))
            for i in range(G): ops.append(V(f'v_rcp_f32 v{t[i]}, v{t[i]}', 2))
            for i in range(G): ops.append(V(f'v_mul_f32 v{t[i]}, v{t[i]}, v{x[i]}'))
        else:
            HI = 'dst_sel:WORD_1 dst_unused:UNUSED_PRESERVE src0_sel:WORD_1'
            t = [TMP + i for i in range(4)]; u = [TMP + 4, TMP + 5]; w = [TMP + 6, TMP + 7]
            for i in range(2): ops.append(V(f'v_cvt_pk_f16_f32 v{u[i]}, v{x[2*i]}, v{x[2*i+1]}'))
            for i in range(2): ops.append(V(f'v_pk_mul_f16 v{w[i]}, v{u[i]}, v{u[i]}'))
            for i in range(2): ops.append(V(f'v_pk_fma_f16 v{w[i]}, v{w[i]}, s{sGC1}, v{VC0}'))
            for i in range(2): ops.append(V(f'v_pk_mul_f16 v{u[i]}, v{w[i]}, v{u[i]}'))
            for i in range(2): ops.append(V(f'v_exp_f16 v{w[i]}, v{u[i]}', 2))
            for i in range(2): ops.append(V(f'v_exp_f16_sdwa v{w[i]}, v{u[i]} {HI}', 2))
            for i in range(2): ops.append(V(f'v_pk_add_f16 v{u[i]}, v{w[i]}, 1.0 op_sel_hi:[1,0]'))
            for i in range(2): ops.append(V(f'v_rcp_f16 v{t[2*i]}, v{u[i]}', 2))
            for i in range(2): ops.append(V(f'v_rcp_f16_sdwa v{t[2*i+1]}, v{u[i]} dst_sel:WORD_0 dst_unused:UNUSED_PAD src0_sel:WORD_1', 2))
            for i in (0, 2, 1, 3): ops.append(V(f'v_fma_mix_f32 v{t[i]}, v{x[i]}, v{t[i]}, 0 op_sel_hi:[0,1,0]'))
        if nb is not None: ops.append((2, lambda a, g=g: a.lds(f'ds_read_b128 {vr(acc+g)}, v{VBI} offset:{256*nb + 8*g}', 'bias')))
        for i in range(0, G, 2): ops.append(V(f'v_cvt_pk_bf16_f32 v{HO + (g+i)//2}, v{t[i]}, v{t[i+1]}'))
        for i in range(0, G, 2): ops.append(V(f'v_accvgpr_write_b32 a{HF + 16*job + (g+i)//2}, v{HO + (g+i)//2}'))
        if g % 8 == 4:
            q = g // 8
            if q == 0: ops.append(V(f's_add_u32 s{sT2}, s{sHS}, {4096*job}'))
            held.append(VM(f'buffer_store_dwordx4 {vr(HO+4*q)}, v{VL16}, {S(SWS)}, s{sT2} offen offset:{1024*q} sc1', ('h', job)))
        if held and g//4 >= sd: ops.append(held.pop(0))
    return ops
def part_ops(acc, lam):
    ops = []
    for q in range(4):
        if q % 2 == 0: ops.append(V(f's_add_u32 s{sT2}, s{sPS}, {16384*(2*lam + q//2)}' if lam != 9 else f's_add_u32 s{sT2}, s{sL9}, {16384*(q//2)}'))
        for i in range(4): ops.append(V(f'v_cvt_pk_bf16_f32 v{HO+4*q+i}, v{acc+8*q+2*i}, v{acc+8*q+2*i+1}'))
        ops.append(VM(f'buffer_store_dwordx4 {vr(HO+4*q)}, v{VL16}, {S(SWS)}, s{sT2} offen offset:{1024*(q%2)} sc1', ('p', lam)))
    return ops
def clear_ops(sreg, imms, tag, r=HO):
    if Cfg.noclr: return [V('s_nop 0')]
    ops = [V(f'v_mov_b32 v{r+i}, -1' if r > 0 else f'v_accvgpr_write_b32 a{-r+i}, -1') for i in range(4)]
    ops = [(0, f) for _, f in ops]
    for im in imms:
        for k in range(2): ops.append(SVM(f's_add_u32 s3, s{sreg}, {im}', f'buffer_store_dwordx4 {vr(r) if r > 0 else ar(-r)}, v{VL16}, {S(SWS)}, s3 offen offset:{1024*k} sc1', tag))
    return ops
def sent_check(a, tag, regs, t, reload_lines, probe=None, slp=None):
    lc = a.label('SC'); ls = a.label('SS'); lk = a.label('SK')
    a.vneed(tag)
    a(f'{lc}:')
    rs = []
    for i, r in enumerate(regs):
        if r[0] == 'a': a(f'v_accvgpr_read_b32 v{t+i}, {r}'); rs.append(f'v{t+i}')
        else: rs.append(r)
    a(f'v_max_u32 v{t}, {rs[0]}, {rs[1]}')
    for i in range(2, len(rs), 2): a(f'v_max3_u32 v{t}, v{t}, {rs[i]}, {rs[i+1]}')
    a(f'v_cmp_eq_u32 vcc, -1, v{t}\ns_nop 1\ns_cmp_lg_u64 vcc, 0\ns_cbranch_scc1 {ls}\n{lk}:')
    pr = []
    if probe:
        pr = [' ' + x for x in probe[0]] + [f' v_and_b32 v{t+1}, {probe[1]}, v{VLANE}', f' v_lshlrev_b32 v{t+1}, 10, v{t+1}', f' buffer_load_dword v{t}, v{t+1}, {S(SWS)}, s3 offen offset:1020 sc1',
              ' s_waitcnt vmcnt(0)', f' v_cmp_eq_u32 vcc, -1, v{t}', ' s_nop 1', ' s_cmp_lg_u64 vcc, 0', f' s_cbranch_scc1 {ls}']
    a.ool += [f'{ls}:', f' s_sub_u32 s{sP}, s{sP}, 1', f' s_cbranch_scc1 {ls}_x', f' s_sleep {slp or (Cfg.slp2 if probe else Cfg.slp)}'] + pr + [x if x.endswith(':') else ' ' + x for x in reload_lines] + [' s_waitcnt vmcnt(0)', f' s_branch {lc}',
              f'{ls}_x:', f' s_mov_b32 s{sP}, 0', f' s_branch {lk}']
def lines_of(ops):
    t = E(); emit(t, ops); return [x.strip() for x in t.l]
def norm_ops(u):
    if Cfg.nonorm: return [V(f'v_mov_b32 v{HO}, v{HO}')]*(24 if u >= 18 - Cfg.nl - 1 else 2)
    T = HO; r = XF + 8*u; ops = []
    for i in range(8): ops.append(V(f'v_dot2_f32_bf16 v{T+i}, v{r+i}, v{TMP+4}, v{TMP}'))
    for i in range(8): ops.append(V(f'v_dot2_f32_bf16 v{T+8+i}, v{r+i}, v{TMP+5}, v{TMP}'))
    for i in range(8): ops.append(V(f'v_cvt_pk_bf16_f32 v{r+i}, v{T+2*i}, v{T+2*i+1}'))
    return ops
def setflag(a, stage, *tags, off=None):
    a(f'v_mov_b32 v{VFL+1}, {stage}')
    a.vneed(*tags)
    a('s_mov_b64 exec, 1')
    a.vm(f'buffer_store_dwordx2 {vr(VFL,2)}, off, {S(SWS)}, s{sFLG if off is None else off} sc1')
    a('s_mov_b64 exec, -1')
def setflag2(a, stage, *tags):
    a(f'v_add_u32 v{VFL+1}, {stage-1}, v{VFL}')
    a(f's_add_u32 s3, s{sFLG}, {(stage-5)*16384*Cfg.fw if Cfg.fs else 0}')
    a.vneed(*tags)
    a('s_mov_b64 exec, 1')
    a.vm(f'buffer_store_dword v{VFL+1}, off, {S(SWS)}, s3 sc1')
    a('s_mov_b64 exec, -1')
def poll_ins(p, voff, soff): return f'buffer_load_dwordx2 {vr(p,2)}, v{voff}, {S(SWS)}, {soff} offen sc1' if voff is not None else f'buffer_load_dwordx2 {vr(p,2)}, off, {S(SWS)}, {soff} sc1'
def poll_test(a, p, need):
    a(f'''v_subrev_u32 v{p+1}, {need}, v{p+1}
    v_cmp_ne_u32 vcc, s{sNON}, v{p}
    v_cmp_lt_u32 s[{sX0+4}:{sX0+5}], 60, v{p+1}
    s_nop 1
    s_or_b64 vcc, vcc, s[{sX0+4}:{sX0+5}]''')
SPL = 0
def spoll_i(a): a(f's_buffer_load_dwordx2 s[{SPL}:{SPL+1}], {S(SWS)}, s34 glc'); a.smem = True
def spoll_c(need):
    def f(a):
        lc = a.label('QC'); lk = a.label('QK')
        a.drain()
        a(f"""s_sub_u32 s{SPL+1}, s{SPL+1}, {need}
        s_cmp_lt_u32 s{SPL+1}, 60
        s_cselect_b32 s{SPL}, s{SPL}, 0
        s_cmp_lg_u32 s{SPL}, s{sNON}
        s_cbranch_scc1 {lc}
        {lk}:""")
        t = E(); poll_test(t, VPO, need)
        a.ool += [f'{lc}:', ' ' + poll_ins(VPO, None, 's34'), ' s_waitcnt vmcnt(0)'] + t.l + [f' s_cbranch_scc0 {lk}', f' s_sub_u32 s{sP}, s{sP}, 1', f' s_cbranch_scc1 {lc}_x', f' s_sleep {Cfg.slp}', f' s_branch {lc}',
                  f'{lc}_x:', f' s_mov_b32 s{sP}, 0', f' s_branch {lk}']
    f.drains = True
    return f
def dodrain(a): a.drain()
dodrain.drains = True
def poll_check(a, tag, p, voff, soff, need):
    lc = a.label('PC'); ls = a.label('PS'); lk = a.label('PK')
    a.vneed(tag)
    a(f'{lc}:'); poll_test(a, p, need)
    a(f's_cbranch_scc1 {ls}\n{lk}:')
    a.ool += [f'{ls}:', f' s_sub_u32 s{sP}, s{sP}, 1', f' s_cbranch_scc1 {ls}_x', f' s_sleep {Cfg.slp}', ' ' + poll_ins(p, voff, soff), ' s_waitcnt vmcnt(0)', f' s_branch {lc}',
              f'{ls}_x:', f' s_mov_b32 s{sP}, 0', f' s_branch {lk}']

def slot(q): return (q % 18) * 8192
def rd_ops(kind, q, kk, n):
    fb = (n % NB) * 8; s = slot(q) + kk*2048
    if kind == 'dft':
        b = s // 49152; off = s % 49152
        return [(f'ds_read_b128 {ar(fb)}, v{VPO+b} offset:{off}', ('f', n)), (f'ds_read_b128 {ar(fb+4)}, v{VPO+b} offset:{off+1024}', ('f', n))]
    b = s // 49152; off = s % 49152; L = TA + 2*b; R = L + 1
    return [(f'ds_read_b64_tr_b16 {ar(fb,2)}, v{L} offset:{off}', ('f', n)), (f'ds_read_b64_tr_b16 {ar(fb+2,2)}, v{L} offset:{off+512}', ('f', n)),
            (f'ds_read_b64_tr_b16 {ar(fb+4,2)}, v{R} offset:{off}', ('f', n)), (f'ds_read_b64_tr_b16 {ar(fb+6,2)}, v{R} offset:{off+512}', ('f', n))]
def dma_buf(q, srd_, va, vb, sreg, imm, fl='', srd2=None):
    if Cfg.nso and imm <= 1024 and slot(q) >= imm:
        def f0(a):
            a(f's_add_u32 m0, s{sW2K}, {slot(q) - imm}')
            a.m0fix()
            a.vm(f'buffer_load_dwordx4 v{va}, {S(srd_)}, s{sreg} offen offset:{imm} {fl} lds', ('d', q))
        def f1(a): a.vm(f'buffer_load_dwordx4 v{vb}, {S(srd2 or srd_)}, s{sreg} offen offset:{1024+imm} {fl} lds', ('d', q))
        return [f0, f1]
    def f0(a):
        a(f's_add_u32 m0, s{sW2K}, {slot(q)}\ns_add_u32 s{sT}, s{sreg}, {imm}')
        a.vm(f'buffer_load_dwordx4 v{va}, {S(srd_)}, s{sT} offen {fl} lds', ('d', q))
    def f1(a): a.vm(f'buffer_load_dwordx4 v{vb}, {S(srd2 or srd_)}, s{sT} offen offset:1024 {fl} lds', ('d', q))
    return [f0, f1]
def dma_tab(q, imm=None, sreg=None):
    def f0(a):
        a(f's_add_u32 m0, s{sW2K}, {slot(q)}')
        if sreg is None: a(f's_mov_b32 s{sX0}, {imm}')
        else: a(f's_lshl_b32 s{sX0}, s{sreg}, 13\ns_add_u32 s{sX0}, s{sX0}, s{sPS}')
        a(f'v_lshl_add_u64 {vr(VTT,2)}, s[{sX0}:{sX0+1}], 0, {vr(VTB,2)}')
        a.vm(f'global_load_lds_dwordx4 {vr(VTT,2)}, off', ('d', q))
    def f1(a): a.vm(f'global_load_lds_dwordx4 {vr(VTT,2)}, off offset:1024', ('d', q))
    return [f0, f1]
def dma_alt(bit, ifset, ifclr, cond=None):
    def f0(a):
        l1 = a.label('DA'); l2 = a.label('DB')
        if not ifclr:
            brole(a, bit, l1, False); s0 = a.snap()
            for f in ifset: f(a)
            a(f'{l1}:'); a.merge(s0, a.snap()); return
        brole(a, bit, l1)
        s0 = a.snap()
        if ifclr:
            for f in ifclr: f(a)
        s1 = a.snap()
        if ifset:
            a(f's_branch {l2}\n{l1}:'); a.restore(s0)
            for f in ifset: f(a)
            a(f'{l2}:'); a.merge(s1, a.snap())
        else:
            a(f'{l1}:'); a.merge(s0, s1)
    return [f0, lambda a: None]
GORD = [1,2,3,4,0,5,6,7,8]; GE = [1,2,3,0,5,4,6,7,8]
class _EO:
    def __getitem__(self, i):
        L = [(6,0),(1,1),(7,0),(2,1),(3,1),(4,1),(0,1),(5,1),(6,1),(7,1),(8,1)]; L.insert(Cfg.e8, (8,0)); return L[i]
EORD = _EO()
def NT(b): return 'nt' if Cfg.nt & b else ''
def w1p(q): return dma_buf(q, SW1, VA1, VB1, sO1 + q % 9, 128*(q//9), NT(4))
def w2p(q, g, lam): return dma_buf(q, SW2, VA2, VB2, sO2 + g, 128*lam)
sSV, sFP, sL9 = 46, 54, 10
HOT = []
def plan(q, role=None):
    if q < 27 and role == 'N': return []
    if q < 9 and role == 'D': return dma_tab(q, sreg=sO2+q)
    if q < 45: return w1p(q)
    if q < 72:
        assert role
        if role == 'O':
            return w2p(q, GORD[(q-45)//2], 4 + 2*((q-45) % 2)) if q < 63 else w2p(q, GORD[q-63], 5)
        if q < 51: return w2p(q, GE[q-45], 0)
        if q < 54: return dma_tab(q, TABF_SZ + TABG_SZ + 8192*(q-51))
        if q < 57: return dma_buf(q, SWS, VL16, VL16, sSV, 8192*(q-54), 'sc1 ' + NT(1))
        if q < 60: return []
        return w2p(q, *EORD[q-60])
    if q < 90: return w2p(q, GORD[(q-72) % 9], 2 + (q-72)//9)
    k = q - 90
    if k < 3: return dma_tab(q, 8192*k)
    if k < 9:
        pp = dma_buf(q, SWS, VL16, VL16, sFP, 2048*(k-3), 'sc1')
        if role == 'P': return pp
        def f(a):
            l1 = a.label('DA'); l2 = a.label('DB')
            a(f's_cmp_lg_u32 s11, 0\ns_cbranch_scc1 {l1}')
            for g in pp: g(a)
            a(f'{l2}:')
            t = E(); t(f'{l1}:')
            for g in dma_tab(q, 24576 - 6144 + 2048*(k-3)): g(t)
            t(f's_branch {l2}'); HOT.extend(t.l)
        return [f]
    return dma_tab(q, 8192*k - 36864)

def bias_ops(acc, job): return [LD(f'ds_read_b128 {vr(acc+4*q)}, v{VBI} offset:{256*job + 32*q}', 'bias') for q in range(8)]
def bias_reads(a, acc, job):
    for q in range(8): a.lds(f'ds_read_b128 {vr(acc+4*q)}, v{VBI} offset:{256*job + 32*q}', 'bias')

def run(a, q0, npc, kind, mf, fills, nxt='tr', nextbias=None, norm=False, events=None, role=None, pause=None):
    events = events or {}
    N = 4*npc; n0 = 4*q0
    held = []
    dq = []
    fs = [[ops, s, e, 0, 0, sum(c for c, _ in ops)] for ops, s, e in fills]
    for i in range(N):
        n = n0 + i; q = q0 + i//4; kk = i % 4
        j = i + PF; qn = q0 + j//4
        k2 = kind if j < N else nxt
        r = rd_ops(k2, qn, j % 4, n + PF) if k2 else []
        fb = (n % NB) * 8
        if kk == 0:
            for qq in events.get(('dma0', q), []) + [q + 12] + events.get(('dma', q), []): dq += plan(qq, role)
        paused = pause and pause[0] <= i//4 < pause[0] + pause[1]
        for h in range(2):
            gap = 2*i + h
            if h == 0 and kk == 0: stamp(a, f'q{q}')
            stamp(a, f'g{q0}_{gap}')
            for f in events.get(('pre', gap), []): f(a)
            if h == 0: a.need(('f', n), *(['bias'] if i == 0 else []), *([('f', n+1)] if Cfg.w2k and i % 2 == 0 and q < Cfg.w2k and not a.smem else []))
            acc, op, zero = mf(i//4, kk, h)
            d = vr(acc, 16) if acc >= 0 else ar(-acc, 16); c = '0' if zero else d
            if kind == 'dft': a(f'{M} {d}, {op}, {ar(fb+4*h)}, {c}')
            else:             a(f'{M} {d}, {ar(fb+4*h)}, {op}, {c}')
            if h == 0 and j % 12 == 0 and k2 and (4*q0) % 12 == 0:
                a.vneed(('d', qn), ('d', qn+1), ('d', qn+2), *events.get(('bar', qn), [])); a('s_barrier')
            if h == 0 and j == N and nextbias is not None:
                assert all(f[3] == len(f[0]) for f in fs)
                bias_reads(a, *nextbias)
            m = len(r)//2
            dr = lambda g: Cfg.hd and any(getattr(f, 'drains', False) for f in events.get(g, []))
            held += r[h*m:(h+1)*m]
            if not (dr(gap) or dr(gap+1) or (Cfg.hd > 1 and dr(gap+2))):
                for ins, t in held: a.lds(ins, t)
                held = []
            if dq and not paused and ((h == 1 and (kk % 2 == 0 or len(dq) > 2)) or (len(dq) > N - i - 1)): dq.pop(0)(a)
            if norm and i//2 + 1 < 18:
                emit(a, norm_ops(i//2 + 1)[6*(gap % 4):6*(gap % 4)+6])
            for f in fs:
                if gap >= f[1]:
                    target = f[5] * min(1.0, (gap - f[1] + 1) / (f[2] - f[1]))
                    while f[3] < len(f[0]) and f[4] + f[0][f[3]][0]/2 <= target:
                        f[0][f[3]][1](a); f[4] += f[0][f[3]][0]; f[3] += 1
            for f in events.get(gap, []): f(a)
            if dr(gap):
                for ins, t in held: a.lds(ins, t)
                held = []
    assert all(f[3] == len(f[0]) for f in fs) and not dq
def only(bit, f):
    def g(a):
        l = a.label('ON'); brole(a, bit, l, False); s0 = a.snap()
        f(a); a(f'{l}:'); a.merge(s0, a.snap())
    return g
def masked(test, f):
    def g(a):
        a(test + '\ns_cselect_b64 exec, -1, 0'); s0 = a.snap()
        f(a); a('s_mov_b64 exec, -1'); a.merge(s0, a.snap())
    return g
def rolem(bit, f): return masked(f's_bitcmp1_b32 s{sROLE}, {bit}', f)
def rolem_ops(bit, ops, n): return [FN(rolem(bit, lambda a, x=ops[i:i+n]: emit(a, x))) for i in range(0, len(ops), n)]
def only_ops(bit, ops, n):
    return [FN(only(bit, lambda a, x=ops[i:i+n]: emit(a, x))) for i in range(0, len(ops), n)]
def first_reads(a, kind, q):
    for ks in range(PF):
        for ins, t in rd_ops(kind, q, ks, 4*q + ks): a.lds(ins, t)
def interleave(a, mf, ops, start=0):
    n = len(mf) - start; k = 0
    for i, x in enumerate(mf):
        a(x)
        if i >= start:
            t = len(ops) * (i - start + 1) // n
            while k < t: ops[k][1](a); k += 1

def twiddle_ops(dst, t, sym, sb, scale=None):
    o = [f'v_and_b32 v{t}, 31, v{VLANE}', f'v_lshrrev_b32 v{t+1}, 5, v{VLANE}']
    if sym == 'fwd':
        o += [f'v_lshlrev_b32 v{t+1}, 8, v{t+1}', f'v_add_u32 v{t+1}, s{sb}, v{t+1}', f'v_mul_u32_u24 v{t+1}, v{t+1}, v{t}', f'v_lshlrev_b32 v{t}, 6, v{t}']
        mult = lambda tt, e: 16*tt + (e & 3) + 8*(e >> 2)
    else:
        o += [f'v_lshlrev_b32 v{t}, 6, v{t}', f'v_add_u32 v{t}, s{sb}, v{t}', f'v_lshlrev_b32 v{t+1}, 3, v{t+1}', f'v_mul_u32_u24 v{t+1}, v{t+1}, v{t}']
        mult = lambda tt, e: 16*tt + e
    for tt in range(2):
        for e in range(0, 8, 2):
            for i in range(2): o.append(f'v_mad_u32_u24 v{t+2+i}, v{t}, {mult(tt, e+i)}, v{t+1}')
            for i in range(2): o.append(f'v_and_b32 v{t+2+i}, 0x7ff, v{t+2+i}')
            for i in range(2): o.append(f'v_cvt_f32_u32 v{t+2+i}, v{t+2+i}')
            for i in range(2): o.append(f'v_mul_f32 v{t+2+i}, {f2u(1/2048):#x}, v{t+2+i}')
            for i in range(2): o.append(f'v_cos_f32 v{t+4+i}, v{t+2+i}')
            for i in range(2): o.append(f'v_sin_f32 v{t+2+i}, v{t+2+i}')
            if scale:
                for i in (2,3,0,1): o.append(f'v_mul_f32 v{t+2+i}, {f2u(scale):#x}, v{t+2+i}')
            d = 4*tt + e//2
            o += [f'v_cvt_pk_bf16_f32 v{t+4}, v{t+4}, v{t+5}', f'v_cvt_pk_bf16_f32 v{t+2}, v{t+2}, v{t+3}', f'v_accvgpr_write_b32 a{dst+d}, v{t+4}',
                  f'v_xor_b32 v{t+3}, 0x80008000, v{t+2}', f'v_accvgpr_write_b32 a{dst+8+d}, v{t+2}', f'v_accvgpr_write_b32 a{dst+16+d}, v{t+3}']
    return [V(x) for x in o]

def prologue(a):
    rx = Cfg.rx; cx = 32//rx; nxc = 16//cx
    a(f"""s_cmpk_ge_u32 s2, 256
    s_cbranch_scc1 L_end
    s_load_dwordx16 s[44:59], s[0:1], 0
    s_load_dwordx4 s[60:63], s[0:1], 64
    s_load_dwordx2 s[64:65], s[0:1], 80
    s_memrealtime s[66:67]""")
    stamp(a, 0)
    a(f"""s_getpc_b64 s[100:101]
    L_pcref:
    s_lshr_b32 s97, s2, 3
    s_mul_i32 s97, s97, CODE_LINES*128
    v_lshlrev_b32 v{VPO}, 7, v0
    v_add_u32 v{VPO}, s97, v{VPO}
    v_min_u32 v{VPO}, L_codeend-L_pcref-4, v{VPO}
    v_mov_b32 v{VPO+1}, 0
    v_lshl_add_u64 {vr(VPO,2)}, s[100:101], 0, {vr(VPO,2)}
    v_cmp_gt_u32 vcc, CODE_LINES, v0
    s_and_saveexec_b64 s[98:99], vcc
    s_cbranch_execz L_noct
    global_load_dword a255, {vr(VPO,2)}, off
    L_noct:
    s_mov_b64 exec, -1
    s_and_b32 s96, s2, 7
    s_lshr_b32 s97, s2, 3
    s_and_b32 s{sC}, s96, {nxc-1}
    s_mul_i32 s{sC}, s{sC}, {cx}
    s_and_b32 s98, s97, {cx-1}
    s_add_u32 s{sC}, s{sC}, s98
    s_lshr_b32 s{sI}, s96, {nxc.bit_length()-1}
    s_mul_i32 s{sI}, s{sI}, {rx}
    s_lshr_b32 s98, s97, {cx.bit_length()-1}
    s_add_u32 s{sI}, s{sI}, s98
    v_lshrrev_b32 v1, 6, v0
    v_and_b32 v{VLANE}, 63, v0
    v_mov_b32 v{VTT}, v0
    v_readfirstlane_b32 s{sWV}, v1
    v_lshlrev_b32 v{VL16}, 4, v{VLANE}
    v_lshrrev_b32 v1, 3, v{VLANE}
    v_and_b32 v3, 7, v{VLANE}
    v_lshrrev_b32 v4, 1, v1
    v_xor_b32 v3, v3, v4
    s_mov_b32 s96, 73728
    v_mul_lo_u32 v1, v1, s96
    v_lshl_add_u32 v144, v3, 4, v1
    v_xor_b32 v145, 64, v144
    v_add_u32 v145, {8*73728-1024}, v145
    v_add_u32 v146, {16*73728}, v144
    v_add_u32 v147, {16*73728}, v145
    s_lshl_b32 s{sB}, s{sI}, 2
    s_add_u32 s{sB}, s{sB}, s{sWV}
    s_mul_i32 s96, s{sI}, {Cfg.rota}
    s_lshr_b32 s97, s{sC}, {Cfg.rots}
    s_mul_i32 s97, s97, {Cfg.rotb}
    s_add_u32 s96, s96, s97
    s_mul_i32 s97, s96, 7282
    s_lshr_b32 s97, s97, 16
    s_mul_i32 s97, s97, 9
    s_sub_u32 s96, s96, s97         ; rot
    s_mul_i32 s3, s{sB}, 1152
    s_lshl_b32 s99, s{sWV}, 11
    s_getpc_b64 s[100:101]
    s_add_u32 s100, s100, tabF@rel32@lo+4
    s_addc_u32 s101, s101, tabF@rel32@hi+12
    s_mov_b32 s{SX+2}, {2048*1152}
    s_mov_b32 s{SX+3}, 0x20000
    s_lshl_b32 s{sT}, s96, 7
    s_add_u32 s{sT}, s{sT}, s3
    s_mov_b32 m0, s99""")
    XA = HO
    a(f'''v_bfe_u32 v1, v{VLANE}, 3, 2            ; r
    v_lshrrev_b32 v3, 5, v{VLANE}           ; rho
    v_and_b32 v{VB1}, 2, v1
    v_lshlrev_b32 v{VB1}, 1, v{VB1}
    v_and_b32 v{VB2}, 7, v{VLANE}
    v_xor_b32 v{VB2}, v{VB2}, v{VB1}
    v_lshlrev_b32 v{VB2}, 4, v{VB2}
    v_lshl_add_u32 v1, v3, 3, v1            ; 8rho+r
    s_lshr_b32 s70, s{sWV}, 1
    s_lshl_b32 s70, s70, 5
    s_and_b32 s71, s{sWV}, 1
    s_add_u32 s70, s70, s71
    v_lshlrev_b32 v3, 1, v1
    v_add_u32 v3, s70, v3
    v_mul_u32_u24 v3, 9216, v3
    v_add_u32 v{VA1}, v3, v{VB2}
    v_add_u32 v{VB1}, {8*9216-1024}, v{VA1}
    s_lshl_b32 s70, s{sWV}, 4
    v_add_u32 v1, s70, v1
    v_mul_u32_u24 v1, 1152, v1
    v_add_u32 v{VA2}, v1, v{VB2}
    v_add_u32 v{VB2}, {4*1152-1024}, v{VA2}''')
    a(f'''v_lshrrev_b32 v1, 5, v{VLANE}
    v_lshlrev_b32 v{VBI}, 4, v1
    v_add_u32 v{VBI}, {BIAS_LDS}, v{VBI}
    v_bfe_u32 v3, v{VLANE}, 2, 2
    v_lshl_add_u32 v1, v1, 3, v3
    v_lshlrev_b32 v1, 7, v1
    v_and_b32 v3, 2, v3
    v_lshl_add_u32 v1, v3, 5, v1
    v_bfe_u32 v3, v{VLANE}, 4, 1
    v_lshl_add_u32 v1, v3, 5, v1
    v_and_b32 v3, 3, v{VLANE}
    v_lshl_add_u32 v{TA}, v3, 3, v1
    v_xor_b32 v{TA+1}, 64, v{TA}
    v_add_u32 v{TA+2}, 49152, v{TA}
    v_add_u32 v{TA+3}, 49152, v{TA+1}
    v_add_u32 v{TA+4}, 98304, v{TA}
    v_add_u32 v{TA+5}, 98304, v{TA+1}''')
    a(f'''v_and_b32 v1, 15, v{VLANE}
    v_lshlrev_b32 v1, 7, v1
    v_bfe_u32 v3, v{VLANE}, 4, 1
    v_lshl_add_u32 v1, v3, 13, v1
    v_add_u32 v1, s99, v1
    v_lshrrev_b32 v3, 5, v{VLANE}
    v_bfe_u32 v{XA}, v{VLANE}, 1, 3
    v_xor_b32 v3, v3, v{XA}
    v_lshl_add_u32 v{XA}, v3, 4, v1
    v_xor_b32 v{XA+1}, 32, v{XA}
    v_xor_b32 v{XA+2}, 64, v{XA}
    v_xor_b32 v{XA+3}, 96, v{XA}
    s_mov_b32 s{sT2}, 0x3f803f80''')
    for i in range(8): a(f'v_mov_b32 v{TMP+i}, 0')
    if Cfg.pre >= 2:
        t = E(); xearly_addr(t); a('\n'.join(t.l).replace('s96', 's97').replace('s98', 's70').replace('s99', 's71'))
    stamp(a, 'k0')
    a(f"""s_waitcnt lgkmcnt(0)
    s_mov_b32 s{SX}, s44
    s_and_b32 s{SX+1}, s45, 0xffff""")
    stamp(a, 'ka')
    if Cfg.wt:
        a(f'''s_lshr_b32 s97, s{sC}, 1
        s_add_u32 s98, s97, s{sI}
        s_and_b32 s98, s98, 7
        s_bitcmp1_b32 s{sC}, 0
        s_cselect_b32 s98, s98, 0
        s_cmp_lt_u32 s98, 5
        s_cbranch_scc1 L_nowt
        s_sub_u32 s98, s98, 5
        s_lshl_b32 s70, s98, 6
        s_add_u32 s70, s70, s{sB}
        s_lshl_b32 s98, s98, 2
        s_add_u32 s98, s98, s{sWV}
        s_mul_i32 s98, s98, {48*9216}
        s_mul_i32 s97, s97, 1152
        s_add_u32 s98, s98, s97
        v_mul_u32_u24 v3, 9216, v{VLANE}
        v_add_u32 v3, s98, v3
        s_mul_i32 s70, s70, {15*128}
        v_lshlrev_b32 v{VPO}, 7, v{VLANE}
        v_add_u32 v{VPO}, s70, v{VPO}
        v_mov_b32 v{VPO+1}, 0
        v_lshl_add_u64 {vr(VPO,2)}, s[100:101], 0, {vr(VPO,2)}
        v_lshlrev_b32 v1, 21, v{VLANE}
        s_bfm_b64 exec, 48, 0
        global_load_dword a255, v3, s[52:53]
        s_bfm_b64 exec, 15, 0
        global_load_dword a255, {vr(VPO,2)}, off
        s_mov_b64 exec, 7
        global_load_dword a255, v1, s[56:57]
        s_mov_b64 exec, 1''')
        for r in (54, 58, 46, 48, 62): a(f'global_load_dword a255, v1, s[{r}:{r+1}] offset:128')
        a('s_mov_b64 exec, -1\nL_nowt:')
    for o in range(4):
        if o == 2: a('s_add_u32 m0, s99, 8192\ns_nop 0')
        a.vm(f'buffer_load_dwordx4 v{144+o}, {S(SX)}, s{sT} offen offset:{1024*(o%2)} lds', ('x', 0))
    a(f's_add_u32 s97, s96, 1\ns_cmp_eq_u32 s97, 9\ns_cselect_b32 s97, 0, s97\ns_lshl_b32 s{sT}, s97, 7\ns_add_u32 s{sT}, s{sT}, s3')
    for o in range(4):
        if o % 2 == 0: a(f's_add_u32 m0, s99, {16384 + 8192*(o//2)}\ns_nop 0')
        a.vm(f'buffer_load_dwordx4 v{144+o}, {S(SX)}, s{sT} offen offset:{1024*(o%2)} lds', ('x', 1))
    srd(a, SDBG, 62, 256); srd(a, SWS, 64, WS_SZ)
    srd(a, SWR, 46, 2048*578); srd(a, SWI, 48, 2048*578); srd(a, SW1, 52, 576*9216); srd(a, SB, 54, 9216)
    srd(a, SW2, 56, 4608*1152); srd(a, SOUT, 60, 2048*1152)
    a(f's_mov_b64 s[0:1], s[58:59]\ns_mov_b32 s{sW2K}, s99')
    XV = 144
    def xline(L):
        a(f's_lshl_b32 s{sT}, s{sO2+L}, 7\ns_add_u32 s{sT}, s{sT}, s3')
        for o in range(4):
            if o % 2 == 0: a(f's_add_u32 m0, s{sW2K}, {16384*L + 8192*(o//2)}\ns_nop 0')
            a.vm(f'buffer_load_dwordx4 v{XV+o}, {S(SX)}, s{sT} offen offset:{1024*(o%2)} lds', ('x', L))
    for L in range(9):
        a(f's_mov_b32 s{sO2+L}, s96')
        if 1 < L < Cfg.xa: xline(L)
        if L < 8: a('s_add_u32 s96, s96, 1\ns_cmp_eq_u32 s96, 9\ns_cselect_b32 s96, 0, s96')
    stamp(a, 'xi')
    nx = [Cfg.xa, 0]
    def xnext():
        if nx[1] < Cfg.xe: xline(nx[0]); nx[0] += 1; nx[1] += 1
    a(f'''s_or_b32 s66, s66, 1
    s_add_u32 s97, s2, s{sWV}
    s_cmp_lg_u32 s97, 0
    s_cbranch_scc1 L_nonon
    v_mov_b32 v1, s66
    s_mov_b64 exec, 1
    buffer_store_dword v1, off, {S(SDBG)}, 0 sc1
    s_mov_b64 exec, -1
    L_nonon:
    s_lshr_b32 s96, s{sC}, 1            ; p
    s_mul_i32 s{sNON}, s{sI}, {Cfg.rr}
    s_add_u32 s{sNON}, s{sNON}, s96
    s_and_b32 s{sNON}, s{sNON}, 7       ; rho
    s_and_b32 s{sROLE}, s{sC}, 1
    s_cmp_lt_u32 s{sNON}, 5
    s_cselect_b32 s97, s{sROLE}, 0
    s_lshl_b32 s97, s97, {R_DFT}
    s_xor_b32 s98, s{sROLE}, 1
    s_cmp_lt_u32 s{sNON}, 6
    s_cselect_b32 s98, s98, 0
    s_cmp_lt_u32 s{sWV}, 3
    s_cselect_b32 s99, {(1<<R_SMID)|(1<<R_UNIT)}, {1<<R_SMID}
    s_mul_i32 s98, s98, s99
    s_cselect_b32 s99, {(1<<R_FIN)|(1<<R_FINW)}, {1<<R_FIN}
    s_or_b32 s97, s97, s98
    s_and_b32 s98, s{sC}, 3
    s_cmp_lg_u32 s98, 2
    s_cselect_b32 s99, s99, 0
    s_or_b32 s97, s97, s99
    s_lshl_b32 s98, s{sROLE}, 8
    s_or_b32 s{sROLE}, s{sROLE}, s97
    s_lshl_b32 s97, s{sNON}, 8
    s_or_b32 s{sROLE}, s{sROLE}, s97
    s_mul_i32 s97, s96, 576
    s_add_u32 s97, s97, s98                ; f_base
    v_add_u32 v1, s97, v{VTT}
    v_lshlrev_b32 v1, 1, v1''')
    a(f'v_mov_b32 v{HO+15}, v1\nv_lshlrev_b32 v{HO+11}, 2, v{VTT}')
    if not Cfg.xo: xnext()
    def bloads():
        a.vm(f'buffer_load_ushort v{ACC[1]+12}, v{HO+15}, {S(SB)}, 0 offen', 'b1')
        a.vm(f'buffer_load_ushort v{ACC[1]+13}, v{HO+15}, {S(SB)}, 0 offen offset:512', 'b1')
        a(f's_mov_b32 s{SB}, s0\ns_and_b32 s{SB+1}, s1, 0xffff\ns_mov_b32 s{SB+2}, 1152\ns_lshl_b32 s98, s{sWV}, 8\ns_add_u32 m0, s98, {B2_LDS}\ns_nop 0')
        a.vm(f'buffer_load_dword v{HO+11}, {S(SB)}, 0 offen lds', 'b1')
        a.vm(f'buffer_load_dword v{HO+11}, {S(SB)}, 0 offen offset:1024 lds', 'b1')
        a(f's_mov_b32 s35, s{sNON}')
    a(f'''v_lshlrev_b32 v{ACC[1]+14}, 2, v{VTT}
    v_add_u32 v{ACC[1]+14}, {BIAS_LDS}, v{ACC[1]+14}
    s_mul_i32 s{sHS}, s{sB}, 288
    s_lshr_b32 s98, s97, 4
    s_add_u32 s{sHS}, s{sHS}, s98
    s_lshl_b32 s{sHS}, s{sHS}, 10
    s_lshl_b32 s97, s97, 1''')
    for g in range(9): a(f's_mul_i32 s{sO1+g}, s{sO2+g}, {64*9216}\ns_add_u32 s{sO1+g}, s{sO1+g}, s97')
    a(f's_mul_i32 s{sPS}, s{sNON}, 73728')
    a(f'''v_add_u32 v{VTB}, s{sW2K}, v{VL16}
    v_mov_b32 v{VTB+1}, 0
    v_lshl_add_u64 {vr(VTB,2)}, s[100:101], 0, {vr(VTB,2)}
    s_mov_b32 s{sX0+1}, 0
    s_lshl_b32 s{sFLG}, s{sB}, 4
    s_add_u32 s{sFLG}, s{sFLG}, s{sC}
    s_lshl_b32 s{sFLG}, s{sFLG}, 7
    s_add_u32 s{sFLG}, s{sFLG}, {FL_OFF}
    s_mov_b32 s{sP}, {Cfg.spin}
    s_mov_b32 s{sGC1}, {(h2(GC1) if Cfg.f16 else f2u(GC1)):#x}
    v_mov_b32 v{VC0}, {(h2(GC0) if Cfg.f16 else f2u(GC0)):#x}
    s_nop 0''')
    if not Cfg.xo: xnext()
    if not Cfg.xo: xnext()
    XA = HO
    smid_ids(a)
    a(f'''s_add_u32 s98, s96, s{sWV}
    s_cmp_eq_u32 s98, 4
    s_cselect_b32 s{sNON}, {1<<R_PATCH}, 0
    s_bitcmp1_b32 s{sROLE}, {R_UNIT}
    s_cselect_b32 s{sNON}, s{sNON}, 0
    s_or_b32 s{sROLE}, s{sROLE}, s{sNON}
    s_cmp_lt_u32 s98, 5
    s_cselect_b32 s{sNON}, 2, 0
    s_lshl_b32 s98, s98, 6
    s_add_u32 s{sNON}, s{sNON}, s98
    s_mul_i32 s99, s99, 578
    s_add_u32 s{sNON}, s{sNON}, s99
    v_lshrrev_b32 v3, 2, v{VLANE}
    v_mul_u32_u24 v3, 18496, v3
    v_and_b32 v1, 3, v{VLANE}
    v_lshl_add_u32 v3, v1, 4, v3''')
    a(f'''s_lshr_b32 s98, s2, 3
    s_lshl_b32 s98, s98, 2
    s_add_u32 s98, s98, s{sWV}
    s_lshr_b32 s99, s98, 1
    s_mul_i32 s99, s99, {9*9216}
    s_and_b32 s98, s98, 1
    s_mul_i32 s98, s98, 1152
    s_add_u32 s99, s99, s98
    s_and_b32 s98, s{sC}, {16-cx}
    s_mul_i32 s98, s98, 576
    s_add_u32 s99, s99, s98
    v_mul_u32_u24 v1, 43, v{VLANE}
    v_lshrrev_b32 v1, 8, v1
    v_mul_u32_u24 v{VPO}, 6, v1
    v_sub_u32 v{VPO}, v{VLANE}, v{VPO}
    v_add_u32 v{VPO+1}, 1, v{VPO}
    v_lshrrev_b32 v{VPO+1}, 2, v{VPO+1}
    v_add3_u32 v{VPO}, v{VPO}, v{VPO+1}, 2
    v_mul_u32_u24 v1, 9216, v1
    v_lshl_add_u32 v1, v{VPO}, 7, v1
    v_add_u32 v{VPO}, s99, v1''')
    if Cfg.pre < 2: xearly_addr(a)
    def stats(L):
        for q in range(4):
            a.need(('x', 4*L+q))
            for i in range(4):
                r = XF + 16*L + 4*q + i
                a(f'v_dot2c_f32_bf16 v{TMP+i}, s{sT2}, v{r}\nv_dot2c_f32_bf16 v{TMP+4+i}, v{r}, v{r}')
    def first_piece(q):
        if q < 9: return dma_alt(R_ODD, dma_alt(R_DFT, dma_tab(q, sreg=sO2+q), None), w1p(q))
        return w1p(q)
    if Cfg.twe: only(R_DFT, lambda a: emit(a, twiddle_ops(TW, ACC[0]+8, 'fwd', sB)))(a)
    stamp(a, 'w0')
    if Cfg.warm:
        brole(a, R_ODD, 'L_wo')
        a('; WARM 1\ns_branch L_main\nL_wo:\n; WARM 2')
    a('s_branch L_main\n.p2align 12\nL_main:')
    npc0 = 0
    if Cfg.xo:
        while nx[1] < Cfg.xe: xnext()
    for L in range(10):
        if L < 9:
            stamp(a, f'xa{L}')
            a.vneed(('x', L))
            stamp(a, f'xb{L}')
            if L in (4, 8):
                for q in range(4): a(f'v_add_u32 v{XA+q}, 0x10000, v{XA+q}')
            for q in range(4): a.lds(f'ds_read_b128 {vr(XF+16*L+4*q)}, v{XA+q} offset:{16384*(L%4)}', ('x', 4*L+q))
        if L == 9: stamp(a, 1)
        if nx[0] < 9:
            xline(nx[0]); nx[0] += 1
            if nx[0] == 9: bloads()
        elif L >= Cfg.fp0 and npc0 < 2*Cfg.fp:
            qs = (npc0, npc0+1)
            dma_alt(R_ODD, dma_alt(R_DFT, [f for q in qs for f in dma_tab(q, sreg=sO2+q)], None), [f for q in qs for f in w1p(q)])[0](a)
            npc0 += 2
        if L == Cfg.xl: only(R_FINW, xearly)(a)
        if L: stats(L-1)
        if Cfg.warm and str(L) in Cfg.wl:
            l1 = a.label('WA'); l2 = a.label('WB'); brole(a, R_ODD, l1)
            a(f'; WARM 1\ns_branch {l2}\n{l1}:\n; WARM 2\n{l2}:')
    rest = [FN(f) for q in range(npc0, Cfg.np) for f in first_piece(q)]
    rest += [VM(f'buffer_load_dword v{VFL}, off, {S(SDBG)}, 0 sc1', 'non')]
    T = TMP
    a(f'''s_nop 2
    v_add_f32 v{T}, v{T}, v{T+1}
    v_add_f32 v{T+2}, v{T+2}, v{T+3}
    v_add_f32 v{T+4}, v{T+4}, v{T+5}
    v_add_f32 v{T+6}, v{T+6}, v{T+7}
    v_add_f32 v{T}, v{T}, v{T+2}
    v_add_f32 v{T+4}, v{T+4}, v{T+6}
    v_mov_b32 v{T+1}, v{T}
    v_mov_b32 v{T+5}, v{T+4}
    s_nop 1
    v_permlane32_swap_b32 v{T}, v{T+1}
    v_permlane32_swap_b32 v{T+4}, v{T+5}
    s_nop 0
    v_add_f32 v{T}, v{T}, v{T+1}
    v_add_f32 v{T+4}, v{T+4}, v{T+5}
    v_mul_f32 v{T}, {f2u(1/576):#x}, v{T}
    v_mul_f32 v{T+4}, {f2u(1/576):#x}, v{T+4}
    v_fma_f32 v{T+4}, -v{T}, v{T}, v{T+4}
    v_max_f32 v{T+4}, 0, v{T+4}
    v_cvt_pk_bf16_f32 v{T}, v{T}, v{T+4}
    v_and_b32 v{T+4}, 0xffff0000, v{T}
    v_lshlrev_b32 v{T}, 16, v{T}
    v_add_f32 v{T+4}, {f2u(1e-5):#x}, v{T+4}
    v_cvt_pk_bf16_f32 v{T+4}, v{T+4}, v{T+4}
    v_and_b32 v{T+4}, 0xffff0000, v{T+4}
    v_sqrt_f32 v{T+4}, v{T+4}
    s_nop 0
    v_cvt_pk_bf16_f32 v{T+4}, v{T+4}, v{T+4}
    v_and_b32 v{T+4}, 0xffff0000, v{T+4}
    v_rcp_f32 v{T+4}, v{T+4}
    s_nop 0
    v_cvt_pk_bf16_f32 v{T+4}, v{T+4}, v{T+4}
    v_and_b32 v{T+5}, 0xffff0000, v{T+4}
    v_lshrrev_b32 v{T+4}, 16, v{T+4}
    v_mul_f32 v{T}, v{T}, v{T+5}
    v_sub_f32 v{T}, 0, v{T}''')
    if Cfg.tn < 216:
        tall = w2touch(0, Cfg.tn*24, -(-(5184 - Cfg.tn*24)//(64 if Cfg.be else 128)), Cfg.be)
        rest.append(FN(tall))
    def w1all(a):
        if Cfg.j1:
            a(f'v_subrev_u32 v{VPO+1}, 128, v{VPO}\ns_mov_b32 exec_lo, 0x49249249\ns_mov_b32 exec_hi, 0x92492')
            a.vm(f'buffer_load_dword a255, v{VPO+1}, {S(SW1)}, 0 offen')
        a('s_bfm_b64 exec, 54, 0')
        a.vm(f'buffer_load_dword a255, v{VPO}, {S(SW1)}, 0 offen')
        a('s_mov_b64 exec, -1')
    if Cfg.tw1: rest.insert(len(rest) - (1 if Cfg.tn < 216 else 0), FN(w1all))
    def wall(a):
        if Cfg.be:
            a(f'''s_lshr_b32 s69, s2, 4
            s_lshl_b32 s69, s69, 3
            s_and_b32 s3, s2, 7
            s_add_u32 s69, s69, s3
            s_lshl_b32 s69, s69, 2
            s_add_u32 s69, s69, s{sWV}
            s_min_u32 s69, s69, 486
            s_mul_i32 s69, s69, {19*128}
            v_lshlrev_b32 v{VTT}, 7, v{VLANE}
            s_bitcmp1_b32 s{sWV}, 0
            s_mov_b64 exec, 0x7ffff''')
            a(f'buffer_load_dword a255, v{VTT}, {S(SWR)}, s69 offen')
        else:
            a(f'''s_lshl_b32 s69, s2, 1
            s_lshr_b32 s3, s{sWV}, 1
            s_add_u32 s69, s69, s3
            s_min_u32 s69, s69, 486
            s_mul_i32 s69, s69, {19*128}
            v_lshlrev_b32 v{VTT}, 7, v{VLANE}
            s_bitcmp1_b32 s{sWV}, 0
            s_cselect_b64 exec, 0x7ffff, 0''')
            a(f'buffer_load_dword a255, v{VTT}, {S(SWR)}, s69 offen')
            a('s_cselect_b64 exec, 0, 0x7ffff')
        a.vm(f'buffer_load_dword a255, v{VTT}, {S(SWI)}, s69 offen')
        a('s_mov_b64 exec, -1')
    rest.insert(len(rest) - (1 if Cfg.tn < 216 else 0), FN(wall))
    if Cfg.normin:
        emit(a, rest); emit(a, norm_ops(0))
    else:
        stamp(a, 'n0')
        a('.p2align 3')
        rest = [FN(lambda a, f=f: (f(a), a('.p2align 3'))) for _, f in rest]
        nt = 1 + (1 if Cfg.tn < 216 else 0) + (1 if Cfg.tw1 else 0)
        tch = rest[-nt:]; rest = rest[:-nt]
        global BATCH2
        BATCH2 = []
        if Cfg.b2: BATCH2 = [wall] + ([tall] if Cfg.tn < 216 else []); tch = tch[:1]
        global B2PRE, B2FIRE
        t = E(); tall(t); k = [x.strip().startswith('s_bfm') for x in t.l].index(True)
        fix = lambda L: '\n'.join(L).replace('s3,', 's0,').replace('s3 ', 's0 ').replace('s96', 's1')
        B2PRE = sops(fix(t.l[:k])); f1 = fix(t.l[k:])
        t = E(); wall(t); k = [x.strip().startswith('s_bitcmp') for x in t.l].index(True)
        B2PRE += sops('\n'.join(t.l[:k])); f2 = '\n'.join(t.l[k:])
        B2FIRE = [lambda a: (a(f2), a.vm('s_nop 0'), a(f1), a.vm('s_nop 0'))]
        N = [o for u in range(18) for o in norm_ops(u)]
        k1 = len(N)*Cfg.t1//100; k2 = len(N)*Cfg.t2//100; ne = 2*Cfg.ne
        global NLAST
        NLAST = [V('.p2align 3')] + N[len(N)-24*Cfg.nl:]; N = N[:len(N)-24*Cfg.nl]
        emit(a, mix(N[:k1], rest[:ne] + tch) + N[k1:-24])
        stamp(a, 'nb')
        a.vneed('b1')
        a(f'v_lshlrev_b32 v{ACC[1]+12}, 16, v{ACC[1]+12}\nv_lshlrev_b32 v{ACC[1]+13}, 16, v{ACC[1]+13}')
        a.lds(f'ds_write_b32 v{ACC[1]+14}, v{ACC[1]+12}', 'bw'); a.lds(f'ds_write_b32 v{ACC[1]+14}, v{ACC[1]+13} offset:1024', 'bw')
        a('.p2align 3'); emit(a, N[-24:])
def late_setup():
    a = E()
    a(f'''s_lshr_b32 s96, s{sC}, 1
    s_and_b32 s98, s{sC}, 1
    s_mul_i32 s{sO2}, s96, {576*1152}
    s_lshl_b32 s99, s98, 8
    s_add_u32 s{sO2}, s{sO2}, s99
    s_mul_i32 s99, s98, {256*1152}''')
    for g in range(1, 9):
        a(f's_add_u32 s{sO2+g}, s{sO2}, {64*1152*g}\ns_{"add" if g < 5 else "sub"}_u32 s{sO2+g}, s{sO2+g}, s99')
    a(f'''s_mul_i32 s{sPS}, s{sB}, 18
    s_lshl_b32 s98, s98, 2
    s_add_u32 s{sPS}, s{sPS}, s98
    s_lshl_b32 s{sPS}, s{sPS}, 3
    s_add_u32 s{sPS}, s{sPS}, s96
    s_lshl_b32 s{sPS}, s{sPS}, 11
    s_add_u32 s{sPS}, s{sPS}, {PART_OFF}
    s_and_b32 s98, s{sC}, 1
    s_mul_i32 s32, s{sB}, 288
    s_mul_i32 s99, s96, 36
    s_add_u32 s32, s32, s99
    s_lshl_b32 s32, s32, 10
    s_lshl_b32 s99, s98, 14
    s_sub_u32 s33, s32, s99
    s_xor_b32 s34, s{sFLG}, 128''')
    return sops('\n'.join(a.l))
def w2touch(other, first, per, sub=0):
    def f(a):
        a(f"""s_lshr_b32 s3, s2, {3+sub}
        s_lshl_b32 s3, s3, 2
        s_add_u32 s3, s3, s{sWV}
        s_mul_i32 s3, s3, {per*128}
        s_lshr_b32 s96, s{sI}, 3
        s_xor_b32 s96, s96, {other}
        s_mul_i32 s96, s96, {5184*128}
        s_add_u32 s3, s3, s96
        s_lshr_b32 s96, s{sC}, 2
        s_mul_i32 s96, s96, {2*5184*128}
        s_add_u32 s3, s3, s96
        s_add_u32 s3, s3, {first*128}
        v_lshlrev_b32 v{VTT}, 7, v{VLANE}
        s_bfm_b64 exec, {per}, 0""")
        a.vm(f'buffer_load_dword a255, v{VTT}, {S(SW2)}, s3 offen')
        a('s_mov_b64 exec, -1')
    return f
def tabtouch(a):
    a(f"""s_lshr_b32 s96, s2, 3
    s_lshl_b32 s96, s96, 2
    s_add_u32 s96, s96, s{sWV}
    s_min_u32 s96, s96, 125
    s_mul_i32 s96, s96, {22*128}
    s_add_u32 s96, s96, {TABF_SZ}
    s_sub_u32 s96, s96, s{sW2K}
    v_mul_u32_u24 v{VTT}, 112, v{VLANE}
    v_mov_b32 v{VTT+1}, 0
    v_lshl_add_u64 {vr(VTT,2)}, {vr(VTT,2)}, 0, {vr(VTB,2)}
    v_lshl_add_u64 {vr(VTT,2)}, s[96:97], 0, {vr(VTT,2)}
    s_bfm_b64 exec, 22, 0""")
    a.vm(f'global_load_dword a255, {vr(VTT,2)}, off')
    a('s_mov_b64 exec, -1')
def codetouch(a):
    if not Cfg.ct: return
    l = a.label('CT')
    a(f"""s_getpc_b64 s[100:101]
    {l}:
    s_lshr_b32 s3, s2, 3
    s_lshl_b32 s3, s3, 2
    s_add_u32 s3, s3, s{sWV}
    s_lshl_b32 s3, s3, 8
    v_lshlrev_b32 v{VTT}, 7, v{VLANE}
    v_add_u32 v{VTT}, s3, v{VTT}
    v_min_u32 v{VTT}, L_tailend-L_s9-4, v{VTT}
    s_sub_u32 s100, s100, {l}-L_main
    s_subb_u32 s101, s101, 0
    v_add_u32 v{VTT}, L_s9-L_main, v{VTT}
    v_mov_b32 v{VTT+1}, 0
    v_lshl_add_u64 {vr(VTT,2)}, s[100:101], 0, {vr(VTT,2)}
    s_mov_b64 exec, 3""")
    a.vm(f'global_load_dword a252, {vr(VTT,2)}, off')
    a('s_mov_b64 exec, -1')
def smid_ids(a):
    a(f'''s_bfe_u32 s96, s{sROLE}, 0x30008
    s_cmp_ge_u32 s96, 3
    s_cselect_b32 s98, 1, 0
    s_lshl_b32 s99, s{sI}, 1
    s_add_u32 s99, s99, s98
    s_mul_i32 s98, s98, 3
    s_sub_u32 s96, s96, s98
    s_mul_i32 s96, s96, 3''')
WA = 216
PSR = 20
def wload(k):
    def f(a):
        a(f's_add_u32 s3, s35, {16*18496*(k//2)}')
        a.vm(f'buffer_load_dwordx4 {ar(WA+4*k)}, v3, {S(SWI if k % 2 else SWR)}, s3 offen {NT(8)}', 'wl')
    return f
def wpatch(a):
    a(f'v_mul_u32_u24 v1, 18496, v{VLANE}')
    a.vm(f'buffer_load_ushort a253, v1, {S(SWR)}, s35 offen offset:{576-258}', 'wl')
    a.vm(f'buffer_load_ushort a254, v1, {S(SWI)}, s35 offen offset:{576-258}', 'wl')

def touch_ops():
    o = [V(f"""s_bfe_u32 s98, s{sROLE}, 0x30008
    s_sub_u32 s98, s98, 5
    s_lshl_b32 s98, s98, 6
    s_add_u32 s98, s98, s{sB}
    s_bfe_u32 s99, s{sROLE}, 0x30008
    s_sub_u32 s99, s99, 5
    s_bfe_u32 s96, s{sC}, 0x10001
    s_mul_i32 s96, s96, 3
    s_add_u32 s99, s99, s96
    s_lshl_b32 s99, s99, 2
    s_add_u32 s99, s99, s{sWV}
    s_mul_i32 s99, s99, {Cfg.tn*128}
    s_lshr_b32 s96, s{sI}, 3
    s_mul_i32 s96, s96, {5184*128}
    s_add_u32 s99, s99, s96
    s_lshr_b32 s96, s{sC}, 2
    s_mul_i32 s96, s96, {2*5184*128}
    s_add_u32 s99, s99, s96
    v_lshlrev_b32 v1, 7, v{VLANE}""")]
    for k in range(Cfg.tn//54):
        if k < Cfg.te: o.append(V(f's_add_u32 s99, s99, {54*128}')); continue
        def f(a, k=k):
            a('s_bfm_b64 exec, 54, 0')
            a.vm(f'buffer_load_dword a255, v1, {S(SW2)}, s99 offen')
            a(f's_mov_b64 exec, -1\ns_add_u32 s99, s99, {54*128}')
        o.append(FN(f))
    def g(a):
        a(f"""s_mul_i32 s99, s98, {15*128}
        s_add_u32 s99, s99, {TABF_SZ}
        v_add_u32 v{VTT}, s99, v1
        v_min_u32 v{VTT}, {TABF_SZ+TABG_SZ+TAB64_SZ-4}, v{VTT}
        v_mov_b32 v{VTT+1}, 0
        v_lshl_add_u64 {vr(VTT,2)}, s[100:101], 0, {vr(VTT,2)}
        s_bfm_b64 exec, 15, 0""")
        a.vm(f'global_load_dword a255, {vr(VTT,2)}, off')
        a('s_mov_b64 exec, -1')
    return o + [FN(g)]

def getnonce(a):
    lc = a.label('NC'); ls = a.label('NS'); lk = a.label('NK')
    a.vneed('non')
    a(f'{lc}:\nv_readfirstlane_b32 s{sNON}, v{VFL}\ns_nop 3\ns_cmp_eq_u32 s{sNON}, 0\ns_cbranch_scc1 {ls}\n{lk}:')
    a.ool += [f'{ls}:', f' s_sub_u32 s{sP}, s{sP}, 1', f' s_cbranch_scc1 {ls}_x', f' s_sleep {Cfg.slp}', f' buffer_load_dword v{VFL}, off, {S(SDBG)}, 0 sc1', ' s_waitcnt vmcnt(0)', f' s_branch {lc}',
              f'{ls}_x:', f' s_mov_b32 s{sP}, 0', f' s_branch {lk}']

def xpose_setup(a, vw, vrd, vg, base_imm, rowstride, flip=None):
    a(f"""v_and_b32 v{vw}, 15, v{VLANE}
    v_lshlrev_b32 v{vw}, 7, v{vw}
    v_bfe_u32 v{vrd}, v{VLANE}, 4, 1
    v_lshl_add_u32 v{vw}, v{vrd}, 13, v{vw}
    v_lshrrev_b32 v{vrd}, 5, v{VLANE}
    v_lshlrev_b32 v{vrd}, 2, v{vrd}
    v_and_b32 v{vg}, 7, v{VLANE}
    v_xor_b32 v{vrd}, v{vrd}, v{vg}
    v_lshl_add_u32 v{vw}, v{vrd}, 4, v{vw}
    s_add_u32 s98, s{sW2K}, {base_imm}
    v_add_u32 v{vw}, s98, v{vw}
    v_lshrrev_b32 v{vrd}, 3, v{VLANE}
    v_mul_u32_u24 v{VTT}, {rowstride}, v{vrd}
    v_lshl_add_u32 v{vg}, v{vg}, 4, v{VTT}
    v_lshlrev_b32 v{vrd}, 4, v{vrd}
    v_xor_b32 v{vrd}, v{vrd}, v{VL16}
    v_add_u32 v{vrd}, s98, v{vrd}""")
def xpose_w(src, q, vw, flip=0):
    x = (16*q) ^ flip
    if x == 0: return [LD(f'ds_write_b128 v{vw}, {vr(src)}', 'xw')]
    return [V(f'v_xor_b32 v{VTT}, {x}, v{vw}'), LD(f'ds_write_b128 v{VTT}, {vr(src)}', 'xw')]
def xpose_rs(dst, vrd, vg, sreg, rowstride, tag, u=0):
    o = [LD(f'ds_read_b128 {vr(dst+4*q)}, v{vrd} offset:{8192*(q//2) + 1024*(q%2)}', ('xr', u, q)) for q in range(4)]
    for q in range(4):
        o.append(FN(lambda a, q=q: a.need(('xr', u, q))))
        o.append(VM(f'buffer_store_dwordx4 {vr(dst+4*q)}, v{vg}, {S(SWS)}, s{sreg} offen sc1', tag))
        o.append(V(f's_add_u32 s{sreg}, s{sreg}, {8*rowstride}'))
    return o
OA = 200
XP_LDS = BIAS_LDS + 2048
def dft_fill():
    Ea = ACC[0]; T = TMP; U = Ea + 16; RS = 9*64*128
    su = f"""v_and_b32 v1, 31, v{VLANE}
    v_lshlrev_b32 v1, 6, v1
    v_lshrrev_b32 v3, 5, v{VLANE}
    v_lshlrev_b32 v3, 1, v3
    v_bfe_u32 v{VPO}, v{VLANE}, 1, 2
    v_xor_b32 v3, v3, v{VPO}
    v_lshl_add_u32 v1, v3, 4, v1
    s_add_u32 s98, s{sW2K}, {XP_LDS}
    v_add_u32 v1, s98, v1
    v_bfe_u32 v3, v{VLANE}, 3, 2
    v_lshlrev_b32 v3, 4, v3
    v_xor_b32 v3, v3, v{VL16}
    v_add_u32 v3, s98, v3
    v_lshrrev_b32 v{VPO}, 2, v{VLANE}
    v_mul_u32_u24 v{VPO}, {RS}, v{VPO}
    v_and_b32 v{VTT}, 3, v{VLANE}
    v_lshl_add_u32 v{VPO}, v{VTT}, 4, v{VPO}
    s_bfe_u32 s96, s{sROLE}, 0x30008
    s_lshl_b32 s98, s96, 6
    s_add_u32 s98, s98, s{sB}
    s_lshl_b32 s35, s98, 3
    s_add_u32 s35, s35, {VFL_OFF}
    s_lshl_b32 s98, s98, 7
    s_add_u32 s98, s98, {V_OFF}
    s_sub_u32 s99, 8, s96
    s_lshl_b32 s99, s99, 6
    s_add_u32 s99, s99, s{sB}
    s_lshl_b32 s99, s99, 7
    s_add_u32 s99, s99, {V_OFF}
"""
    o = [V(x) for x in su.split('\n') if x.strip()] + [V(f's_cmp_eq_u32 s96, 4\ns_cselect_b32 s96, {DUM_OFF - V_OFF}, 0\ns_add_u32 s99, s99, s96')]
    su = o; o = [V(f'v_add_u32 v{VPO+1}, {16*RS}, v{VPO}')]
    for i in range(16):
        e = Ea + 2*i
        o += [V(f'v_accvgpr_read_b32 v{T+4}, a{OA+2*i}'), V(f'v_accvgpr_read_b32 v{T+5}, a{OA+2*i+1}'), V(f'v_add_f32 v{T}, v{e}, v{T+4}'), V(f'v_add_f32 v{T+1}, v{e+1}, v{T+5}')]
        if i < 8: o += [V(f'v_sub_f32 v{T+2}, v{e}, v{T+4}'), V(f'v_sub_f32 v{T+3}, v{e+1}, v{T+5}')]
        else:     o += [V(f'v_sub_f32 v{T+2}, v{T+4}, v{e}'), V(f'v_sub_f32 v{T+3}, v{T+5}, v{e+1}')]
        o += [V(f'v_cvt_pk_bf16_f32 v{HO+i}, v{T}, v{T+1}'), V(f'v_cvt_pk_bf16_f32 v{Ea+i}, v{T+2}, v{T+3}')]
    segs = [o]
    u = vr(U, 16)
    for m, X in enumerate((HO, Ea)):
        for p in range(2):
            A1, A2 = (X, X+8) if p == 0 else (X+8, X)
            B2 = TW+8 if p == 0 else TW+16
            mf = [V(f's_nop 1\n{M} {u}, {vr(A1)}, {ar(TW)}, 0'), V(f'{M} {u}, {vr(A1+4)}, {ar(TW+4)}, {u}'), V(f'{M} {u}, {vr(A2)}, {ar(B2)}, {u}'), V(f'{M} {u}, {vr(A2+4)}, {ar(B2+4)}, {u}')]
            pk = []
            for q in range(2):
                for i in range(4):
                    k = 4*q + i
                    pk.append(V(f'v_cvt_pk_bf16_f32 v{T+k}, v{U+2*k}, v{U+2*k+1}' if m == 0 else f'v_cvt_pk_bf16_f32 v{T+k}, v{U+15-2*k}, v{U+14-2*k}'))
                x = 16*q ^ 32*m
                if x: pk += [V(f'v_xor_b32 v{VTT}, {x}, v1'), LD(f'ds_write_b128 v{VTT}, {vr(T+4*q)}')]
                else: pk += [LD(f'ds_write_b128 v1, {vr(T+4*q)}')]
            d = OA + 8*(2*m+p)
            pk += [LD(f'ds_read_b128 {ar(d+4*i)}, v3 offset:{1024*i}', ('xr', m, p)) for i in range(2)]
            st = [FN(lambda a, m=m, p=p: a.need(('xr', m, p)))] + [VM(f'buffer_store_dwordx4 {ar(d+4*i)}, v{VPO+i}, {S(SWS)}, s{98+m} offen offset:{64*p} sc1', 'V') for i in range(2)]
            segs += [mf, pk, st]
    f = [(segs[0], 3, 33)]; st = []
    for k in range(4):
        g = 33 + 8*k
        f += [(segs[1+3*k], g, g+2), (segs[2+3*k], g+5, g+8)]
        x = segs[3+3*k]
        st += [FN(lambda a, x=x: emit(a, x[:2])), x[2]]
    return su, f, st

JA = [8, 40]; JC = [72, 104]
def hload(g):
    return [SVM(f's_add_u32 s3, s{33 if g else 32}, {4096*g}', f'buffer_load_dwordx4 {ar(HF+16*g+4*k)}, v{VL16}, {S(SWS)}, s3 offen offset:{1024*k} sc1 {NT(1)}', ('ph', g)) for k in range(4)]

SZ=[72,88,136,152]; SVF=8; SWP=40; SY0=192; SPA=[72,88,168,24]
def TF(i): return ar(176+4*i) if i < 20 else vr(200+4*(i-20))
def smid_pre():
    su = f"""v_lshrrev_b32 v3, 5, v{VLANE}
    v_bfe_u32 v1, v{VLANE}, 2, 2
    v_lshl_add_u32 v3, v3, 2, v1
    v_lshlrev_b32 v{VA1}, 7, v3
    v_lshlrev_b32 v{VB1}, 6, v3
    v_bfe_u32 v1, v{VLANE}, 4, 1
    v_lshlrev_b32 v1, 5, v1
    v_and_b32 v3, 3, v{VLANE}
    v_lshl_add_u32 v1, v3, 3, v1
    s_min_u32 s98, s{sWV}, 2
    s_lshl_b32 s98, s98, 13
    s_add_u32 s99, s98, {slot(54)}
    v_add3_u32 v{VA1}, v{VA1}, v1, s99
    s_add_u32 s99, s98, {slot(57)}
    v_add3_u32 v{VB1}, v{VB1}, v1, s99
    v_add_u32 v1, s99, v{VL16}
    v_add_u32 v3, {slot(51)}, v{VL16}"""
    w = [FN(lambda a: a.vneed('wl'))] + [(3, LD(f'ds_write_b128 v1, {ar(WA+4*k)} offset:{1024*k}')[1]) for k in range(8)]
    def patch(a):
        a(f"""v_lshrrev_b32 v{VTT}, 4, v{VLANE}
        v_lshlrev_b32 v{VTT}, 11, v{VTT}
        v_and_b32 v{VTT+1}, 15, v{VLANE}
        v_lshl_add_u32 v{VTT}, v{VTT+1}, 6, v{VTT}
        v_add_u32 v{VTT}, {slot(57) + 8192}, v{VTT}""")
        a.lds(f'ds_write_b16 v{VTT}, a253 offset:62'); a.lds(f'ds_write_b16 v{VTT}, a254 offset:1086')
    w.append(FN(only(R_PATCH, patch)))
    for p in range(2):
        for mt in range(2):
            for q in range(4):
                w.append(LD(f'ds_read_b64_tr_b16 {vr(SWP+16*p+8*mt+2*q,2)}, v{VB1} offset:{4096*mt+2048*(q//2)+512*(q%2)+1024*p}', 'sm'))
    r = []
    for ks in range(4):
        for p in range(2):
            for rho in range(2): r.append(LD(f'ds_read_b64_tr_b16 {vr(SVF+16*p+4*ks+2*rho,2)}, v{VA1} offset:{2048*ks+1024*rho+64*p}', 'sm'))
        for i in (ks, 8+ks, 16+ks): r.append(LD(f'ds_read_b128 {TF(i)}, v3 offset:{1024*i}', 'sm'))
    late = [LD(f'ds_read_b128 {TF(i)}, v3 offset:{1024*i}', 'sm2') for ks in range(4) for i in (4+ks, 12+ks, 20+ks)]
    return sops(su), w, r, late
def smid_parts():
    Z=SZ; VF=SVF; WP=SWP; Y=SVF; PA=SPA; T=TMP
    C=lambda t,k: TF(4*t+k); Sn=lambda t,k: TF(8+4*t+k); N=lambda t,k: TF(16+4*t+k)
    def fwd(mt):
        zr=vr(Z[2*mt],16); zi=vr(Z[2*mt+1],16); o=[]
        for ks in range(4):
            o += [f'{M} {zr}, {C(mt,ks)}, {vr(VF+4*ks)}, {"0" if ks==0 else zr}', f'{M} {zi}, {C(mt,ks)}, {vr(VF+16+4*ks)}, {"0" if ks==0 else zi}',
                  f'{M} {zr}, {Sn(mt,ks)}, {vr(VF+16+4*ks)}, {zr}', f'{M} {zi}, {N(mt,ks)}, {vr(VF+4*ks)}, {zi}']
        return o
    def ybase(mt, p): return (SY0 - 8*p) if mt == 0 else (Y + 8*p)
    def cmul(mt):
        o = []
        for d in range(8):
            wr = WP + 8*mt + d; wi = WP + 16 + 8*mt + d; zr = Z[2*mt] + 2*d; zi = Z[2*mt+1] + 2*d
            o += [f'v_lshlrev_b32 v{T}, 16, v{wr}', f'v_and_b32 v{T+1}, 0xffff0000, v{wr}', f'v_lshlrev_b32 v{T+2}, 16, v{wi}', f'v_and_b32 v{T+3}, 0xffff0000, v{wi}']
            for i in range(2): o += [f'v_mul_f32 v{T+4+i}, v{zi+i}, v{T+2+i}', f'v_mul_f32 v{T+6+i}, v{zi+i}, v{T+i}']
            for i in range(2): o += [f'v_fma_f32 v{T+4+i}, v{zr+i}, v{T+i}, -v{T+4+i}', f'v_fma_f32 v{T+6+i}, v{zr+i}, v{T+2+i}, v{T+6+i}']
            o += [f'v_cvt_pk_bf16_f32 v{ybase(mt,0)+d}, v{T+4}, v{T+5}', f'v_cvt_pk_bf16_f32 v{ybase(mt,1)+d}, v{T+6}, v{T+7}']
        return [V(x) for x in o]
    def inv(mt):
        o = []
        for nt in range(2):
            pr=vr(PA[2*nt],16); pi=vr(PA[2*nt+1],16)
            for t in range(2):
                ks = 2*mt + t; yr = vr(ybase(mt,0)+4*t); yi = vr(ybase(mt,1)+4*t)
                o += [f'{M} {pr}, {yr}, {C(nt,ks)}, {"0" if ks==0 else pr}', f'{M} {pi}, {yi}, {C(nt,ks)}, {"0" if ks==0 else pi}',
                      f'{M} {pr}, {yi}, {N(nt,ks)}, {pr}', f'{M} {pi}, {yr}, {Sn(nt,ks)}, {pi}']
        return o
    return fwd, cmul, inv
def part_inplace(acc, lam):
    c = []; st = []
    for q in range(4):
        c += [V(f'v_cvt_pk_bf16_f32 v{acc+8*q+i}, v{acc+8*q+2*i}, v{acc+8*q+2*i+1}') for i in range(4)]
        st.append(SVM(f's_add_u32 s3, s{sPS}, {16384*(2*lam + q//2)}', f'buffer_store_dwordx4 {vr(acc+8*q)}, v{VL16}, {S(SWS)}, s3 offen offset:{1024*(q%2)} sc1', ('p', lam)))
    return c, st

def kernel():
    a = E()
    prologue(a)
    g1 = lambda acc: (lambda p, kk, h: (acc + 16*h, vr(XF + 16*p + 4*kk), False))
    END = 71
    stamp(a, 2)
    a.need('bw')
    a('; ROUND 1')
    brole(a, R_ODD, 'L_odd')
    s_pro = a.snap()
    a.vneed(('d',0),('d',1),('d',2)); a('s_barrier')
    bias_reads(a, ACC[0], 0); first_reads(a, 'tr', 0); emit(a, NLAST)
    run(a, 0, 9, 'tr', g1(ACC[0]), [(late_setup(), 26, 54), (bias_ops(ACC[1], 1), 40, 66), (B2PRE, 56, 70)], pause=(0, Cfg.pz1), events={71: B2FIRE, ('dma0', 0): list(range(Cfg.np, 12))})
    stamp(a, 3)
    run(a, 9, 9, 'tr', g1(ACC[1]), [(gelu_ops(ACC[0], 0, 2, Cfg.sd), Cfg.gs0, END)], events={2: [getnonce]}, pause=(0, Cfg.pz2))
    s_even = a.snap()
    la = a.l; a.l = []
    a('L_odd:'); a.restore(s_pro)
    brole(a, R_DFT, 'L_dft')
    emit(a, NLAST + late_setup() + ([] if Cfg.be else [FN(f) for f in BATCH2]) + touch_ops())
    for q in range(max(9, Cfg.np), 21):
        for f in plan(q): f(a)
    a.vneed(('d',9),('d',10),('d',11)); a('s_barrier')
    first_reads(a, 'tr', 9)
    stamp(a, 3)
    bias_reads(a, ACC[1], 1)
    run(a, 9, 9, 'tr', g1(ACC[1]), [(bias_ops(ACC[0], 2), 40, 66), (xback(HO, HO+1), 8, 30)], events={2: [getnonce]})
    a('s_branch L_s3'); s_nodft = a.snap()
    a('L_dft:'); a.restore(s_pro)
    a(f'v_mov_b32 v{VPO}, v{VL16}\nv_add_u32 v{VPO+1}, 49152, v{VL16}')
    a.vneed(('d',0),('d',1),('d',2)); a('s_barrier')
    first_reads(a, 'dft', 0); emit(a, NLAST)
    run(a, 0, 9, 'dft', lambda p, kk, h: ((ACC[0] + 16*h) if kk % 2 == 0 else -(OA + 16*h), vr(XF + 16*p + 4*kk), p == 0 and kk < 2),
        [(xback(HO, HO+1), 8, 30), (late_setup(), 30, 47), ([V('s_nop 0')] if Cfg.twe else twiddle_ops(TW, TMP, 'fwd', sB), 2, 60), (dft_fill()[0], 48, 66), (bias_ops(ACC[1], 1), 56, 70)] + ([] if Cfg.be else [(B2PRE, 66, 71)]), pause=(0, Cfg.pz1), role='D', events={71: [] if Cfg.be else B2FIRE, ('dma0', 0): list(range(Cfg.np, 12))})
    stamp(a, 3)
    _, df, vst = dft_fill(); vlate = vst[3:]
    run(a, 9, 9, 'tr', g1(ACC[1]), df + [(vst[:3], 42, 70), (bias_ops(ACC[0], 2), 65, 70)], events={2: [getnonce]}, pause=(0, 0 if Cfg.be else Cfg.pz2))
    a('L_s3:'); a.merge(s_nodft, a.snap()); s_odd = a.snap()
    lodd = a.l; a.l = la; a.restore(s_even)
    stamp(a, 4)
    pi = spoll_i; pc = spoll_c
    h0 = only_ops(R_ODD, hload(0), 1)
    FG, PG, CG = Cfg.fg, Cfg.pg, Cfg.cg
    l2a = [w2touch(1, 0, 21)] if Cfg.l2 else []; l2b = [w2touch(1, 21*128, 20)] if Cfg.l2 else []; l2c = [tabtouch] if Cfg.l2 else []
    run(a, 18, 9, 'tr', g1(ACC[0]), [(gelu_ops(ACC[1], 1, 3), Cfg.gs0, END), ([FN(only(R_UNIT, wload(k))) for k in range(4)], 6, 64)] + ([(clear_ops(sHS, [16384, 18432], 'clr', -248), 2, 68)] if Cfg.ce else []),
        events={FG: [lambda a: setflag(a, 1, ('h',0))], 40: l2a, 66: l2b})
    g2 = lambda acc: (lambda p, kk, h: (acc + 16*h, ar(HF + 16*GORD[p] + 4*kk), p == 0 and kk == 0))
    tabg = f"""s_and_b32 s98, s{sC}, 3
    s_min_u32 s98, s98, 2
    s_mul_i32 s96, s98, 110592
    s_add_u32 s96, s96, {TABF_SZ}
    v_lshl_add_u64 {vr(VTB,2)}, s[96:97], 0, {vr(VTB,2)}"""
    sent8 = lambda a: (stamp(a, 7), sent_check(a, ('ph',8), [f'a{HF+128+4*k+3}' for k in range(4)], TMP, lines_of(hload(8)), ([f's_add_u32 s3, s33, {4096*8}'], 3)))
    sf = lambda st, *tags: (lambda a: (setflag if st < 5 else setflag2)(a, st, *tags))
    sf5 = lambda a: setflag(a, 5, ('h',4))
    clo = clear_ops(33, [32768, 34816], 'clr', -248)
    clp = clear_ops(sPS, [16384*6, 16384*7], 'clp')
    def setup5():
        a = E()
        smid_ids(a)
        a(f"""s_mul_i32 s{sSV}, s99, 9
        s_add_u32 s{sSV}, s{sSV}, s96
        s_lshl_b32 s{sSV}, s{sSV}, 13
        s_add_u32 s{sSV}, s{sSV}, s{sW2K}
        s_add_u32 s{sSV}, s{sSV}, {V_OFF}
        s_add_u32 s98, s96, s{sWV}
        s_lshl_b32 s98, s98, 5
        s_add_u32 s98, s98, s99
        s_lshl_b32 s47, s98, 3
        s_add_u32 s47, s47, {PFL_OFF}
        s_lshl_b32 s48, s98, 7
        s_add_u32 s48, s48, {P_OFF}
        s_add_u32 s49, s48, {32*9*32*128}
        v_and_b32 v1, 15, v{VLANE}
        s_lshl_b32 s98, s{sWV}, 4
        v_add_u32 v1, s98, v1
        v_lshrrev_b32 v{VA1}, 4, v{VLANE}
        v_min_u32 v{VA1}, 2, v{VA1}
        v_add_u32 v{VA1}, s96, v{VA1}
        v_sub_u32 v{VB1}, 8, v{VA1}
        v_min_u32 v{VA1}, v{VA1}, v{VB1}
        v_lshl_add_u32 v1, v{VA1}, 6, v1
        v_lshlrev_b32 v1, 3, v1
        v_add_u32 v1, {VFL_OFF}, v1""")
        return sops('\n'.join(a.l).replace('s96', 's50').replace('s98', 's51').replace('s99', 's52'))
    run(a, 27, 9, 'tr', g1(ACC[1]), [(gelu_ops(ACC[0], 2, 4), Cfg.gs0, END), ([FN(only(R_UNIT, wload(k))) for k in range(4, 8)], 6, 64), (setup5(), 48, 70)],
        events={4: [only(R_PATCH, wpatch)], FG: [sf(2, 'clr', ('h',1))], 30: l2c}, role='E')
    stamp(a, 5)
    ssu, sw, sr, slate = smid_pre()
    run(a, 36, 9, 'tr', g1(ACC[0]), [(gelu_ops(ACC[1], 3), Cfg.gs0, END), (hload(5), Cfg.e2+1, 71), (ssu, 52, 70)], role='E',
        events={26: [lambda a: a.vm(poll_ins(VA1, 1, '0'), 'vp')], Cfg.e2-22: [pi], Cfg.e2: [pc(2)], 47: [only(R_SMID, lambda a: poll_check(a, 'vp', VA1, 1, '0', 1))], FG: [sf(3, ('h',2))]})
    stamp(a, 6)
    a('s_mov_b32 s11, s47')
    pre = lambda g: [lambda a: a.vneed(('ph', g))]
    ge = lambda o: (lambda p, kk, h: (JC[1] + 16*h, ar(HF + 16*GE[p+o] + 4*kk), p+o == 0 and kk == 0))
    dm6 = [FN(f) for q in range(63, 72) for f in plan(q, 'E')]
    h6 = [FN(pc(3))] + hload(6); h7 = [FN(pc(4))] + hload(7)
    def s6a(unit):
        run(a, 45, 6, 'tr', ge(0), ([(gelu_ops(ACC[0], 4), 3, Cfg.ge), (sw, Cfg.ge-14, Cfg.ge+2), (sr, Cfg.ge-2, 48)] if unit else [(gelu_ops(ACC[0], 4), 3, 44)]), nxt=None, role='E',
            events={Cfg.f4: [sf(4, ('h',3))], 30: [pi], ('pre',32): pre(5), ('bar',48): [('d', q) for q in range(51, 57)]})
    b2 = FN(lambda a: (a.vneed(('d',60),('d',61),('d',62)), a('s_barrier')))
    brole(a, R_UNIT, 'L_unit'); s1 = a.snap()
    s6a(False)
    a('s_barrier')
    cle = []
    def allw(qs, tw=[]):
        def f(a):
            for q in qs:
                for g in plan(q, 'E'): g(a)
            if not Cfg.w3d and not tw: return
            d = []
            for q in (qs if Cfg.w3d else []):
                for w in range(3):
                    d.append(SVM(f's_mov_b32 m0, {slot(q) + 2048*w}\ns_add_u32 s{sT}, s{sO2+EORD[q-60][0]}, {128*EORD[q-60][1]}', f'buffer_load_dwordx4 v{8+2*w}, {S(SW2)}, s{sT} offen lds'))
                    d.append(VM(f'buffer_load_dwordx4 v{9+2*w}, {S(SW2)}, s{sT} offen offset:1024 lds'))
            only(R_SMID, lambda a: emit(a, mix(tw, d) if tw else d))(a)
        return FN(f)
    twq = lambda w: coop_tw(w, slot(59)) if Cfg.tw3 else []
    for w in range(3): a(f'v_subrev_u32 v{8+2*w}, {(3-w)*16*1152}, v{VA2}\nv_subrev_u32 v{9+2*w}, {(3-w)*16*1152}, v{VB2}')
    emit(a, fsetup()[:3] + [allw([63, 64])] + h6 + [V('s_barrier'), allw([65, 66, 67, 68], twq('0') + twq('1')), allw([69, 70, 71], twq('2'))] + twq(None) + [FN(lambda a: a.drain()), FN(pi), V(tabg), FN(lambda a: a.vdrain()), b2])
    if Cfg.w3d: dm6 = [V('s_nop 0')]*18
    first_reads(a, 'tr', 60)
    a(';NONUNIT7'); s_nou = a.snap()
    a('L_unit:'); a.restore(s1)
    s6a(True)
    fwd, cmul, inv = smid_parts()
    stamp(a, 'm0')
    a.need('sm'); a('s_barrier')
    dmx = lambda i, j: [] if Cfg.w3d else dm6[i:j]
    interleave(a, fwd(0), mix(slate, dmx(0, 6) + h6))
    stamp(a, 'm1')
    a.need('sm2'); a('s_barrier')
    t = E(); xpose_setup(t, 1, 3, VA1, slot(57), 9*32*128); t(tabg)
    interleave(a, fwd(1)[:3], dmx(6, 10) + [V(x) for x in t.l[:11]])
    interleave(a, fwd(1)[3:], mix(cmul(0), dmx(10, 14)))
    a('s_nop 1')
    stamp(a, 'm2')
    interleave(a, inv(0)[:3], [V(x) for x in t.l[11:]])
    interleave(a, inv(0)[3:], cmul(1)[:30] + [FN(pi)] + cmul(1)[30:])
    stamp(a, 'm3')
    def pout(nt):
        o = []
        for p in range(2):
            for par in range(2):
                for i in range(4): o.append(V(f'v_cvt_pk_bf16_f32 v{SWP+16*nt+8*p+4*par+i}, v{SPA[2*nt+p]+4*i+par}, v{SPA[2*nt+p]+4*i+2+par}'))
                o += xpose_w(SWP+16*nt+8*p+4*par, 2*p+par, 1)
        x = xpose_rs(SWP+16*nt, 3, VA1, 48+nt, 9*32*128, 'P', nt)
        return o + x[:4], x[4:]
    a('s_nop 1')
    h8 = hload(8)
    interleave(a, inv(1)[:10], h7 + ([FN(pi)] if Cfg.hf and Cfg.c5 < Cfg.pd else []) + dmx(14, 18) + [b2])
    first_reads(a, 'tr', 60)
    interleave(a, inv(1)[10:], pout(0)[0])
    stamp(a, 'm5')
    eo = lambda o: (lambda p, kk, h: (JC[1-EORD[p+o][1]] + 16*h, ar(HF + 16*EORD[p+o][0] + 4*kk), p+o == 1 and kk == 0))
    grp = lambda x, n: [FN(lambda a, y=x[i:i+n]: emit(a, y)) for i in range(0, len(x), n)]
    pst = grp(pout(0)[1] + pout(1)[1], 3)
    def EV(*pairs):
        d = {}
        for k, v in pairs: d.setdefault(k, []).extend(v if isinstance(v, list) else [v])
        return d
    if not Cfg.hf:
        assert Cfg.pe <= 24 and Cfg.c5 >= 24
        def s7(unit):
            run(a, 60, 3, 'tr', eo(0), [(pout(1)[0], 2, 10), (pst[:4], 0, max(11, Cfg.pe//2)), (pst[4:], max(11, Cfg.pe//2), Cfg.pe)]*unit, role='E',
                events={('pre',0): pre(6), ('pre',16): pre(7), Cfg.c5-Cfg.pd: [pi], ('pre',17): [lambda a: stamp(a, 7)]})
    else:
        assert Cfg.pe <= 48 and Cfg.e8 < 6
        def s7(unit):
            run(a, 60, 6, 'tr', eo(0), [(pout(1)[0], 2, 12), (pst, Cfg.c5+9, Cfg.pe)]*unit + [(h8, Cfg.c5+1, Cfg.c5+9), (xback(VB1, 1), 14, 28)], role='E',
                events=EV((('pre',0), pre(6)), (('pre',16), pre(7)), (Cfg.c5, pc(5)), (('pre',8*Cfg.e8), pre(8)), (('pre',17), lambda a: stamp(a, 7)), (('pre',24), lambda a: stamp(a, 8)), (33, codetouch),
                          *([(Cfg.c5-Cfg.pd, pi)] if Cfg.c5 >= Cfg.pd else [])))
    s7(True)
    s_u = a.snap()
    lx = a.l; a.l = []
    a.restore(s_nou); emit(a, h7 + ([FN(pi)] if Cfg.hf and Cfg.c5 < Cfg.pd else []))
    s7(False)
    a('s_branch L_s7u')
    k = [x.strip() for x in lx].index(';NONUNIT7'); a.l = lx[:k] + a.l + lx[k+1:]
    a('L_s7u:'); a.merge(s_u, a.snap())
    if not Cfg.hf:
        stamp(a, 8)
        run(a, 63, 9, 'tr', eo(3), [(h8, Cfg.c5-23, Cfg.c5-15), (part_ops(JC[1], 0), 8*Cfg.e8-13, 8*Cfg.e8+12), (fsetup0() + ([] if Cfg.f9 else fsetup()), 36, 68), (xback(VB1, 1), 1, 14), (fsetup()[:3] + coop_tw(), 10, 36),
            ([V(f's_add_u32 s{sL9}, s{sPS}, {16384*2}')], 68, 70)], role='E',
            events={9: [codetouch], Cfg.c5-24: [pc(5)], ('pre',8*Cfg.e8-24): pre(8), Cfg.pe+6: [only(R_UNIT, lambda a: setflag(a, 1, 'P', off=11))]})
    else:
        run(a, 66, 6, 'tr', eo(6), [(part_ops(JC[1], 0), 3, 32), (fsetup()[:3] + coop_tw() + fsetup0() + ([] if Cfg.f9 else fsetup()), 0, 45),
            ([V(f's_add_u32 s{sL9}, s{sPS}, {16384*2}')], 45, 47)], role='E',
            events={Cfg.pe-16: [only(R_UNIT, lambda a: setflag(a, 1, 'P', off=11))]})
    s_e = a.snap()
    if Cfg.eo: le = a.l; a.l = []
    else: a('s_branch L_s9')
    a('; ROUND 2')
    a.l += lodd; a.restore(s_odd)
    stamp(a, 4)
    run(a, 18, 9, 'tr', g1(ACC[0]), [(gelu_ops(ACC[1], 1, 3), Cfg.gs0, END), (only_ops(R_DFT, vlate, 1), 2, 40)] + ([] if Cfg.ce else [(clo[:6], 44, 68)]),
        events={PG: [pi], 40: l2a, 66: l2b})
    run(a, 27, 9, 'tr', g1(ACC[1]), [(gelu_ops(ACC[0], 2, 4), Cfg.gs0, END), (hload(0), CG+2, 64)] + ([] if Cfg.ce else [(clo[6:], 1, 14)]),
        events={2: [only(R_DFT, lambda a: setflag(a, 1, 'V', off=35))], CG: [pc(1)], (FG+1 if Cfg.ce else Cfg.f2o): [sf(2, 'clr', ('h',1))], 30: l2c, PG: [pi]}, role='O')
    stamp(a, 5)
    run(a, 36, 9, 'tr', g1(ACC[0]), [(gelu_ops(ACC[1], 3), Cfg.gs0, END), (hload(5), CG+2, 64)], role='O',
        events={CG: [pc(2)], FG: [sf(3, ('h',2))], PG: [pi]})
    stamp(a, 6)
    jj = lambda p, kk, h: (JA[p % 2] + 16*h, ar(HF + 16*GORD[p//2] + 4*kk), p < 2 and kk == 0)
    run(a, 45, 18, 'tr', jj, [(gelu_ops(ACC[0], 4), 3, 47), (hload(6), CG+2, 46), (hload(7), 49+Cfg.c4, 66+Cfg.c4), (hload(8), 48+Cfg.h8, 62+Cfg.h8), (sops(tabg), 140, 143), (fsetup()[:3] + coop_tw(), 50, 96), (fsetup0() + ([] if Cfg.f9 else fsetup()), 97, 140)], role='O',
        events={CG: [pc(3)], Cfg.f4: [sf(4, ('h',3))], 46: [pi], 48+Cfg.c4: [pc(4)], ('pre',64): pre(0), ('pre',80): pre(5), ('pre',96): pre(6), ('pre',112): pre(7), Cfg.f5h: [sf5], 126: [sent8], 132: [codetouch]})
    stamp(a, 8)
    run(a, 63, 9, 'tr', g2(JC[0]), [(part_ops(JA[0], 4) + part_ops(JA[1], 6), 3, Cfg.p8), ([V(f's_add_u32 s{sL9}, s{sPS}, {16384*10}')], 60, 62)] + ([(tw_reads(), 52, 70)] if Cfg.tw3 else []))
    LO = []
    if Cfg.eo: a('s_branch L_s9'); LO = a.l; a.l = le
    a(f'; ROUND {0 if Cfg.w3 == 2 else 3}\nL_s9:'); a.merge(s_e, a.snap())
    if Cfg.warm and Cfg.w3 == 1: a('; WARM 3')
    stamp(a, 9)
    g2o = lambda acc, o: (lambda p, kk, h: (acc + 16*h, ar(HF + 16*GORD[p+o] + 4*kk), p+o == 0 and kk == 0))
    def two(mask, f):
        l1 = a.label('TW'); l2 = a.label('TX')
        a(f's_and_b32 s98, s{sCLS}, {mask}\ns_cbranch_scc1 {l1}'); s0 = a.snap()
        f(False); a(f's_branch {l2}\n{l1}:'); s1 = a.snap(); a.restore(s0)
        f(True); a(f'{l2}:'); a.merge(s1, a.snap())
    pl1 = lambda hf: [FN(lambda a, k=k: emit(a, pl_ops(hf, k, k+1, 32 if Cfg.bf else SWS))) for k in range(16)]
    if Cfg.bf: two = lambda mask, f: f(True)
    def ppoll_i(a):
        a(f"""s_min_u32 s98, s{sWV}, 2
        s_mul_i32 s98, s98, 768
        s_add_u32 s98, s98, {PFL_OFF}
        v_lshlrev_b32 v204, 3, v{VLANE}
        v_add_u32 v204, s98, v204
        v_add_u32 v205, 256, v204""")
        a.vm(poll_ins(200, 204, '0'), 'pp1'); a.vm(poll_ins(202, 205, '0'), 'pp2')
    def ppoll_c(a):
        if Cfg.blk & 4:
            only(R_FINW, lambda a: (poll_check(a, 'pp1', 200, 204, '0', 1), poll_check(a, 'pp2', 202, 205, '0', 1)))(a); a(f's_bitcmp1_b32 s{sROLE}, {R_FINW}\ns_cselect_b32 s11, 0, 1'); return
        a.vneed('pp2'); poll_test(a, 200, 1); a('s_cselect_b32 s11, 1, 0'); poll_test(a, 202, 1); a(f's_cselect_b32 s11, 1, s11\ns_bitcmp1_b32 s{sROLE}, {R_FINW}\ns_cselect_b32 s11, s11, 1')
    def EV(*pairs):
        d = {}
        for k, v in pairs: d.setdefault(k, []).extend(v if isinstance(v, list) else [v])
        return d
    sched = dict(zip((78, 81, 84, 87), Cfg.sch))
    def tryev(qn, n):
        c = sched.get(qn, '-')
        if c not in '01': return [], []
        hf = int(c); t = E(); etest(t, hf, 20)
        t(f's_cselect_b32 s20, 0, {1 << hf}\ns_and_b32 s20, s20, s{sCLS}\ns_mul_i32 s20, s20, {1 + 512 + 2048}\ns_bitset0_b32 s{sCLS}, {9+hf}\ns_xor_b32 s{sCLS}, s{sCLS}, s20')
        if Cfg.bf: t(f's_mov_b64 s[32:33], s[{SWS}:{SWS+1}]\ns_mov_b32 s35, 0x20000\ns_cmp_lg_u32 s20, 0\ns_cselect_b32 s34, s{SWS+2}, 0')
        ops = sops('\n'.join(t.l))
        if Cfg.blk & (1 << hf) and qn == 78 + 3*Cfg.sch.rindex(c):
            k = [i for i, x in enumerate(t.l) if x.strip().startswith('s_cmp_gt_u32')][0]
            def blk(a):
                lc = a.label('BC'); lk = a.label('BK')
                a(f's_bitcmp1_b32 s{sCLS}, {hf}\ns_cselect_b32 s20, s20, 0\ns_cmp_gt_u32 s20, 8\ns_cbranch_scc1 {lc}\n{lk}:\ns_mov_b32 s20, 0')
                u = E(); u.nlab = 8000 + a.nlab
                u(f'{lc}:\ns_mov_b32 s99, 8\n{lc}_l:'); eld(hf, 20)(u); u.drain(); etest(u, hf, 20)
                u(f's_cbranch_scc0 {lk}\ns_sub_u32 s99, s99, 1\ns_cbranch_scc0 {lc}_l\ns_mov_b32 s20, -1\ns_add_u32 s20, s20, s{sND+hf}'); eblock(u, hf, 20, Cfg.slp); u(f's_branch {lk}')
                HOT.extend(u.l); a.ool += u.ool
            ops = sops('\n'.join(t.l[:k])) + [FN(blk, 4)] + sops('\n'.join(t.l[k:]))
        return ([(n - Cfg.ta, eld(hf, 20))] if Cfg.ta <= n else []) + [(n - 8, dodrain)], [(ops, n-7, n)]
    bar = lambda a: a('s_barrier')
    p2 = part_ops(JC[1], 2)
    seg = {78: (JC[1], 6, [], [(Cfg.f6-48, sf(6, ('p',9))), (23, ppoll_c)]),
           81: (JC[0], 0, [(p2[:11], 3, 22)] + ([] if Cfg.tw3 else [(tw_reads(), 4, 20)]), []),
           84: (JC[0], 3, [(p2[11:], 0, 12), (fin_addr(), 8, 23)], []),
           87: (JC[0], 6, [([FN(lambda a: a.vneed(('d', 98)))] + prd(0) + prd(1) + prd(2), 12, 24)], [(Cfg.f7-48, sf(7, ('p',2))), (('dma', 88), [102, 103]), (('dma', 89), [104]), (3, bar), (22, bar)])}
    e, f = tryev(78, 48)
    if Cfg.ta > 24 and sched[81] in '01': e = e + [(72 - Cfg.ta, eld(int(sched[81]), 20))]
    run(a, 72, 6, 'tr', g2o(JC[1], 0), [(part_ops(JC[0], 9), 3, Cfg.p9), (xb_ops()[:12], 30, 44)] + f + ([(fsetup(), 0, 25)] if Cfg.f9 else []),
        events=EV((Cfg.f5, sf(5, ('p',0), ('p',4), ('p',6))), (45, ppoll_i), *e))
    def slab(q, ld):
        acc, o, fl, ev = seg[q]; e, f = tryev(q+3, 24)
        if Cfg.ta > 24 and sched.get(q+6, '-') in '01': e = e + [(48 - Cfg.ta, eld(int(sched[q+6]), 20))]
        run(a, q, 3, 'tr', g2o(acc, o), fl + f + ([(ld, 0, 22 if q < 87 else 16)] if ld else []), nxt=None if q == 87 else 'tr', events=EV(*ev, *e))
    for q in (78, 81, 84, 87):
        c = sched[q]
        if c == '-': slab(q, None)
        elif c == 'x': continue
        else:
            L = pl1(int(c))
            if sched.get(q+3) == 'x': two(512 << int(c), lambda ld: (slab(q, L[:9] if ld else None), slab(q+3, L[9:] if ld else None)))
            else: two(512 << int(c), lambda ld: slab(q, L if ld else None))
    stamp(a, 10)
    final(a)
    a('L_fin:')
    stamp_flush(a, 11)
    a('L_end:\ns_endpgm\nL_hot:\ns_endpgm')
    a.l += HOT
    if not Cfg.wsl: a('; ROUND -1')
    a.l += SLOW
    a('L_tailend:')
    a.l += LO
    a('; ROUND -1')
    return a.text()

PTH = [136, 8]
VFA = 4; VO = 5
SEL = 200; AB2 = 208; AX = 232
sCLS = 53
sND, sFO, sPB, sXO, sSG = 46, 48, 50, 4, 36
def classes():
    LAML = [0,0,4,4,2,2,3,3,2]; LAMH = [2,3,3,0,0,4,4,0,0]; NEED = [4,4,6,7,5]; RANK = [0,0,2,3,1]
    swap = 0; nd = [0, 0]; cl = []
    for c in range(9):
        rl, rh = RANK[LAML[c]], RANK[LAMH[c]]
        sw = (rh < rl) if max(rl, rh) < 2 else (rh > rl)
        la, lb = (LAMH[c], LAML[c]) if sw else (LAML[c], LAMH[c])
        swap |= sw << c; nd[0] |= NEED[la] << 3*c; nd[1] |= NEED[lb] << 3*c
        cl.append(({0:0, 2:2, 3:4}[RANK[la]], {0:1, 1:1, 2:3, 3:5}[RANK[lb]]))
    ca = sum(x[0] << 3*i for i, x in enumerate(cl)); cb = sum(x[1] << 3*i for i, x in enumerate(cl))
    return swap, nd, ca, cb
def xearly_addr(a):
    swap = classes()[0]; X = ACC[0]
    a(f'''s_lshl_b32 s96, s{sI}, 2
    s_lshr_b32 s98, s{sC}, 2
    s_add_u32 s96, s96, s98
    s_mul_i32 s96, s96, 1152
    s_and_b32 s98, s{sC}, 3
    s_min_u32 s98, s98, 2
    s_mul_i32 s99, s{sWV}, 3
    s_add_u32 s98, s98, s99
    s_min_u32 s98, s98, 8
    s_lshl_b32 s99, s98, 6
    s_add_u32 s96, s96, s99
    v_lshrrev_b32 v{X}, 2, v{VLANE}
    v_mul_u32_u24 v{X}, 4608, v{X}
    v_lshrrev_b32 v{X+1}, 4, v{VLANE}
    v_xor_b32 v{X+1}, v{X+1}, v{VLANE}
    v_and_b32 v{X+1}, 3, v{X+1}
    v_add_lshl_u32 v{X}, v{X}, v{X+1}, 4
    s_bitcmp1_b32 {swap:#x}, s98
    s_cselect_b32 s98, 576, 0
    s_cselect_b32 s99, 0, 576
    s_add_u32 s98, s98, s96
    s_add_u32 s99, s99, s96
    v_add_u32 v{X+2}, s99, v{X}
    v_add_u32 v{X}, s98, v{X}
    v_add_u32 v{X+1}, {16*73728}, v{X}
    v_add_u32 v{X+3}, {16*73728}, v{X+2}''')
def xearly(a):
    a(f's_lshl_b32 s98, s{sWV}, 12')
    for k in range(4):
        a(f's_add_u32 m0, s98, {BIAS_LDS + 2048 + 1024*k}\ns_nop 0')
        a.vm(f'buffer_load_dwordx4 v{ACC[0]+k}, {S(SX)}, 0 offen lds', 'x2')
def xback(v, t):
    o = sops(f"""s_min_u32 s3, s{sWV}, 2
    s_lshl_b32 s3, s3, 12
    s_add_u32 s3, s3, {BIAS_LDS+2048}
    v_and_b32 v{v}, 31, v{VLANE}""".replace('\n', '\n'))
    o = [V(f's_min_u32 s3, s{sWV}, 2\ns_lshl_b32 s3, s3, 12\ns_add_u32 s3, s3, {BIAS_LDS+2048}\nv_and_b32 v{v}, 31, v{VLANE}\nv_lshl_add_u32 v{v}, v{v}, 6, s3', 5),
         V(f'v_bfe_u32 v{t}, v{VLANE}, 2, 2'), V(f'v_lshl_add_u32 v{v}, v{t}, 4, v{v}'), V(f'v_lshrrev_b32 v{t}, 5, v{VLANE}'), V(f'v_lshl_add_u32 v{v}, v{t}, 3, v{v}'), FN(lambda a: a.vneed('x2'), 0)]
    for q in range(4):
        if q: o.append(V(f'v_xor_b32 v{t}, {16*q}, v{v}'))
        o += [LD(f'ds_read_b64 {ar(AX+8*hf+2*q,2)}, v{t if q else v} offset:{2048*hf}') for hf in range(2)]
    return o
def fsetup0():
    return sops(f"""s_lshl_b32 s{sFLG}, s{sB}, 1
    s_and_b32 s39, s{sC}, 1
    s_add_u32 s{sFLG}, s{sFLG}, s39
    s_mul_i32 s{sFLG}, s{sFLG}, {128*Cfg.fw}
    s_lshr_b32 s39, s{sC}, 1
    s_mul_i32 s39, s39, {4 if Cfg.fw == 1 else 128}
    s_add_u32 s{sFLG}, s{sFLG}, s39
    s_add_u32 s{sFLG}, s{sFLG}, {FL2_OFF}""")
def fsetup():
    a = E(); swap, nd, ca, cb = classes()
    a(f"""s_lshl_b32 s52, s{sI}, 2
    s_lshr_b32 s38, s{sC}, 2
    s_add_u32 s52, s52, s38             ; b'
    s_and_b32 s65, s{sC}, 3
    s_min_u32 s65, s65, 2
    s_mul_i32 s38, s{sWV}, 3
    s_add_u32 s65, s65, s38
    s_min_u32 s65, s65, 8                 ; tile c
    s_mul_i32 s39, s65, 3
    s_lshr_b32 s{sND}, {nd[0]:#x}, s39
    s_and_b32 s{sND}, s{sND}, 7
    s_lshr_b32 s{sND+1}, {nd[1]:#x}, s39
    s_and_b32 s{sND+1}, s{sND+1}, 7
    s_lshr_b32 s38, {ca:#x}, s39
    s_and_b32 s38, s38, 7
    s_lshl_b32 s{sCLS}, 1, s38
    s_lshr_b32 s38, {cb:#x}, s39
    s_and_b32 s38, s38, 7
    s_bitset1_b32 s{sCLS}, s38
    s_bitcmp1_b32 s{sROLE}, {R_FINW}
    s_cselect_b32 s{sCLS}, s{sCLS}, 0
    s_mul_i32 s39, s52, {256*Cfg.fw}
    s_add_u32 s39, s39, {FL2_OFF + 128*Cfg.fw}
    s_cmp_eq_u32 s65, 8
    s_cselect_b32 s38, 0, {128*Cfg.fw}
    s_sub_u32 s38, s39, s38
    s_mul_i32 s{sPB}, s52, 18
    s_add_u32 s{sPB}, s{sPB}, s65
    s_lshl_b32 s{sPB}, s{sPB}, 14
    s_add_u32 s{sPB}, s{sPB}, {PART_OFF}
    s_lshl_b32 s{sXO}, s65, 6
    s_bitcmp1_b32 {swap:#x}, s65
    s_cselect_b32 s{sFO}, s39, s38
    s_cselect_b32 s{sFO+1}, s38, s39
    s_cselect_b32 s{sSG}, -1.0, 1.0
    s_cselect_b32 s{sSG+1}, 1.0, -1.0
    s_cselect_b32 s38, {9*16384}, 0
    s_cselect_b32 s39, 576, 0
    s_add_u32 s{sPB+1}, s{sPB}, {9*16384}
    s_sub_u32 s{sPB+1}, s{sPB+1}, s38
    s_add_u32 s{sPB}, s{sPB}, s38
    s_add_u32 s{sXO+1}, s{sXO}, 576
    s_sub_u32 s{sXO+1}, s{sXO+1}, s39
    s_add_u32 s{sXO}, s{sXO}, s39
    s_add_u32 s{sXO+2}, s{sXO}, {16*73728}
    s_add_u32 s{sXO+3}, s{sXO+1}, {16*73728}
    s_sub_u32 s38, s{sND}, 4
    s_mul_i32 s38, s38, {16384*Cfg.fw if Cfg.fs else 0}
    s_add_u32 s{sFO}, s{sFO}, s38
    s_sub_u32 s38, s{sND+1}, 4
    s_mul_i32 s38, s38, {16384*Cfg.fw if Cfg.fs else 0}
    s_add_u32 s{sFO+1}, s{sFO+1}, s38
    s_add_u32 s{sND}, s{sND}, s{sNON}
    s_add_u32 s{sND+1}, s{sND+1}, s{sNON}
    v_and_b32 v{VFA}, 7, v{VLANE}
    v_lshlrev_b32 v{VFA}, {2 if Cfg.fw == 1 else 7}, v{VFA}
    v_lshrrev_b32 v{VO}, 2, v{VLANE}
    s_mov_b32 s38, 73728
    v_mul_lo_u32 v{VO}, v{VO}, s38
    v_and_b32 v206, 3, v{VLANE}
    v_lshl_add_u32 v{VO}, v206, 4, v{VO}
    s_mul_i32 s38, s52, 1152
    v_add_u32 v{VO}, s38, v{VO}""")
    a(f's_mul_i32 s{sFP}, s52, 36864\ns_mul_i32 s38, s{sWV}, 12288\ns_add_u32 s{sFP}, s{sFP}, s38\ns_add_u32 s{sFP}, s{sFP}, {P_OFF}')
    return sops('\n'.join(a.l))
def cls_block(a, mask, body, inv=False):
    l = a.label('CB'); a(f's_and_b32 s98, s{sCLS}, {mask}\ns_cbranch_scc{1 if inv else 0} {l}'); s0 = a.snap()
    body(a); a(f'{l}:'); a.merge(s0, a.snap())
SE = [56, 8]
def eld(hf, w):
    def f(a):
        if Cfg.fw == 1: a(f's_buffer_load_dwordx8 s[{w}:{w+7}], {S(SWS)}, s{sFO+hf} glc')
        else:
            for i in range(8): a(f's_buffer_load_dword s{w+i}, {S(SWS)}, s{sFO+hf} offset:{128*i} glc')
        a.smem = True
    return f
def etest(a, hf, w):
    for i in range(8): a(f's_sub_u32 s{w+i}, s{w+i}, s{sND+hf}')
    for i in (0, 2, 4, 6): a(f's_max_u32 s{w+i}, s{w+i}, s{w+i+1}')
    a(f's_max_u32 s{w}, s{w}, s{w+2}\ns_max_u32 s{w+4}, s{w+4}, s{w+6}\ns_max_u32 s{w}, s{w}, s{w+4}\ns_cmp_gt_u32 s{w}, 8')
def etry_c(hf, w):
    def f(a):
        a.drain()
        if Cfg.blk & (1 << hf):
            cls_block(a, 1 << hf, lambda a: eblock(a, hf, w, Cfg.slp)); return
        etest(a, hf, w)
        a(f"""s_cselect_b32 s98, {1 << hf}, 0
        s_and_b32 s98, s98, s{sCLS}
        s_mul_i32 s98, s98, 5
        s_xor_b32 s{sCLS}, s{sCLS}, s98""")
    return f
def eblock(a, hf, w, slp=None):
    lc = a.label('EC'); lk = a.label('EK')
    etest(a, hf, w)
    a(f's_cbranch_scc1 {lc}\n{lk}:')
    a.ool += [f'{lc}:', f' buffer_load_dword v{VPO}, v{VFA}, {S(SWS)}, s{sFO+hf} offen sc1', ' s_waitcnt vmcnt(0)', f' v_subrev_u32 v{VPO}, s{sND+hf}, v{VPO}', f' v_cmp_lt_u32 vcc, 8, v{VPO}', ' s_nop 1', ' s_cmp_lg_u64 vcc, 0',
              f' s_cbranch_scc0 {lk}', f' s_sub_u32 s{sP}, s{sP}, 1', f' s_cbranch_scc1 {lc}_x', f' s_sleep {slp or Cfg.slp2}', f' s_branch {lc}', f'{lc}_x:', f' s_mov_b32 s{sP}, 0', f' s_branch {lk}']
def pl_ops(hf, i0, i1, srd_=SWS):
    o = []
    for i in range(i0, i1):
        if i % 4 == 0 or i == i0: o.append(V(f's_add_u32 s3, s{sPB+hf}, {4096*(i//4)}'))
        o.append(VM(f'buffer_load_dwordx4 {vr(PTH[hf]+4*i)}, v{VL16}, {S(srd_)}, s3 offen offset:{1024*(i%4)} sc1 {NT(2)}', ('pt', hf)))
    return o
def loads_if(hf, m): return [FN(lambda a, k=k: cls_block(a, m, lambda a: emit(a, pl_ops(hf, 2*k, 2*k+2)))) for k in range(8)]
def xb_ops():
    o = [V(f'v_lshrrev_b32 v{VBI}, 5, v{VLANE}'), V(f'v_lshlrev_b32 v{VBI}, 3, v{VBI}')]
    for hf in range(2):
        o.append(V(f'v_add_u32 v1, s{sXO+hf}, v{VBI}\nv_add_u32 v1, {B2_LDS}, v1'))
        for q in range(4): o.append(LD(f'ds_read_b64 {ar(AB2+8*hf+2*q,2)}, v1 offset:{16*q}'))
    for hf in range(2):
        for i in range(2): o.append(VM(f'buffer_load_dwordx4 {ar(AX+8*hf+4*i)}, v{VO}, {S(SX)}, s{sXO+hf+2*i} offen', 'x2'))
    return o
TWL = XP_LDS
def coop_tw(wv=None, dst=None):
    t = TMP; sc = 2.0/(2048*576)
    o = f"""v_and_b32 v{t}, 31, v{VLANE}
    v_lshrrev_b32 v{t+1}, 5, v{VLANE}
    v_lshlrev_b32 v207, 2, v{t+1}
    v_sub_u32 v207, v{t}, v207
    v_lshlrev_b32 v{t}, 6, v{t}
    v_add_u32 v{t}, s52, v{t}
    s_lshr_b32 s38, {'s%d' % sWV if wv is None else wv}, 1
    s_and_b32 s39, {'s%d' % sWV if wv is None else wv}, 1
    s_lshl_b32 s8, s38, 4
    s_lshl_b32 s9, s39, 2
    s_add_u32 s8, s8, s9
    v_lshl_add_u32 v{t+1}, v{t+1}, 3, s8
    v_mul_u32_u24 v{t+1}, v{t+1}, v{t}
    s_add_u32 s8, s8, s9
    v_subrev_u32 v207, s8, v207
    s_lshl_b32 s38, s38, 10
    s_lshl_b32 s39, s39, 3
    s_add_u32 s38, s38, s39
    s_add_u32 s38, s38, {TWL if dst is None else dst}
    v_add_u32 v206, s38, v{VL16}
"""
    R = [208+i for i in range(8)]
    L = []
    for i in range(4): L.append(f'v_mad_u32_u24 v{R[i]}, v{t}, {i}, v{t+1}')
    for i in range(4): L.append(f'v_and_b32 v{R[i]}, 0x7ff, v{R[i]}')
    for i in range(4): L.append(f'v_cvt_f32_u32 v{R[i]}, v{R[i]}')
    for i in range(4): L.append(f'v_mul_f32 v{R[i]}, {f2u(1/2048):#x}, v{R[i]}')
    for i in range(4): L.append(f'v_cos_f32 v{R[4+i]}, v{R[i]}')
    for i in range(4): L.append(f'v_sin_f32 v{R[i]}, v{R[i]}')
    for i in (4,5,6,7,0,1,2,3): L.append(f'v_mul_f32 v{R[i]}, {f2u(sc):#x}, v{R[i]}')
    L += [f'v_cvt_pk_bf16_f32 v{t}, v{R[4]}, v{R[5]}', f'v_cvt_pk_bf16_f32 v{t+1}, v{R[6]}, v{R[7]}', f'v_cvt_pk_bf16_f32 v{t+2}, v{R[0]}, v{R[1]}', f'v_cvt_pk_bf16_f32 v{t+3}, v{R[2]}, v{R[3]}',
          f'v_xor_b32 v{t+4}, 0x80008000, v{t+2}', f'v_xor_b32 v{t+5}, 0x80008000, v{t+3}',
          f'v_and_b32 v{R[0]}, 1, v207', f'v_lshlrev_b32 v{R[0]}, 4, v{R[0]}', f'v_mov_b32 v{R[1]}, 0x3f80', f'v_lshlrev_b32 v{R[0]}, v{R[0]}, v{R[1]}', 'v_and_b32 v207, -2, v207',
          'v_cmp_eq_u32 vcc, 0, v207', 's_nop 1', f'v_cndmask_b32 v{t+6}, 0, v{R[0]}, vcc', 'v_cmp_eq_u32 vcc, 2, v207', 's_nop 1', f'v_cndmask_b32 v{t+7}, 0, v{R[0]}, vcc']
    ops = sops(o + '\n'.join(L))
    ops += [(8, LD(f'ds_write_b64 v206, {vr(t+2*m,2)} offset:{2048*m}')[1]) for m in range(4)]
    return ops
def tw_reads(src=None):
    return [V(f'v_add_u32 v206, {TWL if src is None else src}, v{VL16}')] + [LD(f'ds_read_b128 {ar(TW+4*i)}, v206 offset:{1024*i}') for i in range(8)]

PB = 24576
def fin_addr():
    return sops(f"""s_add_u32 s38, s{sW2K}, {PB}
    v_lshrrev_b32 v6, 5, v{VLANE}
    v_bfe_u32 v7, v{VLANE}, 2, 2
    v_lshl_add_u32 v6, v6, 3, v7
    v_lshlrev_b32 v6, 7, v6
    v_bfe_u32 v7, v{VLANE}, 1, 1
    v_lshl_add_u32 v6, v7, 6, v6
    v_bfe_u32 v7, v{VLANE}, 4, 1
    v_lshl_add_u32 v6, v7, 4, v6
    v_and_b32 v7, 1, v{VLANE}
    v_lshl_add_u32 v6, v7, 3, v6
    v_add_u32 v6, s38, v6
    v_add_u32 v7, s38, v{VL16}
    s_lshl_b32 s38, s{sWV}, 12
    v_add_u32 v3, s38, v{VL16}
    v_add_u32 v1, 73728, v3
    s_lshl_b32 s38, s{sWV}, 14
    s_add_u32 s38, s38, {PB + 6144}
    v_add_u32 v247, s38, v{VL16}
    s_mov_b32 s39, {f2u(-math.log2(math.e)):#x}""")
APF = 32
def prd(jj):
    return [LD(f'ds_read_b64_tr_b16 {ar(APF+16*jj+8*p+4*t+2*rho,2)}, v6 offset:{8192*(2*jj+t)+512*rho+32*p}', ('pf', jj))
            for t in range(2) for p in range(2) for rho in range(2)]
def final(a):
    Ea=72; Oa=88; YS=[104,208,72]; GA=[208, 104]; PK2=224; T=240; VY=7; VG=3; VG2=1; AY=16
    cv, st = part_inplace(JC[0], 3)
    brole(a, R_FINW, 'L_nfw', False); s0 = a.snap()
    la = a.l; a.l = []; a('L_nfw:')
    a('s_nop 8'); emit(a, mix(cv, st))
    brole(a, R_FIN, 'L_w3'); s3_ = a.snap()
    setflag2(a, 8, ('p',3)); a('s_branch L_fin')
    a('L_w3:'); a.restore(s3_)
    for k in range(6):
        a(f's_mov_b32 m0, {122880 + 4096*k}\ns_mov_b32 s96, {86016 - 6144 + 4096*k}\nv_lshl_add_u64 {vr(VTT,2)}, s[96:97], 0, {vr(VTB,2)}')
        for i in range(4): a.vm(f'global_load_lds_dwordx4 {vr(VTT,2)}, off offset:{1024*i}')
        if k == Cfg.w3b: a.vneed(('d', 104)); a('s_barrier')
    setflag2(a, 8, ('p',3))
    a.vdrain(); a('s_barrier\ns_branch L_fin')
    HOT.extend(a.l); a.l = la; a.restore(s0)
    lc = a.label('PR'); lk = a.label('PL')
    if not Cfg.blk & 4: a(f's_cmp_lg_u32 s11, 0\ns_cbranch_scc1 {lc}')
    else: a('s_nop 1')
    t = E(); t.nlab = 9000
    t(f'{lc}:\ns_nop 7'); emit(t, mix(cv, st))
    t.vm(poll_ins(200, 204, '0'), 'x'); t.vm(poll_ins(202, 205, '0'), 'y')
    poll_check(t, 'x', 200, 204, '0', 1); poll_check(t, 'y', 202, 205, '0', 1)
    t.drain()
    for q in range(93, 99):
        for f in plan(q, 'P'): f(t)
    t.vdrain(); emit(t, prd(0) + prd(1) + prd(2)); t.drain()
    C=lambda t: ar(TW+4*t); Sn=lambda t: ar(TW+8+4*t); N=lambda t: ar(TW+16+4*t)
    def inv(jj):
        yr=vr(YS[jj],16); yi=vr(YS[jj]+16,16); P=APF+16*jj; mf=[]
        for u in range(2):
            mf += [f'{M} {yr}, {ar(P+4*u)}, {C(u)}, {"0" if u==0 else yr}', f'{M} {yi}, {ar(P+8+4*u)}, {C(u)}, {"0" if u==0 else yi}',
                   f'{M} {yr}, {ar(P+8+4*u)}, {N(u)}, {yr}', f'{M} {yi}, {ar(P+4*u)}, {Sn(u)}, {yi}']
        return mf
    for x in inv(0): t(x)
    t(f's_nop 4\ns_branch {lk}')
    if not Cfg.blk & 4: a.ool += t.l + t.ool
    def pk(jj):
        o = []
        for q in range(4):
            o += [V(f'v_cvt_pk_bf16_f32 v{YS[jj]+8*q+i}, v{YS[jj]+8*q+2*i}, v{YS[jj]+8*q+2*i+1}') for i in range(4)]
            o.append(LD(f'ds_write_b128 v{VY}, {vr(YS[jj]+8*q)} offset:{8192*(2*jj+q%2)+1024*(q//2)}', 'yw'))
        return o
    a.need(('pf', 0))
    mf = inv(0)
    for x in mf[:2]: a(x)
    a('s_nop 2')
    interleave(a, mf[2:], mix(cv, st))
    a.need(('pf', 2))
    a(f'{lk}:')
    stamp(a, 'f1')
    if not (Cfg.blk & 2 and '1' in Cfg.sch): eld(1, 56)(a)
    eld(0, 20)(a)
    for jj in (1, 2):
        mf = inv(jj)
        for x in mf[:2]: a(x)
        a('s_nop 5')
        interleave(a, mf[2:], pk(jj-1))
    def summ(hf):
        y = vr(GA[hf], 16)
        o = [f'{M} {y}, {ar(SEL)}, {ar(AB2+8*hf)}, 0', f'{M} {y}, {ar(SEL+4)}, {ar(AB2+8*hf+4)}, {y}']
        return o + [f'{M} {y}, {ar(SEL+4*(i%2))}, {vr(PTH[hf]+4*i)}, {y}' for i in range(16)]
    VW = 204; VR = 205
    setup = sops(f"""s_mul_i32 s38, s{sWV}, 5120
    s_add_u32 s38, s38, {BIAS_LDS}
    v_and_b32 v{VW}, 31, v{VLANE}
    v_mul_u32_u24 v{VW}, 80, v{VW}
    v_add3_u32 v{VW}, v{VW}, v{VBI}, s38
    v_lshrrev_b32 v{VR}, 2, v{VLANE}
    v_mul_u32_u24 v{VR}, 80, v{VR}
    v_and_b32 v206, 3, v{VLANE}
    v_lshlrev_b32 v206, 4, v206
    v_add3_u32 v{VR}, v{VR}, v206, s38""")
    XU = [8, 120]; U0 = 24; GB = 40
    def xun(hf):
        d = vr(XU[hf], 16)
        return [f'{M} {d}, {ar(SEL)}, {ar(AX+8*hf)}, 0', f'{M} {d}, {ar(SEL+4)}, {ar(AX+8*hf+4)}, {d}']
    def sum0(t):
        y = vr(GA[0] if t == 0 else GB, 16)
        return [f'{M} {y}, {ar(SEL+4*t)}, {ar(AB2+4*t)}, 0'] + [f'{M} {y}, {ar(SEL+4*t)}, {vr(PTH[0]+8*i+4*t)}, {y}' for i in range(8)]
    def u0(): return [V(f'v_fma_f32 v{U0+i}, v{Oa+i}, s{sSG}, v{Ea+i}') for i in range(16)]
    def wr(hf, g): return LD(f'ds_write_b64 v{VW}, {vr(PK2+8*hf+g//2,2)} offset:{2560*hf+4*g}')
    def outp(hf):
        o = [LD(f'ds_read_b128 {vr(PK2+8*hf+4*i)}, v{VR} offset:{2560*hf+1280*i}', ('tr', hf, i)) for i in range(2)]
        st = [FN(lambda a, i=i: (a.need(('tr', hf, i)), a.vm(f'buffer_store_dwordx4 {vr(PK2+8*hf+4*i)}, v{VO}, {S(SOUT)}, s{sXO+hf+2*i} offen {Cfg.ofl}'))) for i in range(2)]
        return o, st
    def fin0(t):
        o = []
        for g in (8*t, 8*t+4):
            y = [(GA[0] if t == 0 else GB)+g+i for i in range(4)]; r = [T+i for i in range(4)]
            x = [f'v_mul_f32 v{r[i]}, s39, v{y[i]}' for i in range(4)] + [f'v_exp_f32 v{r[i]}, v{r[i]}' for i in range(4)]
            x += [f'v_add_f32 v{r[i]}, 1.0, v{r[i]}' for i in range(4)] + [f'v_rcp_f32 v{r[i]}, v{r[i]}' for i in range(4)]
            x += [f'v_mul_f32 v{y[i]}, v{U0+g+i}, v{y[i]}' for i in range(4)] + [f'v_fma_f32 v{r[i]}, v{r[i]}, v{y[i]}, v{XU[0]+g+i}' for i in range(4)]
            x += [f'v_cvt_pk_bf16_f32 v{PK2+g//2+i}, v{r[2*i]}, v{r[2*i+1]}' for i in range(2)]
            o += [V(z) for z in x] + [wr(0, g)]
        return o
    def rdyg(i):
        j = i//4; r = i % 4; go = 12288*j + 1024*r
        a.lds(f'ds_read_b128 {ar(AY+4*r)}, v{VY} offset:{8192*(2*(j%3) + r//2) + 2048*(j//3) + 1024*(r%2)}', ('yg', i))
        if j < 2:    a.lds(f'ds_read_b128 {ar(4*r)}, v{VG} offset:{go}', ('yg', i))
        elif j == 2: a.lds(f'ds_read_b128 {ar(4*r)}, v247 offset:{8192*(r//2) + 1024*(r%2)}', ('yg', i))
        else:        a.lds(f'ds_read_b128 {ar(4*r)}, v{VG2} offset:{go-36864}', ('yg', i))
    stamp(a, 'f2')
    def mainm(i):
        j = i//4; u = (i//2) % 2
        d = vr(Ea if (u == 1) == (j < 5) else Oa, 16)
        a(f'{M} {d}, {ar(4*(i%4))}, {ar(AY+4*(i%4))}, {"0" if i in (0,2) else d}')
    def silu(hf):
        o = []
        for g in range(0, 16, 4):
            y = [GA[hf]+g+i for i in range(4)]; t = [T+i for i in range(4)]
            o += [V(f'v_mul_f32 v{t[i]}, s39, v{y[i]}') for i in range(4)] + [V(f'v_exp_f32 v{t[i]}, v{t[i]}') for i in range(4)] + [V(f'v_add_f32 v{t[i]}, 1.0, v{t[i]}') for i in range(4)]
            o += [V(f'v_rcp_f32 v{t[i]}, v{t[i]}') for i in range(4)] + [V(f'v_mul_f32 v{y[i]}, v{t[i]}, v{y[i]}') for i in range(4)]
        return o
    def comb(hf):
        o = []
        for g in range(0, 16, 4):
            u = [248+i for i in range(4)]
            o += [V(f'v_fma_f32 v{u[i]}, v{Oa+g+i}, s{sSG+hf}, v{Ea+g+i}') for i in range(4)] + [V(f'v_fma_f32 v{u[i]}, v{u[i]}, v{GA[hf]+g+i}, v{XU[hf]+g+i}') for i in range(4)]
            o += [V(f'v_cvt_pk_bf16_f32 v{PK2+8*hf+g//2+i}, v{u[2*i]}, v{u[2*i+1]}') for i in range(2)] + [wr(hf, g)]
        return o + outp(hf)[0]
    if Cfg.f8 == 99: setflag2(a, 8, ('p',3))
    a(f's_and_b32 s98, s{sCLS}, {1|4|16}\ns_cselect_b32 s98, 64, 0\ns_or_b32 s{sCLS}, s{sCLS}, s98')
    def point(a):
        def b(a):
            l = a.label('T0'); a.drain(); etest(a, 0, 20); eld(0, 20)(a); a(f's_cbranch_scc1 {l}'); s0 = a.snap()
            emit(a, pl_ops(0, 0, 16)); a(f's_xor_b32 s{sCLS}, s{sCLS}, {64|256}\n{l}:'); a.merge(s0, a.snap())
        cls_block(a, 64, b)
    def must0(a):
        def b(a):
            l = a.label('MS'); l2 = a.label('MT')
            a(f's_mov_b32 s99, 6\n{l}:'); a.drain(); etest(a, 0, 20); a(f's_cbranch_scc0 {l2}'); eld(0, 20)(a)
            a(f's_sub_u32 s99, s99, 1\ns_cbranch_scc0 {l}'); a.drain(); eblock(a, 0, 20); a(f'{l2}:'); stamp(a, 'g2')
            emit(a, pl_ops(0, 0, 16))
        cls_block(a, 64, b)
        a.vdrain()
    pts = [int(x) for x in str(Cfg.pts).split('_')]
    noslow = Cfg.blk & 2 and '1' in Cfg.sch
    if not noslow: a(f's_bitcmp1_b32 s{sCLS}, 12\ns_cbranch_scc0 L_slow')
    s_sl = a.snap()
    a.vneed(('d', 104))
    s1 = summ(1) + xun(1) + xun(0)
    for x in s1[:2]: a(x)
    a('s_nop 2')
    interleave(a, s1[2:9], pk(2) + [V(f'v_add_u32 v{VY}, {PB}, v{VL16}')])
    interleave(a, s1[9:12], setup)
    stamp(a, 'f3')
    a.drain(); a('s_barrier')
    t = E(); etest(t, 0, 20)
    t(f's_cselect_b32 s98, 0, 64\ns_and_b32 s98, s98, s{sCLS}\ns_mul_i32 s98, s98, {1 + 4 + 128}\ns_xor_b32 s{sCLS}, s{sCLS}, s98')
    interleave(a, s1[12:], [FN(lambda a: rdyg(0)), FN(lambda a: rdyg(1)), FN(lambda a: rdyg(2))] + sops('\n'.join(t.l)) + ([FN(eld(0, 20))] if Cfg.rfi < 0 else []))
    stamp(a, 'f4')
    def mainloop(fl, start, hook):
        k2 = 0
        for i in range(36):
            if i + 3 < 36: rdyg(i+3)
            a.need(('yg', i), *([('yg', i+1)] if i % 2 == 0 and Cfg.mw else []))
            mainm(i)
            hook(i)
            while i >= start and k2 < len(fl)*(i-start+1)//(35-start) and k2 < len(fl): fl[k2][1](a); k2 += 1
            if i == 24: a('s_barrier')
    def hookf(i):
        if i % Cfg.ls == 0 and i//Cfg.ls < 4: cls_block(a, 1 << 13, lambda a: emit(a, pl_ops(0, 4*(i//Cfg.ls), 4*(i//Cfg.ls)+4)))
        if i == Cfg.rfi: eld(0, 20)(a)
        if i in pts: point(a)
    mainloop(silu(1), 1, hookf)
    stamp(a, 'f5')
    lf = a.label('FF')
    a(f's_bitcmp1_b32 s{sCLS}, 6\ns_cbranch_scc1 {lf}'); s0 = a.snap()
    a.vdrain()
    stamp(a, 'f6')
    sA = sum0(0); sB = sum0(1)
    for x in sA[:2]: a(x)
    a('s_nop 5')
    interleave(a, sA[2:], comb(1))
    interleave(a, sB[:3], u0() + outp(1)[1])
    a('s_branch L_last'); sa = a.snap()
    a(f'{lf}:'); a.restore(s0)
    point(a)
    a('s_nop 7')
    emit(a, comb(1) + u0() + outp(1)[1])
    a('L_w0:')
    stamp(a, 'g1')
    must0(a)
    stamp(a, 'f6')
    for x in sA + sB[:2]: a(x)
    a('s_nop 7'); a(sB[2])
    a('L_last:'); a.merge(sa, a.snap())
    interleave(a, sB[3:], fin0(0))
    stamp(a, 'f8b')
    a('s_nop 3')
    emit(a, fin0(1))
    stamp(a, 'f9')
    emit(a, outp(0)[0] + outp(0)[1])
    global SLOW
    SLOW = []
    if noslow: return
    la = a.l; a.l = []
    a('L_slow:'); a.restore(s_sl)
    emit(a, setup + pk(2))
    a(f'v_add_u32 v{VY}, {PB}, v{VL16}')
    stamp(a, 'f3')
    a.vneed(('d', 104)); a.drain(); a('s_barrier')
    stamp(a, 'f4')
    for i in range(3): rdyg(i)
    etest(a, 1, 56); a(f's_cselect_b32 s98, 128, 0\ns_or_b32 s{sCLS}, s{sCLS}, s98')
    def hook(i):
        if i % 2 == 0 and i < 8: cls_block(a, 128, lambda a: emit(a, pl_ops(1, 2*i, 2*i+4)), inv=True)
        if i in pts: cls_block(a, 128, point, inv=True)
        if i == 22: eld(1, 56)(a)
    mainloop([], 0, hook)
    a.drain()
    cls_block(a, 128, lambda a: (eblock(a, 1, 56), eld(0, 20)(a), emit(a, pl_ops(1, 0, 16))))
    stamp(a, 'f5')
    point(a)
    l = a.label('RD')
    a(f's_bitcmp1_b32 s{sCLS}, 8\ns_cbranch_scc1 {l}\ns_waitcnt vmcnt(0)\n{l}:\ns_waitcnt vmcnt(16)')
    stamp(a, 'g0')
    for x in summ(1) + xun(1) + xun(0): a(x)
    point(a)
    a('s_nop 5')
    emit(a, silu(1)); point(a); emit(a, comb(1) + u0() + outp(1)[1])
    assert not a.st['l']
    a('s_branch L_w0')
    SLOW = a.l; a.l = la

def build(aslist=False):
    k = NAME + '_kernel'
    body = kernel()
    if Cfg.warm:
        import stubs
        body, st, end = stubs.add_stubs(body, '.set CODE_LINES, 17\n', ('L_main', 'L_odd', 'L_dft', 'L_s3', 'L_unit', 'L_finw', 'L_hot') + (('L_s9',) if Cfg.w3 == 2 else ()) + (('TW_*',) if Cfg.tws else ()), Cfg.wmode)
        print('stubs', {k: [hex(x) for x in v] for k, v in st.items()}, 'end', end, file=sys.stderr)
    hdr = f'; @launch kernel={k} grid=(256,1,1) block=(256,1,1) lds=163840\n' if aslist else '; @launch grid=(256,1,1) block=(256,1,1) lds=163840\n'
    s = '; generated by gen/v6.py\n' + hdr + '.amdgcn_target "amdgcn-amd-amdhsa--gfx950"\n.text\n.set CODE_LINES, 26\n'
    s += kstart(k) + body + 'L_codeend:\n'
    s += '.section .rodata,"a"\n' + kdesc(k, 512, 256) + tables()
    return s
if __name__ == '__main__':
    out = sys.argv[1] if len(sys.argv) > 1 else f'cdna_kernels/{NAME}.s'
    for x in sys.argv[2:]:
        if '=' in x:
            kx, vx = x.split('='); setattr(Cfg, kx, int(vx) if re.fullmatch(r'-?\d+', vx) and kx != 'sch' else vx)
    open(out, 'w').write(build('--list' in sys.argv))
```

```python
import sys, re
from common2 import *
M = 'v_mfma_f32_32x32x16_bf16'
VL16=0; VT1=1; VLANE=2; VT3=3; VA1=4; VB1=5; VA2=6; VB2=7
XF=8; ACC=[152,184]; TMP=216; HO=224; TA=240; VBI=246; VC0=247; VFL=248; VPO=250; VTB=252; VTT=254
HF=32; TW=176
SX,SW1,SW2,SWS,SWR,SWI,SOUT,SB,SDBG = 4,8,12,16,20,24,28,32,36
sWV,sI,sC,sB,sROLE,sNON = 40,41,42,43,44,45
sO1=46; sO2=55; sW2K=64; sHS=65; sPS=66; sFLG=67; sT=68; sT2=69; sGC1=70; sP=71
sRHO=39
sX0=96
R_ODD,R_DFT,R_SMID,R_UNIT,R_FIN,R_FINW,R_PATCH = 0,1,2,3,4,5,6
PF=3; NB=4
GC0 = -2.0*math.log2(math.e)*math.sqrt(2/math.pi); GC1 = GC0*0.044715
BIAS_LDS = 147456
GS = 15/32
B2_LDS = 163840 - 2048
class Cfg:
    stamps=False; st='1,2,3,4,5,6,7,8,9,10'; xa=3; lg=1; pm=340; f8=99; w3d=1; f2o=44; e2nd=22; blk=6; rfi=10; f6=54; p9=30; sch='-1x1'; ta=22; tws=1; m0=10; sn=0; lo=0; slp3=1; twe=1; pre=2; wl='_13'; hd=0; nonorm=0; eo=1; hf=0; j1=1; tw3=0; nl=2; wsl=0; bf=0; fp0=7; be=1; ce=0; f9=0; nso=1; ct=1; xl=9; pts='25'; mw=1; cp=0; fs=1; fw=1; pd=18; ls=3; rf=1; w3b=0; ecl=1; ge=37; c5=24; pe=23; e8=6; nt=0; f5h=76; noclr=0; t1=5; t2=99; ne=9; c0=20; b2=1; pz1=0; pz2=4; sd=4; tw1=1; warm=1; wmode='execz'; clk=0; xe=1; fp=3; f7=60; gs=1; l9=46; l10=34; mg=0; tn=108; w2k=99; rots=1; np=6; te=0; pt='w2,b1,b2,wr,wi,dbg'; w3=1; xo=1; f16=1; gs0=1; e2=50; l2=0; t9=30; t10=8; pfg=44; ofl='sc1'; h8=44; f4=26; c4=20; f5=14; p8=60; fg=24; pg=52; cg=8; tb=4; normin=0; rx=8; rota=1; rotb=1; touch='x2,w,tab,code'; spin=100000; slp=8; slp2=2; rr=1; wt=1
def h2(x):
    u = struct.unpack('<H', struct.pack('<e', x))[0]; return u | u << 16
def S(b): return f's[{b}:{b+3}]'
def stamp(a, nm):
    if not Cfg.stamps: return
    L = ['0'] + Cfg.st.split(',') + ['11']
    nm = str(nm)
    if nm in L:
        i = L.index(nm) if nm != '11' else 11
        a(f'{"s_memtime" if Cfg.clk else "s_memrealtime"} s[{72+2*i}:{73+2*i}]')
def stamp_flush(a, n):
    if not Cfg.stamps: return
    a.vdrain(); stamp(a, n); n += 1
    a(f'''s_waitcnt lgkmcnt(0)
    s_mov_b32 s{SWS+2}, {STAMP_OFF + (1<<20)}
    v_mov_b32 v1, 0''')
    for i in range(n): a(f'v_writelane_b32 v1, s{72+2*i}, {i}')
    a(f'v_writelane_b32 v1, s53, 12\nv_writelane_b32 v1, s11, 13\nv_writelane_b32 v1, s{sP}, 14')
    a(f'''s_lshl_b32 s{sT}, s2, 3
    s_add_u32 s{sT}, s{sT}, s{sWV}
    s_lshl_b32 s{sT}, s{sT}, 6
    s_add_u32 s{sT}, s{sT}, {STAMP_OFF}
    v_lshlrev_b32 v3, 2, v{VLANE}
    s_mov_b64 exec, 0xffff
    buffer_store_dword v1, v3, {S(SWS)}, s{sT} offen
    s_mov_b64 exec, -1''')
def brole(a, bit, lab, ifset=True):
    a(f's_bitcmp1_b32 s{sROLE}, {bit}\ns_cbranch_scc{1 if ifset else 0} {lab}')

def V(s, c=1): return (c, lambda a: a(s))
def VM(s, tag=None): return (1, lambda a: a.vm(s, tag))
def LD(s, tag=None): return (1, lambda a: a.lds(s, tag))
def FN(f, c=1): return (c, f)
def SVM(pre, s, tag=None): return (1, lambda a: (a(pre), a.vm(s, tag)))
def emit(a, ops):
    for _, f in ops: f(a)

def sops(txt):
    L = [x.split(';')[0].strip() for x in txt.split('\n')]; L = [x for x in L if x]
    o = []; cur = []
    for i, x in enumerate(L):
        cur.append(x)
        nx = L[i+1] if i+1 < len(L) else ''
        if nx.startswith(('s_cselect', 's_addc', 's_subb', 'v_cndmask', 's_nop')) or x.startswith(('s_nop', 'v_cmp')): continue
        o.append(V('\n'.join(cur), len(cur))); cur = []
    return o
def mix(x, y):
    o = []; k = 0
    for i, e in enumerate(x):
        o.append(e)
        t = len(y)*(i+1)//len(x)
        while k < t: o.append(y[k]); k += 1
    return o
def gelu_ops(acc, job, nb=None, sd=0):
    ops = []; G = 4; held = []
    for g in range(0, 32, G):
        t = [TMP + (g//G % 2)*4 + i for i in range(G)]
        x = [acc + g + i for i in range(G)]
        if not Cfg.f16:
            for i in range(G): ops.append(V(f'v_mul_f32 v{t[i]}, v{x[i]}, v{x[i]}'))
            for i in range(G): ops.append(V(f'v_fma_f32 v{t[i]}, v{t[i]}, s{sGC1}, v{VC0}'))
            for i in range(G): ops.append(V(f'v_mul_f32 v{t[i]}, v{t[i]}, v{x[i]}'))
            for i in range(G): ops.append(V(f'v_exp_f32 v{t[i]}, v{t[i]}', 2))
            for i in range(G): ops.append(V(f'v_add_f32 v{t[i]}, 1.0, v{t[i]}'))
            for i in range(G): ops.append(V(f'v_rcp_f32 v{t[i]}, v{t[i]}', 2))
            for i in range(G): ops.append(V(f'v_mul_f32 v{t[i]}, v{t[i]}, v{x[i]}'))
        else:
            HI = 'dst_sel:WORD_1 dst_unused:UNUSED_PRESERVE src0_sel:WORD_1'
            t = [TMP + i for i in range(4)]; u = [TMP + 4, TMP + 5]; w = [TMP + 6, TMP + 7]
            for i in range(2): ops.append(V(f'v_cvt_pk_f16_f32 v{u[i]}, v{x[2*i]}, v{x[2*i+1]}'))
            if Cfg.gs:
                for i in range(2): ops.append(V(f'v_pk_fma_f16 v{w[i]}, v{u[i]}, v{u[i]}, s{sGC1}'))
                for i in range(2): ops.append(V(f'v_pk_mul_f16 v{u[i]}, v{w[i]}, v{u[i]} neg_lo:[1,0] neg_hi:[1,0]'))
            else:
                for i in range(2): ops.append(V(f'v_pk_mul_f16 v{w[i]}, v{u[i]}, v{u[i]}'))
                for i in range(2): ops.append(V(f'v_pk_fma_f16 v{w[i]}, v{w[i]}, s{sGC1}, v{VC0}'))
                for i in range(2): ops.append(V(f'v_pk_mul_f16 v{u[i]}, v{w[i]}, v{u[i]}'))
            for i in range(2): ops.append(V(f'v_exp_f16 v{w[i]}, v{u[i]}', 2))
            for i in range(2): ops.append(V(f'v_exp_f16_sdwa v{w[i]}, v{u[i]} {HI}', 2))
            for i in range(2): ops.append(V(f'v_pk_fma_f16 v{u[i]}, v{w[i]}, v{VC0}, v{VC0}' if Cfg.gs else f'v_pk_add_f16 v{u[i]}, v{w[i]}, 1.0 op_sel_hi:[1,0]'))
            for i in range(2): ops.append(V(f'v_rcp_f16 v{t[2*i]}, v{u[i]}', 2))
            for i in range(2): ops.append(V(f'v_rcp_f16_sdwa v{t[2*i+1]}, v{u[i]} dst_sel:WORD_0 dst_unused:UNUSED_PAD src0_sel:WORD_1', 2))
            for i in (0, 2, 1, 3): ops.append(V(f'v_fma_mix_f32 v{t[i]}, v{x[i]}, v{t[i]}, 0 op_sel_hi:[0,1,0]'))
        if nb is not None: ops.append((2, lambda a, g=g: a.lds(f'ds_read_b128 {vr(acc+g)}, v{VBI} offset:{256*nb + 8*g}', 'bias')))
        for i in range(0, G, 2): ops.append(V(f'v_cvt_pk_bf16_f32 v{HO + (g+i)//2}, v{t[i]}, v{t[i+1]}'))
        for i in range(0, G, 2): ops.append(V(f'v_accvgpr_write_b32 a{HF + 16*job + (g+i)//2}, v{HO + (g+i)//2}'))
        if g % 8 == 4:
            q = g // 8
            if q == 0: ops.append(V(f's_add_u32 s{sT2}, s{sHS}, {4096*job}'))
            held.append(VM(f'buffer_store_dwordx4 {vr(HO+4*q)}, v{VL16}, {S(SWS)}, s{sT2} offen offset:{1024*q} sc1', ('h', job)))
        if held and g//4 >= sd: ops.append(held.pop(0))
    return ops
def part_ops(acc, lam):
    ops = []
    for q in range(4):
        if q % 2 == 0: ops.append(V(f's_add_u32 s{sT2}, s{sPS}, {16384*(2*lam + q//2)}' if lam != 9 else f's_add_u32 s{sT2}, s{sL9}, {16384*(q//2)}'))
        for i in range(4): ops.append(V(f'v_cvt_pk_bf16_f32 v{HO+4*q+i}, v{acc+8*q+2*i}, v{acc+8*q+2*i+1}'))
        ops.append(VM(f'buffer_store_dwordx4 {vr(HO+4*q)}, v{VL16}, {S(SWS)}, s{sT2} offen offset:{1024*(q%2)} sc1', ('p', lam)))
    return ops
def clear_ops(sreg, imms, tag, r=HO):
    if Cfg.noclr: return [V('s_nop 0')]
    ops = [V(f'v_mov_b32 v{r+i}, -1' if r > 0 else f'v_accvgpr_write_b32 a{-r+i}, -1') for i in range(4)]
    ops = [(0, f) for _, f in ops]
    for im in imms:
        for k in range(2): ops.append(SVM(f's_add_u32 s3, s{sreg}, {im}', f'buffer_store_dwordx4 {vr(r) if r > 0 else ar(-r)}, v{VL16}, {S(SWS)}, s3 offen offset:{1024*k} sc1', tag))
    return ops
def sent_check(a, tag, regs, t, reload_lines, probe=None, slp=None):
    lc = a.label('SC'); ls = a.label('SS'); lk = a.label('SK')
    a.vneed(tag)
    a(f'{lc}:')
    rs = []
    for i, r in enumerate(regs):
        if r[0] == 'a': a(f'v_accvgpr_read_b32 v{t+i}, {r}'); rs.append(f'v{t+i}')
        else: rs.append(r)
    a(f'v_max_u32 v{t}, {rs[0]}, {rs[1]}')
    for i in range(2, len(rs), 2): a(f'v_max3_u32 v{t}, v{t}, {rs[i]}, {rs[i+1]}')
    a(f'v_cmp_eq_u32 vcc, -1, v{t}\ns_nop 1\ns_cmp_lg_u64 vcc, 0\ns_cbranch_scc1 {ls}\n{lk}:')
    pr = []
    if probe:
        pr = [' ' + x for x in probe[0]] + [f' v_and_b32 v{t+1}, {probe[1]}, v{VLANE}', f' v_lshlrev_b32 v{t+1}, 10, v{t+1}', f' buffer_load_dword v{t}, v{t+1}, {S(SWS)}, s3 offen offset:1020 sc1',
              ' s_waitcnt vmcnt(0)', f' v_cmp_eq_u32 vcc, -1, v{t}', ' s_nop 1', ' s_cmp_lg_u64 vcc, 0', f' s_cbranch_scc1 {ls}']
    a.ool += [f'{ls}:', f' s_sub_u32 s{sP}, s{sP}, 1', f' s_cbranch_scc1 {ls}_x', f' s_sleep {slp or (Cfg.slp2 if probe else Cfg.slp)}'] + pr + [x if x.endswith(':') else ' ' + x for x in reload_lines] + [' s_waitcnt vmcnt(0)', f' s_branch {lc}',
              f'{ls}_x:', f' s_mov_b32 s{sP}, 0', f' s_branch {lk}']
def lines_of(ops):
    t = E(); emit(t, ops); return [x.strip() for x in t.l]
def norm_ops(u):
    if Cfg.nonorm: return [V(f'v_mov_b32 v{HO}, v{HO}')]*(24 if u >= 18 - Cfg.nl - 1 else 2)
    T = HO; r = XF + 8*u; ops = []
    for i in range(8): ops.append(V(f'v_dot2_f32_bf16 v{T+i}, v{r+i}, v{TMP+4}, v{TMP}'))
    for i in range(8): ops.append(V(f'v_dot2_f32_bf16 v{T+8+i}, v{r+i}, v{TMP+5}, v{TMP}'))
    for i in range(8): ops.append(V(f'v_cvt_pk_bf16_f32 v{r+i}, v{T+2*i}, v{T+2*i+1}'))
    return ops
def setflag(a, stage, *tags, off=None):
    a(f'v_mov_b32 v{VFL+1}, {stage}')
    a.vneed(*tags)
    a('s_mov_b64 exec, 1')
    a.vm(f'buffer_store_dwordx2 {vr(VFL,2)}, off, {S(SWS)}, s{sFLG if off is None else off} sc1')
    a('s_mov_b64 exec, -1')
def setflag2(a, stage, *tags):
    if stage == 8 and Cfg.sn: return
    a(f'v_add_u32 v{VFL+1}, {stage-1}, v{VFL}')
    a(f's_add_u32 s3, s{sFLG}, {(stage-5)*16384*Cfg.fw if Cfg.fs else 0}')
    a.vneed(*tags)
    a('s_mov_b64 exec, 1')
    a.vm(f'buffer_store_dword v{VFL+1}, off, {S(SWS)}, s3 sc1')
    a('s_mov_b64 exec, -1')
def poll_ins(p, voff, soff): return f'buffer_load_dwordx2 {vr(p,2)}, v{voff}, {S(SWS)}, {soff} offen sc1' if voff is not None else f'buffer_load_dwordx2 {vr(p,2)}, off, {S(SWS)}, {soff} sc1'
def poll_test(a, p, need):
    a(f'''v_subrev_u32 v{p+1}, {need}, v{p+1}
    v_cmp_ne_u32 vcc, s{sNON}, v{p}
    v_cmp_lt_u32 s[{sX0+4}:{sX0+5}], 60, v{p+1}
    s_nop 1
    s_or_b64 vcc, vcc, s[{sX0+4}:{sX0+5}]''')
SPL = 0
def spoll_i(a): a(f's_buffer_load_dwordx2 s[{SPL}:{SPL+1}], {S(SWS)}, s34 glc'); a.smem = True
def spoll_c(need):
    def f(a):
        lc = a.label('QC'); lk = a.label('QK')
        a.drain()
        a(f"""s_sub_u32 s{SPL+1}, s{SPL+1}, {need}
        s_cmp_lt_u32 s{SPL+1}, 60
        s_cselect_b32 s{SPL}, s{SPL}, 0
        s_cmp_lg_u32 s{SPL}, s{sNON}
        s_cbranch_scc1 {lc}
        {lk}:""")
        t = E(); poll_test(t, VPO, need)
        a.ool += [f'{lc}:', ' ' + poll_ins(VPO, None, 's34'), ' s_waitcnt vmcnt(0)'] + t.l + [f' s_cbranch_scc0 {lk}', f' s_sub_u32 s{sP}, s{sP}, 1', f' s_cbranch_scc1 {lc}_x', f' s_sleep {Cfg.slp}', f' s_branch {lc}',
                  f'{lc}_x:', f' s_mov_b32 s{sP}, 0', f' s_branch {lk}']
    f.drains = True
    return f
def dodrain(a): a.drain()
dodrain.drains = True
def poll_check(a, tag, p, voff, soff, need):
    lc = a.label('PC'); ls = a.label('PS'); lk = a.label('PK')
    a.vneed(tag)
    a(f'{lc}:'); poll_test(a, p, need)
    a(f's_cbranch_scc1 {ls}\n{lk}:')
    a.ool += [f'{ls}:', f' s_sub_u32 s{sP}, s{sP}, 1', f' s_cbranch_scc1 {ls}_x', f' s_sleep {Cfg.slp}', ' ' + poll_ins(p, voff, soff), ' s_waitcnt vmcnt(0)', f' s_branch {lc}',
              f'{ls}_x:', f' s_mov_b32 s{sP}, 0', f' s_branch {lk}']

def slot(q): return (q % 18) * 8192
def rd_ops(kind, q, kk, n):
    fb = (n % NB) * 8; s = slot(q) + kk*2048
    if kind == 'dft':
        b = s // 49152; off = s % 49152
        return [(f'ds_read_b128 {ar(fb)}, v{VPO+b} offset:{off}', ('f', n)), (f'ds_read_b128 {ar(fb+4)}, v{VPO+b} offset:{off+1024}', ('f', n))]
    b = s // 49152; off = s % 49152; L = TA + 2*b; R = L + 1
    return [(f'ds_read_b64_tr_b16 {ar(fb,2)}, v{L} offset:{off}', ('f', n)), (f'ds_read_b64_tr_b16 {ar(fb+2,2)}, v{L} offset:{off+512}', ('f', n)),
            (f'ds_read_b64_tr_b16 {ar(fb+4,2)}, v{R} offset:{off}', ('f', n)), (f'ds_read_b64_tr_b16 {ar(fb+6,2)}, v{R} offset:{off+512}', ('f', n))]
def dma_buf(q, srd_, va, vb, sreg, imm, fl='', srd2=None):
    if Cfg.nso and imm <= 1024 and slot(q) >= imm:
        def f0(a):
            a(f's_add_u32 m0, s{sW2K}, {slot(q) - imm}')
            a.m0fix()
            a.vm(f'buffer_load_dwordx4 v{va}, {S(srd_)}, s{sreg} offen offset:{imm} {fl} lds', ('d', q))
        def f1(a): a.vm(f'buffer_load_dwordx4 v{vb}, {S(srd2 or srd_)}, s{sreg} offen offset:{1024+imm} {fl} lds', ('d', q))
        return [f0, f1]
    def f0(a):
        a(f's_add_u32 m0, s{sW2K}, {slot(q)}\ns_add_u32 s{sT}, s{sreg}, {imm}')
        a.vm(f'buffer_load_dwordx4 v{va}, {S(srd_)}, s{sT} offen {fl} lds', ('d', q))
    def f1(a): a.vm(f'buffer_load_dwordx4 v{vb}, {S(srd2 or srd_)}, s{sT} offen offset:1024 {fl} lds', ('d', q))
    return [f0, f1]
def dma_tab(q, imm=None, sreg=None):
    def f0(a):
        a(f's_add_u32 m0, s{sW2K}, {slot(q)}')
        if sreg is None: a(f's_mov_b32 s{sX0}, {imm}')
        else: a(f's_lshl_b32 s{sX0}, s{sreg}, 13\ns_add_u32 s{sX0}, s{sX0}, s{sPS}')
        a(f'v_lshl_add_u64 {vr(VTT,2)}, s[{sX0}:{sX0+1}], 0, {vr(VTB,2)}')
        a.vm(f'global_load_lds_dwordx4 {vr(VTT,2)}, off', ('d', q))
    def f1(a): a.vm(f'global_load_lds_dwordx4 {vr(VTT,2)}, off offset:1024', ('d', q))
    return [f0, f1]
def dma_alt(bit, ifset, ifclr, cond=None):
    def f0(a):
        l1 = a.label('DA'); l2 = a.label('DB')
        if not ifclr:
            brole(a, bit, l1, False); s0 = a.snap()
            for f in ifset: f(a)
            a(f'{l1}:'); a.merge(s0, a.snap()); return
        brole(a, bit, l1)
        s0 = a.snap()
        if ifclr:
            for f in ifclr: f(a)
        s1 = a.snap()
        if ifset:
            a(f's_branch {l2}\n{l1}:'); a.restore(s0)
            for f in ifset: f(a)
            a(f'{l2}:'); a.merge(s1, a.snap())
        else:
            a(f'{l1}:'); a.merge(s0, s1)
    return [f0, lambda a: None]
GORD = [1,2,3,4,0,5,6,7,8]; GE = [1,2,3,0,5,4,6,7,8]
class _EO:
    def __getitem__(self, i):
        L = [(6,0),(1,1),(7,0),(2,1),(3,1),(4,1),(0,1),(5,1),(6,1),(7,1),(8,1)]; L.insert(Cfg.e8, (8,0)); return L[i]
EORD = _EO()
def NT(b): return 'nt' if Cfg.nt & b else ''
def w1p(q): return dma_buf(q, SW1, VA1, VB1, sO1 + q % 9, 128*(q//9), NT(4))
def w2p(q, g, lam): return dma_buf(q, SW2, VA2, VB2, sO2 + g, 128*lam)
sSV, sFP, sL9 = 46, 54, 10
HOT = []
def plan(q, role=None):
    if q < 27 and role == 'N': return []
    if q < 9 and role == 'D': return dma_tab(q, sreg=sO2+q)
    if q < 45: return w1p(q)
    if q < 72:
        assert role
        if role == 'O':
            return w2p(q, GORD[(q-45)//2], 4 + 2*((q-45) % 2)) if q < 63 else w2p(q, GORD[q-63], 5)
        if q < 51: return w2p(q, GE[q-45], 0)
        if q < 54: return dma_tab(q, TABF_SZ + TABG_SZ + 8192*(q-51))
        if q < 57: return dma_buf(q, SWS, VL16, VL16, sSV, 8192*(q-54), 'sc1 ' + NT(1))
        if q < 60: return []
        return w2p(q, *EORD[q-60])
    if q < 90: return w2p(q, GORD[(q-72) % 9], 2 + (q-72)//9)
    k = q - 90
    if k < 3: return dma_tab(q, 8192*k)
    if k < 9:
        pp = dma_buf(q, SWS, VL16, VL16, sFP, 2048*(k-3), 'sc1')
        if role == 'P': return pp
        def f(a):
            l1 = a.label('DA'); l2 = a.label('DB')
            a(f's_cmp_lg_u32 s11, 0\ns_cbranch_scc1 {l1}')
            for g in pp: g(a)
            a(f'{l2}:')
            t = E(); t(f'{l1}:')
            for g in dma_tab(q, 24576 - 6144 + 2048*(k-3)): g(t)
            t(f's_branch {l2}'); HOT.extend(t.l)
        return [f]
    return dma_tab(q, 8192*k - 36864)

def bias_ops(acc, job): return [LD(f'ds_read_b128 {vr(acc+4*q)}, v{VBI} offset:{256*job + 32*q}', 'bias') for q in range(8)]
def bias_reads(a, acc, job):
    for q in range(8): a.lds(f'ds_read_b128 {vr(acc+4*q)}, v{VBI} offset:{256*job + 32*q}', 'bias')

def run(a, q0, npc, kind, mf, fills, nxt='tr', nextbias=None, norm=False, events=None, role=None, pause=None):
    events = events or {}
    N = 4*npc; n0 = 4*q0
    held = []
    dq = []
    fs = [[ops, s, e, 0, 0, sum(c for c, _ in ops)] for ops, s, e in fills]
    for i in range(N):
        n = n0 + i; q = q0 + i//4; kk = i % 4
        j = i + PF; qn = q0 + j//4
        k2 = kind if j < N else nxt
        r = rd_ops(k2, qn, j % 4, n + PF) if k2 else []
        fb = (n % NB) * 8
        if kk == 0:
            for qq in events.get(('dma0', q), []) + [q + 12] + events.get(('dma', q), []): dq += plan(qq, role)
        paused = pause and pause[0] <= i//4 < pause[0] + pause[1]
        for h in range(2):
            gap = 2*i + h
            if h == 0 and kk == 0: stamp(a, f'q{q}')
            stamp(a, f'g{q0}_{gap}')
            for f in events.get(('pre', gap), []): f(a)
            if h == 0: a.need(('f', n), *(['bias'] if i == 0 else []), *([('f', n+1)] if Cfg.w2k and i % 2 == 0 and q < Cfg.w2k and not a.smem else []))
            acc, op, zero = mf(i//4, kk, h)
            d = vr(acc, 16) if acc >= 0 else ar(-acc, 16); c = '0' if zero else d
            if kind == 'dft': a(f'{M} {d}, {op}, {ar(fb+4*h)}, {c}')
            else:             a(f'{M} {d}, {ar(fb+4*h)}, {op}, {c}')
            if h == 0 and j % 12 == 0 and k2 and (4*q0) % 12 == 0:
                a.vneed(('d', qn), ('d', qn+1), ('d', qn+2), *events.get(('bar', qn), [])); a('s_barrier')
            if h == 0 and j == N and nextbias is not None:
                assert all(f[3] == len(f[0]) for f in fs)
                bias_reads(a, *nextbias)
            m = len(r)//2
            dr = lambda g: Cfg.hd and any(getattr(f, 'drains', False) for f in events.get(g, []))
            held += r[h*m:(h+1)*m]
            if not (dr(gap) or dr(gap+1) or (Cfg.hd > 1 and dr(gap+2))):
                for ins, t in held: a.lds(ins, t)
                held = []
            if dq and not paused and ((h == 1 and (kk % 2 == 0 or len(dq) > 2)) or (len(dq) > N - i - 1)): dq.pop(0)(a)
            if norm and i//2 + 1 < 18:
                emit(a, norm_ops(i//2 + 1)[6*(gap % 4):6*(gap % 4)+6])
            for f in fs:
                if gap >= f[1]:
                    target = f[5] * min(1.0, (gap - f[1] + 1) / (f[2] - f[1]))
                    while f[3] < len(f[0]) and f[4] + f[0][f[3]][0]/2 <= target:
                        f[0][f[3]][1](a); f[4] += f[0][f[3]][0]; f[3] += 1
            for f in events.get(gap, []): f(a)
            if dr(gap):
                for ins, t in held: a.lds(ins, t)
                held = []
    assert all(f[3] == len(f[0]) for f in fs) and not dq
def only(bit, f):
    def g(a):
        l = a.label('ON'); brole(a, bit, l, False); s0 = a.snap()
        f(a); a(f'{l}:'); a.merge(s0, a.snap())
    return g
def masked(test, f):
    def g(a):
        a(test + '\ns_cselect_b64 exec, -1, 0'); s0 = a.snap()
        f(a); a('s_mov_b64 exec, -1'); a.merge(s0, a.snap())
    return g
def rolem(bit, f): return masked(f's_bitcmp1_b32 s{sROLE}, {bit}', f)
def rolem_ops(bit, ops, n): return [FN(rolem(bit, lambda a, x=ops[i:i+n]: emit(a, x))) for i in range(0, len(ops), n)]
def only_ops(bit, ops, n):
    return [FN(only(bit, lambda a, x=ops[i:i+n]: emit(a, x))) for i in range(0, len(ops), n)]
def first_reads(a, kind, q):
    for ks in range(PF):
        for ins, t in rd_ops(kind, q, ks, 4*q + ks): a.lds(ins, t)
def interleave(a, mf, ops, start=0):
    n = len(mf) - start; k = 0
    for i, x in enumerate(mf):
        a(x)
        if i >= start:
            t = len(ops) * (i - start + 1) // n
            while k < t: ops[k][1](a); k += 1

def twiddle_ops(dst, t, sym, sb, scale=None):
    o = [f'v_and_b32 v{t}, 31, v{VLANE}', f'v_lshrrev_b32 v{t+1}, 5, v{VLANE}']
    if sym == 'fwd':
        o += [f'v_lshlrev_b32 v{t+1}, 8, v{t+1}', f'v_add_u32 v{t+1}, s{sb}, v{t+1}', f'v_mul_u32_u24 v{t+1}, v{t+1}, v{t}', f'v_lshlrev_b32 v{t}, 6, v{t}']
        mult = lambda tt, e: 16*tt + (e & 3) + 8*(e >> 2)
    else:
        o += [f'v_lshlrev_b32 v{t}, 6, v{t}', f'v_add_u32 v{t}, s{sb}, v{t}', f'v_lshlrev_b32 v{t+1}, 3, v{t+1}', f'v_mul_u32_u24 v{t+1}, v{t+1}, v{t}']
        mult = lambda tt, e: 16*tt + e
    for tt in range(2):
        for e in range(0, 8, 2):
            for i in range(2): o.append(f'v_mad_u32_u24 v{t+2+i}, v{t}, {mult(tt, e+i)}, v{t+1}')
            for i in range(2): o.append(f'v_and_b32 v{t+2+i}, 0x7ff, v{t+2+i}')
            for i in range(2): o.append(f'v_cvt_f32_u32 v{t+2+i}, v{t+2+i}')
            for i in range(2): o.append(f'v_mul_f32 v{t+2+i}, {f2u(1/2048):#x}, v{t+2+i}')
            for i in range(2): o.append(f'v_cos_f32 v{t+4+i}, v{t+2+i}')
            for i in range(2): o.append(f'v_sin_f32 v{t+2+i}, v{t+2+i}')
            if scale:
                for i in (2,3,0,1): o.append(f'v_mul_f32 v{t+2+i}, {f2u(scale):#x}, v{t+2+i}')
            d = 4*tt + e//2
            o += [f'v_cvt_pk_bf16_f32 v{t+4}, v{t+4}, v{t+5}', f'v_cvt_pk_bf16_f32 v{t+2}, v{t+2}, v{t+3}', f'v_accvgpr_write_b32 a{dst+d}, v{t+4}',
                  f'v_xor_b32 v{t+3}, 0x80008000, v{t+2}', f'v_accvgpr_write_b32 a{dst+8+d}, v{t+2}', f'v_accvgpr_write_b32 a{dst+16+d}, v{t+3}']
    return [V(x) for x in o]

def prologue(a):
    rx = Cfg.rx; cx = 32//rx; nxc = 16//cx
    a(f"""s_cmpk_ge_u32 s2, 256
    s_cbranch_scc1 L_end
    s_load_dwordx16 s[44:59], s[0:1], 0
    s_load_dwordx4 s[60:63], s[0:1], 64
    s_load_dwordx2 s[64:65], s[0:1], 80
    s_memrealtime s[66:67]""")
    stamp(a, 0)
    a(f"""s_getpc_b64 s[100:101]
    L_pcref:
    s_lshr_b32 s97, s2, 3
    s_mul_i32 s97, s97, CODE_LINES*128
    v_lshlrev_b32 v{VPO}, 7, v0
    v_add_u32 v{VPO}, s97, v{VPO}
    v_min_u32 v{VPO}, L_codeend-L_pcref-4, v{VPO}
    v_mov_b32 v{VPO+1}, 0
    v_lshl_add_u64 {vr(VPO,2)}, s[100:101], 0, {vr(VPO,2)}
    v_cmp_gt_u32 vcc, CODE_LINES, v0
    s_and_saveexec_b64 s[98:99], vcc
    s_cbranch_execz L_noct
    global_load_dword a255, {vr(VPO,2)}, off
    L_noct:
    s_mov_b64 exec, -1
    s_and_b32 s96, s2, 7
    s_lshr_b32 s97, s2, 3
    s_and_b32 s{sC}, s96, {nxc-1}
    s_mul_i32 s{sC}, s{sC}, {cx}
    s_and_b32 s98, s97, {cx-1}
    s_add_u32 s{sC}, s{sC}, s98
    s_lshr_b32 s{sI}, s96, {nxc.bit_length()-1}
    s_mul_i32 s{sI}, s{sI}, {rx}
    s_lshr_b32 s98, s97, {cx.bit_length()-1}
    s_add_u32 s{sI}, s{sI}, s98
    v_lshrrev_b32 v1, 6, v0
    v_and_b32 v{VLANE}, 63, v0
    v_mov_b32 v{VTT}, v0
    v_readfirstlane_b32 s{sWV}, v1
    v_lshlrev_b32 v{VL16}, 4, v{VLANE}
    v_lshrrev_b32 v1, 3, v{VLANE}
    v_and_b32 v3, 7, v{VLANE}
    v_lshrrev_b32 v4, 1, v1
    v_xor_b32 v3, v3, v4
    s_mov_b32 s96, 73728
    v_mul_lo_u32 v1, v1, s96
    v_lshl_add_u32 v144, v3, 4, v1
    v_xor_b32 v145, 64, v144
    v_add_u32 v145, {8*73728-1024}, v145
    v_add_u32 v146, {16*73728}, v144
    v_add_u32 v147, {16*73728}, v145
    s_lshl_b32 s{sB}, s{sI}, 2
    s_add_u32 s{sB}, s{sB}, s{sWV}
    s_mul_i32 s96, s{sI}, {Cfg.rota}
    s_lshr_b32 s97, s{sC}, {Cfg.rots}
    s_mul_i32 s97, s97, {Cfg.rotb}
    s_add_u32 s96, s96, s97
    s_mul_i32 s97, s96, 7282
    s_lshr_b32 s97, s97, 16
    s_mul_i32 s97, s97, 9
    s_sub_u32 s96, s96, s97         ; rot
    s_mul_i32 s3, s{sB}, 1152
    s_lshl_b32 s99, s{sWV}, 11
    s_getpc_b64 s[100:101]
    s_add_u32 s100, s100, tabF@rel32@lo+4
    s_addc_u32 s101, s101, tabF@rel32@hi+12
    s_mov_b32 s{SX+2}, {2048*1152}
    s_mov_b32 s{SX+3}, 0x20000
    s_lshl_b32 s{sT}, s96, 7
    s_add_u32 s{sT}, s{sT}, s3
    s_mov_b32 m0, s99""")
    XA = HO
    a(f'''v_bfe_u32 v1, v{VLANE}, 3, 2            ; r
    v_lshrrev_b32 v3, 5, v{VLANE}           ; rho
    v_and_b32 v{VB1}, 2, v1
    v_lshlrev_b32 v{VB1}, 1, v{VB1}
    v_and_b32 v{VB2}, 7, v{VLANE}
    v_xor_b32 v{VB2}, v{VB2}, v{VB1}
    v_lshlrev_b32 v{VB2}, 4, v{VB2}
    v_lshl_add_u32 v1, v3, 3, v1            ; 8rho+r
    s_lshr_b32 s70, s{sWV}, 1
    s_lshl_b32 s70, s70, 5
    s_and_b32 s71, s{sWV}, 1
    s_add_u32 s70, s70, s71
    v_lshlrev_b32 v3, 1, v1
    v_add_u32 v3, s70, v3
    v_mul_u32_u24 v3, 9216, v3
    v_add_u32 v{VA1}, v3, v{VB2}
    v_add_u32 v{VB1}, {8*9216-1024}, v{VA1}
    s_lshl_b32 s70, s{sWV}, 4
    v_add_u32 v1, s70, v1
    v_mul_u32_u24 v1, 1152, v1
    v_add_u32 v{VA2}, v1, v{VB2}
    v_add_u32 v{VB2}, {4*1152-1024}, v{VA2}''')
    a(f'''v_lshrrev_b32 v1, 5, v{VLANE}
    v_lshlrev_b32 v{VBI}, 4, v1
    v_add_u32 v{VBI}, {BIAS_LDS}, v{VBI}
    v_bfe_u32 v3, v{VLANE}, 2, 2
    v_lshl_add_u32 v1, v1, 3, v3
    v_lshlrev_b32 v1, 7, v1
    v_and_b32 v3, 2, v3
    v_lshl_add_u32 v1, v3, 5, v1
    v_bfe_u32 v3, v{VLANE}, 4, 1
    v_lshl_add_u32 v1, v3, 5, v1
    v_and_b32 v3, 3, v{VLANE}
    v_lshl_add_u32 v{TA}, v3, 3, v1
    v_xor_b32 v{TA+1}, 64, v{TA}
    v_add_u32 v{TA+2}, 49152, v{TA}
    v_add_u32 v{TA+3}, 49152, v{TA+1}
    v_add_u32 v{TA+4}, 98304, v{TA}
    v_add_u32 v{TA+5}, 98304, v{TA+1}''')
    a(f'''v_and_b32 v1, 15, v{VLANE}
    v_lshlrev_b32 v1, 7, v1
    v_bfe_u32 v3, v{VLANE}, 4, 1
    v_lshl_add_u32 v1, v3, 13, v1
    v_add_u32 v1, s99, v1
    v_lshrrev_b32 v3, 5, v{VLANE}
    v_bfe_u32 v{XA}, v{VLANE}, 1, 3
    v_xor_b32 v3, v3, v{XA}
    v_lshl_add_u32 v{XA}, v3, 4, v1
    v_xor_b32 v{XA+1}, 32, v{XA}
    v_xor_b32 v{XA+2}, 64, v{XA}
    v_xor_b32 v{XA+3}, 96, v{XA}
    s_mov_b32 s{sT2}, 0x3f803f80''')
    for i in range(8): a(f'v_mov_b32 v{TMP+i}, 0')
    if Cfg.pre >= 2:
        t = E(); xearly_addr(t); a('\n'.join(t.l).replace('s96', 's97').replace('s98', 's70').replace('s99', 's71'))
    stamp(a, 'k0')
    a(f"""s_waitcnt lgkmcnt(0)
    s_mov_b32 s{SX}, s44
    s_and_b32 s{SX+1}, s45, 0xffff""")
    stamp(a, 'ka')
    if Cfg.wt:
        a(f'''s_lshr_b32 s97, s{sC}, 1
        s_add_u32 s98, s97, s{sI}
        s_and_b32 s98, s98, 7
        s_bitcmp1_b32 s{sC}, 0
        s_cselect_b32 s98, s98, 0
        s_cmp_lt_u32 s98, 5
        s_cbranch_scc1 L_nowt
        s_sub_u32 s98, s98, 5
        s_lshl_b32 s70, s98, 6
        s_add_u32 s70, s70, s{sB}
        s_lshl_b32 s98, s98, 2
        s_add_u32 s98, s98, s{sWV}
        s_mul_i32 s98, s98, {48*9216}
        s_mul_i32 s97, s97, 1152
        s_add_u32 s98, s98, s97
        v_mul_u32_u24 v3, 9216, v{VLANE}
        v_add_u32 v3, s98, v3
        s_mul_i32 s70, s70, {15*128}
        v_lshlrev_b32 v{VPO}, 7, v{VLANE}
        v_add_u32 v{VPO}, s70, v{VPO}
        v_mov_b32 v{VPO+1}, 0
        v_lshl_add_u64 {vr(VPO,2)}, s[100:101], 0, {vr(VPO,2)}
        v_lshlrev_b32 v1, 21, v{VLANE}
        s_bfm_b64 exec, 48, 0
        global_load_dword a255, v3, s[52:53]
        s_bfm_b64 exec, 15, 0
        global_load_dword a255, {vr(VPO,2)}, off
        s_mov_b64 exec, 7
        global_load_dword a255, v1, s[56:57]
        s_mov_b64 exec, 1''')
        for r in (54, 58, 46, 48, 62): a(f'global_load_dword a255, v1, s[{r}:{r+1}] offset:128')
        a('s_mov_b64 exec, -1\nL_nowt:')
    for o in range(4):
        if o == 2: a('s_add_u32 m0, s99, 8192\ns_nop 0')
        a.vm(f'buffer_load_dwordx4 v{144+o}, {S(SX)}, s{sT} offen offset:{1024*(o%2)} lds', ('x', 0))
    a(f's_add_u32 s97, s96, 1\ns_cmp_eq_u32 s97, 9\ns_cselect_b32 s97, 0, s97\ns_lshl_b32 s{sT}, s97, 7\ns_add_u32 s{sT}, s{sT}, s3')
    for o in range(4):
        if o % 2 == 0: a(f's_add_u32 m0, s99, {16384 + 8192*(o//2)}\ns_nop 0')
        a.vm(f'buffer_load_dwordx4 v{144+o}, {S(SX)}, s{sT} offen offset:{1024*(o%2)} lds', ('x', 1))
    srd(a, SDBG, 62, 256); srd(a, SWS, 64, WS_SZ)
    srd(a, SWR, 46, 2048*578); srd(a, SWI, 48, 2048*578); srd(a, SW1, 52, 576*9216); srd(a, SB, 54, 9216)
    srd(a, SW2, 56, 4608*1152); srd(a, SOUT, 60, 2048*1152)
    a(f's_mov_b64 s[0:1], s[58:59]\ns_mov_b32 s{sW2K}, s99')
    XV = 144
    def xline(L):
        a(f's_lshl_b32 s{sT}, s{sO2+L}, 7\ns_add_u32 s{sT}, s{sT}, s3')
        for o in range(4):
            if o % 2 == 0: a(f's_add_u32 m0, s{sW2K}, {16384*L + 8192*(o//2)}\ns_nop 0')
            a.vm(f'buffer_load_dwordx4 v{XV+o}, {S(SX)}, s{sT} offen offset:{1024*(o%2)} lds', ('x', L))
    for L in range(9):
        a(f's_mov_b32 s{sO2+L}, s96')
        if 1 < L < Cfg.xa: xline(L)
        if L < 8: a('s_add_u32 s96, s96, 1\ns_cmp_eq_u32 s96, 9\ns_cselect_b32 s96, 0, s96')
    stamp(a, 'xi')
    nx = [Cfg.xa, 0]
    def xnext():
        if nx[1] < Cfg.xe: xline(nx[0]); nx[0] += 1; nx[1] += 1
    a(f'''s_or_b32 s66, s66, 1
    s_add_u32 s97, s2, s{sWV}
    s_cmp_lg_u32 s97, 0
    s_cbranch_scc1 L_nonon
    v_mov_b32 v1, s66
    s_mov_b64 exec, 1
    buffer_store_dword v1, off, {S(SDBG)}, 0 sc1
    s_mov_b64 exec, -1
    L_nonon:
    s_lshr_b32 s96, s{sC}, 1            ; p
    s_mul_i32 s{sNON}, s{sI}, {Cfg.rr}
    s_add_u32 s{sNON}, s{sNON}, s96
    s_and_b32 s{sNON}, s{sNON}, 7       ; rho
    s_and_b32 s{sROLE}, s{sC}, 1
    s_cmp_lt_u32 s{sNON}, 5
    s_cselect_b32 s97, s{sROLE}, 0
    s_lshl_b32 s97, s97, {R_DFT}
    s_xor_b32 s98, s{sROLE}, 1
    s_cmp_lt_u32 s{sNON}, 6
    s_cselect_b32 s98, s98, 0
    s_cmp_lt_u32 s{sWV}, 3
    s_cselect_b32 s99, {(1<<R_SMID)|(1<<R_UNIT)}, {1<<R_SMID}
    s_mul_i32 s98, s98, s99
    s_cselect_b32 s99, {(1<<R_FIN)|(1<<R_FINW)}, {1<<R_FIN}
    s_or_b32 s97, s97, s98
    s_and_b32 s98, s{sC}, 3
    s_cmp_lg_u32 s98, 2
    s_cselect_b32 s99, s99, 0
    s_or_b32 s97, s97, s99
    s_lshl_b32 s98, s{sROLE}, 8
    s_or_b32 s{sROLE}, s{sROLE}, s97
    s_lshl_b32 s97, s{sNON}, 8
    s_or_b32 s{sROLE}, s{sROLE}, s97
    s_mul_i32 s97, s96, 576
    s_add_u32 s97, s97, s98                ; f_base
    v_add_u32 v1, s97, v{VTT}
    v_lshlrev_b32 v1, 1, v1''')
    a(f'v_mov_b32 v{HO+15}, v1\nv_lshlrev_b32 v{HO+11}, 2, v{VTT}')
    if not Cfg.xo: xnext()
    def bloads():
        a.vm(f'buffer_load_ushort v{ACC[1]+12}, v{HO+15}, {S(SB)}, 0 offen', 'b1')
        a.vm(f'buffer_load_ushort v{ACC[1]+13}, v{HO+15}, {S(SB)}, 0 offen offset:512', 'b1')
        a(f's_mov_b32 s{SB}, s0\ns_and_b32 s{SB+1}, s1, 0xffff\ns_mov_b32 s{SB+2}, 1152\ns_lshl_b32 s98, s{sWV}, 8\ns_add_u32 m0, s98, {B2_LDS}\ns_nop 0')
        a.vm(f'buffer_load_dword v{HO+11}, {S(SB)}, 0 offen lds', 'b1')
        a.vm(f'buffer_load_dword v{HO+11}, {S(SB)}, 0 offen offset:1024 lds', 'b1')
        a(f's_mov_b32 s35, s{sNON}')
    a(f'''v_lshlrev_b32 v{ACC[1]+14}, 2, v{VTT}
    v_add_u32 v{ACC[1]+14}, {BIAS_LDS}, v{ACC[1]+14}
    s_mul_i32 s{sHS}, s{sB}, 288
    s_lshr_b32 s98, s97, 4
    s_add_u32 s{sHS}, s{sHS}, s98
    s_lshl_b32 s{sHS}, s{sHS}, 10
    s_lshl_b32 s97, s97, 1''')
    for g in range(9): a(f's_mul_i32 s{sO1+g}, s{sO2+g}, {64*9216}\ns_add_u32 s{sO1+g}, s{sO1+g}, s97')
    a(f's_mul_i32 s{sPS}, s{sNON}, 73728')
    a(f'''v_add_u32 v{VTB}, s{sW2K}, v{VL16}
    v_mov_b32 v{VTB+1}, 0
    v_lshl_add_u64 {vr(VTB,2)}, s[100:101], 0, {vr(VTB,2)}
    s_mov_b32 s{sX0+1}, 0
    s_lshl_b32 s{sFLG}, s{sB}, 4
    s_add_u32 s{sFLG}, s{sFLG}, s{sC}
    s_lshl_b32 s{sFLG}, s{sFLG}, 7
    s_add_u32 s{sFLG}, s{sFLG}, {FL_OFF}
    s_mov_b32 s{sP}, {Cfg.spin}
    s_mov_b32 s{sGC1}, {(h2(-GC0/GS if Cfg.gs else GC1) if Cfg.f16 else f2u(GC1)):#x}
    v_mov_b32 v{VC0}, {(h2(GS if Cfg.gs else GC0) if Cfg.f16 else f2u(GC0)):#x}
    s_nop 0''')
    if not Cfg.xo: xnext()
    if not Cfg.xo: xnext()
    XA = HO
    smid_ids(a)
    a(f'''s_add_u32 s98, s96, s{sWV}
    s_cmp_eq_u32 s98, 4
    s_cselect_b32 s{sNON}, {1<<R_PATCH}, 0
    s_bitcmp1_b32 s{sROLE}, {R_UNIT}
    s_cselect_b32 s{sNON}, s{sNON}, 0
    s_or_b32 s{sROLE}, s{sROLE}, s{sNON}
    s_cmp_lt_u32 s98, 5
    s_cselect_b32 s{sNON}, 2, 0
    s_lshl_b32 s98, s98, 6
    s_add_u32 s{sNON}, s{sNON}, s98
    s_mul_i32 s99, s99, 578
    s_add_u32 s{sNON}, s{sNON}, s99
    v_lshrrev_b32 v3, 2, v{VLANE}
    v_mul_u32_u24 v3, 18496, v3
    v_and_b32 v1, 3, v{VLANE}
    v_lshl_add_u32 v3, v1, 4, v3''')
    a(f'''s_lshr_b32 s98, s2, 3
    s_lshl_b32 s98, s98, 2
    s_add_u32 s98, s98, s{sWV}
    s_lshr_b32 s99, s98, 1
    s_mul_i32 s99, s99, {9*9216}
    s_and_b32 s98, s98, 1
    s_mul_i32 s98, s98, 1152
    s_add_u32 s99, s99, s98
    s_and_b32 s98, s{sC}, {16-cx}
    s_mul_i32 s98, s98, 576
    s_add_u32 s99, s99, s98
    v_mul_u32_u24 v1, 43, v{VLANE}
    v_lshrrev_b32 v1, 8, v1
    v_mul_u32_u24 v{VPO}, 6, v1
    v_sub_u32 v{VPO}, v{VLANE}, v{VPO}
    v_add_u32 v{VPO+1}, 1, v{VPO}
    v_lshrrev_b32 v{VPO+1}, 2, v{VPO+1}
    v_add3_u32 v{VPO}, v{VPO}, v{VPO+1}, 2
    v_mul_u32_u24 v1, 9216, v1
    v_lshl_add_u32 v1, v{VPO}, 7, v1
    v_add_u32 v{VPO}, s99, v1''')
    if Cfg.pre < 2: xearly_addr(a)
    def stats(L):
        for q in range(4):
            a.need(('x', 4*L+q))
            for i in range(4):
                r = XF + 16*L + 4*q + i
                a(f'v_dot2c_f32_bf16 v{TMP+i}, s{sT2}, v{r}\nv_dot2c_f32_bf16 v{TMP+4+i}, v{r}, v{r}')
    def first_piece(q):
        if q < 9: return dma_alt(R_ODD, dma_alt(R_DFT, dma_tab(q, sreg=sO2+q), None), w1p(q))
        return w1p(q)
    if Cfg.twe: only(R_DFT, lambda a: emit(a, twiddle_ops(TW, ACC[0]+8, 'fwd', sB)))(a)
    stamp(a, 'w0')
    if Cfg.warm:
        brole(a, R_ODD, 'L_wo')
        a('; WARM 1\ns_branch L_main\nL_wo:\n; WARM 2')
    a('s_branch L_main\n.p2align 12\nL_main:')
    npc0 = 0
    if Cfg.xo:
        while nx[1] < Cfg.xe: xnext()
    for L in range(10):
        if L < 9:
            stamp(a, f'xa{L}')
            a.vneed(('x', L))
            stamp(a, f'xb{L}')
            if L in (4, 8):
                for q in range(4): a(f'v_add_u32 v{XA+q}, 0x10000, v{XA+q}')
            for q in range(4): a.lds(f'ds_read_b128 {vr(XF+16*L+4*q)}, v{XA+q} offset:{16384*(L%4)}', ('x', 4*L+q))
        if L == 9: stamp(a, 1)
        if nx[0] < 9:
            xline(nx[0]); nx[0] += 1
            if nx[0] == 9: bloads()
        elif L >= Cfg.fp0 and npc0 < 2*Cfg.fp:
            qs = (npc0, npc0+1)
            dma_alt(R_ODD, dma_alt(R_DFT, [f for q in qs for f in dma_tab(q, sreg=sO2+q)], None), [f for q in qs for f in w1p(q)])[0](a)
            npc0 += 2
        if L == Cfg.xl: only(R_FINW, xearly)(a)
        if L: stats(L-1)
        if Cfg.warm and str(L) in Cfg.wl:
            l1 = a.label('WA'); l2 = a.label('WB'); brole(a, R_ODD, l1)
            a(f'; WARM 1\ns_branch {l2}\n{l1}:\n; WARM 2\n{l2}:')
    rest = [FN(f) for q in range(npc0, Cfg.np) for f in first_piece(q)]
    rest += [VM(f'buffer_load_dword v{VFL}, off, {S(SDBG)}, 0 sc1', 'non')]
    T = TMP
    a(f'''s_nop 2
    v_add_f32 v{T}, v{T}, v{T+1}
    v_add_f32 v{T+2}, v{T+2}, v{T+3}
    v_add_f32 v{T+4}, v{T+4}, v{T+5}
    v_add_f32 v{T+6}, v{T+6}, v{T+7}
    v_add_f32 v{T}, v{T}, v{T+2}
    v_add_f32 v{T+4}, v{T+4}, v{T+6}
    v_mov_b32 v{T+1}, v{T}
    v_mov_b32 v{T+5}, v{T+4}
    s_nop 1
    v_permlane32_swap_b32 v{T}, v{T+1}
    v_permlane32_swap_b32 v{T+4}, v{T+5}
    s_nop 0
    v_add_f32 v{T}, v{T}, v{T+1}
    v_add_f32 v{T+4}, v{T+4}, v{T+5}
    v_mul_f32 v{T}, {f2u(1/576):#x}, v{T}
    v_mul_f32 v{T+4}, {f2u(1/576):#x}, v{T+4}
    v_fma_f32 v{T+4}, -v{T}, v{T}, v{T+4}
    v_max_f32 v{T+4}, 0, v{T+4}
    v_cvt_pk_bf16_f32 v{T}, v{T}, v{T+4}
    v_and_b32 v{T+4}, 0xffff0000, v{T}
    v_lshlrev_b32 v{T}, 16, v{T}
    v_add_f32 v{T+4}, {f2u(1e-5):#x}, v{T+4}
    v_cvt_pk_bf16_f32 v{T+4}, v{T+4}, v{T+4}
    v_and_b32 v{T+4}, 0xffff0000, v{T+4}
    v_sqrt_f32 v{T+4}, v{T+4}
    s_nop 0
    v_cvt_pk_bf16_f32 v{T+4}, v{T+4}, v{T+4}
    v_and_b32 v{T+4}, 0xffff0000, v{T+4}
    v_rcp_f32 v{T+4}, v{T+4}
    s_nop 0
    v_mul_f32 v{T+4}, {f2u(GS if Cfg.gs else 1.0):#x}, v{T+4}
    v_cvt_pk_bf16_f32 v{T+4}, v{T+4}, v{T+4}
    v_and_b32 v{T+5}, 0xffff0000, v{T+4}
    v_lshrrev_b32 v{T+4}, 16, v{T+4}
    v_mul_f32 v{T}, v{T}, v{T+5}
    v_sub_f32 v{T}, 0, v{T}''')
    if Cfg.tn < 216:
        tall = w2touch(0, Cfg.tn*24, -(-(5184 - Cfg.tn*24)//(64 if Cfg.be else 128)), Cfg.be)
        rest.append(FN(tall))
    def w1all(a):
        if Cfg.j1:
            a(f'v_subrev_u32 v{VPO+1}, 128, v{VPO}\ns_mov_b32 exec_lo, 0x49249249\ns_mov_b32 exec_hi, 0x92492')
            a.vm(f'buffer_load_dword a255, v{VPO+1}, {S(SW1)}, 0 offen')
        a('s_bfm_b64 exec, 54, 0')
        a.vm(f'buffer_load_dword a255, v{VPO}, {S(SW1)}, 0 offen')
        a('s_mov_b64 exec, -1')
    if Cfg.tw1: rest.insert(len(rest) - (1 if Cfg.tn < 216 else 0), FN(w1all))
    def wall(a):
        if Cfg.be:
            a(f'''s_lshr_b32 s69, s2, 4
            s_lshl_b32 s69, s69, 3
            s_and_b32 s3, s2, 7
            s_add_u32 s69, s69, s3
            s_lshl_b32 s69, s69, 2
            s_add_u32 s69, s69, s{sWV}
            s_min_u32 s69, s69, 486
            s_mul_i32 s69, s69, {19*128}
            v_lshlrev_b32 v{VTT}, 7, v{VLANE}
            s_bitcmp1_b32 s{sWV}, 0
            s_mov_b64 exec, 0x7ffff''')
            a(f'buffer_load_dword a255, v{VTT}, {S(SWR)}, s69 offen')
        else:
            a(f'''s_lshl_b32 s69, s2, 1
            s_lshr_b32 s3, s{sWV}, 1
            s_add_u32 s69, s69, s3
            s_min_u32 s69, s69, 486
            s_mul_i32 s69, s69, {19*128}
            v_lshlrev_b32 v{VTT}, 7, v{VLANE}
            s_bitcmp1_b32 s{sWV}, 0
            s_cselect_b64 exec, 0x7ffff, 0''')
            a(f'buffer_load_dword a255, v{VTT}, {S(SWR)}, s69 offen')
            a('s_cselect_b64 exec, 0, 0x7ffff')
        a.vm(f'buffer_load_dword a255, v{VTT}, {S(SWI)}, s69 offen')
        a('s_mov_b64 exec, -1')
    rest.insert(len(rest) - (1 if Cfg.tn < 216 else 0), FN(wall))
    if Cfg.normin:
        emit(a, rest); emit(a, norm_ops(0))
    else:
        stamp(a, 'n0')
        a('.p2align 3')
        rest = [FN(lambda a, f=f: (f(a), a('.p2align 3'))) for _, f in rest]
        nt = 1 + (1 if Cfg.tn < 216 else 0) + (1 if Cfg.tw1 else 0)
        tch = rest[-nt:]; rest = rest[:-nt]
        global BATCH2
        BATCH2 = []
        if Cfg.b2: BATCH2 = [wall] + ([tall] if Cfg.tn < 216 else []); tch = tch[:1]
        global B2PRE, B2FIRE
        t = E(); tall(t); k = [x.strip().startswith('s_bfm') for x in t.l].index(True)
        fix = lambda L: '\n'.join(L).replace('s3,', 's0,').replace('s3 ', 's0 ').replace('s96', 's1')
        B2PRE = sops(fix(t.l[:k])); f1 = fix(t.l[k:])
        t = E(); wall(t); k = [x.strip().startswith('s_bitcmp') for x in t.l].index(True)
        B2PRE += sops('\n'.join(t.l[:k])); f2 = '\n'.join(t.l[k:])
        B2FIRE = [lambda a: (a(f2), a.vm('s_nop 0'), a(f1), a.vm('s_nop 0'))]
        N = [o for u in range(18) for o in norm_ops(u)]
        k1 = len(N)*Cfg.t1//100; k2 = len(N)*Cfg.t2//100; ne = 2*Cfg.ne
        global NLAST
        NLAST = [V('.p2align 3')] + N[len(N)-24*Cfg.nl:]; N = N[:len(N)-24*Cfg.nl]
        emit(a, mix(N[:k1], rest[:ne] + tch) + N[k1:-24])
        stamp(a, 'nb')
        a.vneed('b1')
        a(f'v_lshlrev_b32 v{ACC[1]+12}, 16, v{ACC[1]+12}\nv_lshlrev_b32 v{ACC[1]+13}, 16, v{ACC[1]+13}')
        if Cfg.gs: a(f'v_mul_f32 v{ACC[1]+12}, {f2u(GS):#x}, v{ACC[1]+12}\nv_mul_f32 v{ACC[1]+13}, {f2u(GS):#x}, v{ACC[1]+13}')
        a.lds(f'ds_write_b32 v{ACC[1]+14}, v{ACC[1]+12}', 'bw'); a.lds(f'ds_write_b32 v{ACC[1]+14}, v{ACC[1]+13} offset:1024', 'bw')
        a('.p2align 3'); emit(a, N[-24:])
def late_setup():
    a = E()
    a(f'''s_lshr_b32 s96, s{sC}, 1
    s_and_b32 s98, s{sC}, 1
    s_mul_i32 s{sO2}, s96, {576*1152}
    s_lshl_b32 s99, s98, 8
    s_add_u32 s{sO2}, s{sO2}, s99
    s_mul_i32 s99, s98, {256*1152}''')
    for g in range(1, 9):
        a(f's_add_u32 s{sO2+g}, s{sO2}, {64*1152*g}\ns_{"add" if g < 5 else "sub"}_u32 s{sO2+g}, s{sO2+g}, s99')
    a(f'''s_mul_i32 s{sPS}, s{sB}, 18
    s_lshl_b32 s98, s98, 2
    s_add_u32 s{sPS}, s{sPS}, s98
    s_lshl_b32 s{sPS}, s{sPS}, 3
    s_add_u32 s{sPS}, s{sPS}, s96
    s_lshl_b32 s{sPS}, s{sPS}, 11
    s_add_u32 s{sPS}, s{sPS}, {PART_OFF}
    s_and_b32 s98, s{sC}, 1
    s_mul_i32 s32, s{sB}, 288
    s_mul_i32 s99, s96, 36
    s_add_u32 s32, s32, s99
    s_lshl_b32 s32, s32, 10
    s_lshl_b32 s99, s98, 14
    s_sub_u32 s33, s32, s99
    s_xor_b32 s34, s{sFLG}, 128''')
    return sops('\n'.join(a.l))
def w2touch(other, first, per, sub=0):
    def f(a):
        a(f"""s_lshr_b32 s3, s2, {3+sub}
        s_lshl_b32 s3, s3, 2
        s_add_u32 s3, s3, s{sWV}
        s_mul_i32 s3, s3, {per*128}
        s_lshr_b32 s96, s{sI}, 3
        s_xor_b32 s96, s96, {other}
        s_mul_i32 s96, s96, {5184*128}
        s_add_u32 s3, s3, s96
        s_lshr_b32 s96, s{sC}, 2
        s_mul_i32 s96, s96, {2*5184*128}
        s_add_u32 s3, s3, s96
        s_add_u32 s3, s3, {first*128}
        v_lshlrev_b32 v{VTT}, 7, v{VLANE}
        s_bfm_b64 exec, {per}, 0""")
        a.vm(f'buffer_load_dword a255, v{VTT}, {S(SW2)}, s3 offen')
        a('s_mov_b64 exec, -1')
    return f
def tabtouch(a):
    a(f"""s_lshr_b32 s96, s2, 3
    s_lshl_b32 s96, s96, 2
    s_add_u32 s96, s96, s{sWV}
    s_min_u32 s96, s96, 125
    s_mul_i32 s96, s96, {22*128}
    s_add_u32 s96, s96, {TABF_SZ}
    s_sub_u32 s96, s96, s{sW2K}
    v_mul_u32_u24 v{VTT}, 112, v{VLANE}
    v_mov_b32 v{VTT+1}, 0
    v_lshl_add_u64 {vr(VTT,2)}, {vr(VTT,2)}, 0, {vr(VTB,2)}
    v_lshl_add_u64 {vr(VTT,2)}, s[96:97], 0, {vr(VTT,2)}
    s_bfm_b64 exec, 22, 0""")
    a.vm(f'global_load_dword a255, {vr(VTT,2)}, off')
    a('s_mov_b64 exec, -1')
def codetouch(a):
    if not Cfg.ct: return
    l = a.label('CT')
    a(f"""s_getpc_b64 s[100:101]
    {l}:
    s_lshr_b32 s3, s2, 3
    s_lshl_b32 s3, s3, 2
    s_add_u32 s3, s3, s{sWV}
    s_lshl_b32 s3, s3, 8
    v_lshlrev_b32 v{VTT}, 7, v{VLANE}
    v_add_u32 v{VTT}, s3, v{VTT}
    v_min_u32 v{VTT}, L_tailend-L_s9-4, v{VTT}
    s_sub_u32 s100, s100, {l}-L_main
    s_subb_u32 s101, s101, 0
    v_add_u32 v{VTT}, L_s9-L_main, v{VTT}
    v_mov_b32 v{VTT+1}, 0
    v_lshl_add_u64 {vr(VTT,2)}, s[100:101], 0, {vr(VTT,2)}
    s_mov_b64 exec, 3""")
    a.vm(f'global_load_dword a252, {vr(VTT,2)}, off')
    a('s_mov_b64 exec, -1')
def smid_ids(a):
    a(f'''s_bfe_u32 s96, s{sROLE}, 0x30008
    s_cmp_ge_u32 s96, 3
    s_cselect_b32 s98, 1, 0
    s_lshl_b32 s99, s{sI}, 1
    s_add_u32 s99, s99, s98
    s_mul_i32 s98, s98, 3
    s_sub_u32 s96, s96, s98
    s_mul_i32 s96, s96, 3''')
WA = 216
PSR = 20
def wload(k):
    def f(a):
        a(f's_add_u32 s3, s35, {16*18496*(k//2)}')
        a.vm(f'buffer_load_dwordx4 {ar(WA+4*k)}, v3, {S(SWI if k % 2 else SWR)}, s3 offen {NT(8)}', 'wl')
    return f
def wpatch(a):
    a(f'v_mul_u32_u24 v1, 18496, v{VLANE}')
    a.vm(f'buffer_load_ushort a253, v1, {S(SWR)}, s35 offen offset:{576-258}', 'wl')
    a.vm(f'buffer_load_ushort a254, v1, {S(SWI)}, s35 offen offset:{576-258}', 'wl')

def touch_ops():
    o = [V(f"""s_bfe_u32 s98, s{sROLE}, 0x30008
    s_sub_u32 s98, s98, 5
    s_lshl_b32 s98, s98, 6
    s_add_u32 s98, s98, s{sB}
    s_bfe_u32 s99, s{sROLE}, 0x30008
    s_sub_u32 s99, s99, 5
    s_bfe_u32 s96, s{sC}, 0x10001
    s_mul_i32 s96, s96, 3
    s_add_u32 s99, s99, s96
    s_lshl_b32 s99, s99, 2
    s_add_u32 s99, s99, s{sWV}
    s_mul_i32 s99, s99, {Cfg.tn*128}
    s_lshr_b32 s96, s{sI}, 3
    s_mul_i32 s96, s96, {5184*128}
    s_add_u32 s99, s99, s96
    s_lshr_b32 s96, s{sC}, 2
    s_mul_i32 s96, s96, {2*5184*128}
    s_add_u32 s99, s99, s96
    v_lshlrev_b32 v1, 7, v{VLANE}""")]
    for k in range(Cfg.tn//54):
        if k < Cfg.te: o.append(V(f's_add_u32 s99, s99, {54*128}')); continue
        def f(a, k=k):
            a('s_bfm_b64 exec, 54, 0')
            a.vm(f'buffer_load_dword a255, v1, {S(SW2)}, s99 offen')
            a(f's_mov_b64 exec, -1\ns_add_u32 s99, s99, {54*128}')
        o.append(FN(f))
    def g(a):
        a(f"""s_mul_i32 s99, s98, {15*128}
        s_add_u32 s99, s99, {TABF_SZ}
        v_add_u32 v{VTT}, s99, v1
        v_min_u32 v{VTT}, {TABF_SZ+TABG_SZ+TAB64_SZ-4}, v{VTT}
        v_mov_b32 v{VTT+1}, 0
        v_lshl_add_u64 {vr(VTT,2)}, s[100:101], 0, {vr(VTT,2)}
        s_bfm_b64 exec, 15, 0""")
        a.vm(f'global_load_dword a255, {vr(VTT,2)}, off')
        a('s_mov_b64 exec, -1')
    return o + [FN(g)]

def getnonce(a):
    lc = a.label('NC'); ls = a.label('NS'); lk = a.label('NK')
    a.vneed('non')
    a(f'{lc}:\nv_readfirstlane_b32 s{sNON}, v{VFL}\ns_nop 3\ns_cmp_eq_u32 s{sNON}, 0\ns_cbranch_scc1 {ls}\n{lk}:')
    a.ool += [f'{ls}:', f' s_sub_u32 s{sP}, s{sP}, 1', f' s_cbranch_scc1 {ls}_x', f' s_sleep {Cfg.slp}', f' buffer_load_dword v{VFL}, off, {S(SDBG)}, 0 sc1', ' s_waitcnt vmcnt(0)', f' s_branch {lc}',
              f'{ls}_x:', f' s_mov_b32 s{sP}, 0', f' s_branch {lk}']

def xpose_setup(a, vw, vrd, vg, base_imm, rowstride, flip=None):
    a(f"""v_and_b32 v{vw}, 15, v{VLANE}
    v_lshlrev_b32 v{vw}, 7, v{vw}
    v_bfe_u32 v{vrd}, v{VLANE}, 4, 1
    v_lshl_add_u32 v{vw}, v{vrd}, 13, v{vw}
    v_lshrrev_b32 v{vrd}, 5, v{VLANE}
    v_lshlrev_b32 v{vrd}, 2, v{vrd}
    v_and_b32 v{vg}, 7, v{VLANE}
    v_xor_b32 v{vrd}, v{vrd}, v{vg}
    v_lshl_add_u32 v{vw}, v{vrd}, 4, v{vw}
    s_add_u32 s98, s{sW2K}, {base_imm}
    v_add_u32 v{vw}, s98, v{vw}
    v_lshrrev_b32 v{vrd}, 3, v{VLANE}
    v_mul_u32_u24 v{VTT}, {rowstride}, v{vrd}
    v_lshl_add_u32 v{vg}, v{vg}, 4, v{VTT}
    v_lshlrev_b32 v{vrd}, 4, v{vrd}
    v_xor_b32 v{vrd}, v{vrd}, v{VL16}
    v_add_u32 v{vrd}, s98, v{vrd}""")
def xpose_w(src, q, vw, flip=0):
    x = (16*q) ^ flip
    if x == 0: return [LD(f'ds_write_b128 v{vw}, {vr(src)}', 'xw')]
    return [V(f'v_xor_b32 v{VTT}, {x}, v{vw}'), LD(f'ds_write_b128 v{VTT}, {vr(src)}', 'xw')]
def xpose_rs(dst, vrd, vg, sreg, rowstride, tag, u=0):
    o = [LD(f'ds_read_b128 {vr(dst+4*q)}, v{vrd} offset:{8192*(q//2) + 1024*(q%2)}', ('xr', u, q)) for q in range(4)]
    for q in range(4):
        o.append(FN(lambda a, q=q: a.need(('xr', u, q))))
        o.append(VM(f'buffer_store_dwordx4 {vr(dst+4*q)}, v{vg}, {S(SWS)}, s{sreg} offen sc1', tag))
        o.append(V(f's_add_u32 s{sreg}, s{sreg}, {8*rowstride}'))
    return o
OA = 200
XP_LDS = BIAS_LDS + 2048
def dft_fill():
    Ea = ACC[0]; T = TMP; U = Ea + 16; RS = 9*64*128
    su = f"""v_and_b32 v1, 31, v{VLANE}
    v_lshlrev_b32 v1, 6, v1
    v_lshrrev_b32 v3, 5, v{VLANE}
    v_lshlrev_b32 v3, 1, v3
    v_bfe_u32 v{VPO}, v{VLANE}, 1, 2
    v_xor_b32 v3, v3, v{VPO}
    v_lshl_add_u32 v1, v3, 4, v1
    s_add_u32 s98, s{sW2K}, {XP_LDS}
    v_add_u32 v1, s98, v1
    v_bfe_u32 v3, v{VLANE}, 3, 2
    v_lshlrev_b32 v3, 4, v3
    v_xor_b32 v3, v3, v{VL16}
    v_add_u32 v3, s98, v3
    v_lshrrev_b32 v{VPO}, 2, v{VLANE}
    v_mul_u32_u24 v{VPO}, {RS}, v{VPO}
    v_and_b32 v{VTT}, 3, v{VLANE}
    v_lshl_add_u32 v{VPO}, v{VTT}, 4, v{VPO}
    s_bfe_u32 s96, s{sROLE}, 0x30008
    s_lshl_b32 s98, s96, 6
    s_add_u32 s98, s98, s{sB}
    s_lshl_b32 s35, s98, 3
    s_add_u32 s35, s35, {VFL_OFF}
    s_lshl_b32 s98, s98, 7
    s_add_u32 s98, s98, {V_OFF}
    s_sub_u32 s99, 8, s96
    s_lshl_b32 s99, s99, 6
    s_add_u32 s99, s99, s{sB}
    s_lshl_b32 s99, s99, 7
    s_add_u32 s99, s99, {V_OFF}
"""
    o = [V(x) for x in su.split('\n') if x.strip()] + [V(f's_cmp_eq_u32 s96, 4\ns_cselect_b32 s96, {DUM_OFF - V_OFF}, 0\ns_add_u32 s99, s99, s96')]
    su = o; o = [V(f'v_add_u32 v{VPO+1}, {16*RS}, v{VPO}')]
    for i in range(16):
        e = Ea + 2*i
        o += [V(f'v_accvgpr_read_b32 v{T+4}, a{OA+2*i}'), V(f'v_accvgpr_read_b32 v{T+5}, a{OA+2*i+1}'), V(f'v_add_f32 v{T}, v{e}, v{T+4}'), V(f'v_add_f32 v{T+1}, v{e+1}, v{T+5}')]
        if i < 8: o += [V(f'v_sub_f32 v{T+2}, v{e}, v{T+4}'), V(f'v_sub_f32 v{T+3}, v{e+1}, v{T+5}')]
        else:     o += [V(f'v_sub_f32 v{T+2}, v{T+4}, v{e}'), V(f'v_sub_f32 v{T+3}, v{T+5}, v{e+1}')]
        o += [V(f'v_cvt_pk_bf16_f32 v{HO+i}, v{T}, v{T+1}'), V(f'v_cvt_pk_bf16_f32 v{Ea+i}, v{T+2}, v{T+3}')]
    segs = [o]
    u = vr(U, 16)
    for m, X in enumerate((HO, Ea)):
        for p in range(2):
            A1, A2 = (X, X+8) if p == 0 else (X+8, X)
            B2 = TW+8 if p == 0 else TW+16
            mf = [V(f's_nop 1\n{M} {u}, {vr(A1)}, {ar(TW)}, 0'), V(f'{M} {u}, {vr(A1+4)}, {ar(TW+4)}, {u}'), V(f'{M} {u}, {vr(A2)}, {ar(B2)}, {u}'), V(f'{M} {u}, {vr(A2+4)}, {ar(B2+4)}, {u}')]
            pk = []
            for q in range(2):
                for i in range(4):
                    k = 4*q + i
                    pk.append(V(f'v_cvt_pk_bf16_f32 v{T+k}, v{U+2*k}, v{U+2*k+1}' if m == 0 else f'v_cvt_pk_bf16_f32 v{T+k}, v{U+15-2*k}, v{U+14-2*k}'))
                x = 16*q ^ 32*m
                if x: pk += [V(f'v_xor_b32 v{VTT}, {x}, v1'), LD(f'ds_write_b128 v{VTT}, {vr(T+4*q)}')]
                else: pk += [LD(f'ds_write_b128 v1, {vr(T+4*q)}')]
            d = OA + 8*(2*m+p)
            pk += [LD(f'ds_read_b128 {ar(d+4*i)}, v3 offset:{1024*i}', ('xr', m, p)) for i in range(2)]
            st = [FN(lambda a, m=m, p=p: a.need(('xr', m, p)))] + [VM(f'buffer_store_dwordx4 {ar(d+4*i)}, v{VPO+i}, {S(SWS)}, s{98+m} offen offset:{64*p} sc1', 'V') for i in range(2)]
            segs += [mf, pk, st]
    f = [(segs[0], 3, 33)]; st = []
    for k in range(4):
        g = 33 + 8*k
        f += [(segs[1+3*k], g, g+2), (segs[2+3*k], g+5, g+8)]
        x = segs[3+3*k]
        st += [FN(lambda a, x=x: emit(a, x[:2])), x[2]]
    return su, f, st

JA = [8, 40]; JC = [72, 104]
def hload(g):
    return [SVM(f's_add_u32 s3, s{33 if g else 32}, {4096*g}', f'buffer_load_dwordx4 {ar(HF+16*g+4*k)}, v{VL16}, {S(SWS)}, s3 offen offset:{1024*k} sc1 {NT(1)}', ('ph', g)) for k in range(4)]

SZ=[72,88,136,152]; SVF=8; SWP=40; SY0=192; SPA=[72,88,168,24]
def TF(i): return ar(176+4*i) if i < 20 else vr(200+4*(i-20))
def smid_pre():
    su = f"""v_lshrrev_b32 v3, 5, v{VLANE}
    v_bfe_u32 v1, v{VLANE}, 2, 2
    v_lshl_add_u32 v3, v3, 2, v1
    v_lshlrev_b32 v{VA1}, 7, v3
    v_lshlrev_b32 v{VB1}, 6, v3
    v_bfe_u32 v1, v{VLANE}, 4, 1
    v_lshlrev_b32 v1, 5, v1
    v_and_b32 v3, 3, v{VLANE}
    v_lshl_add_u32 v1, v3, 3, v1
    s_min_u32 s98, s{sWV}, 2
    s_lshl_b32 s98, s98, 13
    s_add_u32 s99, s98, {slot(54)}
    v_add3_u32 v{VA1}, v{VA1}, v1, s99
    s_add_u32 s99, s98, {slot(57)}
    v_add3_u32 v{VB1}, v{VB1}, v1, s99
    v_add_u32 v1, s99, v{VL16}
    v_add_u32 v3, {slot(51)}, v{VL16}"""
    w = [FN(lambda a: a.vneed('wl'))] + [(3, LD(f'ds_write_b128 v1, {ar(WA+4*k)} offset:{1024*k}')[1]) for k in range(8)]
    def patch(a):
        a(f"""v_lshrrev_b32 v{VTT}, 4, v{VLANE}
        v_lshlrev_b32 v{VTT}, 11, v{VTT}
        v_and_b32 v{VTT+1}, 15, v{VLANE}
        v_lshl_add_u32 v{VTT}, v{VTT+1}, 6, v{VTT}
        v_add_u32 v{VTT}, {slot(57) + 8192}, v{VTT}""")
        a.lds(f'ds_write_b16 v{VTT}, a253 offset:62'); a.lds(f'ds_write_b16 v{VTT}, a254 offset:1086')
    w.append(FN(only(R_PATCH, patch)))
    for p in range(2):
        for mt in range(2):
            for q in range(4):
                w.append(LD(f'ds_read_b64_tr_b16 {vr(SWP+16*p+8*mt+2*q,2)}, v{VB1} offset:{4096*mt+2048*(q//2)+512*(q%2)+1024*p}', 'sm'))
    r = []
    for ks in range(4):
        for p in range(2):
            for rho in range(2): r.append(LD(f'ds_read_b64_tr_b16 {vr(SVF+16*p+4*ks+2*rho,2)}, v{VA1} offset:{2048*ks+1024*rho+64*p}', 'sm'))
        for i in (ks, 8+ks, 16+ks): r.append(LD(f'ds_read_b128 {TF(i)}, v3 offset:{1024*i}', 'sm'))
    late = [LD(f'ds_read_b128 {TF(i)}, v3 offset:{1024*i}', 'sm2') for ks in range(4) for i in (4+ks, 12+ks, 20+ks)]
    return sops(su), w, r, late
def smid_parts():
    Z=SZ; VF=SVF; WP=SWP; Y=SVF; PA=SPA; T=TMP
    C=lambda t,k: TF(4*t+k); Sn=lambda t,k: TF(8+4*t+k); N=lambda t,k: TF(16+4*t+k)
    def fwd(mt):
        zr=vr(Z[2*mt],16); zi=vr(Z[2*mt+1],16); o=[]
        for ks in range(4):
            o += [f'{M} {zr}, {C(mt,ks)}, {vr(VF+4*ks)}, {"0" if ks==0 else zr}', f'{M} {zi}, {C(mt,ks)}, {vr(VF+16+4*ks)}, {"0" if ks==0 else zi}',
                  f'{M} {zr}, {Sn(mt,ks)}, {vr(VF+16+4*ks)}, {zr}', f'{M} {zi}, {N(mt,ks)}, {vr(VF+4*ks)}, {zi}']
        return o
    def ybase(mt, p): return (SY0 - 8*p) if mt == 0 else (Y + 8*p)
    def cmul(mt):
        o = []
        for d in range(8):
            wr = WP + 8*mt + d; wi = WP + 16 + 8*mt + d; zr = Z[2*mt] + 2*d; zi = Z[2*mt+1] + 2*d
            o += [f'v_lshlrev_b32 v{T}, 16, v{wr}', f'v_and_b32 v{T+1}, 0xffff0000, v{wr}', f'v_lshlrev_b32 v{T+2}, 16, v{wi}', f'v_and_b32 v{T+3}, 0xffff0000, v{wi}']
            for i in range(2): o += [f'v_mul_f32 v{T+4+i}, v{zi+i}, v{T+2+i}', f'v_mul_f32 v{T+6+i}, v{zi+i}, v{T+i}']
            for i in range(2): o += [f'v_fma_f32 v{T+4+i}, v{zr+i}, v{T+i}, -v{T+4+i}', f'v_fma_f32 v{T+6+i}, v{zr+i}, v{T+2+i}, v{T+6+i}']
            o += [f'v_cvt_pk_bf16_f32 v{ybase(mt,0)+d}, v{T+4}, v{T+5}', f'v_cvt_pk_bf16_f32 v{ybase(mt,1)+d}, v{T+6}, v{T+7}']
        return [V(x) for x in o]
    def inv(mt):
        o = []
        for nt in range(2):
            pr=vr(PA[2*nt],16); pi=vr(PA[2*nt+1],16)
            for t in range(2):
                ks = 2*mt + t; yr = vr(ybase(mt,0)+4*t); yi = vr(ybase(mt,1)+4*t)
                o += [f'{M} {pr}, {yr}, {C(nt,ks)}, {"0" if ks==0 else pr}', f'{M} {pi}, {yi}, {C(nt,ks)}, {"0" if ks==0 else pi}',
                      f'{M} {pr}, {yi}, {N(nt,ks)}, {pr}', f'{M} {pi}, {yr}, {Sn(nt,ks)}, {pi}']
        return o
    return fwd, cmul, inv
def part_inplace(acc, lam):
    c = []; st = []
    for q in range(4):
        c += [V(f'v_cvt_pk_bf16_f32 v{acc+8*q+i}, v{acc+8*q+2*i}, v{acc+8*q+2*i+1}') for i in range(4)]
        st.append(SVM(f's_add_u32 s3, s{sPS}, {16384*(2*lam + q//2)}', f'buffer_store_dwordx4 {vr(acc+8*q)}, v{VL16}, {S(SWS)}, s3 offen offset:{1024*(q%2)} sc1', ('p', lam)))
    return c, st

def kernel():
    a = E()
    prologue(a)
    g1 = lambda acc: (lambda p, kk, h: (acc + 16*h, vr(XF + 16*p + 4*kk), False))
    END = 71
    stamp(a, 2)
    a.need('bw')
    a('; ROUND 1')
    brole(a, R_ODD, 'L_odd')
    s_pro = a.snap()
    a.vneed(('d',0),('d',1),('d',2)); a('s_barrier')
    bias_reads(a, ACC[0], 0); first_reads(a, 'tr', 0); emit(a, NLAST)
    run(a, 0, 9, 'tr', g1(ACC[0]), [(late_setup(), 26, 54), (bias_ops(ACC[1], 1), 40, 66), (B2PRE, 56, 70)], pause=(0, Cfg.pz1), events={71: B2FIRE, ('dma0', 0): list(range(Cfg.np, 12))})
    stamp(a, 3)
    run(a, 9, 9, 'tr', g1(ACC[1]), [(gelu_ops(ACC[0], 0, 2, Cfg.sd), Cfg.gs0, END)], events={2: [getnonce]}, pause=(0, Cfg.pz2))
    s_even = a.snap()
    la = a.l; a.l = []
    a('L_odd:'); a.restore(s_pro)
    brole(a, R_DFT, 'L_dft')
    emit(a, NLAST + late_setup() + ([] if Cfg.be else [FN(f) for f in BATCH2]) + touch_ops())
    for q in range(max(9, Cfg.np), 21):
        for f in plan(q): f(a)
    a.vneed(('d',9),('d',10),('d',11)); a('s_barrier')
    first_reads(a, 'tr', 9)
    stamp(a, 3)
    bias_reads(a, ACC[1], 1)
    run(a, 9, 9, 'tr', g1(ACC[1]), [(bias_ops(ACC[0], 2), 40, 66), (xback(HO, HO+1), 8, 30)], events={2: [getnonce]})
    a('s_branch L_s3'); s_nodft = a.snap()
    a('L_dft:'); a.restore(s_pro)
    a(f'v_mov_b32 v{VPO}, v{VL16}\nv_add_u32 v{VPO+1}, 49152, v{VL16}')
    a.vneed(('d',0),('d',1),('d',2)); a('s_barrier')
    first_reads(a, 'dft', 0); emit(a, NLAST)
    run(a, 0, 9, 'dft', lambda p, kk, h: ((ACC[0] + 16*h) if kk % 2 == 0 else -(OA + 16*h), vr(XF + 16*p + 4*kk), p == 0 and kk < 2),
        [(xback(HO, HO+1), 8, 30), (late_setup(), 30, 47), ([V('s_nop 0')] if Cfg.twe else twiddle_ops(TW, TMP, 'fwd', sB), 2, 60), (dft_fill()[0], 48, 66), (bias_ops(ACC[1], 1), 56, 70)] + ([] if Cfg.be else [(B2PRE, 66, 71)]), pause=(0, Cfg.pz1), role='D', events={71: [] if Cfg.be else B2FIRE, ('dma0', 0): list(range(Cfg.np, 12))})
    stamp(a, 3)
    _, df, vst = dft_fill(); vlate = vst[3:]
    run(a, 9, 9, 'tr', g1(ACC[1]), df + [(vst[:3], 42, 70), (bias_ops(ACC[0], 2), 65, 70)], events={2: [getnonce]}, pause=(0, 0 if Cfg.be else Cfg.pz2))
    a('L_s3:'); a.merge(s_nodft, a.snap()); s_odd = a.snap()
    lodd = a.l; a.l = la; a.restore(s_even)
    stamp(a, 4)
    pi = spoll_i; pc = spoll_c
    h0 = only_ops(R_ODD, hload(0), 1)
    FG, PG, CG = Cfg.fg, Cfg.pg, Cfg.cg
    clp3 = clear_ops(sPS, [16384*6, 16384*7], 'clp', -248)
    assert not (Cfg.sn and Cfg.ce)
    l2a = [w2touch(1, 0, 21)] if Cfg.l2 else []; l2b = [w2touch(1, 21*128, 20)] if Cfg.l2 else []; l2c = [tabtouch] if Cfg.l2 else []
    run(a, 18, 9, 'tr', g1(ACC[0]), [(gelu_ops(ACC[1], 1, 3), Cfg.gs0, END), ([FN(only(R_UNIT, wload(k))) for k in range(4)], 6, 64)] + ([(clear_ops(sHS, [16384, 18432], 'clr', -248), 2, 68)] if Cfg.ce else []) + ([(clp3, 2, 68)] if Cfg.sn else []),
        events={FG: [lambda a: setflag(a, 1, ('h',0))], 40: l2a, 66: l2b})
    g2 = lambda acc: (lambda p, kk, h: (acc + 16*h, ar(HF + 16*GORD[p] + 4*kk), p == 0 and kk == 0))
    tabg = f"""s_and_b32 s98, s{sC}, 3
    s_min_u32 s98, s98, 2
    s_mul_i32 s96, s98, 110592
    s_add_u32 s96, s96, {TABF_SZ}
    v_lshl_add_u64 {vr(VTB,2)}, s[96:97], 0, {vr(VTB,2)}"""
    sent8 = lambda a: (stamp(a, 7), sent_check(a, ('ph',8), [f'a{HF+128+4*k+3}' for k in range(4)], TMP, lines_of(hload(8)), ([f's_add_u32 s3, s33, {4096*8}'], 3)))
    sf = lambda st, *tags: (lambda a: (setflag if st < 5 else setflag2)(a, st, *tags))
    sf5 = lambda a: setflag(a, 5, ('h',4))
    clo = clear_ops(33, [32768, 34816], 'clr', -248)
    clp = clear_ops(sPS, [16384*6, 16384*7], 'clp')
    def setup5():
        a = E()
        smid_ids(a)
        a(f"""s_mul_i32 s{sSV}, s99, 9
        s_add_u32 s{sSV}, s{sSV}, s96
        s_lshl_b32 s{sSV}, s{sSV}, 13
        s_add_u32 s{sSV}, s{sSV}, s{sW2K}
        s_add_u32 s{sSV}, s{sSV}, {V_OFF}
        s_add_u32 s98, s96, s{sWV}
        s_lshl_b32 s98, s98, 5
        s_add_u32 s98, s98, s99
        s_lshl_b32 s47, s98, 3
        s_add_u32 s47, s47, {PFL_OFF}
        s_lshl_b32 s48, s98, 7
        s_add_u32 s48, s48, {P_OFF}
        s_add_u32 s49, s48, {32*9*32*128}
        v_and_b32 v1, 15, v{VLANE}
        s_lshl_b32 s98, s{sWV}, 4
        v_add_u32 v1, s98, v1
        v_lshrrev_b32 v{VA1}, 4, v{VLANE}
        v_min_u32 v{VA1}, 2, v{VA1}
        v_add_u32 v{VA1}, s96, v{VA1}
        v_sub_u32 v{VB1}, 8, v{VA1}
        v_min_u32 v{VA1}, v{VA1}, v{VB1}
        v_lshl_add_u32 v1, v{VA1}, 6, v1
        v_lshlrev_b32 v1, 3, v1
        v_add_u32 v1, {VFL_OFF}, v1""")
        return sops('\n'.join(a.l).replace('s96', 's50').replace('s98', 's51').replace('s99', 's52'))
    run(a, 27, 9, 'tr', g1(ACC[1]), [(gelu_ops(ACC[0], 2, 4), Cfg.gs0, END), ([FN(only(R_UNIT, wload(k))) for k in range(4, 8)], 6, 64), (setup5(), 48, 70)],
        events={4: [only(R_PATCH, wpatch)], FG: [sf(2, 'clr', ('h',1))], 30: l2c}, role='E')
    stamp(a, 5)
    ssu, sw, sr, slate = smid_pre()
    run(a, 36, 9, 'tr', g1(ACC[0]), [(gelu_ops(ACC[1], 3), Cfg.gs0, END), (hload(5), Cfg.e2+1, 71), (ssu, 52, 70)], role='E',
        events={26: [lambda a: a.vm(poll_ins(VA1, 1, '0'), 'vp')], Cfg.e2-22: [pi], Cfg.e2: [pc(2)], 47: [only(R_SMID, lambda a: poll_check(a, 'vp', VA1, 1, '0', 1))], FG: [sf(3, ('h',2))]})
    stamp(a, 6)
    a('s_mov_b32 s11, s47')
    pre = lambda g: [lambda a: a.vneed(('ph', g))]
    ge = lambda o: (lambda p, kk, h: (JC[1] + 16*h, ar(HF + 16*GE[p+o] + 4*kk), p+o == 0 and kk == 0))
    dm6 = [FN(f) for q in range(63, 72) for f in plan(q, 'E')]
    h6 = [FN(pc(3))] + hload(6); h7 = [FN(pc(4))] + hload(7)
    def s6a(unit):
        run(a, 45, 6, 'tr', ge(0), ([(gelu_ops(ACC[0], 4), 3, Cfg.ge), (sw, Cfg.ge-14, Cfg.ge+2), (sr, Cfg.ge-2, 48)] if unit else [(gelu_ops(ACC[0], 4), 3, 44)]), nxt=None, role='E',
            events={Cfg.f4: [sf(4, ('h',3))], 30: [pi], ('pre',32): pre(5), ('bar',48): [('d', q) for q in range(51, 57)]})
    b2 = FN(lambda a: (a.vneed(('d',60),('d',61),('d',62)), a('s_barrier')))
    brole(a, R_UNIT, 'L_unit'); s1 = a.snap()
    s6a(False)
    a('s_barrier')
    cle = []
    def allw(qs, tw=[]):
        def f(a):
            for q in qs:
                for g in plan(q, 'E'): g(a)
            if not Cfg.w3d and not tw: return
            d = []
            for q in (qs if Cfg.w3d else []):
                for w in range(3):
                    d.append(SVM(f's_mov_b32 m0, {slot(q) + 2048*w}\ns_add_u32 s{sT}, s{sO2+EORD[q-60][0]}, {128*EORD[q-60][1]}', f'buffer_load_dwordx4 v{8+2*w}, {S(SW2)}, s{sT} offen lds'))
                    d.append(VM(f'buffer_load_dwordx4 v{9+2*w}, {S(SW2)}, s{sT} offen offset:1024 lds'))
            only(R_SMID, lambda a: emit(a, mix(tw, d) if tw else d))(a)
        return FN(f)
    twq = lambda w: coop_tw(w, slot(59)) if Cfg.tw3 else []
    for w in range(3): a(f'v_subrev_u32 v{8+2*w}, {(3-w)*16*1152}, v{VA2}\nv_subrev_u32 v{9+2*w}, {(3-w)*16*1152}, v{VB2}')
    emit(a, fsetup()[:3] + [allw([63, 64])] + h6 + [V('s_barrier'), allw([65, 66, 67, 68], twq('0') + twq('1')), allw([69, 70, 71], twq('2'))] + twq(None) + [FN(lambda a: a.drain()), FN(pi), V(tabg), FN(lambda a: a.vdrain()), b2])
    if Cfg.w3d: dm6 = [V('s_nop 0')]*18
    first_reads(a, 'tr', 60)
    a(';NONUNIT7'); s_nou = a.snap()
    a('L_unit:'); a.restore(s1)
    s6a(True)
    fwd, cmul, inv = smid_parts()
    stamp(a, 'm0')
    a.need('sm'); a('s_barrier')
    dmx = lambda i, j: [] if Cfg.w3d else dm6[i:j]
    interleave(a, fwd(0), mix(slate, dmx(0, 6) + h6))
    stamp(a, 'm1')
    a.need('sm2'); a('s_barrier')
    t = E(); xpose_setup(t, 1, 3, VA1, slot(57), 9*32*128); t(tabg)
    interleave(a, fwd(1)[:3], dmx(6, 10) + [V(x) for x in t.l[:11]])
    interleave(a, fwd(1)[3:], mix(cmul(0), dmx(10, 14)))
    a('s_nop 1')
    stamp(a, 'm2')
    interleave(a, inv(0)[:3], [V(x) for x in t.l[11:]])
    interleave(a, inv(0)[3:], cmul(1)[:30] + [FN(pi)] + cmul(1)[30:])
    stamp(a, 'm3')
    def pout(nt):
        o = []
        for p in range(2):
            for par in range(2):
                for i in range(4): o.append(V(f'v_cvt_pk_bf16_f32 v{SWP+16*nt+8*p+4*par+i}, v{SPA[2*nt+p]+4*i+par}, v{SPA[2*nt+p]+4*i+2+par}'))
                o += xpose_w(SWP+16*nt+8*p+4*par, 2*p+par, 1)
        x = xpose_rs(SWP+16*nt, 3, VA1, 48+nt, 9*32*128, 'P', nt)
        return o + x[:4], x[4:]
    a('s_nop 1')
    h8 = hload(8)
    interleave(a, inv(1)[:10], h7 + ([FN(pi)] if Cfg.hf and Cfg.c5 < Cfg.pd else []) + dmx(14, 18) + [b2])
    first_reads(a, 'tr', 60)
    interleave(a, inv(1)[10:], pout(0)[0])
    stamp(a, 'm5')
    eo = lambda o: (lambda p, kk, h: (JC[1-EORD[p+o][1]] + 16*h, ar(HF + 16*EORD[p+o][0] + 4*kk), p+o == 1 and kk == 0))
    grp = lambda x, n: [FN(lambda a, y=x[i:i+n]: emit(a, y)) for i in range(0, len(x), n)]
    pst = grp(pout(0)[1] + pout(1)[1], 3)
    def EV(*pairs):
        d = {}
        for k, v in pairs: d.setdefault(k, []).extend(v if isinstance(v, list) else [v])
        return d
    if not Cfg.hf:
        assert Cfg.pe <= 24 and Cfg.c5 >= 24
        def s7(unit):
            run(a, 60, 3, 'tr', eo(0), [(pout(1)[0], 2, 10), (pst[:4], 0, max(11, Cfg.pe//2)), (pst[4:], max(11, Cfg.pe//2), Cfg.pe)]*unit, role='E',
                events={('pre',0): pre(6), ('pre',16): pre(7), Cfg.c5-Cfg.pd: [pi], ('pre',17): [lambda a: stamp(a, 7)]})
    else:
        assert Cfg.pe <= 48 and Cfg.e8 < 6
        def s7(unit):
            run(a, 60, 6, 'tr', eo(0), [(pout(1)[0], 2, 12), (pst, Cfg.c5+9, Cfg.pe)]*unit + [(h8, Cfg.c5+1, Cfg.c5+9), (xback(VB1, 1), 14, 28)], role='E',
                events=EV((('pre',0), pre(6)), (('pre',16), pre(7)), (Cfg.c5, pc(5)), (('pre',8*Cfg.e8), pre(8)), (('pre',17), lambda a: stamp(a, 7)), (('pre',24), lambda a: stamp(a, 8)), (33, codetouch),
                          *([(Cfg.c5-Cfg.pd, pi)] if Cfg.c5 >= Cfg.pd else [])))
    s7(True)
    s_u = a.snap()
    lx = a.l; a.l = []
    a.restore(s_nou); emit(a, h7 + ([FN(pi)] if Cfg.hf and Cfg.c5 < Cfg.pd else []))
    s7(False)
    a('s_branch L_s7u')
    k = [x.strip() for x in lx].index(';NONUNIT7'); a.l = lx[:k] + a.l + lx[k+1:]
    a('L_s7u:'); a.merge(s_u, a.snap())
    if not Cfg.hf:
        stamp(a, 8)
        run(a, 63, 9, 'tr', eo(3), [(h8, Cfg.c5-23, Cfg.c5-15), (part_ops(JC[1], 0), 8*Cfg.e8-13, 8*Cfg.e8+12), (fsetup0() + ([] if Cfg.f9 else fsetup()), 36, 68), (xback(VB1, 1), 1, 14), (fsetup()[:3] + coop_tw(), 10, 36),
            ([V(f's_add_u32 s{sL9}, s{sPS}, {16384*2}')], 68, 70)], role='E',
            events={9: [codetouch], Cfg.c5-24: [pc(5)], ('pre',8*Cfg.e8-24): pre(8), Cfg.pe+6: [only(R_UNIT, lambda a: setflag(a, 1, 'P', off=11))]})
    else:
        run(a, 66, 6, 'tr', eo(6), [(part_ops(JC[1], 0), 3, 32), (fsetup()[:3] + coop_tw() + fsetup0() + ([] if Cfg.f9 else fsetup()), 0, 45),
            ([V(f's_add_u32 s{sL9}, s{sPS}, {16384*2}')], 45, 47)], role='E',
            events={Cfg.pe-16: [only(R_UNIT, lambda a: setflag(a, 1, 'P', off=11))]})
    s_e = a.snap()
    if Cfg.eo: le = a.l; a.l = []
    else: a('s_branch L_s9')
    a('; ROUND 2')
    a.l += lodd; a.restore(s_odd)
    stamp(a, 4)
    run(a, 18, 9, 'tr', g1(ACC[0]), [(gelu_ops(ACC[1], 1, 3), Cfg.gs0, END), (only_ops(R_DFT, vlate, 1), 2, 40)] + ([] if Cfg.ce else [(clo[:6], 44, 68)]),
        events={PG: [pi], 40: l2a, 66: l2b})
    run(a, 27, 9, 'tr', g1(ACC[1]), [(gelu_ops(ACC[0], 2, 4), Cfg.gs0, END), (hload(0), CG+2, 64)] + ([] if Cfg.ce else [(clo[6:], 1, 14)]),
        events={2: [only(R_DFT, lambda a: setflag(a, 1, 'V', off=35))], CG: [pc(1)], (FG+1 if Cfg.ce else Cfg.f2o): [sf(2, 'clr', ('h',1))], 30: l2c, PG: [pi]}, role='O')
    stamp(a, 5)
    run(a, 36, 9, 'tr', g1(ACC[0]), [(gelu_ops(ACC[1], 3), Cfg.gs0, END), (hload(5), CG+2, 64)] + ([(clp3[4:], 4, 68)] if Cfg.sn else []), role='O',
        events={CG: [pc(2)], FG: [sf(3, ('h',2))], PG: [pi]})
    stamp(a, 6)
    jj = lambda p, kk, h: (JA[p % 2] + 16*h, ar(HF + 16*GORD[p//2] + 4*kk), p < 2 and kk == 0)
    run(a, 45, 18, 'tr', jj, [(gelu_ops(ACC[0], 4), 3, 47), (hload(6), CG+2, 46), (hload(7), 49+Cfg.c4, 66+Cfg.c4), (hload(8), 48+Cfg.h8, 62+Cfg.h8), (sops(tabg), 140, 143), (fsetup()[:3] + coop_tw(), 50, 96), (fsetup0() + ([] if Cfg.f9 else fsetup()), 97, 140)], role='O',
        events={CG: [pc(3)], Cfg.f4: [sf(4, ('h',3))], 46: [pi], 48+Cfg.c4: [pc(4)], ('pre',64): pre(0), ('pre',80): pre(5), ('pre',96): pre(6), ('pre',112): pre(7), Cfg.f5h: [sf5], 126: [sent8], 132: [codetouch]})
    stamp(a, 8)
    run(a, 63, 9, 'tr', g2(JC[0]), [(part_ops(JA[0], 4) + part_ops(JA[1], 6), 3, Cfg.p8), ([V(f's_add_u32 s{sL9}, s{sPS}, {16384*10}')], 60, 62)] + ([(tw_reads(), 52, 70)] if Cfg.tw3 else []))
    LO = []
    if Cfg.eo: a('s_branch L_s9'); LO = a.l; a.l = le
    a(f'; ROUND {0 if Cfg.w3 == 2 else 3}\nL_s9:'); a.merge(s_e, a.snap())
    if Cfg.warm and Cfg.w3 == 1: a('; WARM 3')
    stamp(a, 9)
    g2o = lambda acc, o: (lambda p, kk, h: (acc + 16*h, ar(HF + 16*GORD[p+o] + 4*kk), p+o == 0 and kk == 0))
    def two(mask, f):
        l1 = a.label('TW'); l2 = a.label('TX')
        a(f's_and_b32 s98, s{sCLS}, {mask}\ns_cbranch_scc1 {l1}'); s0 = a.snap()
        f(False); a(f's_branch {l2}\n{l1}:'); s1 = a.snap(); a.restore(s0)
        f(True); a(f'{l2}:'); a.merge(s1, a.snap())
    pl1 = lambda hf: [FN(lambda a, k=k: emit(a, pl_ops(hf, k, k+1, 32 if Cfg.bf else SWS))) for k in range(16)]
    if Cfg.bf: two = lambda mask, f: f(True)
    def ppoll_i(a):
        a(f"""s_min_u32 s98, s{sWV}, 2
        s_mul_i32 s98, s98, 768
        s_add_u32 s98, s98, {PFL_OFF}
        v_lshlrev_b32 v204, 3, v{VLANE}
        v_add_u32 v204, s98, v204
        v_add_u32 v205, 256, v204""")
        a.vm(poll_ins(200, 204, '0'), 'pp1'); a.vm(poll_ins(202, 205, '0'), 'pp2')
    def ppoll_c(a):
        if Cfg.blk & 4:
            only(R_FINW, lambda a: (poll_check(a, 'pp1', 200, 204, '0', 1), poll_check(a, 'pp2', 202, 205, '0', 1)))(a); a(f's_bitcmp1_b32 s{sROLE}, {R_FINW}\ns_cselect_b32 s11, 0, 1'); return
        a.vneed('pp2'); poll_test(a, 200, 1); a('s_cselect_b32 s11, 1, 0'); poll_test(a, 202, 1); a(f's_cselect_b32 s11, 1, s11\ns_bitcmp1_b32 s{sROLE}, {R_FINW}\ns_cselect_b32 s11, s11, 1')
    def EV(*pairs):
        d = {}
        for k, v in pairs: d.setdefault(k, []).extend(v if isinstance(v, list) else [v])
        return d
    sched = dict(zip((78, 81, 84, 87), Cfg.sch))
    def tryev(qn, n):
        c = sched.get(qn, '-')
        if c not in '01': return [], []
        hf = int(c); t = E(); etest(t, hf, 20)
        t(f's_cselect_b32 s20, 0, {1 << hf}\ns_and_b32 s20, s20, s{sCLS}\ns_mul_i32 s20, s20, {1 + 512 + 2048}\ns_bitset0_b32 s{sCLS}, {9+hf}\ns_xor_b32 s{sCLS}, s{sCLS}, s20')
        if Cfg.bf: t(f's_mov_b64 s[32:33], s[{SWS}:{SWS+1}]\ns_mov_b32 s35, 0x20000\ns_cmp_lg_u32 s20, 0\ns_cselect_b32 s34, s{SWS+2}, 0')
        ops = sops('\n'.join(t.l))
        if Cfg.blk & (1 << hf) and qn == 78 + 3*Cfg.sch.rindex(c):
            k = [i for i, x in enumerate(t.l) if x.strip().startswith('s_cmp_gt_u32')][0]
            def blk(a):
                lc = a.label('BC'); lk = a.label('BK')
                a(f's_bitcmp1_b32 s{sCLS}, {hf}\ns_cselect_b32 s20, s20, 0\ns_cmp_gt_u32 s20, 8\ns_cbranch_scc1 {lc}\n{lk}:\ns_mov_b32 s20, 0')
                u = E(); u.nlab = 8000 + a.nlab
                u(f'{lc}:\ns_mov_b32 s99, 8\n{lc}_l:'); eld(hf, 20)(u); u.drain(); etest(u, hf, 20)
                u(f's_cbranch_scc0 {lk}\ns_sub_u32 s99, s99, 1\ns_cbranch_scc0 {lc}_l\ns_mov_b32 s20, -1\ns_add_u32 s20, s20, s{sND+hf}'); eblock(u, hf, 20, Cfg.slp); u(f's_branch {lk}')
                HOT.extend(u.l); a.ool += u.ool
            ops = sops('\n'.join(t.l[:k])) + [FN(blk, 4)] + sops('\n'.join(t.l[k:]))
        return ([(n - Cfg.ta, eld(hf, 20))] if Cfg.ta <= n else []) + [(n - 8, dodrain)], [(ops, n-7, n)]
    bar = lambda a: a('s_barrier')
    p2 = part_ops(JC[1], 2)
    seg = {78: (JC[1], 6, [], [(Cfg.f6-48, sf(6, ('p',9))), (23, ppoll_c)]),
           81: (JC[0], 0, [(p2[:11], 3, 22)] + ([] if Cfg.tw3 else [(tw_reads(), 4, 20)]), []),
           84: (JC[0], 3, [(p2[11:], 0, 12), (fin_addr(), 8, 23)], []),
           87: (JC[0], 6, [([FN(lambda a: a.vneed(('d', 98)))] + prd(0) + prd(1) + prd(2), 12, 24)], [(Cfg.f7-48, sf(7, ('p',2))), (('dma', 88), [102, 103]), (('dma', 89), [104]), (3, bar), (22, bar)] + ([(Cfg.m0, eld(0, 56))] if Cfg.m0 >= 0 else []))}
    e, f = tryev(78, 48)
    if Cfg.ta > 24 and sched[81] in '01': e = e + [(72 - Cfg.ta, eld(int(sched[81]), 20))]
    run(a, 72, 6, 'tr', g2o(JC[1], 0), [(part_ops(JC[0], 9), 3, Cfg.p9), (xb_ops()[:12], 30, 44)] + f + ([(fsetup(), 0, 25)] if Cfg.f9 else []),
        events=EV((Cfg.f5, sf(5, 'clp', ('p',0), ('p',4), ('p',6))), (45, ppoll_i), *e))
    def slab(q, ld):
        acc, o, fl, ev = seg[q]; e, f = tryev(q+3, 24)
        if Cfg.ta > 24 and sched.get(q+6, '-') in '01': e = e + [(48 - Cfg.ta, eld(int(sched[q+6]), 20))]
        run(a, q, 3, 'tr', g2o(acc, o), fl + f + ([(ld, 0, 22 if q < 87 else 16)] if ld else []), nxt=None if q == 87 else 'tr', events=EV(*ev, *e))
    for q in (78, 81, 84, 87):
        c = sched[q]
        if c == '-': slab(q, None)
        elif c == 'x': continue
        else:
            L = pl1(int(c))
            if sched.get(q+3) == 'x': two(512 << int(c), lambda ld: (slab(q, L[:9] if ld else None), slab(q+3, L[9:] if ld else None)))
            else: two(512 << int(c), lambda ld: slab(q, L if ld else None))
    stamp(a, 10)
    final(a)
    a('L_fin:')
    stamp_flush(a, 11)
    a('L_end:\ns_endpgm\nL_hot:\ns_endpgm')
    a.l += HOT
    if not Cfg.wsl: a('; ROUND -1')
    a.l += SLOW
    a('L_tailend:')
    a.l += LO
    a('; ROUND -1')
    return a.text()

PTH = [136, 8]
VFA = 4; VO = 5
SEL = 200; AB2 = 208; AX = 232
sCLS = 53
sND, sFO, sPB, sXO, sSG = 46, 48, 50, 4, 36
def classes():
    LAML = [0,0,4,4,2,2,3,3,2]; LAMH = [2,3,3,0,0,4,4,0,0]; NEED = [4,4,6,6 if Cfg.sn else 7,5]; RANK = [0,0,2,3,1]
    swap = 0; nd = [0, 0]; cl = []
    for c in range(9):
        rl, rh = RANK[LAML[c]], RANK[LAMH[c]]
        sw = (rh < rl) if max(rl, rh) < 2 else (rh > rl)
        la, lb = (LAMH[c], LAML[c]) if sw else (LAML[c], LAMH[c])
        swap |= sw << c; nd[0] |= NEED[la] << 3*c; nd[1] |= NEED[lb] << 3*c
        cl.append(({0:0, 2:2, 3:4}[RANK[la]], {0:1, 1:1, 2:3, 3:5}[RANK[lb]]))
    ca = sum(x[0] << 3*i for i, x in enumerate(cl)); cb = sum(x[1] << 3*i for i, x in enumerate(cl))
    return swap, nd, ca, cb
def xearly_addr(a):
    swap = classes()[0]; X = ACC[0]
    a(f'''s_lshl_b32 s96, s{sI}, 2
    s_lshr_b32 s98, s{sC}, 2
    s_add_u32 s96, s96, s98
    s_mul_i32 s96, s96, 1152
    s_and_b32 s98, s{sC}, 3
    s_min_u32 s98, s98, 2
    s_mul_i32 s99, s{sWV}, 3
    s_add_u32 s98, s98, s99
    s_min_u32 s98, s98, 8
    s_lshl_b32 s99, s98, 6
    s_add_u32 s96, s96, s99
    v_lshrrev_b32 v{X}, 2, v{VLANE}
    v_mul_u32_u24 v{X}, 4608, v{X}
    v_lshrrev_b32 v{X+1}, 4, v{VLANE}
    v_xor_b32 v{X+1}, v{X+1}, v{VLANE}
    v_and_b32 v{X+1}, 3, v{X+1}
    v_add_lshl_u32 v{X}, v{X}, v{X+1}, 4
    s_bitcmp1_b32 {swap:#x}, s98
    s_cselect_b32 s98, 576, 0
    s_cselect_b32 s99, 0, 576
    s_add_u32 s98, s98, s96
    s_add_u32 s99, s99, s96
    v_add_u32 v{X+2}, s99, v{X}
    v_add_u32 v{X}, s98, v{X}
    v_add_u32 v{X+1}, {16*73728}, v{X}
    v_add_u32 v{X+3}, {16*73728}, v{X+2}''')
def xearly(a):
    a(f's_lshl_b32 s98, s{sWV}, 12')
    for k in range(4):
        a(f's_add_u32 m0, s98, {BIAS_LDS + 2048 + 1024*k}\ns_nop 0')
        a.vm(f'buffer_load_dwordx4 v{ACC[0]+k}, {S(SX)}, 0 offen lds', 'x2')
def xback(v, t):
    o = sops(f"""s_min_u32 s3, s{sWV}, 2
    s_lshl_b32 s3, s3, 12
    s_add_u32 s3, s3, {BIAS_LDS+2048}
    v_and_b32 v{v}, 31, v{VLANE}""".replace('\n', '\n'))
    o = [V(f's_min_u32 s3, s{sWV}, 2\ns_lshl_b32 s3, s3, 12\ns_add_u32 s3, s3, {BIAS_LDS+2048}\nv_and_b32 v{v}, 31, v{VLANE}\nv_lshl_add_u32 v{v}, v{v}, 6, s3', 5),
         V(f'v_bfe_u32 v{t}, v{VLANE}, 2, 2'), V(f'v_lshl_add_u32 v{v}, v{t}, 4, v{v}'), V(f'v_lshrrev_b32 v{t}, 5, v{VLANE}'), V(f'v_lshl_add_u32 v{v}, v{t}, 3, v{v}'), FN(lambda a: a.vneed('x2'), 0)]
    for q in range(4):
        if q: o.append(V(f'v_xor_b32 v{t}, {16*q}, v{v}'))
        o += [LD(f'ds_read_b64 {ar(AX+8*hf+2*q,2)}, v{t if q else v} offset:{2048*hf}') for hf in range(2)]
    return o
def fsetup0():
    return sops(f"""s_lshl_b32 s{sFLG}, s{sB}, 1
    s_and_b32 s39, s{sC}, 1
    s_add_u32 s{sFLG}, s{sFLG}, s39
    s_mul_i32 s{sFLG}, s{sFLG}, {128*Cfg.fw}
    s_lshr_b32 s39, s{sC}, 1
    s_mul_i32 s39, s39, {4 if Cfg.fw == 1 else 128}
    s_add_u32 s{sFLG}, s{sFLG}, s39
    s_add_u32 s{sFLG}, s{sFLG}, {FL2_OFF}""")
def fsetup():
    a = E(); swap, nd, ca, cb = classes()
    a(f"""s_lshl_b32 s52, s{sI}, 2
    s_lshr_b32 s38, s{sC}, 2
    s_add_u32 s52, s52, s38             ; b'
    s_and_b32 s65, s{sC}, 3
    s_min_u32 s65, s65, 2
    s_mul_i32 s38, s{sWV}, 3
    s_add_u32 s65, s65, s38
    s_min_u32 s65, s65, 8                 ; tile c
    s_mul_i32 s39, s65, 3
    s_lshr_b32 s{sND}, {nd[0]:#x}, s39
    s_and_b32 s{sND}, s{sND}, 7
    s_lshr_b32 s{sND+1}, {nd[1]:#x}, s39
    s_and_b32 s{sND+1}, s{sND+1}, 7
    s_lshr_b32 s38, {ca:#x}, s39
    s_and_b32 s38, s38, 7
    s_lshl_b32 s{sCLS}, 1, s38
    s_lshr_b32 s38, {cb:#x}, s39
    s_and_b32 s38, s38, 7
    s_bitset1_b32 s{sCLS}, s38
    s_bitcmp1_b32 s{sROLE}, {R_FINW}
    s_cselect_b32 s{sCLS}, s{sCLS}, 0
    s_mul_i32 s39, s52, {256*Cfg.fw}
    s_add_u32 s39, s39, {FL2_OFF + 128*Cfg.fw}
    s_cmp_eq_u32 s65, 8
    s_cselect_b32 s38, 0, {128*Cfg.fw}
    s_sub_u32 s38, s39, s38
    s_mul_i32 s{sPB}, s52, 18
    s_add_u32 s{sPB}, s{sPB}, s65
    s_lshl_b32 s{sPB}, s{sPB}, 14
    s_add_u32 s{sPB}, s{sPB}, {PART_OFF}
    s_lshl_b32 s{sXO}, s65, 6
    s_bitcmp1_b32 {swap:#x}, s65
    s_cselect_b32 s{sFO}, s39, s38
    s_cselect_b32 s{sFO+1}, s38, s39
    s_cselect_b32 s{sSG}, -1.0, 1.0
    s_cselect_b32 s{sSG+1}, 1.0, -1.0
    s_cselect_b32 s38, {9*16384}, 0
    s_cselect_b32 s39, 576, 0
    s_add_u32 s{sPB+1}, s{sPB}, {9*16384}
    s_sub_u32 s{sPB+1}, s{sPB+1}, s38
    s_add_u32 s{sPB}, s{sPB}, s38
    s_add_u32 s{sXO+1}, s{sXO}, 576
    s_sub_u32 s{sXO+1}, s{sXO+1}, s39
    s_add_u32 s{sXO}, s{sXO}, s39
    s_add_u32 s{sXO+2}, s{sXO}, {16*73728}
    s_add_u32 s{sXO+3}, s{sXO+1}, {16*73728}
    s_sub_u32 s38, s{sND}, 4
    s_mul_i32 s38, s38, {16384*Cfg.fw if Cfg.fs else 0}
    s_add_u32 s{sFO}, s{sFO}, s38
    s_sub_u32 s38, s{sND+1}, 4
    s_mul_i32 s38, s38, {16384*Cfg.fw if Cfg.fs else 0}
    s_add_u32 s{sFO+1}, s{sFO+1}, s38
    s_add_u32 s{sND}, s{sND}, s{sNON}
    s_add_u32 s{sND+1}, s{sND+1}, s{sNON}
    v_and_b32 v{VFA}, 7, v{VLANE}
    v_lshlrev_b32 v{VFA}, {2 if Cfg.fw == 1 else 7}, v{VFA}
    v_lshrrev_b32 v{VO}, 2, v{VLANE}
    s_mov_b32 s38, 73728
    v_mul_lo_u32 v{VO}, v{VO}, s38
    v_and_b32 v206, 3, v{VLANE}
    v_lshl_add_u32 v{VO}, v206, 4, v{VO}
    s_mul_i32 s38, s52, 1152
    v_add_u32 v{VO}, s38, v{VO}""")
    a(f's_mul_i32 s{sFP}, s52, 36864\ns_mul_i32 s38, s{sWV}, 12288\ns_add_u32 s{sFP}, s{sFP}, s38\ns_add_u32 s{sFP}, s{sFP}, {P_OFF}')
    return sops('\n'.join(a.l))
def cls_block(a, mask, body, inv=False):
    l = a.label('CB'); a(f's_and_b32 s98, s{sCLS}, {mask}\ns_cbranch_scc{1 if inv else 0} {l}'); s0 = a.snap()
    body(a); a(f'{l}:'); a.merge(s0, a.snap())
SE = [56, 8]
def eld(hf, w):
    def f(a):
        if Cfg.fw == 1: a(f's_buffer_load_dwordx8 s[{w}:{w+7}], {S(SWS)}, s{sFO+hf} glc')
        else:
            for i in range(8): a(f's_buffer_load_dword s{w+i}, {S(SWS)}, s{sFO+hf} offset:{128*i} glc')
        a.smem = True
    return f
def etest(a, hf, w):
    for i in range(8): a(f's_sub_u32 s{w+i}, s{w+i}, s{sND+hf}')
    for i in (0, 2, 4, 6): a(f's_max_u32 s{w+i}, s{w+i}, s{w+i+1}')
    a(f's_max_u32 s{w}, s{w}, s{w+2}\ns_max_u32 s{w+4}, s{w+4}, s{w+6}\ns_max_u32 s{w}, s{w}, s{w+4}\ns_cmp_gt_u32 s{w}, 8')
def etry_c(hf, w):
    def f(a):
        a.drain()
        if Cfg.blk & (1 << hf):
            cls_block(a, 1 << hf, lambda a: eblock(a, hf, w, Cfg.slp)); return
        etest(a, hf, w)
        a(f"""s_cselect_b32 s98, {1 << hf}, 0
        s_and_b32 s98, s98, s{sCLS}
        s_mul_i32 s98, s98, 5
        s_xor_b32 s{sCLS}, s{sCLS}, s98""")
    return f
def eblock(a, hf, w, slp=None):
    lc = a.label('EC'); lk = a.label('EK')
    etest(a, hf, w)
    a(f's_cbranch_scc1 {lc}\n{lk}:')
    a.ool += [f'{lc}:', f' buffer_load_dword v{VPO}, v{VFA}, {S(SWS)}, s{sFO+hf} offen sc1', ' s_waitcnt vmcnt(0)', f' v_subrev_u32 v{VPO}, s{sND+hf}, v{VPO}', f' v_cmp_lt_u32 vcc, 8, v{VPO}', ' s_nop 1', ' s_cmp_lg_u64 vcc, 0',
              f' s_cbranch_scc0 {lk}', f' s_sub_u32 s{sP}, s{sP}, 1', f' s_cbranch_scc1 {lc}_x', f' s_sleep {slp or Cfg.slp2}', f' s_branch {lc}', f'{lc}_x:', f' s_mov_b32 s{sP}, 0', f' s_branch {lk}']
def pl_ops(hf, i0, i1, srd_=SWS):
    o = []
    for i in range(i0, i1):
        if i % 4 == 0 or i == i0: o.append(V(f's_add_u32 s3, s{sPB+hf}, {4096*(i//4)}'))
        o.append(VM(f'buffer_load_dwordx4 {vr(PTH[hf]+4*i)}, v{VL16}, {S(srd_)}, s3 offen offset:{1024*(i%4)} sc1 {NT(2)}', ('pt', hf)))
    return o
def loads_if(hf, m): return [FN(lambda a, k=k: cls_block(a, m, lambda a: emit(a, pl_ops(hf, 2*k, 2*k+2)))) for k in range(8)]
def xb_ops():
    o = [V(f'v_lshrrev_b32 v{VBI}, 5, v{VLANE}'), V(f'v_lshlrev_b32 v{VBI}, 3, v{VBI}')]
    for hf in range(2):
        o.append(V(f'v_add_u32 v1, s{sXO+hf}, v{VBI}\nv_add_u32 v1, {B2_LDS}, v1'))
        for q in range(4): o.append(LD(f'ds_read_b64 {ar(AB2+8*hf+2*q,2)}, v1 offset:{16*q}'))
    for hf in range(2):
        for i in range(2): o.append(VM(f'buffer_load_dwordx4 {ar(AX+8*hf+4*i)}, v{VO}, {S(SX)}, s{sXO+hf+2*i} offen', 'x2'))
    return o
TWL = XP_LDS
def coop_tw(wv=None, dst=None):
    t = TMP; sc = 2.0/(2048*576)/(GS if Cfg.gs else 1.0)
    o = f"""v_and_b32 v{t}, 31, v{VLANE}
    v_lshrrev_b32 v{t+1}, 5, v{VLANE}
    v_lshlrev_b32 v207, 2, v{t+1}
    v_sub_u32 v207, v{t}, v207
    v_lshlrev_b32 v{t}, 6, v{t}
    v_add_u32 v{t}, s52, v{t}
    s_lshr_b32 s38, {'s%d' % sWV if wv is None else wv}, 1
    s_and_b32 s39, {'s%d' % sWV if wv is None else wv}, 1
    s_lshl_b32 s8, s38, 4
    s_lshl_b32 s9, s39, 2
    s_add_u32 s8, s8, s9
    v_lshl_add_u32 v{t+1}, v{t+1}, 3, s8
    v_mul_u32_u24 v{t+1}, v{t+1}, v{t}
    s_add_u32 s8, s8, s9
    v_subrev_u32 v207, s8, v207
    s_lshl_b32 s38, s38, 10
    s_lshl_b32 s39, s39, 3
    s_add_u32 s38, s38, s39
    s_add_u32 s38, s38, {TWL if dst is None else dst}
    v_add_u32 v206, s38, v{VL16}
"""
    R = [208+i for i in range(8)]
    L = []
    for i in range(4): L.append(f'v_mad_u32_u24 v{R[i]}, v{t}, {i}, v{t+1}')
    for i in range(4): L.append(f'v_and_b32 v{R[i]}, 0x7ff, v{R[i]}')
    for i in range(4): L.append(f'v_cvt_f32_u32 v{R[i]}, v{R[i]}')
    for i in range(4): L.append(f'v_mul_f32 v{R[i]}, {f2u(1/2048):#x}, v{R[i]}')
    for i in range(4): L.append(f'v_cos_f32 v{R[4+i]}, v{R[i]}')
    for i in range(4): L.append(f'v_sin_f32 v{R[i]}, v{R[i]}')
    for i in (4,5,6,7,0,1,2,3): L.append(f'v_mul_f32 v{R[i]}, {f2u(sc):#x}, v{R[i]}')
    L += [f'v_cvt_pk_bf16_f32 v{t}, v{R[4]}, v{R[5]}', f'v_cvt_pk_bf16_f32 v{t+1}, v{R[6]}, v{R[7]}', f'v_cvt_pk_bf16_f32 v{t+2}, v{R[0]}, v{R[1]}', f'v_cvt_pk_bf16_f32 v{t+3}, v{R[2]}, v{R[3]}',
          f'v_xor_b32 v{t+4}, 0x80008000, v{t+2}', f'v_xor_b32 v{t+5}, 0x80008000, v{t+3}',
          f'v_and_b32 v{R[0]}, 1, v207', f'v_lshlrev_b32 v{R[0]}, 4, v{R[0]}', f'v_mov_b32 v{R[1]}, 0x3f80', f'v_lshlrev_b32 v{R[0]}, v{R[0]}, v{R[1]}', 'v_and_b32 v207, -2, v207',
          'v_cmp_eq_u32 vcc, 0, v207', 's_nop 1', f'v_cndmask_b32 v{t+6}, 0, v{R[0]}, vcc', 'v_cmp_eq_u32 vcc, 2, v207', 's_nop 1', f'v_cndmask_b32 v{t+7}, 0, v{R[0]}, vcc']
    ops = sops(o + '\n'.join(L))
    ops += [(8, LD(f'ds_write_b64 v206, {vr(t+2*m,2)} offset:{2048*m}')[1]) for m in range(4)]
    return ops
def tw_reads(src=None):
    return [V(f'v_add_u32 v206, {TWL if src is None else src}, v{VL16}')] + [LD(f'ds_read_b128 {ar(TW+4*i)}, v206 offset:{1024*i}') for i in range(8)]

PB = 24576
def fin_addr():
    return sops(f"""s_add_u32 s38, s{sW2K}, {PB}
    v_lshrrev_b32 v6, 5, v{VLANE}
    v_bfe_u32 v7, v{VLANE}, 2, 2
    v_lshl_add_u32 v6, v6, 3, v7
    v_lshlrev_b32 v6, 7, v6
    v_bfe_u32 v7, v{VLANE}, 1, 1
    v_lshl_add_u32 v6, v7, 6, v6
    v_bfe_u32 v7, v{VLANE}, 4, 1
    v_lshl_add_u32 v6, v7, 4, v6
    v_and_b32 v7, 1, v{VLANE}
    v_lshl_add_u32 v6, v7, 3, v6
    v_add_u32 v6, s38, v6
    v_add_u32 v7, s38, v{VL16}
    s_lshl_b32 s38, s{sWV}, 12
    v_add_u32 v3, s38, v{VL16}
    v_add_u32 v1, 73728, v3
    s_lshl_b32 s38, s{sWV}, 14
    s_add_u32 s38, s38, {PB + 6144}
    v_add_u32 v247, s38, v{VL16}
    s_mov_b32 s39, {f2u(-math.log2(math.e)):#x}""")
APF = 32
def prd(jj):
    return [LD(f'ds_read_b64_tr_b16 {ar(APF+16*jj+8*p+4*t+2*rho,2)}, v6 offset:{8192*(2*jj+t)+512*rho+32*p}', ('pf', jj))
            for t in range(2) for p in range(2) for rho in range(2)]
def final(a):
    Ea=72; Oa=88; YS=[104,208,72]; GA=[208, 104]; PK2=224; T=240; VY=7; VG=3; VG2=1; AY=16
    cv, st = part_inplace(JC[0], 3)
    brole(a, R_FINW, 'L_nfw', False); s0 = a.snap()
    la = a.l; a.l = []; a('L_nfw:')
    a('s_nop 8'); emit(a, mix(cv, st))
    brole(a, R_FIN, 'L_w3'); s3_ = a.snap()
    setflag2(a, 8, ('p',3)); a('s_branch L_fin')
    a('L_w3:'); a.restore(s3_)
    for k in range(6):
        a(f's_mov_b32 m0, {122880 + 4096*k}\ns_mov_b32 s96, {86016 - 6144 + 4096*k}\nv_lshl_add_u64 {vr(VTT,2)}, s[96:97], 0, {vr(VTB,2)}')
        for i in range(4): a.vm(f'global_load_lds_dwordx4 {vr(VTT,2)}, off offset:{1024*i}')
        if k == Cfg.w3b: a.vneed(('d', 104)); a('s_barrier')
    setflag2(a, 8, ('p',3))
    a.vdrain(); a('s_barrier\ns_branch L_fin')
    HOT.extend(a.l); a.l = la; a.restore(s0)
    lc = a.label('PR'); lk = a.label('PL')
    if not Cfg.blk & 4: a(f's_cmp_lg_u32 s11, 0\ns_cbranch_scc1 {lc}')
    else: a('s_nop 1')
    t = E(); t.nlab = 9000
    t(f'{lc}:\ns_nop 7'); emit(t, mix(cv, st))
    t.vm(poll_ins(200, 204, '0'), 'x'); t.vm(poll_ins(202, 205, '0'), 'y')
    poll_check(t, 'x', 200, 204, '0', 1); poll_check(t, 'y', 202, 205, '0', 1)
    t.drain()
    for q in range(93, 99):
        for f in plan(q, 'P'): f(t)
    t.vdrain(); emit(t, prd(0) + prd(1) + prd(2)); t.drain()
    C=lambda t: ar(TW+4*t); Sn=lambda t: ar(TW+8+4*t); N=lambda t: ar(TW+16+4*t)
    def inv(jj):
        yr=vr(YS[jj],16); yi=vr(YS[jj]+16,16); P=APF+16*jj; mf=[]
        for u in range(2):
            mf += [f'{M} {yr}, {ar(P+4*u)}, {C(u)}, {"0" if u==0 else yr}', f'{M} {yi}, {ar(P+8+4*u)}, {C(u)}, {"0" if u==0 else yi}',
                   f'{M} {yr}, {ar(P+8+4*u)}, {N(u)}, {yr}', f'{M} {yi}, {ar(P+4*u)}, {Sn(u)}, {yi}']
        return mf
    for x in inv(0): t(x)
    t(f's_nop 4\ns_branch {lk}')
    if not Cfg.blk & 4: a.ool += t.l + t.ool
    def pk(jj):
        o = []
        for q in range(4):
            o += [V(f'v_cvt_pk_bf16_f32 v{YS[jj]+8*q+i}, v{YS[jj]+8*q+2*i}, v{YS[jj]+8*q+2*i+1}') for i in range(4)]
            o.append(LD(f'ds_write_b128 v{VY}, {vr(YS[jj]+8*q)} offset:{8192*(2*jj+q%2)+1024*(q//2)}', 'yw'))
        return o
    a.need(('pf', 0))
    mf = inv(0)
    for x in mf[:2]: a(x)
    a('s_nop 2')
    if Cfg.m0 >= 0:
        u = E(); etest(u, 0, 56)
        u(f's_cselect_b32 s98, 0, {1|4}\ns_and_b32 s98, s98, s{sCLS}\ns_cselect_b32 s99, {1 << 14}, 0\ns_xor_b32 s{sCLS}, s{sCLS}, s98\ns_or_b32 s{sCLS}, s{sCLS}, s99')
        interleave(a, mf[2:], mix(cv, st) + [FN(dodrain)] + sops('\n'.join(u.l)))
    else: interleave(a, mf[2:], mix(cv, st))
    a.need(('pf', 2))
    a(f'{lk}:')
    stamp(a, 'f1')
    if not (Cfg.blk & 2 and '1' in Cfg.sch): eld(1, 56)(a)
    eld(0, 20)(a)
    for jj in (1, 2):
        mf = inv(jj)
        ml = lambda k: FN(lambda a: cls_block(a, 1 << 14, lambda a: emit(a, pl_ops(0, 4*k, 4*k+4))))
        for x in mf[:2]: a(x)
        if Cfg.m0 >= 0: emit(a, [ml(2*jj-2)])
        a('s_nop 5')
        interleave(a, mf[2:], pk(jj-1)[:10] + ([ml(2*jj-1)] if Cfg.m0 >= 0 else []) + pk(jj-1)[10:])
    def summ(hf):
        y = vr(GA[hf], 16)
        o = [f'{M} {y}, {ar(SEL)}, {ar(AB2+8*hf)}, 0', f'{M} {y}, {ar(SEL+4)}, {ar(AB2+8*hf+4)}, {y}']
        return o + [f'{M} {y}, {ar(SEL+4*(i%2))}, {vr(PTH[hf]+4*i)}, {y}' for i in range(16)]
    VW = 204; VR = 205
    setup = sops(f"""s_mul_i32 s38, s{sWV}, 5120
    s_add_u32 s38, s38, {BIAS_LDS}
    v_and_b32 v{VW}, 31, v{VLANE}
    v_mul_u32_u24 v{VW}, 80, v{VW}
    v_add3_u32 v{VW}, v{VW}, v{VBI}, s38
    v_lshrrev_b32 v{VR}, 2, v{VLANE}
    v_mul_u32_u24 v{VR}, 80, v{VR}
    v_and_b32 v206, 3, v{VLANE}
    v_lshlrev_b32 v206, 4, v206
    v_add3_u32 v{VR}, v{VR}, v206, s38""")
    XU = [8, 120]; U0 = 24; GB = 40
    def xun(hf):
        d = vr(XU[hf], 16)
        return [f'{M} {d}, {ar(SEL)}, {ar(AX+8*hf)}, 0', f'{M} {d}, {ar(SEL+4)}, {ar(AX+8*hf+4)}, {d}']
    def sum0(t):
        y = vr(GA[0] if t == 0 else GB, 16)
        return [f'{M} {y}, {ar(SEL+4*t)}, {ar(AB2+4*t)}, 0'] + [f'{M} {y}, {ar(SEL+4*t)}, {vr(PTH[0]+8*i+4*t)}, {y}' for i in range(8)]
    def u0(): return [V(f'v_fma_f32 v{U0+i}, v{Oa+i}, s{sSG}, v{Ea+i}') for i in range(16)]
    def wr(hf, g): return LD(f'ds_write_b64 v{VW}, {vr(PK2+8*hf+g//2,2)} offset:{2560*hf+4*g}')
    def outp(hf):
        o = [LD(f'ds_read_b128 {vr(PK2+8*hf+4*i)}, v{VR} offset:{2560*hf+1280*i}', ('tr', hf, i)) for i in range(2)]
        st = [FN(lambda a, i=i: (a.need(('tr', hf, i)), a.vm(f'buffer_store_dwordx4 {vr(PK2+8*hf+4*i)}, v{VO}, {S(SOUT)}, s{sXO+hf+2*i} offen {Cfg.ofl}'))) for i in range(2)]
        return o, st
    def fin0(t):
        o = []
        for g in (8*t, 8*t+4):
            y = [(GA[0] if t == 0 else GB)+g+i for i in range(4)]; r = [T+i for i in range(4)]
            x = [f'v_mul_f32 v{r[i]}, s39, v{y[i]}' for i in range(4)] + [f'v_exp_f32 v{r[i]}, v{r[i]}' for i in range(4)]
            x += [f'v_add_f32 v{r[i]}, 1.0, v{r[i]}' for i in range(4)] + [f'v_rcp_f32 v{r[i]}, v{r[i]}' for i in range(4)]
            x += [f'v_mul_f32 v{y[i]}, v{U0+g+i}, v{y[i]}' for i in range(4)] + [f'v_fma_f32 v{r[i]}, v{r[i]}, v{y[i]}, v{XU[0]+g+i}' for i in range(4)]
            x += [f'v_cvt_pk_bf16_f32 v{PK2+g//2+i}, v{r[2*i]}, v{r[2*i+1]}' for i in range(2)]
            o += [V(z) for z in x] + [wr(0, g)]
        return o
    def rdyg(i):
        j = i//4; r = i % 4; go = 12288*j + 1024*r
        a.lds(f'ds_read_b128 {ar(AY+4*r)}, v{VY} offset:{8192*(2*(j%3) + r//2) + 2048*(j//3) + 1024*(r%2)}', ('yg', i))
        if j < 2:    a.lds(f'ds_read_b128 {ar(4*r)}, v{VG} offset:{go}', ('yg', i))
        elif j == 2: a.lds(f'ds_read_b128 {ar(4*r)}, v247 offset:{8192*(r//2) + 1024*(r%2)}', ('yg', i))
        else:        a.lds(f'ds_read_b128 {ar(4*r)}, v{VG2} offset:{go-36864}', ('yg', i))
    stamp(a, 'f2')
    def mainm(i):
        j = i//4; u = (i//2) % 2
        d = vr(Ea if (u == 1) == (j < 5) else Oa, 16)
        a(f'{M} {d}, {ar(4*(i%4))}, {ar(AY+4*(i%4))}, {"0" if i in (0,2) else d}')
    def silu(hf):
        o = []
        for g in range(0, 16, 4):
            y = [GA[hf]+g+i for i in range(4)]; t = [T+i for i in range(4)]
            o += [V(f'v_mul_f32 v{t[i]}, s39, v{y[i]}') for i in range(4)] + [V(f'v_exp_f32 v{t[i]}, v{t[i]}') for i in range(4)] + [V(f'v_add_f32 v{t[i]}, 1.0, v{t[i]}') for i in range(4)]
            o += [V(f'v_rcp_f32 v{t[i]}, v{t[i]}') for i in range(4)] + [V(f'v_mul_f32 v{y[i]}, v{t[i]}, v{y[i]}') for i in range(4)]
        return o
    def comb(hf):
        o = []
        for g in range(0, 16, 4):
            u = [248+i for i in range(4)]
            o += [V(f'v_fma_f32 v{u[i]}, v{Oa+g+i}, s{sSG+hf}, v{Ea+g+i}') for i in range(4)] + [V(f'v_fma_f32 v{u[i]}, v{u[i]}, v{GA[hf]+g+i}, v{XU[hf]+g+i}') for i in range(4)]
            o += [V(f'v_cvt_pk_bf16_f32 v{PK2+8*hf+g//2+i}, v{u[2*i]}, v{u[2*i+1]}') for i in range(2)] + [wr(hf, g)]
        return o + outp(hf)[0]
    if Cfg.m0 >= 0:
        l1 = a.label('MW'); n = 4 if Cfg.sn else 0
        a(f's_bitcmp1_b32 s{sCLS}, 14\ns_cbranch_scc1 {l1}\ns_waitcnt vmcnt({n})\n{l1}:\ns_waitcnt vmcnt({16+n})')
        for t_ in [t_ for t_ in a.st['v'] if t_ != ('pt', 0) and (t_ != ('p', 3) or not Cfg.sn)]: del a.st['v'][t_]
    if Cfg.f8 == 99: setflag2(a, 8, ('p',3))
    a(f's_and_b32 s98, s{sCLS}, {1|4|16}\ns_cselect_b32 s98, 64, 0\ns_or_b32 s{sCLS}, s{sCLS}, s98')
    def point(a):
        def b(a):
            l = a.label('T0'); a.drain(); etest(a, 0, 20); eld(0, 20)(a); a(f's_cbranch_scc1 {l}'); s0 = a.snap()
            emit(a, pl_ops(0, 0, 16)); a(f's_xor_b32 s{sCLS}, s{sCLS}, {64|256}\n{l}:'); a.merge(s0, a.snap())
        cls_block(a, 64, b)
    def must0(a):
        def b(a):
            l = a.label('MS'); l2 = a.label('MT')
            a(f's_mov_b32 s99, 6\n{l}:'); a.drain(); etest(a, 0, 20); a(f's_cbranch_scc0 {l2}'); eld(0, 20)(a)
            a(f's_sub_u32 s99, s99, 1\ns_cbranch_scc0 {l}'); a.drain(); eblock(a, 0, 20); a(f'{l2}:'); stamp(a, 'g2')
            emit(a, pl_ops(0, 0, 16))
        cls_block(a, 64, b)
        a.vdrain()
    pts = [int(x) for x in str(Cfg.pts).split('_')]
    def verify(a):
        if not Cfg.sn: return
        def b(a):
            lc = a.label('VC'); ls = a.label('VS'); lk = a.label('VK')
            a(f'{lc}:\nv_max_u32 v{T}, v{PTH[0]+3}, v{PTH[0]+7}')
            for i in range(2, 16, 2): a(f'v_max3_u32 v{T}, v{T}, v{PTH[0]+4*i+3}, v{PTH[0]+4*i+7}')
            a(f'v_cmp_eq_u32 vcc, -1, v{T}\ns_nop 1\ns_cmp_lg_u64 vcc, 0\ns_cbranch_scc1 {ls}\n{lk}:')
            o = [f'{ls}:', f' s_sub_u32 s{sP}, s{sP}, 1', f' s_cbranch_scc1 {ls}_x', f' s_sleep {Cfg.slp3}']
            for k in range(8):
                l = a.label('RF'); r = PTH[0] + 8*k
                o += [f' v_max_u32 v{T}, v{r+3}, v{r+7}', f' v_cmp_eq_u32 vcc, -1, v{T}', f' s_add_u32 s3, s{sPB}, {2048*k}', ' s_nop 0', ' s_cmp_eq_u64 vcc, 0', f' s_cbranch_scc1 {l}',
                      f' buffer_load_dwordx4 {vr(r)}, v{VL16}, {S(SWS)}, s3 offen sc1', f' buffer_load_dwordx4 {vr(r+4)}, v{VL16}, {S(SWS)}, s3 offen offset:1024 sc1', f'{l}:']
            HOT.extend(o + [' s_waitcnt vmcnt(0)', f' s_branch {lc}', f'{ls}_x:', f' s_mov_b32 s{sP}, 0', f' s_branch {lk}'])
        cls_block(a, 16, b)
    noslow = Cfg.blk & 2 and '1' in Cfg.sch
    if not noslow: a(f's_bitcmp1_b32 s{sCLS}, 12\ns_cbranch_scc0 L_slow')
    s_sl = a.snap()
    a.vneed(('d', 104))
    s1 = summ(1) + xun(1) + xun(0)
    for x in s1[:2]: a(x)
    a('s_nop 2')
    interleave(a, s1[2:9], pk(2) + [V(f'v_add_u32 v{VY}, {PB}, v{VL16}')])
    interleave(a, s1[9:12], setup)
    stamp(a, 'f3')
    a.drain(); a('s_barrier')
    t = E(); etest(t, 0, 20)
    t(f's_cselect_b32 s98, 0, 64\ns_and_b32 s98, s98, s{sCLS}\ns_mul_i32 s98, s98, {1 + 4 + 128}\ns_xor_b32 s{sCLS}, s{sCLS}, s98')
    interleave(a, s1[12:], [FN(lambda a: rdyg(0)), FN(lambda a: rdyg(1)), FN(lambda a: rdyg(2))] + sops('\n'.join(t.l)) + ([FN(eld(0, 20))] if Cfg.rfi < 0 else []))
    stamp(a, 'f4')
    def mainloop(fl, start, hook):
        k2 = 0
        for i in range(36):
            if i + 3 < 36: rdyg(i+3)
            a.need(('yg', i), *([('yg', i+1)] if i % 2 == 0 and Cfg.mw else []))
            mainm(i)
            hook(i)
            while i >= start and k2 < len(fl)*(i-start+1)//(35-start) and k2 < len(fl): fl[k2][1](a); k2 += 1
            if i == 24: a('s_barrier')
    def hookf(i):
        k = i - Cfg.lo
        if k >= 0 and k % Cfg.ls == 0 and k//Cfg.ls < 4: cls_block(a, 1 << 13, lambda a: emit(a, pl_ops(0, 4*(k//Cfg.ls), 4*(k//Cfg.ls)+4)))
        if i == Cfg.rfi: eld(0, 20)(a)
        if i in pts: point(a)
    mainloop(silu(1), 1, hookf)
    stamp(a, 'f5')
    lf = a.label('FF')
    a(f's_and_b32 s98, s{sCLS}, {64 | (16 if Cfg.sn == 2 else 0)}\ns_cbranch_scc1 {lf}'); s0 = a.snap()
    a.vdrain()
    if Cfg.sn == 1: verify(a)
    stamp(a, 'f6')
    sA = sum0(0); sB = sum0(1)
    for x in sA[:2]: a(x)
    a('s_nop 5')
    interleave(a, sA[2:], comb(1))
    interleave(a, sB[:3], u0() + outp(1)[1])
    a('s_branch L_last'); sa = a.snap()
    a(f'{lf}:'); a.restore(s0)
    point(a)
    a('s_nop 7')
    emit(a, comb(1) + u0() + outp(1)[1])
    a('L_w0:')
    stamp(a, 'g1')
    must0(a)
    verify(a)
    stamp(a, 'f6')
    for x in sA + sB[:2]: a(x)
    a('s_nop 7'); a(sB[2])
    a('L_last:'); a.merge(sa, a.snap())
    interleave(a, sB[3:], fin0(0))
    stamp(a, 'f8b')
    a('s_nop 3')
    emit(a, fin0(1))
    stamp(a, 'f9')
    emit(a, outp(0)[0] + outp(0)[1])
    global SLOW
    SLOW = []
    if noslow: return
    la = a.l; a.l = []
    a('L_slow:'); a.restore(s_sl)
    emit(a, setup + pk(2))
    a(f'v_add_u32 v{VY}, {PB}, v{VL16}')
    stamp(a, 'f3')
    a.vneed(('d', 104)); a.drain(); a('s_barrier')
    stamp(a, 'f4')
    for i in range(3): rdyg(i)
    etest(a, 1, 56); a(f's_cselect_b32 s98, 128, 0\ns_or_b32 s{sCLS}, s{sCLS}, s98')
    def hook(i):
        if i % 2 == 0 and i < 8: cls_block(a, 128, lambda a: emit(a, pl_ops(1, 2*i, 2*i+4)), inv=True)
        if i in pts: cls_block(a, 128, point, inv=True)
        if i == 22: eld(1, 56)(a)
    mainloop([], 0, hook)
    a.drain()
    cls_block(a, 128, lambda a: (eblock(a, 1, 56), eld(0, 20)(a), emit(a, pl_ops(1, 0, 16))))
    stamp(a, 'f5')
    point(a)
    l = a.label('RD')
    a(f's_bitcmp1_b32 s{sCLS}, 8\ns_cbranch_scc1 {l}\ns_waitcnt vmcnt(0)\n{l}:\ns_waitcnt vmcnt(16)')
    stamp(a, 'g0')
    for x in summ(1) + xun(1) + xun(0): a(x)
    point(a)
    a('s_nop 5')
    emit(a, silu(1)); point(a); emit(a, comb(1) + u0() + outp(1)[1])
    assert not a.st['l']
    a('s_branch L_w0')
    SLOW = a.l; a.l = la

def build(aslist=False):
    k = NAME + '_kernel'
    body = kernel()
    if Cfg.warm:
        import stubs
        body, st, end = stubs.add_stubs(body, '.set CODE_LINES, 17\n', ('L_main', 'L_odd', 'L_dft', 'L_s3', 'L_unit', 'L_finw', 'L_hot') + (('L_s9',) if Cfg.w3 == 2 else ()) + (('TW_*',) if Cfg.tws else ()), Cfg.wmode)
        print('stubs', {k: [hex(x) for x in v] for k, v in st.items()}, 'end', end, file=sys.stderr)
    hdr = f'; @launch kernel={k} grid=(256,1,1) block=(256,1,1) lds=163840\n' if aslist else '; @launch grid=(256,1,1) block=(256,1,1) lds=163840\n'
    s = '; out = x + irfft2(rfft2(LN(x)) * W) * silu(FFN(LN(x)))  -- single persistent launch, one workgroup per CU (hand-written generator output)\n; kernarg: 0 A_x | 8 A_w_r | 16 A_w_i | 24 B_x (unused by the reference) | 32 B_w1 | 40 B_b1 | 48 B_w2 | 56 B_b2 | 64 out | 72 dbg | 80 ws\n; workgroup (i,c): 128 rows {64a+4i+w}, hidden columns of pair c/2; even c: 5 GEMM1 + 4 GEMM2 jobs (+ 64-pt DFT / filter / inverse along S),\n; odd c: 4 + 5 jobs (+ radix-2 DFT along D and 32-pt stage along S).  Hand-offs through d_ws: write-through stores + launch-tagged flags.\n' + hdr + '.amdgcn_target "amdgcn-amd-amdhsa--gfx950"\n.text\n.set CODE_LINES, 26\n'
    s += kstart(k) + body + 'L_codeend:\n'
    s += '.section .rodata,"a"\n' + kdesc(k, 512, 256) + tables()
    return s
if __name__ == '__main__':
    out = sys.argv[1] if len(sys.argv) > 1 else f'cdna_kernels/{NAME}.s'
    for x in sys.argv[2:]:
        if '=' in x:
            kx, vx = x.split('='); setattr(Cfg, kx, int(vx) if re.fullmatch(r'-?\d+', vx) and kx != 'sch' else vx)
    open(out, 'w').write(build('--list' in sys.argv))
```

```python
import sys, re
from common2 import *
M = 'v_mfma_f32_32x32x16_bf16'
VL16=0; VT1=1; VLANE=2; VT3=3; VA1=4; VB1=5; VA2=6; VB2=7
XF=8; ACC=[152,184]; TMP=216; HO=224; TA=240; VBI=246; VC0=247; VFL=248; VPO=250; VTB=252; VTT=254
HF=32; TW=176
SX,SW1,SW2,SWS,SWR,SWI,SOUT,SB,SDBG = 4,8,12,16,20,24,28,32,36
sWV,sI,sC,sB,sROLE,sNON = 40,41,42,43,44,45
sO1=46; sO2=55; sW2K=64; sHS=65; sPS=66; sFLG=67; sT=68; sT2=69; sGC1=70; sP=71
sRHO=39
sX0=96
R_ODD,R_DFT,R_SMID,R_UNIT,R_FIN,R_FINW,R_PATCH = 0,1,2,3,4,5,6
PF=3; NB=4
GC0 = -2.0*math.log2(math.e)*math.sqrt(2/math.pi); GC1 = GC0*0.044715
BIAS_LDS = 147456
GS = 15/32
B2_LDS = 163840 - 2048
class Cfg:
    stamps=False; st='1,2,3,4,5,6,7,8,9,10'; xa=3; lg=1; pm=340; f8=99; w3d=1; f2o=44; e2nd=22; blk=6; rfi=10; f6=54; p9=30; sch='-1x1'; ta=22; tws=1; m0=10; sn=0; lo=0; slp3=1; twe=1; pre=2; wl='_13'; hd=0; nonorm=0; eo=1; hf=0; j1=1; tw3=0; nl=2; wsl=0; bf=0; fp0=7; be=1; ce=0; f9=0; nso=1; ct=1; xl=9; pts='25'; mw=1; cp=0; fs=1; fw=1; pd=18; ls=3; rf=1; w3b=0; ecl=1; ge=37; c5=24; pe=23; e8=6; nt=0; f5h=76; noclr=0; t1=5; t2=99; ne=9; c0=20; b2=1; pz1=0; pz2=4; sd=4; tw1=1; warm=1; wmode='execz'; clk=0; xe=1; fp=3; f7=60; gs=1; l9=46; l10=34; mg=0; tn=108; w2k=99; rots=1; np=6; te=0; pt='w2,b1,b2,wr,wi,dbg'; w3=1; xo=1; f16=1; gs0=1; e2=50; l2=0; t9=30; t10=8; pfg=44; ofl='sc1'; h8=44; f4=26; c4=20; f5=14; p8=60; fg=24; pg=52; cg=8; tb=4; normin=0; rx=8; rota=1; rotb=1; touch='x2,w,tab,code'; spin=100000; slp=8; slp2=2; rr=1; wt=1
def h2(x):
    u = struct.unpack('<H', struct.pack('<e', x))[0]; return u | u << 16
def S(b): return f's[{b}:{b+3}]'
def stamp(a, nm):
    if not Cfg.stamps: return
    L = ['0'] + Cfg.st.split(',') + ['11']
    nm = str(nm)
    if nm in L:
        i = L.index(nm) if nm != '11' else 11
        a(f'{"s_memtime" if Cfg.clk else "s_memrealtime"} s[{72+2*i}:{73+2*i}]')
def stamp_flush(a, n):
    if not Cfg.stamps: return
    a.vdrain(); stamp(a, n); n += 1
    a(f'''s_waitcnt lgkmcnt(0)
    s_mov_b32 s{SWS+2}, {STAMP_OFF + (1<<20)}
    v_mov_b32 v1, 0''')
    for i in range(n): a(f'v_writelane_b32 v1, s{72+2*i}, {i}')
    a(f'v_writelane_b32 v1, s53, 12\nv_writelane_b32 v1, s11, 13\nv_writelane_b32 v1, s{sP}, 14')
    a(f'''s_lshl_b32 s{sT}, s2, 3
    s_add_u32 s{sT}, s{sT}, s{sWV}
    s_lshl_b32 s{sT}, s{sT}, 6
    s_add_u32 s{sT}, s{sT}, {STAMP_OFF}
    v_lshlrev_b32 v3, 2, v{VLANE}
    s_mov_b64 exec, 0xffff
    buffer_store_dword v1, v3, {S(SWS)}, s{sT} offen
    s_mov_b64 exec, -1''')
def brole(a, bit, lab, ifset=True):
    a(f's_bitcmp1_b32 s{sROLE}, {bit}\ns_cbranch_scc{1 if ifset else 0} {lab}')

def V(s, c=1): return (c, lambda a: a(s))
def VM(s, tag=None): return (1, lambda a: a.vm(s, tag))
def LD(s, tag=None): return (1, lambda a: a.lds(s, tag))
def FN(f, c=1): return (c, f)
def SVM(pre, s, tag=None): return (1, lambda a: (a(pre), a.vm(s, tag)))
def emit(a, ops):
    for _, f in ops: f(a)

def sops(txt):
    L = [x.split(';')[0].strip() for x in txt.split('\n')]; L = [x for x in L if x]
    o = []; cur = []
    for i, x in enumerate(L):
        cur.append(x)
        nx = L[i+1] if i+1 < len(L) else ''
        if nx.startswith(('s_cselect', 's_addc', 's_subb', 'v_cndmask', 's_nop')) or x.startswith(('s_nop', 'v_cmp')): continue
        o.append(V('\n'.join(cur), len(cur))); cur = []
    return o
def mix(x, y):
    o = []; k = 0
    for i, e in enumerate(x):
        o.append(e)
        t = len(y)*(i+1)//len(x)
        while k < t: o.append(y[k]); k += 1
    return o
def gelu_ops(acc, job, nb=None, sd=0):
    ops = []; G = 4; held = []
    for g in range(0, 32, G):
        t = [TMP + (g//G % 2)*4 + i for i in range(G)]
        x = [acc + g + i for i in range(G)]
        if not Cfg.f16:
            for i in range(G): ops.append(V(f'v_mul_f32 v{t[i]}, v{x[i]}, v{x[i]}'))
            for i in range(G): ops.append(V(f'v_fma_f32 v{t[i]}, v{t[i]}, s{sGC1}, v{VC0}'))
            for i in range(G): ops.append(V(f'v_mul_f32 v{t[i]}, v{t[i]}, v{x[i]}'))
            for i in range(G): ops.append(V(f'v_exp_f32 v{t[i]}, v{t[i]}', 2))
            for i in range(G): ops.append(V(f'v_add_f32 v{t[i]}, 1.0, v{t[i]}'))
            for i in range(G): ops.append(V(f'v_rcp_f32 v{t[i]}, v{t[i]}', 2))
            for i in range(G): ops.append(V(f'v_mul_f32 v{t[i]}, v{t[i]}, v{x[i]}'))
        else:
            HI = 'dst_sel:WORD_1 dst_unused:UNUSED_PRESERVE src0_sel:WORD_1'
            t = [TMP + i for i in range(4)]; u = [TMP + 4, TMP + 5]; w = [TMP + 6, TMP + 7]
            for i in range(2): ops.append(V(f'v_cvt_pk_f16_f32 v{u[i]}, v{x[2*i]}, v{x[2*i+1]}'))
            if Cfg.gs:
                for i in range(2): ops.append(V(f'v_pk_fma_f16 v{w[i]}, v{u[i]}, v{u[i]}, s{sGC1}'))
                for i in range(2): ops.append(V(f'v_pk_mul_f16 v{u[i]}, v{w[i]}, v{u[i]} neg_lo:[1,0] neg_hi:[1,0]'))
            else:
                for i in range(2): ops.append(V(f'v_pk_mul_f16 v{w[i]}, v{u[i]}, v{u[i]}'))
                for i in range(2): ops.append(V(f'v_pk_fma_f16 v{w[i]}, v{w[i]}, s{sGC1}, v{VC0}'))
                for i in range(2): ops.append(V(f'v_pk_mul_f16 v{u[i]}, v{w[i]}, v{u[i]}'))
            for i in range(2): ops.append(V(f'v_exp_f16 v{w[i]}, v{u[i]}', 2))
            for i in range(2): ops.append(V(f'v_exp_f16_sdwa v{w[i]}, v{u[i]} {HI}', 2))
            for i in range(2): ops.append(V(f'v_pk_fma_f16 v{u[i]}, v{w[i]}, v{VC0}, v{VC0}' if Cfg.gs else f'v_pk_add_f16 v{u[i]}, v{w[i]}, 1.0 op_sel_hi:[1,0]'))
            for i in range(2): ops.append(V(f'v_rcp_f16 v{t[2*i]}, v{u[i]}', 2))
            for i in range(2): ops.append(V(f'v_rcp_f16_sdwa v{t[2*i+1]}, v{u[i]} dst_sel:WORD_0 dst_unused:UNUSED_PAD src0_sel:WORD_1', 2))
            for i in (0, 2, 1, 3): ops.append(V(f'v_fma_mix_f32 v{t[i]}, v{x[i]}, v{t[i]}, 0 op_sel_hi:[0,1,0]'))
        if nb is not None: ops.append((2, lambda a, g=g: a.lds(f'ds_read_b128 {vr(acc+g)}, v{VBI} offset:{256*nb + 8*g}', 'bias')))
        for i in range(0, G, 2): ops.append(V(f'v_cvt_pk_bf16_f32 v{HO + (g+i)//2}, v{t[i]}, v{t[i+1]}'))
        for i in range(0, G, 2): ops.append(V(f'v_accvgpr_write_b32 a{HF + 16*job + (g+i)//2}, v{HO + (g+i)//2}'))
        if g % 8 == 4:
            q = g // 8
            if q == 0: ops.append(V(f's_add_u32 s{sT2}, s{sHS}, {4096*job}'))
            held.append(VM(f'buffer_store_dwordx4 {vr(HO+4*q)}, v{VL16}, {S(SWS)}, s{sT2} offen offset:{1024*q} sc1', ('h', job)))
        if held and g//4 >= sd: ops.append(held.pop(0))
    return ops
def part_ops(acc, lam):
    ops = []
    for q in range(4):
        if q % 2 == 0: ops.append(V(f's_add_u32 s{sT2}, s{sPS}, {16384*(2*lam + q//2)}' if lam != 9 else f's_add_u32 s{sT2}, s{sL9}, {16384*(q//2)}'))
        for i in range(4): ops.append(V(f'v_cvt_pk_bf16_f32 v{HO+4*q+i}, v{acc+8*q+2*i}, v{acc+8*q+2*i+1}'))
        ops.append(VM(f'buffer_store_dwordx4 {vr(HO+4*q)}, v{VL16}, {S(SWS)}, s{sT2} offen offset:{1024*(q%2)} sc1', ('p', lam)))
    return ops
def clear_ops(sreg, imms, tag, r=HO):
    if Cfg.noclr: return [V('s_nop 0')]
    ops = [V(f'v_mov_b32 v{r+i}, -1' if r > 0 else f'v_accvgpr_write_b32 a{-r+i}, -1') for i in range(4)]
    ops = [(0, f) for _, f in ops]
    for im in imms:
        for k in range(2): ops.append(SVM(f's_add_u32 s3, s{sreg}, {im}', f'buffer_store_dwordx4 {vr(r) if r > 0 else ar(-r)}, v{VL16}, {S(SWS)}, s3 offen offset:{1024*k} sc1', tag))
    return ops
def sent_check(a, tag, regs, t, reload_lines, probe=None, slp=None):
    lc = a.label('SC'); ls = a.label('SS'); lk = a.label('SK')
    a.vneed(tag)
    a(f'{lc}:')
    rs = []
    for i, r in enumerate(regs):
        if r[0] == 'a': a(f'v_accvgpr_read_b32 v{t+i}, {r}'); rs.append(f'v{t+i}')
        else: rs.append(r)
    a(f'v_max_u32 v{t}, {rs[0]}, {rs[1]}')
    for i in range(2, len(rs), 2): a(f'v_max3_u32 v{t}, v{t}, {rs[i]}, {rs[i+1]}')
    a(f'v_cmp_eq_u32 vcc, -1, v{t}\ns_nop 1\ns_cmp_lg_u64 vcc, 0\ns_cbranch_scc1 {ls}\n{lk}:')
    pr = []
    if probe:
        pr = [' ' + x for x in probe[0]] + [f' v_and_b32 v{t+1}, {probe[1]}, v{VLANE}', f' v_lshlrev_b32 v{t+1}, 10, v{t+1}', f' buffer_load_dword v{t}, v{t+1}, {S(SWS)}, s3 offen offset:1020 sc1',
              ' s_waitcnt vmcnt(0)', f' v_cmp_eq_u32 vcc, -1, v{t}', ' s_nop 1', ' s_cmp_lg_u64 vcc, 0', f' s_cbranch_scc1 {ls}']
    a.ool += [f'{ls}:', f' s_sub_u32 s{sP}, s{sP}, 1', f' s_cbranch_scc1 {ls}_x', f' s_sleep {slp or (Cfg.slp2 if probe else Cfg.slp)}'] + pr + [x if x.endswith(':') else ' ' + x for x in reload_lines] + [' s_waitcnt vmcnt(0)', f' s_branch {lc}',
              f'{ls}_x:', f' s_mov_b32 s{sP}, 0', f' s_branch {lk}']
def lines_of(ops):
    t = E(); emit(t, ops); return [x.strip() for x in t.l]
def norm_ops(u):
    if Cfg.nonorm: return [V(f'v_mov_b32 v{HO}, v{HO}')]*(24 if u >= 18 - Cfg.nl - 1 else 2)
    T = HO; r = XF + 8*u; ops = []
    for i in range(8): ops.append(V(f'v_dot2_f32_bf16 v{T+i}, v{r+i}, v{TMP+4}, v{TMP}'))
    for i in range(8): ops.append(V(f'v_dot2_f32_bf16 v{T+8+i}, v{r+i}, v{TMP+5}, v{TMP}'))
    for i in range(8): ops.append(V(f'v_cvt_pk_bf16_f32 v{r+i}, v{T+2*i}, v{T+2*i+1}'))
    return ops
def setflag(a, stage, *tags, off=None):
    a(f'v_mov_b32 v{VFL+1}, {stage}')
    a.vneed(*tags)
    a('s_mov_b64 exec, 1')
    a.vm(f'buffer_store_dwordx2 {vr(VFL,2)}, off, {S(SWS)}, s{sFLG if off is None else off} sc1')
    a('s_mov_b64 exec, -1')
def setflag2(a, stage, *tags):
    if stage == 8 and Cfg.sn: return
    a(f'v_add_u32 v{VFL+1}, {stage-1}, v{VFL}')
    a(f's_add_u32 s3, s{sFLG}, {(stage-5)*16384*Cfg.fw if Cfg.fs else 0}')
    a.vneed(*tags)
    a('s_mov_b64 exec, 1')
    a.vm(f'buffer_store_dword v{VFL+1}, off, {S(SWS)}, s3 sc1')
    a('s_mov_b64 exec, -1')
def poll_ins(p, voff, soff): return f'buffer_load_dwordx2 {vr(p,2)}, v{voff}, {S(SWS)}, {soff} offen sc1' if voff is not None else f'buffer_load_dwordx2 {vr(p,2)}, off, {S(SWS)}, {soff} sc1'
def poll_test(a, p, need):
    a(f'''v_subrev_u32 v{p+1}, {need}, v{p+1}
    v_cmp_ne_u32 vcc, s{sNON}, v{p}
    v_cmp_lt_u32 s[{sX0+4}:{sX0+5}], 60, v{p+1}
    s_nop 1
    s_or_b64 vcc, vcc, s[{sX0+4}:{sX0+5}]''')
SPL = 0
def spoll_i(a): a(f's_buffer_load_dwordx2 s[{SPL}:{SPL+1}], {S(SWS)}, s34 glc'); a.smem = True
def spoll_c(need):
    def f(a):
        lc = a.label('QC'); lk = a.label('QK')
        a.drain()
        a(f"""s_sub_u32 s{SPL+1}, s{SPL+1}, {need}
        s_cmp_lt_u32 s{SPL+1}, 60
        s_cselect_b32 s{SPL}, s{SPL}, 0
        s_cmp_lg_u32 s{SPL}, s{sNON}
        s_cbranch_scc1 {lc}
        {lk}:""")
        t = E(); poll_test(t, VPO, need)
        a.ool += [f'{lc}:', ' ' + poll_ins(VPO, None, 's34'), ' s_waitcnt vmcnt(0)'] + t.l + [f' s_cbranch_scc0 {lk}', f' s_sub_u32 s{sP}, s{sP}, 1', f' s_cbranch_scc1 {lc}_x', f' s_sleep {Cfg.slp}', f' s_branch {lc}',
                  f'{lc}_x:', f' s_mov_b32 s{sP}, 0', f' s_branch {lk}']
    f.drains = True
    return f
def dodrain(a): a.drain()
dodrain.drains = True
def poll_check(a, tag, p, voff, soff, need):
    lc = a.label('PC'); ls = a.label('PS'); lk = a.label('PK')
    a.vneed(tag)
    a(f'{lc}:'); poll_test(a, p, need)
    a(f's_cbranch_scc1 {ls}\n{lk}:')
    a.ool += [f'{ls}:', f' s_sub_u32 s{sP}, s{sP}, 1', f' s_cbranch_scc1 {ls}_x', f' s_sleep {Cfg.slp}', ' ' + poll_ins(p, voff, soff), ' s_waitcnt vmcnt(0)', f' s_branch {lc}',
              f'{ls}_x:', f' s_mov_b32 s{sP}, 0', f' s_branch {lk}']

def slot(q): return (q % 18) * 8192
def rd_ops(kind, q, kk, n):
    fb = (n % NB) * 8; s = slot(q) + kk*2048
    if kind == 'dft':
        b = s // 49152; off = s % 49152
        return [(f'ds_read_b128 {ar(fb)}, v{VPO+b} offset:{off}', ('f', n)), (f'ds_read_b128 {ar(fb+4)}, v{VPO+b} offset:{off+1024}', ('f', n))]
    b = s // 49152; off = s % 49152; L = TA + 2*b; R = L + 1
    return [(f'ds_read_b64_tr_b16 {ar(fb,2)}, v{L} offset:{off}', ('f', n)), (f'ds_read_b64_tr_b16 {ar(fb+2,2)}, v{L} offset:{off+512}', ('f', n)),
            (f'ds_read_b64_tr_b16 {ar(fb+4,2)}, v{R} offset:{off}', ('f', n)), (f'ds_read_b64_tr_b16 {ar(fb+6,2)}, v{R} offset:{off+512}', ('f', n))]
def dma_buf(q, srd_, va, vb, sreg, imm, fl='', srd2=None):
    if Cfg.nso and imm <= 1024 and slot(q) >= imm:
        def f0(a):
            a(f's_add_u32 m0, s{sW2K}, {slot(q) - imm}')
            a.m0fix()
            a.vm(f'buffer_load_dwordx4 v{va}, {S(srd_)}, s{sreg} offen offset:{imm} {fl} lds', ('d', q))
        def f1(a): a.vm(f'buffer_load_dwordx4 v{vb}, {S(srd2 or srd_)}, s{sreg} offen offset:{1024+imm} {fl} lds', ('d', q))
        return [f0, f1]
    def f0(a):
        a(f's_add_u32 m0, s{sW2K}, {slot(q)}\ns_add_u32 s{sT}, s{sreg}, {imm}')
        a.vm(f'buffer_load_dwordx4 v{va}, {S(srd_)}, s{sT} offen {fl} lds', ('d', q))
    def f1(a): a.vm(f'buffer_load_dwordx4 v{vb}, {S(srd2 or srd_)}, s{sT} offen offset:1024 {fl} lds', ('d', q))
    return [f0, f1]
def dma_tab(q, imm=None, sreg=None):
    def f0(a):
        a(f's_add_u32 m0, s{sW2K}, {slot(q)}')
        if sreg is None: a(f's_mov_b32 s{sX0}, {imm}')
        else: a(f's_lshl_b32 s{sX0}, s{sreg}, 13\ns_add_u32 s{sX0}, s{sX0}, s{sPS}')
        a(f'v_lshl_add_u64 {vr(VTT,2)}, s[{sX0}:{sX0+1}], 0, {vr(VTB,2)}')
        a.vm(f'global_load_lds_dwordx4 {vr(VTT,2)}, off', ('d', q))
    def f1(a): a.vm(f'global_load_lds_dwordx4 {vr(VTT,2)}, off offset:1024', ('d', q))
    return [f0, f1]
def dma_alt(bit, ifset, ifclr, cond=None):
    def f0(a):
        l1 = a.label('DA'); l2 = a.label('DB')
        if not ifclr:
            brole(a, bit, l1, False); s0 = a.snap()
            for f in ifset: f(a)
            a(f'{l1}:'); a.merge(s0, a.snap()); return
        brole(a, bit, l1)
        s0 = a.snap()
        if ifclr:
            for f in ifclr: f(a)
        s1 = a.snap()
        if ifset:
            a(f's_branch {l2}\n{l1}:'); a.restore(s0)
            for f in ifset: f(a)
            a(f'{l2}:'); a.merge(s1, a.snap())
        else:
            a(f'{l1}:'); a.merge(s0, s1)
    return [f0, lambda a: None]
GORD = [1,2,3,4,0,5,6,7,8]; GE = [1,2,3,0,5,4,6,7,8]
class _EO:
    def __getitem__(self, i):
        L = [(6,0),(1,1),(7,0),(2,1),(3,1),(4,1),(0,1),(5,1),(6,1),(7,1),(8,1)]; L.insert(Cfg.e8, (8,0)); return L[i]
EORD = _EO()
def NT(b): return 'nt' if Cfg.nt & b else ''
def w1p(q): return dma_buf(q, SW1, VA1, VB1, sO1 + q % 9, 128*(q//9), NT(4))
def w2p(q, g, lam): return dma_buf(q, SW2, VA2, VB2, sO2 + g, 128*lam)
sSV, sFP, sL9 = 46, 54, 10
HOT = []
def plan(q, role=None):
    if q < 27 and role == 'N': return []
    if q < 9 and role == 'D': return dma_tab(q, sreg=sO2+q)
    if q < 45: return w1p(q)
    if q < 72:
        assert role
        if role == 'O':
            return w2p(q, GORD[(q-45)//2], 4 + 2*((q-45) % 2)) if q < 63 else w2p(q, GORD[q-63], 5)
        if q < 51: return w2p(q, GE[q-45], 0)
        if q < 54: return dma_tab(q, TABF_SZ + TABG_SZ + 8192*(q-51))
        if q < 57: return dma_buf(q, SWS, VL16, VL16, sSV, 8192*(q-54), 'sc1 ' + NT(1))
        if q < 60: return []
        return w2p(q, *EORD[q-60])
    if q < 90: return w2p(q, GORD[(q-72) % 9], 2 + (q-72)//9)
    k = q - 90
    if k < 3: return dma_tab(q, 8192*k)
    if k < 9:
        pp = dma_buf(q, SWS, VL16, VL16, sFP, 2048*(k-3), 'sc1')
        if role == 'P': return pp
        def f(a):
            l1 = a.label('DA'); l2 = a.label('DB')
            a(f's_cmp_lg_u32 s11, 0\ns_cbranch_scc1 {l1}')
            for g in pp: g(a)
            a(f'{l2}:')
            t = E(); t(f'{l1}:')
            for g in dma_tab(q, 24576 - 6144 + 2048*(k-3)): g(t)
            t(f's_branch {l2}'); HOT.extend(t.l)
        return [f]
    return dma_tab(q, 8192*k - 36864)

def bias_ops(acc, job): return [LD(f'ds_read_b128 {vr(acc+4*q)}, v{VBI} offset:{256*job + 32*q}', 'bias') for q in range(8)]
def bias_reads(a, acc, job):
    for q in range(8): a.lds(f'ds_read_b128 {vr(acc+4*q)}, v{VBI} offset:{256*job + 32*q}', 'bias')

def run(a, q0, npc, kind, mf, fills, nxt='tr', nextbias=None, norm=False, events=None, role=None, pause=None):
    events = events or {}
    N = 4*npc; n0 = 4*q0
    held = []
    dq = []
    fs = [[ops, s, e, 0, 0, sum(c for c, _ in ops)] for ops, s, e in fills]
    for i in range(N):
        n = n0 + i; q = q0 + i//4; kk = i % 4
        j = i + PF; qn = q0 + j//4
        k2 = kind if j < N else nxt
        r = rd_ops(k2, qn, j % 4, n + PF) if k2 else []
        fb = (n % NB) * 8
        if kk == 0:
            for qq in events.get(('dma0', q), []) + [q + 12] + events.get(('dma', q), []): dq += plan(qq, role)
        paused = pause and pause[0] <= i//4 < pause[0] + pause[1]
        for h in range(2):
            gap = 2*i + h
            if h == 0 and kk == 0: stamp(a, f'q{q}')
            stamp(a, f'g{q0}_{gap}')
            for f in events.get(('pre', gap), []): f(a)
            if h == 0: a.need(('f', n), *(['bias'] if i == 0 else []), *([('f', n+1)] if Cfg.w2k and i % 2 == 0 and q < Cfg.w2k and not a.smem else []))
            acc, op, zero = mf(i//4, kk, h)
            d = vr(acc, 16) if acc >= 0 else ar(-acc, 16); c = '0' if zero else d
            if kind == 'dft': a(f'{M} {d}, {op}, {ar(fb+4*h)}, {c}')
            else:             a(f'{M} {d}, {ar(fb+4*h)}, {op}, {c}')
            if h == 0 and j % 12 == 0 and k2 and (4*q0) % 12 == 0:
                a.vneed(('d', qn), ('d', qn+1), ('d', qn+2), *events.get(('bar', qn), [])); a('s_barrier')
            if h == 0 and j == N and nextbias is not None:
                assert all(f[3] == len(f[0]) for f in fs)
                bias_reads(a, *nextbias)
            m = len(r)//2
            dr = lambda g: Cfg.hd and any(getattr(f, 'drains', False) for f in events.get(g, []))
            held += r[h*m:(h+1)*m]
            if not (dr(gap) or dr(gap+1) or (Cfg.hd > 1 and dr(gap+2))):
                for ins, t in held: a.lds(ins, t)
                held = []
            if dq and not paused and ((h == 1 and (kk % 2 == 0 or len(dq) > 2)) or (len(dq) > N - i - 1)): dq.pop(0)(a)
            if norm and i//2 + 1 < 18:
                emit(a, norm_ops(i//2 + 1)[6*(gap % 4):6*(gap % 4)+6])
            for f in fs:
                if gap >= f[1]:
                    target = f[5] * min(1.0, (gap - f[1] + 1) / (f[2] - f[1]))
                    while f[3] < len(f[0]) and f[4] + f[0][f[3]][0]/2 <= target:
                        f[0][f[3]][1](a); f[4] += f[0][f[3]][0]; f[3] += 1
            for f in events.get(gap, []): f(a)
            if dr(gap):
                for ins, t in held: a.lds(ins, t)
                held = []
    assert all(f[3] == len(f[0]) for f in fs) and not dq
def only(bit, f):
    def g(a):
        l = a.label('ON'); brole(a, bit, l, False); s0 = a.snap()
        f(a); a(f'{l}:'); a.merge(s0, a.snap())
    return g
def masked(test, f):
    def g(a):
        a(test + '\ns_cselect_b64 exec, -1, 0'); s0 = a.snap()
        f(a); a('s_mov_b64 exec, -1'); a.merge(s0, a.snap())
    return g
def rolem(bit, f): return masked(f's_bitcmp1_b32 s{sROLE}, {bit}', f)
def rolem_ops(bit, ops, n): return [FN(rolem(bit, lambda a, x=ops[i:i+n]: emit(a, x))) for i in range(0, len(ops), n)]
def only_ops(bit, ops, n):
    return [FN(only(bit, lambda a, x=ops[i:i+n]: emit(a, x))) for i in range(0, len(ops), n)]
def first_reads(a, kind, q):
    for ks in range(PF):
        for ins, t in rd_ops(kind, q, ks, 4*q + ks): a.lds(ins, t)
def interleave(a, mf, ops, start=0):
    n = len(mf) - start; k = 0
    for i, x in enumerate(mf):
        a(x)
        if i >= start:
            t = len(ops) * (i - start + 1) // n
            while k < t: ops[k][1](a); k += 1

def twiddle_ops(dst, t, sym, sb, scale=None):
    o = [f'v_and_b32 v{t}, 31, v{VLANE}', f'v_lshrrev_b32 v{t+1}, 5, v{VLANE}']
    if sym == 'fwd':
        o += [f'v_lshlrev_b32 v{t+1}, 8, v{t+1}', f'v_add_u32 v{t+1}, s{sb}, v{t+1}', f'v_mul_u32_u24 v{t+1}, v{t+1}, v{t}', f'v_lshlrev_b32 v{t}, 6, v{t}']
        mult = lambda tt, e: 16*tt + (e & 3) + 8*(e >> 2)
    else:
        o += [f'v_lshlrev_b32 v{t}, 6, v{t}', f'v_add_u32 v{t}, s{sb}, v{t}', f'v_lshlrev_b32 v{t+1}, 3, v{t+1}', f'v_mul_u32_u24 v{t+1}, v{t+1}, v{t}']
        mult = lambda tt, e: 16*tt + e
    for tt in range(2):
        for e in range(0, 8, 2):
            for i in range(2): o.append(f'v_mad_u32_u24 v{t+2+i}, v{t}, {mult(tt, e+i)}, v{t+1}')
            for i in range(2): o.append(f'v_and_b32 v{t+2+i}, 0x7ff, v{t+2+i}')
            for i in range(2): o.append(f'v_cvt_f32_u32 v{t+2+i}, v{t+2+i}')
            for i in range(2): o.append(f'v_mul_f32 v{t+2+i}, {f2u(1/2048):#x}, v{t+2+i}')
            for i in range(2): o.append(f'v_cos_f32 v{t+4+i}, v{t+2+i}')
            for i in range(2): o.append(f'v_sin_f32 v{t+2+i}, v{t+2+i}')
            if scale:
                for i in (2,3,0,1): o.append(f'v_mul_f32 v{t+2+i}, {f2u(scale):#x}, v{t+2+i}')
            d = 4*tt + e//2
            o += [f'v_cvt_pk_bf16_f32 v{t+4}, v{t+4}, v{t+5}', f'v_cvt_pk_bf16_f32 v{t+2}, v{t+2}, v{t+3}', f'v_accvgpr_write_b32 a{dst+d}, v{t+4}',
                  f'v_xor_b32 v{t+3}, 0x80008000, v{t+2}', f'v_accvgpr_write_b32 a{dst+8+d}, v{t+2}', f'v_accvgpr_write_b32 a{dst+16+d}, v{t+3}']
    return [V(x) for x in o]

def prologue(a):
    rx = Cfg.rx; cx = 32//rx; nxc = 16//cx
    a(f"""s_cmpk_ge_u32 s2, 256
    s_cbranch_scc1 L_end
    s_load_dwordx16 s[44:59], s[0:1], 0
    s_load_dwordx4 s[60:63], s[0:1], 64
    s_load_dwordx2 s[64:65], s[0:1], 80
    s_memrealtime s[66:67]""")
    stamp(a, 0)
    a(f"""s_getpc_b64 s[100:101]
    L_pcref:
    s_lshr_b32 s97, s2, 3
    s_mul_i32 s97, s97, CODE_LINES*128
    v_lshlrev_b32 v{VPO}, 7, v0
    v_add_u32 v{VPO}, s97, v{VPO}
    v_min_u32 v{VPO}, L_codeend-L_pcref-4, v{VPO}
    v_mov_b32 v{VPO+1}, 0
    v_lshl_add_u64 {vr(VPO,2)}, s[100:101], 0, {vr(VPO,2)}
    v_cmp_gt_u32 vcc, CODE_LINES, v0
    s_and_saveexec_b64 s[98:99], vcc
    s_cbranch_execz L_noct
    global_load_dword a255, {vr(VPO,2)}, off
    L_noct:
    s_mov_b64 exec, -1
    s_and_b32 s96, s2, 7
    s_lshr_b32 s97, s2, 3
    s_and_b32 s{sC}, s96, {nxc-1}
    s_mul_i32 s{sC}, s{sC}, {cx}
    s_and_b32 s98, s97, {cx-1}
    s_add_u32 s{sC}, s{sC}, s98
    s_lshr_b32 s{sI}, s96, {nxc.bit_length()-1}
    s_mul_i32 s{sI}, s{sI}, {rx}
    s_lshr_b32 s98, s97, {cx.bit_length()-1}
    s_add_u32 s{sI}, s{sI}, s98
    v_lshrrev_b32 v1, 6, v0
    v_and_b32 v{VLANE}, 63, v0
    v_mov_b32 v{VTT}, v0
    v_readfirstlane_b32 s{sWV}, v1
    v_lshlrev_b32 v{VL16}, 4, v{VLANE}
    v_lshrrev_b32 v1, 3, v{VLANE}
    v_and_b32 v3, 7, v{VLANE}
    v_lshrrev_b32 v4, 1, v1
    v_xor_b32 v3, v3, v4
    s_mov_b32 s96, 73728
    v_mul_lo_u32 v1, v1, s96
    v_lshl_add_u32 v144, v3, 4, v1
    v_xor_b32 v145, 64, v144
    v_add_u32 v145, {8*73728-1024}, v145
    v_add_u32 v146, {16*73728}, v144
    v_add_u32 v147, {16*73728}, v145
    s_lshl_b32 s{sB}, s{sI}, 2
    s_add_u32 s{sB}, s{sB}, s{sWV}
    s_mul_i32 s96, s{sI}, {Cfg.rota}
    s_lshr_b32 s97, s{sC}, {Cfg.rots}
    s_mul_i32 s97, s97, {Cfg.rotb}
    s_add_u32 s96, s96, s97
    s_mul_i32 s97, s96, 7282
    s_lshr_b32 s97, s97, 16
    s_mul_i32 s97, s97, 9
    s_sub_u32 s96, s96, s97         ; rot
    s_mul_i32 s3, s{sB}, 1152
    s_lshl_b32 s99, s{sWV}, 11
    s_getpc_b64 s[100:101]
    s_add_u32 s100, s100, tabF@rel32@lo+4
    s_addc_u32 s101, s101, tabF@rel32@hi+12
    s_mov_b32 s{SX+2}, {2048*1152}
    s_mov_b32 s{SX+3}, 0x20000
    s_lshl_b32 s{sT}, s96, 7
    s_add_u32 s{sT}, s{sT}, s3
    s_mov_b32 m0, s99""")
    XA = HO
    a(f'''v_bfe_u32 v1, v{VLANE}, 3, 2            ; r
    v_lshrrev_b32 v3, 5, v{VLANE}           ; rho
    v_and_b32 v{VB1}, 2, v1
    v_lshlrev_b32 v{VB1}, 1, v{VB1}
    v_and_b32 v{VB2}, 7, v{VLANE}
    v_xor_b32 v{VB2}, v{VB2}, v{VB1}
    v_lshlrev_b32 v{VB2}, 4, v{VB2}
    v_lshl_add_u32 v1, v3, 3, v1            ; 8rho+r
    s_lshr_b32 s70, s{sWV}, 1
    s_lshl_b32 s70, s70, 5
    s_and_b32 s71, s{sWV}, 1
    s_add_u32 s70, s70, s71
    v_lshlrev_b32 v3, 1, v1
    v_add_u32 v3, s70, v3
    v_mul_u32_u24 v3, 9216, v3
    v_add_u32 v{VA1}, v3, v{VB2}
    v_add_u32 v{VB1}, {8*9216-1024}, v{VA1}
    s_lshl_b32 s70, s{sWV}, 4
    v_add_u32 v1, s70, v1
    v_mul_u32_u24 v1, 1152, v1
    v_add_u32 v{VA2}, v1, v{VB2}
    v_add_u32 v{VB2}, {4*1152-1024}, v{VA2}''')
    a(f'''v_lshrrev_b32 v1, 5, v{VLANE}
    v_lshlrev_b32 v{VBI}, 4, v1
    v_add_u32 v{VBI}, {BIAS_LDS}, v{VBI}
    v_bfe_u32 v3, v{VLANE}, 2, 2
    v_lshl_add_u32 v1, v1, 3, v3
    v_lshlrev_b32 v1, 7, v1
    v_and_b32 v3, 2, v3
    v_lshl_add_u32 v1, v3, 5, v1
    v_bfe_u32 v3, v{VLANE}, 4, 1
    v_lshl_add_u32 v1, v3, 5, v1
    v_and_b32 v3, 3, v{VLANE}
    v_lshl_add_u32 v{TA}, v3, 3, v1
    v_xor_b32 v{TA+1}, 64, v{TA}
    v_add_u32 v{TA+2}, 49152, v{TA}
    v_add_u32 v{TA+3}, 49152, v{TA+1}
    v_add_u32 v{TA+4}, 98304, v{TA}
    v_add_u32 v{TA+5}, 98304, v{TA+1}''')
    a(f'''v_and_b32 v1, 15, v{VLANE}
    v_lshlrev_b32 v1, 7, v1
    v_bfe_u32 v3, v{VLANE}, 4, 1
    v_lshl_add_u32 v1, v3, 13, v1
    v_add_u32 v1, s99, v1
    v_lshrrev_b32 v3, 5, v{VLANE}
    v_bfe_u32 v{XA}, v{VLANE}, 1, 3
    v_xor_b32 v3, v3, v{XA}
    v_lshl_add_u32 v{XA}, v3, 4, v1
    v_xor_b32 v{XA+1}, 32, v{XA}
    v_xor_b32 v{XA+2}, 64, v{XA}
    v_xor_b32 v{XA+3}, 96, v{XA}
    s_mov_b32 s{sT2}, 0x3f803f80''')
    for i in range(8): a(f'v_mov_b32 v{TMP+i}, 0')
    if Cfg.pre >= 2:
        t = E(); xearly_addr(t); a('\n'.join(t.l).replace('s96', 's97').replace('s98', 's70').replace('s99', 's71'))
    stamp(a, 'k0')
    a(f"""s_waitcnt lgkmcnt(0)
    s_mov_b32 s{SX}, s44
    s_and_b32 s{SX+1}, s45, 0xffff""")
    stamp(a, 'ka')
    if Cfg.wt:
        a(f'''s_lshr_b32 s97, s{sC}, 1
        s_add_u32 s98, s97, s{sI}
        s_and_b32 s98, s98, 7
        s_bitcmp1_b32 s{sC}, 0
        s_cselect_b32 s98, s98, 0
        s_cmp_lt_u32 s98, 5
        s_cbranch_scc1 L_nowt
        s_sub_u32 s98, s98, 5
        s_lshl_b32 s70, s98, 6
        s_add_u32 s70, s70, s{sB}
        s_lshl_b32 s98, s98, 2
        s_add_u32 s98, s98, s{sWV}
        s_mul_i32 s98, s98, {48*9216}
        s_mul_i32 s97, s97, 1152
        s_add_u32 s98, s98, s97
        v_mul_u32_u24 v3, 9216, v{VLANE}
        v_add_u32 v3, s98, v3
        s_mul_i32 s70, s70, {15*128}
        v_lshlrev_b32 v{VPO}, 7, v{VLANE}
        v_add_u32 v{VPO}, s70, v{VPO}
        v_mov_b32 v{VPO+1}, 0
        v_lshl_add_u64 {vr(VPO,2)}, s[100:101], 0, {vr(VPO,2)}
        v_lshlrev_b32 v1, 21, v{VLANE}
        s_bfm_b64 exec, 48, 0
        global_load_dword a255, v3, s[52:53]
        s_bfm_b64 exec, 15, 0
        global_load_dword a255, {vr(VPO,2)}, off
        s_mov_b64 exec, 7
        global_load_dword a255, v1, s[56:57]
        s_mov_b64 exec, 1''')
        for r in (54, 58, 46, 48, 62): a(f'global_load_dword a255, v1, s[{r}:{r+1}] offset:128')
        a('s_mov_b64 exec, -1\nL_nowt:')
    for o in range(4):
        if o == 2: a('s_add_u32 m0, s99, 8192\ns_nop 0')
        a.vm(f'buffer_load_dwordx4 v{144+o}, {S(SX)}, s{sT} offen offset:{1024*(o%2)} lds', ('x', 0))
    a(f's_add_u32 s97, s96, 1\ns_cmp_eq_u32 s97, 9\ns_cselect_b32 s97, 0, s97\ns_lshl_b32 s{sT}, s97, 7\ns_add_u32 s{sT}, s{sT}, s3')
    for o in range(4):
        if o % 2 == 0: a(f's_add_u32 m0, s99, {16384 + 8192*(o//2)}\ns_nop 0')
        a.vm(f'buffer_load_dwordx4 v{144+o}, {S(SX)}, s{sT} offen offset:{1024*(o%2)} lds', ('x', 1))
    srd(a, SDBG, 62, 256); srd(a, SWS, 64, WS_SZ)
    srd(a, SWR, 46, 2048*578); srd(a, SWI, 48, 2048*578); srd(a, SW1, 52, 576*9216); srd(a, SB, 54, 9216)
    srd(a, SW2, 56, 4608*1152); srd(a, SOUT, 60, 2048*1152)
    a(f's_mov_b64 s[0:1], s[58:59]\ns_mov_b32 s{sW2K}, s99')
    XV = 144
    def xline(L):
        a(f's_lshl_b32 s{sT}, s{sO2+L}, 7\ns_add_u32 s{sT}, s{sT}, s3')
        for o in range(4):
            if o % 2 == 0: a(f's_add_u32 m0, s{sW2K}, {16384*L + 8192*(o//2)}\ns_nop 0')
            a.vm(f'buffer_load_dwordx4 v{XV+o}, {S(SX)}, s{sT} offen offset:{1024*(o%2)} lds', ('x', L))
    for L in range(9):
        a(f's_mov_b32 s{sO2+L}, s96')
        if 1 < L < Cfg.xa: xline(L)
        if L < 8: a('s_add_u32 s96, s96, 1\ns_cmp_eq_u32 s96, 9\ns_cselect_b32 s96, 0, s96')
    stamp(a, 'xi')
    nx = [Cfg.xa, 0]
    def xnext():
        if nx[1] < Cfg.xe: xline(nx[0]); nx[0] += 1; nx[1] += 1
    a(f'''s_or_b32 s66, s66, 1
    s_add_u32 s97, s2, s{sWV}
    s_cmp_lg_u32 s97, 0
    s_cbranch_scc1 L_nonon
    v_mov_b32 v1, s66
    s_mov_b64 exec, 1
    buffer_store_dword v1, off, {S(SDBG)}, 0 sc1
    s_mov_b64 exec, -1
    L_nonon:
    s_lshr_b32 s96, s{sC}, 1            ; p
    s_mul_i32 s{sNON}, s{sI}, {Cfg.rr}
    s_add_u32 s{sNON}, s{sNON}, s96
    s_and_b32 s{sNON}, s{sNON}, 7       ; rho
    s_and_b32 s{sROLE}, s{sC}, 1
    s_cmp_lt_u32 s{sNON}, 5
    s_cselect_b32 s97, s{sROLE}, 0
    s_lshl_b32 s97, s97, {R_DFT}
    s_xor_b32 s98, s{sROLE}, 1
    s_cmp_lt_u32 s{sNON}, 6
    s_cselect_b32 s98, s98, 0
    s_cmp_lt_u32 s{sWV}, 3
    s_cselect_b32 s99, {(1<<R_SMID)|(1<<R_UNIT)}, {1<<R_SMID}
    s_mul_i32 s98, s98, s99
    s_cselect_b32 s99, {(1<<R_FIN)|(1<<R_FINW)}, {1<<R_FIN}
    s_or_b32 s97, s97, s98
    s_and_b32 s98, s{sC}, 3
    s_cmp_lg_u32 s98, 2
    s_cselect_b32 s99, s99, 0
    s_or_b32 s97, s97, s99
    s_lshl_b32 s98, s{sROLE}, 8
    s_or_b32 s{sROLE}, s{sROLE}, s97
    s_lshl_b32 s97, s{sNON}, 8
    s_or_b32 s{sROLE}, s{sROLE}, s97
    s_mul_i32 s97, s96, 576
    s_add_u32 s97, s97, s98                ; f_base
    v_add_u32 v1, s97, v{VTT}
    v_lshlrev_b32 v1, 1, v1''')
    a(f'v_mov_b32 v{HO+15}, v1\nv_lshlrev_b32 v{HO+11}, 2, v{VTT}')
    if not Cfg.xo: xnext()
    def bloads():
        a.vm(f'buffer_load_ushort v{ACC[1]+12}, v{HO+15}, {S(SB)}, 0 offen', 'b1')
        a.vm(f'buffer_load_ushort v{ACC[1]+13}, v{HO+15}, {S(SB)}, 0 offen offset:512', 'b1')
        a(f's_mov_b32 s{SB}, s0\ns_and_b32 s{SB+1}, s1, 0xffff\ns_mov_b32 s{SB+2}, 1152\ns_lshl_b32 s98, s{sWV}, 8\ns_add_u32 m0, s98, {B2_LDS}\ns_nop 0')
        a.vm(f'buffer_load_dword v{HO+11}, {S(SB)}, 0 offen lds', 'b1')
        a.vm(f'buffer_load_dword v{HO+11}, {S(SB)}, 0 offen offset:1024 lds', 'b1')
        a(f's_mov_b32 s35, s{sNON}')
    a(f'''v_lshlrev_b32 v{ACC[1]+14}, 2, v{VTT}
    v_add_u32 v{ACC[1]+14}, {BIAS_LDS}, v{ACC[1]+14}
    s_mul_i32 s{sHS}, s{sB}, 288
    s_lshr_b32 s98, s97, 4
    s_add_u32 s{sHS}, s{sHS}, s98
    s_lshl_b32 s{sHS}, s{sHS}, 10
    s_lshl_b32 s97, s97, 1''')
    for g in range(9): a(f's_mul_i32 s{sO1+g}, s{sO2+g}, {64*9216}\ns_add_u32 s{sO1+g}, s{sO1+g}, s97')
    a(f's_mul_i32 s{sPS}, s{sNON}, 73728')
    a(f'''v_add_u32 v{VTB}, s{sW2K}, v{VL16}
    v_mov_b32 v{VTB+1}, 0
    v_lshl_add_u64 {vr(VTB,2)}, s[100:101], 0, {vr(VTB,2)}
    s_mov_b32 s{sX0+1}, 0
    s_lshl_b32 s{sFLG}, s{sB}, 4
    s_add_u32 s{sFLG}, s{sFLG}, s{sC}
    s_lshl_b32 s{sFLG}, s{sFLG}, 7
    s_add_u32 s{sFLG}, s{sFLG}, {FL_OFF}
    s_mov_b32 s{sP}, {Cfg.spin}
    s_mov_b32 s{sGC1}, {(h2(-GC0/GS if Cfg.gs else GC1) if Cfg.f16 else f2u(GC1)):#x}
    v_mov_b32 v{VC0}, {(h2(GS if Cfg.gs else GC0) if Cfg.f16 else f2u(GC0)):#x}
    s_nop 0''')
    if not Cfg.xo: xnext()
    if not Cfg.xo: xnext()
    XA = HO
    smid_ids(a)
    a(f'''s_add_u32 s98, s96, s{sWV}
    s_cmp_eq_u32 s98, 4
    s_cselect_b32 s{sNON}, {1<<R_PATCH}, 0
    s_bitcmp1_b32 s{sROLE}, {R_UNIT}
    s_cselect_b32 s{sNON}, s{sNON}, 0
    s_or_b32 s{sROLE}, s{sROLE}, s{sNON}
    s_cmp_lt_u32 s98, 5
    s_cselect_b32 s{sNON}, 2, 0
    s_lshl_b32 s98, s98, 6
    s_add_u32 s{sNON}, s{sNON}, s98
    s_mul_i32 s99, s99, 578
    s_add_u32 s{sNON}, s{sNON}, s99
    v_lshrrev_b32 v3, 2, v{VLANE}
    v_mul_u32_u24 v3, 18496, v3
    v_and_b32 v1, 3, v{VLANE}
    v_lshl_add_u32 v3, v1, 4, v3''')
    a(f'''s_lshr_b32 s98, s2, 3
    s_lshl_b32 s98, s98, 2
    s_add_u32 s98, s98, s{sWV}
    s_lshr_b32 s99, s98, 1
    s_mul_i32 s99, s99, {9*9216}
    s_and_b32 s98, s98, 1
    s_mul_i32 s98, s98, 1152
    s_add_u32 s99, s99, s98
    s_and_b32 s98, s{sC}, {16-cx}
    s_mul_i32 s98, s98, 576
    s_add_u32 s99, s99, s98
    v_mul_u32_u24 v1, 43, v{VLANE}
    v_lshrrev_b32 v1, 8, v1
    v_mul_u32_u24 v{VPO}, 6, v1
    v_sub_u32 v{VPO}, v{VLANE}, v{VPO}
    v_add_u32 v{VPO+1}, 1, v{VPO}
    v_lshrrev_b32 v{VPO+1}, 2, v{VPO+1}
    v_add3_u32 v{VPO}, v{VPO}, v{VPO+1}, 2
    v_mul_u32_u24 v1, 9216, v1
    v_lshl_add_u32 v1, v{VPO}, 7, v1
    v_add_u32 v{VPO}, s99, v1''')
    if Cfg.pre < 2: xearly_addr(a)
    def stats(L):
        for q in range(4):
            a.need(('x', 4*L+q))
            for i in range(4):
                r = XF + 16*L + 4*q + i
                a(f'v_dot2c_f32_bf16 v{TMP+i}, s{sT2}, v{r}\nv_dot2c_f32_bf16 v{TMP+4+i}, v{r}, v{r}')
    def first_piece(q):
        if q < 9: return dma_alt(R_ODD, dma_alt(R_DFT, dma_tab(q, sreg=sO2+q), None), w1p(q))
        return w1p(q)
    if Cfg.twe: only(R_DFT, lambda a: emit(a, twiddle_ops(TW, ACC[0]+8, 'fwd', sB)))(a)
    stamp(a, 'w0')
    if Cfg.warm:
        brole(a, R_ODD, 'L_wo')
        a('; WARM 1\ns_branch L_main\nL_wo:\n; WARM 2')
    a('s_branch L_main\n.p2align 12\nL_main:')
    npc0 = 0
    if Cfg.xo:
        while nx[1] < Cfg.xe: xnext()
    for L in range(10):
        if L < 9:
            stamp(a, f'xa{L}')
            a.vneed(('x', L))
            stamp(a, f'xb{L}')
            if L in (4, 8):
                for q in range(4): a(f'v_add_u32 v{XA+q}, 0x10000, v{XA+q}')
            for q in range(4): a.lds(f'ds_read_b128 {vr(XF+16*L+4*q)}, v{XA+q} offset:{16384*(L%4)}', ('x', 4*L+q))
        if L == 9: stamp(a, 1)
        if nx[0] < 9:
            xline(nx[0]); nx[0] += 1
            if nx[0] == 9: bloads()
        elif L >= Cfg.fp0 and npc0 < 2*Cfg.fp:
            qs = (npc0, npc0+1)
            dma_alt(R_ODD, dma_alt(R_DFT, [f for q in qs for f in dma_tab(q, sreg=sO2+q)], None), [f for q in qs for f in w1p(q)])[0](a)
            npc0 += 2
        if L == Cfg.xl: only(R_FINW, xearly)(a)
        if L: stats(L-1)
        if Cfg.warm and str(L) in Cfg.wl:
            l1 = a.label('WA'); l2 = a.label('WB'); brole(a, R_ODD, l1)
            a(f'; WARM 1\ns_branch {l2}\n{l1}:\n; WARM 2\n{l2}:')
    rest = [FN(f) for q in range(npc0, Cfg.np) for f in first_piece(q)]
    rest += [VM(f'buffer_load_dword v{VFL}, off, {S(SDBG)}, 0 sc1', 'non')]
    T = TMP
    a(f'''s_nop 2
    v_add_f32 v{T}, v{T}, v{T+1}
    v_add_f32 v{T+2}, v{T+2}, v{T+3}
    v_add_f32 v{T+4}, v{T+4}, v{T+5}
    v_add_f32 v{T+6}, v{T+6}, v{T+7}
    v_add_f32 v{T}, v{T}, v{T+2}
    v_add_f32 v{T+4}, v{T+4}, v{T+6}
    v_mov_b32 v{T+1}, v{T}
    v_mov_b32 v{T+5}, v{T+4}
    s_nop 1
    v_permlane32_swap_b32 v{T}, v{T+1}
    v_permlane32_swap_b32 v{T+4}, v{T+5}
    s_nop 0
    v_add_f32 v{T}, v{T}, v{T+1}
    v_add_f32 v{T+4}, v{T+4}, v{T+5}
    v_mul_f32 v{T}, {f2u(1/576):#x}, v{T}
    v_mul_f32 v{T+4}, {f2u(1/576):#x}, v{T+4}
    v_fma_f32 v{T+4}, -v{T}, v{T}, v{T+4}
    v_max_f32 v{T+4}, 0, v{T+4}
    v_cvt_pk_bf16_f32 v{T}, v{T}, v{T+4}
    v_and_b32 v{T+4}, 0xffff0000, v{T}
    v_lshlrev_b32 v{T}, 16, v{T}
    v_add_f32 v{T+4}, {f2u(1e-5):#x}, v{T+4}
    v_cvt_pk_bf16_f32 v{T+4}, v{T+4}, v{T+4}
    v_and_b32 v{T+4}, 0xffff0000, v{T+4}
    v_sqrt_f32 v{T+4}, v{T+4}
    s_nop 0
    v_cvt_pk_bf16_f32 v{T+4}, v{T+4}, v{T+4}
    v_and_b32 v{T+4}, 0xffff0000, v{T+4}
    v_rcp_f32 v{T+4}, v{T+4}
    s_nop 0
    v_mul_f32 v{T+4}, {f2u(GS if Cfg.gs else 1.0):#x}, v{T+4}
    v_cvt_pk_bf16_f32 v{T+4}, v{T+4}, v{T+4}
    v_and_b32 v{T+5}, 0xffff0000, v{T+4}
    v_lshrrev_b32 v{T+4}, 16, v{T+4}
    v_mul_f32 v{T}, v{T}, v{T+5}
    v_sub_f32 v{T}, 0, v{T}''')
    if Cfg.tn < 216:
        tall = w2touch(0, Cfg.tn*24, -(-(5184 - Cfg.tn*24)//(64 if Cfg.be else 128)), Cfg.be)
        rest.append(FN(tall))
    def w1all(a):
        if Cfg.j1:
            a(f'v_subrev_u32 v{VPO+1}, 128, v{VPO}\ns_mov_b32 exec_lo, 0x49249249\ns_mov_b32 exec_hi, 0x92492')
            a.vm(f'buffer_load_dword a255, v{VPO+1}, {S(SW1)}, 0 offen')
        a('s_bfm_b64 exec, 54, 0')
        a.vm(f'buffer_load_dword a255, v{VPO}, {S(SW1)}, 0 offen')
        a('s_mov_b64 exec, -1')
    if Cfg.tw1: rest.insert(len(rest) - (1 if Cfg.tn < 216 else 0), FN(w1all))
    def wall(a):
        if Cfg.be:
            a(f'''s_lshr_b32 s69, s2, 4
            s_lshl_b32 s69, s69, 3
            s_and_b32 s3, s2, 7
            s_add_u32 s69, s69, s3
            s_lshl_b32 s69, s69, 2
            s_add_u32 s69, s69, s{sWV}
            s_min_u32 s69, s69, 486
            s_mul_i32 s69, s69, {19*128}
            v_lshlrev_b32 v{VTT}, 7, v{VLANE}
            s_bitcmp1_b32 s{sWV}, 0
            s_mov_b64 exec, 0x7ffff''')
            a(f'buffer_load_dword a255, v{VTT}, {S(SWR)}, s69 offen')
        else:
            a(f'''s_lshl_b32 s69, s2, 1
            s_lshr_b32 s3, s{sWV}, 1
            s_add_u32 s69, s69, s3
            s_min_u32 s69, s69, 486
            s_mul_i32 s69, s69, {19*128}
            v_lshlrev_b32 v{VTT}, 7, v{VLANE}
            s_bitcmp1_b32 s{sWV}, 0
            s_cselect_b64 exec, 0x7ffff, 0''')
            a(f'buffer_load_dword a255, v{VTT}, {S(SWR)}, s69 offen')
            a('s_cselect_b64 exec, 0, 0x7ffff')
        a.vm(f'buffer_load_dword a255, v{VTT}, {S(SWI)}, s69 offen')
        a('s_mov_b64 exec, -1')
    rest.insert(len(rest) - (1 if Cfg.tn < 216 else 0), FN(wall))
    if Cfg.normin:
        emit(a, rest); emit(a, norm_ops(0))
    else:
        stamp(a, 'n0')
        a('.p2align 3')
        rest = [FN(lambda a, f=f: (f(a), a('.p2align 3'))) for _, f in rest]
        nt = 1 + (1 if Cfg.tn < 216 else 0) + (1 if Cfg.tw1 else 0)
        tch = rest[-nt:]; rest = rest[:-nt]
        global BATCH2
        BATCH2 = []
        if Cfg.b2: BATCH2 = [wall] + ([tall] if Cfg.tn < 216 else []); tch = tch[:1]
        global B2PRE, B2FIRE
        t = E(); tall(t); k = [x.strip().startswith('s_bfm') for x in t.l].index(True)
        fix = lambda L: '\n'.join(L).replace('s3,', 's0,').replace('s3 ', 's0 ').replace('s96', 's1')
        B2PRE = sops(fix(t.l[:k])); f1 = fix(t.l[k:])
        t = E(); wall(t); k = [x.strip().startswith('s_bitcmp') for x in t.l].index(True)
        B2PRE += sops('\n'.join(t.l[:k])); f2 = '\n'.join(t.l[k:])
        B2FIRE = [lambda a: (a(f2), a.vm('s_nop 0'), a(f1), a.vm('s_nop 0'))]
        N = [o for u in range(18) for o in norm_ops(u)]
        k1 = len(N)*Cfg.t1//100; k2 = len(N)*Cfg.t2//100; ne = 2*Cfg.ne
        global NLAST
        NLAST = [V('.p2align 3')] + N[len(N)-24*Cfg.nl:]; N = N[:len(N)-24*Cfg.nl]
        emit(a, mix(N[:k1], rest[:ne] + tch) + N[k1:-24])
        stamp(a, 'nb')
        a.vneed('b1')
        a(f'v_lshlrev_b32 v{ACC[1]+12}, 16, v{ACC[1]+12}\nv_lshlrev_b32 v{ACC[1]+13}, 16, v{ACC[1]+13}')
        if Cfg.gs: a(f'v_mul_f32 v{ACC[1]+12}, {f2u(GS):#x}, v{ACC[1]+12}\nv_mul_f32 v{ACC[1]+13}, {f2u(GS):#x}, v{ACC[1]+13}')
        a.lds(f'ds_write_b32 v{ACC[1]+14}, v{ACC[1]+12}', 'bw'); a.lds(f'ds_write_b32 v{ACC[1]+14}, v{ACC[1]+13} offset:1024', 'bw')
        a('.p2align 3'); emit(a, N[-24:])
def late_setup():
    a = E()
    a(f'''s_lshr_b32 s96, s{sC}, 1
    s_and_b32 s98, s{sC}, 1
    s_mul_i32 s{sO2}, s96, {576*1152}
    s_lshl_b32 s99, s98, 8
    s_add_u32 s{sO2}, s{sO2}, s99
    s_mul_i32 s99, s98, {256*1152}''')
    for g in range(1, 9):
        a(f's_add_u32 s{sO2+g}, s{sO2}, {64*1152*g}\ns_{"add" if g < 5 else "sub"}_u32 s{sO2+g}, s{sO2+g}, s99')
    a(f'''s_mul_i32 s{sPS}, s{sB}, 18
    s_lshl_b32 s98, s98, 2
    s_add_u32 s{sPS}, s{sPS}, s98
    s_lshl_b32 s{sPS}, s{sPS}, 3
    s_add_u32 s{sPS}, s{sPS}, s96
    s_lshl_b32 s{sPS}, s{sPS}, 11
    s_add_u32 s{sPS}, s{sPS}, {PART_OFF}
    s_and_b32 s98, s{sC}, 1
    s_mul_i32 s32, s{sB}, 288
    s_mul_i32 s99, s96, 36
    s_add_u32 s32, s32, s99
    s_lshl_b32 s32, s32, 10
    s_lshl_b32 s99, s98, 14
    s_sub_u32 s33, s32, s99
    s_xor_b32 s34, s{sFLG}, 128''')
    return sops('\n'.join(a.l))
def w2touch(other, first, per, sub=0):
    def f(a):
        a(f"""s_lshr_b32 s3, s2, {3+sub}
        s_lshl_b32 s3, s3, 2
        s_add_u32 s3, s3, s{sWV}
        s_mul_i32 s3, s3, {per*128}
        s_lshr_b32 s96, s{sI}, 3
        s_xor_b32 s96, s96, {other}
        s_mul_i32 s96, s96, {5184*128}
        s_add_u32 s3, s3, s96
        s_lshr_b32 s96, s{sC}, 2
        s_mul_i32 s96, s96, {2*5184*128}
        s_add_u32 s3, s3, s96
        s_add_u32 s3, s3, {first*128}
        v_lshlrev_b32 v{VTT}, 7, v{VLANE}
        s_bfm_b64 exec, {per}, 0""")
        a.vm(f'buffer_load_dword a255, v{VTT}, {S(SW2)}, s3 offen')
        a('s_mov_b64 exec, -1')
    return f
def tabtouch(a):
    a(f"""s_lshr_b32 s96, s2, 3
    s_lshl_b32 s96, s96, 2
    s_add_u32 s96, s96, s{sWV}
    s_min_u32 s96, s96, 125
    s_mul_i32 s96, s96, {22*128}
    s_add_u32 s96, s96, {TABF_SZ}
    s_sub_u32 s96, s96, s{sW2K}
    v_mul_u32_u24 v{VTT}, 112, v{VLANE}
    v_mov_b32 v{VTT+1}, 0
    v_lshl_add_u64 {vr(VTT,2)}, {vr(VTT,2)}, 0, {vr(VTB,2)}
    v_lshl_add_u64 {vr(VTT,2)}, s[96:97], 0, {vr(VTT,2)}
    s_bfm_b64 exec, 22, 0""")
    a.vm(f'global_load_dword a255, {vr(VTT,2)}, off')
    a('s_mov_b64 exec, -1')
def codetouch(a):
    if not Cfg.ct: return
    l = a.label('CT')
    a(f"""s_getpc_b64 s[100:101]
    {l}:
    s_lshr_b32 s3, s2, 3
    s_lshl_b32 s3, s3, 2
    s_add_u32 s3, s3, s{sWV}
    s_lshl_b32 s3, s3, 8
    v_lshlrev_b32 v{VTT}, 7, v{VLANE}
    v_add_u32 v{VTT}, s3, v{VTT}
    v_min_u32 v{VTT}, L_tailend-L_s9-4, v{VTT}
    s_sub_u32 s100, s100, {l}-L_main
    s_subb_u32 s101, s101, 0
    v_add_u32 v{VTT}, L_s9-L_main, v{VTT}
    v_mov_b32 v{VTT+1}, 0
    v_lshl_add_u64 {vr(VTT,2)}, s[100:101], 0, {vr(VTT,2)}
    s_mov_b64 exec, 3""")
    a.vm(f'global_load_dword a252, {vr(VTT,2)}, off')
    a('s_mov_b64 exec, -1')
def smid_ids(a):
    a(f'''s_bfe_u32 s96, s{sROLE}, 0x30008
    s_cmp_ge_u32 s96, 3
    s_cselect_b32 s98, 1, 0
    s_lshl_b32 s99, s{sI}, 1
    s_add_u32 s99, s99, s98
    s_mul_i32 s98, s98, 3
    s_sub_u32 s96, s96, s98
    s_mul_i32 s96, s96, 3''')
WA = 216
PSR = 20
def wload(k):
    def f(a):
        a(f's_add_u32 s3, s35, {16*18496*(k//2)}')
        a.vm(f'buffer_load_dwordx4 {ar(WA+4*k)}, v3, {S(SWI if k % 2 else SWR)}, s3 offen {NT(8)}', 'wl')
    return f
def wpatch(a):
    a(f'v_mul_u32_u24 v1, 18496, v{VLANE}')
    a.vm(f'buffer_load_ushort a253, v1, {S(SWR)}, s35 offen offset:{576-258}', 'wl')
    a.vm(f'buffer_load_ushort a254, v1, {S(SWI)}, s35 offen offset:{576-258}', 'wl')

def touch_ops():
    o = [V(f"""s_bfe_u32 s98, s{sROLE}, 0x30008
    s_sub_u32 s98, s98, 5
    s_lshl_b32 s98, s98, 6
    s_add_u32 s98, s98, s{sB}
    s_bfe_u32 s99, s{sROLE}, 0x30008
    s_sub_u32 s99, s99, 5
    s_bfe_u32 s96, s{sC}, 0x10001
    s_mul_i32 s96, s96, 3
    s_add_u32 s99, s99, s96
    s_lshl_b32 s99, s99, 2
    s_add_u32 s99, s99, s{sWV}
    s_mul_i32 s99, s99, {Cfg.tn*128}
    s_lshr_b32 s96, s{sI}, 3
    s_mul_i32 s96, s96, {5184*128}
    s_add_u32 s99, s99, s96
    s_lshr_b32 s96, s{sC}, 2
    s_mul_i32 s96, s96, {2*5184*128}
    s_add_u32 s99, s99, s96
    v_lshlrev_b32 v1, 7, v{VLANE}""")]
    for k in range(Cfg.tn//54):
        if k < Cfg.te: o.append(V(f's_add_u32 s99, s99, {54*128}')); continue
        def f(a, k=k):
            a('s_bfm_b64 exec, 54, 0')
            a.vm(f'buffer_load_dword a255, v1, {S(SW2)}, s99 offen')
            a(f's_mov_b64 exec, -1\ns_add_u32 s99, s99, {54*128}')
        o.append(FN(f))
    def g(a):
        a(f"""s_mul_i32 s99, s98, {15*128}
        s_add_u32 s99, s99, {TABF_SZ}
        v_add_u32 v{VTT}, s99, v1
        v_min_u32 v{VTT}, {TABF_SZ+TABG_SZ+TAB64_SZ-4}, v{VTT}
        v_mov_b32 v{VTT+1}, 0
        v_lshl_add_u64 {vr(VTT,2)}, s[100:101], 0, {vr(VTT,2)}
        s_bfm_b64 exec, 15, 0""")
        a.vm(f'global_load_dword a255, {vr(VTT,2)}, off')
        a('s_mov_b64 exec, -1')
    return o + [FN(g)]

def getnonce(a):
    lc = a.label('NC'); ls = a.label('NS'); lk = a.label('NK')
    a.vneed('non')
    a(f'{lc}:\nv_readfirstlane_b32 s{sNON}, v{VFL}\ns_nop 3\ns_cmp_eq_u32 s{sNON}, 0\ns_cbranch_scc1 {ls}\n{lk}:')
    a.ool += [f'{ls}:', f' s_sub_u32 s{sP}, s{sP}, 1', f' s_cbranch_scc1 {ls}_x', f' s_sleep {Cfg.slp}', f' buffer_load_dword v{VFL}, off, {S(SDBG)}, 0 sc1', ' s_waitcnt vmcnt(0)', f' s_branch {lc}',
              f'{ls}_x:', f' s_mov_b32 s{sP}, 0', f' s_branch {lk}']

def xpose_setup(a, vw, vrd, vg, base_imm, rowstride, flip=None):
    a(f"""v_and_b32 v{vw}, 15, v{VLANE}
    v_lshlrev_b32 v{vw}, 7, v{vw}
    v_bfe_u32 v{vrd}, v{VLANE}, 4, 1
    v_lshl_add_u32 v{vw}, v{vrd}, 13, v{vw}
    v_lshrrev_b32 v{vrd}, 5, v{VLANE}
    v_lshlrev_b32 v{vrd}, 2, v{vrd}
    v_and_b32 v{vg}, 7, v{VLANE}
    v_xor_b32 v{vrd}, v{vrd}, v{vg}
    v_lshl_add_u32 v{vw}, v{vrd}, 4, v{vw}
    s_add_u32 s98, s{sW2K}, {base_imm}
    v_add_u32 v{vw}, s98, v{vw}
    v_lshrrev_b32 v{vrd}, 3, v{VLANE}
    v_mul_u32_u24 v{VTT}, {rowstride}, v{vrd}
    v_lshl_add_u32 v{vg}, v{vg}, 4, v{VTT}
    v_lshlrev_b32 v{vrd}, 4, v{vrd}
    v_xor_b32 v{vrd}, v{vrd}, v{VL16}
    v_add_u32 v{vrd}, s98, v{vrd}""")
def xpose_w(src, q, vw, flip=0):
    x = (16*q) ^ flip
    if x == 0: return [LD(f'ds_write_b128 v{vw}, {vr(src)}', 'xw')]
    return [V(f'v_xor_b32 v{VTT}, {x}, v{vw}'), LD(f'ds_write_b128 v{VTT}, {vr(src)}', 'xw')]
def xpose_rs(dst, vrd, vg, sreg, rowstride, tag, u=0):
    o = [LD(f'ds_read_b128 {vr(dst+4*q)}, v{vrd} offset:{8192*(q//2) + 1024*(q%2)}', ('xr', u, q)) for q in range(4)]
    for q in range(4):
        o.append(FN(lambda a, q=q: a.need(('xr', u, q))))
        o.append(VM(f'buffer_store_dwordx4 {vr(dst+4*q)}, v{vg}, {S(SWS)}, s{sreg} offen sc1', tag))
        o.append(V(f's_add_u32 s{sreg}, s{sreg}, {8*rowstride}'))
    return o
OA = 200
XP_LDS = BIAS_LDS + 2048
def dft_fill():
    Ea = ACC[0]; T = TMP; U = Ea + 16; RS = 9*64*128
    su = f"""v_and_b32 v1, 31, v{VLANE}
    v_lshlrev_b32 v1, 6, v1
    v_lshrrev_b32 v3, 5, v{VLANE}
    v_lshlrev_b32 v3, 1, v3
    v_bfe_u32 v{VPO}, v{VLANE}, 1, 2
    v_xor_b32 v3, v3, v{VPO}
    v_lshl_add_u32 v1, v3, 4, v1
    s_add_u32 s98, s{sW2K}, {XP_LDS}
    v_add_u32 v1, s98, v1
    v_bfe_u32 v3, v{VLANE}, 3, 2
    v_lshlrev_b32 v3, 4, v3
    v_xor_b32 v3, v3, v{VL16}
    v_add_u32 v3, s98, v3
    v_lshrrev_b32 v{VPO}, 2, v{VLANE}
    v_mul_u32_u24 v{VPO}, {RS}, v{VPO}
    v_and_b32 v{VTT}, 3, v{VLANE}
    v_lshl_add_u32 v{VPO}, v{VTT}, 4, v{VPO}
    s_bfe_u32 s96, s{sROLE}, 0x30008
    s_lshl_b32 s98, s96, 6
    s_add_u32 s98, s98, s{sB}
    s_lshl_b32 s35, s98, 3
    s_add_u32 s35, s35, {VFL_OFF}
    s_lshl_b32 s98, s98, 7
    s_add_u32 s98, s98, {V_OFF}
    s_sub_u32 s99, 8, s96
    s_lshl_b32 s99, s99, 6
    s_add_u32 s99, s99, s{sB}
    s_lshl_b32 s99, s99, 7
    s_add_u32 s99, s99, {V_OFF}
"""
    o = [V(x) for x in su.split('\n') if x.strip()] + [V(f's_cmp_eq_u32 s96, 4\ns_cselect_b32 s96, {DUM_OFF - V_OFF}, 0\ns_add_u32 s99, s99, s96')]
    su = o; o = [V(f'v_add_u32 v{VPO+1}, {16*RS}, v{VPO}')]
    for i in range(16):
        e = Ea + 2*i
        o += [V(f'v_accvgpr_read_b32 v{T+4}, a{OA+2*i}'), V(f'v_accvgpr_read_b32 v{T+5}, a{OA+2*i+1}'), V(f'v_add_f32 v{T}, v{e}, v{T+4}'), V(f'v_add_f32 v{T+1}, v{e+1}, v{T+5}')]
        if i < 8: o += [V(f'v_sub_f32 v{T+2}, v{e}, v{T+4}'), V(f'v_sub_f32 v{T+3}, v{e+1}, v{T+5}')]
        else:     o += [V(f'v_sub_f32 v{T+2}, v{T+4}, v{e}'), V(f'v_sub_f32 v{T+3}, v{T+5}, v{e+1}')]
        o += [V(f'v_cvt_pk_bf16_f32 v{HO+i}, v{T}, v{T+1}'), V(f'v_cvt_pk_bf16_f32 v{Ea+i}, v{T+2}, v{T+3}')]
    segs = [o]
    u = vr(U, 16)
    for m, X in enumerate((HO, Ea)):
        for p in range(2):
            A1, A2 = (X, X+8) if p == 0 else (X+8, X)
            B2 = TW+8 if p == 0 else TW+16
            mf = [V(f's_nop 1\n{M} {u}, {vr(A1)}, {ar(TW)}, 0'), V(f'{M} {u}, {vr(A1+4)}, {ar(TW+4)}, {u}'), V(f'{M} {u}, {vr(A2)}, {ar(B2)}, {u}'), V(f'{M} {u}, {vr(A2+4)}, {ar(B2+4)}, {u}')]
            pk = []
            for q in range(2):
                for i in range(4):
                    k = 4*q + i
                    pk.append(V(f'v_cvt_pk_bf16_f32 v{T+k}, v{U+2*k}, v{U+2*k+1}' if m == 0 else f'v_cvt_pk_bf16_f32 v{T+k}, v{U+15-2*k}, v{U+14-2*k}'))
                x = 16*q ^ 32*m
                if x: pk += [V(f'v_xor_b32 v{VTT}, {x}, v1'), LD(f'ds_write_b128 v{VTT}, {vr(T+4*q)}')]
                else: pk += [LD(f'ds_write_b128 v1, {vr(T+4*q)}')]
            d = OA + 8*(2*m+p)
            pk += [LD(f'ds_read_b128 {ar(d+4*i)}, v3 offset:{1024*i}', ('xr', m, p)) for i in range(2)]
            st = [FN(lambda a, m=m, p=p: a.need(('xr', m, p)))] + [VM(f'buffer_store_dwordx4 {ar(d+4*i)}, v{VPO+i}, {S(SWS)}, s{98+m} offen offset:{64*p} sc1', 'V') for i in range(2)]
            segs += [mf, pk, st]
    f = [(segs[0], 3, 33)]; st = []
    for k in range(4):
        g = 33 + 8*k
        f += [(segs[1+3*k], g, g+2), (segs[2+3*k], g+5, g+8)]
        x = segs[3+3*k]
        st += [FN(lambda a, x=x: emit(a, x[:2])), x[2]]
    return su, f, st

JA = [8, 40]; JC = [72, 104]
def hload(g):
    return [SVM(f's_add_u32 s3, s{33 if g else 32}, {4096*g}', f'buffer_load_dwordx4 {ar(HF+16*g+4*k)}, v{VL16}, {S(SWS)}, s3 offen offset:{1024*k} sc1 {NT(1)}', ('ph', g)) for k in range(4)]

SZ=[72,88,136,152]; SVF=8; SWP=40; SY0=192; SPA=[72,88,168,24]
def TF(i): return ar(176+4*i) if i < 20 else vr(200+4*(i-20))
def smid_pre():
    su = f"""v_lshrrev_b32 v3, 5, v{VLANE}
    v_bfe_u32 v1, v{VLANE}, 2, 2
    v_lshl_add_u32 v3, v3, 2, v1
    v_lshlrev_b32 v{VA1}, 7, v3
    v_lshlrev_b32 v{VB1}, 6, v3
    v_bfe_u32 v1, v{VLANE}, 4, 1
    v_lshlrev_b32 v1, 5, v1
    v_and_b32 v3, 3, v{VLANE}
    v_lshl_add_u32 v1, v3, 3, v1
    s_min_u32 s98, s{sWV}, 2
    s_lshl_b32 s98, s98, 13
    s_add_u32 s99, s98, {slot(54)}
    v_add3_u32 v{VA1}, v{VA1}, v1, s99
    s_add_u32 s99, s98, {slot(57)}
    v_add3_u32 v{VB1}, v{VB1}, v1, s99
    v_add_u32 v1, s99, v{VL16}
    v_add_u32 v3, {slot(51)}, v{VL16}"""
    w = [FN(lambda a: a.vneed('wl'))] + [(3, LD(f'ds_write_b128 v1, {ar(WA+4*k)} offset:{1024*k}')[1]) for k in range(8)]
    def patch(a):
        a(f"""v_lshrrev_b32 v{VTT}, 4, v{VLANE}
        v_lshlrev_b32 v{VTT}, 11, v{VTT}
        v_and_b32 v{VTT+1}, 15, v{VLANE}
        v_lshl_add_u32 v{VTT}, v{VTT+1}, 6, v{VTT}
        v_add_u32 v{VTT}, {slot(57) + 8192}, v{VTT}""")
        a.lds(f'ds_write_b16 v{VTT}, a253 offset:62'); a.lds(f'ds_write_b16 v{VTT}, a254 offset:1086')
    w.append(FN(only(R_PATCH, patch)))
    for p in range(2):
        for mt in range(2):
            for q in range(4):
                w.append(LD(f'ds_read_b64_tr_b16 {vr(SWP+16*p+8*mt+2*q,2)}, v{VB1} offset:{4096*mt+2048*(q//2)+512*(q%2)+1024*p}', 'sm'))
    r = []
    for ks in range(4):
        for p in range(2):
            for rho in range(2): r.append(LD(f'ds_read_b64_tr_b16 {vr(SVF+16*p+4*ks+2*rho,2)}, v{VA1} offset:{2048*ks+1024*rho+64*p}', 'sm'))
        for i in (ks, 8+ks, 16+ks): r.append(LD(f'ds_read_b128 {TF(i)}, v3 offset:{1024*i}', 'sm'))
    late = [LD(f'ds_read_b128 {TF(i)}, v3 offset:{1024*i}', 'sm2') for ks in range(4) for i in (4+ks, 12+ks, 20+ks)]
    return sops(su), w, r, late
def smid_parts():
    Z=SZ; VF=SVF; WP=SWP; Y=SVF; PA=SPA; T=TMP
    C=lambda t,k: TF(4*t+k); Sn=lambda t,k: TF(8+4*t+k); N=lambda t,k: TF(16+4*t+k)
    def fwd(mt):
        zr=vr(Z[2*mt],16); zi=vr(Z[2*mt+1],16); o=[]
        for ks in range(4):
            o += [f'{M} {zr}, {C(mt,ks)}, {vr(VF+4*ks)}, {"0" if ks==0 else zr}', f'{M} {zi}, {C(mt,ks)}, {vr(VF+16+4*ks)}, {"0" if ks==0 else zi}',
                  f'{M} {zr}, {Sn(mt,ks)}, {vr(VF+16+4*ks)}, {zr}', f'{M} {zi}, {N(mt,ks)}, {vr(VF+4*ks)}, {zi}']
        return o
    def ybase(mt, p): return (SY0 - 8*p) if mt == 0 else (Y + 8*p)
    def cmul(mt):
        o = []
        for d in range(8):
            wr = WP + 8*mt + d; wi = WP + 16 + 8*mt + d; zr = Z[2*mt] + 2*d; zi = Z[2*mt+1] + 2*d
            o += [f'v_lshlrev_b32 v{T}, 16, v{wr}', f'v_and_b32 v{T+1}, 0xffff0000, v{wr}', f'v_lshlrev_b32 v{T+2}, 16, v{wi}', f'v_and_b32 v{T+3}, 0xffff0000, v{wi}']
            for i in range(2): o += [f'v_mul_f32 v{T+4+i}, v{zi+i}, v{T+2+i}', f'v_mul_f32 v{T+6+i}, v{zi+i}, v{T+i}']
            for i in range(2): o += [f'v_fma_f32 v{T+4+i}, v{zr+i}, v{T+i}, -v{T+4+i}', f'v_fma_f32 v{T+6+i}, v{zr+i}, v{T+2+i}, v{T+6+i}']
            o += [f'v_cvt_pk_bf16_f32 v{ybase(mt,0)+d}, v{T+4}, v{T+5}', f'v_cvt_pk_bf16_f32 v{ybase(mt,1)+d}, v{T+6}, v{T+7}']
        return [V(x) for x in o]
    def inv(mt):
        o = []
        for nt in range(2):
            pr=vr(PA[2*nt],16); pi=vr(PA[2*nt+1],16)
            for t in range(2):
                ks = 2*mt + t; yr = vr(ybase(mt,0)+4*t); yi = vr(ybase(mt,1)+4*t)
                o += [f'{M} {pr}, {yr}, {C(nt,ks)}, {"0" if ks==0 else pr}', f'{M} {pi}, {yi}, {C(nt,ks)}, {"0" if ks==0 else pi}',
                      f'{M} {pr}, {yi}, {N(nt,ks)}, {pr}', f'{M} {pi}, {yr}, {Sn(nt,ks)}, {pi}']
        return o
    return fwd, cmul, inv
def part_inplace(acc, lam):
    c = []; st = []
    for q in range(4):
        c += [V(f'v_cvt_pk_bf16_f32 v{acc+8*q+i}, v{acc+8*q+2*i}, v{acc+8*q+2*i+1}') for i in range(4)]
        st.append(SVM(f's_add_u32 s3, s{sPS}, {16384*(2*lam + q//2)}', f'buffer_store_dwordx4 {vr(acc+8*q)}, v{VL16}, {S(SWS)}, s3 offen offset:{1024*(q%2)} sc1', ('p', lam)))
    return c, st

def kernel():
    a = E()
    prologue(a)
    g1 = lambda acc: (lambda p, kk, h: (acc + 16*h, vr(XF + 16*p + 4*kk), False))
    END = 71
    stamp(a, 2)
    a.need('bw')
    a('; ROUND 1')
    brole(a, R_ODD, 'L_odd')
    s_pro = a.snap()
    a.vneed(('d',0),('d',1),('d',2)); a('s_barrier')
    bias_reads(a, ACC[0], 0); first_reads(a, 'tr', 0); emit(a, NLAST)
    run(a, 0, 9, 'tr', g1(ACC[0]), [(late_setup(), 26, 54), (bias_ops(ACC[1], 1), 40, 66), (B2PRE, 56, 70)], pause=(0, Cfg.pz1), events={71: B2FIRE, ('dma0', 0): list(range(Cfg.np, 12))})
    stamp(a, 3)
    run(a, 9, 9, 'tr', g1(ACC[1]), [(gelu_ops(ACC[0], 0, 2, Cfg.sd), Cfg.gs0, END)], events={2: [getnonce]}, pause=(0, Cfg.pz2))
    s_even = a.snap()
    la = a.l; a.l = []
    a('L_odd:'); a.restore(s_pro)
    brole(a, R_DFT, 'L_dft')
    emit(a, NLAST + late_setup() + ([] if Cfg.be else [FN(f) for f in BATCH2]) + touch_ops())
    for q in range(max(9, Cfg.np), 21):
        for f in plan(q): f(a)
    a.vneed(('d',9),('d',10),('d',11)); a('s_barrier')
    first_reads(a, 'tr', 9)
    stamp(a, 3)
    bias_reads(a, ACC[1], 1)
    run(a, 9, 9, 'tr', g1(ACC[1]), [(bias_ops(ACC[0], 2), 40, 66), (xback(HO, HO+1), 8, 30)], events={2: [getnonce]})
    a('s_branch L_s3'); s_nodft = a.snap()
    a('L_dft:'); a.restore(s_pro)
    a(f'v_mov_b32 v{VPO}, v{VL16}\nv_add_u32 v{VPO+1}, 49152, v{VL16}')
    a.vneed(('d',0),('d',1),('d',2)); a('s_barrier')
    first_reads(a, 'dft', 0); emit(a, NLAST)
    run(a, 0, 9, 'dft', lambda p, kk, h: ((ACC[0] + 16*h) if kk % 2 == 0 else -(OA + 16*h), vr(XF + 16*p + 4*kk), p == 0 and kk < 2),
        [(xback(HO, HO+1), 8, 30), (late_setup(), 30, 47), ([V('s_nop 0')] if Cfg.twe else twiddle_ops(TW, TMP, 'fwd', sB), 2, 60), (dft_fill()[0], 48, 66), (bias_ops(ACC[1], 1), 56, 70)] + ([] if Cfg.be else [(B2PRE, 66, 71)]), pause=(0, Cfg.pz1), role='D', events={71: [] if Cfg.be else B2FIRE, ('dma0', 0): list(range(Cfg.np, 12))})
    stamp(a, 3)
    _, df, vst = dft_fill(); vlate = vst[3:]
    run(a, 9, 9, 'tr', g1(ACC[1]), df + [(vst[:3], 42, 70), (bias_ops(ACC[0], 2), 65, 70)], events={2: [getnonce]}, pause=(0, 0 if Cfg.be else Cfg.pz2))
    a('L_s3:'); a.merge(s_nodft, a.snap()); s_odd = a.snap()
    lodd = a.l; a.l = la; a.restore(s_even)
    stamp(a, 4)
    pi = spoll_i; pc = spoll_c
    h0 = only_ops(R_ODD, hload(0), 1)
    FG, PG, CG = Cfg.fg, Cfg.pg, Cfg.cg
    wm = lambda r: [lambda a: a(f'; WARM {r}')] if Cfg.warm and Cfg.w3 == 3 else []
    clp3 = clear_ops(sPS, [16384*6, 16384*7], 'clp', -248)
    assert not (Cfg.sn and Cfg.ce)
    l2a = [w2touch(1, 0, 21)] if Cfg.l2 else []; l2b = [w2touch(1, 21*128, 20)] if Cfg.l2 else []; l2c = [tabtouch] if Cfg.l2 else []
    run(a, 18, 9, 'tr', g1(ACC[0]), [(gelu_ops(ACC[1], 1, 3), Cfg.gs0, END), ([FN(only(R_UNIT, wload(k))) for k in range(4)], 6, 64)] + ([(clear_ops(sHS, [16384, 18432], 'clr', -248), 2, 68)] if Cfg.ce else []) + ([(clp3, 2, 68)] if Cfg.sn else []),
        events={FG: [lambda a: setflag(a, 1, ('h',0))], 40: l2a, 66: l2b})
    g2 = lambda acc: (lambda p, kk, h: (acc + 16*h, ar(HF + 16*GORD[p] + 4*kk), p == 0 and kk == 0))
    tabg = f"""s_and_b32 s98, s{sC}, 3
    s_min_u32 s98, s98, 2
    s_mul_i32 s96, s98, 110592
    s_add_u32 s96, s96, {TABF_SZ}
    v_lshl_add_u64 {vr(VTB,2)}, s[96:97], 0, {vr(VTB,2)}"""
    sent8 = lambda a: (stamp(a, 7), sent_check(a, ('ph',8), [f'a{HF+128+4*k+3}' for k in range(4)], TMP, lines_of(hload(8)), ([f's_add_u32 s3, s33, {4096*8}'], 3)))
    sf = lambda st, *tags: (lambda a: (setflag if st < 5 else setflag2)(a, st, *tags))
    sf5 = lambda a: setflag(a, 5, ('h',4))
    clo = clear_ops(33, [32768, 34816], 'clr', -248)
    clp = clear_ops(sPS, [16384*6, 16384*7], 'clp')
    def setup5():
        a = E()
        smid_ids(a)
        a(f"""s_mul_i32 s{sSV}, s99, 9
        s_add_u32 s{sSV}, s{sSV}, s96
        s_lshl_b32 s{sSV}, s{sSV}, 13
        s_add_u32 s{sSV}, s{sSV}, s{sW2K}
        s_add_u32 s{sSV}, s{sSV}, {V_OFF}
        s_add_u32 s98, s96, s{sWV}
        s_lshl_b32 s98, s98, 5
        s_add_u32 s98, s98, s99
        s_lshl_b32 s47, s98, 3
        s_add_u32 s47, s47, {PFL_OFF}
        s_lshl_b32 s48, s98, 7
        s_add_u32 s48, s48, {P_OFF}
        s_add_u32 s49, s48, {32*9*32*128}
        v_and_b32 v1, 15, v{VLANE}
        s_lshl_b32 s98, s{sWV}, 4
        v_add_u32 v1, s98, v1
        v_lshrrev_b32 v{VA1}, 4, v{VLANE}
        v_min_u32 v{VA1}, 2, v{VA1}
        v_add_u32 v{VA1}, s96, v{VA1}
        v_sub_u32 v{VB1}, 8, v{VA1}
        v_min_u32 v{VA1}, v{VA1}, v{VB1}
        v_lshl_add_u32 v1, v{VA1}, 6, v1
        v_lshlrev_b32 v1, 3, v1
        v_add_u32 v1, {VFL_OFF}, v1""")
        return sops('\n'.join(a.l).replace('s96', 's50').replace('s98', 's51').replace('s99', 's52'))
    run(a, 27, 9, 'tr', g1(ACC[1]), [(gelu_ops(ACC[0], 2, 4), Cfg.gs0, END), ([FN(only(R_UNIT, wload(k))) for k in range(4, 8)], 6, 64), (setup5(), 48, 70)],
        events={4: [only(R_PATCH, wpatch)], FG: [sf(2, 'clr', ('h',1))], 30: l2c}, role='E')
    stamp(a, 5)
    ssu, sw, sr, slate = smid_pre()
    run(a, 36, 9, 'tr', g1(ACC[0]), [(gelu_ops(ACC[1], 3), Cfg.gs0, END), (hload(5), Cfg.e2+1, 71), (ssu, 52, 70)], role='E',
        events={26: [lambda a: a.vm(poll_ins(VA1, 1, '0'), 'vp')], Cfg.e2-22: [pi], Cfg.e2: [pc(2)], 47: [only(R_SMID, lambda a: poll_check(a, 'vp', VA1, 1, '0', 1))], FG: [sf(3, ('h',2))]})
    stamp(a, 6)
    a('s_mov_b32 s11, s47')
    pre = lambda g: [lambda a: a.vneed(('ph', g))]
    ge = lambda o: (lambda p, kk, h: (JC[1] + 16*h, ar(HF + 16*GE[p+o] + 4*kk), p+o == 0 and kk == 0))
    dm6 = [FN(f) for q in range(63, 72) for f in plan(q, 'E')]
    h6 = [FN(pc(3))] + hload(6); h7 = [FN(pc(4))] + hload(7)
    def s6a(unit):
        run(a, 45, 6, 'tr', ge(0), ([(gelu_ops(ACC[0], 4), 3, Cfg.ge), (sw, Cfg.ge-14, Cfg.ge+2), (sr, Cfg.ge-2, 48)] if unit else [(gelu_ops(ACC[0], 4), 3, 44)]), nxt=None, role='E',
            events={Cfg.f4: [sf(4, ('h',3))], 30: [pi], ('pre',32): pre(5), ('bar',48): [('d', q) for q in range(51, 57)]})
    b2 = FN(lambda a: (a.vneed(('d',60),('d',61),('d',62)), a('s_barrier')))
    brole(a, R_UNIT, 'L_unit'); s1 = a.snap()
    s6a(False)
    a('s_barrier')
    cle = []
    def allw(qs, tw=[]):
        def f(a):
            for q in qs:
                for g in plan(q, 'E'): g(a)
            if not Cfg.w3d and not tw: return
            d = []
            for q in (qs if Cfg.w3d else []):
                for w in range(3):
                    d.append(SVM(f's_mov_b32 m0, {slot(q) + 2048*w}\ns_add_u32 s{sT}, s{sO2+EORD[q-60][0]}, {128*EORD[q-60][1]}', f'buffer_load_dwordx4 v{8+2*w}, {S(SW2)}, s{sT} offen lds'))
                    d.append(VM(f'buffer_load_dwordx4 v{9+2*w}, {S(SW2)}, s{sT} offen offset:1024 lds'))
            only(R_SMID, lambda a: emit(a, mix(tw, d) if tw else d))(a)
        return FN(f)
    twq = lambda w: coop_tw(w, slot(59)) if Cfg.tw3 else []
    for w in range(3): a(f'v_subrev_u32 v{8+2*w}, {(3-w)*16*1152}, v{VA2}\nv_subrev_u32 v{9+2*w}, {(3-w)*16*1152}, v{VB2}')
    emit(a, fsetup()[:3] + [allw([63, 64])] + h6 + [V('s_barrier'), allw([65, 66, 67, 68], twq('0') + twq('1')), allw([69, 70, 71], twq('2'))] + twq(None) + [FN(lambda a: a.drain()), FN(pi), V(tabg), FN(lambda a: a.vdrain()), b2])
    if Cfg.w3d: dm6 = [V('s_nop 0')]*18
    first_reads(a, 'tr', 60)
    a(';NONUNIT7'); s_nou = a.snap()
    a('L_unit:'); a.restore(s1)
    s6a(True)
    fwd, cmul, inv = smid_parts()
    stamp(a, 'm0')
    a.need('sm'); a('s_barrier')
    dmx = lambda i, j: [] if Cfg.w3d else dm6[i:j]
    interleave(a, fwd(0), mix(slate, dmx(0, 6) + h6))
    stamp(a, 'm1')
    a.need('sm2'); a('s_barrier')
    t = E(); xpose_setup(t, 1, 3, VA1, slot(57), 9*32*128); t(tabg)
    interleave(a, fwd(1)[:3], dmx(6, 10) + [V(x) for x in t.l[:11]])
    interleave(a, fwd(1)[3:], mix(cmul(0), dmx(10, 14)))
    a('s_nop 1')
    stamp(a, 'm2')
    interleave(a, inv(0)[:3], [V(x) for x in t.l[11:]])
    interleave(a, inv(0)[3:], cmul(1)[:30] + [FN(pi)] + cmul(1)[30:])
    stamp(a, 'm3')
    def pout(nt):
        o = []
        for p in range(2):
            for par in range(2):
                for i in range(4): o.append(V(f'v_cvt_pk_bf16_f32 v{SWP+16*nt+8*p+4*par+i}, v{SPA[2*nt+p]+4*i+par}, v{SPA[2*nt+p]+4*i+2+par}'))
                o += xpose_w(SWP+16*nt+8*p+4*par, 2*p+par, 1)
        x = xpose_rs(SWP+16*nt, 3, VA1, 48+nt, 9*32*128, 'P', nt)
        return o + x[:4], x[4:]
    a('s_nop 1')
    h8 = hload(8)
    interleave(a, inv(1)[:10], h7 + ([FN(pi)] if Cfg.hf and Cfg.c5 < Cfg.pd else []) + dmx(14, 18) + [b2])
    first_reads(a, 'tr', 60)
    interleave(a, inv(1)[10:], pout(0)[0])
    stamp(a, 'm5')
    eo = lambda o: (lambda p, kk, h: (JC[1-EORD[p+o][1]] + 16*h, ar(HF + 16*EORD[p+o][0] + 4*kk), p+o == 1 and kk == 0))
    grp = lambda x, n: [FN(lambda a, y=x[i:i+n]: emit(a, y)) for i in range(0, len(x), n)]
    pst = grp(pout(0)[1] + pout(1)[1], 3)
    def EV(*pairs):
        d = {}
        for k, v in pairs: d.setdefault(k, []).extend(v if isinstance(v, list) else [v])
        return d
    if not Cfg.hf:
        assert Cfg.pe <= 24 and Cfg.c5 >= 24
        def s7(unit):
            run(a, 60, 3, 'tr', eo(0), [(pout(1)[0], 2, 10), (pst[:4], 0, max(11, Cfg.pe//2)), (pst[4:], max(11, Cfg.pe//2), Cfg.pe)]*unit, role='E',
                events={('pre',0): pre(6), ('pre',16): pre(7), Cfg.c5-Cfg.pd: [pi], ('pre',17): [lambda a: stamp(a, 7)]})
    else:
        assert Cfg.pe <= 48 and Cfg.e8 < 6
        def s7(unit):
            run(a, 60, 6, 'tr', eo(0), [(pout(1)[0], 2, 12), (pst, Cfg.c5+9, Cfg.pe)]*unit + [(h8, Cfg.c5+1, Cfg.c5+9), (xback(VB1, 1), 14, 28)], role='E',
                events=EV((('pre',0), pre(6)), (('pre',16), pre(7)), (Cfg.c5, pc(5)), (('pre',8*Cfg.e8), pre(8)), (('pre',17), lambda a: stamp(a, 7)), (('pre',24), lambda a: stamp(a, 8)), (33, codetouch),
                          *([(Cfg.c5-Cfg.pd, pi)] if Cfg.c5 >= Cfg.pd else [])))
    s7(True)
    s_u = a.snap()
    lx = a.l; a.l = []
    a.restore(s_nou); emit(a, h7 + ([FN(pi)] if Cfg.hf and Cfg.c5 < Cfg.pd else []))
    s7(False)
    a('s_branch L_s7u')
    k = [x.strip() for x in lx].index(';NONUNIT7'); a.l = lx[:k] + a.l + lx[k+1:]
    a('L_s7u:'); a.merge(s_u, a.snap())
    if not Cfg.hf:
        stamp(a, 8)
        run(a, 63, 9, 'tr', eo(3), [(h8, Cfg.c5-23, Cfg.c5-15), (part_ops(JC[1], 0), 8*Cfg.e8-13, 8*Cfg.e8+12), (fsetup0() + ([] if Cfg.f9 else fsetup()), 36, 68), (xback(VB1, 1), 1, 14), (fsetup()[:3] + coop_tw(), 10, 36),
            ([V(f's_add_u32 s{sL9}, s{sPS}, {16384*2}')], 68, 70)], role='E',
            events={9: [codetouch], 61: wm(4), 69: wm(4), Cfg.c5-24: [pc(5)], ('pre',8*Cfg.e8-24): pre(8), Cfg.pe+6: [only(R_UNIT, lambda a: setflag(a, 1, 'P', off=11))]})
    else:
        run(a, 66, 6, 'tr', eo(6), [(part_ops(JC[1], 0), 3, 32), (fsetup()[:3] + coop_tw() + fsetup0() + ([] if Cfg.f9 else fsetup()), 0, 45),
            ([V(f's_add_u32 s{sL9}, s{sPS}, {16384*2}')], 45, 47)], role='E',
            events={Cfg.pe-16: [only(R_UNIT, lambda a: setflag(a, 1, 'P', off=11))]})
    s_e = a.snap()
    if Cfg.eo: le = a.l; a.l = []
    else: a('s_branch L_s9')
    a('; ROUND 2')
    a.l += lodd; a.restore(s_odd)
    stamp(a, 4)
    run(a, 18, 9, 'tr', g1(ACC[0]), [(gelu_ops(ACC[1], 1, 3), Cfg.gs0, END), (only_ops(R_DFT, vlate, 1), 2, 40)] + ([] if Cfg.ce else [(clo[:6], 44, 68)]),
        events={PG: [pi], 40: l2a, 66: l2b})
    run(a, 27, 9, 'tr', g1(ACC[1]), [(gelu_ops(ACC[0], 2, 4), Cfg.gs0, END), (hload(0), CG+2, 64)] + ([] if Cfg.ce else [(clo[6:], 1, 14)]),
        events={2: [only(R_DFT, lambda a: setflag(a, 1, 'V', off=35))], CG: [pc(1)], (FG+1 if Cfg.ce else Cfg.f2o): [sf(2, 'clr', ('h',1))], 30: l2c, PG: [pi]}, role='O')
    stamp(a, 5)
    run(a, 36, 9, 'tr', g1(ACC[0]), [(gelu_ops(ACC[1], 3), Cfg.gs0, END), (hload(5), CG+2, 64)] + ([(clp3[4:], 4, 68)] if Cfg.sn else []), role='O',
        events={CG: [pc(2)], FG: [sf(3, ('h',2))], PG: [pi]})
    stamp(a, 6)
    jj = lambda p, kk, h: (JA[p % 2] + 16*h, ar(HF + 16*GORD[p//2] + 4*kk), p < 2 and kk == 0)
    run(a, 45, 18, 'tr', jj, [(gelu_ops(ACC[0], 4), 3, 47), (hload(6), CG+2, 46), (hload(7), 49+Cfg.c4, 66+Cfg.c4), (hload(8), 48+Cfg.h8, 62+Cfg.h8), (sops(tabg), 140, 143), (fsetup()[:3] + coop_tw(), 50, 96), (fsetup0() + ([] if Cfg.f9 else fsetup()), 97, 140)], role='O',
        events={CG: [pc(3)], Cfg.f4: [sf(4, ('h',3))], 46: [pi], 48+Cfg.c4: [pc(4)], ('pre',64): pre(0), ('pre',80): pre(5), ('pre',96): pre(6), ('pre',112): pre(7), Cfg.f5h: [sf5], 126: [sent8], 132: [codetouch]})
    stamp(a, 8)
    run(a, 63, 9, 'tr', g2(JC[0]), [(part_ops(JA[0], 4) + part_ops(JA[1], 6), 3, Cfg.p8), ([V(f's_add_u32 s{sL9}, s{sPS}, {16384*10}')], 60, 62)] + ([(tw_reads(), 52, 70)] if Cfg.tw3 else []), events={61: wm(5), 69: wm(5)})
    LO = []
    if Cfg.eo: a('s_branch L_s9'); LO = a.l; a.l = le
    a(f'; ROUND {0 if Cfg.w3 == 2 else 3}\nL_s9:'); a.merge(s_e, a.snap())
    if Cfg.warm and Cfg.w3 == 1: a('; WARM 3')
    stamp(a, 9)
    g2o = lambda acc, o: (lambda p, kk, h: (acc + 16*h, ar(HF + 16*GORD[p+o] + 4*kk), p+o == 0 and kk == 0))
    def two(mask, f):
        l1 = a.label('TW'); l2 = a.label('TX')
        a(f's_and_b32 s98, s{sCLS}, {mask}\ns_cbranch_scc1 {l1}'); s0 = a.snap()
        f(False); a(f's_branch {l2}\n{l1}:'); s1 = a.snap(); a.restore(s0)
        f(True); a(f'{l2}:'); a.merge(s1, a.snap())
    pl1 = lambda hf: [FN(lambda a, k=k: emit(a, pl_ops(hf, k, k+1, 32 if Cfg.bf else SWS))) for k in range(16)]
    if Cfg.bf: two = lambda mask, f: f(True)
    def ppoll_i(a):
        a(f"""s_min_u32 s98, s{sWV}, 2
        s_mul_i32 s98, s98, 768
        s_add_u32 s98, s98, {PFL_OFF}
        v_lshlrev_b32 v204, 3, v{VLANE}
        v_add_u32 v204, s98, v204
        v_add_u32 v205, 256, v204""")
        a.vm(poll_ins(200, 204, '0'), 'pp1'); a.vm(poll_ins(202, 205, '0'), 'pp2')
    def ppoll_c(a):
        if Cfg.blk & 4:
            only(R_FINW, lambda a: (poll_check(a, 'pp1', 200, 204, '0', 1), poll_check(a, 'pp2', 202, 205, '0', 1)))(a); a(f's_bitcmp1_b32 s{sROLE}, {R_FINW}\ns_cselect_b32 s11, 0, 1'); return
        a.vneed('pp2'); poll_test(a, 200, 1); a('s_cselect_b32 s11, 1, 0'); poll_test(a, 202, 1); a(f's_cselect_b32 s11, 1, s11\ns_bitcmp1_b32 s{sROLE}, {R_FINW}\ns_cselect_b32 s11, s11, 1')
    def EV(*pairs):
        d = {}
        for k, v in pairs: d.setdefault(k, []).extend(v if isinstance(v, list) else [v])
        return d
    sched = dict(zip((78, 81, 84, 87), Cfg.sch))
    def tryev(qn, n):
        c = sched.get(qn, '-')
        if c not in '01': return [], []
        hf = int(c); t = E(); etest(t, hf, 20)
        t(f's_cselect_b32 s20, 0, {1 << hf}\ns_and_b32 s20, s20, s{sCLS}\ns_mul_i32 s20, s20, {1 + 512 + 2048}\ns_bitset0_b32 s{sCLS}, {9+hf}\ns_xor_b32 s{sCLS}, s{sCLS}, s20')
        if Cfg.bf: t(f's_mov_b64 s[32:33], s[{SWS}:{SWS+1}]\ns_mov_b32 s35, 0x20000\ns_cmp_lg_u32 s20, 0\ns_cselect_b32 s34, s{SWS+2}, 0')
        ops = sops('\n'.join(t.l))
        if Cfg.blk & (1 << hf) and qn == 78 + 3*Cfg.sch.rindex(c):
            k = [i for i, x in enumerate(t.l) if x.strip().startswith('s_cmp_gt_u32')][0]
            def blk(a):
                lc = a.label('BC'); lk = a.label('BK')
                a(f's_bitcmp1_b32 s{sCLS}, {hf}\ns_cselect_b32 s20, s20, 0\ns_cmp_gt_u32 s20, 8\ns_cbranch_scc1 {lc}\n{lk}:\ns_mov_b32 s20, 0')
                u = E(); u.nlab = 8000 + a.nlab
                u(f'{lc}:\ns_mov_b32 s99, 8\n{lc}_l:'); eld(hf, 20)(u); u.drain(); etest(u, hf, 20)
                u(f's_cbranch_scc0 {lk}\ns_sub_u32 s99, s99, 1\ns_cbranch_scc0 {lc}_l\ns_mov_b32 s20, -1\ns_add_u32 s20, s20, s{sND+hf}'); eblock(u, hf, 20, Cfg.slp); u(f's_branch {lk}')
                HOT.extend(u.l); a.ool += u.ool
            ops = sops('\n'.join(t.l[:k])) + [FN(blk, 4)] + sops('\n'.join(t.l[k:]))
        return ([(n - Cfg.ta, eld(hf, 20))] if Cfg.ta <= n else []) + [(n - 8, dodrain)], [(ops, n-7, n)]
    bar = lambda a: a('s_barrier')
    p2 = part_ops(JC[1], 2)
    seg = {78: (JC[1], 6, [], [(Cfg.f6-48, sf(6, ('p',9))), (23, ppoll_c)]),
           81: (JC[0], 0, [(p2[:11], 3, 22)] + ([] if Cfg.tw3 else [(tw_reads(), 4, 20)]), []),
           84: (JC[0], 3, [(p2[11:], 0, 12), (fin_addr(), 8, 23)], []),
           87: (JC[0], 6, [([FN(lambda a: a.vneed(('d', 98)))] + prd(0) + prd(1) + prd(2), 12, 24)], [(Cfg.f7-48, sf(7, ('p',2))), (('dma', 88), [102, 103]), (('dma', 89), [104]), (3, bar), (22, bar)] + ([(Cfg.m0, eld(0, 56))] if Cfg.m0 >= 0 else []))}
    e, f = tryev(78, 48)
    if Cfg.ta > 24 and sched[81] in '01': e = e + [(72 - Cfg.ta, eld(int(sched[81]), 20))]
    run(a, 72, 6, 'tr', g2o(JC[1], 0), [(part_ops(JC[0], 9), 3, Cfg.p9), (xb_ops()[:12], 30, 44)] + f + ([(fsetup(), 0, 25)] if Cfg.f9 else []),
        events=EV((Cfg.f5, sf(5, 'clp', ('p',0), ('p',4), ('p',6))), (45, ppoll_i), *e))
    def slab(q, ld):
        acc, o, fl, ev = seg[q]; e, f = tryev(q+3, 24)
        if Cfg.ta > 24 and sched.get(q+6, '-') in '01': e = e + [(48 - Cfg.ta, eld(int(sched[q+6]), 20))]
        run(a, q, 3, 'tr', g2o(acc, o), fl + f + ([(ld, 0, 22 if q < 87 else 16)] if ld else []), nxt=None if q == 87 else 'tr', events=EV(*ev, *e))
    for q in (78, 81, 84, 87):
        c = sched[q]
        if c == '-': slab(q, None)
        elif c == 'x': continue
        else:
            L = pl1(int(c))
            if sched.get(q+3) == 'x': two(512 << int(c), lambda ld: (slab(q, L[:9] if ld else None), slab(q+3, L[9:] if ld else None)))
            else: two(512 << int(c), lambda ld: slab(q, L if ld else None))
    stamp(a, 10)
    final(a)
    a('L_fin:')
    stamp_flush(a, 11)
    a('L_end:\ns_endpgm\nL_hot:\ns_endpgm')
    a.l += HOT
    if not Cfg.wsl: a('; ROUND -1')
    a.l += SLOW
    a('L_tailend:')
    a.l += LO
    a('; ROUND -1')
    return a.text()

PTH = [136, 8]
VFA = 4; VO = 5
SEL = 200; AB2 = 208; AX = 232
sCLS = 53
sND, sFO, sPB, sXO, sSG = 46, 48, 50, 4, 36
def classes():
    LAML = [0,0,4,4,2,2,3,3,2]; LAMH = [2,3,3,0,0,4,4,0,0]; NEED = [4,4,6,6 if Cfg.sn else 7,5]; RANK = [0,0,2,3,1]
    swap = 0; nd = [0, 0]; cl = []
    for c in range(9):
        rl, rh = RANK[LAML[c]], RANK[LAMH[c]]
        sw = (rh < rl) if max(rl, rh) < 2 else (rh > rl)
        la, lb = (LAMH[c], LAML[c]) if sw else (LAML[c], LAMH[c])
        swap |= sw << c; nd[0] |= NEED[la] << 3*c; nd[1] |= NEED[lb] << 3*c
        cl.append(({0:0, 2:2, 3:4}[RANK[la]], {0:1, 1:1, 2:3, 3:5}[RANK[lb]]))
    ca = sum(x[0] << 3*i for i, x in enumerate(cl)); cb = sum(x[1] << 3*i for i, x in enumerate(cl))
    return swap, nd, ca, cb
def xearly_addr(a):
    swap = classes()[0]; X = ACC[0]
    a(f'''s_lshl_b32 s96, s{sI}, 2
    s_lshr_b32 s98, s{sC}, 2
    s_add_u32 s96, s96, s98
    s_mul_i32 s96, s96, 1152
    s_and_b32 s98, s{sC}, 3
    s_min_u32 s98, s98, 2
    s_mul_i32 s99, s{sWV}, 3
    s_add_u32 s98, s98, s99
    s_min_u32 s98, s98, 8
    s_lshl_b32 s99, s98, 6
    s_add_u32 s96, s96, s99
    v_lshrrev_b32 v{X}, 2, v{VLANE}
    v_mul_u32_u24 v{X}, 4608, v{X}
    v_lshrrev_b32 v{X+1}, 4, v{VLANE}
    v_xor_b32 v{X+1}, v{X+1}, v{VLANE}
    v_and_b32 v{X+1}, 3, v{X+1}
    v_add_lshl_u32 v{X}, v{X}, v{X+1}, 4
    s_bitcmp1_b32 {swap:#x}, s98
    s_cselect_b32 s98, 576, 0
    s_cselect_b32 s99, 0, 576
    s_add_u32 s98, s98, s96
    s_add_u32 s99, s99, s96
    v_add_u32 v{X+2}, s99, v{X}
    v_add_u32 v{X}, s98, v{X}
    v_add_u32 v{X+1}, {16*73728}, v{X}
    v_add_u32 v{X+3}, {16*73728}, v{X+2}''')
def xearly(a):
    a(f's_lshl_b32 s98, s{sWV}, 12')
    for k in range(4):
        a(f's_add_u32 m0, s98, {BIAS_LDS + 2048 + 1024*k}\ns_nop 0')
        a.vm(f'buffer_load_dwordx4 v{ACC[0]+k}, {S(SX)}, 0 offen lds', 'x2')
def xback(v, t):
    o = sops(f"""s_min_u32 s3, s{sWV}, 2
    s_lshl_b32 s3, s3, 12
    s_add_u32 s3, s3, {BIAS_LDS+2048}
    v_and_b32 v{v}, 31, v{VLANE}""".replace('\n', '\n'))
    o = [V(f's_min_u32 s3, s{sWV}, 2\ns_lshl_b32 s3, s3, 12\ns_add_u32 s3, s3, {BIAS_LDS+2048}\nv_and_b32 v{v}, 31, v{VLANE}\nv_lshl_add_u32 v{v}, v{v}, 6, s3', 5),
         V(f'v_bfe_u32 v{t}, v{VLANE}, 2, 2'), V(f'v_lshl_add_u32 v{v}, v{t}, 4, v{v}'), V(f'v_lshrrev_b32 v{t}, 5, v{VLANE}'), V(f'v_lshl_add_u32 v{v}, v{t}, 3, v{v}'), FN(lambda a: a.vneed('x2'), 0)]
    for q in range(4):
        if q: o.append(V(f'v_xor_b32 v{t}, {16*q}, v{v}'))
        o += [LD(f'ds_read_b64 {ar(AX+8*hf+2*q,2)}, v{t if q else v} offset:{2048*hf}') for hf in range(2)]
    return o
def fsetup0():
    return sops(f"""s_lshl_b32 s{sFLG}, s{sB}, 1
    s_and_b32 s39, s{sC}, 1
    s_add_u32 s{sFLG}, s{sFLG}, s39
    s_mul_i32 s{sFLG}, s{sFLG}, {128*Cfg.fw}
    s_lshr_b32 s39, s{sC}, 1
    s_mul_i32 s39, s39, {4 if Cfg.fw == 1 else 128}
    s_add_u32 s{sFLG}, s{sFLG}, s39
    s_add_u32 s{sFLG}, s{sFLG}, {FL2_OFF}""")
def fsetup():
    a = E(); swap, nd, ca, cb = classes()
    a(f"""s_lshl_b32 s52, s{sI}, 2
    s_lshr_b32 s38, s{sC}, 2
    s_add_u32 s52, s52, s38             ; b'
    s_and_b32 s65, s{sC}, 3
    s_min_u32 s65, s65, 2
    s_mul_i32 s38, s{sWV}, 3
    s_add_u32 s65, s65, s38
    s_min_u32 s65, s65, 8                 ; tile c
    s_mul_i32 s39, s65, 3
    s_lshr_b32 s{sND}, {nd[0]:#x}, s39
    s_and_b32 s{sND}, s{sND}, 7
    s_lshr_b32 s{sND+1}, {nd[1]:#x}, s39
    s_and_b32 s{sND+1}, s{sND+1}, 7
    s_lshr_b32 s38, {ca:#x}, s39
    s_and_b32 s38, s38, 7
    s_lshl_b32 s{sCLS}, 1, s38
    s_lshr_b32 s38, {cb:#x}, s39
    s_and_b32 s38, s38, 7
    s_bitset1_b32 s{sCLS}, s38
    s_bitcmp1_b32 s{sROLE}, {R_FINW}
    s_cselect_b32 s{sCLS}, s{sCLS}, 0
    s_mul_i32 s39, s52, {256*Cfg.fw}
    s_add_u32 s39, s39, {FL2_OFF + 128*Cfg.fw}
    s_cmp_eq_u32 s65, 8
    s_cselect_b32 s38, 0, {128*Cfg.fw}
    s_sub_u32 s38, s39, s38
    s_mul_i32 s{sPB}, s52, 18
    s_add_u32 s{sPB}, s{sPB}, s65
    s_lshl_b32 s{sPB}, s{sPB}, 14
    s_add_u32 s{sPB}, s{sPB}, {PART_OFF}
    s_lshl_b32 s{sXO}, s65, 6
    s_bitcmp1_b32 {swap:#x}, s65
    s_cselect_b32 s{sFO}, s39, s38
    s_cselect_b32 s{sFO+1}, s38, s39
    s_cselect_b32 s{sSG}, -1.0, 1.0
    s_cselect_b32 s{sSG+1}, 1.0, -1.0
    s_cselect_b32 s38, {9*16384}, 0
    s_cselect_b32 s39, 576, 0
    s_add_u32 s{sPB+1}, s{sPB}, {9*16384}
    s_sub_u32 s{sPB+1}, s{sPB+1}, s38
    s_add_u32 s{sPB}, s{sPB}, s38
    s_add_u32 s{sXO+1}, s{sXO}, 576
    s_sub_u32 s{sXO+1}, s{sXO+1}, s39
    s_add_u32 s{sXO}, s{sXO}, s39
    s_add_u32 s{sXO+2}, s{sXO}, {16*73728}
    s_add_u32 s{sXO+3}, s{sXO+1}, {16*73728}
    s_sub_u32 s38, s{sND}, 4
    s_mul_i32 s38, s38, {16384*Cfg.fw if Cfg.fs else 0}
    s_add_u32 s{sFO}, s{sFO}, s38
    s_sub_u32 s38, s{sND+1}, 4
    s_mul_i32 s38, s38, {16384*Cfg.fw if Cfg.fs else 0}
    s_add_u32 s{sFO+1}, s{sFO+1}, s38
    s_add_u32 s{sND}, s{sND}, s{sNON}
    s_add_u32 s{sND+1}, s{sND+1}, s{sNON}
    v_and_b32 v{VFA}, 7, v{VLANE}
    v_lshlrev_b32 v{VFA}, {2 if Cfg.fw == 1 else 7}, v{VFA}
    v_lshrrev_b32 v{VO}, 2, v{VLANE}
    s_mov_b32 s38, 73728
    v_mul_lo_u32 v{VO}, v{VO}, s38
    v_and_b32 v206, 3, v{VLANE}
    v_lshl_add_u32 v{VO}, v206, 4, v{VO}
    s_mul_i32 s38, s52, 1152
    v_add_u32 v{VO}, s38, v{VO}""")
    a(f's_mul_i32 s{sFP}, s52, 36864\ns_mul_i32 s38, s{sWV}, 12288\ns_add_u32 s{sFP}, s{sFP}, s38\ns_add_u32 s{sFP}, s{sFP}, {P_OFF}')
    return sops('\n'.join(a.l))
def cls_block(a, mask, body, inv=False):
    l = a.label('CB'); a(f's_and_b32 s98, s{sCLS}, {mask}\ns_cbranch_scc{1 if inv else 0} {l}'); s0 = a.snap()
    body(a); a(f'{l}:'); a.merge(s0, a.snap())
SE = [56, 8]
def eld(hf, w):
    def f(a):
        if Cfg.fw == 1: a(f's_buffer_load_dwordx8 s[{w}:{w+7}], {S(SWS)}, s{sFO+hf} glc')
        else:
            for i in range(8): a(f's_buffer_load_dword s{w+i}, {S(SWS)}, s{sFO+hf} offset:{128*i} glc')
        a.smem = True
    return f
def etest(a, hf, w):
    for i in range(8): a(f's_sub_u32 s{w+i}, s{w+i}, s{sND+hf}')
    for i in (0, 2, 4, 6): a(f's_max_u32 s{w+i}, s{w+i}, s{w+i+1}')
    a(f's_max_u32 s{w}, s{w}, s{w+2}\ns_max_u32 s{w+4}, s{w+4}, s{w+6}\ns_max_u32 s{w}, s{w}, s{w+4}\ns_cmp_gt_u32 s{w}, 8')
def etry_c(hf, w):
    def f(a):
        a.drain()
        if Cfg.blk & (1 << hf):
            cls_block(a, 1 << hf, lambda a: eblock(a, hf, w, Cfg.slp)); return
        etest(a, hf, w)
        a(f"""s_cselect_b32 s98, {1 << hf}, 0
        s_and_b32 s98, s98, s{sCLS}
        s_mul_i32 s98, s98, 5
        s_xor_b32 s{sCLS}, s{sCLS}, s98""")
    return f
def eblock(a, hf, w, slp=None):
    lc = a.label('EC'); lk = a.label('EK')
    etest(a, hf, w)
    a(f's_cbranch_scc1 {lc}\n{lk}:')
    a.ool += [f'{lc}:', f' buffer_load_dword v{VPO}, v{VFA}, {S(SWS)}, s{sFO+hf} offen sc1', ' s_waitcnt vmcnt(0)', f' v_subrev_u32 v{VPO}, s{sND+hf}, v{VPO}', f' v_cmp_lt_u32 vcc, 8, v{VPO}', ' s_nop 1', ' s_cmp_lg_u64 vcc, 0',
              f' s_cbranch_scc0 {lk}', f' s_sub_u32 s{sP}, s{sP}, 1', f' s_cbranch_scc1 {lc}_x', f' s_sleep {slp or Cfg.slp2}', f' s_branch {lc}', f'{lc}_x:', f' s_mov_b32 s{sP}, 0', f' s_branch {lk}']
def pl_ops(hf, i0, i1, srd_=SWS):
    o = []
    for i in range(i0, i1):
        if i % 4 == 0 or i == i0: o.append(V(f's_add_u32 s3, s{sPB+hf}, {4096*(i//4)}'))
        o.append(VM(f'buffer_load_dwordx4 {vr(PTH[hf]+4*i)}, v{VL16}, {S(srd_)}, s3 offen offset:{1024*(i%4)} sc1 {NT(2)}', ('pt', hf)))
    return o
def loads_if(hf, m): return [FN(lambda a, k=k: cls_block(a, m, lambda a: emit(a, pl_ops(hf, 2*k, 2*k+2)))) for k in range(8)]
def xb_ops():
    o = [V(f'v_lshrrev_b32 v{VBI}, 5, v{VLANE}'), V(f'v_lshlrev_b32 v{VBI}, 3, v{VBI}')]
    for hf in range(2):
        o.append(V(f'v_add_u32 v1, s{sXO+hf}, v{VBI}\nv_add_u32 v1, {B2_LDS}, v1'))
        for q in range(4): o.append(LD(f'ds_read_b64 {ar(AB2+8*hf+2*q,2)}, v1 offset:{16*q}'))
    for hf in range(2):
        for i in range(2): o.append(VM(f'buffer_load_dwordx4 {ar(AX+8*hf+4*i)}, v{VO}, {S(SX)}, s{sXO+hf+2*i} offen', 'x2'))
    return o
TWL = XP_LDS
def coop_tw(wv=None, dst=None):
    t = TMP; sc = 2.0/(2048*576)/(GS if Cfg.gs else 1.0)
    o = f"""v_and_b32 v{t}, 31, v{VLANE}
    v_lshrrev_b32 v{t+1}, 5, v{VLANE}
    v_lshlrev_b32 v207, 2, v{t+1}
    v_sub_u32 v207, v{t}, v207
    v_lshlrev_b32 v{t}, 6, v{t}
    v_add_u32 v{t}, s52, v{t}
    s_lshr_b32 s38, {'s%d' % sWV if wv is None else wv}, 1
    s_and_b32 s39, {'s%d' % sWV if wv is None else wv}, 1
    s_lshl_b32 s8, s38, 4
    s_lshl_b32 s9, s39, 2
    s_add_u32 s8, s8, s9
    v_lshl_add_u32 v{t+1}, v{t+1}, 3, s8
    v_mul_u32_u24 v{t+1}, v{t+1}, v{t}
    s_add_u32 s8, s8, s9
    v_subrev_u32 v207, s8, v207
    s_lshl_b32 s38, s38, 10
    s_lshl_b32 s39, s39, 3
    s_add_u32 s38, s38, s39
    s_add_u32 s38, s38, {TWL if dst is None else dst}
    v_add_u32 v206, s38, v{VL16}
"""
    R = [208+i for i in range(8)]
    L = []
    for i in range(4): L.append(f'v_mad_u32_u24 v{R[i]}, v{t}, {i}, v{t+1}')
    for i in range(4): L.append(f'v_and_b32 v{R[i]}, 0x7ff, v{R[i]}')
    for i in range(4): L.append(f'v_cvt_f32_u32 v{R[i]}, v{R[i]}')
    for i in range(4): L.append(f'v_mul_f32 v{R[i]}, {f2u(1/2048):#x}, v{R[i]}')
    for i in range(4): L.append(f'v_cos_f32 v{R[4+i]}, v{R[i]}')
    for i in range(4): L.append(f'v_sin_f32 v{R[i]}, v{R[i]}')
    for i in (4,5,6,7,0,1,2,3): L.append(f'v_mul_f32 v{R[i]}, {f2u(sc):#x}, v{R[i]}')
    L += [f'v_cvt_pk_bf16_f32 v{t}, v{R[4]}, v{R[5]}', f'v_cvt_pk_bf16_f32 v{t+1}, v{R[6]}, v{R[7]}', f'v_cvt_pk_bf16_f32 v{t+2}, v{R[0]}, v{R[1]}', f'v_cvt_pk_bf16_f32 v{t+3}, v{R[2]}, v{R[3]}',
          f'v_xor_b32 v{t+4}, 0x80008000, v{t+2}', f'v_xor_b32 v{t+5}, 0x80008000, v{t+3}',
          f'v_and_b32 v{R[0]}, 1, v207', f'v_lshlrev_b32 v{R[0]}, 4, v{R[0]}', f'v_mov_b32 v{R[1]}, 0x3f80', f'v_lshlrev_b32 v{R[0]}, v{R[0]}, v{R[1]}', 'v_and_b32 v207, -2, v207',
          'v_cmp_eq_u32 vcc, 0, v207', 's_nop 1', f'v_cndmask_b32 v{t+6}, 0, v{R[0]}, vcc', 'v_cmp_eq_u32 vcc, 2, v207', 's_nop 1', f'v_cndmask_b32 v{t+7}, 0, v{R[0]}, vcc']
    ops = sops(o + '\n'.join(L))
    ops += [(8, LD(f'ds_write_b64 v206, {vr(t+2*m,2)} offset:{2048*m}')[1]) for m in range(4)]
    return ops
def tw_reads(src=None):
    return [V(f'v_add_u32 v206, {TWL if src is None else src}, v{VL16}')] + [LD(f'ds_read_b128 {ar(TW+4*i)}, v206 offset:{1024*i}') for i in range(8)]

PB = 24576
def fin_addr():
    return sops(f"""s_add_u32 s38, s{sW2K}, {PB}
    v_lshrrev_b32 v6, 5, v{VLANE}
    v_bfe_u32 v7, v{VLANE}, 2, 2
    v_lshl_add_u32 v6, v6, 3, v7
    v_lshlrev_b32 v6, 7, v6
    v_bfe_u32 v7, v{VLANE}, 1, 1
    v_lshl_add_u32 v6, v7, 6, v6
    v_bfe_u32 v7, v{VLANE}, 4, 1
    v_lshl_add_u32 v6, v7, 4, v6
    v_and_b32 v7, 1, v{VLANE}
    v_lshl_add_u32 v6, v7, 3, v6
    v_add_u32 v6, s38, v6
    v_add_u32 v7, s38, v{VL16}
    s_lshl_b32 s38, s{sWV}, 12
    v_add_u32 v3, s38, v{VL16}
    v_add_u32 v1, 73728, v3
    s_lshl_b32 s38, s{sWV}, 14
    s_add_u32 s38, s38, {PB + 6144}
    v_add_u32 v247, s38, v{VL16}
    s_mov_b32 s39, {f2u(-math.log2(math.e)):#x}""")
APF = 32
def prd(jj):
    return [LD(f'ds_read_b64_tr_b16 {ar(APF+16*jj+8*p+4*t+2*rho,2)}, v6 offset:{8192*(2*jj+t)+512*rho+32*p}', ('pf', jj))
            for t in range(2) for p in range(2) for rho in range(2)]
def final(a):
    Ea=72; Oa=88; YS=[104,208,72]; GA=[208, 104]; PK2=224; T=240; VY=7; VG=3; VG2=1; AY=16
    cv, st = part_inplace(JC[0], 3)
    brole(a, R_FINW, 'L_nfw', False); s0 = a.snap()
    la = a.l; a.l = []; a('L_nfw:')
    a('s_nop 8'); emit(a, mix(cv, st))
    brole(a, R_FIN, 'L_w3'); s3_ = a.snap()
    setflag2(a, 8, ('p',3)); a('s_branch L_fin')
    a('L_w3:'); a.restore(s3_)
    for k in range(6):
        a(f's_mov_b32 m0, {122880 + 4096*k}\ns_mov_b32 s96, {86016 - 6144 + 4096*k}\nv_lshl_add_u64 {vr(VTT,2)}, s[96:97], 0, {vr(VTB,2)}')
        for i in range(4): a.vm(f'global_load_lds_dwordx4 {vr(VTT,2)}, off offset:{1024*i}')
        if k == Cfg.w3b: a.vneed(('d', 104)); a('s_barrier')
    setflag2(a, 8, ('p',3))
    a.vdrain(); a('s_barrier\ns_branch L_fin')
    HOT.extend(a.l); a.l = la; a.restore(s0)
    lc = a.label('PR'); lk = a.label('PL')
    if not Cfg.blk & 4: a(f's_cmp_lg_u32 s11, 0\ns_cbranch_scc1 {lc}')
    else: a('s_nop 1')
    t = E(); t.nlab = 9000
    t(f'{lc}:\ns_nop 7'); emit(t, mix(cv, st))
    t.vm(poll_ins(200, 204, '0'), 'x'); t.vm(poll_ins(202, 205, '0'), 'y')
    poll_check(t, 'x', 200, 204, '0', 1); poll_check(t, 'y', 202, 205, '0', 1)
    t.drain()
    for q in range(93, 99):
        for f in plan(q, 'P'): f(t)
    t.vdrain(); emit(t, prd(0) + prd(1) + prd(2)); t.drain()
    C=lambda t: ar(TW+4*t); Sn=lambda t: ar(TW+8+4*t); N=lambda t: ar(TW+16+4*t)
    def inv(jj):
        yr=vr(YS[jj],16); yi=vr(YS[jj]+16,16); P=APF+16*jj; mf=[]
        for u in range(2):
            mf += [f'{M} {yr}, {ar(P+4*u)}, {C(u)}, {"0" if u==0 else yr}', f'{M} {yi}, {ar(P+8+4*u)}, {C(u)}, {"0" if u==0 else yi}',
                   f'{M} {yr}, {ar(P+8+4*u)}, {N(u)}, {yr}', f'{M} {yi}, {ar(P+4*u)}, {Sn(u)}, {yi}']
        return mf
    for x in inv(0): t(x)
    t(f's_nop 4\ns_branch {lk}')
    if not Cfg.blk & 4: a.ool += t.l + t.ool
    def pk(jj):
        o = []
        for q in range(4):
            o += [V(f'v_cvt_pk_bf16_f32 v{YS[jj]+8*q+i}, v{YS[jj]+8*q+2*i}, v{YS[jj]+8*q+2*i+1}') for i in range(4)]
            o.append(LD(f'ds_write_b128 v{VY}, {vr(YS[jj]+8*q)} offset:{8192*(2*jj+q%2)+1024*(q//2)}', 'yw'))
        return o
    a.need(('pf', 0))
    mf = inv(0)
    for x in mf[:2]: a(x)
    a('s_nop 2')
    if Cfg.m0 >= 0:
        u = E(); etest(u, 0, 56)
        u(f's_cselect_b32 s98, 0, {1|4}\ns_and_b32 s98, s98, s{sCLS}\ns_cselect_b32 s99, {1 << 14}, 0\ns_xor_b32 s{sCLS}, s{sCLS}, s98\ns_or_b32 s{sCLS}, s{sCLS}, s99')
        interleave(a, mf[2:], mix(cv, st) + [FN(dodrain)] + sops('\n'.join(u.l)))
    else: interleave(a, mf[2:], mix(cv, st))
    a.need(('pf', 2))
    a(f'{lk}:')
    stamp(a, 'f1')
    if not (Cfg.blk & 2 and '1' in Cfg.sch): eld(1, 56)(a)
    eld(0, 20)(a)
    for jj in (1, 2):
        mf = inv(jj)
        ml = lambda k: FN(lambda a: cls_block(a, 1 << 14, lambda a: emit(a, pl_ops(0, 4*k, 4*k+4))))
        for x in mf[:2]: a(x)
        if Cfg.m0 >= 0: emit(a, [ml(2*jj-2)])
        a('s_nop 5')
        interleave(a, mf[2:], pk(jj-1)[:10] + ([ml(2*jj-1)] if Cfg.m0 >= 0 else []) + pk(jj-1)[10:])
    def summ(hf):
        y = vr(GA[hf], 16)
        o = [f'{M} {y}, {ar(SEL)}, {ar(AB2+8*hf)}, 0', f'{M} {y}, {ar(SEL+4)}, {ar(AB2+8*hf+4)}, {y}']
        return o + [f'{M} {y}, {ar(SEL+4*(i%2))}, {vr(PTH[hf]+4*i)}, {y}' for i in range(16)]
    VW = 204; VR = 205
    setup = sops(f"""s_mul_i32 s38, s{sWV}, 5120
    s_add_u32 s38, s38, {BIAS_LDS}
    v_and_b32 v{VW}, 31, v{VLANE}
    v_mul_u32_u24 v{VW}, 80, v{VW}
    v_add3_u32 v{VW}, v{VW}, v{VBI}, s38
    v_lshrrev_b32 v{VR}, 2, v{VLANE}
    v_mul_u32_u24 v{VR}, 80, v{VR}
    v_and_b32 v206, 3, v{VLANE}
    v_lshlrev_b32 v206, 4, v206
    v_add3_u32 v{VR}, v{VR}, v206, s38""")
    XU = [8, 120]; U0 = 24; GB = 40
    def xun(hf):
        d = vr(XU[hf], 16)
        return [f'{M} {d}, {ar(SEL)}, {ar(AX+8*hf)}, 0', f'{M} {d}, {ar(SEL+4)}, {ar(AX+8*hf+4)}, {d}']
    def sum0(t):
        y = vr(GA[0] if t == 0 else GB, 16)
        return [f'{M} {y}, {ar(SEL+4*t)}, {ar(AB2+4*t)}, 0'] + [f'{M} {y}, {ar(SEL+4*t)}, {vr(PTH[0]+8*i+4*t)}, {y}' for i in range(8)]
    def u0(): return [V(f'v_fma_f32 v{U0+i}, v{Oa+i}, s{sSG}, v{Ea+i}') for i in range(16)]
    def wr(hf, g): return LD(f'ds_write_b64 v{VW}, {vr(PK2+8*hf+g//2,2)} offset:{2560*hf+4*g}')
    def outp(hf):
        o = [LD(f'ds_read_b128 {vr(PK2+8*hf+4*i)}, v{VR} offset:{2560*hf+1280*i}', ('tr', hf, i)) for i in range(2)]
        st = [FN(lambda a, i=i: (a.need(('tr', hf, i)), a.vm(f'buffer_store_dwordx4 {vr(PK2+8*hf+4*i)}, v{VO}, {S(SOUT)}, s{sXO+hf+2*i} offen {Cfg.ofl}'))) for i in range(2)]
        return o, st
    def fin0(t):
        o = []
        for g in (8*t, 8*t+4):
            y = [(GA[0] if t == 0 else GB)+g+i for i in range(4)]; r = [T+i for i in range(4)]
            x = [f'v_mul_f32 v{r[i]}, s39, v{y[i]}' for i in range(4)] + [f'v_exp_f32 v{r[i]}, v{r[i]}' for i in range(4)]
            x += [f'v_add_f32 v{r[i]}, 1.0, v{r[i]}' for i in range(4)] + [f'v_rcp_f32 v{r[i]}, v{r[i]}' for i in range(4)]
            x += [f'v_mul_f32 v{y[i]}, v{U0+g+i}, v{y[i]}' for i in range(4)] + [f'v_fma_f32 v{r[i]}, v{r[i]}, v{y[i]}, v{XU[0]+g+i}' for i in range(4)]
            x += [f'v_cvt_pk_bf16_f32 v{PK2+g//2+i}, v{r[2*i]}, v{r[2*i+1]}' for i in range(2)]
            o += [V(z) for z in x] + [wr(0, g)]
        return o
    def rdyg(i):
        j = i//4; r = i % 4; go = 12288*j + 1024*r
        a.lds(f'ds_read_b128 {ar(AY+4*r)}, v{VY} offset:{8192*(2*(j%3) + r//2) + 2048*(j//3) + 1024*(r%2)}', ('yg', i))
        if j < 2:    a.lds(f'ds_read_b128 {ar(4*r)}, v{VG} offset:{go}', ('yg', i))
        elif j == 2: a.lds(f'ds_read_b128 {ar(4*r)}, v247 offset:{8192*(r//2) + 1024*(r%2)}', ('yg', i))
        else:        a.lds(f'ds_read_b128 {ar(4*r)}, v{VG2} offset:{go-36864}', ('yg', i))
    stamp(a, 'f2')
    def mainm(i):
        j = i//4; u = (i//2) % 2
        d = vr(Ea if (u == 1) == (j < 5) else Oa, 16)
        a(f'{M} {d}, {ar(4*(i%4))}, {ar(AY+4*(i%4))}, {"0" if i in (0,2) else d}')
    def silu(hf):
        o = []
        for g in range(0, 16, 4):
            y = [GA[hf]+g+i for i in range(4)]; t = [T+i for i in range(4)]
            o += [V(f'v_mul_f32 v{t[i]}, s39, v{y[i]}') for i in range(4)] + [V(f'v_exp_f32 v{t[i]}, v{t[i]}') for i in range(4)] + [V(f'v_add_f32 v{t[i]}, 1.0, v{t[i]}') for i in range(4)]
            o += [V(f'v_rcp_f32 v{t[i]}, v{t[i]}') for i in range(4)] + [V(f'v_mul_f32 v{y[i]}, v{t[i]}, v{y[i]}') for i in range(4)]
        return o
    def comb(hf):
        o = []
        for g in range(0, 16, 4):
            u = [248+i for i in range(4)]
            o += [V(f'v_fma_f32 v{u[i]}, v{Oa+g+i}, s{sSG+hf}, v{Ea+g+i}') for i in range(4)] + [V(f'v_fma_f32 v{u[i]}, v{u[i]}, v{GA[hf]+g+i}, v{XU[hf]+g+i}') for i in range(4)]
            o += [V(f'v_cvt_pk_bf16_f32 v{PK2+8*hf+g//2+i}, v{u[2*i]}, v{u[2*i+1]}') for i in range(2)] + [wr(hf, g)]
        return o + outp(hf)[0]
    if Cfg.m0 >= 0:
        l1 = a.label('MW'); n = 4 if Cfg.sn else 0
        a(f's_bitcmp1_b32 s{sCLS}, 14\ns_cbranch_scc1 {l1}\ns_waitcnt vmcnt({n})\n{l1}:\ns_waitcnt vmcnt({16+n})')
        for t_ in [t_ for t_ in a.st['v'] if t_ != ('pt', 0) and (t_ != ('p', 3) or not Cfg.sn)]: del a.st['v'][t_]
    if Cfg.f8 == 99: setflag2(a, 8, ('p',3))
    a(f's_and_b32 s98, s{sCLS}, {1|4|16}\ns_cselect_b32 s98, 64, 0\ns_or_b32 s{sCLS}, s{sCLS}, s98')
    def point(a):
        def b(a):
            l = a.label('T0'); a.drain(); etest(a, 0, 20); eld(0, 20)(a); a(f's_cbranch_scc1 {l}'); s0 = a.snap()
            emit(a, pl_ops(0, 0, 16)); a(f's_xor_b32 s{sCLS}, s{sCLS}, {64|256}\n{l}:'); a.merge(s0, a.snap())
        cls_block(a, 64, b)
    def must0(a):
        def b(a):
            l = a.label('MS'); l2 = a.label('MT')
            a(f's_mov_b32 s99, 6\n{l}:'); a.drain(); etest(a, 0, 20); a(f's_cbranch_scc0 {l2}'); eld(0, 20)(a)
            a(f's_sub_u32 s99, s99, 1\ns_cbranch_scc0 {l}'); a.drain(); eblock(a, 0, 20); a(f'{l2}:'); stamp(a, 'g2')
            emit(a, pl_ops(0, 0, 16))
        cls_block(a, 64, b)
        a.vdrain()
    pts = [int(x) for x in str(Cfg.pts).split('_')]
    def verify(a):
        if not Cfg.sn: return
        def b(a):
            lc = a.label('VC'); ls = a.label('VS'); lk = a.label('VK')
            a(f'{lc}:\nv_max_u32 v{T}, v{PTH[0]+3}, v{PTH[0]+7}')
            for i in range(2, 16, 2): a(f'v_max3_u32 v{T}, v{T}, v{PTH[0]+4*i+3}, v{PTH[0]+4*i+7}')
            a(f'v_cmp_eq_u32 vcc, -1, v{T}\ns_nop 1\ns_cmp_lg_u64 vcc, 0\ns_cbranch_scc1 {ls}\n{lk}:')
            o = [f'{ls}:', f' s_sub_u32 s{sP}, s{sP}, 1', f' s_cbranch_scc1 {ls}_x', f' s_sleep {Cfg.slp3}']
            for k in range(8):
                l = a.label('RF'); r = PTH[0] + 8*k
                o += [f' v_max_u32 v{T}, v{r+3}, v{r+7}', f' v_cmp_eq_u32 vcc, -1, v{T}', f' s_add_u32 s3, s{sPB}, {2048*k}', ' s_nop 0', ' s_cmp_eq_u64 vcc, 0', f' s_cbranch_scc1 {l}',
                      f' buffer_load_dwordx4 {vr(r)}, v{VL16}, {S(SWS)}, s3 offen sc1', f' buffer_load_dwordx4 {vr(r+4)}, v{VL16}, {S(SWS)}, s3 offen offset:1024 sc1', f'{l}:']
            HOT.extend(o + [' s_waitcnt vmcnt(0)', f' s_branch {lc}', f'{ls}_x:', f' s_mov_b32 s{sP}, 0', f' s_branch {lk}'])
        cls_block(a, 16, b)
    noslow = Cfg.blk & 2 and '1' in Cfg.sch
    if not noslow: a(f's_bitcmp1_b32 s{sCLS}, 12\ns_cbranch_scc0 L_slow')
    s_sl = a.snap()
    a.vneed(('d', 104))
    s1 = summ(1) + xun(1) + xun(0)
    for x in s1[:2]: a(x)
    a('s_nop 2')
    interleave(a, s1[2:9], pk(2) + [V(f'v_add_u32 v{VY}, {PB}, v{VL16}')])
    interleave(a, s1[9:12], setup)
    stamp(a, 'f3')
    a.drain(); a('s_barrier')
    t = E(); etest(t, 0, 20)
    t(f's_cselect_b32 s98, 0, 64\ns_and_b32 s98, s98, s{sCLS}\ns_mul_i32 s98, s98, {1 + 4 + 128}\ns_xor_b32 s{sCLS}, s{sCLS}, s98')
    interleave(a, s1[12:], [FN(lambda a: rdyg(0)), FN(lambda a: rdyg(1)), FN(lambda a: rdyg(2))] + sops('\n'.join(t.l)) + ([FN(eld(0, 20))] if Cfg.rfi < 0 else []))
    stamp(a, 'f4')
    def mainloop(fl, start, hook):
        k2 = 0
        for i in range(36):
            if i + 3 < 36: rdyg(i+3)
            a.need(('yg', i), *([('yg', i+1)] if i % 2 == 0 and Cfg.mw else []))
            mainm(i)
            hook(i)
            while i >= start and k2 < len(fl)*(i-start+1)//(35-start) and k2 < len(fl): fl[k2][1](a); k2 += 1
            if i == 24: a('s_barrier')
    def hookf(i):
        k = i - Cfg.lo
        if k >= 0 and k % Cfg.ls == 0 and k//Cfg.ls < 4: cls_block(a, 1 << 13, lambda a: emit(a, pl_ops(0, 4*(k//Cfg.ls), 4*(k//Cfg.ls)+4)))
        if i == Cfg.rfi: eld(0, 20)(a)
        if i in pts: point(a)
    mainloop(silu(1), 1, hookf)
    stamp(a, 'f5')
    lf = a.label('FF')
    a(f's_and_b32 s98, s{sCLS}, {64 | (16 if Cfg.sn == 2 else 0)}\ns_cbranch_scc1 {lf}'); s0 = a.snap()
    a.vdrain()
    if Cfg.sn == 1: verify(a)
    stamp(a, 'f6')
    sA = sum0(0); sB = sum0(1)
    for x in sA[:2]: a(x)
    a('s_nop 5')
    interleave(a, sA[2:], comb(1))
    interleave(a, sB[:3], u0() + outp(1)[1])
    a('s_branch L_last'); sa = a.snap()
    a(f'{lf}:'); a.restore(s0)
    point(a)
    a('s_nop 7')
    emit(a, comb(1) + u0() + outp(1)[1])
    a('L_w0:')
    stamp(a, 'g1')
    must0(a)
    verify(a)
    stamp(a, 'f6')
    for x in sA + sB[:2]: a(x)
    a('s_nop 7'); a(sB[2])
    a('L_last:'); a.merge(sa, a.snap())
    interleave(a, sB[3:], fin0(0))
    stamp(a, 'f8b')
    a('s_nop 3')
    emit(a, fin0(1))
    stamp(a, 'f9')
    emit(a, outp(0)[0] + outp(0)[1])
    global SLOW
    SLOW = []
    if noslow: return
    la = a.l; a.l = []
    a('L_slow:'); a.restore(s_sl)
    emit(a, setup + pk(2))
    a(f'v_add_u32 v{VY}, {PB}, v{VL16}')
    stamp(a, 'f3')
    a.vneed(('d', 104)); a.drain(); a('s_barrier')
    stamp(a, 'f4')
    for i in range(3): rdyg(i)
    etest(a, 1, 56); a(f's_cselect_b32 s98, 128, 0\ns_or_b32 s{sCLS}, s{sCLS}, s98')
    def hook(i):
        if i % 2 == 0 and i < 8: cls_block(a, 128, lambda a: emit(a, pl_ops(1, 2*i, 2*i+4)), inv=True)
        if i in pts: cls_block(a, 128, point, inv=True)
        if i == 22: eld(1, 56)(a)
    mainloop([], 0, hook)
    a.drain()
    cls_block(a, 128, lambda a: (eblock(a, 1, 56), eld(0, 20)(a), emit(a, pl_ops(1, 0, 16))))
    stamp(a, 'f5')
    point(a)
    l = a.label('RD')
    a(f's_bitcmp1_b32 s{sCLS}, 8\ns_cbranch_scc1 {l}\ns_waitcnt vmcnt(0)\n{l}:\ns_waitcnt vmcnt(16)')
    stamp(a, 'g0')
    for x in summ(1) + xun(1) + xun(0): a(x)
    point(a)
    a('s_nop 5')
    emit(a, silu(1)); point(a); emit(a, comb(1) + u0() + outp(1)[1])
    assert not a.st['l']
    a('s_branch L_w0')
    SLOW = a.l; a.l = la

def build(aslist=False):
    k = NAME + '_kernel'
    body = kernel()
    if Cfg.warm:
        import stubs
        body, st, end = stubs.add_stubs(body, '.set CODE_LINES, 17\n', ('L_main', 'L_odd', 'L_dft', 'L_s3', 'L_unit', 'L_finw', 'L_hot') + (('L_s9',) if Cfg.w3 >= 2 else ()) + (('TW_*',) if Cfg.tws else ()), Cfg.wmode)
        print('stubs', {k: [hex(x) for x in v] for k, v in st.items()}, 'end', end, file=sys.stderr)
    hdr = f'; @launch kernel={k} grid=(256,1,1) block=(256,1,1) lds=163840\n' if aslist else '; @launch grid=(256,1,1) block=(256,1,1) lds=163840\n'
    s = '; out = x + irfft2(rfft2(LN(x)) * W) * silu(FFN(LN(x)))  -- single persistent launch, one workgroup per CU (hand-written generator output)\n; kernarg: 0 A_x | 8 A_w_r | 16 A_w_i | 24 B_x (unused by the reference) | 32 B_w1 | 40 B_b1 | 48 B_w2 | 56 B_b2 | 64 out | 72 dbg | 80 ws\n; workgroup (i,c): 128 rows {64a+4i+w}, hidden columns of pair c/2; even c: 5 GEMM1 + 4 GEMM2 jobs (+ 64-pt DFT / filter / inverse along S),\n; odd c: 4 + 5 jobs (+ radix-2 DFT along D and 32-pt stage along S).  Hand-offs through d_ws: write-through stores + launch-tagged flags.\n' + hdr + '.amdgcn_target "amdgcn-amd-amdhsa--gfx950"\n.text\n.set CODE_LINES, 26\n'
    s += kstart(k) + body + 'L_codeend:\n'
    s += '.section .rodata,"a"\n' + kdesc(k, 512, 256) + tables()
    return s
if __name__ == '__main__':
    out = sys.argv[1] if len(sys.argv) > 1 else f'cdna_kernels/{NAME}.s'
    for x in sys.argv[2:]:
        if '=' in x:
            kx, vx = x.split('='); setattr(Cfg, kx, int(vx) if re.fullmatch(r'-?\d+', vx) and kx != 'sch' else vx)
    open(out, 'w').write(build('--list' in sys.argv))
```
